```python
import torch

def _softmax(x, axis=-1):
    return torch.softmax(x, dim=axis)
def _gelu(x):
    return torch.nn.functional.gelu(x, approximate="tanh")
def _silu(x):
    return torch.nn.functional.silu(x)
def _sigmoid(x):
    return torch.sigmoid(x)
def _layernorm(x, axis=-1, eps=1e-5):
    m = x.mean(dim=axis, keepdim=True)
    v = x.var(dim=axis, keepdim=True, unbiased=False)
    return (x - m) / torch.sqrt(v + eps)
def _scatter_add(tgt, idx, src, axis=0):
    return tgt.clone().index_add_(axis, idx, src)
def _segment_sum(src, seg, n):
    out = torch.zeros((n,) + src.shape[1:], dtype=src.dtype)
    return out.index_add_(0, seg, src)
def _pad(x, pw):
    flat = tuple(v for pair in reversed(pw) for v in pair)
    return torch.nn.functional.pad(x, flat)

kernel_name = 'concat_heads__linear_kernel_hedgehog__sliding_block__prompt'

def setup_inputs():

    _w = (lambda a: (lambda t: t.to(torch.bfloat16) if t.is_floating_point() else t)(torch.as_tensor(a)))
    def _A_setup():
        B, S, D, H = 1, 2048, 512, 32
        Dh = D // H
        return {
            "x": _w((lambda *s: torch.randn(*s, dtype=torch.bfloat16) * 0.1)(B, S, D)),
            "wqkv": _w((lambda *s: torch.randn(*s, dtype=torch.bfloat16) * 1.6)(D, 3 * D)),
            "w_phi": _w((lambda *s: torch.randn(*s, dtype=torch.bfloat16) * 1.6)(H, Dh, Dh) * (Dh ** -0.5)),
            "wo": _w((lambda *s: torch.randn(*s, dtype=torch.bfloat16) * 3.2)(D, D)),
        }
    _A_in = _A_setup()

    def _B_setup():
        B, S, D = 1, 2048, 512
        return {
            "x": _w((lambda *s: torch.randn(*s, dtype=torch.bfloat16) * 0.2)(B, S, D)),
            "wqkv": _w((lambda *s: torch.randn(*s, dtype=torch.bfloat16) * 0.4)(D, 3 * D)),
            "wo": _w((lambda *s: torch.randn(*s, dtype=torch.bfloat16) * 0.4)(D, D)),
        }
    _B_in = _B_setup()

    return {
        "A_x": _A_in["x"],
        "A_wqkv": _A_in["wqkv"],
        "A_w_phi": _A_in["w_phi"],
        "A_wo": _A_in["wo"],
        "B_x": _B_in["x"],
        "B_wqkv": _B_in["wqkv"],
        "B_wo": _B_in["wo"],
    }

def reference(A_x, A_wqkv, A_w_phi, A_wo, B_x, B_wqkv, B_wo):
    def _A_ref(x, wqkv, w_phi, wo):
        B, S, D = x.shape
        H = 32; Dh = D // H
        qkv = (lambda x, *d: x.permute(*d))((x @ wqkv).reshape(B, S, 3, H, Dh), 2, 0, 3, 1, 4)
        q, k, v = qkv[0], qkv[1], qkv[2]
        pq = torch.einsum("bhsd,hdf->bhsf", q, w_phi)
        pk = torch.einsum("bhsd,hdf->bhsf", k, w_phi)
        phi_q = torch.concatenate([_softmax(pq, axis=-1), _softmax(-pq, axis=-1)], axis=-1)
        phi_k = torch.concatenate([_softmax(pk, axis=-1), _softmax(-pk, axis=-1)], axis=-1)
        kv = torch.einsum("bhsf,bhsd->bhfd", phi_k, v)
        z  = torch.einsum("bhsf->bhf", phi_k)
        num = torch.einsum("bhqf,bhfd->bhqd", phi_q, kv)
        den = torch.einsum("bhqf,bhf->bhq", phi_q, z)[..., None] + 1e-6
        o = num / den
        return (lambda x, *d: x.permute(*d))(o, 0, 2, 1, 3).reshape(B, S, D) @ wo

    def _B_ref(x, wqkv, wo):
        B, S, D = x.shape
        H = 32; Dh = D // H; W = 256
        qkv = (lambda x, *d: x.permute(*d))((x @ wqkv).reshape(B, S, 3, H, Dh), 2, 0, 3, 1, 4)
        q, k, v = qkv[0], qkv[1], qkv[2]
        scores = torch.einsum("bhqd,bhkd->bhqk", q, k) * (Dh ** -0.5)
        idx = torch.arange(S)
        mask = (idx[:, None] - idx[None, :] >= 0) & (idx[:, None] - idx[None, :] < W)
        scores = torch.where(mask[None, None], scores, -1e9)
        p = _softmax(scores, axis=-1)
        o = torch.einsum("bhqk,bhkd->bhqd", p, v)
        return (lambda x, *d: x.permute(*d))(o, 0, 2, 1, 3).reshape(B, S, D) @ wo

    a = _A_ref(A_x, A_wqkv, A_w_phi, A_wo)
    b = _B_ref(B_x, B_wqkv, B_wo)
    return torch.concatenate([a, b], axis=-1)
```

```python
import re

REG_RE = re.compile(r'(?<![\w.])([vsa])(?:(\d+)|\[(\d+):(\d+)\])(?![\w])')

def regs_of(tok):
    out = set()
    for m in REG_RE.finditer(tok):
        k = m.group(1)
        if m.group(2) is not None: out.add((k, int(m.group(2))))
        else:
            for i in range(int(m.group(3)), int(m.group(4)) + 1): out.add((k, i))
    if re.search(r'\bvcc\b', tok): out.add(('s', 'vcc'))
    if re.search(r'\bexec\b', tok): out.add(('s', 'exec'))
    if re.search(r'\bm0\b', tok): out.add(('s', 'm0'))
    return out

TRANS = ('v_exp_f32', 'v_log_f32', 'v_rcp_f32', 'v_rsq_f32', 'v_sqrt_f32', 'v_sin_f32', 'v_cos_f32')

class Ins:
    def __init__(self, text):
        self.text = text
        t = text.split(';')[0].strip()
        parts = t.split(None, 1)
        self.op = parts[0]
        rest = parts[1] if len(parts) > 1 else ''
        ops = []
        depth = 0; cur = ''
        for ch in rest:
            if ch == '[': depth += 1
            if ch == ']': depth -= 1
            if ch == ',' and depth == 0: ops.append(cur.strip()); cur = ''
            else: cur += ch
        if cur.strip(): ops.append(cur.strip())
        self.ops = ops
        op = self.op
        self.is_mfma = op.startswith('v_mfma')
        self.is_valu = op.startswith('v_') and not self.is_mfma
        self.is_trans = op.replace('_e32', '').replace('_e64', '') in TRANS
        self.is_vmem = op.startswith(('buffer_', 'global_', 'flat_'))
        self.is_ds = op.startswith('ds_')
        self.is_salu = op.startswith('s_')
        self.is_lds_dma = self.is_vmem and re.search(r'\blds\b', rest) is not None
        self.wr = set(); self.rd = set(); self.srcc = set(); self.srcab = set()
        if op in ('s_nop', 's_waitcnt', 's_barrier', 's_endpgm', 's_sleep', 's_setprio', 's_branch') or op.startswith('s_cbranch'):
            pass
        elif self.is_mfma:
            self.wr = regs_of(ops[0]); self.srcab = regs_of(ops[1]) | regs_of(ops[2]); self.srcc = regs_of(ops[3])
            self.rd = self.srcab | self.srcc
        elif op.startswith('v_permlane') and 'swap' in op:
            self.wr = regs_of(ops[0]) | regs_of(ops[1]); self.rd = set(self.wr)
        elif op.startswith(('buffer_store', 'global_store', 'ds_write', 'buffer_atomic', 'global_atomic', 'ds_add')) or self.is_lds_dma or op.startswith('s_cmp') or op.startswith('buffer_wbl2') or op.startswith('buffer_inv'):
            for o in ops: self.rd |= regs_of(o)
            if self.is_lds_dma: self.rd.add(('s', 'm0'))
        else:
            self.wr = regs_of(ops[0]) if ops else set()
            for o in ops[1:]: self.rd |= regs_of(o)
            if op.startswith(('v_fmac', 'v_pk_fmac', 'v_dot2c')): self.rd |= self.wr
            if op.startswith(('v_add_co', 'v_sub_co', 'v_addc_co', 'v_subb_co')): self.wr |= regs_of(ops[1])
            if op.endswith('saveexec_b64'): self.wr.add(('s', 'exec'))
            if op in ('s_addk_i32', 's_mulk_i32'): self.rd |= self.wr
        self.wide_store = bool(re.match(r'(buffer|global)_store_dwordx[34]', op))
        self.store_data = set()
        if self.wide_store:
            self.store_data = regs_of(ops[0]) if op.startswith('buffer') else regs_of(ops[1])
        if self.is_mfma:
            self.passes = 8 if '32x32' in op else 4
        self.ws = 1
        if op == 's_nop': self.ws = int(ops[0], 0) + 1

def need(prod, cons):
    n = 0
    vw = {r for r in prod.wr if r[0] in 'va'}
    sw = {r for r in prod.wr if r[0] == 's'}
    if prod.is_valu:
        if cons.is_mfma and vw & cons.rd: n = max(n, 2)
        if cons.op.startswith('v_permlane') and vw & cons.rd: n = max(n, 2)
        if cons.op.startswith(('v_readlane', 'v_readfirstlane')) and vw & cons.rd: n = max(n, 1)
        if 'dpp' in cons.text or 'row_' in cons.text or 'quad_perm' in cons.text:
            if cons.is_valu and vw & cons.rd: n = max(n, 2)
        if prod.is_trans and (cons.is_valu or cons.is_mfma) and not cons.is_trans and vw & cons.rd: n = max(n, 1)
        if sw & cons.rd:
            if cons.is_vmem: n = max(n, 5)
            if cons.is_valu: n = max(n, 2 if not cons.op.startswith(('v_readlane', 'v_writelane')) else 4)
        if ('s', 'exec') in sw and cons.is_mfma: n = max(n, 4)
        if ('op_sel' in prod.text and not prod.op.startswith('v_pk_')) or 'dst_sel' in prod.text:
            if cons.is_valu and vw & (cons.rd | cons.wr): n = max(n, 1)
    if prod.is_mfma:
        p = prod.passes
        big = {4: 8, 8: 12}[p]
        if cons.is_mfma:
            if vw & cons.srcab: n = max(n, big)
            if vw & cons.srcc:
                if cons.srcc == vw and cons.passes == p: pass
                else: n = max(n, {4: 6, 8: 10}[p])
            elif vw & cons.wr and not (cons.wr == vw):
                n = max(n, big)
        else:
            if (cons.is_valu and vw & (cons.rd | cons.wr)) or ((cons.is_vmem or cons.is_ds) and vw & (cons.rd | cons.wr)):
                n = max(n, big)
            if cons.is_valu and prod.srcc & cons.wr: n = max(n, {4: 3, 8: 7}[p])
    if prod.is_salu and ('s', 'm0') in prod.wr and (cons.is_lds_dma or 'addtid' in cons.op): n = max(n, 1)
    if prod.wide_store and prod.store_data & cons.wr:
        n = max(n, 2 if (cons.is_valu or cons.is_mfma) else 1)
    return n

class Asm:
    def __init__(self):
        self.lines = []
        self.hist = []
        self.nops = 0
    def raw(self, s):
        self.lines.append(s)
    def label(self, name):
        self.lines.append(name + ':')
    def fence(self):
        self.hist = []
    def __call__(self, text):
        for ln in text.split('\n'):
            ln = ln.strip()
            if not ln: continue
            if ln.startswith(';') or ln.startswith('.') or ln.endswith(':'):
                self.lines.append(ln); continue
            ins = Ins(ln)
            dist = 0; pad = 0
            for prev in reversed(self.hist):
                r = need(prev, ins)
                if r > dist: pad = max(pad, r - dist)
                dist += prev.ws
                if dist >= 20: break
            while pad > 0:
                k = min(pad, 16)
                nop = Ins(f's_nop {k-1}')
                self.lines.append('    ' + nop.text); self.hist.append(nop); self.nops += 1
                pad -= k
            self.lines.append('    ' + ln)
            self.hist.append(ins)
            if len(self.hist) > 40: self.hist = self.hist[-40:]
    def text(self):
        return '\n'.join(self.lines) + '\n'

def kd(name, vgpr, sgpr=96, accum=None):
    if accum is None: accum = (vgpr + 3) // 4 * 4
    return f""".section .rodata,"a"
.p2align 6
.amdhsa_kernel {name}
  .amdhsa_next_free_vgpr {vgpr}
  .amdhsa_next_free_sgpr {sgpr}
  .amdhsa_accum_offset {accum}
  .amdhsa_group_segment_fixed_size 0
  .amdhsa_kernarg_size 80
  .amdhsa_user_sgpr_count 2
  .amdhsa_user_sgpr_kernarg_segment_ptr 1
  .amdhsa_system_sgpr_workgroup_id_x 1
  .amdhsa_float_denorm_mode_32 3
  .amdhsa_float_denorm_mode_16_64 3
.end_amdhsa_kernel
"""
def vr(b, n=1):
    return f'v{b}' if n == 1 else f'v[{b}:{b+n-1}]'
def sr(b, n=1):
    return f's{b}' if n == 1 else f's[{b}:{b+n-1}]'
```

```python
import sys, math, struct
sys.path.insert(0, 'work')
from asmlib import *

OPT = dict(rot=1, st='sc1', ost='sc1', stamps=0)
for a in sys.argv[1:]:
    k, v = a.split('='); OPT[k] = int(v) if v.lstrip('-').isdigit() else v
ST = '' if OPT['st'] == 'plain' else OPT['st']
OST = '' if OPT['ost'] == 'plain' else OPT['ost']

def f2u(x): return struct.unpack('<I', struct.pack('<f', x))[0]
LOG2E = math.log2(math.e)
WS_QB, WS_KB, WS_VB, WS_QA, WS_PK, WS_OA, WS_OB = 0x000000, 0x200000, 0x400000, 0x600000, 0x800000, 0xA00000, 0xC00000
WS_SIZE = 0xE00000
WS_STAMP = 0x1000000

class Q:
    def __init__(self, A, name, mx): self.A = A; self.q = []; self.name = name; self.mx = mx
    def push(self, tag): self.q.append(tag)
    def wait(self, *tags):
        idx = -1
        for i, t in enumerate(self.q):
            if t in tags: idx = i
        if idx < 0: return
        n = len(self.q) - 1 - idx
        n = min(n, self.mx)
        self.A(f's_waitcnt {self.name}({n})')
        self.q = self.q[len(self.q) - n:] if n else []
    def all(self):
        self.A(f's_waitcnt {self.name}(0)'); self.q = []

def stamp(A, k, idx, srd, wavereg):
    if not OPT['stamps']: return
    A(f's_memrealtime s[96:97]')
    A(f's_lshl_b32 s98, s2, 3\ns_add_u32 s98, s98, {wavereg}\ns_lshl_b32 s98, s98, 6\ns_add_u32 s98, s98, {WS_STAMP + k*0x40000 + idx*4}')
    A('s_waitcnt lgkmcnt(0)')
    A('v_mov_b32 v254, s96\nv_mov_b32 v255, 0')
    A(f'buffer_store_dword v254, v255, {srd}, s98 offen')

def header(A, name):
    A.raw(f'.globl {name}\n.p2align 8\n.type {name},@function\n{name}:')
    A.fence()

def dual_softmax_head(A, units, P, T):
    for u in units:
        p, t = P[u], T[u]
        A(f'v_max3_f32 v{t}, v{p}, v{p+1}, v{p+2}')
        A(f'v_max3_f32 v{t+1}, -v{p}, -v{p+1}, -v{p+2}')
    for u in units:
        p, t = P[u], T[u]
        A(f'v_max3_f32 v{t}, v{t}, v{p+3}, v{p+4}')
        A(f'v_max3_f32 v{t+1}, v{t+1}, -v{p+3}, -v{p+4}')
    for u in units:
        p, t = P[u], T[u]
        A(f'v_max3_f32 v{t}, v{t}, v{p+5}, v{p+6}')
        A(f'v_max3_f32 v{t+1}, v{t+1}, -v{p+5}, -v{p+6}')
    for u in units:
        p, t = P[u], T[u]
        A(f'v_max_f32 v{t}, v{t}, v{p+7}')
        A(f'v_max_f32_e64 v{t+1}, v{t+1}, -v{p+7}')
    for u in units:
        t = T[u]; A(f'v_permlane32_swap_b32 v{t}, v{t+1}')
    for u in units:
        t = T[u]; A(f'v_max_f32 v{t}, v{t}, v{t+1}')
    for u in units:
        t = T[u]; A(f'v_mul_f32 v{t}, s60, v{t}')
    for u in units:
        t = T[u]; A(f'v_mov_b32 v{t+1}, v{t}')
    for u in units:
        t = T[u]; A(f'v_permlane32_swap_b32 v{t}, v{t+1}')
    for u in units:
        p, t = P[u], T[u]
        for m in range(4):
            A(f'v_pk_fma_f32 v[{t+2+2*m}:{t+3+2*m}], v[{p+2*m}:{p+2*m+1}], s[60:61], v[{t}:{t+1}] op_sel_hi:[1,1,0] neg_lo:[0,0,1] neg_hi:[0,0,1]')
            A(f'v_pk_fma_f32 v[{t+10+2*m}:{t+11+2*m}], v[{p+2*m}:{p+2*m+1}], s[60:61], v[{t}:{t+1}] op_sel:[0,0,1] neg_lo:[1,0,1] neg_hi:[1,0,1]')
    for u in units:
        t = T[u]
        for r in range(16): A(f'v_exp_f32 v{t+2+r}, v{t+2+r}')

XRING, WRING = 0, 49152
K1_PHI, K1_VL, K1_WPH = 98304, 132096, 148480
PHI_PLANE, PHI_HEAD = 2112, 8448
K1_LDS = 150528

def gen_k1(A):
    header(A, 'k1_kernel')
    A('s_cmp_ge_u32 s2, 256\ns_cbranch_scc1 L_k1_end')
    A('s_load_dwordx4 s[4:7], s[0:1], 0\ns_load_dwordx2 s[8:9], s[0:1], 16\ns_load_dwordx4 s[12:15], s[0:1], 32\ns_load_dwordx2 s[16:17], s[0:1], 72')
    A('v_lshrrev_b32 v2, 6, v0\nv_and_b32 v1, 63, v0')
    A('s_and_b32 s36, s2, 7\ns_lshr_b32 s37, s2, 3\ns_lshr_b32 s38, s36, 2')
    A('v_readfirstlane_b32 s41, v2')
    A('s_and_b32 s39, s36, 1\ns_lshl_b32 s39, s39, 3\ns_and_b32 s42, s37, 7\ns_add_u32 s39, s39, s42')
    A('s_bfe_u32 s40, s36, 0x10001\ns_lshl_b32 s40, s40, 2\ns_lshr_b32 s43, s37, 3\ns_add_u32 s40, s40, s43')
    if OPT['rot']:
        A('s_lshl_b32 s43, s43, 1\ns_add_u32 s44, s42, s43')
    else:
        A('s_mov_b32 s44, 0')
    A('s_mov_b32 s22, 0x200000\ns_mov_b32 s23, 0x20000\ns_mov_b32 s26, 0x180000\ns_mov_b32 s27, 0x20000')
    A(f's_mov_b32 s30, {WS_SIZE if not OPT["stamps"] else 0x2000000}\ns_mov_b32 s31, 0x20000\ns_mov_b32 s34, 0x4000\ns_mov_b32 s35, 0x20000')
    A('s_cmp_eq_u32 s38, 0')
    A('s_waitcnt lgkmcnt(0)')
    A('s_cselect_b32 s20, s4, s12\ns_cselect_b32 s21, s5, s13\ns_cselect_b32 s24, s6, s14\ns_cselect_b32 s25, s7, s15')
    A('s_mov_b32 s28, s16\ns_mov_b32 s29, s17\ns_mov_b32 s32, s8\ns_mov_b32 s33, s9')
    stamp(A, 0, 0, 's[28:31]', 's41')
    A('s_cmp_lt_u32 s41, 4\ns_cbranch_scc1 L_k1_cons')
    A('s_sub_u32 s45, s41, 4')
    A('v_lshrrev_b32 v3, 3, v1\nv_and_b32 v4, 7, v1\nv_lshrrev_b32 v5, 4, v1')
    A('v_xor_b32 v6, v4, v5\nv_lshlrev_b32 v6, 4, v6\nv_lshl_add_u32 v6, v3, 10, v6')
    A('v_xor_b32 v7, 64, v6')
    A('s_lshl_b32 s46, s39, 17\ns_lshl_b32 s47, s45, 15\ns_add_u32 s46, s46, s47')
    for i in range(4):
        A(f's_add_u32 s47, s46, {i*8192}')
        A(f'v_add_u32 v{10+i}, s47, v{6 + (i & 1)}')
    A('v_and_b32 v8, 1, v5\nv_lshlrev_b32 v8, 2, v8\nv_xor_b32 v8, v8, v4\nv_lshlrev_b32 v8, 4, v8')
    A('v_mul_u32_u24 v9, 3072, v3\nv_add_u32 v8, v8, v9')
    A('s_mul_i32 s46, s45, 6\ns_lshl_b32 s48, s40, 7')
    for i in range(6):
        A(f's_add_u32 s47, s46, {i}\ns_lshr_b32 s49, s47, 3\ns_lshl_b32 s49, s49, 10\ns_and_b32 s47, s47, 7\ns_mul_i32 s47, s47, 24576\ns_add_u32 s47, s47, s49\ns_add_u32 s47, s47, s48')
        A(f'v_add_u32 v{14+i}, s47, v8')
    A(f's_lshl_b32 s50, s45, 12\ns_mul_i32 s51, s45, 6144\ns_add_u32 s51, s51, {WRING}')
    def issue(s):
        slot = s % 3
        A(f's_add_u32 s52, s44, {s}\ns_and_b32 s52, s52, 7\ns_mul_i32 s53, s52, 196608\ns_lshl_b32 s52, s52, 7')
        for i in range(4):
            A(f's_add_u32 m0, s50, {XRING + slot*16384 + i*1024}')
            A(f'buffer_load_dwordx4 v{10+i}, s[20:23], s52 offen lds')
        for i in range(6):
            A(f's_add_u32 m0, s51, {slot*24576 + i*1024}')
            A(f'buffer_load_dwordx4 v{14+i}, s[24:27], s53 offen lds')
    issue(0)
    A(f's_and_b32 s47, s45, 1\ns_lshl_b32 s47, s47, 10\ns_lshl_b32 s49, s40, 11\ns_add_u32 s49, s49, s47\ns_add_u32 m0, s47, {K1_WPH}')
    A('v_lshlrev_b32 v20, 4, v1')
    A('buffer_load_dwordx4 v20, s[32:35], s49 offen lds')
    issue(1)
    for s in range(8):
        A(f's_waitcnt vmcnt({10 if s < 7 else 0})')
        A('s_barrier')
        if s + 2 < 8: issue(s + 2)
    A('s_endpgm')
    A.label('L_k1_cons'); A.fence()
    A('s_lshr_b32 s45, s41, 1\ns_and_b32 s46, s41, 1')
    A('v_and_b32 v10, 31, v1\nv_lshrrev_b32 v11, 5, v1')
    A('v_bfe_u32 v12, v1, 1, 3\nv_xor_b32 v12, v12, v11\nv_lshlrev_b32 v12, 4, v12')
    A('s_lshl_b32 s47, s45, 13')
    A('v_lshl_add_u32 v13, v10, 7, s47')
    for ks in range(4):
        A(f'v_xor_b32 v14, {ks*32}, v12\nv_add_u32 v{2+ks}, v13, v14')
    A('v_bfe_u32 v12, v1, 2, 2\nv_lshl_add_u32 v12, v11, 3, v12\nv_lshlrev_b32 v12, 7, v12')
    A('v_bfe_u32 v13, v1, 3, 1\nv_xor_b32 v13, s46, v13\nv_lshl_add_u32 v12, v13, 6, v12')
    A('v_bfe_u32 v13, v1, 4, 1\nv_lshl_add_u32 v12, v13, 5, v12')
    A('v_and_b32 v13, 3, v1\nv_lshl_add_u32 v12, v13, 3, v12')
    A(f'v_add_u32 v6, {WRING}, v12\nv_add_u32 v7, {WRING + 49152}, v12')
    ACC = {('q', 0): 64, ('q', 1): 80, ('k', 0): 96, ('k', 1): 112, ('v', 0): 128, ('v', 1): 144}
    FS = [16, 36]
    lq = Q(A, 'lgkmcnt', 15)
    def reads(n):
        s, ks = divmod(n, 4); slot = s % 3; f = FS[n & 1]
        wa, wo = (6, slot * 24576) if slot < 2 else (7, 0)
        def rx(tt): return (f'ds_read_b128 v[{f+4*tt}:{f+4*tt+3}], v{2+ks} offset:{XRING + slot*16384 + tt*4096}', (n, 'x', tt))
        def rw(seg, rd): return (f'ds_read_b64_tr_b16 v[{f+8+4*seg+2*rd}:{f+9+4*seg+2*rd}], v{wa} offset:{wo + seg*8192 + ks*2048 + rd*512}', (n, 'w', seg))
        return [rx(0), rw(0, 0), rw(0, 1), rx(1), rw(1, 0), rw(1, 1), rw(2, 0), rw(2, 1)]
    A('s_barrier')
    stamp(A, 0, 1, 's[28:31]', 's41')
    for t, tag in reads(0): A(t); lq.push(tag)
    for n in range(32):
        f = FS[n & 1]
        nxt = reads(n + 1) if n + 1 < 32 else []
        newstage = (n % 4 == 3) and n + 1 < 32
        k = 0
        for mi, (seg, tt) in enumerate([(0, 0), (0, 1), (1, 0), (1, 1), (2, 0), (2, 1)]):
            if newstage and mi == 0: lq.all()
            else: lq.wait((n, 'x', tt), (n, 'w', seg))
            acc = ACC[('qkv'[seg], tt)]
            X = vr(f + 4*tt, 4); W = vr(f + 8 + 4*seg, 4)
            a, b = (W, X) if seg < 2 else (X, W)
            c = vr(acc, 16) if n > 0 else '0'
            A(f'v_mfma_f32_32x32x16_bf16 {vr(acc,16)}, {a}, {b}, {c}')
            if newstage and mi == 0: A('s_barrier')
            for _ in range(2):
                if k < len(nxt):
                    t, tag = nxt[k]; A(t); lq.push(tag); k += 1
    stamp(A, 0, 2, 's[28:31]', 's41')
    A('v_lshlrev_b32 v8, 4, v1')
    A('s_lshl_b32 s47, s40, 2\ns_lshl_b32 s48, s46, 1\ns_add_u32 s47, s47, s48\ns_lshl_b32 s47, s47, 16')
    A('s_lshl_b32 s48, s39, 2\ns_lshl_b32 s49, s45, 1\ns_add_u32 s48, s48, s49\ns_lshl_b32 s48, s48, 10\ns_add_u32 s47, s47, s48')
    A('s_cmp_eq_u32 s38, 0')
    A(f's_cselect_b32 s56, 1.0, 0x{f2u(0.25*LOG2E):x}\ns_mov_b32 s57, s56')
    A(f's_cselect_b32 s48, {WS_QA}, {WS_QB}\ns_add_u32 s48, s48, s47\ns_add_u32 s49, s48, 65536')
    for tt in range(2):
        a = ACC[('q', tt)]
        for m in range(8): A(f'v_pk_mul_f32 v[{a+2*m}:{a+2*m+1}], v[{a+2*m}:{a+2*m+1}], s[56:57]')
        for m in range(8): A(f'v_cvt_pk_bf16_f32 v{16+8*tt+m}, v{a+2*m}, v{a+2*m+1}')
        A(f'buffer_store_dwordx4 v[{16+8*tt}:{19+8*tt}], v8, s[28:31], s48 offen offset:{tt*1024} {ST}')
        A(f'buffer_store_dwordx4 v[{20+8*tt}:{23+8*tt}], v8, s[28:31], s49 offen offset:{tt*1024} {ST}')
    for tt in range(2):
        a = ACC[('k', tt)]
        for m in range(8): A(f'v_cvt_pk_bf16_f32 v{32+8*tt+m}, v{a+2*m}, v{a+2*m+1}')
    for tt in range(2):
        a = ACC[('v', tt)]
        for m in range(8): A(f'v_cvt_pk_bf16_f32 v{48+8*tt+m}, v{a+2*m}, v{a+2*m+1}')
    A('s_cmp_eq_u32 s38, 0\ns_cbranch_scc1 L_k1_epA')
    A(f's_add_u32 s48, s47, {WS_KB}\ns_add_u32 s49, s48, 65536\ns_add_u32 s50, s47, {WS_VB}')
    for tt in range(2):
        A(f'buffer_store_dwordx4 v[{32+8*tt}:{35+8*tt}], v8, s[28:31], s48 offen offset:{tt*1024} {ST}')
        A(f'buffer_store_dwordx4 v[{36+8*tt}:{39+8*tt}], v8, s[28:31], s49 offen offset:{tt*1024} {ST}')
    A('v_bfe_u32 v9, v1, 4, 1\nv_lshlrev_b32 v9, 16, v9\nv_lshl_add_u32 v9, v11, 8, v9\nv_and_b32 v12, 15, v1\nv_lshl_add_u32 v9, v12, 4, v9')
    for tt in range(2):
        for blk in range(2):
            A(f'buffer_store_dwordx4 v[{48+8*tt+4*blk}:{51+8*tt+4*blk}], v9, s[28:31], s50 offen offset:{tt*1024+blk*512} {ST}')
    stamp(A, 0, 3, 's[28:31]', 's41')
    A('s_endpgm')
    A.label('L_k1_epA'); A.fence()
    A('s_nop 1')
    A('v_bfe_u32 v12, v1, 2, 2\nv_lshl_add_u32 v12, v11, 2, v12\nv_lshlrev_b32 v12, 5, v12\nv_and_b32 v13, 3, v1\nv_lshl_add_u32 v12, v13, 3, v12')
    A(f's_lshl_b32 s48, s46, 10\ns_add_u32 s48, s48, {K1_WPH}\nv_add_u32 v12, s48, v12')
    for hs in range(2):
        for rd in range(2):
            A(f'ds_read_b64_tr_b16 v[{64+4*hs+2*rd}:{65+4*hs+2*rd}], v12 offset:{hs*512 + rd*256}')
    A(f's_lshl_b32 s48, s45, 13\ns_lshl_b32 s49, s46, 10\ns_add_u32 s48, s48, s49\ns_add_u32 s48, s48, {K1_VL}\nv_add_u32 v13, s48, v8')
    for tt in range(2):
        for blk in range(2):
            A(f'ds_write_b128 v13, v[{48+8*tt+4*blk}:{51+8*tt+4*blk}] offset:{(tt*2+blk)*2048}')
    A(f's_mov_b32 s60, 0x{f2u(LOG2E):x}\ns_mov_b32 s61, s60')
    A('s_waitcnt lgkmcnt(4)')
    units = [(0, 0), (0, 1), (1, 0), (1, 1)]
    P = {u: 96 + 16 * i for i, u in enumerate(units)}
    T = {u: 160 + 20 * i for i, u in enumerate(units)}
    for (tt, hs) in units:
        A(f'v_mfma_f32_32x32x16_bf16 {vr(P[(tt,hs)],16)}, {vr(64+4*hs,4)}, {vr(32+8*tt+4*hs,4)}, 0')
    A(f's_mul_i32 s48, s46, {2*PHI_HEAD}\ns_lshl_b32 s49, s45, 10\ns_add_u32 s48, s48, s49\ns_add_u32 s48, s48, {K1_PHI}')
    A(f'v_mul_u32_u24 v14, {PHI_PLANE}, v11\nv_lshl_add_u32 v14, v10, 4, v14\nv_add_u32 v14, s48, v14')
    dual_softmax_head(A, units, P, T)
    for u in units:
        t = T[u]
        A(f'v_pk_add_f32 v[{t}:{t+1}], v[{t+2}:{t+3}], v[{t+4}:{t+5}]')
        A(f'v_pk_add_f32 v[{t+18}:{t+19}], v[{t+10}:{t+11}], v[{t+12}:{t+13}]')
    for m in (6, 8):
        for u in units:
            t = T[u]
            A(f'v_pk_add_f32 v[{t}:{t+1}], v[{t}:{t+1}], v[{t+m}:{t+m+1}]')
            A(f'v_pk_add_f32 v[{t+18}:{t+19}], v[{t+18}:{t+19}], v[{t+m+8}:{t+m+9}]')
    for u in units:
        t = T[u]
        A(f'v_add_f32 v{t}, v{t}, v{t+1}')
        A(f'v_add_f32 v{t+1}, v{t+18}, v{t+19}')
    for u in units: t = T[u]; A(f'v_permlane32_swap_b32 v{t}, v{t+1}')
    for u in units: t = T[u]; A(f'v_add_f32 v{t}, v{t}, v{t+1}')
    for u in units: t = T[u]; A(f'v_rcp_f32 v{t}, v{t}')
    for u in units: t = T[u]; A(f'v_mov_b32 v{t+1}, v{t}')
    for u in units: t = T[u]; A(f'v_permlane32_swap_b32 v{t}, v{t+1}')
    for u in units:
        t = T[u]; p = P[u]; tt, hs = u
        for m in range(4):
            A(f'v_pk_mul_f32 v[{t+2+2*m}:{t+3+2*m}], v[{t+2+2*m}:{t+3+2*m}], v[{t}:{t+1}] op_sel_hi:[1,0]')
            A(f'v_pk_mul_f32 v[{t+10+2*m}:{t+11+2*m}], v[{t+10+2*m}:{t+11+2*m}], v[{t}:{t+1}] op_sel:[0,1]')
        for m in range(8): A(f'v_cvt_pk_bf16_f32 v{p+m}, v{t+2+2*m}, v{t+3+2*m}')
        A(f'ds_write_b128 v14, v[{p}:{p+3}] offset:{hs*PHI_HEAD + tt*512}')
        A(f'ds_write_b128 v14, v[{p+4}:{p+7}] offset:{hs*PHI_HEAD + tt*512 + 2*PHI_PLANE}')
    A('v_bfe_u32 v12, v1, 4, 1\nv_lshlrev_b32 v12, 1, v12\nv_and_b32 v13, 1, v1\nv_add_u32 v12, v12, v13')
    A(f'v_mul_u32_u24 v12, {PHI_PLANE}, v12')
    A('v_bfe_u32 v13, v1, 2, 2\nv_lshl_add_u32 v13, v11, 2, v13\nv_lshl_add_u32 v12, v13, 4, v12')
    A('v_bfe_u32 v13, v1, 1, 1\nv_lshl_add_u32 v12, v13, 3, v12')
    A(f's_mul_i32 s48, s41, {PHI_HEAD}\ns_add_u32 s48, s48, {K1_PHI}\nv_add_u32 v12, s48, v12')
    A(f's_lshl_b32 s48, s45, 10\ns_lshl_b32 s49, s46, 8\ns_add_u32 s48, s48, s49\ns_add_u32 s48, s48, {K1_VL}\nv_add_u32 v13, s48, v8')
    for r in range(32): A(f'v_mov_b32 v{64+r}, 0x3f803f80')
    A('s_waitcnt lgkmcnt(0)\ns_barrier')
    for s in range(8):
        for rd in range(2):
            A(f'ds_read_b64_tr_b16 v[{16+4*s+2*rd}:{17+4*s+2*rd}], v12 offset:{s*256 + rd*128}')
    A('s_mov_b32 exec_lo, 0xffff\ns_mov_b32 exec_hi, 0xffff')
    for s in range(8):
        A(f'ds_read_b128 v[{64+4*s}:{67+4*s}], v13 offset:{s*2048}')
    A('s_mov_b64 exec, -1')
    for s in range(8):
        A(f's_waitcnt lgkmcnt({7-s})')
        A(f'v_mfma_f32_32x32x16_bf16 v[96:111], {vr(16+4*s,4)}, {vr(64+4*s,4)}, {"v[96:111]" if s else "0"}')
    A('v_mul_u32_u24 v12, 17, v11\nv_add_u32 v12, v12, v10\nv_lshlrev_b32 v12, 3, v12')
    A(f's_lshl_b32 s48, s39, 5\ns_lshl_b32 s49, s40, 2\ns_add_u32 s48, s48, s49\ns_add_u32 s48, s48, s41\ns_mul_i32 s48, s48, 2176\ns_add_u32 s48, s48, {WS_PK}')
    A('s_mov_b32 exec_lo, 0x1ffff\ns_mov_b32 exec_hi, 0x1ffff')
    for rp in range(8):
        A(f'buffer_store_dwordx2 v[{96+2*rp}:{97+2*rp}], v12, s[28:31], s48 offen offset:{rp*272} {ST}')
    A('s_mov_b64 exec, -1')
    stamp(A, 0, 3, 's[28:31]', 's41')
    A.label('L_k1_end')
    A('s_endpgm')

K2_KL, K2_VL, K2_KVF, K2_WPH = 0, 16384, 32768, 34816
K2_LDS = 35840
def rowof(r, hi): return (r & 3) + 8 * (r >> 2) + 4 * hi

def gen_k2(A):
    header(A, 'k2_kernel')
    A('s_cmp_ge_u32 s2, 256\ns_cbranch_scc1 L_k2_end')
    A('s_load_dwordx2 s[8:9], s[0:1], 16\ns_load_dwordx2 s[16:17], s[0:1], 72')
    A('v_lshrrev_b32 v2, 6, v0\nv_and_b32 v1, 63, v0')
    A('s_and_b32 s36, s2, 7\ns_lshr_b32 s37, s2, 3')
    A('v_readfirstlane_b32 s41, v2')
    A('s_lshl_b32 s39, s36, 2\ns_and_b32 s42, s37, 3\ns_add_u32 s39, s39, s42')
    A('s_lshr_b32 s40, s37, 2')
    A(f's_mov_b32 s30, {WS_SIZE if not OPT["stamps"] else 0x2000000}\ns_mov_b32 s31, 0x20000\ns_mov_b32 s34, 0x4000\ns_mov_b32 s35, 0x20000')
    A('v_lshlrev_b32 v8, 4, v1\nv_and_b32 v10, 31, v1\nv_lshrrev_b32 v11, 5, v1')
    A('s_lshl_b32 s43, s39, 16')
    A('s_lshl_b32 s44, s40, 3\ns_add_u32 s44, s44, s41')
    A('v_min_u32 v12, 16, v10\nv_mul_u32_u24 v13, 17, v11\nv_add_u32 v12, v12, v13\nv_lshlrev_b32 v12, 3, v12')
    A(f's_lshl_b32 s45, s39, 3\ns_add_u32 s45, s45, s41\ns_mul_i32 s45, s45, 272\ns_add_u32 s45, s45, {WS_PK}')
    A('s_waitcnt lgkmcnt(0)')
    A('s_mov_b32 s28, s16\ns_mov_b32 s29, s17\ns_mov_b32 s32, s8\ns_mov_b32 s33, s9')
    stamp(A, 1, 0, 's[28:31]', 's41')
    vq = Q(A, 'vmcnt', 63)
    for e in range(2):
        A(f's_lshl_b32 s46, s40, 3\ns_lshl_b32 s47, s41, 1\ns_add_u32 s46, s46, s47\ns_add_i32 s46, s46, {e-8}\ns_max_i32 s46, s46, 0\ns_lshl_b32 s46, s46, 10\ns_add_u32 s46, s46, s43')
        A(f's_add_u32 s48, s46, {WS_KB}\ns_add_u32 s49, s46, {WS_VB}\ns_lshl_b32 s47, s47, 10')
        A(f's_add_u32 m0, s47, {K2_KL + e*1024}')
        A('buffer_load_dwordx4 v8, s[28:31], s48 offen lds'); vq.push('dma')
        A(f's_add_u32 m0, s47, {K2_VL + e*1024}')
        A('buffer_load_dwordx4 v8, s[28:31], s49 offen lds'); vq.push('dma')
    A(f's_lshl_b32 s46, s39, 9\ns_mov_b32 m0, {K2_WPH}')
    A('buffer_load_dwordx4 v8, s[32:35], s46 offen lds'); vq.push('dma')
    A(f's_lshl_b32 s46, s44, 10\ns_add_u32 s46, s46, s43\ns_add_u32 s47, s46, {WS_QA}')
    A('buffer_load_dwordx4 v[16:19], v8, s[28:31], s46 offen'); vq.push('qb')
    A('buffer_load_dwordx4 v[20:23], v8, s[28:31], s47 offen'); vq.push('qa')
    for rb in range(16):
        A(f'buffer_load_dwordx2 v[{64+2*rb}:{65+2*rb}], v12, s[28:31], s45 offen'); vq.push(('pk', rb))
        if rb < 15: A(f's_add_u32 s45, s45, {32*2176}')
    for r in range(16):
        for hi in range(2):
            m = 0
            for c in range(32):
                if rowof(r, hi) <= c: m |= 1 << c
            A(f's_mov_b32 s{64+2*r+hi}, 0x{m:x}')
    A(f's_mov_b32 s60, 0x{f2u(LOG2E):x}\ns_mov_b32 s61, s60')
    A('s_mov_b32 s62, 0x00220000\ns_mov_b32 s63, 0x00220000')
    for r in range(16): A(f'v_mov_b32 v{24+r}, 0x3f803f80')
    A('v_mov_b32 v40, 0x3f803f80')
    A(f's_lshl_b32 s46, s41, 10\nv_add_u32 v13, s46, v8')
    A(f'v_and_b32 v14, 15, v1\nv_lshlrev_b32 v14, 4, v14\nv_lshl_add_u32 v14, v11, 8, v14\ns_add_u32 s46, s46, {K2_VL}\nv_add_u32 v14, s46, v14')
    A(f'v_bfe_u32 v15, v1, 2, 2\nv_lshl_add_u32 v15, v11, 2, v15\nv_lshlrev_b32 v15, 5, v15\nv_and_b32 v9, 3, v1\nv_lshl_add_u32 v15, v9, 3, v15')
    A(f'v_lshlrev_b32 v9, 5, v1\ns_lshl_b32 s46, s41, 2\nv_add_u32 v7, s46, v9')
    for rb in range(1, 16):
        vq.wait(('pk', rb))
        A(f'v_pk_add_f32 v[64:65], v[64:65], v[{64+2*rb}:{65+2*rb}]')
    A('v_cvt_pk_bf16_f32 v64, v64, v65')
    A('v_cndmask_b32_e64 v64, v64, v40, s[62:63]')
    A(f'ds_write_b32 v7, v64 offset:{K2_KVF}')
    A('s_waitcnt vmcnt(0) lgkmcnt(0)\ns_barrier')
    stamp(A, 1, 1, 's[28:31]', 's41')
    lq = Q(A, 'lgkmcnt', 15)
    S = [64 + 16 * j for j in range(9)]
    KF = [208 + 4 * j for j in range(9)]
    order = [8, 0, 7, 6, 5, 4, 3, 2, 1]
    for j in order:
        A(f'ds_read_b128 {vr(KF[j],4)}, v13 offset:{K2_KL + j*1024}'); lq.push(('k', j))
    for rd in range(2):
        A(f'ds_read_b64_tr_b16 v[{44+2*rd}:{45+2*rd}], v15 offset:{K2_WPH + rd*256}'); lq.push('wphi')
    A(f'ds_read_b128 v[244:247], v9 offset:{K2_KVF}'); lq.push('kvf')
    A(f'ds_read_b128 v[248:251], v9 offset:{K2_KVF+16}'); lq.push('kvf')
    for j in order:
        lq.wait(('k', j))
        A(f'v_mfma_f32_32x32x16_bf16 {vr(S[j],16)}, {vr(KF[j],4)}, v[16:19], 0')
    lq.wait('wphi')
    A('v_mfma_f32_32x32x16_bf16 v[48:63], v[44:47], v[20:23], 0')
    A('s_cmp_lg_u32 s40, 0\ns_cbranch_scc1 L_k2_valid')
    A('s_nop 15')
    for j in range(8):
        A(f's_cmp_ge_u32 s41, {8-j}\ns_cbranch_scc1 L_k2_valid')
        for r in range(16): A(f'v_mov_b32 v{S[j]+r}, 0xff800000')
    A.label('L_k2_valid')
    for r in range(16):
        A(f'v_cndmask_b32_e64 v{S[8]+r}, v{S[0]+r}, v{S[8]+r}, s[{64+2*r}:{65+2*r}]')
    tiles = [8, 7, 6, 5, 4, 3, 2, 1]
    first = True
    for j in tiles:
        b = S[j]
        for m in range(4):
            if first:
                A(f'v_max_f32 v2, v{b}, v{b+1}\nv_max_f32 v3, v{b+2}, v{b+3}'); first = False
            else:
                A(f'v_max3_f32 v2, v2, v{b+4*m}, v{b+4*m+1}\nv_max3_f32 v3, v3, v{b+4*m+2}, v{b+4*m+3}')
    A('v_max_f32 v2, v2, v3\nv_mov_b32 v3, v2')
    A('v_permlane32_swap_b32 v2, v3')
    A('v_max_f32 v2, v2, v3')
    O = 208
    vset = [0]
    def vread(j, blk):
        st = vset[0] % 4; vset[0] += 1
        A(f'ds_read_b128 {vr(24+4*st,4)}, v14 offset:{j*1024 + blk*512}'); lq.push(('v', j, blk))
        return 24 + 4 * st
    def vreads(j):
        A('s_mov_b32 exec_lo, 0xffff\ns_mov_b32 exec_hi, 0xffff')
        r = [vread(j, 0), vread(j, 1)]
        A('s_mov_b64 exec, -1')
        return r
    firstpv = [True]
    def pv(j, vregs, pbase):
        for blk in range(2):
            lq.wait(('v', j, blk))
            A(f'v_mfma_f32_32x32x16_bf16 {vr(O,16)}, {vr(vregs[blk],4)}, {vr(pbase+4*blk,4)}, {"0" if firstpv[0] else vr(O,16)}')
            firstpv[0] = False
    def expt(j):
        b = S[j]
        for m in range(8): A(f'v_pk_add_f32 v[{b+2*m}:{b+2*m+1}], v[{b+2*m}:{b+2*m+1}], v[2:3] op_sel_hi:[1,0] neg_lo:[0,1] neg_hi:[0,1]')
        for r in range(16): A(f'v_exp_f32 v{b+r}, v{b+r}')
        for m in range(8): A(f'v_cvt_pk_bf16_f32 v{b+m}, v{b+2*m}, v{b+2*m+1}')
    v8 = vreads(8); v0 = vreads(0)
    expt(8)
    b = S[8]; z = S[0]
    for m in range(8):
        A(f'v_and_b32 v{z+8+m}, 0xffff, v{b+m}')
    for m in range(8):
        A(f'v_cndmask_b32_e64 v{z+8+m}, 0, v{z+8+m}, s[{64+4*m}:{65+4*m}]')
    for m in range(8):
        A(f'v_cndmask_b32_e64 v{z+8+m}, v{z+8+m}, v{b+m}, s[{66+4*m}:{67+4*m}]')
    for m in range(8):
        A(f'v_xor_b32 v{z+m}, v{z+8+m}, v{b+m}')
    pv(8, v8, z + 8); pv(0, v0, z)
    for j in tiles[1:]:
        vv = vreads(j)
        expt(j)
        pv(j, vv, S[j])
    dual_softmax_head(A, ['a'], {'a': 48}, {'a': 64})
    for m in range(8): A(f'v_cvt_pk_bf16_f32 v{84+m}, v{66+2*m}, v{67+2*m}')
    lq.wait('kvf')
    A('v_mfma_f32_32x32x16_bf16 v[96:111], v[244:247], v[84:87], 0')
    A('v_mfma_f32_32x32x16_bf16 v[112:127], v[248:251], v[88:91], 0')
    A(f's_lshl_b32 s46, s44, 15\ns_lshl_b32 s47, s39, 10\ns_add_u32 s46, s46, s47\ns_add_u32 s47, s46, {WS_OB}\ns_add_u32 s46, s46, {WS_OA}')
    A(f'v_rcp_f32 v4, v{O+8}')
    for m in range(4): A(f'v_pk_mul_f32 v[{O+2*m}:{O+2*m+1}], v[{O+2*m}:{O+2*m+1}], v[4:5] op_sel_hi:[1,0]')
    for m in range(4): A(f'v_cvt_pk_bf16_f32 v{128+m}, v{O+2*m}, v{O+2*m+1}')
    A(f'buffer_store_dwordx4 v[128:131], v8, s[28:31], s47 offen {ST}')
    A('v_rcp_f32 v4, v105\nv_rcp_f32 v5, v121')
    A(f'v_mov_b32 v6, 0x{f2u(1e-6):x}')
    A('v_fmac_f32 v6, v104, v4\nv_fmac_f32 v6, v120, v5')
    A('v_rcp_f32 v6, v6')
    A('v_mul_f32 v4, v4, v6\nv_mul_f32 v5, v5, v6')
    for m in range(4): A(f'v_pk_mul_f32 v[{96+2*m}:{97+2*m}], v[{96+2*m}:{97+2*m}], v[4:5] op_sel_hi:[1,0]')
    for m in range(4): A(f'v_pk_fma_f32 v[{96+2*m}:{97+2*m}], v[{112+2*m}:{113+2*m}], v[4:5], v[{96+2*m}:{97+2*m}] op_sel:[0,1,0]')
    for m in range(4): A(f'v_cvt_pk_bf16_f32 v{132+m}, v{96+2*m}, v{97+2*m}')
    A(f'buffer_store_dwordx4 v[132:135], v8, s[28:31], s46 offen {ST}')
    stamp(A, 1, 3, 's[28:31]', 's41')
    A.label('L_k2_end')
    A('s_endpgm')

K3_LDS = 65536
def gen_k3(A):
    header(A, 'k3_kernel')
    A('s_cmp_ge_u32 s2, 256\ns_cbranch_scc1 L_k3_end')
    A('s_load_dwordx2 s[4:5], s[0:1], 24\ns_load_dwordx4 s[8:11], s[0:1], 48\ns_load_dwordx2 s[16:17], s[0:1], 72')
    A('v_lshrrev_b32 v2, 6, v0\nv_and_b32 v1, 63, v0')
    A('s_and_b32 s36, s2, 7\ns_lshr_b32 s37, s2, 3\ns_lshr_b32 s38, s36, 2')
    A('v_readfirstlane_b32 s41, v2')
    A('s_and_b32 s39, s36, 3\ns_lshl_b32 s39, s39, 2\ns_and_b32 s42, s37, 3\ns_add_u32 s39, s39, s42')
    A('s_lshr_b32 s40, s37, 2')
    A(f's_mov_b32 s22, 0x80000\ns_mov_b32 s23, 0x20000\ns_mov_b32 s26, 0x400000\ns_mov_b32 s27, 0x20000\ns_mov_b32 s30, {WS_SIZE if not OPT["stamps"] else 0x2000000}\ns_mov_b32 s31, 0x20000')
    A('v_lshlrev_b32 v8, 4, v1\nv_and_b32 v10, 31, v1\nv_lshrrev_b32 v11, 5, v1')
    A('v_lshrrev_b32 v3, 3, v1\nv_and_b32 v4, 7, v1\nv_bfe_u32 v5, v1, 4, 1\nv_lshlrev_b32 v5, 2, v5\nv_xor_b32 v4, v4, v5\nv_lshlrev_b32 v4, 4, v4\nv_lshl_add_u32 v4, v3, 10, v4')
    A('s_lshl_b32 s44, s39, 2\ns_add_u32 s44, s44, s41')
    A(f's_lshl_b32 s45, s38, 21\ns_add_u32 s45, s45, {WS_OA}\ns_lshl_b32 s46, s44, 15\ns_add_u32 s45, s45, s46')
    A('s_lshl_b32 s46, s41, 13\ns_lshl_b32 s47, s40, 7\ns_add_u32 s46, s46, s47\ns_lshl_b32 s47, s41, 10')
    A('s_cmp_eq_u32 s38, 0')
    A('s_waitcnt lgkmcnt(0)')
    A('s_cselect_b32 s20, s4, s8\ns_cselect_b32 s21, s5, s9\ns_mov_b32 s24, s10\ns_mov_b32 s25, s11\ns_mov_b32 s28, s16\ns_mov_b32 s29, s17')
    stamp(A, 2, 0, 's[28:31]', 's41')
    vq = Q(A, 'vmcnt', 63)
    for i in range(16):
        A(f's_add_u32 m0, s47, {i*4096}')
        A(f'buffer_load_dwordx4 v4, s[20:23], s46 offen lds'); vq.push('dma')
        if i < 15: A(f's_add_u32 s46, s46, 32768')
    OF = 64
    def oload(h):
        A(f'buffer_load_dwordx4 {vr(OF+4*h,4)}, v8, s[28:31], s45 offen offset:{(h%4)*1024}'); vq.push(('o', h))
        if h % 4 == 3: A('s_add_u32 s45, s45, 4096')
    for h in range(16): oload(h)
    A('v_bfe_u32 v12, v1, 2, 2\nv_lshl_add_u32 v12, v11, 2, v12\nv_lshlrev_b32 v12, 7, v12')
    A('v_bfe_u32 v13, v1, 3, 1\nv_lshl_add_u32 v12, v13, 6, v12')
    A('v_bfe_u32 v13, v1, 4, 1\nv_lshl_add_u32 v12, v13, 5, v12')
    A('v_and_b32 v13, 3, v1\nv_lshl_add_u32 v6, v13, 3, v12\nv_xor_b32 v7, 64, v6')
    vq.wait('dma')
    A('s_barrier')
    stamp(A, 2, 1, 's[28:31]', 's41')
    lq = Q(A, 'lgkmcnt', 15)
    FS = [16, 24]
    def reads(h):
        f = FS[h & 1]
        return [(f'ds_read_b64_tr_b16 v[{f+4*c+2*rd}:{f+4*c+2*rd+1}], v{6+c} offset:{h*2048 + rd*1024}', (h, c)) for c in range(2) for rd in range(2)]
    for t, tag in reads(0): A(t); lq.push(tag)
    for h in range(32):
        f = FS[h & 1]
        nxt = reads(h + 1) if h < 31 else []
        if h + 16 < 32: oload(h + 16)
        vq.wait(('o', h))
        for c in range(2):
            lq.wait((h, c))
            A(f'v_mfma_f32_32x32x16_bf16 {vr(32+16*c,16)}, {vr(f+4*c,4)}, {vr(OF+4*h,4)}, {vr(32+16*c,16) if h else "0"}')
            for t, tag in nxt[2*c:2*c+2]: A(t); lq.push(tag)
    stamp(A, 2, 2, 's[28:31]', 's41')
    A('v_lshlrev_b32 v9, 11, v10\nv_lshl_add_u32 v9, v11, 4, v9')
    A('s_lshl_b32 s46, s44, 16\ns_lshl_b32 s47, s38, 10\ns_add_u32 s46, s46, s47\ns_lshl_b32 s47, s40, 7\ns_add_u32 s46, s46, s47')
    for c in range(2):
        for m in range(8): A(f'v_cvt_pk_bf16_f32 v{64+8*c+m}, v{32+16*c+2*m}, v{33+16*c+2*m}')
    for c in range(2):
        for gp in range(2):
            b = 64 + 8*c + 4*gp
            A(f'v_permlane32_swap_b32 v{b}, v{b+2}\nv_permlane32_swap_b32 v{b+1}, v{b+3}')
            A(f'buffer_store_dwordx4 {vr(b,4)}, v9, s[24:27], s46 offen offset:{c*64 + gp*32} {OST}')
    stamp(A, 2, 3, 's[28:31]', 's41')
    A.label('L_k3_end')
    A('s_endpgm')

def main():
    A = Asm()
    A.raw(f'; @launch kernel=k1_kernel grid=(256,1,1) block=(512,1,1) lds={K1_LDS}')
    A.raw(f'; @launch kernel=k2_kernel grid=(256,1,1) block=(512,1,1) lds={K2_LDS}')
    A.raw(f'; @launch kernel=k3_kernel grid=(256,1,1) block=(256,1,1) lds={K3_LDS}')
    A.raw('.amdgcn_target "amdgcn-amd-amdhsa--gfx950"\n.text')
    gen_k1(A); gen_k2(A); gen_k3(A)
    A.raw('.p2align 8\n.fill 64, 4, 0xbf800000')
    sg = 102 if OPT['stamps'] else 96
    A.raw(kd('k1_kernel', 256, sg)); A.raw(kd('k2_kernel', 256, sg)); A.raw(kd('k3_kernel', 256 if OPT['stamps'] else 192, sg))
    sys.stdout.write(A.text())
main()
```

```python
import sys, math, struct
sys.path.insert(0, 'work')
from asmlib import *

OPT = dict(rot=1, st='sc1', ost='sc1', stamps=0, noload=0, nomfma=0, nords=0, pfc=1, pfw=128, pfd=0)
for a in sys.argv[1:]:
    k, v = a.split('='); OPT[k] = int(v) if v.lstrip('-').isdigit() else v
ST = '' if OPT['st'] == 'plain' else OPT['st']
OST = '' if OPT['ost'] == 'plain' else OPT['ost']

def f2u(x): return struct.unpack('<I', struct.pack('<f', x))[0]
LOG2E = math.log2(math.e)
WS_QB, WS_KB, WS_VB, WS_QA, WS_PK, WS_OA, WS_OB = 0x000000, 0x200000, 0x400000, 0x600000, 0x800000, 0xA00000, 0xC00000
WS_SIZE = 0xE00000
WS_STAMP = 0x1000000

class Q:
    def __init__(self, A, name, mx): self.A = A; self.q = []; self.name = name; self.mx = mx
    def push(self, tag): self.q.append(tag)
    def wait(self, *tags):
        idx = -1
        for i, t in enumerate(self.q):
            if t in tags: idx = i
        if idx < 0: return
        n = len(self.q) - 1 - idx
        n = min(n, self.mx)
        self.A(f's_waitcnt {self.name}({n})')
        self.q = self.q[len(self.q) - n:] if n else []
    def all(self):
        self.A(f's_waitcnt {self.name}(0)'); self.q = []

STP = {0: [64,66,68,70,72,74,76,78], 1: [4,6,10,12,14,18,20,22], 2: [64,66,68,70,72,74,76,78]}
def stamp(A, k, idx, srd=None, wavereg=None):
    if not OPT['stamps']: return
    r = STP[k][idx]
    A(f's_memrealtime s[{r}:{r+1}]' if OPT['stamps'] == 1 else f's_memtime s[{r}:{r+1}]')
    if idx == 7:
        A(f's_lshl_b32 s98, s2, 3\ns_add_u32 s98, s98, {wavereg}\ns_lshl_b32 s98, s98, 6\ns_add_u32 s98, s98, {WS_STAMP + k*0x40000}')
        A('s_waitcnt lgkmcnt(0)')
        for i in range(8): A(f'v_mov_b32 v{240+i}, s{STP[k][i]}')
        A('v_mov_b32 v255, 0\ns_mov_b64 exec, 1')
        A(f'buffer_store_dwordx4 v[240:243], v255, {srd}, s98 offen')
        A(f'buffer_store_dwordx4 v[244:247], v255, {srd}, s98 offen offset:16')

def header(A, name):
    A.raw(f'.globl {name}\n.p2align 8\n.type {name},@function\n{name}:')
    A.fence()

def dual_softmax_head(A, units, P, T):
    for u in units:
        p, t = P[u], T[u]
        A(f'v_max3_f32 v{t}, v{p}, v{p+1}, v{p+2}')
        A(f'v_max3_f32 v{t+1}, -v{p}, -v{p+1}, -v{p+2}')
    for u in units:
        p, t = P[u], T[u]
        A(f'v_max3_f32 v{t}, v{t}, v{p+3}, v{p+4}')
        A(f'v_max3_f32 v{t+1}, v{t+1}, -v{p+3}, -v{p+4}')
    for u in units:
        p, t = P[u], T[u]
        A(f'v_max3_f32 v{t}, v{t}, v{p+5}, v{p+6}')
        A(f'v_max3_f32 v{t+1}, v{t+1}, -v{p+5}, -v{p+6}')
    for u in units:
        p, t = P[u], T[u]
        A(f'v_max_f32 v{t}, v{t}, v{p+7}')
        A(f'v_max_f32_e64 v{t+1}, v{t+1}, -v{p+7}')
    for u in units:
        t = T[u]; A(f'v_permlane32_swap_b32 v{t}, v{t+1}')
    for u in units:
        t = T[u]; A(f'v_max_f32 v{t}, v{t}, v{t+1}')
    for u in units:
        t = T[u]; A(f'v_mul_f32 v{t}, s60, v{t}')
    for u in units:
        t = T[u]; A(f'v_mov_b32 v{t+1}, v{t}')
    for u in units:
        t = T[u]; A(f'v_permlane32_swap_b32 v{t}, v{t+1}')
    for u in units:
        p, t = P[u], T[u]
        for m in range(4):
            A(f'v_pk_fma_f32 v[{t+2+2*m}:{t+3+2*m}], v[{p+2*m}:{p+2*m+1}], s[60:61], v[{t}:{t+1}] op_sel_hi:[1,1,0] neg_lo:[0,0,1] neg_hi:[0,0,1]')
            A(f'v_pk_fma_f32 v[{t+10+2*m}:{t+11+2*m}], v[{p+2*m}:{p+2*m+1}], s[60:61], v[{t}:{t+1}] op_sel:[0,0,1] neg_lo:[1,0,1] neg_hi:[1,0,1]')
    for u in units:
        t = T[u]
        for r in range(16): A(f'v_exp_f32 v{t+2+r}, v{t+2+r}')

XRING, WRING = 0, 49152
K1_PHI, K1_VL, K1_WPH = 98304, 132096, 148480
PHI_PLANE, PHI_HEAD = 2112, 8448
K1_LDS = 150528

def gen_k1(A):
    header(A, 'k1_kernel')
    stamp(A, 0, 6)
    A('s_cmp_ge_u32 s2, 256\ns_cbranch_scc1 L_k1_end')
    A('s_load_dwordx4 s[4:7], s[0:1], 0\ns_load_dwordx2 s[8:9], s[0:1], 16\ns_load_dwordx4 s[12:15], s[0:1], 32\ns_load_dwordx2 s[16:17], s[0:1], 72')
    A('v_lshrrev_b32 v2, 6, v0\nv_and_b32 v1, 63, v0')
    A('s_and_b32 s36, s2, 7\ns_lshr_b32 s37, s2, 3\ns_lshr_b32 s38, s36, 2')
    A('v_readfirstlane_b32 s41, v2')
    A('s_and_b32 s39, s36, 1\ns_lshl_b32 s39, s39, 3\ns_and_b32 s42, s37, 7\ns_add_u32 s39, s39, s42')
    A('s_bfe_u32 s40, s36, 0x10001\ns_lshl_b32 s40, s40, 2\ns_lshr_b32 s43, s37, 3\ns_add_u32 s40, s40, s43')
    if OPT['rot']:
        A('s_lshl_b32 s43, s43, 1\ns_add_u32 s44, s42, s43')
    else:
        A('s_mov_b32 s44, 0')
    A('s_mov_b32 s22, 0x200000\ns_mov_b32 s23, 0x20000\ns_mov_b32 s26, 0x180000\ns_mov_b32 s27, 0x20000')
    A(f's_mov_b32 s30, {WS_SIZE if not OPT["stamps"] else 0x2000000}\ns_mov_b32 s31, 0x20000\ns_mov_b32 s34, 0x4000\ns_mov_b32 s35, 0x20000')
    A('s_cmp_eq_u32 s38, 0')
    A('s_waitcnt lgkmcnt(0)')
    A('s_cselect_b32 s20, s4, s12\ns_cselect_b32 s21, s5, s13\ns_cselect_b32 s24, s6, s14\ns_cselect_b32 s25, s7, s15')
    A('s_mov_b32 s28, s16\ns_mov_b32 s29, s17\ns_mov_b32 s32, s8\ns_mov_b32 s33, s9')
    stamp(A, 0, 0, 's[28:31]', 's41')
    A('s_cmp_lt_u32 s41, 4\ns_cbranch_scc1 L_k1_cons')
    A('s_sub_u32 s45, s41, 4')
    A('v_lshrrev_b32 v3, 3, v1\nv_and_b32 v4, 7, v1\nv_lshrrev_b32 v5, 4, v1')
    A('v_xor_b32 v6, v4, v5\nv_lshlrev_b32 v6, 4, v6\nv_lshl_add_u32 v6, v3, 10, v6')
    A('v_xor_b32 v7, 64, v6')
    A('s_lshl_b32 s46, s39, 17\ns_lshl_b32 s47, s45, 15\ns_add_u32 s46, s46, s47')
    for i in range(4):
        A(f's_add_u32 s47, s46, {i*8192}')
        A(f'v_add_u32 v{10+i}, s47, v{6 + (i & 1)}')
    A('v_and_b32 v8, 1, v5\nv_lshlrev_b32 v8, 2, v8\nv_xor_b32 v8, v8, v4\nv_lshlrev_b32 v8, 4, v8')
    A('v_mul_u32_u24 v9, 3072, v3\nv_add_u32 v8, v8, v9')
    A('s_mul_i32 s46, s45, 6\ns_lshl_b32 s48, s40, 7')
    for i in range(6):
        A(f's_add_u32 s47, s46, {i}\ns_lshr_b32 s49, s47, 3\ns_lshl_b32 s49, s49, 10\ns_and_b32 s47, s47, 7\ns_mul_i32 s47, s47, 24576\ns_add_u32 s47, s47, s49\ns_add_u32 s47, s47, s48')
        A(f'v_add_u32 v{14+i}, s47, v8')
    A(f's_lshl_b32 s50, s45, 12\ns_mul_i32 s51, s45, 6144\ns_add_u32 s51, s51, {WRING}')
    def issue(s):
        slot = s % 3
        A(f's_add_u32 s52, s44, {s}\ns_and_b32 s52, s52, 7\ns_mul_i32 s53, s52, 196608\ns_lshl_b32 s52, s52, 7')
        for i in range(4):
            A(f's_add_u32 m0, s50, {XRING + slot*16384 + i*1024}')
            A(f'buffer_load_dwordx4 v{10+i}, s[20:23], s52 offen lds')
        for i in range(6):
            A(f's_add_u32 m0, s51, {slot*24576 + i*1024}')
            A(f'buffer_load_dwordx4 v{14+i}, s[24:27], s53 offen lds')
    issue(0)
    A(f's_and_b32 s47, s45, 1\ns_lshl_b32 s47, s47, 10\ns_lshl_b32 s49, s40, 11\ns_add_u32 s49, s49, s47\ns_add_u32 m0, s47, {K1_WPH}')
    A('v_lshlrev_b32 v20, 4, v1')
    A('buffer_load_dwordx4 v20, s[32:35], s49 offen lds')
    issue(1)
    npf = 0
    if OPT['pfd']:
        A('v_and_b32 v21, 31, v1\nv_lshrrev_b32 v22, 5, v1')
        A('v_lshlrev_b32 v23, 10, v21\nv_lshl_add_u32 v23, v22, 7, v23')
        A('s_and_b32 s54, s36, 1\ns_lshl_b32 s54, s54, 20\ns_lshl_b32 s55, s37, 15\ns_add_u32 s54, s54, s55\ns_lshl_b32 s55, s45, 8\ns_add_u32 s54, s54, s55')
        if OPT['pfd'] == 2: A('s_barrier')
        A('buffer_load_dword v30, v23, s[20:23], s54 offen')
        A('v_and_b32 v24, 3, v21\nv_lshlrev_b32 v24, 7, v24')
        A('v_lshrrev_b32 v23, 2, v21\nv_lshl_add_u32 v24, v23, 10, v24')
        A('v_mul_u32_u24 v23, 196608, v22\nv_add_u32 v24, v24, v23')
        A('s_mul_i32 s54, s37, 6144\ns_mul_i32 s55, s45, 393216\ns_add_u32 s54, s54, s55\ns_bfe_u32 s55, s36, 0x10001\ns_lshl_b32 s55, s55, 9\ns_add_u32 s54, s54, s55')
        A('s_mov_b32 exec_lo, 0xffffff\ns_mov_b32 exec_hi, 0xffffff')
        A('buffer_load_dword v31, v24, s[24:27], s54 offen')
        A('s_mov_b64 exec, -1')
        npf = 2
    for s in range(8):
        n = 10 if s < 7 else 0
        if s == 0: n = 10 + npf
        if s == 1: n = 10 + npf
        A(f's_waitcnt vmcnt({n})')
        A('s_barrier')
        if s + 2 < 8 and not OPT['noload']: issue(s + 2)
    stamp(A, 0, 7, 's[28:31]', 's41')
    A('s_endpgm')
    A.label('L_k1_cons'); A.fence()
    if OPT['pfc']:
        A('s_getpc_b64 s[52:53]')
        A.label('L_k1_pc')
        A('s_add_u32 s52, s52, k1_kernel-L_k1_pc\ns_addc_u32 s53, s53, -1')
        A('v_lshlrev_b32 v12, 7, v0\nv_min_u32 v12, L_code_end-k1_kernel-4, v12')
        A('global_load_dword v15, v12, s[52:53]')
    A('s_lshr_b32 s45, s41, 1\ns_and_b32 s46, s41, 1')
    A('v_and_b32 v10, 31, v1\nv_lshrrev_b32 v11, 5, v1')
    A('v_bfe_u32 v12, v1, 1, 3\nv_xor_b32 v12, v12, v11\nv_lshlrev_b32 v12, 4, v12')
    A('s_lshl_b32 s47, s45, 13')
    A('v_lshl_add_u32 v13, v10, 7, s47')
    for ks in range(4):
        A(f'v_xor_b32 v14, {ks*32}, v12\nv_add_u32 v{2+ks}, v13, v14')
    A('v_bfe_u32 v12, v1, 2, 2\nv_lshl_add_u32 v12, v11, 3, v12\nv_lshlrev_b32 v12, 7, v12')
    A('v_bfe_u32 v13, v1, 3, 1\nv_xor_b32 v13, s46, v13\nv_lshl_add_u32 v12, v13, 6, v12')
    A('v_bfe_u32 v13, v1, 4, 1\nv_lshl_add_u32 v12, v13, 5, v12')
    A('v_and_b32 v13, 3, v1\nv_lshl_add_u32 v12, v13, 3, v12')
    A(f'v_add_u32 v6, {WRING}, v12\nv_add_u32 v7, {WRING + 49152}, v12')
    ACC = {('q', 0): 64, ('q', 1): 80, ('k', 0): 96, ('k', 1): 112, ('v', 0): 128, ('v', 1): 144}
    FS = [16, 36]
    lq = Q(A, 'lgkmcnt', 15)
    def reads(n):
        s, ks = divmod(n, 4); slot = s % 3; f = FS[n & 1]
        wa, wo = (6, slot * 24576) if slot < 2 else (7, 0)
        def rx(tt): return (f'ds_read_b128 v[{f+4*tt}:{f+4*tt+3}], v{2+ks} offset:{XRING + slot*16384 + tt*4096}', (n, 'x', tt))
        def rw(seg, rd): return (f'ds_read_b64_tr_b16 v[{f+8+4*seg+2*rd}:{f+9+4*seg+2*rd}], v{wa} offset:{wo + seg*8192 + ks*2048 + rd*512}', (n, 'w', seg))
        return [rx(0), rw(0, 0), rw(0, 1), rx(1), rw(1, 0), rw(1, 1), rw(2, 0), rw(2, 1)]
    if OPT['pfd'] == 2: A('s_barrier')
    A('s_barrier')
    stamp(A, 0, 1, 's[28:31]', 's41')
    for t, tag in reads(0): A(t); lq.push(tag)
    for n in range(32):
        f = FS[n & 1]
        nxt = reads(n + 1) if n + 1 < 32 and not OPT['nords'] else []
        newstage = (n % 4 == 3) and n + 1 < 32
        k = 0
        for mi, (seg, tt) in enumerate([(0, 0), (0, 1), (1, 0), (1, 1), (2, 0), (2, 1)]):
            if newstage and mi == 0: lq.all()
            else: lq.wait((n, 'x', tt), (n, 'w', seg))
            acc = ACC[('qkv'[seg], tt)]
            X = vr(f + 4*tt, 4); W = vr(f + 8 + 4*seg, 4)
            a, b = (W, X) if seg < 2 else (X, W)
            c = vr(acc, 16) if n > 0 else '0'
            if not OPT['nomfma']: A(f'v_mfma_f32_32x32x16_bf16 {vr(acc,16)}, {a}, {b}, {c}')
            if newstage and mi == 0: A('s_barrier')
            for _ in range(2):
                if k < len(nxt):
                    t, tag = nxt[k]; A(t); lq.push(tag); k += 1
    stamp(A, 0, 2, 's[28:31]', 's41')
    A('v_lshlrev_b32 v8, 4, v1')
    A('s_lshl_b32 s47, s40, 2\ns_lshl_b32 s48, s46, 1\ns_add_u32 s47, s47, s48\ns_lshl_b32 s47, s47, 16')
    A('s_lshl_b32 s48, s39, 2\ns_lshl_b32 s49, s45, 1\ns_add_u32 s48, s48, s49\ns_lshl_b32 s48, s48, 10\ns_add_u32 s47, s47, s48')
    A('s_cmp_eq_u32 s38, 0')
    A(f's_cselect_b32 s56, 1.0, 0x{f2u(0.25*LOG2E):x}\ns_mov_b32 s57, s56')
    A(f's_cselect_b32 s48, {WS_QA}, {WS_QB}\ns_add_u32 s48, s48, s47\ns_add_u32 s49, s48, 65536')
    for tt in range(2):
        a = ACC[('q', tt)]
        for m in range(8): A(f'v_pk_mul_f32 v[{a+2*m}:{a+2*m+1}], v[{a+2*m}:{a+2*m+1}], s[56:57]')
        for m in range(8): A(f'v_cvt_pk_bf16_f32 v{16+8*tt+m}, v{a+2*m}, v{a+2*m+1}')
        A(f'buffer_store_dwordx4 v[{16+8*tt}:{19+8*tt}], v8, s[28:31], s48 offen offset:{tt*1024} {ST}')
        A(f'buffer_store_dwordx4 v[{20+8*tt}:{23+8*tt}], v8, s[28:31], s49 offen offset:{tt*1024} {ST}')
    for tt in range(2):
        a = ACC[('k', tt)]
        for m in range(8): A(f'v_cvt_pk_bf16_f32 v{32+8*tt+m}, v{a+2*m}, v{a+2*m+1}')
    for tt in range(2):
        a = ACC[('v', tt)]
        for m in range(8): A(f'v_cvt_pk_bf16_f32 v{48+8*tt+m}, v{a+2*m}, v{a+2*m+1}')
    stamp(A, 0, 3)
    A('s_cmp_eq_u32 s38, 0\ns_cbranch_scc1 L_k1_epA')
    A(f's_add_u32 s48, s47, {WS_KB}\ns_add_u32 s49, s48, 65536\ns_add_u32 s50, s47, {WS_VB}')
    for tt in range(2):
        A(f'buffer_store_dwordx4 v[{32+8*tt}:{35+8*tt}], v8, s[28:31], s48 offen offset:{tt*1024} {ST}')
        A(f'buffer_store_dwordx4 v[{36+8*tt}:{39+8*tt}], v8, s[28:31], s49 offen offset:{tt*1024} {ST}')
    A('v_bfe_u32 v9, v1, 4, 1\nv_lshlrev_b32 v9, 16, v9\nv_lshl_add_u32 v9, v11, 8, v9\nv_and_b32 v12, 15, v1\nv_lshl_add_u32 v9, v12, 4, v9')
    for tt in range(2):
        for blk in range(2):
            A(f'buffer_store_dwordx4 v[{48+8*tt+4*blk}:{51+8*tt+4*blk}], v9, s[28:31], s50 offen offset:{tt*1024+blk*512} {ST}')
    stamp(A, 0, 7, 's[28:31]', 's41')
    A('s_endpgm')
    A.label('L_k1_epA'); A.fence()
    A('s_nop 1')
    A('v_bfe_u32 v12, v1, 2, 2\nv_lshl_add_u32 v12, v11, 2, v12\nv_lshlrev_b32 v12, 5, v12\nv_and_b32 v13, 3, v1\nv_lshl_add_u32 v12, v13, 3, v12')
    A(f's_lshl_b32 s48, s46, 10\ns_add_u32 s48, s48, {K1_WPH}\nv_add_u32 v12, s48, v12')
    for hs in range(2):
        for rd in range(2):
            A(f'ds_read_b64_tr_b16 v[{64+4*hs+2*rd}:{65+4*hs+2*rd}], v12 offset:{hs*512 + rd*256}')
    A(f's_lshl_b32 s48, s45, 13\ns_lshl_b32 s49, s46, 10\ns_add_u32 s48, s48, s49\ns_add_u32 s48, s48, {K1_VL}\nv_add_u32 v13, s48, v8')
    for tt in range(2):
        for blk in range(2):
            A(f'ds_write_b128 v13, v[{48+8*tt+4*blk}:{51+8*tt+4*blk}] offset:{(tt*2+blk)*2048}')
    A(f's_mov_b32 s60, 0x{f2u(LOG2E):x}\ns_mov_b32 s61, s60')
    A('s_waitcnt lgkmcnt(4)')
    units = [(0, 0), (0, 1), (1, 0), (1, 1)]
    P = {u: 96 + 16 * i for i, u in enumerate(units)}
    T = {u: 160 + 20 * i for i, u in enumerate(units)}
    for (tt, hs) in units:
        A(f'v_mfma_f32_32x32x16_bf16 {vr(P[(tt,hs)],16)}, {vr(64+4*hs,4)}, {vr(32+8*tt+4*hs,4)}, 0')
    A(f's_mul_i32 s48, s46, {2*PHI_HEAD}\ns_lshl_b32 s49, s45, 10\ns_add_u32 s48, s48, s49\ns_add_u32 s48, s48, {K1_PHI}')
    A(f'v_mul_u32_u24 v14, {PHI_PLANE}, v11\nv_lshl_add_u32 v14, v10, 4, v14\nv_add_u32 v14, s48, v14')
    dual_softmax_head(A, units, P, T)
    for u in units:
        t = T[u]
        A(f'v_pk_add_f32 v[{t}:{t+1}], v[{t+2}:{t+3}], v[{t+4}:{t+5}]')
        A(f'v_pk_add_f32 v[{t+18}:{t+19}], v[{t+10}:{t+11}], v[{t+12}:{t+13}]')
    for m in (6, 8):
        for u in units:
            t = T[u]
            A(f'v_pk_add_f32 v[{t}:{t+1}], v[{t}:{t+1}], v[{t+m}:{t+m+1}]')
            A(f'v_pk_add_f32 v[{t+18}:{t+19}], v[{t+18}:{t+19}], v[{t+m+8}:{t+m+9}]')
    for u in units:
        t = T[u]
        A(f'v_add_f32 v{t}, v{t}, v{t+1}')
        A(f'v_add_f32 v{t+1}, v{t+18}, v{t+19}')
    for u in units: t = T[u]; A(f'v_permlane32_swap_b32 v{t}, v{t+1}')
    for u in units: t = T[u]; A(f'v_add_f32 v{t}, v{t}, v{t+1}')
    for u in units: t = T[u]; A(f'v_rcp_f32 v{t}, v{t}')
    for u in units: t = T[u]; A(f'v_mov_b32 v{t+1}, v{t}')
    for u in units: t = T[u]; A(f'v_permlane32_swap_b32 v{t}, v{t+1}')
    for u in units:
        t = T[u]; p = P[u]; tt, hs = u
        for m in range(4):
            A(f'v_pk_mul_f32 v[{t+2+2*m}:{t+3+2*m}], v[{t+2+2*m}:{t+3+2*m}], v[{t}:{t+1}] op_sel_hi:[1,0]')
            A(f'v_pk_mul_f32 v[{t+10+2*m}:{t+11+2*m}], v[{t+10+2*m}:{t+11+2*m}], v[{t}:{t+1}] op_sel:[0,1]')
        for m in range(8): A(f'v_cvt_pk_bf16_f32 v{p+m}, v{t+2+2*m}, v{t+3+2*m}')
        A(f'ds_write_b128 v14, v[{p}:{p+3}] offset:{hs*PHI_HEAD + tt*512}')
        A(f'ds_write_b128 v14, v[{p+4}:{p+7}] offset:{hs*PHI_HEAD + tt*512 + 2*PHI_PLANE}')
    A('v_bfe_u32 v12, v1, 4, 1\nv_lshlrev_b32 v12, 1, v12\nv_and_b32 v13, 1, v1\nv_add_u32 v12, v12, v13')
    A(f'v_mul_u32_u24 v12, {PHI_PLANE}, v12')
    A('v_bfe_u32 v13, v1, 2, 2\nv_lshl_add_u32 v13, v11, 2, v13\nv_lshl_add_u32 v12, v13, 4, v12')
    A('v_bfe_u32 v13, v1, 1, 1\nv_lshl_add_u32 v12, v13, 3, v12')
    A(f's_mul_i32 s48, s41, {PHI_HEAD}\ns_add_u32 s48, s48, {K1_PHI}\nv_add_u32 v12, s48, v12')
    A(f's_lshl_b32 s48, s45, 10\ns_lshl_b32 s49, s46, 8\ns_add_u32 s48, s48, s49\ns_add_u32 s48, s48, {K1_VL}\nv_add_u32 v13, s48, v8')
    for r in range(32): A(f'v_mov_b32 v{64+r}, 0x3f803f80')
    stamp(A, 0, 4)
    A('s_waitcnt lgkmcnt(0)\ns_barrier')
    stamp(A, 0, 5)
    for s in range(8):
        for rd in range(2):
            A(f'ds_read_b64_tr_b16 v[{16+4*s+2*rd}:{17+4*s+2*rd}], v12 offset:{s*256 + rd*128}')
    A('s_mov_b32 exec_lo, 0xffff\ns_mov_b32 exec_hi, 0xffff')
    for s in range(8):
        A(f'ds_read_b128 v[{64+4*s}:{67+4*s}], v13 offset:{s*2048}')
    A('s_mov_b64 exec, -1')
    for s in range(8):
        A(f's_waitcnt lgkmcnt({7-s})')
        A(f'v_mfma_f32_32x32x16_bf16 v[96:111], {vr(16+4*s,4)}, {vr(64+4*s,4)}, {"v[96:111]" if s else "0"}')
    A('v_lshlrev_b32 v12, 4, v10\nv_lshl_add_u32 v12, v11, 8, v12\nv_lshlrev_b32 v13, 4, v11\nv_add_u32 v13, 512, v13')
    A('s_mov_b32 s50, 0x10000\ns_mov_b32 s51, 0x10000')
    A('v_cndmask_b32_e64 v12, v12, v13, s[50:51]')
    A(f's_lshl_b32 s48, s40, 2\ns_add_u32 s48, s48, s41\ns_lshl_b32 s48, s48, 4\ns_add_u32 s48, s48, s39\ns_mul_i32 s48, s48, 2176\ns_add_u32 s48, s48, {WS_PK}')
    A('s_mov_b32 exec_lo, 0x1ffff\ns_mov_b32 exec_hi, 0x1ffff')
    for rq in range(4):
        A(f'buffer_store_dwordx4 v[{96+4*rq}:{99+4*rq}], v12, s[28:31], s48 offen offset:{rq*544} {ST}')
    A('s_mov_b64 exec, -1')
    stamp(A, 0, 7, 's[28:31]', 's41')
    A.label('L_k1_end')
    A('s_endpgm')

K2_KL, K2_VL, K2_KVF, K2_WPH, K2_PK = 0, 16384, 32768, 34816, 35840
K2_LDS = 35840 + 40960
def rowof(r, hi): return (r & 3) + 8 * (r >> 2) + 4 * hi

def gen_k2(A):
    header(A, 'k2_kernel')
    stamp(A, 1, 6)
    A('s_cmp_ge_u32 s2, 256\ns_cbranch_scc1 L_k2_end')
    A('s_load_dwordx4 s[52:55], s[0:1], 16\ns_load_dwordx2 s[16:17], s[0:1], 72\ns_load_dwordx2 s[56:57], s[0:1], 48')
    A('v_lshrrev_b32 v2, 6, v0\nv_and_b32 v1, 63, v0')
    A('s_and_b32 s36, s2, 7\ns_lshr_b32 s37, s2, 3')
    A('v_readfirstlane_b32 s41, v2')
    A('s_lshl_b32 s39, s36, 2\ns_and_b32 s42, s37, 3\ns_add_u32 s39, s39, s42')
    A('s_lshr_b32 s40, s37, 2')
    A(f's_mov_b32 s30, {WS_SIZE if not OPT["stamps"] else 0x2000000}\ns_mov_b32 s31, 0x20000\ns_mov_b32 s34, 0x4000\ns_mov_b32 s35, 0x20000')
    A('v_lshlrev_b32 v8, 4, v1\nv_and_b32 v10, 31, v1\nv_lshrrev_b32 v11, 5, v1')
    A('s_lshl_b32 s43, s39, 16')
    A('s_lshl_b32 s44, s40, 3\ns_add_u32 s44, s44, s41')
    A(f's_mul_i32 s45, s39, 34816\ns_lshl_b32 s46, s41, 10\ns_add_u32 s45, s45, s46\ns_add_u32 s45, s45, {WS_PK}')
    A('s_waitcnt lgkmcnt(0)')
    A('s_mov_b32 s28, s16\ns_mov_b32 s29, s17\ns_mov_b32 s32, s52\ns_mov_b32 s33, s53')
    stamp(A, 1, 0, 's[28:31]', 's41')
    vq = Q(A, 'vmcnt', 63)
    for e in range(2):
        A(f's_lshl_b32 s46, s40, 3\ns_lshl_b32 s47, s41, 1\ns_add_u32 s46, s46, s47\ns_add_i32 s46, s46, {e-8}\ns_max_i32 s46, s46, 0\ns_lshl_b32 s46, s46, 10\ns_add_u32 s46, s46, s43')
        A(f's_add_u32 s48, s46, {WS_KB}\ns_add_u32 s49, s46, {WS_VB}\ns_lshl_b32 s47, s47, 10')
        A(f's_add_u32 m0, s47, {K2_KL + e*1024}')
        A('buffer_load_dwordx4 v8, s[28:31], s48 offen lds'); vq.push('dma')
        A(f's_add_u32 m0, s47, {K2_VL + e*1024}')
        A('buffer_load_dwordx4 v8, s[28:31], s49 offen lds'); vq.push('dma')
    A(f's_lshl_b32 s46, s39, 9\ns_mov_b32 m0, {K2_WPH}')
    A('buffer_load_dwordx4 v8, s[32:35], s46 offen lds'); vq.push('dma')
    A(f's_lshl_b32 s46, s44, 10\ns_add_u32 s46, s46, s43\ns_add_u32 s47, s46, {WS_QA}')
    A('buffer_load_dwordx4 v[16:19], v8, s[28:31], s46 offen'); vq.push('qb')
    A('buffer_load_dwordx4 v[20:23], v8, s[28:31], s47 offen'); vq.push('qa')
    A(f's_lshl_b32 s46, s41, 10\ns_add_u32 s46, s46, {K2_PK}')
    for i in range(5):
        if i == 4: A('s_cmp_ge_u32 s41, 2\ns_cbranch_scc1 L_k2_nopk')
        A(f's_add_u32 m0, s46, {i*8192}')
        A(f'buffer_load_dwordx4 v8, s[28:31], s45 offen lds')
        if i < 4: vq.push('pk'); A('s_add_u32 s45, s45, 8192')
    A.label('L_k2_nopk')
    if OPT['pfw']:
        pf = OPT['pfw']
        A('s_cmp_lt_u32 s36, 4\ns_cselect_b32 s24, s54, s56\ns_cselect_b32 s25, s55, s57\ns_mov_b32 s26, 0x80000\ns_mov_b32 s27, 0x20000')
        A(f's_lshl_b32 s46, s37, 14\nv_mul_u32_u24 v6, {pf}, v0')
        A(f's_cmp_ge_u32 s41, {16384//pf//64}\ns_cbranch_scc1 L_k2_nopf')
        A('buffer_load_dword v5, v6, s[24:27], s46 offen')
        A.label('L_k2_nopf')
    for r in range(16):
        for hi in range(2):
            m = 0
            for c in range(32):
                if rowof(r, hi) <= c: m |= 1 << c
            A(f's_mov_b32 s{64+2*r+hi}, 0x{m:x}')
    A(f's_mov_b32 s60, 0x{f2u(LOG2E):x}\ns_mov_b32 s61, s60')
    A('s_mov_b32 s62, 0x00220000\ns_mov_b32 s63, 0x00220000')
    for r in range(16): A(f'v_mov_b32 v{24+r}, 0x3f803f80')
    A('v_mov_b32 v40, 0x3f803f80')
    A(f's_lshl_b32 s46, s41, 10\nv_add_u32 v13, s46, v8')
    A(f'v_and_b32 v14, 15, v1\nv_lshlrev_b32 v14, 4, v14\nv_lshl_add_u32 v14, v11, 8, v14\ns_add_u32 s46, s46, {K2_VL}\nv_add_u32 v14, s46, v14')
    A(f'v_bfe_u32 v15, v1, 2, 2\nv_lshl_add_u32 v15, v11, 2, v15\nv_lshlrev_b32 v15, 5, v15\nv_and_b32 v9, 3, v1\nv_lshl_add_u32 v15, v9, 3, v15')
    A(f'v_lshlrev_b32 v9, 5, v1\ns_lshl_b32 s46, s41, 2\nv_add_u32 v7, s46, v9')
    A('v_lshlrev_b32 v12, 4, v10\nv_lshl_add_u32 v12, v11, 8, v12\nv_lshlrev_b32 v6, 4, v11\nv_add_u32 v6, 512, v6')
    A('s_mov_b32 s50, 0xffff0000\ns_mov_b32 s51, 0xffff0000')
    A('v_cndmask_b32_e64 v12, v12, v6, s[50:51]')
    A(f's_lshr_b32 s46, s41, 1\ns_mul_i32 s46, s46, 544\ns_and_b32 s47, s41, 1\ns_lshl_b32 s47, s47, 3\ns_add_u32 s46, s46, s47\ns_add_u32 s46, s46, {K2_PK}\nv_add_u32 v12, s46, v12')
    stamp(A, 1, 2)
    vq.wait('qa')
    A('s_barrier')
    stamp(A, 1, 1, 's[28:31]', 's41')
    lq = Q(A, 'lgkmcnt', 15)
    S = [64 + 16 * j for j in range(9)]
    KF = [208 + 4 * j for j in range(9)]
    order = [8, 0, 7, 6, 5, 4, 3, 2, 1]
    for j in order:
        A(f'ds_read_b128 {vr(KF[j],4)}, v13 offset:{K2_KL + j*1024}'); lq.push(('k', j))
    for rd in range(2):
        A(f'ds_read_b64_tr_b16 v[{44+2*rd}:{45+2*rd}], v15 offset:{K2_WPH + rd*256}'); lq.push('wphi')
    for j in order:
        lq.wait(('k', j))
        A(f'v_mfma_f32_32x32x16_bf16 {vr(S[j],16)}, {vr(KF[j],4)}, v[16:19], 0')
    lq.wait('wphi')
    A('v_mfma_f32_32x32x16_bf16 v[48:63], v[44:47], v[20:23], 0')
    A('s_cmp_lg_u32 s40, 0\ns_cbranch_scc1 L_k2_valid')
    A('s_nop 15')
    for j in range(8):
        A(f's_cmp_ge_u32 s41, {8-j}\ns_cbranch_scc1 L_k2_valid')
        for r in range(16): A(f'v_mov_b32 v{S[j]+r}, 0xff800000')
    A.label('L_k2_valid')
    for r in range(16):
        A(f'v_cndmask_b32_e64 v{S[8]+r}, v{S[0]+r}, v{S[8]+r}, s[{64+2*r}:{65+2*r}]')
    tiles = [8, 7, 6, 5, 4, 3, 2, 1]
    first = True
    for j in tiles:
        b = S[j]
        for m in range(4):
            if first:
                A(f'v_max_f32 v2, v{b}, v{b+1}\nv_max_f32 v3, v{b+2}, v{b+3}'); first = False
            else:
                A(f'v_max3_f32 v2, v2, v{b+4*m}, v{b+4*m+1}\nv_max3_f32 v3, v3, v{b+4*m+2}, v{b+4*m+3}')
    A('v_max_f32 v2, v2, v3\nv_mov_b32 v3, v2')
    A('v_permlane32_swap_b32 v2, v3')
    A('v_max_f32 v2, v2, v3')
    stamp(A, 1, 4)
    A('s_waitcnt vmcnt(0)\ns_barrier')
    for rb in range(16):
        A(f'ds_read_b64 v[{224+2*rb}:{225+2*rb}], v12 offset:{rb*2176}'); lq.push(('pk', rb))
    O = 208
    vset = [0]
    def vread(j, blk):
        st = vset[0] % 4; vset[0] += 1
        A(f'ds_read_b128 {vr(24+4*st,4)}, v14 offset:{j*1024 + blk*512}'); lq.push(('v', j, blk))
        return 24 + 4 * st
    def vreads(j):
        A('s_mov_b32 exec_lo, 0xffff\ns_mov_b32 exec_hi, 0xffff')
        r = [vread(j, 0), vread(j, 1)]
        A('s_mov_b64 exec, -1')
        return r
    firstpv = [True]
    def pv(j, vregs, pbase):
        for blk in range(2):
            lq.wait(('v', j, blk))
            A(f'v_mfma_f32_32x32x16_bf16 {vr(O,16)}, {vr(vregs[blk],4)}, {vr(pbase+4*blk,4)}, {"0" if firstpv[0] else vr(O,16)}')
            firstpv[0] = False
    def expt(j):
        b = S[j]
        for m in range(8): A(f'v_pk_add_f32 v[{b+2*m}:{b+2*m+1}], v[{b+2*m}:{b+2*m+1}], v[2:3] op_sel_hi:[1,0] neg_lo:[0,1] neg_hi:[0,1]')
        for r in range(16): A(f'v_exp_f32 v{b+r}, v{b+r}')
        for m in range(8): A(f'v_cvt_pk_bf16_f32 v{b+m}, v{b+2*m}, v{b+2*m+1}')
    v8 = vreads(8); v0 = vreads(0)
    expt(8)
    b = S[8]; z = S[0]
    for m in range(8):
        A(f'v_and_b32 v{z+8+m}, 0xffff, v{b+m}')
    for m in range(8):
        A(f'v_cndmask_b32_e64 v{z+8+m}, 0, v{z+8+m}, s[{64+4*m}:{65+4*m}]')
    for m in range(8):
        A(f'v_cndmask_b32_e64 v{z+8+m}, v{z+8+m}, v{b+m}, s[{66+4*m}:{67+4*m}]')
    for m in range(8):
        A(f'v_xor_b32 v{z+m}, v{z+8+m}, v{b+m}')
    pv(8, v8, z + 8); pv(0, v0, z)
    for d in (8, 4, 2, 1):
        for i in range(d): A(f'v_pk_add_f32 v[{224+2*i}:{225+2*i}], v[{224+2*i}:{225+2*i}], v[{224+2*(i+d)}:{225+2*(i+d)}]')
    A('v_cvt_pk_bf16_f32 v224, v224, v225')
    A('v_cndmask_b32_e64 v224, v224, v40, s[62:63]')
    A(f'ds_write_b32 v7, v224 offset:{K2_KVF}'); lq.push('kvw')
    for j in tiles[1:]:
        vv = vreads(j)
        expt(j)
        pv(j, vv, S[j])
    stamp(A, 1, 5)
    lq.all()
    A('s_barrier')
    A(f'ds_read_b128 v[244:247], v9 offset:{K2_KVF}'); lq.push('kvf')
    A(f'ds_read_b128 v[248:251], v9 offset:{K2_KVF+16}'); lq.push('kvf')
    dual_softmax_head(A, ['a'], {'a': 48}, {'a': 64})
    for m in range(8): A(f'v_cvt_pk_bf16_f32 v{84+m}, v{66+2*m}, v{67+2*m}')
    lq.wait('kvf')
    A('v_mfma_f32_32x32x16_bf16 v[96:111], v[244:247], v[84:87], 0')
    A('v_mfma_f32_32x32x16_bf16 v[112:127], v[248:251], v[88:91], 0')
    A(f's_lshl_b32 s46, s44, 15\ns_lshl_b32 s47, s39, 10\ns_add_u32 s46, s46, s47\ns_add_u32 s47, s46, {WS_OB}\ns_add_u32 s46, s46, {WS_OA}')
    A(f'v_rcp_f32 v4, v{O+8}')
    for m in range(4): A(f'v_pk_mul_f32 v[{O+2*m}:{O+2*m+1}], v[{O+2*m}:{O+2*m+1}], v[4:5] op_sel_hi:[1,0]')
    for m in range(4): A(f'v_cvt_pk_bf16_f32 v{128+m}, v{O+2*m}, v{O+2*m+1}')
    A(f'buffer_store_dwordx4 v[128:131], v8, s[28:31], s47 offen {ST}')
    A('v_rcp_f32 v4, v105\nv_rcp_f32 v5, v121')
    A(f'v_mov_b32 v6, 0x{f2u(1e-6):x}')
    A('v_fmac_f32 v6, v104, v4\nv_fmac_f32 v6, v120, v5')
    A('v_rcp_f32 v6, v6')
    A('v_mul_f32 v4, v4, v6\nv_mul_f32 v5, v5, v6')
    for m in range(4): A(f'v_pk_mul_f32 v[{96+2*m}:{97+2*m}], v[{96+2*m}:{97+2*m}], v[4:5] op_sel_hi:[1,0]')
    for m in range(4): A(f'v_pk_fma_f32 v[{96+2*m}:{97+2*m}], v[{112+2*m}:{113+2*m}], v[4:5], v[{96+2*m}:{97+2*m}] op_sel:[0,1,0]')
    for m in range(4): A(f'v_cvt_pk_bf16_f32 v{132+m}, v{96+2*m}, v{97+2*m}')
    A(f'buffer_store_dwordx4 v[132:135], v8, s[28:31], s46 offen {ST}')
    stamp(A, 1, 7, 's[28:31]', 's41')
    A.label('L_k2_end')
    A('s_endpgm')

K3_LDS = 65536
def gen_k3(A):
    header(A, 'k3_kernel')
    stamp(A, 2, 6)
    A('s_cmp_ge_u32 s2, 256\ns_cbranch_scc1 L_k3_end')
    A('s_load_dwordx2 s[4:5], s[0:1], 24\ns_load_dwordx4 s[8:11], s[0:1], 48\ns_load_dwordx2 s[16:17], s[0:1], 72')
    A('v_lshrrev_b32 v2, 6, v0\nv_and_b32 v1, 63, v0')
    A('s_and_b32 s36, s2, 7\ns_lshr_b32 s37, s2, 3\ns_lshr_b32 s38, s36, 2')
    A('v_readfirstlane_b32 s41, v2')
    A('s_and_b32 s39, s36, 3\ns_lshl_b32 s39, s39, 2\ns_and_b32 s42, s37, 3\ns_add_u32 s39, s39, s42')
    A('s_lshr_b32 s40, s37, 2')
    A(f's_mov_b32 s22, 0x80000\ns_mov_b32 s23, 0x20000\ns_mov_b32 s26, 0x400000\ns_mov_b32 s27, 0x20000\ns_mov_b32 s30, {WS_SIZE if not OPT["stamps"] else 0x2000000}\ns_mov_b32 s31, 0x20000')
    A('v_lshlrev_b32 v8, 4, v1\nv_and_b32 v10, 31, v1\nv_lshrrev_b32 v11, 5, v1')
    A('v_lshrrev_b32 v3, 3, v1\nv_and_b32 v4, 7, v1\nv_bfe_u32 v5, v1, 4, 1\nv_lshlrev_b32 v5, 2, v5\nv_xor_b32 v4, v4, v5\nv_lshlrev_b32 v4, 4, v4\nv_lshl_add_u32 v4, v3, 10, v4')
    A('s_lshl_b32 s44, s39, 2\ns_add_u32 s44, s44, s41')
    A(f's_lshl_b32 s45, s38, 21\ns_add_u32 s45, s45, {WS_OA}\ns_lshl_b32 s46, s44, 15\ns_add_u32 s45, s45, s46')
    A('s_lshl_b32 s46, s41, 13\ns_lshl_b32 s47, s40, 7\ns_add_u32 s46, s46, s47\ns_lshl_b32 s47, s41, 10')
    A('s_cmp_eq_u32 s38, 0')
    A('s_waitcnt lgkmcnt(0)')
    A('s_cselect_b32 s20, s4, s8\ns_cselect_b32 s21, s5, s9\ns_mov_b32 s24, s10\ns_mov_b32 s25, s11\ns_mov_b32 s28, s16\ns_mov_b32 s29, s17')
    stamp(A, 2, 0, 's[28:31]', 's41')
    vq = Q(A, 'vmcnt', 63)
    for i in range(16):
        A(f's_add_u32 m0, s47, {i*4096}')
        A(f'buffer_load_dwordx4 v4, s[20:23], s46 offen lds'); vq.push('dma')
        if i < 15: A(f's_add_u32 s46, s46, 32768')
    OF = 64
    def oload(h):
        A(f'buffer_load_dwordx4 {vr(OF+4*h,4)}, v8, s[28:31], s45 offen offset:{(h%4)*1024}'); vq.push(('o', h))
        if h % 4 == 3: A('s_add_u32 s45, s45, 4096')
    for h in range(16): oload(h)
    A('v_bfe_u32 v12, v1, 2, 2\nv_lshl_add_u32 v12, v11, 2, v12\nv_lshlrev_b32 v12, 7, v12')
    A('v_bfe_u32 v13, v1, 3, 1\nv_lshl_add_u32 v12, v13, 6, v12')
    A('v_bfe_u32 v13, v1, 4, 1\nv_lshl_add_u32 v12, v13, 5, v12')
    A('v_and_b32 v13, 3, v1\nv_lshl_add_u32 v6, v13, 3, v12\nv_xor_b32 v7, 64, v6')
    vq.wait('dma')
    A('s_barrier')
    stamp(A, 2, 1, 's[28:31]', 's41')
    lq = Q(A, 'lgkmcnt', 15)
    FS = [16, 24]
    def reads(h):
        f = FS[h & 1]
        return [(f'ds_read_b64_tr_b16 v[{f+4*c+2*rd}:{f+4*c+2*rd+1}], v{6+c} offset:{h*2048 + rd*1024}', (h, c)) for c in range(2) for rd in range(2)]
    for t, tag in reads(0): A(t); lq.push(tag)
    for h in range(32):
        f = FS[h & 1]
        nxt = reads(h + 1) if h < 31 else []
        if h + 16 < 32: oload(h + 16)
        vq.wait(('o', h))
        for c in range(2):
            lq.wait((h, c))
            A(f'v_mfma_f32_32x32x16_bf16 {vr(32+16*c,16)}, {vr(f+4*c,4)}, {vr(OF+4*h,4)}, {vr(32+16*c,16) if h else "0"}')
            for t, tag in nxt[2*c:2*c+2]: A(t); lq.push(tag)
    stamp(A, 2, 2, 's[28:31]', 's41')
    A('v_lshlrev_b32 v9, 11, v10\nv_lshl_add_u32 v9, v11, 4, v9')
    A('s_lshl_b32 s46, s44, 16\ns_lshl_b32 s47, s38, 10\ns_add_u32 s46, s46, s47\ns_lshl_b32 s47, s40, 7\ns_add_u32 s46, s46, s47')
    for c in range(2):
        for m in range(8): A(f'v_cvt_pk_bf16_f32 v{64+8*c+m}, v{32+16*c+2*m}, v{33+16*c+2*m}')
    for c in range(2):
        for gp in range(2):
            b = 64 + 8*c + 4*gp
            A(f'v_permlane32_swap_b32 v{b}, v{b+2}\nv_permlane32_swap_b32 v{b+1}, v{b+3}')
            A(f'buffer_store_dwordx4 {vr(b,4)}, v9, s[24:27], s46 offen offset:{c*64 + gp*32} {OST}')
    stamp(A, 2, 7, 's[28:31]', 's41')
    A.label('L_k3_end')
    A('s_endpgm')

def main():
    A = Asm()
    A.raw(f'; @launch kernel=k1_kernel grid=(256,1,1) block=(512,1,1) lds={K1_LDS}')
    A.raw(f'; @launch kernel=k2_kernel grid=(256,1,1) block=(512,1,1) lds={K2_LDS}')
    A.raw(f'; @launch kernel=k3_kernel grid=(256,1,1) block=(256,1,1) lds={K3_LDS}')
    A.raw('.amdgcn_target "amdgcn-amd-amdhsa--gfx950"\n.text')
    gen_k1(A); gen_k2(A); gen_k3(A)
    A.raw('L_code_end:\n.p2align 8\n.fill 64, 4, 0xbf800000')
    sg = 102 if OPT['stamps'] else 96
    A.raw(kd('k1_kernel', 256, sg)); A.raw(kd('k2_kernel', 256, sg)); A.raw(kd('k3_kernel', 256 if OPT['stamps'] else 192, sg))
    sys.stdout.write(A.text())
main()
```

```python
import sys, math, struct
sys.path.insert(0, 'work')
from asmlib import *

OPT = dict(st='sc1', ost='plain', stamps=0, pf=1, pfc=1, pfw=1, prio=0)
for a in sys.argv[1:]:
    k, v = a.split('='); OPT[k] = int(v) if v.lstrip('-').isdigit() else v
ST = '' if OPT['st'] == 'plain' else OPT['st']
OST = '' if OPT['ost'] == 'plain' else OPT['ost']

def f2u(x): return struct.unpack('<I', struct.pack('<f', x))[0]
LOG2E = math.log2(math.e)
WS_KVG, WS_PK, WS_OA, WS_OB, WS_QG = 0x000000, 0x400000, 0x600000, 0x800000, 0xA00000
WS_F1, WS_F2, WS_FQ, WS_EP = 0xC00100, 0xC04000, 0xC06000, 0xC08000
WS_SIZE = 0xC10000
WS_STAMP = 0x1000000
SPIN_MAX = 1 << 16

class Q:
    def __init__(self, A, name, mx): self.A = A; self.q = []; self.name = name; self.mx = mx
    def push(self, tag): self.q.append(tag)
    def wait(self, *tags):
        idx = -1
        for i, t in enumerate(self.q):
            if t in tags: idx = i
        if idx < 0: return
        n = min(len(self.q) - 1 - idx, self.mx)
        self.A(f's_waitcnt {self.name}({n})')
        self.q = self.q[len(self.q) - n:] if n else []
    def all(self):
        self.A(f's_waitcnt {self.name}(0)'); self.q = []

def stamp(A, idx):
    if not OPT['stamps']: return
    A(('s_memrealtime' if OPT['stamps'] == 1 else 's_memtime') + ' s[96:97]')
    A('s_waitcnt lgkmcnt(0)')
    A(f'v_writelane_b32 v253, s96, {idx}')
def stamp_flush(A, k, srd, wavereg):
    if not OPT['stamps']: return
    stamp(A, 15)
    A(f's_lshl_b32 s98, s2, 3\ns_add_u32 s98, s98, {wavereg}\ns_lshl_b32 s98, s98, 6\ns_add_u32 s98, s98, {WS_STAMP + k*0x40000}')
    A('v_mbcnt_lo_u32_b32 v252, -1, 0\nv_lshlrev_b32 v252, 2, v252\ns_mov_b64 exec, 0xffff')
    A(f'buffer_store_dword v253, v252, {srd}, s98 offen')

def header(A, name):
    A.raw(f'.globl {name}\n.p2align 8\n.type {name},@function\n{name}:')
    A.fence()

def rowof(r, hi): return (r & 3) + 8 * (r >> 2) + 4 * hi

def dual_exp(A, p, t):
    A(f'v_max3_f32 v{t}, v{p}, v{p+1}, v{p+2}\nv_max3_f32 v{t+1}, -v{p}, -v{p+1}, -v{p+2}')
    A(f'v_max3_f32 v{t}, v{t}, v{p+3}, v{p+4}\nv_max3_f32 v{t+1}, v{t+1}, -v{p+3}, -v{p+4}')
    A(f'v_max3_f32 v{t}, v{t}, v{p+5}, v{p+6}\nv_max3_f32 v{t+1}, v{t+1}, -v{p+5}, -v{p+6}')
    A(f'v_max_f32_e64 v{t}, v{t}, v{p+7}\nv_max_f32_e64 v{t+1}, v{t+1}, -v{p+7}')
    A(f'v_permlane32_swap_b32 v{t}, v{t+1}')
    A(f'v_max_f32 v{t}, v{t}, v{t+1}')
    A(f'v_mul_f32 v{t}, s62, v{t}')
    A(f'v_mov_b32 v{t+1}, v{t}')
    A(f'v_permlane32_swap_b32 v{t}, v{t+1}')
    for m in range(4):
        A(f'v_pk_fma_f32 v[{t+2+2*m}:{t+3+2*m}], v[{p+2*m}:{p+2*m+1}], s[62:63], v[{t}:{t+1}] op_sel_hi:[1,1,0] neg_lo:[0,0,1] neg_hi:[0,0,1]')
        A(f'v_pk_fma_f32 v[{t+10+2*m}:{t+11+2*m}], v[{p+2*m}:{p+2*m+1}], s[62:63], v[{t}:{t+1}] op_sel:[0,0,1] neg_lo:[1,0,1] neg_hi:[1,0,1]')
    for r in range(16): A(f'v_exp_f32 v{t+2+r}, v{t+2+r}')

uid = [0]
def poll(A, vdst, voff, soff, issued=False):
    uid[0] += 1; n = uid[0]
    A('s_mov_b32 s3, 0')
    if issued: A(f's_branch L_pc{n}')
    A.label(f'L_pl{n}'); A.fence()
    A(f'buffer_load_dwordx2 v[{vdst}:{vdst+1}], v{voff}, s[52:55], {soff} offen sc1')
    A.label(f'L_pc{n}'); A.fence()
    A('s_waitcnt vmcnt(0)')
    A(f'v_cmp_ne_u64 vcc, s[60:61], v[{vdst}:{vdst+1}]')
    A(f's_cbranch_vccz L_pd{n}')
    A(f's_sleep 1\ns_add_u32 s3, s3, 1\ns_cmp_lt_u32 s3, {SPIN_MAX}\ns_cbranch_scc1 L_pl{n}')
    A.label(f'L_pd{n}'); A.fence()


XRING, WRING = 0, 49152
PHI, VA = 0, 33792
KL, VL, QB, QA, KVF, WPH, TAG = 69632, 94208, 118784, 126976, 135168, 139264, 141312
PHI_PLANE, PHI_HEAD = 2112, 8448
KF_LDS = 141376

def srd(A, d, lo, size):
    A(f's_mov_b32 s{d}, s{lo}\ns_mov_b32 s{d+1}, s{lo+1}\ns_mov_b32 s{d+2}, 0x{size:x}\ns_mov_b32 s{d+3}, 0x20000')

def flag(A, soff, tmp=4):
    A(f'v_mov_b32 v{tmp}, s60\nv_mov_b32 v{tmp+1}, s61\nv_mov_b32 v{tmp+2}, 0\ns_waitcnt vmcnt(0)\ns_mov_b64 exec, 1')
    A(f'buffer_store_dwordx2 v[{tmp}:{tmp+1}], v{tmp+2}, s[52:55], {soff} offen sc1')
    A('s_mov_b64 exec, -1')

def multi(A, units, fn):
    streams = []
    for u in units:
        L = []
        fn(lambda t: L.extend(x for x in t.split('\n') if x.strip()), u)
        streams.append(L)
    for i in range(max(len(x) for x in streams)):
        for L in streams:
            if i < len(L): A(L[i])

def gen_kf(A, name):
    WSZ = WS_SIZE if not OPT['stamps'] else 0x2000000
    header(A, name)
    stamp(A, 14)
    A('s_cmp_ge_u32 s2, 256\ns_cbranch_scc1 L_kf_end')
    A('s_load_dwordx16 s[4:19], s[0:1], 0\ns_load_dwordx4 s[20:23], s[0:1], 64')
    A('v_lshrrev_b32 v2, 6, v0\nv_and_b32 v1, 63, v0')
    A('s_and_b32 s36, s2, 7\ns_lshr_b32 s37, s2, 3')
    A('v_readfirstlane_b32 s41, v2')
    A('s_and_b32 s38, s37, 1')
    A('s_and_b32 s39, s36, 3\ns_lshl_b32 s39, s39, 2\ns_bfe_u32 s42, s37, 0x20001\ns_add_u32 s39, s39, s42')
    A('s_and_b32 s35, s36, 4\ns_lshr_b32 s42, s37, 3\ns_add_u32 s35, s35, s42')
    A('s_lshl_b32 s40, s35, 1\ns_add_u32 s40, s40, s38')
    A('v_lshlrev_b32 v8, 4, v1\nv_and_b32 v10, 31, v1\nv_lshrrev_b32 v11, 5, v1')
    A('s_mov_b32 s46, 0x200000\ns_mov_b32 s47, 0x20000\ns_mov_b32 s50, 0x180000\ns_mov_b32 s51, 0x20000')
    A('s_cmp_lt_u32 s41, 4\ns_cbranch_scc1 L_kf_cons')
    def xw_srd():
        A('s_cmp_eq_u32 s38, 0')
        A('s_waitcnt lgkmcnt(0)')
        A('s_cselect_b32 s44, s12, s4\ns_cselect_b32 s45, s13, s5\ns_cselect_b32 s48, s14, s6\ns_cselect_b32 s49, s15, s7')
    A('s_sub_u32 s43, s41, 4')
    A('v_lshrrev_b32 v3, 3, v1\nv_and_b32 v4, 7, v1\nv_lshrrev_b32 v5, 4, v1')
    A('v_xor_b32 v6, v4, v5\nv_lshlrev_b32 v6, 4, v6\nv_lshl_add_u32 v6, v3, 10, v6')
    A('s_lshl_b32 s24, s39, 17\ns_lshl_b32 s25, s43, 15\ns_add_u32 s24, s24, s25')
    A('v_add_u32 v16, s24, v6\nv_xor_b32 v17, 64, v16\nv_add_u32 v17, 8192, v17\nv_add_u32 v18, 16384, v16\nv_add_u32 v19, 16384, v17')
    A('v_and_b32 v5, 1, v5\nv_lshlrev_b32 v5, 2, v5\nv_xor_b32 v4, v4, v5\nv_mul_u32_u24 v3, 3072, v3\nv_lshl_add_u32 v3, v4, 4, v3')
    A('s_mul_i32 s24, s43, 49152\ns_lshl_b32 s25, s35, 7\ns_add_u32 s24, s24, s25')
    A('v_add_u32 v20, s24, v3\nv_add_u32 v21, 24576, v20')
    A(f's_lshl_b32 s30, s43, 12\ns_lshl_b32 s31, s43, 11\ns_add_u32 s31, s31, {WRING}')
    xw_srd()
    def issue(s):
        slot = s % 3
        A(f's_mov_b32 s32, {s*128}')
        for i in range(4):
            A(f's_add_u32 m0, s30, {XRING + slot*16384 + i*1024}')
            A(f'buffer_load_dwordx4 v{16+i}, s[44:47], s32 offen lds')
        for seg in range(3):
            A(f's_mov_b32 s33, {s*196608 + seg*1024}')
            for i in range(2):
                A(f's_add_u32 m0, s31, {slot*24576 + seg*8192 + i*1024}')
                A(f'buffer_load_dwordx4 v{20+i}, s[48:51], s33 offen lds')
    issue(0)
    A('s_barrier')
    issue(1)
    stamp(A, 0)
    srd(A, 52, 22, WSZ)
    common_consts(A)
    for s in range(8):
        A(f's_waitcnt vmcnt({10 if s < 7 else 0})')
        A('s_barrier')
        if s + 2 < 8: issue(s + 2)
    stamp(A, 1)
    A(f's_lshl_b32 s24, s40, 4\ns_add_u32 s24, s24, s39\ns_lshl_b32 s25, s24, 4\ns_add_u32 s34, s25, {WS_F1 - 32}')
    A(f's_lshl_b32 s33, s24, 14\ns_lshl_b32 s25, s43, 12\ns_add_u32 s33, s33, s25')
    A(f's_lshl_b32 s32, s24, 13\ns_lshl_b32 s25, s43, 11\ns_add_u32 s32, s32, s25\ns_add_u32 s32, s32, {WS_QG}')
    A(f's_lshl_b32 s27, s24, 4\ns_add_u32 s27, s27, {WS_FQ}')
    A(f's_mul_i32 s24, s43, 12288\ns_add_u32 s24, s24, {KL}')
    A('v_lshlrev_b32 v9, 3, v1')
    A('s_barrier')
    A(f'v_mov_b32 v26, {TAG}\nds_read_b64 v[28:29], v26')
    A('s_cmp_eq_u32 s38, 0\ns_cselect_b32 s26, 0x0f, 0x3f')
    A('s_cmp_ge_u32 s39, 2\ns_cbranch_scc1 L_kf_nb2')
    A('v_mov_b32 v32, 0\nv_mov_b32 v33, 0\nv_mov_b32 v34, 0\nv_mov_b32 v35, 0\nv_add_u32 v26, s24, v8')
    for i in range(4): A(f'ds_write_b128 v26, v[32:35] offset:{i*1024}')
    A('s_and_b32 s26, s26, 0x3c')
    A('s_cmp_eq_u32 s39, 1\ns_cbranch_scc1 L_kf_nb2')
    for i in range(4, 8): A(f'ds_write_b128 v26, v[32:35] offset:{i*1024}')
    A('s_and_b32 s26, s26, 0x30')
    A.label('L_kf_nb2'); A.fence()
    A('s_waitcnt lgkmcnt(0)')
    A('v_readfirstlane_b32 s60, v28\nv_readfirstlane_b32 s61, v29')
    A('s_cmp_eq_u32 s38, 0\ns_cbranch_scc1 L_kf_noea')
    A('s_barrier')
    A.label('L_kf_noea'); A.fence()
    A('s_cmp_eq_u32 s26, 0\ns_cbranch_scc1 L_kf_nbq')
    A('s_mov_b32 exec_lo, s26\ns_mov_b32 exec_hi, 0')
    poll(A, 24, 9, 's34')
    A('s_mov_b64 exec, -1')
    stamp(A, 2)
    for nb in range(3):
        A(f's_bitcmp0_b32 s26, {2*nb}\ns_cbranch_scc1 L_kf_sk{nb}')
        A(f's_sub_u32 s25, s33, {(2-nb)*16384}\ns_add_u32 m0, s24, {nb*4096}')
        for i in range(4): A(f'buffer_load_dwordx4 v8, s[52:55], s25 offen offset:{i*1024} sc1 lds')
        A.label(f'L_kf_sk{nb}'); A.fence()
    A.label('L_kf_nbq'); A.fence()
    A(f's_lshl_b32 s25, s43, 11\ns_add_u32 s24, s25, {QB}')
    A('s_cmp_eq_u32 s38, 1\ns_cbranch_scc1 L_kf_ldq')
    A(f's_add_u32 s24, s25, {QA}')
    A('s_mov_b64 exec, 3')
    poll(A, 24, 9, 's27')
    A('s_mov_b64 exec, -1')
    A.label('L_kf_ldq'); A.fence()
    A('s_mov_b32 m0, s24')
    for i in range(2): A(f'buffer_load_dwordx4 v8, s[52:55], s32 offen offset:{i*1024} sc1 lds')
    stamp(A, 3)
    A('s_branch L_kf_post')
    A.label('L_kf_cons'); A.fence()
    A('s_lshr_b32 s42, s41, 1\ns_and_b32 s43, s41, 1')
    A('v_bfe_u32 v12, v1, 1, 3\nv_xor_b32 v12, v12, v11\nv_lshlrev_b32 v12, 4, v12')
    A('s_lshl_b32 s24, s42, 13\nv_lshl_add_u32 v13, v10, 7, s24')
    for ks in range(4): A(f'v_xor_b32 v14, {ks*32}, v12\nv_add_u32 v{2+ks}, v13, v14')
    A('v_bfe_u32 v12, v1, 2, 2\nv_lshl_add_u32 v12, v11, 3, v12\nv_lshlrev_b32 v12, 7, v12')
    A('v_bfe_u32 v13, v1, 3, 1\nv_xor_b32 v13, s43, v13\nv_lshl_add_u32 v12, v13, 6, v12')
    A('v_bfe_u32 v13, v1, 4, 1\nv_lshl_add_u32 v12, v13, 5, v12\nv_and_b32 v13, 3, v1\nv_lshl_add_u32 v12, v13, 3, v12')
    A(f'v_add_u32 v6, {WRING}, v12\nv_add_u32 v7, {WRING + 49152}, v12')
    A('v_lshrrev_b32 v12, 1, v10\nv_lshlrev_b32 v12, 10, v12\nv_and_b32 v13, 1, v1\nv_lshl_add_u32 v12, v13, 7, v12')
    A('v_bfe_u32 v14, v1, 4, 1\nv_mul_u32_u24 v14, 196608, v14\nv_and_b32 v13, 15, v1\nv_lshl_add_u32 v13, v13, 7, v14')
    A('s_lshl_b32 s24, s39, 3\ns_add_u32 s24, s24, s35\ns_lshl_b32 s26, s24, 14\ns_mul_i32 s27, s24, 1536')
    xw_srd()
    srd(A, 52, 22, WSZ)
    srd(A, 56, 20, 0x100)
    def warm(g):
        if not OPT['pf']: return
        uid[0] += 1; n = uid[0]
        A(f's_cmp_lg_u32 s41, {g}\ns_cbranch_scc1 L_w{n}')
        A(f's_add_u32 s24, s26, {g*256}\ns_add_u32 s25, s27, {g*2*196608}')
        A('s_mov_b32 exec_hi, 0')
        A('buffer_load_dword v15, v12, s[44:47], s24 offen')
        A('s_mov_b32 exec_lo, 0x0fff0fff')
        A('buffer_load_dword v15, v13, s[48:51], s25 offen')
        A('s_mov_b64 exec, -1')
        A.label(f'L_w{n}')
    A('s_cmp_lg_u32 s41, 3\ns_cbranch_scc1 L_kf_notag\ns_cmp_lg_u32 s2, 0\ns_cbranch_scc1 L_kf_notag')
    A(f's_mov_b32 s24, {WS_EP}\nv_mov_b32 v14, 0\ns_mov_b64 exec, 1')
    A('buffer_load_dwordx2 v[16:17], v14, s[52:55], s24 offen sc1')
    A('s_mov_b64 exec, -1')
    A.label('L_kf_notag'); A.fence()
    A('s_cmp_lg_u32 s41, 0\ns_cbranch_scc1 L_kf_w3')
    if OPT['pfc']:
        A('s_getpc_b64 s[24:25]')
        A.label('L_kf_pc')
        A(f's_add_u32 s24, s24, {name}-L_kf_pc\ns_addc_u32 s25, s25, -1')
        A(f's_lshl_b32 s30, s37, 7\nv_lshlrev_b32 v14, 12, v1\nv_add_u32 v14, s30, v14\nv_min_u32 v14, L_code_end-{name}-4, v14\ns_mov_b64 exec, 0xff')
        A('global_load_dword v15, v14, s[24:25]')
        A('s_mov_b64 exec, -1')
    A.label('L_kf_w3'); A.fence()
    A('s_barrier')
    warm(1)
    A('s_cmp_lg_u32 s41, 0\ns_cbranch_scc1 L_kf_w4')
    srd(A, 28, 8, 0x4000)
    A(f's_lshl_b32 s24, s35, 11\ns_mov_b32 m0, {WPH}')
    for i in range(2): A(f'buffer_load_dwordx4 v8, s[28:31], s24 offen offset:{i*1024} lds')
    A.label('L_kf_w4'); A.fence()
    A('s_cmp_lg_u32 s41, 3\ns_cbranch_scc1 L_kf_notag2\ns_cmp_lg_u32 s2, 0\ns_cbranch_scc1 L_kf_notag2')
    A(f's_mov_b32 s24, {WS_EP}\nv_mov_b32 v14, 0\ns_waitcnt vmcnt(0)')
    A('v_readfirstlane_b32 s28, v16\nv_readfirstlane_b32 s29, v17')
    A('s_add_u32 s28, s28, 1\ns_addc_u32 s29, s29, 0\ns_cmp_eq_u64 s[28:29], 0\ns_cselect_b32 s28, 1, s28')
    A('v_mov_b32 v16, s28\nv_mov_b32 v17, s29\ns_mov_b64 exec, 1')
    A('buffer_store_dwordx2 v[16:17], v14, s[56:59], 0 offen sc1')
    A('buffer_store_dwordx2 v[16:17], v14, s[52:55], s24 offen sc1')
    A('s_mov_b64 exec, -1')
    A.label('L_kf_notag2'); A.fence()
    stamp(A, 0)
    common_consts(A)
    ACC = {(0, 0): 64, (0, 1): 80, (1, 0): 96, (1, 1): 112, (2, 0): 128, (2, 1): 144}
    FS = [16, 36]
    lq = Q(A, 'lgkmcnt', 15)
    def reads(n):
        s, ks = divmod(n, 4); slot = s % 3; f = FS[n & 1]
        wa, wo = (6, slot * 24576) if slot < 2 else (7, 0)
        def rx(tt): return (f'ds_read_b128 v[{f+4*tt}:{f+4*tt+3}], v{2+ks} offset:{XRING + slot*16384 + tt*4096}', (n, 'x', tt))
        def rw(seg, rd): return (f'ds_read_b64_tr_b16 v[{f+8+4*seg+2*rd}:{f+9+4*seg+2*rd}], v{wa} offset:{wo + seg*8192 + ks*2048 + rd*512}', (n, 'w', seg))
        return [rx(0), rw(1, 0), rw(1, 1), rx(1), rw(2, 0), rw(2, 1), rw(0, 0), rw(0, 1)]
    A('v_mov_b32 v14, 0')
    A('s_barrier')
    stamp(A, 1)
    for t, tag in reads(0): A(t); lq.push(tag)
    warm(2)
    for n in range(32):
        f = FS[n & 1]
        nxt = reads(n + 1) if n + 1 < 32 else []
        newstage = (n % 4 == 3) and n + 1 < 32
        k = 0
        for mi, (seg, tt) in enumerate([(1, 0), (1, 1), (2, 0), (2, 1), (0, 0), (0, 1)]):
            if newstage and mi == 0: lq.all()
            else: lq.wait((n, 'x', tt), (n, 'w', seg))
            acc = ACC[(seg, tt)]
            X = vr(f + 4*tt, 4); W = vr(f + 8 + 4*seg, 4)
            a, b = (W, X) if seg < 2 else (X, W)
            c = vr(acc, 16) if n > 0 else '0'
            A(f'v_mfma_f32_32x32x16_bf16 {vr(acc,16)}, {a}, {b}, {c}')
            if newstage and mi == 0: A('s_barrier')
            for _ in range(2):
                if k < len(nxt):
                    t, tag = nxt[k]; A(t); lq.push(tag); k += 1
        if n == 7: warm(3)
        if n == 20: A('buffer_load_dwordx2 v[60:61], v14, s[56:59], 0 offen sc1')
        if n == 28:
            uid[0] += 1; u = uid[0]
            A('s_mov_b32 s30, 0\ns_waitcnt vmcnt(0)')
            A.label(f'L_tg{u}')
            A('v_readfirstlane_b32 s60, v60\nv_readfirstlane_b32 s61, v61')
            A(f's_cmp_lg_u64 s[60:61], 0\ns_cbranch_scc1 L_tgd{u}')
            A('s_sleep 1\nbuffer_load_dwordx2 v[60:61], v14, s[56:59], 0 offen sc1\ns_waitcnt vmcnt(0)')
            A(f's_add_u32 s30, s30, 1\ns_cmp_lt_u32 s30, {SPIN_MAX}\ns_cbranch_scc1 L_tg{u}')
            A.label(f'L_tgd{u}')
            A(f'v_mov_b32 v12, {TAG}\nds_write_b64 v12, v[60:61]'); lq.push('tag')
            A('s_lshl_b32 s24, s35, 1\ns_add_u32 s24, s24, s43\ns_lshl_b32 s24, s24, 4\ns_add_u32 s24, s24, s39')
            A('s_lshl_b32 s25, s42, 11\ns_lshl_b32 s32, s24, 14\ns_add_u32 s32, s32, s25')
            A(f's_lshl_b32 s33, s24, 13\ns_add_u32 s33, s33, s25\ns_add_u32 s33, s33, {WS_QG}')
            A('s_lshl_b32 s34, s24, 4\ns_lshl_b32 s24, s42, 3\ns_add_u32 s34, s34, s24')
            A('v_and_b32 v12, 15, v1\nv_lshlrev_b32 v12, 4, v12\nv_lshl_add_u32 v12, v11, 8, v12\nv_bfe_u32 v13, v1, 4, 1')
    stamp(A, 2)
    for tt in range(2):
        for m in range(8): A(f'v_cvt_pk_bf16_f32 v{160+8*tt+m}, v{ACC[(1,tt)]+2*m}, v{ACC[(1,tt)]+2*m+1}')
    A('s_cmp_eq_u32 s38, 1\ns_cbranch_scc1 L_kf_epA')
    A('s_add_u32 s24, s32, 4096\ns_add_u32 s25, s32, 8192\nv_lshl_add_u32 v9, v13, 12, v12')
    for tt in range(2):
        A(f'buffer_store_dwordx4 v[{160+8*tt}:{163+8*tt}], v8, s[52:55], s32 offen offset:{tt*1024} sc1')
        A(f'buffer_store_dwordx4 v[{164+8*tt}:{167+8*tt}], v8, s[52:55], s24 offen offset:{tt*1024} sc1')
    for tt in range(2):
        for m in range(8): A(f'v_cvt_pk_bf16_f32 v{176+8*tt+m}, v{ACC[(2,tt)]+2*m}, v{ACC[(2,tt)]+2*m+1}')
        for blk in range(2): A(f'buffer_store_dwordx4 v[{176+8*tt+4*blk}:{179+8*tt+4*blk}], v9, s[52:55], s25 offen offset:{tt*1024+blk*512} sc1')
    A(f's_mov_b32 s24, 0x{f2u(0.25*LOG2E):x}\ns_mov_b32 s25, s24')
    for m in range(16): A(f'v_pk_mul_f32 v[{64+2*m}:{65+2*m}], v[{64+2*m}:{65+2*m}], s[24:25]')
    for m in range(16): A(f'v_cvt_pk_bf16_f32 v{16+m}, v{64+2*m}, v{65+2*m}')
    A('s_cmp_eq_u32 s43, 0\ns_cbranch_scc1 L_kf_epB0')
    A('s_add_u32 s24, s33, 4096')
    for tt in range(2):
        A(f'buffer_store_dwordx4 v[{16+8*tt}:{19+8*tt}], v8, s[52:55], s33 offen offset:{tt*1024} sc1')
        A(f'buffer_store_dwordx4 v[{20+8*tt}:{23+8*tt}], v8, s[52:55], s24 offen offset:{tt*1024} sc1')
    A('s_waitcnt lgkmcnt(0)\ns_barrier')
    A('s_branch L_kf_epB1')
    A.label('L_kf_epB0'); A.fence()
    A(f's_lshl_b32 s25, s42, 11\nv_mul_u32_u24 v13, 12288, v13\nv_add_u32 v12, v12, v13\ns_add_u32 s24, s25, {VL + 8192}\nv_add_u32 v12, s24, v12')
    A(f's_add_u32 s24, s25, {KL + 8192}\nv_add_u32 v13, s24, v8')
    A('s_waitcnt lgkmcnt(0)\ns_barrier')
    for tt in range(2):
        for e in range(2):
            A(f'ds_write_b128 v13, v[{160+8*tt+4*e}:{163+8*tt+4*e}] offset:{e*12288 + tt*1024}')
            A(f'ds_write_b128 v13, v[{16+8*tt+4*e}:{19+8*tt+4*e}] offset:{QB - KL - 8192 + e*4096 + tt*1024}')
            A(f'ds_write_b128 v12, v[{176+8*tt+4*e}:{179+8*tt+4*e}] offset:{tt*1024 + e*512}')
    A.label('L_kf_epB1'); A.fence()
    stamp(A, 3)
    A(f's_add_u32 s34, s34, {WS_F1}')
    flag(A, 's34')
    stamp(A, 4)
    A('s_branch L_kf_post')
    A.label('L_kf_epA'); A.fence()
    A('v_bfe_u32 v9, v1, 2, 2\nv_lshl_add_u32 v9, v11, 2, v9\nv_lshlrev_b32 v9, 5, v9\nv_and_b32 v13, 3, v1\nv_lshl_add_u32 v9, v13, 3, v9')
    A(f's_lshl_b32 s24, s43, 10\ns_add_u32 s24, s24, {WPH}\nv_add_u32 v9, s24, v9')
    for hs in range(2):
        for rd in range(2): A(f'ds_read_b64_tr_b16 v[{40+4*hs+2*rd}:{41+4*hs+2*rd}], v9 offset:{hs*512 + rd*256}')
    for tt in range(2):
        for m in range(8): A(f'v_cvt_pk_bf16_f32 v{176+8*tt+m}, v{ACC[(2,tt)]+2*m}, v{ACC[(2,tt)]+2*m+1}')
    units = [(0, 0), (0, 1), (1, 0), (1, 1)]
    P = {u: 96 + 16 * i for i, u in enumerate(units)}
    A('s_waitcnt lgkmcnt(0)')
    for (tt, hs) in units: A(f'v_mfma_f32_32x32x16_bf16 {vr(P[(tt,hs)],16)}, {vr(40+4*hs,4)}, {vr(160+8*tt+4*hs,4)}, 0')
    for m in range(16): A(f'v_cvt_pk_bf16_f32 v{16+m}, v{64+2*m}, v{65+2*m}')
    A(f's_lshl_b32 s24, s42, 13\ns_lshl_b32 s25, s43, 10\ns_add_u32 s24, s24, s25\ns_add_u32 s24, s24, {VA}\nv_add_u32 v13, s24, v8')
    A('s_barrier')
    for tt in range(2):
        for blk in range(2): A(f'ds_write_b128 v13, v[{176+8*tt+4*blk}:{179+8*tt+4*blk}] offset:{(tt*2+blk)*2048}')
    A('s_cmp_eq_u32 s43, 1\ns_cbranch_scc1 L_kf_epA1')
    A('s_add_u32 s24, s33, 4096')
    for tt in range(2):
        A(f'buffer_store_dwordx4 v[{16+8*tt}:{19+8*tt}], v8, s[52:55], s33 offen offset:{tt*1024} sc1')
        A(f'buffer_store_dwordx4 v[{20+8*tt}:{23+8*tt}], v8, s[52:55], s24 offen offset:{tt*1024} sc1')
    A('s_branch L_kf_epA2')
    A.label('L_kf_epA1'); A.fence()
    A(f's_lshl_b32 s25, s42, 11\ns_add_u32 s24, s25, {QA}\nv_add_u32 v13, s24, v8')
    for tt in range(2):
        for e in range(2): A(f'ds_write_b128 v13, v[{16+8*tt+4*e}:{19+8*tt+4*e}] offset:{e*4096 + tt*1024}')
    A.label('L_kf_epA2'); A.fence()
    A(f's_mul_i32 s24, s43, {2*PHI_HEAD}\ns_lshl_b32 s25, s42, 10\ns_add_u32 s24, s24, s25\ns_add_u32 s24, s24, {PHI}')
    A(f'v_mul_u32_u24 v14, {PHI_PLANE}, v11\nv_lshl_add_u32 v14, v10, 4, v14\nv_add_u32 v14, s24, v14')
    T = {(0, 0): 32, (0, 1): 64, (1, 0): 160, (1, 1): 180}
    def phik(E, u):
        p, t = P[u], T[u]; tt, hs = u
        dual_exp(E, p, t)
        E(f'v_pk_add_f32 v[{t}:{t+1}], v[{t+2}:{t+3}], v[{t+4}:{t+5}]\nv_pk_add_f32 v[{t+18}:{t+19}], v[{t+10}:{t+11}], v[{t+12}:{t+13}]')
        for m in (6, 8):
            E(f'v_pk_add_f32 v[{t}:{t+1}], v[{t}:{t+1}], v[{t+m}:{t+m+1}]\nv_pk_add_f32 v[{t+18}:{t+19}], v[{t+18}:{t+19}], v[{t+m+8}:{t+m+9}]')
        E(f'v_add_f32 v{t}, v{t}, v{t+1}\nv_add_f32 v{t+1}, v{t+18}, v{t+19}')
        E(f'v_permlane32_swap_b32 v{t}, v{t+1}\nv_add_f32 v{t}, v{t}, v{t+1}\nv_rcp_f32 v{t}, v{t}\nv_mov_b32 v{t+1}, v{t}\nv_permlane32_swap_b32 v{t}, v{t+1}')
        for m in range(4):
            E(f'v_pk_mul_f32 v[{t+2+2*m}:{t+3+2*m}], v[{t+2+2*m}:{t+3+2*m}], v[{t}:{t+1}] op_sel_hi:[1,0]')
            E(f'v_pk_mul_f32 v[{t+10+2*m}:{t+11+2*m}], v[{t+10+2*m}:{t+11+2*m}], v[{t}:{t+1}] op_sel:[0,1]')
        for m in range(8): E(f'v_cvt_pk_bf16_f32 v{p+m}, v{t+2+2*m}, v{t+3+2*m}')
        E(f'ds_write_b128 v14, v[{p}:{p+3}] offset:{hs*PHI_HEAD + tt*512}')
        E(f'ds_write_b128 v14, v[{p+4}:{p+7}] offset:{hs*PHI_HEAD + tt*512 + 2*PHI_PLANE}')
    A('s_waitcnt lgkmcnt(0)')
    multi(A, units, phik)
    A('s_cmp_eq_u32 s43, 1\ns_cbranch_scc1 L_kf_epA3')
    A(f's_add_u32 s34, s34, {WS_FQ}')
    flag(A, 's34')
    A.label('L_kf_epA3'); A.fence()
    A('v_bfe_u32 v2, v1, 4, 1\nv_lshlrev_b32 v2, 1, v2\nv_and_b32 v3, 1, v1\nv_add_u32 v2, v2, v3')
    A(f'v_mul_u32_u24 v2, {PHI_PLANE}, v2')
    A('v_bfe_u32 v3, v1, 2, 2\nv_lshl_add_u32 v3, v11, 2, v3\nv_lshl_add_u32 v2, v3, 4, v2\nv_bfe_u32 v3, v1, 1, 1\nv_lshl_add_u32 v2, v3, 3, v2')
    A(f's_mul_i32 s24, s41, {PHI_HEAD}\ns_add_u32 s24, s24, {PHI}\nv_add_u32 v2, s24, v2')
    A(f's_lshl_b32 s24, s42, 10\ns_lshl_b32 s25, s43, 8\ns_add_u32 s24, s24, s25\ns_add_u32 s24, s24, {VA}\nv_add_u32 v3, s24, v8')
    for r in range(0, 32, 2): A(f'v_mov_b64 v[{64+r}:{65+r}], v[{ONES}:{ONES+1}]')
    A(f's_lshl_b32 s24, s35, 2\ns_add_u32 s24, s24, s41\ns_lshl_b32 s24, s24, 4\ns_add_u32 s24, s24, s39\ns_mul_i32 s25, s24, 2176\ns_add_u32 s25, s25, {WS_PK}')
    A(f's_lshl_b32 s34, s24, 3\ns_add_u32 s34, s34, {WS_F2}')
    stamp(A, 3)
    A('s_waitcnt lgkmcnt(0)\ns_barrier')
    for s in range(8):
        for rd in range(2): A(f'ds_read_b64_tr_b16 v[{16+4*s+2*rd}:{17+4*s+2*rd}], v2 offset:{s*256 + rd*128}')
    A('s_mov_b64 exec, s[28:29]')
    for s in range(8): A(f'ds_read_b128 v[{64+4*s}:{67+4*s}], v3 offset:{s*2048}')
    A('s_mov_b64 exec, -1')
    for s in range(8):
        A(f's_waitcnt lgkmcnt({7-s})')
        A(f'v_mfma_f32_32x32x16_bf16 v[96:111], {vr(16+4*s,4)}, {vr(64+4*s,4)}, {"v[96:111]" if s else "0"}')
    A('s_mov_b32 exec_lo, 0x1ffff\ns_mov_b32 exec_hi, 0x1ffff')
    for rq in range(4): A(f'buffer_store_dwordx4 v[{96+4*rq}:{99+4*rq}], v{PKOFF}, s[52:55], s25 offen offset:{rq*544} sc1')
    A('s_mov_b64 exec, -1')
    flag(A, 's34')
    stamp(A, 4)
    A.label('L_kf_post'); A.fence()
    A('s_and_b32 s42, s41, 3\ns_lshr_b32 s43, s41, 2\ns_mov_b32 s30, 0x00220000\ns_mov_b32 s31, 0x00220000')
    A(f's_lshl_b32 s24, s41, 10\ns_add_u32 s24, s24, {QB}\nv_add_u32 v12, s24, v8')
    A('v_bfe_u32 v15, v1, 2, 2\nv_lshl_add_u32 v15, v11, 2, v15\nv_lshlrev_b32 v15, 5, v15\nv_and_b32 v9, 3, v1\nv_lshl_add_u32 v15, v9, 3, v15')
    A(f's_lshl_b32 s24, s43, 9\ns_lshl_b32 s25, s38, 10\ns_add_u32 s24, s24, s25\ns_add_u32 s24, s24, {WPH}\nv_add_u32 v15, s24, v15')
    A(f's_mul_i32 s24, s43, 12288\ns_lshl_b32 s25, s42, 10\ns_add_u32 s24, s24, s25\ns_add_u32 s25, s24, {KL}\nv_add_u32 v13, s25, v8')
    A(f'v_and_b32 v14, 15, v1\nv_lshlrev_b32 v14, 4, v14\nv_lshl_add_u32 v14, v11, 8, v14\ns_add_u32 s25, s24, {VL}\nv_add_u32 v14, s25, v14')
    A('s_lshl_b32 s33, s39, 2\ns_add_u32 s33, s33, s42')
    for rd in range(2): A(f'ds_read_b64_tr_b16 v[{20+2*rd}:{21+2*rd}], v15 offset:{rd*256}')
    A('s_waitcnt vmcnt(0) lgkmcnt(0)\ns_barrier')
    stamp(A, 6)
    A(f'ds_read_b128 v[28:31], v12\nds_read_b128 v[24:27], v12 offset:{QA-QB}')
    if OPT['pfw']:
        A('s_cmp_lt_u32 s41, 6\ns_cbranch_scc1 L_kf_nopfw')
        A('s_cmp_lt_u32 s36, 4\ns_cselect_b32 s56, s10, s16\ns_cselect_b32 s57, s11, s17\ns_mov_b32 s58, 0x80000\ns_mov_b32 s59, 0x20000')
        A('s_lshl_b32 s24, s37, 14\ns_and_b32 s25, s41, 1\ns_lshl_b32 s25, s25, 13\ns_add_u32 s24, s24, s25\nv_lshlrev_b32 v2, 7, v1')
        A('buffer_load_dword v244, v2, s[56:59], s24 offen')
        A.label('L_kf_nopfw'); A.fence()
    A('s_cmp_lt_u32 s39, 2\ns_cbranch_scc1 L_kf_bslow')
    bunit(A, False)
    A.label('L_kf_bdone'); A.fence()
    stamp(A, 9)
    O = OACC
    A('v_mfma_f32_32x32x16_bf16 v[48:63], v[20:23], v[24:27], 0')
    A(f's_lshl_b32 s24, s33, 15\ns_lshl_b32 s25, s40, 11\ns_add_u32 s24, s24, s25\ns_lshl_b32 s25, s43, 10\ns_add_u32 s24, s24, s25\ns_add_u32 s34, s24, {WS_OA}\ns_add_u32 s32, s24, {WS_OB}')
    A('s_cmp_ge_u32 s41, 4\ns_cbranch_scc1 L_kf_nopk')
    A(f's_and_b32 s26, s41, 1\ns_lshl_b32 s24, s40, 1\ns_add_u32 s26, s26, s24\ns_lshl_b32 s24, s26, 7\ns_add_u32 s24, s24, {WS_F2}\nv_lshlrev_b32 v9, 3, v1')
    A('s_mov_b64 exec, 0xffff')
    poll(A, 2, 9, 's24')
    stamp(A, 10)
    A(f's_mul_i32 s24, s26, 34816\ns_lshr_b32 s25, s41, 1\ns_mul_i32 s25, s25, 1088\ns_add_u32 s24, s24, s25\ns_add_u32 s24, s24, {WS_PK}')
    A('s_mov_b32 exec_lo, 0x11ffff\ns_mov_b32 exec_hi, 0x11ffff')
    for rb in range(16):
        for e in range(2): A(f'buffer_load_dwordx4 v[{64+8*rb+4*e}:{67+8*rb+4*e}], v{PKOFF}, s[52:55], s24 offen offset:{e*544} sc1')
        if rb < 15: A('s_add_u32 s24, s24, 2176')
    A('s_mov_b64 exec, -1')
    A.label('L_kf_nopk'); A.fence()
    A('s_nop 7')
    A(f'v_rcp_f32 v4, v{O+8}')
    for m in range(4): A(f'v_pk_mul_f32 v[{O+2*m}:{O+2*m+1}], v[{O+2*m}:{O+2*m+1}], v[4:5] op_sel_hi:[1,0]')
    for m in range(4): A(f'v_cvt_pk_bf16_f32 v{16+m}, v{O+2*m}, v{O+2*m+1}')
    A(f'buffer_store_dwordx4 v[16:19], v8, s[52:55], s32 offen {ST}')
    dual_exp(A, 48, 192)
    for m in range(8): A(f'v_cvt_pk_bf16_f32 v{48+m}, v{194+2*m}, v{195+2*m}')
    A(f's_lshl_b32 s24, s43, 11\ns_add_u32 s24, s24, {KVF}\nv_add_u32 v9, s24, v8')
    A('s_cmp_ge_u32 s41, 4\ns_cbranch_scc1 L_kf_nosum')
    for rb in range(1, 16):
        A(f's_waitcnt vmcnt({1 + 2*(15-rb)})')
        for m in range(4): A(f'v_pk_add_f32 v[{64+2*m}:{65+2*m}], v[{64+2*m}:{65+2*m}], v[{64+8*rb+2*m}:{65+8*rb+2*m}]')
    for m in range(4): A(f'v_cvt_pk_bf16_f32 v{64+m}, v{64+2*m}, v{65+2*m}')
    A('s_mov_b32 s24, 0xffee0000\ns_mov_b32 s25, 0xffee0000')
    for m in range(4): A(f'v_cndmask_b32_e64 v{64+m}, v{64+m}, v{ONES}, s[24:25]')
    A(f's_and_b32 s24, s41, 1\ns_lshl_b32 s24, s24, 11\ns_lshr_b32 s25, s41, 1\ns_lshl_b32 s25, s25, 10\ns_add_u32 s24, s24, s25\ns_add_u32 s24, s24, {KVF}\nv_add_u32 v7, s24, v8')
    A('ds_write_b128 v7, v[64:67]')
    A.label('L_kf_nosum'); A.fence()
    stamp(A, 11)
    A('s_waitcnt lgkmcnt(0)\ns_barrier')
    stamp(A, 12)
    A('ds_read_b128 v[16:19], v9\nds_read_b128 v[20:23], v9 offset:1024')
    A('s_waitcnt lgkmcnt(1)')
    A('v_mfma_f32_32x32x16_bf16 v[96:111], v[16:19], v[48:51], 0')
    A('s_waitcnt lgkmcnt(0)')
    A('v_mfma_f32_32x32x16_bf16 v[112:127], v[20:23], v[52:55], 0')
    A(f'v_mov_b32 v6, 0x{f2u(1e-6):x}')
    A('v_rcp_f32 v4, v105\nv_rcp_f32 v5, v121')
    A('v_fmac_f32 v6, v104, v4\nv_fmac_f32 v6, v120, v5')
    A('v_rcp_f32 v6, v6')
    A('v_mul_f32 v4, v4, v6\nv_mul_f32 v5, v5, v6')
    for m in range(4): A(f'v_pk_mul_f32 v[{96+2*m}:{97+2*m}], v[{96+2*m}:{97+2*m}], v[4:5] op_sel_hi:[1,0]')
    for m in range(4): A(f'v_pk_fma_f32 v[{96+2*m}:{97+2*m}], v[{112+2*m}:{113+2*m}], v[4:5], v[{96+2*m}:{97+2*m}] op_sel:[0,1,0]')
    for m in range(4): A(f'v_cvt_pk_bf16_f32 v{132+m}, v{96+2*m}, v{97+2*m}')
    A(f'buffer_store_dwordx4 v[132:135], v8, s[52:55], s34 offen {ST}')
    stamp_flush(A, 0, 's[52:55]', 's41')
    A.label('L_kf_end'); A.fence()
    A('s_endpgm')
    A.label('L_kf_bslow'); A.fence()
    bunit(A, True)
    A('s_branch L_kf_bdone')

PMASK, ONES, PKOFF, VRING = 232, 240, 242, 216
OACC = 200
def common_consts(A):
    for r in range(16):
        for hi in range(2):
            m = 0
            for c in range(32):
                if rowof(r, hi) <= c: m |= 1 << c
            A(f's_mov_b32 s{64+2*r+hi}, 0x{m:x}')
    A(f's_mov_b32 s62, 0x{f2u(LOG2E):x}\ns_mov_b32 s63, s62')
    A(f'v_mov_b32 v{ONES}, 0x3f803f80\nv_mov_b32 v{ONES+1}, 0x3f803f80\nv_mov_b32 v243, 0xffff')
    for r in range(0, 16, 2): A(f'v_mov_b64 v[{VRING+r}:{VRING+r+1}], v[{ONES}:{ONES+1}]')
    for m in range(8): A(f'v_cndmask_b32_e64 v{PMASK+m}, 0, v243, s[{64+4*m}:{65+4*m}]')
    for m in range(8): A(f'v_cndmask_b32_e64 v{PMASK+m}, v{PMASK+m}, -1, s[{66+4*m}:{67+4*m}]')
    A(f'v_lshlrev_b32 v{PKOFF}, 4, v10\nv_lshl_add_u32 v{PKOFF}, v11, 8, v{PKOFF}\nv_lshlrev_b32 v243, 4, v11\nv_add_u32 v243, 512, v243')
    A('s_mov_b32 s28, 0xffff\ns_mov_b32 s29, 0xffff')
    A(f'v_cndmask_b32_e64 v{PKOFF}, v243, v{PKOFF}, s[28:29]')

def bunit(A, checks):
    sfx = 's' if checks else 'f'
    lq = Q(A, 'lgkmcnt', 15)
    KF = {j: 144 + 4 * j for j in range(9)}
    M, X, Y, Z, NM = 64, 80, 96, 112, 128
    O = OACC
    order = [8, 0, 7, 6, 5, 4, 3, 2, 1]
    for j in order: A(f'ds_read_b128 {vr(KF[j],4)}, v13 offset:{j*1024}'); lq.push(('k', j))
    buf = {8: M, 0: X, 7: Y, 6: Z, 5: NM, 4: X, 3: Y, 2: Z, 1: NM}
    def qk(j, dst, c):
        lq.wait(('k', j))
        A(f'v_mfma_f32_32x32x16_bf16 {vr(dst,16)}, {vr(KF[j],4)}, v[28:31], {c}')
    for j in (8, 0, 7, 6, 5): qk(j, buf[j], '0')
    if checks:
        A('s_nop 7')
        for r in range(16): A(f'v_mov_b32 v{X+r}, 0xff800000')
    for r in range(16): A(f'v_cndmask_b32_e64 v{M+r}, v{X+r}, v{M+r}, s[{64+2*r}:{65+2*r}]')
    qk(4, buf[4], '0')
    A(f'v_max_f32 v2, v{M}, v{M+1}\nv_max_f32 v3, v{M+2}, v{M+3}')
    for m in range(1, 4): A(f'v_max3_f32 v2, v2, v{M+4*m}, v{M+4*m+1}\nv_max3_f32 v3, v3, v{M+4*m+2}, v{M+4*m+3}')
    for j in (7, 6, 5, 4, 3, 2, 1):
        b = buf[j]
        if checks: A(f's_cmp_lt_u32 s33, {8-j}\ns_cbranch_scc1 L_bm{sfx}')
        for m in range(4): A(f'v_max3_f32 v2, v2, v{b+4*m}, v{b+4*m+1}\nv_max3_f32 v3, v3, v{b+4*m+2}, v{b+4*m+3}')
        if j - 4 >= 1: qk(j - 4, buf[j - 4], '0')
    if checks:
        A.label(f'L_bm{sfx}'); A.fence(); A('s_waitcnt lgkmcnt(0)\ns_nop 15'); lq.q = []
    A('v_max_f32 v2, v2, v3\nv_mov_b32 v3, v2\nv_permlane32_swap_b32 v2, v3\nv_max_f32 v2, v2, v3')
    stamp(A, 8)
    A(f'v_sub_f32 v{NM}, 0, v2\nv_sub_f32 v{NM+1}, 0, v2')
    for r in range(2, 16, 2): A(f'v_mov_b64 v[{NM+r}:{NM+r+1}], v[{NM}:{NM+1}]')
    vs = [0]
    def vreads(js):
        A('s_mov_b64 exec, s[28:29]')
        out = {}
        for j in js:
            for blk in range(2):
                st = VRING + 4 * (vs[0] % 4); vs[0] += 1
                A(f'ds_read_b128 {vr(st,4)}, v14 offset:{j*1024 + blk*512}'); lq.push(('v', j, blk)); out[(j, blk)] = st
        A('s_mov_b64 exec, -1')
        return out
    first = [True]
    def pv(j, blk, vreg, p):
        def f():
            lq.wait(('v', j, blk))
            A(f'v_mfma_f32_32x32x16_bf16 {vr(O,16)}, {vr(vreg,4)}, {vr(p,4)}, {"0" if first[0] else vr(O,16)}')
            first[0] = False
        return f
    buf2 = {7: X, 6: Y, 5: Z, 4: X, 3: Y, 2: Z, 1: X}
    def qk2(j):
        def f():
            if checks:
                uid[0] += 1; n = uid[0]
                A(f's_cmp_lg_u32 s33, {7-j}\ns_cbranch_scc1 L_ni{n}\ns_nop 7')
                for r in range(16): A(f'v_mov_b32 v{NM+r}, 0xff800000')
                A.label(f'L_ni{n}'); A.fence(); A('s_nop 1')
            A(f'v_mfma_f32_32x32x16_bf16 {vr(buf2[j],16)}, {vr(KF[j],4)}, v[28:31], {vr(NM,16)}')
        return f
    def tile(b, pend, pre=()):
        ops = list(pre) + [f'v_exp_f32 v{b+r}, v{b+r}' for r in range(16)] + [f'v_cvt_pk_bf16_f32 v{b+m}, v{b+2*m}, v{b+2*m+1}' for m in range(8)]
        n0 = len(pre); step = max(1, 16 // max(1, len(pend)))
        pos = {n0 + 1 + i * step: f for i, f in enumerate(pend)}
        for i, o in enumerate(ops):
            if i in pos: pos[i]()
            A(o)
    vv = vreads([8, 0])
    tile(M, [qk2(7), qk2(6)], pre=[f'v_sub_f32 v{M+r}, v{M+r}, v2' for r in range(16)])
    for m in range(8): A(f'v_bfi_b32 v{M+8+m}, v{PMASK+m}, 0, v{M+m}')
    for m in range(8): A(f'v_and_b32 v{M+m}, v{PMASK+m}, v{M+m}')
    pend = [pv(8, 0, vv[(8, 0)], M), pv(8, 1, vv[(8, 1)], M + 4), pv(0, 0, vv[(0, 0)], M + 8), pv(0, 1, vv[(0, 1)], M + 12), qk2(5)]
    for j in (7, 6, 5, 4, 3, 2, 1):
        b = buf2[j]
        if j == 7:
            tile(b, pend); vv = vreads([j])
        else:
            vv = vreads([j]); tile(b, pend)
        pend = [pv(j, 0, vv[(j, 0)], b), pv(j, 1, vv[(j, 1)], b + 4)]
        if j - 3 >= 1: pend.append(qk2(j - 3))
    for f in pend: f()

K3_LDS = 65536
def gen_k3(A):
    WSZ = WS_SIZE if not OPT['stamps'] else 0x2000000
    header(A, 'k3_kernel')
    stamp(A, 14)
    A('s_cmp_ge_u32 s2, 256\ns_cbranch_scc1 L_k3_end')
    A('s_load_dwordx2 s[4:5], s[0:1], 24\ns_load_dwordx4 s[8:11], s[0:1], 48\ns_load_dwordx2 s[16:17], s[0:1], 72')
    A('v_lshrrev_b32 v2, 6, v0\nv_and_b32 v1, 63, v0')
    A('s_and_b32 s36, s2, 7\ns_lshr_b32 s37, s2, 3\ns_lshr_b32 s38, s36, 2')
    A('v_readfirstlane_b32 s41, v2')
    A('s_and_b32 s39, s36, 3\ns_lshl_b32 s39, s39, 2\ns_and_b32 s42, s37, 3\ns_add_u32 s39, s39, s42')
    A('s_lshr_b32 s40, s37, 2')
    A(f's_mov_b32 s22, 0x80000\ns_mov_b32 s23, 0x20000\ns_mov_b32 s26, 0x400000\ns_mov_b32 s27, 0x20000\ns_mov_b32 s30, {WSZ}\ns_mov_b32 s31, 0x20000')
    A('v_lshlrev_b32 v8, 4, v1\nv_and_b32 v10, 31, v1\nv_lshrrev_b32 v11, 5, v1')
    A('v_lshrrev_b32 v3, 3, v1\nv_and_b32 v4, 7, v1\nv_bfe_u32 v5, v1, 4, 1\nv_lshlrev_b32 v5, 2, v5\nv_xor_b32 v4, v4, v5\nv_lshlrev_b32 v4, 4, v4\nv_lshl_add_u32 v4, v3, 10, v4')
    A('s_lshl_b32 s44, s39, 2\ns_add_u32 s44, s44, s41')
    A(f's_lshl_b32 s45, s38, 21\ns_add_u32 s45, s45, {WS_OA}\ns_lshl_b32 s46, s44, 15\ns_add_u32 s45, s45, s46')
    A('s_lshl_b32 s46, s41, 13\ns_lshl_b32 s47, s40, 7\ns_add_u32 s46, s46, s47\ns_lshl_b32 s47, s41, 10')
    A('s_cmp_eq_u32 s38, 0')
    A('s_waitcnt lgkmcnt(0)')
    A('s_cselect_b32 s20, s4, s8\ns_cselect_b32 s21, s5, s9\ns_mov_b32 s24, s10\ns_mov_b32 s25, s11\ns_mov_b32 s28, s16\ns_mov_b32 s29, s17')
    stamp(A, 0)
    vq = Q(A, 'vmcnt', 63)
    for i in range(16):
        A(f's_add_u32 m0, s47, {i*4096}')
        A(f'buffer_load_dwordx4 v4, s[20:23], s46 offen lds'); vq.push('dma')
        if i < 15: A(f's_add_u32 s46, s46, 32768')
    OF = 64
    def oload(h):
        A(f'buffer_load_dwordx4 {vr(OF+4*h,4)}, v8, s[28:31], s45 offen offset:{(h%4)*1024}'); vq.push(('o', h))
        if h % 4 == 3: A('s_add_u32 s45, s45, 4096')
    for h in range(16): oload(h)
    A('v_bfe_u32 v12, v1, 2, 2\nv_lshl_add_u32 v12, v11, 2, v12\nv_lshlrev_b32 v12, 7, v12')
    A('v_bfe_u32 v13, v1, 3, 1\nv_lshl_add_u32 v12, v13, 6, v12')
    A('v_bfe_u32 v13, v1, 4, 1\nv_lshl_add_u32 v12, v13, 5, v12')
    A('v_and_b32 v13, 3, v1\nv_lshl_add_u32 v6, v13, 3, v12\nv_xor_b32 v7, 64, v6')
    vq.wait('dma')
    A('s_barrier')
    stamp(A, 1)
    lq = Q(A, 'lgkmcnt', 15)
    FS = [16, 24]
    def reads(h):
        f = FS[h & 1]
        return [(f'ds_read_b64_tr_b16 v[{f+4*c+2*rd}:{f+4*c+2*rd+1}], v{6+c} offset:{h*2048 + rd*1024}', (h, c)) for c in range(2) for rd in range(2)]
    for t, tag in reads(0): A(t); lq.push(tag)
    for h in range(32):
        f = FS[h & 1]
        nxt = reads(h + 1) if h < 31 else []
        if h + 16 < 32: oload(h + 16)
        vq.wait(('o', h))
        for c in range(2):
            lq.wait((h, c))
            A(f'v_mfma_f32_32x32x16_bf16 {vr(32+16*c,16)}, {vr(f+4*c,4)}, {vr(OF+4*h,4)}, {vr(32+16*c,16) if h else "0"}')
            for t, tag in nxt[2*c:2*c+2]: A(t); lq.push(tag)
    stamp(A, 2)
    A('v_lshlrev_b32 v9, 11, v10\nv_lshl_add_u32 v9, v11, 4, v9')
    A('s_lshl_b32 s46, s44, 16\ns_lshl_b32 s47, s38, 10\ns_add_u32 s46, s46, s47\ns_lshl_b32 s47, s40, 7\ns_add_u32 s46, s46, s47')
    for c in range(2):
        for m in range(8): A(f'v_cvt_pk_bf16_f32 v{64+8*c+m}, v{32+16*c+2*m}, v{33+16*c+2*m}')
    for c in range(2):
        for gp in range(2):
            b = 64 + 8*c + 4*gp
            A(f'v_permlane32_swap_b32 v{b}, v{b+2}\nv_permlane32_swap_b32 v{b+1}, v{b+3}')
            A(f'buffer_store_dwordx4 {vr(b,4)}, v9, s[24:27], s46 offen offset:{c*64 + gp*32} {OST}')
    stamp_flush(A, 1, 's[28:31]', 's41')
    A.label('L_k3_end')
    A('s_endpgm')

def main():
    A = Asm()
    A.raw(f'; @launch kernel=kf_kernel grid=(256,1,1) block=(512,1,1) lds={KF_LDS}')
    A.raw(f'; @launch kernel=k3_kernel grid=(256,1,1) block=(256,1,1) lds={K3_LDS}')
    A.raw('.amdgcn_target "amdgcn-amd-amdhsa--gfx950"\n.text')
    gen_kf(A, 'kf_kernel'); gen_k3(A)
    A.raw('L_code_end:\n.p2align 8\n.fill 64, 4, 0xbf800000')
    sg = 102 if OPT['stamps'] else 96
    A.raw(kd('kf_kernel', 256, sg)); A.raw(kd('k3_kernel', 256 if OPT['stamps'] else 192, sg))
    sys.stdout.write(A.text())
main()
```

```python
import sys, math, struct
sys.path.insert(0, 'work')
from asmlib import *

OPT = dict(st='sc1', ost='plain', stamps=0, pf=1, pfc=1, pfw=1, prio=0, da=-1, db=-1, dk=0)
for a in sys.argv[1:]:
    k, v = a.split('='); OPT[k] = int(v) if v.lstrip('-').isdigit() else v
ST = '' if OPT['st'] == 'plain' else OPT['st']
OST = '' if OPT['ost'] == 'plain' else OPT['ost']

def f2u(x): return struct.unpack('<I', struct.pack('<f', x))[0]
LOG2E = math.log2(math.e)
WS_KVG, WS_PK, WS_OA, WS_OB, WS_QG = 0x000000, 0x400000, 0x600000, 0x800000, 0xA00000
WS_F1, WS_F2, WS_FQ, WS_EP = 0xC00100, 0xC04000, 0xC06000, 0xC08000
WS_SIZE = 0xC10000
WS_STAMP = 0x1000000
SPIN_MAX = 1 << 16

class Q:
    def __init__(self, A, name, mx): self.A = A; self.q = []; self.name = name; self.mx = mx
    def push(self, tag): self.q.append(tag)
    def wait(self, *tags):
        idx = -1
        for i, t in enumerate(self.q):
            if t in tags: idx = i
        if idx < 0: return
        n = min(len(self.q) - 1 - idx, self.mx)
        self.A(f's_waitcnt {self.name}({n})')
        self.q = self.q[len(self.q) - n:] if n else []
    def all(self):
        self.A(f's_waitcnt {self.name}(0)'); self.q = []

CURK = [0]
def stamp(A, idx):
    if OPT['da'] >= 0 and CURK[0] == OPT['dk']:
        if idx == OPT['da']: A('s_memrealtime s[96:97]')
        if idx == OPT['db']: A('s_memrealtime s[98:99]')
        return
    if not OPT['stamps']: return
    A(('s_memrealtime' if OPT['stamps'] == 1 else 's_memtime') + ' s[96:97]')
    A('s_waitcnt lgkmcnt(0)')
    A(f'v_writelane_b32 v253, s96, {idx}')
def stamp_flush(A, k, srd, wavereg):
    if OPT['da'] >= 0 and CURK[0] == OPT['dk']:
        stamp(A, 15)
        A(f's_cmp_ge_u32 {wavereg}, 4\ns_cbranch_scc1 L_dg_end{k}')
        A('s_memrealtime s[100:101]\ns_waitcnt lgkmcnt(0)')
        A('s_sub_u32 s96, s98, s96\ns_min_u32 s96, s96, 5000\ns_lshl_b32 s96, s96, 3\ns_add_u32 s96, s96, s100')
        A.label(f'L_dg{k}')
        A('s_sleep 2\ns_memrealtime s[100:101]\ns_waitcnt lgkmcnt(0)\ns_sub_u32 s98, s96, s100\ns_cmp_gt_i32 s98, 0')
        A(f's_cbranch_scc1 L_dg{k}')
        A.label(f'L_dg_end{k}')
        return
    if not OPT['stamps']: return
    stamp(A, 15)
    A(f's_lshl_b32 s98, s2, 3\ns_add_u32 s98, s98, {wavereg}\ns_lshl_b32 s98, s98, 6\ns_add_u32 s98, s98, {WS_STAMP + k*0x40000}')
    A('v_mbcnt_lo_u32_b32 v252, -1, 0\nv_lshlrev_b32 v252, 2, v252\ns_mov_b64 exec, 0xffff')
    A(f'buffer_store_dword v253, v252, {srd}, s98 offen')

def header(A, name):
    A.raw(f'.globl {name}\n.p2align 8\n.type {name},@function\n{name}:')
    A.fence()

def rowof(r, hi): return (r & 3) + 8 * (r >> 2) + 4 * hi

def dual_exp(A, p, t):
    A(f'v_max3_f32 v{t}, v{p}, v{p+1}, v{p+2}\nv_max3_f32 v{t+1}, -v{p}, -v{p+1}, -v{p+2}')
    A(f'v_max3_f32 v{t}, v{t}, v{p+3}, v{p+4}\nv_max3_f32 v{t+1}, v{t+1}, -v{p+3}, -v{p+4}')
    A(f'v_max3_f32 v{t}, v{t}, v{p+5}, v{p+6}\nv_max3_f32 v{t+1}, v{t+1}, -v{p+5}, -v{p+6}')
    A(f'v_max_f32_e64 v{t}, v{t}, v{p+7}\nv_max_f32_e64 v{t+1}, v{t+1}, -v{p+7}')
    A(f'v_permlane32_swap_b32 v{t}, v{t+1}')
    A(f'v_max_f32 v{t}, v{t}, v{t+1}')
    A(f'v_mul_f32 v{t}, s62, v{t}')
    A(f'v_mov_b32 v{t+1}, v{t}')
    A(f'v_permlane32_swap_b32 v{t}, v{t+1}')
    for m in range(4):
        A(f'v_pk_fma_f32 v[{t+2+2*m}:{t+3+2*m}], v[{p+2*m}:{p+2*m+1}], s[62:63], v[{t}:{t+1}] op_sel_hi:[1,1,0] neg_lo:[0,0,1] neg_hi:[0,0,1]')
        A(f'v_pk_fma_f32 v[{t+10+2*m}:{t+11+2*m}], v[{p+2*m}:{p+2*m+1}], s[62:63], v[{t}:{t+1}] op_sel:[0,0,1] neg_lo:[1,0,1] neg_hi:[1,0,1]')
    for r in range(16): A(f'v_exp_f32 v{t+2+r}, v{t+2+r}')

uid = [0]
def poll(A, vdst, voff, soff, issued=False):
    uid[0] += 1; n = uid[0]
    A('s_mov_b32 s3, 0')
    if issued: A(f's_branch L_pc{n}')
    A.label(f'L_pl{n}'); A.fence()
    A(f'buffer_load_dwordx2 v[{vdst}:{vdst+1}], v{voff}, s[52:55], {soff} offen sc1')
    A.label(f'L_pc{n}'); A.fence()
    A('s_waitcnt vmcnt(0)')
    A(f'v_cmp_ne_u64 vcc, s[60:61], v[{vdst}:{vdst+1}]')
    A(f's_cbranch_vccz L_pd{n}')
    A(f's_sleep 1\ns_add_u32 s3, s3, 1\ns_cmp_lt_u32 s3, {SPIN_MAX}\ns_cbranch_scc1 L_pl{n}')
    A.label(f'L_pd{n}'); A.fence()


XRING, WRING = 0, 49152
PHI, VA = 0, 33792
KL, VL, QB, QA, KVF, WPH, TAG = 69632, 94208, 118784, 126976, 135168, 139264, 141312
PHI_PLANE, PHI_HEAD = 2112, 8448
KF_LDS = 141376

def srd(A, d, lo, size):
    A(f's_mov_b32 s{d}, s{lo}\ns_mov_b32 s{d+1}, s{lo+1}\ns_mov_b32 s{d+2}, 0x{size:x}\ns_mov_b32 s{d+3}, 0x20000')

def flag(A, soff, tmp=4):
    A(f'v_mov_b32 v{tmp}, s60\nv_mov_b32 v{tmp+1}, s61\nv_mov_b32 v{tmp+2}, 0\ns_waitcnt vmcnt(0)\ns_mov_b64 exec, 1')
    A(f'buffer_store_dwordx2 v[{tmp}:{tmp+1}], v{tmp+2}, s[52:55], {soff} offen sc1')
    A('s_mov_b64 exec, -1')

def multi(A, units, fn):
    streams = []
    for u in units:
        L = []
        fn(lambda t: L.extend(x for x in t.split('\n') if x.strip()), u)
        streams.append(L)
    for i in range(max(len(x) for x in streams)):
        for L in streams:
            if i < len(L): A(L[i])

def gen_kf(A, name):
    WSZ = WS_SIZE if not OPT['stamps'] else 0x2000000
    header(A, name)
    stamp(A, 14)
    A('s_cmp_ge_u32 s2, 256\ns_cbranch_scc1 L_kf_end')
    A('s_load_dwordx16 s[4:19], s[0:1], 0\ns_load_dwordx4 s[20:23], s[0:1], 64')
    A('v_lshrrev_b32 v2, 6, v0\nv_and_b32 v1, 63, v0')
    A('s_and_b32 s36, s2, 7\ns_lshr_b32 s37, s2, 3')
    A('v_readfirstlane_b32 s41, v2')
    A('s_and_b32 s38, s37, 1')
    A('s_and_b32 s39, s36, 3\ns_lshl_b32 s39, s39, 2\ns_bfe_u32 s42, s37, 0x20001\ns_add_u32 s39, s39, s42')
    A('s_and_b32 s35, s36, 4\ns_lshr_b32 s42, s37, 3\ns_add_u32 s35, s35, s42')
    A('s_lshl_b32 s40, s35, 1\ns_add_u32 s40, s40, s38')
    A('v_lshlrev_b32 v8, 4, v1\nv_and_b32 v10, 31, v1\nv_lshrrev_b32 v11, 5, v1')
    A('s_mov_b32 s46, 0x200000\ns_mov_b32 s47, 0x20000\ns_mov_b32 s50, 0x180000\ns_mov_b32 s51, 0x20000')
    A('s_cmp_lt_u32 s41, 4\ns_cbranch_scc1 L_kf_cons')
    def xw_srd():
        A('s_cmp_eq_u32 s38, 0')
        A('s_waitcnt lgkmcnt(0)')
        A('s_cselect_b32 s44, s12, s4\ns_cselect_b32 s45, s13, s5\ns_cselect_b32 s48, s14, s6\ns_cselect_b32 s49, s15, s7')
    A('s_sub_u32 s43, s41, 4')
    A('v_lshrrev_b32 v3, 3, v1\nv_and_b32 v4, 7, v1\nv_lshrrev_b32 v5, 4, v1')
    A('v_xor_b32 v6, v4, v5\nv_lshlrev_b32 v6, 4, v6\nv_lshl_add_u32 v6, v3, 10, v6')
    A('s_lshl_b32 s24, s39, 17\ns_lshl_b32 s25, s43, 15\ns_add_u32 s24, s24, s25')
    A('v_add_u32 v16, s24, v6\nv_xor_b32 v17, 64, v16\nv_add_u32 v17, 8192, v17\nv_add_u32 v18, 16384, v16\nv_add_u32 v19, 16384, v17')
    A('v_and_b32 v5, 1, v5\nv_lshlrev_b32 v5, 2, v5\nv_xor_b32 v4, v4, v5\nv_mul_u32_u24 v3, 3072, v3\nv_lshl_add_u32 v3, v4, 4, v3')
    A('s_mul_i32 s24, s43, 49152\ns_lshl_b32 s25, s35, 7\ns_add_u32 s24, s24, s25')
    A('v_add_u32 v20, s24, v3\nv_add_u32 v21, 24576, v20')
    A(f's_lshl_b32 s30, s43, 12\ns_lshl_b32 s31, s43, 11\ns_add_u32 s31, s31, {WRING}')
    xw_srd()
    def issue(s):
        slot = s % 3
        A(f's_mov_b32 s32, {s*128}')
        for i in range(4):
            A(f's_add_u32 m0, s30, {XRING + slot*16384 + i*1024}')
            A(f'buffer_load_dwordx4 v{16+i}, s[44:47], s32 offen lds')
        for seg in range(3):
            A(f's_mov_b32 s33, {s*196608 + seg*1024}')
            for i in range(2):
                A(f's_add_u32 m0, s31, {slot*24576 + seg*8192 + i*1024}')
                A(f'buffer_load_dwordx4 v{20+i}, s[48:51], s33 offen lds')
    issue(0)
    A('s_barrier')
    issue(1)
    stamp(A, 0)
    srd(A, 52, 22, WSZ)
    common_consts(A)
    for s in range(8):
        A(f's_waitcnt vmcnt({10 if s < 7 else 0})')
        A('s_barrier')
        if s + 2 < 8: issue(s + 2)
    stamp(A, 1)
    A(f's_lshl_b32 s24, s40, 4\ns_add_u32 s24, s24, s39\ns_lshl_b32 s25, s24, 4\ns_add_u32 s34, s25, {WS_F1 - 32}')
    A(f's_lshl_b32 s33, s24, 14\ns_lshl_b32 s25, s43, 12\ns_add_u32 s33, s33, s25')
    A(f's_lshl_b32 s32, s24, 13\ns_lshl_b32 s25, s43, 11\ns_add_u32 s32, s32, s25\ns_add_u32 s32, s32, {WS_QG}')
    A(f's_lshl_b32 s27, s24, 4\ns_add_u32 s27, s27, {WS_FQ}')
    A(f's_mul_i32 s24, s43, 12288\ns_add_u32 s24, s24, {KL}')
    A('v_lshlrev_b32 v9, 3, v1')
    A('s_barrier')
    A(f'v_mov_b32 v26, {TAG}\nds_read_b64 v[28:29], v26')
    A('s_cmp_eq_u32 s38, 0\ns_cselect_b32 s26, 0x0f, 0x3f')
    A('s_cmp_ge_u32 s39, 2\ns_cbranch_scc1 L_kf_nb2')
    A('v_mov_b32 v32, 0\nv_mov_b32 v33, 0\nv_mov_b32 v34, 0\nv_mov_b32 v35, 0\nv_add_u32 v26, s24, v8')
    for i in range(4): A(f'ds_write_b128 v26, v[32:35] offset:{i*1024}')
    A('s_and_b32 s26, s26, 0x3c')
    A('s_cmp_eq_u32 s39, 1\ns_cbranch_scc1 L_kf_nb2')
    for i in range(4, 8): A(f'ds_write_b128 v26, v[32:35] offset:{i*1024}')
    A('s_and_b32 s26, s26, 0x30')
    A.label('L_kf_nb2'); A.fence()
    A('s_waitcnt lgkmcnt(0)')
    A('v_readfirstlane_b32 s60, v28\nv_readfirstlane_b32 s61, v29')
    A('s_cmp_eq_u32 s38, 0\ns_cbranch_scc1 L_kf_noea')
    A('s_barrier')
    A.label('L_kf_noea'); A.fence()
    A('s_cmp_eq_u32 s26, 0\ns_cbranch_scc1 L_kf_nbq')
    A('s_mov_b32 exec_lo, s26\ns_mov_b32 exec_hi, 0')
    poll(A, 24, 9, 's34')
    A('s_mov_b64 exec, -1')
    stamp(A, 2)
    for nb in range(3):
        A(f's_bitcmp0_b32 s26, {2*nb}\ns_cbranch_scc1 L_kf_sk{nb}')
        A(f's_sub_u32 s25, s33, {(2-nb)*16384}\ns_add_u32 m0, s24, {nb*4096}')
        for i in range(4): A(f'buffer_load_dwordx4 v8, s[52:55], s25 offen offset:{i*1024} sc1 lds')
        A.label(f'L_kf_sk{nb}'); A.fence()
    A.label('L_kf_nbq'); A.fence()
    A(f's_lshl_b32 s25, s43, 11\ns_add_u32 s24, s25, {QB}')
    A('s_cmp_eq_u32 s38, 1\ns_cbranch_scc1 L_kf_ldq')
    A(f's_add_u32 s24, s25, {QA}')
    A('s_mov_b64 exec, 3')
    poll(A, 24, 9, 's27')
    A('s_mov_b64 exec, -1')
    A.label('L_kf_ldq'); A.fence()
    A('s_mov_b32 m0, s24')
    for i in range(2): A(f'buffer_load_dwordx4 v8, s[52:55], s32 offen offset:{i*1024} sc1 lds')
    stamp(A, 3)
    A('s_branch L_kf_post')
    A.label('L_kf_cons'); A.fence()
    A('s_lshr_b32 s42, s41, 1\ns_and_b32 s43, s41, 1')
    A('v_bfe_u32 v12, v1, 1, 3\nv_xor_b32 v12, v12, v11\nv_lshlrev_b32 v12, 4, v12')
    A('s_lshl_b32 s24, s42, 13\nv_lshl_add_u32 v13, v10, 7, s24')
    for ks in range(4): A(f'v_xor_b32 v14, {ks*32}, v12\nv_add_u32 v{2+ks}, v13, v14')
    A('v_bfe_u32 v12, v1, 2, 2\nv_lshl_add_u32 v12, v11, 3, v12\nv_lshlrev_b32 v12, 7, v12')
    A('v_bfe_u32 v13, v1, 3, 1\nv_xor_b32 v13, s43, v13\nv_lshl_add_u32 v12, v13, 6, v12')
    A('v_bfe_u32 v13, v1, 4, 1\nv_lshl_add_u32 v12, v13, 5, v12\nv_and_b32 v13, 3, v1\nv_lshl_add_u32 v12, v13, 3, v12')
    A(f'v_add_u32 v6, {WRING}, v12\nv_add_u32 v7, {WRING + 49152}, v12')
    A('v_lshrrev_b32 v12, 1, v10\nv_lshlrev_b32 v12, 10, v12\nv_and_b32 v13, 1, v1\nv_lshl_add_u32 v12, v13, 7, v12')
    A('v_bfe_u32 v14, v1, 4, 1\nv_mul_u32_u24 v14, 196608, v14\nv_and_b32 v13, 15, v1\nv_lshl_add_u32 v13, v13, 7, v14')
    A('s_lshl_b32 s24, s39, 3\ns_add_u32 s24, s24, s35\ns_lshl_b32 s26, s24, 14\ns_mul_i32 s27, s24, 1536')
    xw_srd()
    srd(A, 52, 22, WSZ)
    srd(A, 56, 20, 0x100)
    def warm(g):
        if not OPT['pf']: return
        uid[0] += 1; n = uid[0]
        A(f's_cmp_lg_u32 s41, {g}\ns_cbranch_scc1 L_w{n}')
        A(f's_add_u32 s24, s26, {g*256}\ns_add_u32 s25, s27, {g*2*196608}')
        A('s_mov_b32 exec_hi, 0')
        A('buffer_load_dword v15, v12, s[44:47], s24 offen')
        A('s_mov_b32 exec_lo, 0x0fff0fff')
        A('buffer_load_dword v15, v13, s[48:51], s25 offen')
        A('s_mov_b64 exec, -1')
        A.label(f'L_w{n}')
    A('s_cmp_lg_u32 s41, 3\ns_cbranch_scc1 L_kf_notag\ns_cmp_lg_u32 s2, 0\ns_cbranch_scc1 L_kf_notag')
    A(f's_mov_b32 s24, {WS_EP}\nv_mov_b32 v14, 0\ns_mov_b64 exec, 1')
    A('buffer_load_dwordx2 v[16:17], v14, s[52:55], s24 offen sc1')
    A('s_mov_b64 exec, -1')
    A.label('L_kf_notag'); A.fence()
    A('s_cmp_lg_u32 s41, 0\ns_cbranch_scc1 L_kf_w3')
    if OPT['pfc']:
        A('s_getpc_b64 s[24:25]')
        A.label('L_kf_pc')
        A(f's_add_u32 s24, s24, {name}-L_kf_pc\ns_addc_u32 s25, s25, -1')
        A(f's_lshl_b32 s30, s37, 7\nv_lshlrev_b32 v14, 12, v1\nv_add_u32 v14, s30, v14\nv_min_u32 v14, L_code_end-{name}-4, v14\ns_mov_b64 exec, 0xff')
        A('global_load_dword v15, v14, s[24:25]')
        A('s_mov_b64 exec, -1')
    A.label('L_kf_w3'); A.fence()
    A('s_barrier')
    warm(1)
    A('s_cmp_lg_u32 s41, 0\ns_cbranch_scc1 L_kf_w4')
    srd(A, 28, 8, 0x4000)
    A(f's_lshl_b32 s24, s35, 11\ns_mov_b32 m0, {WPH}')
    for i in range(2): A(f'buffer_load_dwordx4 v8, s[28:31], s24 offen offset:{i*1024} lds')
    A.label('L_kf_w4'); A.fence()
    A('s_cmp_lg_u32 s41, 3\ns_cbranch_scc1 L_kf_notag2\ns_cmp_lg_u32 s2, 0\ns_cbranch_scc1 L_kf_notag2')
    A(f's_mov_b32 s24, {WS_EP}\nv_mov_b32 v14, 0\ns_waitcnt vmcnt(0)')
    A('v_readfirstlane_b32 s28, v16\nv_readfirstlane_b32 s29, v17')
    A('s_add_u32 s28, s28, 1\ns_addc_u32 s29, s29, 0\ns_cmp_eq_u64 s[28:29], 0\ns_cselect_b32 s28, 1, s28')
    A('v_mov_b32 v16, s28\nv_mov_b32 v17, s29\ns_mov_b64 exec, 1')
    A('buffer_store_dwordx2 v[16:17], v14, s[56:59], 0 offen sc1')
    A('buffer_store_dwordx2 v[16:17], v14, s[52:55], s24 offen sc1')
    A('s_mov_b64 exec, -1')
    A.label('L_kf_notag2'); A.fence()
    stamp(A, 0)
    common_consts(A)
    ACC = {(0, 0): 64, (0, 1): 80, (1, 0): 96, (1, 1): 112, (2, 0): 128, (2, 1): 144}
    FS = [16, 36]
    lq = Q(A, 'lgkmcnt', 15)
    def reads(n):
        s, ks = divmod(n, 4); slot = s % 3; f = FS[n & 1]
        wa, wo = (6, slot * 24576) if slot < 2 else (7, 0)
        def rx(tt): return (f'ds_read_b128 v[{f+4*tt}:{f+4*tt+3}], v{2+ks} offset:{XRING + slot*16384 + tt*4096}', (n, 'x', tt))
        def rw(seg, rd): return (f'ds_read_b64_tr_b16 v[{f+8+4*seg+2*rd}:{f+9+4*seg+2*rd}], v{wa} offset:{wo + seg*8192 + ks*2048 + rd*512}', (n, 'w', seg))
        return [rx(0), rw(1, 0), rw(1, 1), rx(1), rw(2, 0), rw(2, 1), rw(0, 0), rw(0, 1)]
    A('v_mov_b32 v14, 0')
    A('s_barrier')
    stamp(A, 1)
    for t, tag in reads(0): A(t); lq.push(tag)
    warm(2)
    for n in range(32):
        f = FS[n & 1]
        nxt = reads(n + 1) if n + 1 < 32 else []
        newstage = (n % 4 == 3) and n + 1 < 32
        k = 0
        for mi, (seg, tt) in enumerate([(1, 0), (1, 1), (2, 0), (2, 1), (0, 0), (0, 1)]):
            if newstage and mi == 0: lq.all()
            else: lq.wait((n, 'x', tt), (n, 'w', seg))
            acc = ACC[(seg, tt)]
            X = vr(f + 4*tt, 4); W = vr(f + 8 + 4*seg, 4)
            a, b = (W, X) if seg < 2 else (X, W)
            c = vr(acc, 16) if n > 0 else '0'
            A(f'v_mfma_f32_32x32x16_bf16 {vr(acc,16)}, {a}, {b}, {c}')
            if newstage and mi == 0: A('s_barrier')
            for _ in range(2):
                if k < len(nxt):
                    t, tag = nxt[k]; A(t); lq.push(tag); k += 1
        if n == 7: warm(3)
        if n == 20: A('buffer_load_dwordx2 v[60:61], v14, s[56:59], 0 offen sc1')
        if n == 28:
            uid[0] += 1; u = uid[0]
            A('s_mov_b32 s30, 0\ns_waitcnt vmcnt(0)')
            A.label(f'L_tg{u}')
            A('v_readfirstlane_b32 s60, v60\nv_readfirstlane_b32 s61, v61')
            A(f's_cmp_lg_u64 s[60:61], 0\ns_cbranch_scc1 L_tgd{u}')
            A('s_sleep 1\nbuffer_load_dwordx2 v[60:61], v14, s[56:59], 0 offen sc1\ns_waitcnt vmcnt(0)')
            A(f's_add_u32 s30, s30, 1\ns_cmp_lt_u32 s30, {SPIN_MAX}\ns_cbranch_scc1 L_tg{u}')
            A.label(f'L_tgd{u}')
            A(f'v_mov_b32 v12, {TAG}\nds_write_b64 v12, v[60:61]'); lq.push('tag')
            A('s_lshl_b32 s24, s35, 1\ns_add_u32 s24, s24, s43\ns_lshl_b32 s24, s24, 4\ns_add_u32 s24, s24, s39')
            A('s_lshl_b32 s25, s42, 11\ns_lshl_b32 s32, s24, 14\ns_add_u32 s32, s32, s25')
            A(f's_lshl_b32 s33, s24, 13\ns_add_u32 s33, s33, s25\ns_add_u32 s33, s33, {WS_QG}')
            A('s_lshl_b32 s34, s24, 4\ns_lshl_b32 s24, s42, 3\ns_add_u32 s34, s34, s24')
            A('v_and_b32 v12, 15, v1\nv_lshlrev_b32 v12, 4, v12\nv_lshl_add_u32 v12, v11, 8, v12\nv_bfe_u32 v13, v1, 4, 1')
    stamp(A, 2)
    for tt in range(2):
        for m in range(8): A(f'v_cvt_pk_bf16_f32 v{160+8*tt+m}, v{ACC[(1,tt)]+2*m}, v{ACC[(1,tt)]+2*m+1}')
    A('s_cmp_eq_u32 s38, 1\ns_cbranch_scc1 L_kf_epA')
    A('s_add_u32 s24, s32, 4096\ns_add_u32 s25, s32, 8192\nv_lshl_add_u32 v9, v13, 12, v12')
    for tt in range(2):
        A(f'buffer_store_dwordx4 v[{160+8*tt}:{163+8*tt}], v8, s[52:55], s32 offen offset:{tt*1024} sc1')
        A(f'buffer_store_dwordx4 v[{164+8*tt}:{167+8*tt}], v8, s[52:55], s24 offen offset:{tt*1024} sc1')
    for tt in range(2):
        for m in range(8): A(f'v_cvt_pk_bf16_f32 v{176+8*tt+m}, v{ACC[(2,tt)]+2*m}, v{ACC[(2,tt)]+2*m+1}')
        for blk in range(2): A(f'buffer_store_dwordx4 v[{176+8*tt+4*blk}:{179+8*tt+4*blk}], v9, s[52:55], s25 offen offset:{tt*1024+blk*512} sc1')
    A(f's_mov_b32 s24, 0x{f2u(0.25*LOG2E):x}\ns_mov_b32 s25, s24')
    for m in range(16): A(f'v_pk_mul_f32 v[{64+2*m}:{65+2*m}], v[{64+2*m}:{65+2*m}], s[24:25]')
    for m in range(16): A(f'v_cvt_pk_bf16_f32 v{16+m}, v{64+2*m}, v{65+2*m}')
    A('s_cmp_eq_u32 s43, 0\ns_cbranch_scc1 L_kf_epB0')
    A('s_add_u32 s24, s33, 4096')
    for tt in range(2):
        A(f'buffer_store_dwordx4 v[{16+8*tt}:{19+8*tt}], v8, s[52:55], s33 offen offset:{tt*1024} sc1')
        A(f'buffer_store_dwordx4 v[{20+8*tt}:{23+8*tt}], v8, s[52:55], s24 offen offset:{tt*1024} sc1')
    A('s_waitcnt lgkmcnt(0)\ns_barrier')
    A('s_branch L_kf_epB1')
    A.label('L_kf_epB0'); A.fence()
    A(f's_lshl_b32 s25, s42, 11\nv_mul_u32_u24 v13, 12288, v13\nv_add_u32 v12, v12, v13\ns_add_u32 s24, s25, {VL + 8192}\nv_add_u32 v12, s24, v12')
    A(f's_add_u32 s24, s25, {KL + 8192}\nv_add_u32 v13, s24, v8')
    A('s_waitcnt lgkmcnt(0)\ns_barrier')
    for tt in range(2):
        for e in range(2):
            A(f'ds_write_b128 v13, v[{160+8*tt+4*e}:{163+8*tt+4*e}] offset:{e*12288 + tt*1024}')
            A(f'ds_write_b128 v13, v[{16+8*tt+4*e}:{19+8*tt+4*e}] offset:{QB - KL - 8192 + e*4096 + tt*1024}')
            A(f'ds_write_b128 v12, v[{176+8*tt+4*e}:{179+8*tt+4*e}] offset:{tt*1024 + e*512}')
    A.label('L_kf_epB1'); A.fence()
    stamp(A, 3)
    A(f's_add_u32 s34, s34, {WS_F1}')
    flag(A, 's34')
    stamp(A, 4)
    A('s_branch L_kf_post')
    A.label('L_kf_epA'); A.fence()
    A('v_bfe_u32 v9, v1, 2, 2\nv_lshl_add_u32 v9, v11, 2, v9\nv_lshlrev_b32 v9, 5, v9\nv_and_b32 v13, 3, v1\nv_lshl_add_u32 v9, v13, 3, v9')
    A(f's_lshl_b32 s24, s43, 10\ns_add_u32 s24, s24, {WPH}\nv_add_u32 v9, s24, v9')
    for hs in range(2):
        for rd in range(2): A(f'ds_read_b64_tr_b16 v[{40+4*hs+2*rd}:{41+4*hs+2*rd}], v9 offset:{hs*512 + rd*256}')
    for tt in range(2):
        for m in range(8): A(f'v_cvt_pk_bf16_f32 v{176+8*tt+m}, v{ACC[(2,tt)]+2*m}, v{ACC[(2,tt)]+2*m+1}')
    units = [(0, 0), (0, 1), (1, 0), (1, 1)]
    P = {u: 96 + 16 * i for i, u in enumerate(units)}
    A('s_waitcnt lgkmcnt(0)')
    for (tt, hs) in units: A(f'v_mfma_f32_32x32x16_bf16 {vr(P[(tt,hs)],16)}, {vr(40+4*hs,4)}, {vr(160+8*tt+4*hs,4)}, 0')
    for m in range(16): A(f'v_cvt_pk_bf16_f32 v{16+m}, v{64+2*m}, v{65+2*m}')
    A(f's_lshl_b32 s24, s42, 13\ns_lshl_b32 s25, s43, 10\ns_add_u32 s24, s24, s25\ns_add_u32 s24, s24, {VA}\nv_add_u32 v13, s24, v8')
    A('s_barrier')
    for tt in range(2):
        for blk in range(2): A(f'ds_write_b128 v13, v[{176+8*tt+4*blk}:{179+8*tt+4*blk}] offset:{(tt*2+blk)*2048}')
    A('s_cmp_eq_u32 s43, 1\ns_cbranch_scc1 L_kf_epA1')
    A('s_add_u32 s24, s33, 4096')
    for tt in range(2):
        A(f'buffer_store_dwordx4 v[{16+8*tt}:{19+8*tt}], v8, s[52:55], s33 offen offset:{tt*1024} sc1')
        A(f'buffer_store_dwordx4 v[{20+8*tt}:{23+8*tt}], v8, s[52:55], s24 offen offset:{tt*1024} sc1')
    A('s_branch L_kf_epA2')
    A.label('L_kf_epA1'); A.fence()
    A(f's_lshl_b32 s25, s42, 11\ns_add_u32 s24, s25, {QA}\nv_add_u32 v13, s24, v8')
    for tt in range(2):
        for e in range(2): A(f'ds_write_b128 v13, v[{16+8*tt+4*e}:{19+8*tt+4*e}] offset:{e*4096 + tt*1024}')
    A.label('L_kf_epA2'); A.fence()
    A(f's_mul_i32 s24, s43, {2*PHI_HEAD}\ns_lshl_b32 s25, s42, 10\ns_add_u32 s24, s24, s25\ns_add_u32 s24, s24, {PHI}')
    A(f'v_mul_u32_u24 v14, {PHI_PLANE}, v11\nv_lshl_add_u32 v14, v10, 4, v14\nv_add_u32 v14, s24, v14')
    T = {(0, 0): 32, (0, 1): 64, (1, 0): 160, (1, 1): 180}
    def phik(E, u):
        p, t = P[u], T[u]; tt, hs = u
        dual_exp(E, p, t)
        E(f'v_pk_add_f32 v[{t}:{t+1}], v[{t+2}:{t+3}], v[{t+4}:{t+5}]\nv_pk_add_f32 v[{t+18}:{t+19}], v[{t+10}:{t+11}], v[{t+12}:{t+13}]')
        for m in (6, 8):
            E(f'v_pk_add_f32 v[{t}:{t+1}], v[{t}:{t+1}], v[{t+m}:{t+m+1}]\nv_pk_add_f32 v[{t+18}:{t+19}], v[{t+18}:{t+19}], v[{t+m+8}:{t+m+9}]')
        E(f'v_add_f32 v{t}, v{t}, v{t+1}\nv_add_f32 v{t+1}, v{t+18}, v{t+19}')
        E(f'v_permlane32_swap_b32 v{t}, v{t+1}\nv_add_f32 v{t}, v{t}, v{t+1}\nv_rcp_f32 v{t}, v{t}\nv_mov_b32 v{t+1}, v{t}\nv_permlane32_swap_b32 v{t}, v{t+1}')
        for m in range(4):
            E(f'v_pk_mul_f32 v[{t+2+2*m}:{t+3+2*m}], v[{t+2+2*m}:{t+3+2*m}], v[{t}:{t+1}] op_sel_hi:[1,0]')
            E(f'v_pk_mul_f32 v[{t+10+2*m}:{t+11+2*m}], v[{t+10+2*m}:{t+11+2*m}], v[{t}:{t+1}] op_sel:[0,1]')
        for m in range(8): E(f'v_cvt_pk_bf16_f32 v{p+m}, v{t+2+2*m}, v{t+3+2*m}')
        E(f'ds_write_b128 v14, v[{p}:{p+3}] offset:{hs*PHI_HEAD + tt*512}')
        E(f'ds_write_b128 v14, v[{p+4}:{p+7}] offset:{hs*PHI_HEAD + tt*512 + 2*PHI_PLANE}')
    A('s_waitcnt lgkmcnt(0)')
    multi(A, units, phik)
    A('s_cmp_eq_u32 s43, 1\ns_cbranch_scc1 L_kf_epA3')
    A(f's_add_u32 s34, s34, {WS_FQ}')
    flag(A, 's34')
    A.label('L_kf_epA3'); A.fence()
    A('v_bfe_u32 v2, v1, 4, 1\nv_lshlrev_b32 v2, 1, v2\nv_and_b32 v3, 1, v1\nv_add_u32 v2, v2, v3')
    A(f'v_mul_u32_u24 v2, {PHI_PLANE}, v2')
    A('v_bfe_u32 v3, v1, 2, 2\nv_lshl_add_u32 v3, v11, 2, v3\nv_lshl_add_u32 v2, v3, 4, v2\nv_bfe_u32 v3, v1, 1, 1\nv_lshl_add_u32 v2, v3, 3, v2')
    A(f's_mul_i32 s24, s41, {PHI_HEAD}\ns_add_u32 s24, s24, {PHI}\nv_add_u32 v2, s24, v2')
    A(f's_lshl_b32 s24, s42, 10\ns_lshl_b32 s25, s43, 8\ns_add_u32 s24, s24, s25\ns_add_u32 s24, s24, {VA}\nv_add_u32 v3, s24, v8')
    for r in range(0, 32, 2): A(f'v_mov_b64 v[{64+r}:{65+r}], v[{ONES}:{ONES+1}]')
    A(f's_lshl_b32 s24, s35, 2\ns_add_u32 s24, s24, s41\ns_lshl_b32 s24, s24, 4\ns_add_u32 s24, s24, s39\ns_mul_i32 s25, s24, 2176\ns_add_u32 s25, s25, {WS_PK}')
    A(f's_lshl_b32 s34, s24, 3\ns_add_u32 s34, s34, {WS_F2}')
    stamp(A, 3)
    A('s_waitcnt lgkmcnt(0)\ns_barrier')
    for s in range(8):
        for rd in range(2): A(f'ds_read_b64_tr_b16 v[{16+4*s+2*rd}:{17+4*s+2*rd}], v2 offset:{s*256 + rd*128}')
    A('s_mov_b64 exec, s[28:29]')
    for s in range(8): A(f'ds_read_b128 v[{64+4*s}:{67+4*s}], v3 offset:{s*2048}')
    A('s_mov_b64 exec, -1')
    for s in range(8):
        A(f's_waitcnt lgkmcnt({7-s})')
        A(f'v_mfma_f32_32x32x16_bf16 v[96:111], {vr(16+4*s,4)}, {vr(64+4*s,4)}, {"v[96:111]" if s else "0"}')
    A('s_mov_b32 exec_lo, 0x1ffff\ns_mov_b32 exec_hi, 0x1ffff')
    for rq in range(4): A(f'buffer_store_dwordx4 v[{96+4*rq}:{99+4*rq}], v{PKOFF}, s[52:55], s25 offen offset:{rq*544} sc1')
    A('s_mov_b64 exec, -1')
    flag(A, 's34')
    stamp(A, 4)
    A.label('L_kf_post'); A.fence()
    A('s_and_b32 s42, s41, 3\ns_lshr_b32 s43, s41, 2\ns_mov_b32 s30, 0x00220000\ns_mov_b32 s31, 0x00220000')
    A(f's_lshl_b32 s24, s41, 10\ns_add_u32 s24, s24, {QB}\nv_add_u32 v12, s24, v8')
    A('v_bfe_u32 v15, v1, 2, 2\nv_lshl_add_u32 v15, v11, 2, v15\nv_lshlrev_b32 v15, 5, v15\nv_and_b32 v9, 3, v1\nv_lshl_add_u32 v15, v9, 3, v15')
    A(f's_lshl_b32 s24, s43, 9\ns_lshl_b32 s25, s38, 10\ns_add_u32 s24, s24, s25\ns_add_u32 s24, s24, {WPH}\nv_add_u32 v15, s24, v15')
    A(f's_mul_i32 s24, s43, 12288\ns_lshl_b32 s25, s42, 10\ns_add_u32 s24, s24, s25\ns_add_u32 s25, s24, {KL}\nv_add_u32 v13, s25, v8')
    A(f'v_and_b32 v14, 15, v1\nv_lshlrev_b32 v14, 4, v14\nv_lshl_add_u32 v14, v11, 8, v14\ns_add_u32 s25, s24, {VL}\nv_add_u32 v14, s25, v14')
    A('s_lshl_b32 s33, s39, 2\ns_add_u32 s33, s33, s42')
    for rd in range(2): A(f'ds_read_b64_tr_b16 v[{20+2*rd}:{21+2*rd}], v15 offset:{rd*256}')
    A('s_waitcnt vmcnt(0) lgkmcnt(0)\ns_barrier')
    stamp(A, 6)
    A(f'ds_read_b128 v[28:31], v12\nds_read_b128 v[24:27], v12 offset:{QA-QB}')
    if OPT['pfw']:
        A('s_cmp_lt_u32 s41, 6\ns_cbranch_scc1 L_kf_nopfw')
        A('s_cmp_lt_u32 s36, 4\ns_cselect_b32 s56, s10, s16\ns_cselect_b32 s57, s11, s17\ns_mov_b32 s58, 0x80000\ns_mov_b32 s59, 0x20000')
        A('s_lshl_b32 s24, s37, 14\ns_and_b32 s25, s41, 1\ns_lshl_b32 s25, s25, 13\ns_add_u32 s24, s24, s25\nv_lshlrev_b32 v2, 7, v1')
        A('buffer_load_dword v244, v2, s[56:59], s24 offen')
        A.label('L_kf_nopfw'); A.fence()
    A('s_cmp_lt_u32 s39, 2\ns_cbranch_scc1 L_kf_bslow')
    bunit(A, False)
    A.label('L_kf_bdone'); A.fence()
    stamp(A, 9)
    O = OACC
    A('v_mfma_f32_32x32x16_bf16 v[48:63], v[20:23], v[24:27], 0')
    A(f's_lshl_b32 s24, s33, 15\ns_lshl_b32 s25, s40, 11\ns_add_u32 s24, s24, s25\ns_lshl_b32 s25, s43, 10\ns_add_u32 s24, s24, s25\ns_add_u32 s34, s24, {WS_OA}\ns_add_u32 s32, s24, {WS_OB}')
    A('s_cmp_ge_u32 s41, 4\ns_cbranch_scc1 L_kf_nopk')
    A(f's_and_b32 s26, s41, 1\ns_lshl_b32 s24, s40, 1\ns_add_u32 s26, s26, s24\ns_lshl_b32 s24, s26, 7\ns_add_u32 s24, s24, {WS_F2}\nv_lshlrev_b32 v9, 3, v1')
    A('s_mov_b64 exec, 0xffff')
    poll(A, 2, 9, 's24')
    stamp(A, 10)
    A(f's_mul_i32 s24, s26, 34816\ns_lshr_b32 s25, s41, 1\ns_mul_i32 s25, s25, 1088\ns_add_u32 s24, s24, s25\ns_add_u32 s24, s24, {WS_PK}')
    A('s_mov_b32 exec_lo, 0x11ffff\ns_mov_b32 exec_hi, 0x11ffff')
    for rb in range(16):
        for e in range(2): A(f'buffer_load_dwordx4 v[{64+8*rb+4*e}:{67+8*rb+4*e}], v{PKOFF}, s[52:55], s24 offen offset:{e*544} sc1')
        if rb < 15: A('s_add_u32 s24, s24, 2176')
    A('s_mov_b64 exec, -1')
    A.label('L_kf_nopk'); A.fence()
    A('s_nop 7')
    A(f'v_rcp_f32 v4, v{O+8}')
    for m in range(4): A(f'v_pk_mul_f32 v[{O+2*m}:{O+2*m+1}], v[{O+2*m}:{O+2*m+1}], v[4:5] op_sel_hi:[1,0]')
    for m in range(4): A(f'v_cvt_pk_bf16_f32 v{16+m}, v{O+2*m}, v{O+2*m+1}')
    A(f'buffer_store_dwordx4 v[16:19], v8, s[52:55], s32 offen {ST}')
    dual_exp(A, 48, 192)
    for m in range(8): A(f'v_cvt_pk_bf16_f32 v{48+m}, v{194+2*m}, v{195+2*m}')
    A(f's_lshl_b32 s24, s43, 11\ns_add_u32 s24, s24, {KVF}\nv_add_u32 v9, s24, v8')
    A('s_cmp_ge_u32 s41, 4\ns_cbranch_scc1 L_kf_nosum')
    for rb in range(1, 16):
        A(f's_waitcnt vmcnt({1 + 2*(15-rb)})')
        for m in range(4): A(f'v_pk_add_f32 v[{64+2*m}:{65+2*m}], v[{64+2*m}:{65+2*m}], v[{64+8*rb+2*m}:{65+8*rb+2*m}]')
    for m in range(4): A(f'v_cvt_pk_bf16_f32 v{64+m}, v{64+2*m}, v{65+2*m}')
    A('s_mov_b32 s24, 0xffee0000\ns_mov_b32 s25, 0xffee0000')
    for m in range(4): A(f'v_cndmask_b32_e64 v{64+m}, v{64+m}, v{ONES}, s[24:25]')
    A(f's_and_b32 s24, s41, 1\ns_lshl_b32 s24, s24, 11\ns_lshr_b32 s25, s41, 1\ns_lshl_b32 s25, s25, 10\ns_add_u32 s24, s24, s25\ns_add_u32 s24, s24, {KVF}\nv_add_u32 v7, s24, v8')
    A('ds_write_b128 v7, v[64:67]')
    A.label('L_kf_nosum'); A.fence()
    stamp(A, 11)
    A('s_waitcnt lgkmcnt(0)\ns_barrier')
    stamp(A, 12)
    A('ds_read_b128 v[16:19], v9\nds_read_b128 v[20:23], v9 offset:1024')
    A('s_waitcnt lgkmcnt(1)')
    A('v_mfma_f32_32x32x16_bf16 v[96:111], v[16:19], v[48:51], 0')
    A('s_waitcnt lgkmcnt(0)')
    A('v_mfma_f32_32x32x16_bf16 v[112:127], v[20:23], v[52:55], 0')
    A(f'v_mov_b32 v6, 0x{f2u(1e-6):x}')
    A('v_rcp_f32 v4, v105\nv_rcp_f32 v5, v121')
    A('v_fmac_f32 v6, v104, v4\nv_fmac_f32 v6, v120, v5')
    A('v_rcp_f32 v6, v6')
    A('v_mul_f32 v4, v4, v6\nv_mul_f32 v5, v5, v6')
    for m in range(4): A(f'v_pk_mul_f32 v[{96+2*m}:{97+2*m}], v[{96+2*m}:{97+2*m}], v[4:5] op_sel_hi:[1,0]')
    for m in range(4): A(f'v_pk_fma_f32 v[{96+2*m}:{97+2*m}], v[{112+2*m}:{113+2*m}], v[4:5], v[{96+2*m}:{97+2*m}] op_sel:[0,1,0]')
    for m in range(4): A(f'v_cvt_pk_bf16_f32 v{132+m}, v{96+2*m}, v{97+2*m}')
    A(f'buffer_store_dwordx4 v[132:135], v8, s[52:55], s34 offen {ST}')
    stamp_flush(A, 0, 's[52:55]', 's41')
    A.label('L_kf_end'); A.fence()
    A('s_endpgm')
    A.label('L_kf_bslow'); A.fence()
    bunit(A, True)
    A('s_branch L_kf_bdone')

PMASK, ONES, PKOFF, VRING = 232, 240, 242, 216
OACC = 200
def common_consts(A):
    for r in range(16):
        for hi in range(2):
            m = 0
            for c in range(32):
                if rowof(r, hi) <= c: m |= 1 << c
            A(f's_mov_b32 s{64+2*r+hi}, 0x{m:x}')
    A(f's_mov_b32 s62, 0x{f2u(LOG2E):x}\ns_mov_b32 s63, s62')
    A(f'v_mov_b32 v{ONES}, 0x3f803f80\nv_mov_b32 v{ONES+1}, 0x3f803f80\nv_mov_b32 v243, 0xffff')
    for r in range(0, 16, 2): A(f'v_mov_b64 v[{VRING+r}:{VRING+r+1}], v[{ONES}:{ONES+1}]')
    for m in range(8): A(f'v_cndmask_b32_e64 v{PMASK+m}, 0, v243, s[{64+4*m}:{65+4*m}]')
    for m in range(8): A(f'v_cndmask_b32_e64 v{PMASK+m}, v{PMASK+m}, -1, s[{66+4*m}:{67+4*m}]')
    A(f'v_lshlrev_b32 v{PKOFF}, 4, v10\nv_lshl_add_u32 v{PKOFF}, v11, 8, v{PKOFF}\nv_lshlrev_b32 v243, 4, v11\nv_add_u32 v243, 512, v243')
    A('s_mov_b32 s28, 0xffff\ns_mov_b32 s29, 0xffff')
    A(f'v_cndmask_b32_e64 v{PKOFF}, v243, v{PKOFF}, s[28:29]')

def bunit(A, checks):
    sfx = 's' if checks else 'f'
    lq = Q(A, 'lgkmcnt', 15)
    KF = {j: 144 + 4 * j for j in range(9)}
    M, X, Y, Z, NM = 64, 80, 96, 112, 128
    O = OACC
    order = [8, 0, 7, 6, 5, 4, 3, 2, 1]
    for j in order: A(f'ds_read_b128 {vr(KF[j],4)}, v13 offset:{j*1024}'); lq.push(('k', j))
    buf = {8: M, 0: X, 7: Y, 6: Z, 5: NM, 4: X, 3: Y, 2: Z, 1: NM}
    def qk(j, dst, c):
        lq.wait(('k', j))
        A(f'v_mfma_f32_32x32x16_bf16 {vr(dst,16)}, {vr(KF[j],4)}, v[28:31], {c}')
    for j in (8, 0, 7, 6, 5): qk(j, buf[j], '0')
    if checks:
        A('s_nop 7')
        for r in range(16): A(f'v_mov_b32 v{X+r}, 0xff800000')
    for r in range(16): A(f'v_cndmask_b32_e64 v{M+r}, v{X+r}, v{M+r}, s[{64+2*r}:{65+2*r}]')
    qk(4, buf[4], '0')
    A(f'v_max_f32 v2, v{M}, v{M+1}\nv_max_f32 v3, v{M+2}, v{M+3}')
    for m in range(1, 4): A(f'v_max3_f32 v2, v2, v{M+4*m}, v{M+4*m+1}\nv_max3_f32 v3, v3, v{M+4*m+2}, v{M+4*m+3}')
    for j in (7, 6, 5, 4, 3, 2, 1):
        b = buf[j]
        if checks: A(f's_cmp_lt_u32 s33, {8-j}\ns_cbranch_scc1 L_bm{sfx}')
        for m in range(4): A(f'v_max3_f32 v2, v2, v{b+4*m}, v{b+4*m+1}\nv_max3_f32 v3, v3, v{b+4*m+2}, v{b+4*m+3}')
        if j - 4 >= 1: qk(j - 4, buf[j - 4], '0')
    if checks:
        A.label(f'L_bm{sfx}'); A.fence(); A('s_waitcnt lgkmcnt(0)\ns_nop 15'); lq.q = []
    A('v_max_f32 v2, v2, v3\nv_mov_b32 v3, v2\nv_permlane32_swap_b32 v2, v3\nv_max_f32 v2, v2, v3')
    stamp(A, 8)
    A(f'v_sub_f32 v{NM}, 0, v2\nv_sub_f32 v{NM+1}, 0, v2')
    for r in range(2, 16, 2): A(f'v_mov_b64 v[{NM+r}:{NM+r+1}], v[{NM}:{NM+1}]')
    vs = [0]
    def vreads(js):
        A('s_mov_b64 exec, s[28:29]')
        out = {}
        for j in js:
            for blk in range(2):
                st = VRING + 4 * (vs[0] % 4); vs[0] += 1
                A(f'ds_read_b128 {vr(st,4)}, v14 offset:{j*1024 + blk*512}'); lq.push(('v', j, blk)); out[(j, blk)] = st
        A('s_mov_b64 exec, -1')
        return out
    first = [True]
    def pv(j, blk, vreg, p):
        def f():
            lq.wait(('v', j, blk))
            A(f'v_mfma_f32_32x32x16_bf16 {vr(O,16)}, {vr(vreg,4)}, {vr(p,4)}, {"0" if first[0] else vr(O,16)}')
            first[0] = False
        return f
    buf2 = {7: X, 6: Y, 5: Z, 4: X, 3: Y, 2: Z, 1: X}
    def qk2(j):
        def f():
            if checks:
                uid[0] += 1; n = uid[0]
                A(f's_cmp_lg_u32 s33, {7-j}\ns_cbranch_scc1 L_ni{n}\ns_nop 7')
                for r in range(16): A(f'v_mov_b32 v{NM+r}, 0xff800000')
                A.label(f'L_ni{n}'); A.fence(); A('s_nop 1')
            A(f'v_mfma_f32_32x32x16_bf16 {vr(buf2[j],16)}, {vr(KF[j],4)}, v[28:31], {vr(NM,16)}')
        return f
    def tile(b, pend, pre=()):
        ops = list(pre) + [f'v_exp_f32 v{b+r}, v{b+r}' for r in range(16)] + [f'v_cvt_pk_bf16_f32 v{b+m}, v{b+2*m}, v{b+2*m+1}' for m in range(8)]
        n0 = len(pre); step = max(1, 16 // max(1, len(pend)))
        pos = {n0 + 1 + i * step: f for i, f in enumerate(pend)}
        for i, o in enumerate(ops):
            if i in pos: pos[i]()
            A(o)
    vv = vreads([8, 0])
    tile(M, [qk2(7), qk2(6)], pre=[f'v_sub_f32 v{M+r}, v{M+r}, v2' for r in range(16)])
    for m in range(8): A(f'v_bfi_b32 v{M+8+m}, v{PMASK+m}, 0, v{M+m}')
    for m in range(8): A(f'v_and_b32 v{M+m}, v{PMASK+m}, v{M+m}')
    pend = [pv(8, 0, vv[(8, 0)], M), pv(8, 1, vv[(8, 1)], M + 4), pv(0, 0, vv[(0, 0)], M + 8), pv(0, 1, vv[(0, 1)], M + 12), qk2(5)]
    for j in (7, 6, 5, 4, 3, 2, 1):
        b = buf2[j]
        if j == 7:
            tile(b, pend); vv = vreads([j])
        else:
            vv = vreads([j]); tile(b, pend)
        pend = [pv(j, 0, vv[(j, 0)], b), pv(j, 1, vv[(j, 1)], b + 4)]
        if j - 3 >= 1: pend.append(qk2(j - 3))
    for f in pend: f()

K3_LDS = 65536
def gen_k3(A):
    WSZ = WS_SIZE if not OPT['stamps'] else 0x2000000
    header(A, 'k3_kernel')
    stamp(A, 14)
    A('s_cmp_ge_u32 s2, 256\ns_cbranch_scc1 L_k3_end')
    A('s_load_dwordx2 s[4:5], s[0:1], 24\ns_load_dwordx4 s[8:11], s[0:1], 48\ns_load_dwordx2 s[16:17], s[0:1], 72')
    A('v_lshrrev_b32 v2, 6, v0\nv_and_b32 v1, 63, v0')
    A('s_and_b32 s36, s2, 7\ns_lshr_b32 s37, s2, 3\ns_lshr_b32 s38, s36, 2')
    A('v_readfirstlane_b32 s41, v2')
    A('s_and_b32 s39, s36, 3\ns_lshl_b32 s39, s39, 2\ns_and_b32 s42, s37, 3\ns_add_u32 s39, s39, s42')
    A('s_lshr_b32 s40, s37, 2')
    A(f's_mov_b32 s22, 0x80000\ns_mov_b32 s23, 0x20000\ns_mov_b32 s26, 0x400000\ns_mov_b32 s27, 0x20000\ns_mov_b32 s30, {WSZ}\ns_mov_b32 s31, 0x20000')
    A('v_lshlrev_b32 v8, 4, v1\nv_and_b32 v10, 31, v1\nv_lshrrev_b32 v11, 5, v1')
    A('v_lshrrev_b32 v3, 3, v1\nv_and_b32 v4, 7, v1\nv_bfe_u32 v5, v1, 4, 1\nv_lshlrev_b32 v5, 2, v5\nv_xor_b32 v4, v4, v5\nv_lshlrev_b32 v4, 4, v4\nv_lshl_add_u32 v4, v3, 10, v4')
    A('s_lshl_b32 s44, s39, 2\ns_add_u32 s44, s44, s41')
    A(f's_lshl_b32 s45, s38, 21\ns_add_u32 s45, s45, {WS_OA}\ns_lshl_b32 s46, s44, 15\ns_add_u32 s45, s45, s46')
    A('s_lshl_b32 s46, s41, 13\ns_lshl_b32 s47, s40, 7\ns_add_u32 s46, s46, s47\ns_lshl_b32 s47, s41, 10')
    A('s_cmp_eq_u32 s38, 0')
    A('s_waitcnt lgkmcnt(0)')
    A('s_cselect_b32 s20, s4, s8\ns_cselect_b32 s21, s5, s9\ns_mov_b32 s24, s10\ns_mov_b32 s25, s11\ns_mov_b32 s28, s16\ns_mov_b32 s29, s17')
    stamp(A, 0)
    vq = Q(A, 'vmcnt', 63)
    for i in range(16):
        A(f's_add_u32 m0, s47, {i*4096}')
        A(f'buffer_load_dwordx4 v4, s[20:23], s46 offen lds'); vq.push('dma')
        if i < 15: A(f's_add_u32 s46, s46, 32768')
    OF = 64
    def oload(h):
        A(f'buffer_load_dwordx4 {vr(OF+4*h,4)}, v8, s[28:31], s45 offen offset:{(h%4)*1024}'); vq.push(('o', h))
        if h % 4 == 3: A('s_add_u32 s45, s45, 4096')
    for h in range(16): oload(h)
    A('v_bfe_u32 v12, v1, 2, 2\nv_lshl_add_u32 v12, v11, 2, v12\nv_lshlrev_b32 v12, 7, v12')
    A('v_bfe_u32 v13, v1, 3, 1\nv_lshl_add_u32 v12, v13, 6, v12')
    A('v_bfe_u32 v13, v1, 4, 1\nv_lshl_add_u32 v12, v13, 5, v12')
    A('v_and_b32 v13, 3, v1\nv_lshl_add_u32 v6, v13, 3, v12\nv_xor_b32 v7, 64, v6')
    vq.wait('dma')
    A('s_barrier')
    stamp(A, 1)
    lq = Q(A, 'lgkmcnt', 15)
    FS = [16, 24]
    def reads(h):
        f = FS[h & 1]
        return [(f'ds_read_b64_tr_b16 v[{f+4*c+2*rd}:{f+4*c+2*rd+1}], v{6+c} offset:{h*2048 + rd*1024}', (h, c)) for c in range(2) for rd in range(2)]
    for t, tag in reads(0): A(t); lq.push(tag)
    for h in range(32):
        f = FS[h & 1]
        nxt = reads(h + 1) if h < 31 else []
        if h + 16 < 32: oload(h + 16)
        vq.wait(('o', h))
        for c in range(2):
            lq.wait((h, c))
            A(f'v_mfma_f32_32x32x16_bf16 {vr(32+16*c,16)}, {vr(f+4*c,4)}, {vr(OF+4*h,4)}, {vr(32+16*c,16) if h else "0"}')
            for t, tag in nxt[2*c:2*c+2]: A(t); lq.push(tag)
    stamp(A, 2)
    A('v_lshlrev_b32 v9, 11, v10\nv_lshl_add_u32 v9, v11, 4, v9')
    A('s_lshl_b32 s46, s44, 16\ns_lshl_b32 s47, s38, 10\ns_add_u32 s46, s46, s47\ns_lshl_b32 s47, s40, 7\ns_add_u32 s46, s46, s47')
    for c in range(2):
        for m in range(8): A(f'v_cvt_pk_bf16_f32 v{64+8*c+m}, v{32+16*c+2*m}, v{33+16*c+2*m}')
    for c in range(2):
        for gp in range(2):
            b = 64 + 8*c + 4*gp
            A(f'v_permlane32_swap_b32 v{b}, v{b+2}\nv_permlane32_swap_b32 v{b+1}, v{b+3}')
            A(f'buffer_store_dwordx4 {vr(b,4)}, v9, s[24:27], s46 offen offset:{c*64 + gp*32} {OST}')
    stamp_flush(A, 1, 's[28:31]', 's41')
    A.label('L_k3_end')
    A('s_endpgm')

def main():
    A = Asm()
    A.raw(f'; @launch kernel=kf_kernel grid=(256,1,1) block=(512,1,1) lds={KF_LDS}')
    A.raw(f'; @launch kernel=k3_kernel grid=(256,1,1) block=(256,1,1) lds={K3_LDS}')
    A.raw('.amdgcn_target "amdgcn-amd-amdhsa--gfx950"\n.text')
    gen_kf(A, 'kf_kernel'); CURK[0] = 1; gen_k3(A)
    A.raw('L_code_end:\n.p2align 8\n.fill 64, 4, 0xbf800000')
    sg = 102 if (OPT['stamps'] or OPT['da'] >= 0) else 96
    A.raw(kd('kf_kernel', 256, sg)); A.raw(kd('k3_kernel', 256 if OPT['stamps'] else 192, sg))
    sys.stdout.write(A.text())
main()
```

```python
import sys, math, struct
sys.path.insert(0, 'work')
from asmlib import *

OPT = dict(stamps=0, pfc=1, swz=1, psl=4, hot=0, gst=0, tagn=18, order='01234567', grp=3, h1=6, h2=4, qfl=54, qd=5, ost='plain', npre=32, map=0, pfo=1, fmap=1, tlb=0, e0w=0, tagl=3, late9=2, aq=-1, aqb=1, early8=1, aprio=0, wt='9', hpos=60, hf=0, qpoll=56, pads=1, fw=1, who=5, aw=0, aw2=8, swz2=1, tch=0, sep=1, npk=1, il=4, hq=5, hr=2, gsh=8, lead=4, pfq=-1, lprio=1, c2e=1)
for a in sys.argv[1:]:
    k, v = a.split('='); OPT[k] = int(v) if v.lstrip('-').isdigit() else v
OST = '' if OPT['ost'] == 'plain' else OPT['ost']
NAME = 'concat_heads__linear_kernel_hedgehog__sliding_block__prompt_kernel'

def f2u(x): return struct.unpack('<I', struct.pack('<f', x))[0]
LOG2E = math.log2(math.e)
WS_KVG, WS_O, WS_QG = 0x000000, 0x400000, 0x800000
WS_F1, WS_FQ, WS_ACC, WS_EP = 0xA00200, 0xA20000, 0xA40000, 0xA60000
WS_SIZE = 0xA70000
ACCB = 3072
WS_STAMP = 0x1000000
SPIN_MAX = 1 << 16

class Q:
    def __init__(self, A, name, mx): self.A = A; self.q = []; self.name = name; self.mx = mx
    def push(self, tag): self.q.append(tag)
    def wait(self, *tags):
        idx = -1
        for i, t in enumerate(self.q):
            if t in tags: idx = i
        if idx < 0: return
        n = min(len(self.q) - 1 - idx, self.mx)
        self.A(f's_waitcnt {self.name}({n})')
        self.q = self.q[len(self.q) - n:] if n else []
    def all(self):
        self.A(f's_waitcnt {self.name}(0)'); self.q = []

def stamp(A, idx):
    if not OPT['stamps']: return
    if OPT['gst']:
        if idx < 30 or idx > 47: return
        if idx >= 32: idx -= 32
    elif idx >= 32: return
    A(('s_memrealtime' if OPT['stamps'] == 1 else 's_memtime') + ' s[96:97]')
    A('s_waitcnt lgkmcnt(0)')
    A(f'v_writelane_b32 v253, s96, {idx}')
def stamp_flush(A, srd, wavereg):
    if not OPT['stamps']: return
    stamp(A, 31)
    A(f's_lshl_b32 s98, s2, 3\ns_add_u32 s98, s98, {wavereg}\ns_lshl_b32 s98, s98, 7\ns_add_u32 s98, s98, {WS_STAMP}')
    A('v_mbcnt_lo_u32_b32 v252, -1, 0\nv_lshlrev_b32 v252, 2, v252\ns_mov_b32 exec_hi, 0')
    A(f'buffer_store_dword v253, v252, {srd}, s98 offen')

def rowof(r, hi): return (r & 3) + 8 * (r >> 2) + 4 * hi

def dual_exp(A, p, t, npk=False):
    A(f'v_max3_f32 v{t}, v{p}, v{p+1}, v{p+2}\nv_max3_f32 v{t+1}, -v{p}, -v{p+1}, -v{p+2}')
    A(f'v_max3_f32 v{t}, v{t}, v{p+3}, v{p+4}\nv_max3_f32 v{t+1}, v{t+1}, -v{p+3}, -v{p+4}')
    A(f'v_max3_f32 v{t}, v{t}, v{p+5}, v{p+6}\nv_max3_f32 v{t+1}, v{t+1}, -v{p+5}, -v{p+6}')
    A(f'v_max_f32_e64 v{t}, v{t}, v{p+7}\nv_max_f32_e64 v{t+1}, v{t+1}, -v{p+7}')
    A(f'v_permlane32_swap_b32 v{t}, v{t+1}')
    A(f'v_max_f32 v{t}, v{t}, v{t+1}')
    A(f'v_mul_f32 v{t}, s62, v{t}')
    A(f'v_mov_b32 v{t+1}, v{t}')
    A(f'v_permlane32_swap_b32 v{t}, v{t+1}')
    if npk:
        for r in range(8): A(f'v_fma_f32 v{t+2+r}, v{p+r}, s62, -v{t}\nv_fma_f32 v{t+10+r}, -v{p+r}, s62, -v{t+1}')
    else:
        for m in range(4):
            A(f'v_pk_fma_f32 v[{t+2+2*m}:{t+3+2*m}], v[{p+2*m}:{p+2*m+1}], s[62:63], v[{t}:{t+1}] op_sel_hi:[1,1,0] neg_lo:[0,0,1] neg_hi:[0,0,1]')
            A(f'v_pk_fma_f32 v[{t+10+2*m}:{t+11+2*m}], v[{p+2*m}:{p+2*m+1}], s[62:63], v[{t}:{t+1}] op_sel:[0,0,1] neg_lo:[1,0,1] neg_hi:[1,0,1]')
    for r in range(16): A(f'v_exp_f32 v{t+2+r}, v{t+2+r}')

uid = [0]
OOL = []
def poll(A, vdst, voff, soff, issued=False, count=None, off=0, inline=False):
    uid[0] += 1; n = uid[0]
    cmp = f'v_cmp_ne_u64 vcc, s[60:61], v[{vdst}:{vdst+1}]' if count is None else f'v_cmp_ne_u32 vcc, {count}, v{vdst}'
    if not issued: poll_issue(A, vdst, voff, soff, count, off)
    if inline:
        A('s_mov_b32 s3, 0')
        A.label(f'L_pl{n}')
        A(f's_waitcnt vmcnt(0)\n{cmp}\ns_cbranch_vccz L_pd{n}')
        if OPT['psl']: A(f's_sleep {OPT["psl"]}')
        poll_issue(A, vdst, voff, soff, count, off)
        A(f's_add_u32 s3, s3, 1\ns_cmp_lt_u32 s3, {SPIN_MAX}\ns_cbranch_scc1 L_pl{n}')
        A.label(f'L_pd{n}')
        return
    A(f's_waitcnt vmcnt(0)\n{cmp}\ns_cbranch_vccnz L_ps{n}')
    A.label(f'L_pd{n}')
    def slow():
        A.label(f'L_ps{n}'); A.fence()
        A('s_mov_b32 s3, 0')
        A.label(f'L_pl{n}')
        if OPT['psl']: A(f's_sleep {OPT["psl"]}')
        poll_issue(A, vdst, voff, soff, count, off)
        A(f's_add_u32 s3, s3, 1\ns_waitcnt vmcnt(0)\n{cmp}\ns_cbranch_vccz L_pd{n}')
        A(f's_cmp_lt_u32 s3, {SPIN_MAX}\ns_cbranch_scc1 L_pl{n}\ns_branch L_pd{n}')
    OOL.append(slow)
def poll_issue(A, vdst, voff, soff, count=None, off=0):
    o = f' offset:{off}' if off else ''
    if count is None: A(f'buffer_load_dwordx2 v[{vdst}:{vdst+1}], v{voff}, s[52:55], {soff} offen{o} sc1')
    else: A(f'buffer_load_dword v{vdst}, v{voff}, s[52:55], {soff} offen{o} sc1')

def lds_add(A, off, va, vt):
    A(f'v_mov_b32 v{va}, {TAG}\nv_mov_b32 v{vt}, 1\ns_mov_b64 exec, 1\nds_add_u32 v{va}, v{vt} offset:{off}\ns_mov_b64 exec, -1')
def lds_spin(A, off, cnt, va, vt, sleep=True, inline=False):
    uid[0] += 1; n = uid[0]
    rd = f'ds_read_b32 v{vt}, v{va} offset:{off}\ns_waitcnt lgkmcnt(0)\nv_cmp_gt_u32 vcc, {cnt}, v{vt}'
    if inline:
        A(f'v_mov_b32 v{va}, {TAG}\ns_mov_b32 s3, {SPIN_MAX * 4}')
        A.label(f'L_sp{n}')
        if sleep: A('s_sleep 1')
        A(f's_sub_u32 s3, s3, 1\n{rd}\ns_cselect_b64 vcc, 0, vcc\ns_cbranch_vccnz L_sp{n}')
        return
    A(f'v_mov_b32 v{va}, {TAG}\n{rd}\ns_cbranch_vccnz L_ss{n}')
    A.label(f'L_sd{n}')
    def slow():
        A.label(f'L_ss{n}'); A.fence()
        A('s_mov_b32 s3, 0')
        A.label(f'L_sp{n}')
        if sleep: A('s_sleep 1')
        A(f's_add_u32 s3, s3, 1\n{rd}\ns_cbranch_vccz L_sd{n}')
        A(f's_cmp_lt_u32 s3, {SPIN_MAX * 4}\ns_cbranch_scc1 L_sp{n}\ns_branch L_sd{n}')
    OOL.append(slow)

SLOT = 32768
KL, VL, PHI = 65536, 90112, 114688
PHI_PLANE, PHI_HEAD, PHI_WAVE = 1088, 4352, 8704
TAG = PHI + 4 * PHI_WAVE - 64
QX, PQX, WPH = 149504, 153600, 161792
WO1, WO2 = 0, 81920
LDS_SIZE = 163840
C_WQ, C_ATT, C_WOA, C_WQ2, C_PAIR = 16, 20, 24, 28, 32

def srd(A, d, lo, size):
    A(f's_mov_b32 s{d}, s{lo}\ns_mov_b32 s{d+1}, s{lo+1}\ns_mov_b32 s{d+2}, 0x{size:x}\ns_mov_b32 s{d+3}, 0x20000')

def flag(A, soff, tmp=4):
    A(f'v_mov_b32 v{tmp}, s60\nv_mov_b32 v{tmp+1}, s61\nv_mov_b32 v{tmp+2}, s60\nv_mov_b32 v{tmp+3}, s61\ns_waitcnt vmcnt(0)\ns_mov_b64 exec, 0xff')
    A(f'buffer_store_dwordx4 v[{tmp}:{tmp+3}], v8, s[52:55], {soff} offen sc1')
    A('s_mov_b64 exec, -1')

def streams(units, fn):
    out = []
    for u in units:
        L = []
        fn(lambda t: L.extend(x for x in t.split('\n') if x.strip()), u)
        out.append(L)
    return out
def multi(A, units, fn):
    S = streams(units, fn)
    for i in range(max(len(x) for x in S)):
        for L in S:
            if i < len(L): A(L[i])

def halo_setup(A, isA):
    x = 'A' if isA else 'B'
    A(f's_lshl_b32 s24, s40, 4\ns_add_u32 s24, s24, s39\ns_lshl_b32 s25, s24, 8\ns_add_u32 s34, s25, {WS_F1 - 512}')
    A(f's_lshl_b32 s33, s24, 14\ns_lshl_b32 s25, s41, 12\ns_add_u32 s33, s33, s25')
    A(f's_mul_i32 s27, s41, 12288\ns_add_u32 s27, s27, {KL}\nv_lshlrev_b32 v9, 7, v1\ns_mov_b32 s26, {0x3f if isA else 0x0f}')
    A(f's_cmp_lt_u32 s39, 2\ns_cbranch_scc1 L_nb{x}')
    A.label(f'L_nb2{x}')
    def edge():
        A.label(f'L_nb{x}'); A.fence()
        A('v_mov_b32 v56, 0\nv_mov_b32 v57, 0\nv_mov_b32 v58, 0\nv_mov_b32 v59, 0\nv_add_u32 v62, s27, v8')
        for i in range(4): A(f'ds_write_b128 v62, v[56:59] offset:{i*1024}')
        A(f's_and_b32 s26, s26, 0x3c\ns_cmp_eq_u32 s39, 1\ns_cbranch_scc1 L_nb2{x}')
        for i in range(4, 8): A(f'ds_write_b128 v62, v[56:59] offset:{i*1024}')
        A('s_and_b32 s26, s26, 0x30\ns_branch ' + (f'L_nb2{x}' if isA else 'L_post'))
    OOL.append(edge)
def halo_issue(A):
    A('s_mov_b32 exec_lo, s26\ns_mov_b32 exec_hi, 0')
    poll_issue(A, 60, 9, 's34')
    A('s_mov_b64 exec, -1')
def halo_fetch(A, isA):
    x = 'A' if isA else 'B'
    A('s_mov_b32 exec_lo, s26\ns_mov_b32 exec_hi, 0')
    poll(A, 60, 9, 's34', issued=True, inline=True)
    A('s_mov_b64 exec, -1')
    stamp(A, 5)
    for nb in range(3 if isA else 2):
        if nb < 2: A(f's_bitcmp0_b32 s26, {2*nb}\ns_cbranch_scc1 L_sk{nb}{x}')
        A(f's_sub_u32 s25, s33, {(2-nb)*16384}\ns_add_u32 m0, s27, {nb*4096}')
        for i in range(4): A(f'buffer_load_dwordx4 v8, s[52:55], s25 offen offset:{i*1024} sc1 lds')
        if nb < 2: A.label(f'L_sk{nb}{x}')
    stamp(A, 7)

def tr_lane(A, d, t, rowsh, hish):
    A(f'v_bfe_u32 v{d}, v1, 2, 2\nv_lshl_add_u32 v{d}, v11, {hish}, v{d}\nv_lshlrev_b32 v{d}, {rowsh}, v{d}')

def gen(A):
    name = NAME
    WSZ = WS_SIZE if not OPT['stamps'] else 0x2000000
    A.raw(f'.globl {name}\n.p2align 12\n.type {name},@function\n{name}:')
    stamp(A, 30)
    A('s_cmp_ge_u32 s2, 256\ns_cbranch_scc1 L_end')
    A('s_load_dwordx16 s[4:19], s[0:1], 0\ns_load_dwordx4 s[20:23], s[0:1], 64')
    A('v_lshrrev_b32 v2, 6, v0\nv_and_b32 v1, 63, v0')
    A('s_and_b32 s36, s2, 7\ns_lshr_b32 s37, s2, 3')
    A('v_readfirstlane_b32 s41, v2')
    if OPT['map'] != 1:
        A('s_and_b32 s38, s37, 1')
        if OPT['map'] == 0: A('s_and_b32 s39, s36, 3\ns_lshl_b32 s39, s39, 2\ns_bfe_u32 s42, s37, 0x20001\ns_add_u32 s39, s39, s42')
        else: A('s_and_b32 s39, s36, 3\ns_bfe_u32 s42, s37, 0x20001\ns_lshl_b32 s42, s42, 2\ns_add_u32 s39, s39, s42')
        A(('s_lshl_b32 s35, s38, 2\ns_xor_b32 s35, s35, s36\n' if OPT['swz2'] else 's_mov_b32 s35, s36\n') + 's_and_b32 s35, s35, 4\ns_lshr_b32 s42, s37, 3\ns_add_u32 s35, s35, s42')
    else:
        A('s_lshr_b32 s38, s36, 2')
        A('s_and_b32 s39, s36, 1\ns_lshl_b32 s39, s39, 3\ns_and_b32 s42, s37, 7\ns_add_u32 s39, s39, s42')
        A('s_and_b32 s35, s36, 2\ns_lshl_b32 s35, s35, 1\ns_lshr_b32 s42, s37, 3\ns_add_u32 s35, s35, s42')
    A('s_lshl_b32 s40, s35, 1\ns_add_u32 s40, s40, s38')
    A('v_lshlrev_b32 v8, 4, v1\nv_and_b32 v10, 31, v1\nv_lshrrev_b32 v11, 5, v1')
    A('s_mov_b32 s46, 0x200000\ns_mov_b32 s47, 0x20000\ns_mov_b32 s50, 0x180000\ns_mov_b32 s51, 0x20000')
    A('s_cmp_lt_u32 s41, 4\ns_cbranch_scc1 L_cons')
    A('s_sub_u32 s43, s41, 4')
    A('v_lshrrev_b32 v3, 3, v1\nv_and_b32 v4, 7, v1\nv_lshrrev_b32 v5, 4, v1')
    A('v_xor_b32 v6, v4, v5\nv_lshlrev_b32 v6, 4, v6\nv_lshl_add_u32 v6, v3, 10, v6')
    A('s_lshl_b32 s24, s39, 17\ns_lshl_b32 s25, s43, 15\ns_add_u32 s24, s24, s25')
    A('v_add_u32 v16, s24, v6\nv_xor_b32 v17, 64, v16\nv_add_u32 v17, 8192, v17\nv_add_u32 v18, 16384, v16\nv_add_u32 v19, 16384, v17')
    A('v_and_b32 v5, 1, v5\nv_lshlrev_b32 v5, 2, v5\nv_xor_b32 v4, v4, v5\nv_mul_u32_u24 v3, 3072, v3\nv_lshl_add_u32 v3, v4, 4, v3')
    A('s_mul_i32 s24, s43, 49152\ns_lshl_b32 s25, s35, 7\ns_add_u32 s24, s24, s25')
    A('v_add_u32 v20, s24, v3\nv_add_u32 v21, 24576, v20')
    A(f's_lshl_b32 s30, s43, 12\ns_lshl_b32 s31, s43, 11')
    A(f's_lshr_b32 s26, s39, {2 if OPT["map"] == 2 else 0}\ns_add_u32 s26, s26, s35\ns_and_b32 s26, s26, {OPT["grp"]}\ns_lshl_b32 s26, s26, {OPT["gsh"]}')
    A('s_cmp_eq_u32 s38, 0')
    A('s_waitcnt lgkmcnt(0)')
    A('s_cselect_b32 s44, s12, s4\ns_cselect_b32 s45, s13, s5\ns_cselect_b32 s48, s14, s6\ns_cselect_b32 s49, s15, s7')
    stamp(A, 0)
    ORD = [int(c) for c in str(OPT['order']).zfill(8)]
    vq = Q(A, 'vmcnt', 63)
    def wsoff(st):
        A(f's_xor_b32 s32, s26, {st*128}\ns_mul_i32 s33, s32, 1536')
    def issue(h):
        s, half = divmod(h, 2); slot = s % 4
        if s >= 10: return
        if half == 0 and s == OPT['pfq']:
            if OPT['map'] == 1:
                A('s_and_b32 s32, s39, 7\ns_lshl_b32 s32, s32, 2\ns_add_u32 s32, s32, s43\ns_mul_i32 s32, s32, 49152\ns_mov_b64 exec, 0xffff')
            else:
                A('s_bfe_u32 s32, s37, 0x20001\ns_lshl_b32 s32, s32, 2\ns_add_u32 s32, s32, s43\ns_mul_i32 s32, s32, 98304\ns_mov_b32 exec_hi, 0')
            A('s_lshl_b32 s33, s35, 7\ns_add_u32 s32, s32, s33\nv_mul_u32_u24 v22, 3072, v1')
            A('buffer_load_dword v23, v22, s[48:51], s32 offen'); vq.push('pf')
            if OPT['pfo']:
                A('s_bitcmp0_b32 s37, 0\ns_cselect_b32 s56, s10, s16\ns_cselect_b32 s57, s11, s17\ns_mov_b32 s58, 0x80000\ns_mov_b32 s59, 0x20000')
                A('s_lshr_b32 s32, s37, 1\ns_lshl_b32 s32, s32, 2\ns_add_u32 s32, s32, s43\ns_lshl_b32 s32, s32, 13\nv_lshlrev_b32 v22, 10, v1\ns_mov_b64 exec, 0xff')
                A('buffer_load_dword v23, v22, s[56:59], s32 offen offset:384'); vq.push('pf')
            A('s_mov_b64 exec, -1')
        if s >= 8:
            for p in range(2*half, 2*half + 2):
                wsoff(ORD[4*(s-8) + p])
                for i in range(2):
                    A(f's_add_u32 m0, s31, {slot*SLOT + p*8192 + i*1024}')
                    A(f'buffer_load_dwordx4 v{20+i}, s[48:51], s33 offen lds'); vq.push(('st', s))
            return
        wsoff(ORD[s])
        if half == 0:
            for i in range(4):
                A(f's_add_u32 m0, s30, {slot*SLOT + i*1024}')
                A(f'buffer_load_dwordx4 v{16+i}, s[44:47], s32 offen lds'); vq.push(('st', s))
            return
        for seg in (1, 2):
            for i in range(2):
                A(f's_add_u32 m0, s31, {slot*SLOT + 8192 + seg*7168 + i*1024}')
                A(f'buffer_load_dwordx4 v{20+i}, s[48:51], s33 offen offset:{seg*1024} lds'); vq.push(('st', s))
    def hot():
        if not OPT['hot']: return
        if OPT['map'] == 1:
            A('s_bitcmp1_b32 s36, 1\ns_cbranch_scc1 L_nohotw')
            A('s_lshl_b32 s68, s37, 10\ns_mul_i32 s69, s43, 393216\ns_add_u32 s68, s68, s69\ns_add_u32 s68, s68, 384\nv_lshlrev_b32 v22, 15, v1')
            A('s_mov_b64 exec, 0xfff')
            A('buffer_load_dword v23, v22, s[48:51], s68 offen')
            A.label('L_nohotw')
            A('s_and_b32 s68, s36, 1\ns_lshl_b32 s68, s68, 20\ns_lshl_b32 s69, s37, 15\ns_add_u32 s68, s68, s69\ns_lshl_b32 s69, s43, 13\ns_add_u32 s68, s68, s69\ns_add_u32 s68, s68, 384\nv_lshlrev_b32 v22, 10, v1')
            A('s_mov_b64 exec, 0xff')
            A('buffer_load_dword v23, v22, s[44:47], s68 offen')
            A('s_mov_b64 exec, -1')
            return
        A('s_cmp_lt_u32 s36, 4\ns_cselect_b32 s64, s14, s6\ns_cselect_b32 s65, s15, s7\ns_mov_b32 s66, 0x180000\ns_mov_b32 s67, 0x20000')
        A('s_lshl_b32 s68, s37, 10\ns_mul_i32 s69, s43, 393216\ns_add_u32 s68, s68, s69\ns_add_u32 s68, s68, 384\nv_lshlrev_b32 v22, 15, v1')
        A('s_mov_b64 exec, 0xfff')
        A('buffer_load_dword v23, v22, s[64:67], s68 offen'); vq.push('pf')
        A('s_lshl_b32 s68, s39, 17\ns_lshr_b32 s69, s37, 3\ns_lshl_b32 s69, s69, 15\ns_add_u32 s68, s68, s69\ns_lshl_b32 s69, s43, 13\ns_add_u32 s68, s68, s69\ns_add_u32 s68, s68, 384\nv_lshlrev_b32 v22, 10, v1')
        A('s_mov_b64 exec, 0xff')
        A('buffer_load_dword v23, v22, s[44:47], s68 offen'); vq.push('pf')
        A('s_mov_b64 exec, -1')
    def wq_touch():
        A('s_cmp_eq_u32 s38, 0\ns_cbranch_scc1 L_noaq')
        if OPT['aqb']:
            A('s_and_b32 s32, s36, 4\ns_lshl_b32 s32, s32, 7')
            A('s_lshr_b32 s33, s37, 1\ns_lshl_b32 s33, s33, 2\ns_add_u32 s33, s33, s43\ns_mul_i32 s33, s33, 24576\ns_add_u32 s32, s32, s33\ns_mov_b32 exec_hi, 0')
            A('v_lshrrev_b32 v22, 2, v1\nv_mul_u32_u24 v22, 3072, v22\nv_and_b32 v23, 3, v1\nv_lshl_add_u32 v22, v23, 7, v22\nv_add_u32 v22, s32, v22')
            A('global_load_dword v23, v22, s[14:15]\ns_mov_b64 exec, -1')
        else:
            A('s_bitcmp0_b32 s37, 4\ns_cselect_b32 s24, s14, s6\ns_cselect_b32 s25, s15, s7')
            A(('s_lshr_b32 s32, s37, 2\ns_xor_b32 s32, s32, s36\n' if OPT['swz2'] else 's_mov_b32 s32, s36\n') + 's_and_b32 s32, s32, 4\ns_lshl_b32 s32, s32, 7')
            A('s_bfe_u32 s33, s37, 0x30001\ns_lshl_b32 s33, s33, 2\ns_add_u32 s33, s33, s43\ns_mul_i32 s33, s33, 49152\ns_add_u32 s32, s32, s33')
            A('v_lshrrev_b32 v22, 2, v1\nv_mul_u32_u24 v22, 3072, v22\nv_and_b32 v23, 3, v1\nv_lshl_add_u32 v22, v23, 7, v22\nv_add_u32 v22, s32, v22')
            A('global_load_dword v23, v22, s[24:25]')
        A.label('L_noaq')
    hot()
    if OPT['aq'] == -2: wq_touch()
    for h in range(4): issue(h)
    if OPT['aq'] == -3: wq_touch()
    stamp(A, 1)
    srd(A, 52, 22, WSZ)
    common_consts(A)
    A('v_bfe_u32 v12, v1, 1, 3\nv_xor_b32 v12, v12, v11\nv_lshlrev_b32 v12, 4, v12')
    A('v_lshl_add_u32 v13, v10, 7, s30')
    for ks in range(4): A(f'v_xor_b32 v14, {ks*32}, v12\nv_add_u32 v{2+ks}, v13, v14')
    for ks in range(4): A(f'v_add_u32 v{12+ks}, 0x10000, v{2+ks}')
    tr_lane(A, 6, 7, 7, 3)
    A('v_bfe_u32 v7, v1, 3, 1\nv_xor_b32 v7, s38, v7\nv_lshl_add_u32 v6, v7, 6, v6')
    A('v_bfe_u32 v7, v1, 4, 1\nv_lshl_add_u32 v6, v7, 5, v6\nv_and_b32 v7, 3, v1\nv_lshl_add_u32 v7, v7, 3, v6\nv_xor_b32 v6, 64, v7')
    for h in range(4, OPT['lead']): issue(h)
    XF = 64
    for s in range(8):
        vq.wait(('st', s))
        A('s_barrier')
        stamp(A, 32 + s)
        for ks in range(4):
            A(f'ds_read_b128 {vr(XF + 16*s + 4*ks, 4)}, v{(2 if s % 4 < 2 else 12) + ks} offset:{(s & 1)*SLOT}')
        A('s_waitcnt lgkmcnt(4)')
        if s == OPT['tagl']:
            srd(A, 56, 20, 0x100)
            A('v_mov_b32 v22, 0\nbuffer_load_dwordx3 v[24:26], v22, s[56:59], 0 offen sc1'); vq.push('tag')
        hs_ = [2*s + OPT['lead'], 2*s + OPT['lead'] + 1]
        if OPT['early8']:
            hs_ = [h for h in hs_ if h < 16 or h >= 18] + ([16, 17] if s == 5 else [])
        for h in hs_:
            if h < 20 - OPT['late9']: issue(h)
        if s == OPT['aq']: wq_touch()
        if s == OPT['who']:
            A('s_bitcmp0_b32 s37, 0\ns_cselect_b32 s24, s10, s16\ns_cselect_b32 s25, s11, s17')
            A('s_lshr_b32 s32, s37, 1\ns_lshl_b32 s32, s32, 2\ns_add_u32 s32, s32, s43\ns_lshl_b32 s32, s32, 13\nv_lshlrev_b32 v22, 10, v1\nv_add_u32 v22, s32, v22\ns_mov_b64 exec, 0xff')
            A('global_load_dword v9, v22, s[24:25] offset:384'); vq.push('pf')
            A('s_mov_b64 exec, -1')
        WT = [int(c) for c in str(OPT['wt']) if c.isdigit() and c != '9']
        if s in WT:
            nl = 64 // len(WT); m = (1 << nl) - 1
            A('s_bitcmp0_b32 s37, 0\ns_cselect_b32 s24, s10, s16\ns_cselect_b32 s25, s11, s17')
            A(f's_lshr_b32 s32, s37, 1\ns_lshl_b32 s32, s32, 2\ns_add_u32 s32, s32, s43\ns_lshl_b32 s32, s32, 13\ns_add_u32 s32, s32, {WT.index(s)*nl*128}\nv_lshlrev_b32 v22, 7, v1\nv_add_u32 v22, s32, v22')
            if nl < 64: A(f's_mov_b32 exec_lo, 0x{m & 0xffffffff:x}\ns_mov_b32 exec_hi, 0')
            A('global_load_dword v9, v22, s[24:25]'); vq.push('pf')
            if nl < 64: A('s_mov_b64 exec, -1')
        if s == 6:
            vq.wait('tag')
            A('s_mov_b32 s3, 0')
            A.label('L_tg')
            A('v_readfirstlane_b32 s60, v24\nv_readfirstlane_b32 s61, v25\nv_readfirstlane_b32 s24, v26')
            A('s_cmp_lg_u64 s[60:61], 0\ns_cselect_b32 s24, s24, 0\ns_cmp_lg_u32 s24, 32\ns_cbranch_scc1 L_tgw')
            A.label('L_tgd')
            A(f'v_mov_b32 v22, {TAG}\nds_write_b64 v22, v[24:25]')
    if OPT['e0w']: vq.wait(('st', 8))
    A('s_waitcnt lgkmcnt(0)\ns_barrier')
    stamp(A, 40)
    for h in range(20 - OPT['late9'], 20): issue(h)
    def wo_touch(k):
        if not OPT['aw']: return
        A(f's_cmp_eq_u32 s38, 0\ns_cbranch_scc1 L_noaw{k}')
        A('s_lshr_b32 s24, s37, 1\ns_lshl_b32 s24, s24, 2\ns_add_u32 s24, s24, s43\ns_lshl_b32 s24, s24, 13\nv_lshlrev_b32 v2, 7, v1\nv_add_u32 v2, s24, v2')
        A(f'global_load_dword v3, v2, {"s[10:11]" if k == 0 else "s[16:17]"}')
        A.label(f'L_noaw{k}')
    A('s_xor_b32 s24, s40, 1\ns_lshl_b32 s24, s24, 4\ns_add_u32 s24, s24, s39')
    A(f's_lshl_b32 s32, s24, 13\ns_lshl_b32 s25, s43, 10\ns_add_u32 s32, s32, s25\ns_add_u32 s32, s32, {WS_QG}\ns_add_u32 s33, s32, 4096')
    A(f's_lshl_b32 s34, s24, 9\ns_lshl_b32 s25, s43, 7\ns_add_u32 s34, s34, s25\ns_add_u32 s34, s34, {WS_FQ}')
    A(f's_cmp_eq_u32 s38, 0\ns_cselect_b32 s26, 0x{f2u(0.25*LOG2E):x}, 1.0')
    if not OPT['e0w']:
        vq.wait(('st', 8))
        lds_add(A, C_WQ, 22, 23)
        lds_spin(A, C_WQ, 4, 22, 23, sleep=False, inline=True)
    stamp(A, 42); stamp(A, 2)
    if OPT['lprio']:
        if not OPT['aprio']: A('s_cmp_eq_u32 s38, 1\ns_cbranch_scc1 L_noprio')
        A(f's_setprio {OPT["lprio"]}')
        A.label('L_noprio')
    lq = Q(A, 'lgkmcnt', 15)
    NR = 6; WF = 192; QD = OPT['qd']
    def qread(m):
        n = m % 32; f = WF + 4 * (m % NR)
        for rd in range(2):
            A(f'ds_read_b64_tr_b16 v[{f+2*rd}:{f+2*rd+1}], v{6 + m//32} offset:{n*2048 + rd*512}'); lq.push(('q', m))
    for m in range(QD): qread(m)
    ep = [f'v_mul_f32 v{32+r}, s26, v{32+r}' for r in range(16)] + [f'v_cvt_pk_bf16_f32 v{24+r}, v{32+2*r}, v{33+2*r}' for r in range(8)]
    ep += ['buffer_store_dwordx4 v[24:27], v8, s[52:55], s32 offen sc1', 'buffer_store_dwordx4 v[28:31], v8, s[52:55], s33 offen sc1']
    for m in range(64):
        lq.wait(('q', m))
        acc = 32 + 16 * (m // 32)
        A(f'v_mfma_f32_32x32x16_bf16 {vr(acc,16)}, {vr(WF + 4*(m % NR),4)}, {vr(XF + 4*(m % 32),4)}, {vr(acc,16) if m % 32 else "0"}')
        if m == 4:
            vq.wait(('st', 9))
            lds_add(A, C_WQ2, 22, 23); lq.push('cnt')
            wo_touch(0)
        if m == OPT['aw2']: wo_touch(1)
        if m + QD == 16:
            lds_spin(A, C_WQ2, 4, 22, 23, sleep=False, inline=True); lq.q = []
            stamp(A, 41)
        if m + QD < 64: qread(m + QD)
        if m >= 33:
            for _ in range(5):
                if ep: A(ep.pop(0))
        if m == OPT['qfl']:
            flag(A, 's34', tmp=32)
            stamp(A, 3)
        if m == OPT['qpoll']:
            A('s_xor_b32 s27, s34, 0x2000\nv_mov_b32 v9, 0')
            poll_issue(A, 2, 9, 's27')
    stamp(A, 4)
    if OPT['lprio']: A('s_setprio 0')
    A('s_cmp_eq_u32 s38, 1\ns_cbranch_scc1 L_qa')
    for r in range(16): A(f'v_mul_f32 v{48+r}, s26, v{48+r}')
    for r in range(8): A(f'v_cvt_pk_bf16_f32 v{24+r}, v{48+2*r}, v{49+2*r}')
    A(f's_lshl_b32 s24, s43, 10\ns_add_u32 s24, s24, {QX}\nv_add_u32 v22, s24, v8')
    A('ds_write_b128 v22, v[24:27]')
    A('s_branch L_post')
    A.label('L_qa'); A.fence(); A.raw(';PAD')
    poll(A, 2, 9, 's27', issued=True, inline=True)
    A(f's_lshl_b32 s25, s43, 10\ns_add_u32 m0, s25, {QX}\ns_xor_b32 s32, s32, 0x20000\ns_xor_b32 s33, s33, 0x20000')
    A('buffer_load_dwordx4 v8, s[52:55], s32 offen sc1 lds')
    A('buffer_load_dwordx4 v[28:31], v8, s[52:55], s33 offen sc1')
    stamp(A, 6)
    tr_lane(A, 15, 14, 5, 2)
    A(f'v_and_b32 v14, 3, v1\nv_lshl_add_u32 v15, v14, 3, v15\nv_add_u32 v15, {WPH + 1024}, v15')
    for hs in range(2):
        for rd in range(2): A(f'ds_read_b64_tr_b16 v[{32+4*hs+2*rd}:{33+4*hs+2*rd}], v15 offset:{hs*512 + rd*256}')
    for r in range(8): A(f'v_cvt_pk_bf16_f32 v{40+r}, v{48+2*r}, v{49+2*r}')
    A('s_waitcnt lgkmcnt(0)')
    for hs in range(2): A(f'v_mfma_f32_32x32x16_bf16 {vr(64+28*hs,16)}, {vr(32+4*hs,4)}, {vr(40+4*hs,4)}, 0')
    A(f's_lshl_b32 s24, s43, 11\ns_add_u32 s24, s24, {PQX}\nv_add_u32 v15, s24, v8')
    def phiq(E, hs):
        p = 64 + 28 * hs; t = p + 8
        dual_exp(E, p, t)
        for m in range(8): E(f'v_cvt_pk_bf16_f32 v{(40 if hs == 0 else 48)+m}, v{t+2+2*m}, v{t+3+2*m}')
    multi(A, [0, 1], phiq)
    A('ds_write_b128 v15, v[40:43]\nds_write_b128 v15, v[44:47] offset:1024')
    stamp(A, 7)
    A('s_branch L_post')
    A.label('L_cons'); A.fence()
    A('s_lshr_b32 s42, s41, 1\ns_and_b32 s43, s41, 1')
    A('v_bfe_u32 v12, v1, 1, 3\nv_xor_b32 v12, v12, v11\nv_lshlrev_b32 v12, 4, v12')
    A('s_lshl_b32 s24, s42, 13\nv_lshl_add_u32 v13, v10, 7, s24')
    for ks in range(4): A(f'v_xor_b32 v14, {ks*32}, v12\nv_add_u32 v{2+ks}, v13, v14')
    for ks in range(4): A(f'v_add_u32 v{48+ks}, 0x10000, v{2+ks}')
    tr_lane(A, 12, 13, 7, 3)
    A('v_bfe_u32 v13, v1, 3, 1\nv_xor_b32 v13, s43, v13\nv_lshl_add_u32 v12, v13, 6, v12')
    A('v_bfe_u32 v13, v1, 4, 1\nv_lshl_add_u32 v12, v13, 5, v12\nv_and_b32 v13, 3, v1\nv_lshl_add_u32 v12, v13, 3, v12')
    A(f'v_add_u32 v6, 16384, v12\nv_add_u32 v7, {16384 + 65536}, v12')
    A('s_waitcnt lgkmcnt(0)')
    srd(A, 52, 22, WSZ)
    srd(A, 56, 20, 0x100)
    A('v_mov_b32 v14, 0')
    A('s_cmp_lg_u32 s41, 3\ns_cbranch_scc1 L_notag\ns_cmp_lg_u32 s2, 0\ns_cbranch_scc1 L_notag')
    A(f's_mov_b32 s24, {WS_EP}\ns_mov_b64 exec, 1')
    A('buffer_load_dwordx2 v[16:17], v14, s[52:55], s24 offen sc1')
    A('s_waitcnt vmcnt(0)')
    A('v_readfirstlane_b32 s28, v16\nv_readfirstlane_b32 s29, v17')
    A('s_add_u32 s28, s28, 1\ns_addc_u32 s29, s29, 0\ns_cmp_eq_u64 s[28:29], 0\ns_cselect_b32 s28, 1, s28')
    A('v_mov_b32 v16, s28\nv_mov_b32 v17, s29')
    A('buffer_store_dwordx2 v[16:17], v14, s[56:59], 0 offen sc1')
    A('buffer_store_dwordx2 v[16:17], v14, s[52:55], s24 offen sc1')
    A('s_mov_b64 exec, -1')
    A.label('L_notag'); A.fence()
    A('s_cmp_lg_u32 s41, 1\ns_cbranch_scc1 L_nozero\ns_cmp_ge_u32 s2, 32\ns_cbranch_scc1 L_nozero')
    A(f's_mul_i32 s24, s2, {ACCB}\ns_add_u32 s24, s24, {WS_ACC}')
    for r in range(4): A(f'v_mov_b32 v{16+r}, 0')
    A('buffer_store_dwordx4 v[16:19], v8, s[52:55], s24 offen sc1\nbuffer_store_dwordx4 v[16:19], v8, s[52:55], s24 offen offset:1024 sc1')
    for r in range(4): A(f'v_mov_b32 v{20+r}, 0')
    A('s_mov_b64 exec, 0xff00')
    for r in range(4): A(f'v_mov_b32 v{20+r}, 1.0')
    A('s_mov_b64 exec, -1')
    A('buffer_store_dwordx4 v[20:23], v8, s[52:55], s24 offen offset:2048 sc1')
    A('v_mov_b32 v15, 1\ns_waitcnt vmcnt(0)\ns_mov_b64 exec, 1')
    A('buffer_atomic_add v15, v14, s[56:59], 0 offen offset:8')
    A('s_mov_b64 exec, -1')
    A.label('L_nozero'); A.fence()
    if OPT['tlb']:
        A('s_cmp_lg_u32 s41, 2\ns_cbranch_scc1 L_notlb')
        if OPT['tlb'] == 1:
            for i in range(6): A(f's_add_u32 s24, s22, 0x{i*0x200000:x}\ns_addc_u32 s25, s23, 0\ns_load_dword s26, s[24:25], 0')
            for i in range(2): A(f's_add_u32 s24, s18, 0x{i*0x200000:x}\ns_addc_u32 s25, s19, 0\ns_load_dword s26, s[24:25], 0')
            A('s_load_dword s26, s[10:11], 0\ns_load_dword s26, s[16:17], 0')
        else:
            A('v_lshlrev_b32 v13, 20, v1\ns_mov_b64 exec, 0x7ff\nbuffer_load_dword v63, v13, s[52:55], 0 offen')
            A('s_mov_b64 exec, 0xf\nglobal_load_dword v63, v13, s[18:19]\ns_mov_b64 exec, 1\nglobal_load_dword v63, v13, s[10:11]\nglobal_load_dword v63, v13, s[16:17]\ns_mov_b64 exec, -1')
        A.label('L_notlb'); A.fence()
    A('s_cmp_lg_u32 s41, 0\ns_cbranch_scc1 L_w4')
    if OPT['pfc']:
        A('s_getpc_b64 s[24:25]')
        A.label('L_pc0')
        A(f's_add_u32 s24, s24, {name}-L_pc0\ns_addc_u32 s25, s25, -1')
        A(f's_lshl_b32 s30, s37, 7\nv_lshlrev_b32 v13, 12, v1\nv_add_u32 v13, s30, v13\nv_min_u32 v13, L_code_end-{name}-4, v13\ns_mov_b64 exec, 0x1ff')
        A('global_load_dword v63, v13, s[24:25]')
        A('s_mov_b64 exec, -1')
    srd(A, 28, 8, 0x4000)
    A(f's_lshl_b32 s24, s35, 11\ns_mov_b32 m0, {WPH}')
    for i in range(2): A(f'buffer_load_dwordx4 v8, s[28:31], s24 offen offset:{i*1024} lds')
    A(f'v_mov_b32 v12, {TAG}\nv_lshl_add_u32 v12, v1, 2, v12\ns_mov_b64 exec, 0xffff\nds_write_b32 v12, v14\ns_mov_b64 exec, -1')
    A.label('L_w4'); A.fence()
    stamp(A, 0)
    common_consts(A)
    for r in range(0, 32, 2): A(f'v_mov_b64 v[{176+r}:{177+r}], v[{ONES}:{ONES+1}]')
    A('s_lshl_b32 s24, s35, 1\ns_add_u32 s24, s24, s43\ns_lshl_b32 s24, s24, 4\ns_add_u32 s24, s24, s39')
    A('s_lshl_b32 s25, s42, 11\ns_lshl_b32 s32, s24, 14\ns_add_u32 s32, s32, s25')
    A(f's_lshl_b32 s34, s24, 8\ns_lshl_b32 s24, s42, 7\ns_add_u32 s34, s34, s24\ns_add_u32 s34, s34, {WS_F1}')
    A('v_and_b32 v12, 15, v1\nv_lshlrev_b32 v12, 4, v12\nv_lshl_add_u32 v12, v11, 8, v12\nv_bfe_u32 v13, v1, 4, 1')
    A(f'v_mov_b32 v15, {TAG}')
    if OPT['fw']:
        A(f's_xor_b32 s24, s40, 1\ns_lshl_b32 s24, s24, 4\ns_add_u32 s24, s24, s39\ns_lshl_b32 s24, s24, 9\ns_lshl_b32 s25, s41, 7\ns_add_u32 s24, s24, s25\ns_add_u32 s24, s24, {WS_FQ}')
        for r in range(4): A(f'v_mov_b32 v{56+r}, 0')
        A('s_mov_b64 exec, 0xff')
        A('buffer_store_dwordx4 v[56:59], v8, s[52:55], s24 offen sc1')
        A('s_cmp_eq_u32 s38, 1\ns_cbranch_scc1 L_nofw')
        A('buffer_store_dwordx4 v[56:59], v8, s[52:55], s34 offen sc1')
        A.label('L_nofw')
        A('s_mov_b64 exec, -1')
    ACC = {(1, 0): 96, (1, 1): 112, (2, 0): 128, (2, 1): 144}
    FS = [16, 32, 64]
    lq = Q(A, 'lgkmcnt', 15)
    def reads(n):
        s, ks = divmod(n, 4); slot = s % 4; f = FS[n % 3]
        xa, wa = (2, 6) if slot < 2 else (48, 7)
        so = (slot & 1) * SLOT
        def rx(tt): return (f'ds_read_b128 v[{f+4*tt}:{f+4*tt+3}], v{xa+ks} offset:{so + tt*4096}', (n, 'x', tt))
        def rw(seg, rd): return (f'ds_read_b64_tr_b16 v[{f+4+4*seg+2*rd}:{f+5+4*seg+2*rd}], v{wa} offset:{so + (seg-1)*8192 + ks*2048 + rd*512}', (n, 'w', seg))
        return [rx(0), rw(1, 0), rw(1, 1), rx(1), rw(2, 0), rw(2, 1)]
    if OPT['pads']:
        srd(A, 44, 10, 0x80000); srd(A, 48, 16, 0x80000)
        A('s_mov_b64 exec, 0')
        for w in range(3): A(f's_cmp_eq_u32 s41, {w}\ns_cbranch_scc1 L_chain{w}')
        A('s_branch L_chain3')
        A.label('L_padret')
        A('s_mov_b64 exec, -1')
        stamp(A, 21)
    A('s_waitcnt lgkmcnt(0)\ns_barrier')
    stamp(A, 1)
    for n in range(2):
        for t, tag in reads(n): A(t); lq.push(tag)
    for n in range(32):
        f = FS[n % 3]
        nxt = reads(n + 2) if n + 2 < 32 else []
        newstage = (n % 4 == 2)
        k = 0
        for mi, (seg, tt) in enumerate([(1, 0), (1, 1), (2, 0), (2, 1)]):
            if newstage and mi == 0: lq.all()
            else: lq.wait((n, 'x', tt), (n, 'w', seg))
            acc = ACC[(seg, tt)]
            X = vr(f + 4*tt, 4); W = vr(f + 4 + 4*seg, 4)
            a, b = (W, X) if seg < 2 else (X, W)
            c = vr(acc, 16) if n > 0 else '0'
            A(f'v_mfma_f32_32x32x16_bf16 {vr(acc,16)}, {a}, {b}, {c}')
            if newstage and mi == 0: A('s_barrier')
            for _ in range(2):
                if k < len(nxt):
                    t, tag = nxt[k]; A(t); lq.push(tag); k += 1
        if OPT['gst'] == 2 and n >= 16: stamp(A, 16 + n); lq.q = []
        if n == 20: A('s_waitcnt vmcnt(0)')
        if n == 30: A('ds_read_b64 v[60:61], v15')
    stamp(A, 2)
    A('s_waitcnt lgkmcnt(0)\nv_readfirstlane_b32 s60, v60\nv_readfirstlane_b32 s61, v61')
    A('s_cmp_eq_u32 s38, 1\ns_cbranch_scc1 L_epA')
    A('s_add_u32 s24, s32, 4096\ns_add_u32 s25, s32, 8192\nv_lshl_add_u32 v9, v13, 12, v12')
    for tt in range(2):
        for m in range(8): A(f'v_cvt_pk_bf16_f32 v{160+8*tt+m}, v{ACC[(1,tt)]+2*m}, v{ACC[(1,tt)]+2*m+1}')
        A(f'buffer_store_dwordx4 v[{160+8*tt}:{163+8*tt}], v8, s[52:55], s32 offen offset:{tt*1024} sc1')
        A(f'buffer_store_dwordx4 v[{164+8*tt}:{167+8*tt}], v8, s[52:55], s24 offen offset:{tt*1024} sc1')
    for tt in range(2):
        for m in range(8): A(f'v_cvt_pk_bf16_f32 v{176+8*tt+m}, v{ACC[(2,tt)]+2*m}, v{ACC[(2,tt)]+2*m+1}')
        for blk in range(2): A(f'buffer_store_dwordx4 v[{176+8*tt+4*blk}:{179+8*tt+4*blk}], v9, s[52:55], s25 offen offset:{tt*1024+blk*512} sc1')
    A('s_cmp_eq_u32 s43, 1\ns_cbranch_scc1 L_epB1')
    A(f's_lshl_b32 s25, s42, 11\nv_mul_u32_u24 v13, 12288, v13\nv_add_u32 v12, v12, v13\ns_add_u32 s24, s25, {VL + 8192}\nv_add_u32 v12, s24, v12')
    A(f's_add_u32 s24, s25, {KL + 8192}\nv_add_u32 v13, s24, v8')
    for tt in range(2):
        for e in range(2):
            A(f'ds_write_b128 v13, v[{160+8*tt+4*e}:{163+8*tt+4*e}] offset:{e*12288 + tt*1024}')
            A(f'ds_write_b128 v12, v[{176+8*tt+4*e}:{179+8*tt+4*e}] offset:{tt*1024 + e*512}')
    A.label('L_epB1'); A.fence()
    stamp(A, 3)
    flag(A, 's34')
    if OPT['tch']:
        A('v_lshrrev_b32 v2, 4, v1\nv_lshlrev_b32 v2, 12, v2\nv_and_b32 v3, 15, v1\nv_lshl_add_u32 v2, v3, 7, v2')
        A('buffer_load_dword v3, v2, s[52:55], s32 offen sc1')
    stamp(A, 4)
    halo_setup(A, False); halo_issue(A); halo_fetch(A, False)
    A('s_branch L_post')
    A.label('L_epA'); A.fence(); A.raw(';PAD')
    tr_lane(A, 9, 13, 5, 2)
    A(f'v_and_b32 v13, 3, v1\nv_lshl_add_u32 v9, v13, 3, v9\ns_lshl_b32 s24, s43, 10\ns_add_u32 s24, s24, {WPH}\nv_add_u32 v9, s24, v9')
    for hs in range(2):
        for rd in range(2): A(f'ds_read_b64_tr_b16 v[{52+4*hs+2*rd}:{53+4*hs+2*rd}], v9 offset:{hs*512 + rd*256}')
    for tt in range(2):
        for m in range(8): A(f'v_cvt_pk_bf16_f32 v{16+8*tt+m}, v{ACC[(1,tt)]+2*m}, v{ACC[(1,tt)]+2*m+1}')
    for hs in range(2):
        A('s_mov_b64 exec, s[28:29]' if hs == 0 else 's_not_b64 exec, s[28:29]')
        for tt in range(2):
            for m in range(8): A(f'v_cvt_pk_bf16_f32 v{176+16*hs+8*tt+m}, v{ACC[(2,tt)]+2*m}, v{ACC[(2,tt)]+2*m+1}')
    A('s_mov_b64 exec, -1')
    units = [(0, 0), (0, 1), (1, 0), (1, 1)]
    P = {u: 64 + 28 * i for i, u in enumerate(units)}
    A('s_waitcnt lgkmcnt(0)')
    for (tt, hs) in units: A(f'v_mfma_f32_32x32x16_bf16 {vr(P[(tt,hs)],16)}, {vr(52+4*hs,4)}, {vr(16+8*tt+4*hs,4)}, 0')
    A(f's_mul_i32 s30, s41, {PHI_WAVE}\ns_add_u32 s30, s30, {PHI}')
    A(f'v_mul_u32_u24 v14, {PHI_PLANE}, v11\nv_lshl_add_u32 v14, v10, 4, v14\nv_add_u32 v14, s30, v14')
    A('v_bfe_u32 v2, v1, 4, 1\nv_lshlrev_b32 v2, 1, v2\nv_and_b32 v3, 1, v1\nv_add_u32 v2, v2, v3')
    A(f'v_mul_u32_u24 v2, {PHI_PLANE}, v2')
    A('v_bfe_u32 v3, v1, 2, 2\nv_lshl_add_u32 v3, v11, 2, v3\nv_lshl_add_u32 v2, v3, 4, v2\nv_bfe_u32 v3, v1, 1, 1\nv_lshl_add_u32 v2, v3, 3, v2')
    A('v_add_u32 v2, s30, v2')
    def phik(E, u):
        p = P[u]; t = p + 8; tt, hs = u
        dual_exp(E, p, t, OPT['npk'])
        if OPT['npk']:
            E(f'v_add_f32 v{t}, v{t+2}, v{t+3}\nv_add_f32 v{t+1}, v{t+10}, v{t+11}')
            for r in range(2, 8): E(f'v_add_f32 v{t}, v{t}, v{t+2+r}\nv_add_f32 v{t+1}, v{t+1}, v{t+10+r}')
        else:
            E(f'v_pk_add_f32 v[{t}:{t+1}], v[{t+2}:{t+3}], v[{t+4}:{t+5}]\nv_pk_add_f32 v[{t+18}:{t+19}], v[{t+10}:{t+11}], v[{t+12}:{t+13}]')
            for m in (6, 8):
                E(f'v_pk_add_f32 v[{t}:{t+1}], v[{t}:{t+1}], v[{t+m}:{t+m+1}]\nv_pk_add_f32 v[{t+18}:{t+19}], v[{t+18}:{t+19}], v[{t+m+8}:{t+m+9}]')
            E(f'v_add_f32 v{t}, v{t}, v{t+1}\nv_add_f32 v{t+1}, v{t+18}, v{t+19}')
        E(f'v_permlane32_swap_b32 v{t}, v{t+1}\nv_add_f32 v{t}, v{t}, v{t+1}\nv_rcp_f32 v{t}, v{t}\nv_mov_b32 v{t+1}, v{t}\nv_permlane32_swap_b32 v{t}, v{t+1}')
        if OPT['npk']:
            for r in range(8): E(f'v_mul_f32 v{t+2+r}, v{t+2+r}, v{t}\nv_mul_f32 v{t+10+r}, v{t+10+r}, v{t+1}')
        else:
            for m in range(4):
                E(f'v_pk_mul_f32 v[{t+2+2*m}:{t+3+2*m}], v[{t+2+2*m}:{t+3+2*m}], v[{t}:{t+1}] op_sel_hi:[1,0]')
                E(f'v_pk_mul_f32 v[{t+10+2*m}:{t+11+2*m}], v[{t+10+2*m}:{t+11+2*m}], v[{t}:{t+1}] op_sel:[0,1]')
        for m in range(8): E(f'v_cvt_pk_bf16_f32 v{p+m}, v{t+2+2*m}, v{t+3+2*m}')
        E(f'ds_write_b128 v14, v[{p}:{p+3}] offset:{hs*PHI_HEAD + tt*512}')
        E(f'ds_write_b128 v14, v[{p+4}:{p+7}] offset:{hs*PHI_HEAD + tt*512 + 2*PHI_PLANE}')
        for blk in range(2):
            for rd in range(2):
                f = 16 + 16*hs + 8*tt + 4*blk + 2*rd
                E(f'ds_read_b64_tr_b16 v[{f}:{f+1}], v2 offset:{hs*PHI_HEAD + (2*tt+blk)*256 + rd*128}')
    halo_setup(A, True)
    stamp(A, 6)
    S = streams(units, phik)
    for i in range(len(S[0])):
        if i == OPT['hpos']: halo_issue(A)
        for L in S: A(L[i])
    stamp(A, 3)
    if OPT['hf'] == 0: halo_fetch(A, True)
    A('v_bfe_u32 v3, v1, 2, 1\nv_lshlrev_b32 v3, 4, v3\nv_bfe_u32 v4, v1, 4, 1\nv_lshl_add_u32 v3, v4, 3, v3')
    A('v_and_b32 v4, 3, v1\nv_add_u32 v3, v3, v4\nv_bfe_u32 v4, v1, 3, 1\nv_lshl_add_u32 v3, v4, 2, v3\nv_lshlrev_b32 v3, 2, v3\nv_lshl_add_u32 v3, v11, 9, v3')
    A(f's_lshl_b32 s24, s35, 2\ns_lshl_b32 s25, s43, 1\ns_add_u32 s24, s24, s25\ns_add_u32 s24, s24, s42\ns_mul_i32 s31, s24, {ACCB}\ns_add_u32 s31, s31, {WS_ACC}')
    KV = [64, 80]
    A('s_waitcnt lgkmcnt(0)')
    for s in range(4):
        for hs in range(2):
            A(f'v_mfma_f32_32x32x16_bf16 {vr(KV[hs],16)}, {vr(176+16*hs+4*s,4)}, {vr(16+16*hs+4*s,4)}, {vr(KV[hs],16) if s else "0"}')
    A(f'v_add_u32 v4, s30, v8\ns_xor_b32 s24, s41, 2\ns_mul_i32 s25, s24, {PHI_WAVE}\ns_add_u32 s25, s25, {PHI}\nv_add_u32 v5, s25, v8')
    A(f's_lshl_b32 s25, s41, 2\ns_add_u32 s25, s25, {TAG + C_PAIR}\nv_mov_b32 v6, s25\nv_xor_b32 v7, 8, v6\nv_mov_b32 v13, 1')
    A('s_cmp_eq_u32 s42, 1\ns_cbranch_scc1 L_ex1')
    for i in range(2):
        if i == 1: A.label('L_ex1'); A.fence(); A('s_nop 7')
        keep, kz = (64, 72) if i == 0 else (88, 80)
        send, sz = (88, 80) if i == 0 else (64, 72)
        A(f'ds_write_b128 v4, {vr(send,4)}\nds_write_b128 v4, {vr(send+4,4)} offset:1024\nds_write_b32 v4, v{sz} offset:2048')
        A('s_waitcnt lgkmcnt(0)\nds_write_b32 v6, v13\ns_mov_b32 s3, 0')
        A.label(f'L_exs{i}'); A.fence()
        A(f'ds_read_b32 v12, v7\ns_add_u32 s3, s3, 1\ns_waitcnt lgkmcnt(0)\nv_readfirstlane_b32 s24, v12\ns_cmp_lt_u32 s3, {SPIN_MAX*4}\ns_cselect_b32 s24, s24, 1\ns_cmp_eq_u32 s24, 0\ns_cbranch_scc1 L_exs{i}')
        A('ds_read_b128 v[16:19], v5\nds_read_b128 v[20:23], v5 offset:1024\nds_read_b32 v24, v5 offset:2048')
        for r in range(9):
            if r % 4 == 0: A(f's_waitcnt lgkmcnt({2 - r//4})')
            d = keep + r if r < 8 else kz
            A(f'v_add_f32 v{16+r}, v{d}, v{16+r}')
        if i == 0: A('s_branch L_exd')
    A.label('L_exd'); A.fence()
    stamp(A, 20)
    if OPT['hf'] == 1: halo_fetch(A, True)
    for r in range(8): A(f'buffer_atomic_add_f32 v{16+r}, v3, s[52:55], s31 offen offset:{rowof(r,0)*128}')
    A('s_mov_b32 exec_hi, 0')
    A(f'buffer_atomic_add_f32 v24, v3, s[52:55], s31 offen offset:2048')
    A('s_mov_b64 exec, -1')
    stamp(A, 4)
    A.label('L_post'); A.fence(); A.raw(';PAD')
    A('s_and_b32 s42, s41, 3\ns_lshr_b32 s43, s41, 2')
    A(f's_lshl_b32 s24, s42, 10\ns_add_u32 s24, s24, {QX}\nv_add_u32 v12, s24, v8')
    A(f's_mul_i32 s24, s43, 12288\ns_lshl_b32 s25, s42, 10\ns_add_u32 s24, s24, s25\ns_add_u32 s25, s24, {KL}\nv_add_u32 v13, s25, v8')
    A(f'v_and_b32 v14, 15, v1\nv_lshlrev_b32 v14, 4, v14\nv_lshl_add_u32 v14, v11, 8, v14\ns_add_u32 s25, s24, {VL}\nv_add_u32 v14, s25, v14')
    A('s_lshl_b32 s33, s39, 2\ns_add_u32 s33, s33, s42')
    srd(A, 44, 10, 0x80000); srd(A, 48, 16, 0x80000)
    A('v_lshrrev_b32 v15, 3, v1\nv_and_b32 v4, 7, v1\nv_lshrrev_b32 v5, 4, v1\nv_lshlrev_b32 v5, 1, v5\nv_xor_b32 v4, v4, v5\nv_lshlrev_b32 v4, 4, v4\nv_lshl_add_u32 v15, v15, 10, v4')
    A('s_lshr_b32 s30, s37, 2\ns_lshl_b32 s30, s30, 7\ns_lshl_b32 s25, s41, 13\ns_add_u32 s30, s30, s25')
    A(f's_lshl_b32 s24, s40, 1\ns_add_u32 s24, s24, s43\ns_mul_i32 s34, s24, {ACCB}\ns_add_u32 s34, s34, {WS_ACC}')
    A('v_mov_b32 v245, 0\nv_mov_b32 v244, 1')
    A('s_cmp_eq_u32 s38, 1\ns_cbranch_scc1 L_postA')
    tr_lane(A, 9, 4, 5, 2)
    A(f'v_and_b32 v4, 3, v1\nv_lshl_add_u32 v9, v4, 3, v9\ns_lshl_b32 s24, s43, 9\ns_add_u32 s24, s24, {WPH}\nv_add_u32 v9, s24, v9')
    for rd in range(2): A(f'ds_read_b64_tr_b16 v[{20+2*rd}:{21+2*rd}], v9 offset:{rd*256}')
    A(f's_lshl_b32 s24, s40, 4\ns_add_u32 s24, s24, s39\ns_lshl_b32 s27, s24, 9\ns_add_u32 s27, s27, {WS_FQ}\ns_lshl_b32 s25, s42, 7\ns_add_u32 s27, s27, s25')
    A(f's_lshl_b32 s26, s24, 13\ns_lshl_b32 s25, s41, 10\ns_add_u32 s26, s26, s25\ns_add_u32 s26, s26, {WS_QG}')
    A('s_waitcnt vmcnt(0) lgkmcnt(0)\ns_barrier')
    poll_issue(A, 246, 245, 's27')
    A('s_branch L_post2')
    A.label('L_postA'); A.fence(); A.raw(';PAD')
    if OPT['c2e']:
        A('s_waitcnt vmcnt(0)\ns_cmp_ge_u32 s41, 4\ns_cbranch_scc1 L_postA2\ns_mov_b64 exec, 1')
        A('buffer_atomic_add v244, v245, s[52:55], s31 offen offset:2304')
        A('s_mov_b64 exec, -1')
        stamp(A, 19)
    else: A('s_waitcnt vmcnt(9)\ns_cmp_lt_u32 s41, 4\ns_cbranch_scc1 L_postA2\ns_waitcnt vmcnt(0)')
    A.label('L_postA2'); A.fence()
    A('s_waitcnt lgkmcnt(0)\ns_barrier')
    A('s_cmp_ge_u32 s41, 4\ns_cbranch_scc1 L_post2')
    A(f's_lshl_b32 s24, s42, 10\nv_add_u32 v9, s24, v12')
    A(f'ds_read_b128 v[48:51], v9 offset:{PQX-QX}\nds_read_b128 v[52:55], v9 offset:{PQX-QX+1024}')
    A.label('L_post2'); A.fence()
    stamp(A, 8)
    A('s_cmp_ge_u32 s41, 4\ns_cbranch_scc1 L_post3')
    A('ds_read_b128 v[28:31], v12')
    A.label('L_post3'); A.fence()
    A('s_cmp_lt_u32 s39, 2\ns_cbranch_scc1 L_bslow')
    bunit(A, False)
    A.label('L_bdone'); A.fence()
    stamp(A, 11)
    O = OACC
    lds_add(A, C_ATT, 2, 3)
    A('s_nop 6')
    A(f'v_rcp_f32 v4, v{O+8}')
    for m in range(4): A(f'v_pk_mul_f32 v[{O+2*m}:{O+2*m+1}], v[{O+2*m}:{O+2*m+1}], v[4:5] op_sel_hi:[1,0]')
    for m in range(4): A(f'v_cvt_pk_bf16_f32 v{16+m}, v{O+2*m}, v{O+2*m+1}')
    A(f'buffer_store_dwordx4 v[16:19], v9, s[52:55], s32 offen sc1')
    A('s_waitcnt vmcnt(1)\ns_mov_b64 exec, 1')
    A('buffer_atomic_add v244, v245, s[52:55], s26 offen')
    A('s_mov_b64 exec, -1')
    stamp(A, 12)
    if OPT['fmap'] == 0: A('s_lshl_b32 s33, s36, 2\ns_and_b32 s24, s37, 3\ns_add_u32 s33, s33, s24')
    elif OPT['map'] == 0: A('s_add_u32 s33, s36, 1\ns_and_b32 s33, s33, 3\ns_lshl_b32 s33, s33, 3\ns_and_b32 s24, s36, 4\ns_add_u32 s33, s33, s24\ns_and_b32 s24, s37, 3\ns_add_u32 s33, s33, s24')
    else: A('s_add_u32 s33, s36, 1\ns_and_b32 s33, s33, 3\ns_lshl_b32 s33, s33, 1\ns_and_b32 s24, s36, 4\ns_lshl_b32 s24, s24, 2\ns_add_u32 s33, s33, s24\ns_and_b32 s24, s37, 2\ns_lshl_b32 s24, s24, 2\ns_add_u32 s33, s33, s24\ns_and_b32 s24, s37, 1\ns_add_u32 s33, s33, s24')
    A('s_lshl_b32 s33, s33, 2\ns_add_u32 s33, s33, s42')
    A(f's_lshr_b32 s24, s33, 1\ns_lshl_b32 s25, s43, 6\ns_add_u32 s24, s24, s25\ns_lshr_b32 s34, s24, 2\ns_mul_i32 s34, s34, {ACCB}\ns_and_b32 s24, s24, 3\ns_lshl_b32 s24, s24, 7\ns_add_u32 s34, s34, s24\ns_add_u32 s34, s34, {WS_ACC + 2560}')
    A(f's_lshl_b32 s32, s33, 14\ns_lshl_b32 s25, s43, 21\ns_add_u32 s32, s32, s25\ns_add_u32 s32, s32, {WS_O}')
    A('v_bfe_u32 v6, v1, 2, 3\nv_lshl_add_u32 v6, v11, 4, v6\nv_lshlrev_b32 v6, 7, v6\nv_and_b32 v7, 3, v1\nv_lshl_add_u32 v6, v7, 3, v6')
    A(f's_cmp_eq_u32 s43, 0\ns_cselect_b32 s24, {WO1}, {WO2}\nv_add_u32 v6, s24, v6\nv_bfe_u32 v7, v1, 3, 2\nv_lshlrev_b32 v7, 5, v7')
    for ct in range(4): A(f'v_xor_b32 v12, {ct*32}, v7\nv_add_u32 v{2+ct}, v6, v12')
    srd(A, 56, 18, 0x400000)
    poll_issue(A, 246, 245, 's34', count=32)
    A('s_waitcnt vmcnt(2)\ns_mov_b64 exec, 1')
    A('buffer_atomic_add v244, v245, s[52:55], s27 offen')
    A('s_mov_b64 exec, -1')
    stamp(A, 13)
    lds_spin(A, C_ATT, 8, 12, 13, inline=True)
    stamp(A, 14)
    A('s_cmp_eq_u32 s43, 0\ns_cbranch_scc1 L_nopart2')
    A(f's_lshr_b32 s30, s37, 2\ns_lshl_b32 s30, s30, 7\ns_lshl_b32 s25, s42, 13\ns_add_u32 s30, s30, s25\ns_lshl_b32 s25, s42, 10\ns_add_u32 s25, s25, {WO2}')
    for i in range(8):
        A(f's_add_u32 m0, s25, {i*4096}')
        A('buffer_load_dwordx4 v15, s[48:51], s30 offen lds')
        if i < 7: A('s_add_u32 s30, s30, 32768')
    A.label('L_nopart2'); A.fence()
    HPO = list(range(8, 16)) + list(range(8))
    OFR, PRE, RING, AC = 16, 80, 208, 240
    AC = 236 if OPT['stamps'] else 240
    NRG = 7 if OPT['stamps'] else 8
    NPRE = OPT['npre']
    lq = Q(A, 'lgkmcnt', 15)
    NSL = NPRE + NRG
    def wreg(m): return PRE + 4 * (m % NSL)
    def wread(m):
        hp, ct = HPO[m // 4], m % 4; f = wreg(m)
        for rd in range(2): A(f'ds_read_b64_tr_b16 v[{f+2*rd}:{f+2*rd+1}], v{2+ct} offset:{hp*4096 + rd*1024}'); lq.push(m)
    for m in range(NPRE): wread(m)
    poll(A, 246, 245, 's34', issued=True, count=32, inline=True)
    stamp(A, 15)
    vq = Q(A, 'vmcnt', 63)
    A('s_add_u32 s24, s32, 8192\ns_add_u32 s25, s32, 12288\ns_add_u32 s26, s32, 4096')
    for k, hp in enumerate(HPO):
        A(f'buffer_load_dwordx4 {vr(OFR+4*k,4)}, v8, s[52:55], {["s32","s26","s24","s25"][hp//4]} offen offset:{(hp%4)*1024} sc1'); vq.push(k)
    A('s_cmp_eq_u32 s43, 0\ns_cbranch_scc1 L_nowoa')
    lds_add(A, C_WOA, 12, 13)
    lds_spin(A, C_WOA, 4, 12, 13, sleep=False, inline=True)
    A.label('L_nowoa'); A.fence()
    A('s_waitcnt lgkmcnt(0)'); lq.q = []
    A('v_and_b32 v9, 15, v1\nv_lshlrev_b32 v9, 11, v9\nv_bfe_u32 v12, v1, 4, 1\nv_lshl_add_u32 v9, v12, 5, v9\nv_lshl_add_u32 v9, v11, 4, v9')
    A('s_lshl_b32 s24, s33, 15\ns_lshl_b32 s25, s43, 10\ns_add_u32 s24, s24, s25\ns_lshr_b32 s25, s37, 2\ns_lshl_b32 s25, s25, 7\ns_add_u32 s24, s24, s25')
    nr = NPRE
    while nr < NSL: wread(nr); nr += 1
    for m in range(64):
        k, ct = m // 4, m % 4
        if ct == 0: vq.wait(k)
        lq.wait(m)
        A(f'v_mfma_f32_16x16x32_bf16 {vr(AC+4*ct,4)}, {vr(wreg(m),4)}, {vr(OFR+4*k,4)}, {vr(AC+4*ct,4) if k else "0"}')
        if nr < 64 and m % 2 == 1: wread(nr); nr += 1
    stamp(A, 16)
    for m in range(8): A(f'v_cvt_pk_bf16_f32 v{16+m}, v{AC+2*m}, v{AC+2*m+1}')
    for s in range(2):
        b = 16 + 4 * s
        A(f'v_permlane16_swap_b32 v{b}, v{b+2}\nv_permlane16_swap_b32 v{b+1}, v{b+3}')
        A(f'buffer_store_dwordx4 {vr(b,4)}, v9, s[56:59], s24 offen offset:{s*64} {OST}')
    stamp_flush(A, 's[52:55]', 's41')
    A.label('L_end'); A.fence()
    A('s_endpgm')
    A.label('L_tgw'); A.fence()
    A('s_sleep 1\nv_mov_b32 v22, 0\nbuffer_load_dwordx3 v[24:26], v22, s[56:59], 0 offen sc1\ns_waitcnt vmcnt(0)')
    A(f's_add_u32 s3, s3, 1\ns_cmp_lt_u32 s3, {SPIN_MAX}\ns_cbranch_scc1 L_tg\ns_branch L_tgd')
    A.label('L_bslow'); A.fence()
    bunit(A, True)
    A('s_branch L_bdone')
    for f in OOL: f()

PMASK, ONES, KVOFF, VRING = 232, 240, 242, 216
OACC = 200
def common_consts(A):
    for r in range(16):
        for hi in range(2):
            m = 0
            for c in range(32):
                if rowof(r, hi) <= c: m |= 1 << c
            A(f's_mov_b32 s{64+2*r+hi}, 0x{m:x}')
    A(f's_mov_b32 s62, 0x{f2u(LOG2E):x}\ns_mov_b32 s63, s62')
    A(f'v_mov_b32 v{ONES}, 0x3f803f80\nv_mov_b32 v{ONES+1}, 0x3f803f80\nv_mov_b32 v243, 0xffff')
    for r in range(0, 16, 2): A(f'v_mov_b64 v[{VRING+r}:{VRING+r+1}], v[{ONES}:{ONES+1}]')
    for m in range(8): A(f'v_cndmask_b32_e64 v{PMASK+m}, 0, v243, s[{64+4*m}:{65+4*m}]')
    for m in range(8): A(f'v_cndmask_b32_e64 v{PMASK+m}, v{PMASK+m}, -1, s[{66+4*m}:{67+4*m}]')
    A(f'v_and_b32 v243, 17, v10\ns_mov_b32 s28, 0xffff\ns_mov_b32 s29, 0xffff')
    A(f'v_cndmask_b32_e64 v{KVOFF}, v243, v10, s[28:29]\nv_lshlrev_b32 v{KVOFF}, 7, v{KVOFF}\nv_lshl_add_u32 v{KVOFF}, v11, 6, v{KVOFF}')

def readout(A, R1, R2):
    A('s_waitcnt vmcnt(0)')
    for m in range(8): A(f'v_cvt_pk_bf16_f32 v{32+m}, v{32+2*m}, v{33+2*m}')
    A(f'v_mfma_f32_32x32x16_bf16 {vr(R1,16)}, v[32:35], v[48:51], 0')
    A(f'v_mfma_f32_32x32x16_bf16 {vr(R2,16)}, v[36:39], v[52:55], 0')
    A('v_and_b32 v9, 15, v1\nv_lshlrev_b32 v9, 4, v9\nv_lshl_add_u32 v9, v11, 8, v9\nv_bfe_u32 v6, v1, 4, 1\nv_lshl_add_u32 v9, v6, 14, v9')
    A(f's_lshl_b32 s24, s33, 15\ns_lshl_b32 s25, s40, 10\ns_add_u32 s24, s24, s25\ns_lshl_b32 s25, s43, 9\ns_add_u32 s24, s24, s25\ns_add_u32 s34, s24, {WS_O}\ns_add_u32 s32, s34, 0x200000')
    A(f's_lshr_b32 s24, s33, 2\ns_mul_i32 s24, s24, {ACCB}\ns_and_b32 s25, s33, 3\ns_lshl_b32 s25, s25, 7\ns_add_u32 s24, s24, s25\ns_add_u32 s26, s24, {WS_ACC + 2560}\ns_add_u32 s27, s26, {16*ACCB}')
    A(f'v_mov_b32 v6, 0x{f2u(1e-6):x}')
    A(f'v_rcp_f32 v4, v{R1+9}\nv_rcp_f32 v5, v{R2+9}')
    A(f'v_fmac_f32 v6, v{R1+8}, v4\nv_fmac_f32 v6, v{R2+8}, v5')
    A('v_rcp_f32 v6, v6')
    A('v_mul_f32 v4, v4, v6\nv_mul_f32 v5, v5, v6')
    for r in range(8): A(f'v_mul_f32 v{R1+r}, v{R1+r}, v4')
    for r in range(8): A(f'v_fmac_f32 v{R1+r}, v{R2+r}, v5')
    for m in range(4): A(f'v_cvt_pk_bf16_f32 v{20+m}, v{R1+2*m}, v{R1+2*m+1}')
    A(f'buffer_store_dwordx4 v[20:23], v9, s[52:55], s34 offen sc1')
    stamp(A, 17)

def bunit(A, checks):
    sfx = 's' if checks else 'f'
    lq = Q(A, 'lgkmcnt', 15)
    KF = {j: 144 + 4 * j for j in range(9)}
    M, X, Y, Z, NM = 64, 80, 96, 112, 128
    O = OACC
    order = [8, 0, 7, 6, 5, 4, 3, 2, 1]
    for j in order: A(f'ds_read_b128 {vr(KF[j],4)}, v13 offset:{j*1024}'); lq.push(('k', j))
    buf = {8: M, 0: X, 7: Y, 6: Z, 5: NM, 4: X, 3: Y, 2: Z, 1: NM}
    def qk(j, dst, c):
        lq.wait(('k', j))
        A(f'v_mfma_f32_32x32x16_bf16 {vr(dst,16)}, {vr(KF[j],4)}, v[28:31], {c}')
    for j in (8, 0, 7, 6, 5): qk(j, buf[j], '0')
    if checks:
        A('s_nop 7')
        for r in range(16): A(f'v_mov_b32 v{X+r}, 0xff800000')
    for r in range(16): A(f'v_cndmask_b32_e64 v{M+r}, v{X+r}, v{M+r}, s[{64+2*r}:{65+2*r}]')
    qk(4, buf[4], '0')
    A(f'v_max_f32 v2, v{M}, v{M+1}\nv_max_f32 v3, v{M+2}, v{M+3}')
    for m in range(1, 4): A(f'v_max3_f32 v2, v2, v{M+4*m}, v{M+4*m+1}\nv_max3_f32 v3, v3, v{M+4*m+2}, v{M+4*m+3}')
    for j in (7, 6, 5, 4, 3, 2, 1):
        b = buf[j]
        if checks: A(f's_cmp_lt_u32 s33, {8-j}\ns_cbranch_scc1 L_bm{sfx}')
        for m in range(4): A(f'v_max3_f32 v2, v2, v{b+4*m}, v{b+4*m+1}\nv_max3_f32 v3, v3, v{b+4*m+2}, v{b+4*m+3}')
        if j - 4 >= 1: qk(j - 4, buf[j - 4], '0')
    if checks:
        A.label(f'L_bm{sfx}'); A.fence(); A('s_waitcnt lgkmcnt(0)\ns_nop 15'); lq.q = []
    A('v_max_f32 v2, v2, v3\nv_mov_b32 v3, v2\nv_permlane32_swap_b32 v2, v3\nv_max_f32 v2, v2, v3')
    stamp(A, 9)
    A(f's_cmp_eq_u32 s38, 1\ns_cbranch_scc1 L_bq{sfx}')
    poll(A, 246, 245, 's27', issued=True)
    A('buffer_load_dwordx4 v[24:27], v8, s[52:55], s26 offen sc1')
    A(f's_branch L_bq2{sfx}')
    A.label(f'L_bq{sfx}'); A.fence()
    if not OPT['c2e']:
        A(f's_cmp_ge_u32 s41, 4\ns_cbranch_scc1 L_bq2{sfx}')
        A('s_waitcnt vmcnt(0)\ns_mov_b64 exec, 1')
        A('buffer_atomic_add v244, v245, s[52:55], s31 offen offset:2304')
        A('s_mov_b64 exec, -1')
    A.label(f'L_bq2{sfx}'); A.fence()
    A(f's_lshl_b32 m0, s41, 10\ns_mov_b32 s24, s30')
    for i in range(8):
        A('buffer_load_dwordx4 v15, s[44:47], s24 offen lds')
        if i < 7: A('s_add_u32 m0, m0, 8192\ns_add_u32 s24, s24, 65536')
    A(f'v_sub_f32 v{NM}, 0, v2\nv_sub_f32 v{NM+1}, 0, v2')
    for r in range(2, 16, 2): A(f'v_mov_b64 v[{NM+r}:{NM+r+1}], v[{NM}:{NM+1}]')
    vs = [0]
    def vreads(js):
        A('s_mov_b64 exec, s[28:29]')
        out = {}
        for j in js:
            for blk in range(2):
                st = VRING + 4 * (vs[0] % 4); vs[0] += 1
                A(f'ds_read_b128 {vr(st,4)}, v14 offset:{j*1024 + blk*512}'); lq.push(('v', j, blk)); out[(j, blk)] = st
        A('s_mov_b64 exec, -1')
        return out
    first = [True]
    def pv(j, blk, vreg, p):
        def f():
            lq.wait(('v', j, blk))
            A(f'v_mfma_f32_32x32x16_bf16 {vr(O,16)}, {vr(vreg,4)}, {vr(p,4)}, {"0" if first[0] else vr(O,16)}')
            first[0] = False
        return f
    buf2 = {7: X, 6: Y, 5: Z, 4: X, 3: Y, 2: Z, 1: X}
    def qk2(j):
        def f():
            if checks:
                uid[0] += 1; n = uid[0]
                A(f's_cmp_lg_u32 s33, {7-j}\ns_cbranch_scc1 L_ni{n}\ns_nop 7')
                for r in range(16): A(f'v_mov_b32 v{NM+r}, 0xff800000')
                A.label(f'L_ni{n}'); A.fence(); A('s_nop 1')
            A(f'v_mfma_f32_32x32x16_bf16 {vr(buf2[j],16)}, {vr(KF[j],4)}, v[28:31], {vr(NM,16)}')
        return f
    def tile(b, pend, pre=()):
        ops = list(pre) + [f'v_exp_f32 v{b+r}, v{b+r}' for r in range(16)] + [f'v_cvt_pk_bf16_f32 v{b+m}, v{b+2*m}, v{b+2*m+1}' for m in range(8)]
        n0 = len(pre); step = max(1, 16 // max(1, len(pend)))
        pos = {n0 + 1 + i * step: f for i, f in enumerate(pend)}
        for i, o in enumerate(ops):
            if i in pos: pos[i]()
            A(o)
    vv = vreads([8, 0])
    tile(M, [qk2(7), qk2(6)], pre=[f'v_sub_f32 v{M+r}, v{M+r}, v2' for r in range(16)])
    for m in range(8): A(f'v_bfi_b32 v{M+8+m}, v{PMASK+m}, 0, v{M+m}')
    for m in range(8): A(f'v_and_b32 v{M+m}, v{PMASK+m}, v{M+m}')
    pend = [pv(8, 0, vv[(8, 0)], M), pv(8, 1, vv[(8, 1)], M + 4), pv(0, 0, vv[(0, 0)], M + 8), pv(0, 1, vv[(0, 1)], M + 12), qk2(5)]
    for j in (7, 6, 5, 4, 3, 2, 1):
        b = buf2[j]
        if j == OPT['h1']:
            A(f's_lshl_b32 s24, s41, 10\ns_add_u32 m0, s24, {WO2 + 32768}\ns_add_u32 s24, s30, 262144')
            for i in range(4):
                A('buffer_load_dwordx4 v15, s[48:51], s24 offen lds')
                if i < 3: A('s_add_u32 m0, m0, 8192\ns_add_u32 s24, s24, 65536')
        if j == OPT['hq']:
            A(f's_cmp_eq_u32 s38, 1\ns_cbranch_scc1 L_hq{sfx}')
            A(f's_waitcnt vmcnt({12 if OPT["hq"] <= OPT["h1"] else 8})')
            A(f'v_mfma_f32_32x32x16_bf16 {vr(M,16)}, v[20:23], v[24:27], 0')
            dual_exp(A, M, 180, True)
            for m in range(8): A(f'v_cvt_pk_bf16_f32 v{48+m}, v{182+2*m}, v{183+2*m}')
            A.label(f'L_hq{sfx}')
        if j == OPT['hr']: readout(A, M, 180)
        if j == OPT['h2'] + 1: poll_issue(A, 246, 245, 's34', count=16, off=2304)
        if j == OPT['h2']:
            poll(A, 246, 245, 's34', issued=True, count=16, off=2304)
            stamp(A, 10)
            for m in range(4): A(f'buffer_load_dwordx4 {vr(32+4*m,4)}, v{KVOFF}, s[52:55], s34 offen offset:{16*m} sc1')
        if j == 7:
            tile(b, pend); vv = vreads([j])
        else:
            vv = vreads([j]); tile(b, pend)
        pend = [pv(j, 0, vv[(j, 0)], b), pv(j, 1, vv[(j, 1)], b + 4)]
        if j - 3 >= 1: pend.append(qk2(j - 3))
    for f in pend: f()

def main():
    A = Asm()
    A.raw(f'; @launch grid=(256,1,1) block=(512,1,1) lds={LDS_SIZE}')
    A.raw('.amdgcn_target "amdgcn-amd-amdhsa--gfx950"\n.text')
    gen(A)
    A.raw('L_code_end:\n.p2align 8\n.fill 64, 4, 0xbf800000')
    A.raw(kd(NAME, 256, 102 if OPT['stamps'] else 96))
    txt = A.text()
    if OPT['pads']: txt = add_pads(txt)
    sys.stdout.write(txt)

def add_pads(txt):
    import subprocess, re, os, tempfile
    lines = txt.split('\n')
    d = tempfile.mkdtemp()
    tmp = txt.replace(';PAD', '    s_nop 0').replace('L_code_end:', 'L_chain0:\nL_chain1:\nL_chain2:\nL_chain3:\nL_code_end:')
    open(d + '/a.s', 'w').write(tmp)
    subprocess.check_call(['clang', '-x', 'assembler', '-target', 'amdgcn-amd-amdhsa', '-mcpu=gfx950', '-c', d + '/a.s', '-o', d + '/a.o'])
    dis = subprocess.check_output(['llvm-objdump', '-d', d + '/a.o']).decode()
    addrs = [int(m.group(1), 16) for m in re.finditer(r'// ([0-9A-F]{12}):', dis)]
    out = []; k = 0; shift = 0x300; nxt = 4096; stop = False; skip = False
    for ln in lines:
        if ln.startswith('L_bslow'): stop = True
        if ln.startswith('L_cons'): skip = True
        if ln.startswith('L_padret'): skip = False
        if ln == ';PAD' or (ln.startswith('    ') and not ln.strip().startswith('.')):
            a = addrs[k] + shift; k += 1
            if a >= nxt and not stop:
                nxt += 4096
                if ln != ';PAD' and not skip: out.append(';PAD'); shift += 4
        out.append(ln)
    idx = [i for i, ln in enumerate(out) if ln == ';PAD']
    n = len(idx)
    for j, i in enumerate(idx):
        head = f'L_chain{j}:\n' if j < 4 else ''
        out[i] = f'{head}L_pad{j}:\n    s_cbranch_execz ' + (f'L_pad{j+4}' if j + 4 < n else 'L_padret')
    return '\n'.join(out)
main()
```

```python
import sys, math, struct
sys.path.insert(0, 'work')
from asmlib import *

OPT = dict(stamps=0, gst=0, pfc=1, psl=4, hot=0, order='01234567', grp=3, gsh=8, tagl=3, q0=15, q1=5, e0w=1, e0pos=8, who=-1, fastk=1, fasta=1, q23=7, epn=28, cprio=1, wm=0, e0a=24, g2=6, gr=4, af=1, skip='', smc=0, wo0=0, tlb=1, bt=0, wd='776', hg=7, hc=7, smq=-1, smo=-1, sms=128, fw=1, pads=1,
           qd=5, qpoll=56, lprio=1, aprio=0, stag=28, hpos=60, c2e=1, hq=5, h2=2, hr=0, ost='plain', npre=32, bdly=0, wprio=0)
for a in sys.argv[1:]:
    k, v = a.split('='); assert k in OPT, k; OPT[k] = int(v) if v.lstrip('-').isdigit() else v
OST = '' if OPT['ost'] == 'plain' else OPT['ost']
NAME = 'concat_heads__linear_kernel_hedgehog__sliding_block__prompt_kernel'

def f2u(x): return struct.unpack('<I', struct.pack('<f', x))[0]
LOG2E = math.log2(math.e)
WS_KVG, WS_O, WS_QG = 0x000000, 0x400000, 0x800000
WS_F1, WS_ACC, WS_EP = 0xC00200, 0xC20000, 0xC40000
WS_SIZE = 0xC50000
ACCB = 3072
WS_STAMP = 0x1000000
SPIN_MAX = 1 << 16
SLOT = 32768
RING = [65536, 98304, 32768]
KL, VL, PHI = 65536, 90112, 114688
PHI_PLANE, PHI_HEAD, PHI_WAVE = 1088, 4352, 8704
TAG = PHI + 4 * PHI_WAVE - 64
QX, PQX, WPH = 149504, 153600, 161792
WO1, WO2 = 0, 81920
LDS_SIZE = 163840
C_WQ, C_ATT, C_WO2, C_WQ2, C_PAIR = 16, 20, 24, 28, 32
OACC, VRING, PMASK, ONES = 200, 216, 232, 240
SEL = 200
KVOFF, V1, V0, KRD, VRD, WOL, OST_, QRD, PD = 242, 243, 244, 245, 246, 247, 248, 249, 250
S_T, S_WO, S_ACC, S_OA, S_C3, S_FC, S_FO, S_OUT, S_QG = 's4', 's5', 's6', 's7', 's8', 's12', 's13', 's14', 's15'

class Q:
    def __init__(self, A, name, mx): self.A = A; self.q = []; self.name = name; self.mx = mx
    def push(self, tag): self.q.append(tag)
    def wait(self, *tags):
        idx = -1
        for i, t in enumerate(self.q):
            if t in tags: idx = i
        if idx < 0: return
        n = min(len(self.q) - 1 - idx, self.mx)
        self.A(f's_waitcnt {self.name}({n})')
        self.q = self.q[len(self.q) - n:] if n else []
    def all(self):
        self.A(f's_waitcnt {self.name}(0)'); self.q = []

def stamp(A, idx):
    if not OPT['stamps'] or str(idx) in str(OPT['skip']).split('.'): return
    if OPT['gst']:
        if idx < 30 or idx > 47: return
        if idx >= 32: idx -= 32
    elif idx >= 32: return
    A(('s_memrealtime' if OPT['stamps'] == 1 else 's_memtime') + ' s[96:97]')
    A('s_waitcnt lgkmcnt(0)')
    A(f'v_writelane_b32 v253, s96, {idx}')
def stamp_flush(A, srd, wavereg):
    if not OPT['stamps']: return
    stamp(A, 31)
    A(f's_lshl_b32 s98, s2, 3\ns_add_u32 s98, s98, {wavereg}\ns_lshl_b32 s98, s98, 7\ns_add_u32 s98, s98, {WS_STAMP}')
    A('v_mbcnt_lo_u32_b32 v252, -1, 0\nv_lshlrev_b32 v252, 2, v252\ns_mov_b32 exec_hi, 0')
    A(f'buffer_store_dword v253, v252, {srd}, s98 offen')

def rowof(r, hi): return (r & 3) + 8 * (r >> 2) + 4 * hi

def dual_exp(A, p, em, t):
    A(f'v_max3_f32 v{t}, v{p}, v{p+1}, v{p+2}\nv_max3_f32 v{t+1}, -v{p}, -v{p+1}, -v{p+2}')
    A(f'v_max3_f32 v{t}, v{t}, v{p+3}, v{p+4}\nv_max3_f32 v{t+1}, v{t+1}, -v{p+3}, -v{p+4}')
    A(f'v_max3_f32 v{t}, v{t}, v{p+5}, v{p+6}\nv_max3_f32 v{t+1}, v{t+1}, -v{p+5}, -v{p+6}')
    A(f'v_max_f32_e64 v{t}, v{t}, v{p+7}\nv_max_f32_e64 v{t+1}, v{t+1}, -v{p+7}')
    A(f'v_permlane32_swap_b32 v{t}, v{t+1}')
    A(f'v_max_f32 v{t}, v{t}, v{t+1}')
    A(f'v_mul_f32 v{t}, s62, v{t}')
    A(f'v_mov_b32 v{t+1}, v{t}')
    A(f'v_permlane32_swap_b32 v{t}, v{t+1}')
    for r in range(8): A(f'v_fma_f32 v{em+r}, -v{p+r}, s62, -v{t+1}\nv_fma_f32 v{p+r}, v{p+r}, s62, -v{t}')
    for r in range(8): A(f'v_exp_f32 v{em+r}, v{em+r}\nv_exp_f32 v{p+r}, v{p+r}')

uid = [0]
OOL = []
COLD = []
def poll_issue(A, vdst, voff, soff, count=None, off=0):
    o = f' offset:{off}' if off else ''
    if count is None: A(f'buffer_load_dwordx2 v[{vdst}:{vdst+1}], v{voff}, s[52:55], {soff} offen{o} sc1')
    else: A(f'buffer_load_dword v{vdst}, v{voff}, s[52:55], {soff} offen{o} sc1')
def poll(A, vdst, voff, soff, count=None, off=0, inline=False, first=0):
    uid[0] += 1; n = uid[0]
    cmp = f'v_cmp_ne_u64 vcc, s[60:61], v[{vdst}:{vdst+1}]' if count is None else f'v_cmp_ne_u32 vcc, {count}, v{vdst}'
    if inline:
        A(f's_waitcnt vmcnt({first})\n{cmp}\ns_cbranch_vccz L_pd{n}\ns_mov_b32 s3, {SPIN_MAX}')
        A.label(f'L_pl{n}')
        if OPT['psl']: A(f's_sleep {OPT["psl"]}')
        poll_issue(A, vdst, voff, soff, count, off)
        A(f's_sub_u32 s3, s3, 1\ns_waitcnt vmcnt(0)\n{cmp}\ns_cselect_b64 vcc, 0, vcc\ns_cbranch_vccnz L_pl{n}')
        A.label(f'L_pd{n}')
        return
    A(f's_waitcnt vmcnt(0)\n{cmp}\ns_cbranch_vccnz L_ps{n}')
    A.label(f'L_pd{n}')
    def slow():
        A.label(f'L_ps{n}'); A.fence()
        A('s_mov_b32 s3, 0')
        A.label(f'L_pl{n}')
        if OPT['psl']: A(f's_sleep {OPT["psl"]}')
        poll_issue(A, vdst, voff, soff, count, off)
        A(f's_add_u32 s3, s3, 1\ns_waitcnt vmcnt(0)\n{cmp}\ns_cbranch_vccz L_pd{n}')
        A(f's_cmp_lt_u32 s3, {SPIN_MAX}\ns_cbranch_scc1 L_pl{n}\ns_branch L_pd{n}')
    OOL.append(slow)
def gran_issue(A, v, nh):
    if nh == 2: A(f's_sub_u32 s24, {S_QG}, 8192')
    for e in range(nh):
        for h in range(2): A(f'buffer_load_dwordx4 {vr(v+8*e+4*h,4)}, v8, s[52:55], {"s24" if e < nh - 1 else S_QG} offen offset:{h*1024} sc1')
def gran_wait(A, v, nh, dst, inline, first=0):
    uid[0] += 1; n = uid[0]
    def check(cnt=0):
        A(f's_waitcnt vmcnt({cnt})\nv_cmp_ne_u32_e64 s[24:25], s60, v{v+1}')
        for r in range(1, 4*nh): A(f'v_cmp_ne_u32 vcc, s60, v{v+1+2*r}\ns_or_b64 s[24:25], s[24:25], vcc')
    def retry():
        if OPT['psl']: A(f's_sleep {OPT["psl"]}')
        gran_issue(A, v, nh)
    if inline:
        A('s_mov_b32 s3, 0')
        A.label(f'L_gl{n}')
        check()
        A(f's_cbranch_scc0 L_gd{n}')
        retry()
        A(f's_add_u32 s3, s3, 1\ns_cmp_lt_u32 s3, {SPIN_MAX}\ns_cbranch_scc1 L_gl{n}\ns_waitcnt vmcnt(0)')
    else:
        check(first)
        A(f's_cbranch_scc1 L_gs{n}')
        def slow():
            A.label(f'L_gs{n}'); A.fence()
            A('s_mov_b32 s3, 0')
            A.label(f'L_gl{n}')
            retry(); check()
            A(f's_cbranch_scc0 L_gd{n}\ns_add_u32 s3, s3, 1\ns_cmp_lt_u32 s3, {SPIN_MAX}\ns_cbranch_scc1 L_gl{n}\ns_branch L_gd{n}')
        OOL.append(slow)
    A.label(f'L_gd{n}')
    for r in range(4*nh): A(f'v_mov_b32 v{dst+r}, v{v+2*r}')

def lds_add(A, off, va):
    A(f'v_mov_b32 v{va}, {TAG}\ns_mov_b64 exec, 1\nds_add_u32 v{va}, v{V1} offset:{off}\ns_mov_b64 exec, -1')
def lds_spin(A, off, cnt, va, vt, sleep=True):
    uid[0] += 1; n = uid[0]
    A(f'v_mov_b32 v{va}, {TAG}\ns_mov_b32 s3, {SPIN_MAX * 4}')
    A.label(f'L_sp{n}')
    if sleep: A('s_sleep 1')
    A(f's_sub_u32 s3, s3, 1\nds_read_b32 v{vt}, v{va} offset:{off}\ns_waitcnt lgkmcnt(0)\nv_cmp_gt_u32 vcc, {cnt}, v{vt}\ns_cselect_b64 vcc, 0, vcc\ns_cbranch_vccnz L_sp{n}')
def count_add(A, soff, off=0):
    A('s_mov_b64 exec, 1')
    A(f'buffer_atomic_add v{V1}, v{V0}, s[52:55], {soff} offen' + (f' offset:{off}' if off else ''))
    A('s_mov_b64 exec, -1')

def srd(A, d, lo, size):
    A(f's_mov_b32 s{d}, s{lo}\ns_mov_b32 s{d+1}, s{lo+1}\ns_mov_b32 s{d+2}, 0x{size:x}\ns_mov_b32 s{d+3}, 0x20000')
def flag(A, soff, tmp):
    A(f'v_mov_b32 v{tmp}, s60\nv_mov_b32 v{tmp+1}, s61\nv_mov_b32 v{tmp+2}, s60\nv_mov_b32 v{tmp+3}, s61\ns_waitcnt vmcnt(0)\ns_mov_b64 exec, 0xff')
    A(f'buffer_store_dwordx4 v[{tmp}:{tmp+3}], v8, s[52:55], {soff} offen sc1')
    A('s_mov_b64 exec, -1')
def stream(fn, *a):
    L = []
    fn(lambda t: L.extend(x for x in t.split('\n') if x.strip()), *a)
    return L
def tr_lane(A, d, rowsh, hish):
    A(f'v_bfe_u32 v{d}, v1, 2, 2\nv_lshl_add_u32 v{d}, v11, {hish}, v{d}\nv_lshlrev_b32 v{d}, {rowsh}, v{d}')
def mfma32(d, a, b, c): return f'v_mfma_f32_32x32x16_bf16 {vr(d,16)}, {vr(a,4)}, {vr(b,4)}, {vr(c,16) if c is not None else "0"}'

def common(A):
    for r in range(16):
        for hi in range(2):
            m = 0
            for c in range(32):
                if rowof(r, hi) <= c: m |= 1 << c
            A(f's_mov_b32 s{64+2*r+hi}, 0x{m:x}')
    A(f's_mov_b32 s62, 0x{f2u(LOG2E):x}\ns_mov_b32 s63, 0x{f2u(2.0**100):x}\ns_mov_b32 s28, 0xffff\ns_mov_b32 s29, 0xffff')
    A(f'v_mov_b32 v{ONES}, 0x3f803f80\nv_mov_b32 v{ONES+1}, 0x3f803f80\nv_mov_b32 v{V1}, 0xffff')
    for r in range(0, 16, 2): A(f'v_mov_b64 v[{VRING+r}:{VRING+r+1}], v[{ONES}:{ONES+1}]')
    for m in range(8): A(f'v_cndmask_b32_e64 v{PMASK+m}, 0, v{V1}, s[{64+4*m}:{65+4*m}]')
    for m in range(8): A(f'v_cndmask_b32_e64 v{PMASK+m}, v{PMASK+m}, -1, s[{66+4*m}:{67+4*m}]')
    A(f'v_and_b32 v{V1}, 17, v10\nv_cndmask_b32_e64 v{KVOFF}, v{V1}, v10, s[28:29]\nv_lshlrev_b32 v{KVOFF}, 7, v{KVOFF}\nv_lshl_add_u32 v{KVOFF}, v11, 6, v{KVOFF}')
    A('s_and_b32 s21, s41, 3\ns_lshr_b32 s22, s41, 2')
    A(f's_lshl_b32 s24, s21, 10\ns_add_u32 s25, s24, {QX}\nv_add_u32 v{QRD}, s25, v8')
    A(f's_mul_i32 s25, s22, 12288\ns_add_u32 s24, s24, s25\ns_add_u32 s25, s24, {KL}\nv_add_u32 v{KRD}, s25, v8')
    A(f'v_and_b32 v{OST_}, 15, v1\nv_lshlrev_b32 v{OST_}, 4, v{OST_}\nv_lshl_add_u32 v{OST_}, v11, 8, v{OST_}\ns_add_u32 s25, s24, {VL}\nv_add_u32 v{VRD}, s25, v{OST_}')
    A(f'v_bfe_u32 v{V1}, v1, 4, 1\nv_lshl_add_u32 v{OST_}, v{V1}, 14, v{OST_}')
    A(f'v_lshrrev_b32 v{WOL}, 3, v1\nv_and_b32 v{V0}, 7, v1\nv_lshrrev_b32 v{V1}, 4, v1\nv_lshlrev_b32 v{V1}, 1, v{V1}\nv_xor_b32 v{V0}, v{V0}, v{V1}\nv_lshlrev_b32 v{V0}, 4, v{V0}\nv_lshl_add_u32 v{WOL}, v{WOL}, 10, v{V0}')
    A(f'v_mov_b32 v{V1}, 1\nv_mov_b32 v{V0}, 0\nv_mov_b64 v[52:53], 0\nv_mov_b64 v[54:55], 0')
    A(f's_lshl_b32 {S_T}, s39, 2\ns_add_u32 {S_T}, {S_T}, s21')
    A(f's_lshr_b32 s23, s37, 2\ns_lshl_b32 s23, s23, 7\ns_lshl_b32 s25, s41, 13\ns_add_u32 {S_WO}, s23, s25')
    A(f's_lshl_b32 s24, s40, 1\ns_add_u32 s24, s24, s22\ns_mul_i32 {S_ACC}, s24, {ACCB}\ns_add_u32 {S_ACC}, {S_ACC}, {WS_ACC}')
    A(f's_lshl_b32 s24, s24, 9\ns_lshl_b32 s25, {S_T}, 15\ns_add_u32 s24, s24, s25\ns_add_u32 {S_OA}, s24, {WS_O}')
    A(f's_mul_i32 s24, s39, {ACCB}\ns_lshl_b32 s25, s21, 7\ns_add_u32 s24, s24, s25\ns_add_u32 {S_C3}, s24, {WS_ACC + 2560}')
    A(f's_lshl_b32 s24, s40, 4\ns_add_u32 s24, s24, s39\ns_lshl_b32 {S_QG}, s24, 14\ns_lshl_b32 s25, s41, 11\ns_add_u32 {S_QG}, {S_QG}, s25\ns_add_u32 {S_QG}, {S_QG}, {WS_QG}')
    A('s_add_u32 s24, s36, 1\ns_and_b32 s24, s24, 3\ns_lshl_b32 s24, s24, 3\ns_and_b32 s25, s36, 4\ns_add_u32 s24, s24, s25\ns_and_b32 s25, s37, 3\ns_add_u32 s24, s24, s25')
    A('s_lshl_b32 s24, s24, 2\ns_add_u32 s24, s24, s21')
    A(f's_lshl_b32 {S_OUT}, s24, 15\ns_lshl_b32 s25, s22, 10\ns_add_u32 {S_OUT}, {S_OUT}, s25\ns_add_u32 {S_OUT}, {S_OUT}, s23')
    A(f's_lshl_b32 {S_FO}, s24, 14\ns_lshl_b32 s25, s22, 21\ns_add_u32 {S_FO}, {S_FO}, s25\ns_add_u32 {S_FO}, {S_FO}, {WS_O}')
    A(f's_lshr_b32 s25, s24, 3\ns_lshl_b32 {S_FC}, s22, 4\ns_add_u32 s25, s25, {S_FC}\ns_mul_i32 {S_FC}, s25, {ACCB}\ns_bfe_u32 s25, s24, 0x20001\ns_lshl_b32 s25, s25, 7\ns_add_u32 {S_FC}, {S_FC}, s25\ns_add_u32 {S_FC}, {S_FC}, {WS_ACC + 2560}')

def halo_edge(A, x):
    A(f's_cmp_lt_u32 s39, 2\ns_cbranch_scc1 L_nb{x}')
    A.label(f'L_nb2{x}')
    def edge():
        A.label(f'L_nb{x}'); A.fence(); A.raw(';PAD')
        A('v_mov_b32 v48, 0\nv_mov_b32 v49, 0\nv_mov_b32 v50, 0\nv_mov_b32 v51, 0\nv_add_u32 v7, s27, v8')
        for i in range(4): A(f'ds_write_b128 v7, v[48:51] offset:{i*1024}')
        A(f's_cmp_eq_u32 s39, 1\ns_cbranch_scc1 L_nb2{x}')
        for i in range(4, 8): A(f'ds_write_b128 v7, v[48:51] offset:{i*1024}')
        A(f's_branch L_nb2{x}')
    OOL.append(edge)
def halo_issue(A):
    A('s_mov_b32 exec_lo, s26\ns_mov_b32 exec_hi, 0')
    poll_issue(A, PD, 55, 's9')
    A('s_mov_b64 exec, -1')
def halo_fetch(A, x, first=0):
    A('s_mov_b32 exec_lo, s26\ns_mov_b32 exec_hi, 0')
    poll(A, PD, 55, 's9', inline=True, first=first)
    A('s_mov_b64 exec, -1')
    stamp(A, 5)
    for nb in range(3 if x == 'A' else 2):
        if nb < 2: A(f's_bitcmp0_b32 s26, {2*nb}\ns_cbranch_scc1 L_sk{nb}{x}')
        A(f's_sub_u32 s25, s33, {(2-nb)*16384}\ns_add_u32 m0, s27, {nb*4096}')
        for i in range(4): A(f'buffer_load_dwordx4 v8, s[52:55], s25 offen offset:{i*1024} sc1 lds')
        if nb < 2: A.label(f'L_sk{nb}{x}')
    stamp(A, 7)

def gen(A):
    name = NAME
    WSZ = WS_SIZE if not OPT['stamps'] else 0x2000000
    A.raw(f'.globl {name}\n.p2align 12\n.type {name},@function\n{name}:')
    stamp(A, 30)
    A('s_cmp_ge_u32 s2, 256\ns_cbranch_scc1 L_end')
    A('s_load_dwordx16 s[4:19], s[0:1], 0\ns_load_dwordx4 s[20:23], s[0:1], 64')
    A('v_lshrrev_b32 v2, 6, v0\nv_and_b32 v1, 63, v0')
    A('s_and_b32 s36, s2, 7\ns_lshr_b32 s37, s2, 3')
    A('v_readfirstlane_b32 s41, v2')
    A('s_and_b32 s38, s37, 1')
    A('s_and_b32 s39, s36, 3\ns_lshl_b32 s39, s39, 2\ns_bfe_u32 s42, s37, 0x20001\ns_add_u32 s39, s39, s42')
    A('s_lshl_b32 s35, s38, 2\ns_xor_b32 s35, s35, s36\ns_and_b32 s35, s35, 4\ns_lshr_b32 s42, s37, 3\ns_add_u32 s35, s35, s42')
    A('s_lshl_b32 s40, s35, 1\ns_add_u32 s40, s40, s38')
    A('v_lshlrev_b32 v8, 4, v1\nv_and_b32 v10, 31, v1\nv_lshrrev_b32 v11, 5, v1')
    A('s_cmp_lt_u32 s41, 4\ns_cbranch_scc1 L_cpre')
    A('s_mov_b32 s46, 0x200000\ns_mov_b32 s47, 0x20000\ns_mov_b32 s50, 0x180000\ns_mov_b32 s51, 0x20000')
    A('s_sub_u32 s43, s41, 4')
    A('v_lshrrev_b32 v3, 3, v1\nv_and_b32 v4, 7, v1\nv_lshrrev_b32 v5, 4, v1')
    A('v_xor_b32 v6, v4, v5\nv_lshlrev_b32 v6, 4, v6\nv_lshl_add_u32 v6, v3, 10, v6')
    A('s_lshl_b32 s24, s39, 17\ns_lshl_b32 s25, s43, 15\ns_add_u32 s24, s24, s25')
    A('v_add_u32 v16, s24, v6\nv_xor_b32 v17, 64, v16\nv_add_u32 v17, 8192, v17\nv_add_u32 v18, 16384, v16\nv_add_u32 v19, 16384, v17')
    A('v_and_b32 v5, 1, v5\nv_lshlrev_b32 v5, 2, v5\nv_xor_b32 v4, v4, v5\nv_mul_u32_u24 v3, 3072, v3\nv_lshl_add_u32 v3, v4, 4, v3')
    A('s_mul_i32 s24, s43, 49152\ns_lshl_b32 s25, s35, 7\ns_add_u32 s24, s24, s25')
    A('v_add_u32 v20, s24, v3\nv_add_u32 v21, 24576, v20')
    A(f's_lshl_b32 s30, s43, 12\ns_lshl_b32 s31, s43, 11')
    A(f's_add_u32 s26, s39, s35\ns_and_b32 s26, s26, {OPT["grp"]}\ns_lshl_b32 s26, s26, {OPT["gsh"]}')
    A('s_cmp_eq_u32 s38, 0')
    A('s_waitcnt lgkmcnt(0)')
    A('s_cselect_b32 s44, s12, s4\ns_cselect_b32 s45, s13, s5\ns_cselect_b32 s48, s14, s6\ns_cselect_b32 s49, s15, s7')
    stamp(A, 0)
    ORD = [int(c) for c in str(OPT['order']).zfill(8)]
    vq = Q(A, 'vmcnt', 63)
    def wsoff(st): A(f's_xor_b32 s32, s26, {st*128}\ns_mul_i32 s33, s32, 1536')
    def issue(h):
        s, half = divmod(h, 2); base = RING[s % 3]
        if s >= 8:
            for p in range(2*half, 2*half + 2):
                wsoff(ORD[4*(s-8) + p])
                for i in range(2):
                    A(f's_add_u32 m0, s31, {(s-8)*SLOT + p*8192 + i*1024}')
                    A(f'buffer_load_dwordx4 v{20+i}, s[48:51], s33 offen lds'); vq.push(('st', s))
            return
        if half == 0:
            wsoff(ORD[s])
            for i in range(4):
                A(f's_add_u32 m0, s30, {base + i*1024}')
                A(f'buffer_load_dwordx4 v{16+i}, s[44:47], s32 offen lds'); vq.push(('st', s))
            return
        for seg in (1, 2):
            for i in range(2):
                A(f's_add_u32 m0, s31, {base + 8192 + seg*7168 + i*1024}')
                A(f'buffer_load_dwordx4 v{20+i}, s[48:51], s33 offen offset:{seg*1024} lds'); vq.push(('st', s))
        if h == OPT['q0']: issue(16)
    if OPT['hot']:
        A('s_cmp_lt_u32 s36, 4\ns_cselect_b32 s64, s14, s6\ns_cselect_b32 s65, s15, s7\ns_mov_b32 s66, 0x180000\ns_mov_b32 s67, 0x20000')
        A('s_lshl_b32 s68, s37, 10\ns_mul_i32 s69, s43, 393216\ns_add_u32 s68, s68, s69\ns_add_u32 s68, s68, 384\nv_lshlrev_b32 v22, 15, v1')
        A('s_mov_b64 exec, 0xfff')
        A('buffer_load_dword v23, v22, s[64:67], s68 offen'); vq.push('pf')
        A('s_mov_b64 exec, -1')
    for h in range(4): issue(h)
    stamp(A, 1)
    srd(A, 52, 22, WSZ); srd(A, 56, 20, 0x100)
    A('s_branch L_common')
    A.label('L_cpre'); A.fence()
    A('s_lshr_b32 s42, s41, 1\ns_and_b32 s43, s41, 1')
    for r in range(0, 8, 2): A(f'v_mov_b64 v[{16+r}:{17+r}], 0')
    A('s_lshl_b32 s24, s35, 1\ns_add_u32 s24, s24, s43\ns_lshl_b32 s24, s24, 4\ns_add_u32 s24, s24, s39')
    A('s_lshl_b32 s25, s42, 11\ns_lshl_b32 s32, s24, 14\ns_add_u32 s32, s32, s25')
    A(f's_lshl_b32 s34, s24, 8\ns_lshl_b32 s24, s42, 7\ns_add_u32 s34, s34, s24\ns_add_u32 s34, s34, {WS_F1}')
    A('s_waitcnt lgkmcnt(0)')
    srd(A, 52, 22, WSZ); srd(A, 56, 20, 0x100)
    A('s_cmp_lg_u32 s41, 0\ns_cbranch_scc1 L_d1')
    if OPT['pfc']:
        A('s_getpc_b64 s[24:25]')
        A.label('L_pc0')
        A(f's_add_u32 s24, s24, {name}-L_pc0\ns_addc_u32 s25, s25, -1')
        A(f's_lshl_b32 s30, s37, 7\nv_lshlrev_b32 v13, 12, v1\nv_add_u32 v13, s30, v13\nv_min_u32 v13, L_cold-{name}-4, v13\ns_mov_b64 exec, 0xff')
        A('global_load_dword v255, v13, s[24:25]')
        A('s_mov_b64 exec, -1')
    srd(A, 44, 8, 0x4000)
    A(f's_lshl_b32 s24, s35, 11\ns_mov_b32 m0, {WPH}')
    for i in range(2): A(f'buffer_load_dwordx4 v8, s[44:47], s24 offen offset:{i*1024} lds')
    A(f'v_mov_b32 v12, {TAG}\nv_lshl_add_u32 v12, v1, 2, v12\ns_mov_b64 exec, 0xffff\nds_write_b32 v12, v16\ns_mov_b64 exec, -1')
    A.label('L_d1'); A.fence()
    A('s_cmp_lg_u32 s41, 1\ns_cbranch_scc1 L_d2\ns_cmp_ge_u32 s2, 32\ns_cbranch_scc1 L_d2')
    A(f's_mul_i32 s24, s2, {ACCB}\ns_add_u32 s24, s24, {WS_ACC}')
    A('buffer_store_dwordx4 v[16:19], v8, s[52:55], s24 offen sc1\nbuffer_store_dwordx4 v[16:19], v8, s[52:55], s24 offen offset:1024 sc1')
    A('s_mov_b64 exec, 0xff00')
    for r in range(4): A(f'v_mov_b32 v{20+r}, 1.0')
    A('s_mov_b64 exec, -1')
    A('buffer_store_dwordx4 v[20:23], v8, s[52:55], s24 offen offset:2048 sc1')
    A.label('L_d2'); A.fence()
    if OPT['tlb']:
        A('s_cmp_lg_u32 s41, 2\ns_cbranch_scc1 L_d25')
        A(f'v_lshlrev_b32 v13, 18, v1\ns_mov_b32 exec_hi, 0x3ffff\nbuffer_load_dword v255, v13, s[52:55], 0 offen')
        A('s_mov_b64 exec, 0xffff\nglobal_load_dword v255, v13, s[18:19]\ns_mov_b64 exec, 3\nglobal_load_dword v255, v13, s[10:11]\nglobal_load_dword v255, v13, s[16:17]\ns_mov_b64 exec, -1')
        A.label('L_d25'); A.fence()
    A('s_cmp_lg_u32 s41, 3\ns_cbranch_scc1 L_d3\ns_cmp_lg_u32 s2, 0\ns_cbranch_scc1 L_d3')
    A(f's_mov_b32 s24, {WS_EP}\nbuffer_load_dwordx2 v[20:21], v16, s[52:55], s24 offen sc1')
    A.label('L_d3'); A.fence()
    if OPT['fw']:
        A('s_cmp_eq_u32 s38, 1\ns_cbranch_scc1 L_nofw\ns_mov_b64 exec, 0xff')
        A('buffer_store_dwordx4 v[16:19], v8, s[52:55], s34 offen sc1')
        A.label('L_nofw')
        A('s_mov_b64 exec, -1')
    srd(A, 44, 10, 0x80000); srd(A, 48, 16, 0x80000)
    stamp(A, 0)
    A.label('L_common'); A.fence()
    common(A)
    A('v_bfe_u32 v12, v1, 1, 3\nv_xor_b32 v12, v12, v11\nv_lshlrev_b32 v12, 4, v12')
    A('s_cmp_ge_u32 s41, 4\ns_cbranch_scc1 L_load')
    A('s_lshl_b32 s24, s42, 13\nv_lshl_add_u32 v13, v10, 7, s24')
    for ks in range(4): A(f'v_xor_b32 v14, {ks*32}, v12\nv_add_u32 v{2+ks}, v13, v14')
    for ks in range(4): A(f'v_add_u32 v{48+ks}, 0x10000, v{2+ks}')
    tr_lane(A, 12, 7, 3)
    A('v_bfe_u32 v13, v1, 3, 1\nv_xor_b32 v13, s43, v13\nv_lshl_add_u32 v12, v13, 6, v12')
    A('v_bfe_u32 v13, v1, 4, 1\nv_lshl_add_u32 v12, v13, 5, v12\nv_and_b32 v14, 3, v1\nv_lshl_add_u32 v12, v14, 3, v12')
    A(f'v_add_u32 v6, 16384, v12\nv_add_u32 v7, {16384 + 65536}, v12')
    tr_lane(A, 9, 5, 2)
    A(f'v_lshl_add_u32 v9, v14, 3, v9\ns_lshl_b32 s24, s43, 10\ns_add_u32 s24, s24, {WPH}\nv_add_u32 v9, s24, v9')
    A(f'v_mov_b32 v15, {TAG}\nv_lshlrev_b32 v55, 7, v1')
    A(f's_lshl_b32 s24, s40, 4\ns_add_u32 s24, s24, s39\ns_lshl_b32 s25, s24, 8\ns_add_u32 s9, s25, {WS_F1 - 512}')
    A(f's_lshl_b32 s33, s24, 14\ns_lshl_b32 s25, s41, 12\ns_add_u32 s33, s33, s25\ns_mul_i32 s27, s41, 12288\ns_add_u32 s27, s27, {KL}')
    A('s_min_u32 s24, s39, 2\ns_lshl_b32 s24, s24, 1\ns_lshr_b32 s26, 0x3f0, s24\ns_and_b32 s26, s26, 0x3f')
    A('s_lshl_b32 s24, s35, 4\ns_add_u32 s24, s24, s39\ns_lshl_b32 s24, s24, 2\ns_add_u32 s24, s24, s41\ns_lshl_b32 s24, s24, 10')
    A('s_cmp_eq_u32 s38, 0\ns_cselect_b32 s22, s16, s10\ns_cselect_b32 s23, s17, s11\ns_add_u32 s22, s22, s24\ns_addc_u32 s23, s23, 0')
    A('s_cmp_eq_u32 s38, 1\ns_cbranch_scc1 L_cpA')
    A('s_and_b32 s26, s26, 0x0f')
    A('v_and_b32 v12, 15, v1\nv_lshlrev_b32 v12, 4, v12\nv_lshl_add_u32 v12, v11, 8, v12\nv_lshl_add_u32 v52, v13, 12, v12')
    A(f's_lshl_b32 s25, s42, 11\nv_mul_u32_u24 v13, 12288, v13\nv_add_u32 v12, v12, v13\ns_add_u32 s24, s25, {VL + 8192}\nv_add_u32 v53, s24, v12')
    A(f's_add_u32 s24, s25, {KL + 8192}\nv_add_u32 v54, s24, v8\ns_add_u32 s30, s32, 4096\ns_add_u32 s31, s32, 8192')
    A('s_branch L_cpd')
    A.label('L_cpA'); A.fence()
    for r in range(0, 32, 2): A(f'v_mov_b64 v[{168+r}:{169+r}], v[{ONES}:{ONES+1}]')
    A(f's_mul_i32 s30, s41, {PHI_WAVE}\ns_add_u32 s30, s30, {PHI}')
    A('v_and_b32 v12, 1, v1\nv_lshlrev_b32 v12, 4, v12\nv_mov_b32 v13, 0x3f80\nv_lshlrev_b32 v13, v12, v13')
    A('v_lshlrev_b32 v12, 4, v11\nv_sub_u32 v12, v10, v12\nv_lshrrev_b32 v12, 1, v12')
    for r in range(8): A(f'v_cmp_eq_u32 vcc, {r}, v12\nv_cndmask_b32 v{SEL+r}, 0, v13, vcc')
    A('v_lshlrev_b32 v54, 2, v10\nv_lshl_add_u32 v54, v11, 9, v54')
    A(f'v_add_u32 v52, s30, v8\ns_xor_b32 s24, s41, 2\ns_mul_i32 s25, s24, {PHI_WAVE}\ns_add_u32 s25, s25, {PHI}\nv_add_u32 v53, s25, v8')
    A(f's_lshl_b32 s24, s35, 2\ns_lshl_b32 s25, s43, 1\ns_add_u32 s24, s24, s25\ns_add_u32 s24, s24, s42\ns_mul_i32 s31, s24, {ACCB}\ns_add_u32 s31, s31, {WS_ACC}')
    A.label('L_cpd'); A.fence()
    if OPT['pads']:
        A('s_mov_b64 exec, 0')
        for w in range(3): A(f's_cmp_eq_u32 s41, {w}\ns_cbranch_scc1 L_chain{w}')
        A('s_branch L_chain3')
        A.label('L_padret')
        A('s_mov_b64 exec, -1')
    A('s_cmp_lg_u32 s41, 1\ns_cbranch_scc1 L_d4\ns_cmp_ge_u32 s2, 32\ns_cbranch_scc1 L_d4')
    A(f's_waitcnt vmcnt(0)\ns_mov_b64 exec, 1\nbuffer_atomic_add v{V1}, v{V0}, s[56:59], 0 offen offset:8\ns_mov_b64 exec, -1')
    A.label('L_d4'); A.fence()
    A('s_cmp_lg_u32 s41, 3\ns_cbranch_scc1 L_cons\ns_cmp_lg_u32 s2, 0\ns_cbranch_scc1 L_cons')
    A('s_waitcnt vmcnt(0)\nv_readfirstlane_b32 s60, v20\nv_readfirstlane_b32 s61, v21')
    A(f's_add_u32 s60, s60, 1\ns_addc_u32 s61, s61, 0\ns_cmp_eq_u64 s[60:61], 0\ns_cselect_b32 s60, 1, s60\ns_mov_b32 s24, {WS_EP}')
    A('v_mov_b32 v20, s60\nv_mov_b32 v21, s61\ns_mov_b64 exec, 1')
    A(f'buffer_store_dwordx2 v[20:21], v{V0}, s[56:59], 0 offen sc1')
    A(f'buffer_store_dwordx2 v[20:21], v{V0}, s[52:55], s24 offen sc1')
    A('s_mov_b64 exec, -1\ns_waitcnt vmcnt(0)\ns_branch L_cons')
    A.label('L_load'); A.fence()
    A('v_lshl_add_u32 v13, v10, 7, s30')
    for ks in range(4): A(f'v_xor_b32 v14, {ks*32}, v12\nv_add_u32 v{2+ks}, v13, v14')
    for ks in range(4): A(f'v_add_u32 v{12+ks}, 0x10000, v{2+ks}')
    tr_lane(A, 6, 7, 3)
    A('v_bfe_u32 v7, v1, 3, 1\nv_xor_b32 v7, s38, v7\nv_lshl_add_u32 v6, v7, 6, v6')
    A('v_bfe_u32 v7, v1, 4, 1\nv_lshl_add_u32 v6, v7, 5, v6\nv_and_b32 v7, 3, v1\nv_lshl_add_u32 v7, v7, 3, v6\nv_xor_b32 v6, 64, v7')
    A(f's_cmp_eq_u32 s38, 0\ns_cselect_b32 s27, 0x{f2u(0.25*LOG2E):x}, 1.0')
    A(f's_xor_b32 s9, {S_QG}, 0x40000\ns_sub_u32 s42, s9, 8192')
    XF = 64
    for s in range(8):
        vq.wait(('st', s))
        A('s_barrier')
        stamp(A, 32 + s)
        for ks in range(4):
            A(f'ds_read_b128 {vr(XF + 16*s + 4*ks, 4)}, v{(2 if RING[s % 3] < 65536 else 12) + ks} offset:{RING[s % 3] & 65535}')
        sm = [x for x in (OPT['smq'], OPT['smo']) if x >= 0]
        if s in sm: A('s_waitcnt lgkmcnt(0)')
        elif s - 1 not in sm: A('s_waitcnt lgkmcnt(4)' if not any(0 < s - x <= 2 for x in sm) else 's_waitcnt lgkmcnt(0)')
        if s == OPT['tagl']: A(f'buffer_load_dwordx3 v[24:26], v{V0}, s[56:59], 0 offen sc1'); vq.push('tag')
        for h in (2*s + 4, 2*s + 5):
            if h < 16: issue(h)
        if s == OPT['q1']: issue(17)
        if s == OPT['q23']: issue(18); issue(19)
        if s == OPT['smq']:
            A('s_lshl_b32 s24, s35, 4\ns_add_u32 s24, s24, s39\ns_lshl_b32 s24, s24, 2\ns_add_u32 s24, s24, s43\ns_mul_i32 s24, s24, 3072\ns_add_u32 s24, s48, s24\ns_addc_u32 s25, s49, 0')
            for i in range(1024 // OPT['sms']): A(f's_load_dword s21, s[24:25], {i*OPT["sms"]}')
        if s == OPT['smo']:
            A('s_cmp_eq_u32 s38, 0\ns_cselect_b32 s22, s16, s10\ns_cselect_b32 s23, s17, s11')
            A('s_lshl_b32 s24, s35, 4\ns_add_u32 s24, s24, s39\ns_lshl_b32 s24, s24, 2\ns_add_u32 s24, s24, s43\ns_lshl_b32 s24, s24, 10\ns_add_u32 s24, s22, s24\ns_addc_u32 s25, s23, 0')
            for i in range(1024 // OPT['sms']): A(f's_load_dword s21, s[24:25], {i*OPT["sms"]}')
        if s == OPT['who']:
            A('s_bitcmp0_b32 s37, 0\ns_cselect_b32 s24, s10, s16\ns_cselect_b32 s25, s11, s17')
            A('s_lshr_b32 s32, s37, 1\ns_lshl_b32 s32, s32, 2\ns_add_u32 s32, s32, s43\ns_lshl_b32 s32, s32, 13\nv_lshlrev_b32 v22, 10, v1\nv_add_u32 v22, s32, v22\ns_mov_b64 exec, 0xff')
            A('global_load_dword v9, v22, s[24:25] offset:384'); vq.push('pf')
            A('s_mov_b64 exec, -1')
        if s == 6:
            vq.wait('tag')
            A('s_mov_b32 s3, 0')
            A.label('L_tg')
            A('v_readfirstlane_b32 s60, v24\nv_readfirstlane_b32 s61, v25\nv_readfirstlane_b32 s24, v26')
            A('s_cmp_lg_u64 s[60:61], 0\ns_cselect_b32 s24, s24, 0\ns_cmp_lt_u32 s24, 32\ns_cbranch_scc1 L_tgw')
            A.label('L_tgd')
            A(f'v_mov_b32 v22, {TAG}\nds_write_b64 v22, v[24:25]\ns_waitcnt lgkmcnt(0)')
            def tgw():
                A.label('L_tgw'); A.fence()
                A(f's_sleep 1\nbuffer_load_dwordx3 v[24:26], v{V0}, s[56:59], 0 offen sc1\ns_waitcnt vmcnt(0)')
                A(f's_add_u32 s3, s3, 1\ns_cmp_lt_u32 s3, {SPIN_MAX}\ns_cbranch_scc1 L_tg\ns_branch L_tgd')
            OOL.append(tgw)
    srd(A, 44, 10, 0x80000); srd(A, 48, 16, 0x80000)
    vq.wait(('st', 7 + OPT['e0w']))
    A('s_waitcnt lgkmcnt(0)\ns_barrier')
    stamp(A, 40)
    stamp(A, 42); stamp(A, 2)
    if OPT['lprio']:
        if not OPT['aprio']: A('s_cmp_eq_u32 s38, 1\ns_cbranch_scc1 L_noprio')
        A(f's_setprio {OPT["lprio"]}')
        A.label('L_noprio')
    lq = Q(A, 'lgkmcnt', 15)
    NR = 6; WF = 192; QD = OPT['qd']
    def qread(m):
        n = m % 32; f = WF + 4 * (m % NR)
        for rd in range(2):
            A(f'ds_read_b64_tr_b16 v[{f+2*rd}:{f+2*rd+1}], v{6 + m//32} offset:{n*2048 + rd*512}'); lq.push(('q', m))
    for m in range(QD): qread(m)
    ep = []
    for e in range(2):
        ep += [f'v_mul_f32 v{32+8*e+r}, s27, v{32+8*e+r}' for r in range(8)] + [f'v_cvt_pk_bf16_f32 v{16+8*e+2*r}, v{32+8*e+2*r}, v{33+8*e+2*r}' for r in range(4)]
        ep += [f'buffer_store_dwordx4 {vr(16+8*e+4*h,4)}, v8, s[52:55], {"s9" if e else "s42"} offen offset:{h*1024} sc1' for h in range(2)]
    for m in range(64):
        lq.wait(('q', m))
        acc = 32 + 16 * (m // 32)
        A(mfma32(acc, WF + 4*(m % NR), XF + 4*(m % 32), acc if m % 32 else None))
        if m == 16 - QD - 4 and OPT['e0w'] < 2:
            vq.wait(('st', 9))
            lds_add(A, C_WQ2, 22); lq.push('cnt')
        if m + QD == 16 and OPT['e0w'] < 2:
            lds_spin(A, C_WQ2, 4, 22, 23, sleep=False); lq.q = []
            stamp(A, 41); stamp(A, 22)
        if m + QD < 64: qread(m + QD)
        if m >= 32:
            for _ in range(OPT['epn']):
                if ep: A(ep.pop(0))
        if m == 31: stamp(A, 23)
        if m == 33: stamp(A, 24)
        if m in (20, 21):
            for r in range(4): A(f'v_mov_b32 v{17 + 8*(m-20) + 2*r}, s60')
        if m == 44:
            tr_lane(A, 15, 5, 2)
            A(f'v_and_b32 v14, 3, v1\nv_lshl_add_u32 v15, v14, 3, v15\ns_lshl_b32 s24, s38, 10\ns_add_u32 s24, s24, {WPH}\nv_add_u32 v15, s24, v15')
        if m == 46:
            for hs in range(2):
                for rd in range(2): A(f'ds_read_b64_tr_b16 v[{16+4*hs+2*rd}:{17+4*hs+2*rd}], v15 offset:{hs*512 + rd*256}'); lq.push('wphi')
        if m == OPT['qpoll']:
            A('s_cmp_eq_u32 s38, 0\ns_cbranch_scc1 L_noqp')
            gran_issue(A, 32, 2)
            A.label('L_noqp')
    stamp(A, 4)
    if OPT['lprio']: A('s_setprio 0')
    A('s_cmp_eq_u32 s38, 1\ns_cbranch_scc1 L_qa')
    for r in range(16): A(f'v_mul_f32 v{48+r}, s27, v{48+r}')
    for r in range(8): A(f'v_cvt_pk_bf16_f32 v{24+r}, v{48+2*r}, v{49+2*r}')
    A(f'ds_write_b128 v{QRD}, v[24:27]')
    A('s_waitcnt lgkmcnt(0)\ns_barrier')
    gran_issue(A, 32, 1)
    A('s_branch L_att')
    A.label('L_qa'); A.fence()
    A(f's_lshl_b32 s24, s43, 10\nv_add_u32 v15, s24, v{QRD}\ns_nop 8')
    for r in range(8): A(f'v_cvt_pk_bf16_f32 v{104+r}, v{48+2*r}, v{49+2*r}')
    for hs in range(2): A(mfma32(64+16*hs, 16+4*hs, 104+4*hs, None))
    def phiq(E, hs):
        p = 64 + 16 * hs
        dual_exp(E, p, p + 8, 96 + 2*hs)
        for m in range(8): E(f'v_cvt_pk_bf16_f32 v{(104 if hs == 0 else 48)+m}, v{p+2*m}, v{p+2*m+1}')
    for a, b in zip(stream(phiq, 0), stream(phiq, 1)): A(a); A(b)
    A(f'ds_write_b128 v15, v[104:107] offset:{PQX-QX}\nds_write_b128 v15, v[108:111] offset:{PQX-QX+1024}')
    stamp(A, 6)
    gran_wait(A, 32, 2, 24, True)
    A(f'ds_write_b128 v{QRD}, v[24:27]')
    stamp(A, 7)
    A('s_waitcnt lgkmcnt(0)\ns_barrier')
    A('s_branch L_att')
    A.label('L_cons'); A.fence(); A.raw(';PAD')
    stamp(A, 21)
    KA, VA = [96, 112], [128, 144]
    FS = [16, 32, 64, 80]
    lq = Q(A, 'lgkmcnt', 15)
    def reads(n):
        s, ks = divmod(n, 4); f = FS[n % 4]
        xa, wa = (2, 6) if RING[s % 3] < 65536 else (48, 7)
        so = RING[s % 3] & 65535
        def rx(tt): return (f'ds_read_b128 v[{f+4*tt}:{f+4*tt+3}], v{xa+ks} offset:{so + tt*4096}', (n, 'x', tt))
        def rw(seg, rd): return (f'ds_read_b64_tr_b16 v[{f+8+4*seg+2*rd}:{f+9+4*seg+2*rd}], v{wa} offset:{so + seg*8192 + ks*2048 + rd*512}', (n, 'w', seg))
        return [rx(0), rw(0, 0), rw(0, 1), rx(1), rw(1, 0), rw(1, 1)]
    def mk(n, tt): return mfma32(KA[tt], FS[n % 4] + 8, FS[n % 4] + 4*tt, KA[tt] if n else None)
    def mv(n, tt): return mfma32(VA[tt], FS[n % 4] + 4*tt, FS[n % 4] + 12, VA[tt] if n else None)
    A('s_waitcnt lgkmcnt(0)\ns_barrier')
    stamp(A, 1)
    for n in range(2):
        for t, tag in reads(n): A(t); lq.push(tag)
    for n in range(28):
        nxt = reads(n + 2)
        newstage = (n % 4 == 2)
        k = 0
        for mi, (seg, tt) in enumerate([(0, 0), (0, 1), (1, 0), (1, 1)]):
            if newstage and mi == 0: lq.all()
            else: lq.wait((n, 'x', tt), (n, 'w', seg))
            A(mv(n, tt) if seg else mk(n, tt))
            if newstage and mi == 0: A('s_barrier')
            for _ in range(2):
                if k < len(nxt):
                    t, tag = nxt[k]; A(t); lq.push(tag); k += 1
        if n == 20: A('s_waitcnt vmcnt(0)')
        if n == 23:
            for hs in range(2):
                for rd in range(2): A(f'ds_read_b64_tr_b16 v[{56+4*hs+2*rd}:{57+4*hs+2*rd}], v9 offset:{hs*512 + rd*256}'); lq.push('wphi')
        if n == 26:
            A('s_not_b64 exec, s[28:29]\nv_mov_b64 v[56:57], 0\nv_mov_b64 v[58:59], 0\ns_mov_b64 exec, s[28:29]\nv_mov_b64 v[60:61], 0\nv_mov_b64 v[62:63], 0\ns_mov_b64 exec, -1')
        if n == 27: A('ds_read_b64 v[12:13], v15'); lq.push('tag')
    if OPT['cprio']: A('s_setprio 2')
    r30, r31 = reads(30), reads(31)
    nxt = r30[:4] + r31[:4] + r30[4:] + r31[4:]
    for g, (n, tt) in enumerate([(n, tt) for n in range(28, 32) for tt in range(2)]):
        if g == min(OPT['e0pos'], 7): lq.all()
        else: lq.wait((n, 'x', tt), (n, 'w', 0))
        A(mk(n, tt))
        if g == OPT['e0pos']: A('s_barrier')
        for t, tag in nxt[3*g:3*g+3]: A(t); lq.push(tag)
        if g == 5: A('v_readfirstlane_b32 s60, v12\nv_readfirstlane_b32 s61, v13')
    if OPT['smc']:
        if OPT['smc'] == 1:
            for i in range(8): A(f's_load_dwordx2 s[20:21], s[22:23], {i*128 + 60}')
        else:
            for i in range(15): A(f's_load_dword s21, s[22:23], {i*64}')
    stamp(A, 2)
    A('s_cmp_eq_u32 s38, 1\ns_cbranch_scc1 L_epA')
    hist = list(A.hist)
    def weave(mf, fill, per):
        fill = list(fill)
        for m in mf:
            A(m)
            for _ in range(per):
                if fill: A(fill.pop(0))
        for f in fill: A(f)
    def cv(d, a): return [f'v_cvt_pk_bf16_f32 v{d+m}, v{a+2*m}, v{a+2*m+1}' for m in range(4)]
    ckv = [x for tt in range(2) for e in range(2) for x in cv(160+8*tt+4*e, KA[tt]+8*e)]
    sk = [f'buffer_store_dwordx4 {vr(160+8*tt+4*e,4)}, v8, s[52:55], {"s30" if e else "s32"} offen offset:{tt*1024} sc1' for tt in range(2) for e in range(2)]
    cvv = [[x for e in range(2) for x in cv(176+8*tt+4*e, VA[tt]+8*e)] for tt in range(2)]
    sv = [f'buffer_store_dwordx4 {vr(176+8*tt+4*e,4)}, v52, s[52:55], s31 offen offset:{tt*1024+e*512} sc1' for tt in range(2) for e in range(2)]
    A(mv(28, 0))
    weave([mv(n, 0) for n in range(29, 32)] + [mv(28, 1), mv(29, 1)], ckv, 4)
    weave([mv(30, 1), mv(31, 1)], cvv[0], 4)
    if OPT['cprio']: A('s_setprio 0')
    if OPT['e0pos'] >= 8: A('s_barrier')
    for x in sk + sv[:2] + cvv[1] + sv[2:]: A(x)
    stamp(A, 3)
    flag(A, 's34', 2)
    stamp(A, 4)
    if OPT['wm']:
        A('s_bitcmp0_b32 s41, 0\ns_cselect_b32 s24, s10, s16\ns_cselect_b32 s25, s11, s17')
        A('s_lshr_b32 s21, s37, 1\ns_lshl_b32 s21, s21, 3\ns_add_u32 s21, s21, s36\ns_lshl_b32 s21, s21, 1\ns_add_u32 s21, s21, s42\ns_lshl_b32 s21, s21, 11\nv_add_u32 v6, s21, v55\ns_mov_b64 exec, 0xffff')
        A('global_load_dword v255, v6, s[24:25]\ns_mov_b64 exec, -1')
    halo_edge(A, 'B')
    A('s_cmp_eq_u32 s43, 1\ns_cbranch_scc1 L_epB1')
    for tt in range(2):
        for e in range(2):
            A(f'ds_write_b128 v54, {vr(160+8*tt+4*e,4)} offset:{e*12288 + tt*1024}')
            A(f'ds_write_b128 v53, {vr(176+8*tt+4*e,4)} offset:{tt*1024 + e*512}')
    A.label('L_epB1')
    A(f'v_subrev_u32 v9, s43, v9\ns_cmp_eq_u32 s26, 0\ns_cbranch_scc1 L_epB2'.replace('v_subrev_u32 v9, s43, v9', f'v_and_b32 v9, 0x{0xffffffff ^ 1024:x}, v9'))
    if OPT['bdly']: A(f's_sleep {OPT["bdly"]}')
    halo_issue(A); halo_fetch(A, 'B')
    A.label('L_epB2')
    if OPT['bt']:
        A('s_bfe_u32 s24, s37, 0x10001\ns_lshl_b32 s24, s24, 2\ns_add_u32 s24, s24, s41\ns_lshl_b32 s24, s24, 16\ns_lshr_b32 s25, s37, 2\ns_lshl_b32 s25, s25, 7\ns_add_u32 s24, s24, s25\nv_lshlrev_b32 v6, 10, v1')
        A('buffer_load_dword v255, v6, s[44:47], s24 offen\nbuffer_load_dword v255, v6, s[48:51], s24 offen')
    for rd in range(2): A(f'ds_read_b64_tr_b16 v[{20+2*rd}:{21+2*rd}], v9 offset:{rd*256}')
    A(f's_waitcnt vmcnt({2 if OPT["bt"] else 0}) lgkmcnt(0)\ns_barrier')
    gran_issue(A, 32, 1)
    A(f'ds_read_b128 v[28:31], v{QRD}')
    A('s_branch L_att')
    A.label('L_epA'); A.hist = hist; A.raw(';PAD')
    KPK = {0: 160, 1: 208}
    VM = [168, 184]
    EM = {(0, 0): 16, (0, 1): 24, (1, 0): 32, (1, 1): 40}
    TM = {(0, 0): 2, (0, 1): 4, (1, 0): 12, (1, 1): 14}
    PT = {(0, 0): 64, (0, 1): 80, (1, 0): 96, (1, 1): 16}
    def phik(E, tt, hs, fast):
        p = KA[tt] + 8*hs; em = EM[(tt, hs)]; t = TM[(tt, hs)]; d = PT[(tt, hs)]
        if fast:
            for r in range(8): E(f'v_mul_f32 v{p+r}, s62, v{p+r}')
            for r in range(8): E(f'v_exp_f32_e64 v{em+r}, -v{p+r}\nv_exp_f32 v{p+r}, v{p+r}')
        else: dual_exp(E, p, em, t)
        E(f'v_add_f32 v{t}, v{p}, v{p+1}\nv_add_f32 v{t+1}, v{em}, v{em+1}')
        for r in range(2, 8): E(f'v_add_f32 v{t}, v{t}, v{p+r}\nv_add_f32 v{t+1}, v{t+1}, v{em+r}')
        E(f'v_permlane32_swap_b32 v{t}, v{t+1}\nv_add_f32 v{t}, v{t}, v{t+1}')
        if fast: E(f'v_max_f32 v6, v6, v{t}')
        E(f'v_rcp_f32 v{t}, v{t}\nv_mov_b32 v{t+1}, v{t}\nv_permlane32_swap_b32 v{t}, v{t+1}')
        for r in range(8): E(f'v_mul_f32 v{p+r}, v{p+r}, v{t}')
        for x in cv(p, p): E(x)
        for r in range(8):
            E(f'v_mul_f32 v{em+r}, v{em+r}, v{t+1}')
            if r == 1: E(mfma32(d, p, SEL, None))
        for x in cv(em, em): E(x)
    def phik2(E, tt, hs):
        d = PT[(tt, hs)]
        for x in cv(d, d) + cv(d + 4, d + 8): E(x)
    def tm2(tt): return [mfma32(PT[(tt, hs)], EM[(tt, hs)], SEL + 4, PT[(tt, hs)]) for hs in range(2)]
    def pair(fn, tt, *a): return [x for ab in zip(stream(fn, tt, 0, *a), stream(fn, tt, 1, *a)) for x in ab]
    ck = [cv(KPK[tt], KA[tt]) + cv(KPK[tt]+4, KA[tt]+8) for tt in range(2)]
    pm = [[mfma32(KA[tt], 56, KPK[tt], None), mfma32(KA[tt], 60, KPK[tt]+4, KA[tt])] for tt in range(2)]
    KV = [128, 144]
    def kvm(tt): return [mfma32(KV[hs], VM[hs] + 8*tt + 4*blk, PT[(tt, hs)] + 4*blk, KV[hs] if tt or blk else None) for blk in range(2) for hs in range(2)]
    A(mv(28, 0))
    weave([mv(28, 1), mv(29, 0)], ck[0], 4)
    weave(pm[0], ck[1], 4)
    for m in pm[1]: A(m)
    A(mv(29, 1))
    A('v_mov_b32 v6, 0')
    fast = bool(OPT['fastk'])
    S = [pair(phik, tt, fast) for tt in range(2)]
    vc = ['s_mov_b64 exec, s[28:29]'] + [x for tt in range(2) for x in cv(VM[0]+8*tt, VA[tt]) + cv(VM[0]+8*tt+4, VA[tt]+8)]
    vc += ['s_not_b64 exec, s[28:29]'] + [x for tt in range(2) for x in cv(VM[1]+8*tt, VA[tt]) + cv(VM[1]+8*tt+4, VA[tt]+8)] + ['s_mov_b64 exec, -1']
    D = 2 * OPT['stag']
    rest = [mv(30, 0), mv(30, 1), mv(31, 0), mv(31, 1)]
    L = len(S[0])
    tail0 = {L: tm2(0), L + 14: pair(phik2, 0), L + 18: kvm(0)[:2], L + 24: kvm(0)[2:]}
    assert D >= 26
    for i in range(0, L + D, 2):
        if i < L: A(S[0][i]); A(S[0][i+1])
        if rest and i % 4 == 2:
            A(rest.pop(0))
            if not rest and OPT['cprio']: A('s_setprio 0')
        if OPT['e0pos'] >= 8 and i == OPT['e0a']: A('s_barrier')
        if i == D - 2:
            halo_edge(A, 'A')
            for x in vc: A(x)
            stamp(A, 6)
        if i >= D: A(S[1][i-D]); A(S[1][i-D+1])
        if i == 2 * OPT['hpos'] and not OPT['af']: halo_issue(A)
        for x in tail0.get(i, []): A(x)
    for m in tm2(1): A(m)
    stamp(A, 3)
    A(f's_lshl_b32 s25, s41, 2\ns_add_u32 s25, s25, {TAG + C_PAIR}')
    if fast: A('v_cmp_nlt_f32 vcc, v6, s63\ns_cbranch_vccnz L_kexact'.replace('v6, s63', 's63, v6').replace('nlt', 'ngt'))
    for x in pair(phik2, 1): A(x)
    for m in kvm(1): A(m)
    A.label('L_kdone')
    A('v_mov_b32 v6, s25\nv_xor_b32 v7, 8, v6')
    if fast:
        def kexact():
            A.label('L_kexact'); A.fence()
            A('s_nop 15')
            for tt in range(2):
                for m in pm[tt]: A(m)
            for tt in range(2):
                for x in pair(phik, tt, False) + tm2(tt) + pair(phik2, tt) + kvm(tt): A(x)
            A('s_branch L_kdone')
        COLD.append(kexact)
    if not OPT['af']: halo_fetch(A, 'A')
    else:
        if OPT['af'] == 2: halo_issue(A)
        A('s_nop 7')
    A('s_cmp_eq_u32 s42, 1\ns_cbranch_scc1 L_ex1')
    for i in range(2):
        if i == 1: A.label('L_ex1')
        keep, kz = (KV[0], KV[0] + 8) if i == 0 else (KV[1] + 8, KV[1])
        send, sz = (KV[1] + 8, KV[1]) if i == 0 else (KV[0], KV[0] + 8)
        A(f'ds_write_b128 v52, {vr(send,4)}\nds_write_b128 v52, {vr(send+4,4)} offset:1024\nds_write_b32 v52, v{sz} offset:2048')
        A(f'ds_write_b32 v6, v{V1}\ns_mov_b32 s3, {SPIN_MAX * 4}')
        A.label(f'L_exs{i}')
        A('ds_read_b32 v12, v7\nds_read_b128 v[32:35], v53\nds_read_b128 v[36:39], v53 offset:1024\nds_read_b32 v40, v53 offset:2048')
        A(f's_sub_u32 s3, s3, 1\ns_waitcnt lgkmcnt(0)\nv_cmp_eq_u32 vcc, 0, v12\ns_cselect_b64 vcc, 0, vcc\ns_cbranch_vccnz L_exs{i}')
        for r in range(9): A(f'v_add_f32 v{32+r}, v{keep + r if r < 8 else kz}, v{32+r}')
        if i == 0: A('s_branch L_exd')
    A.label('L_exd'); A.fence()
    stamp(A, 20)
    def atomics():
        for r in range(8): A(f'buffer_atomic_add_f32 v{32+r}, v54, s[52:55], s31 offen offset:{rowof(r,0)*128}')
        A('s_mov_b32 exec_hi, 0')
        A(f'buffer_atomic_add_f32 v40, v54, s[52:55], s31 offen offset:2048')
        A('s_mov_b64 exec, -1')
    if OPT['af'] == 2: halo_fetch(A, 'A')
    atomics()
    stamp(A, 4)
    A(f's_lshl_b32 s24, s41, 10\nv_add_u32 v9, s24, v{QRD}')
    if OPT['af'] == 1:
        halo_issue(A)
        A('s_waitcnt vmcnt(1)')
        count_add(A, 's31', 2304)
        stamp(A, 19)
        halo_fetch(A, 'A', 1)
        A('s_waitcnt vmcnt(0)')
    elif OPT['c2e']:
        A('s_waitcnt vmcnt(0)')
        count_add(A, 's31', 2304)
        stamp(A, 19)
    else: A('s_waitcnt vmcnt(9)')
    A('s_barrier')
    A(f'ds_read_b128 v[28:31], v{QRD}\nds_read_b128 v[48:51], v9 offset:{PQX-QX}\nds_read_b128 v[52:55], v9 offset:{PQX-QX+1024}')
    A.label('L_att'); A.fence(); A.raw(';PAD')
    stamp(A, 8)
    if OPT['wprio']:
        A('s_cmp_lt_u32 s41, 4\ns_cbranch_scc1 L_wp\ns_setprio 1')
        A.label('L_wp')
    A('s_cmp_lt_u32 s39, 2\ns_cbranch_scc1 L_bslow')
    FA = bool(OPT['fasta'])
    bunit(A, False, FA, True, 'f')
    A.label('L_bdone'); A.fence()
    stamp(A, 11)
    O = OACC
    A(f's_add_u32 s24, {S_OA}, 0x200000\ns_add_u32 s27, {S_C3}, {16*ACCB}\ns_nop 9')
    if FA:
        A(f'v_pk_mul_f32 v[2:3], v[{O}:{O+1}], 0')
        for m in range(1, 4): A(f'v_pk_fma_f32 v[2:3], v[{O+2*m}:{O+2*m+1}], 0, v[2:3]')
        A(f'v_add_f32 v2, v2, v3\nv_add_f32 v2, v2, v{O+8}\nv_subrev_u32 v2, 0x{f2u(2.0**-60):x}, v2')
        A(f'v_cmp_lt_u32 vcc, 0x{f2u(2.0**60) - f2u(2.0**-60):x}, v2\ns_cbranch_vccnz L_bexact')
        A.label('L_bdone2')
    lds_add(A, C_ATT, 2)
    A(f'v_rcp_f32 v4, v{O+8}')
    for m in range(4): A(f'v_pk_mul_f32 v[{O+2*m}:{O+2*m+1}], v[{O+2*m}:{O+2*m+1}], v[4:5] op_sel_hi:[1,0]')
    for m in range(4): A(f'v_cvt_pk_bf16_f32 v{16+m}, v{O+2*m}, v{O+2*m+1}')
    A(f'buffer_store_dwordx4 v[16:19], v{OST_}, s[52:55], s24 offen sc1')
    A('s_waitcnt vmcnt(1)')
    count_add(A, S_C3)
    stamp(A, 12)
    poll_issue(A, PD, V0, S_FC, count=32)
    A('v_bfe_u32 v6, v1, 2, 3\nv_lshl_add_u32 v6, v11, 4, v6\nv_lshlrev_b32 v6, 7, v6\nv_and_b32 v7, 3, v1\nv_lshl_add_u32 v6, v7, 3, v6')
    A(f's_cmp_lt_u32 s41, 4\ns_cselect_b32 s24, {WO1}, {WO2}\nv_add_u32 v6, s24, v6\nv_bfe_u32 v7, v1, 3, 2\nv_lshlrev_b32 v7, 5, v7')
    for ct in range(4): A(f'v_xor_b32 v12, {ct*32}, v7\nv_add_u32 v{2+ct}, v6, v12')
    A('v_and_b32 v9, 15, v1\nv_lshlrev_b32 v9, 11, v9\nv_bfe_u32 v12, v1, 4, 1\nv_lshl_add_u32 v9, v12, 5, v9\nv_lshl_add_u32 v9, v11, 4, v9')
    srd(A, 56, 18, 0x400000)
    A('s_waitcnt vmcnt(2)')
    count_add(A, 's27')
    stamp(A, 13)
    lds_spin(A, C_ATT, 8, 12, 13)
    stamp(A, 14)
    A('s_cmp_lt_u32 s41, 4\ns_cbranch_scc1 L_nopart2')
    A(f's_sub_u32 s30, {S_WO}, 32768\ns_lshl_b32 s25, s41, 10\ns_add_u32 s25, s25, {WO2 - 4096}')
    for i in range(8):
        A(f's_add_u32 m0, s25, {i*4096}')
        A(f'buffer_load_dwordx4 v{WOL}, s[48:51], s30 offen lds')
        if i < 7: A('s_add_u32 s30, s30, 32768')
    A.label('L_nopart2')
    HPO = list(range(8, 16)) + list(range(8))
    OFR, PRE, AC = 16, 80, 224
    NPRE, NSL = OPT['npre'], 36
    lq = Q(A, 'lgkmcnt', 15)
    def wreg(m): return PRE + 4 * (m % NSL)
    def wread(m):
        hp, ct = HPO[m // 4], m % 4; f = wreg(m)
        for rd in range(2): A(f'ds_read_b64_tr_b16 v[{f+2*rd}:{f+2*rd+1}], v{2+ct} offset:{hp*4096 + rd*1024}'); lq.push(m)
    for m in range(NPRE): wread(m)
    A(f's_add_u32 s24, {S_FO}, 8192\ns_add_u32 s25, {S_FO}, 12288\ns_add_u32 s26, {S_FO}, 4096')
    poll(A, PD, V0, S_FC, count=32, inline=True)
    stamp(A, 15)
    vq = Q(A, 'vmcnt', 63)
    for k, hp in enumerate(HPO):
        A(f'buffer_load_dwordx4 {vr(OFR+4*k,4)}, v8, s[52:55], {[S_FO,"s26","s24","s25"][hp//4]} offen offset:{(hp%4)*1024} sc1'); vq.push(k)
    A('s_cmp_lt_u32 s41, 4\ns_cbranch_scc1 L_nowo2')
    lds_add(A, C_WO2, 12)
    lds_spin(A, C_WO2, 4, 12, 13, sleep=False)
    A.label('L_nowo2')
    A('s_waitcnt lgkmcnt(0)'); lq.q = []
    nr = NPRE
    while nr < NSL: wread(nr); nr += 1
    for m in range(64):
        k, ct = m // 4, m % 4
        if ct == 0: vq.wait(k)
        lq.wait(m)
        A(f'v_mfma_f32_16x16x32_bf16 {vr(AC+4*ct,4)}, {vr(wreg(m),4)}, {vr(OFR+4*k,4)}, {vr(AC+4*ct,4) if k else "0"}')
        if nr < 64 and m % 2 == 1: wread(nr); nr += 1
    stamp(A, 16)
    for m in range(8): A(f'v_cvt_pk_bf16_f32 v{16+m}, v{AC+2*m}, v{AC+2*m+1}')
    for s in range(2):
        b = 16 + 4 * s
        A(f'v_permlane16_swap_b32 v{b}, v{b+2}\nv_permlane16_swap_b32 v{b+1}, v{b+3}')
        A(f'buffer_store_dwordx4 {vr(b,4)}, v9, s[56:59], {S_OUT} offen offset:{s*64} {OST}')
    stamp_flush(A, 's[52:55]', 's41')
    A.label('L_end'); A.fence()
    A('s_endpgm')
    A.label('L_bslow'); A.fence(); A.raw(';PAD')
    bunit(A, True, FA, True, 's')
    A('s_branch L_bdone')
    for f in OOL: f()
    A.label('L_cold')
    if FA:
        A.label('L_bexact'); A.fence()
        bunit(A, True, False, False, 'x')
        A('s_nop 11\ns_branch L_bdone2')
    for f in COLD: f()

def readout(A, R1, R2):
    A('s_waitcnt vmcnt(0)')
    for m in range(8): A(f'v_cvt_pk_bf16_f32 v{32+m}, v{32+2*m}, v{33+2*m}')
    A(mfma32(R1, 32, 48, None)); A(mfma32(R2, 36, 52, None))
def readout2(A, R1, R2):
    A(f'v_mov_b32 v6, 0x{f2u(1e-6):x}')
    A(f'v_rcp_f32 v4, v{R1+9}\nv_rcp_f32 v5, v{R2+9}')
    A(f'v_fmac_f32 v6, v{R1+8}, v4\nv_fmac_f32 v6, v{R2+8}, v5')
    A('v_rcp_f32 v6, v6')
    A('v_mul_f32 v4, v4, v6\nv_mul_f32 v5, v5, v6')
    for r in range(8): A(f'v_mul_f32 v{R1+r}, v{R1+r}, v4')
    for r in range(8): A(f'v_fmac_f32 v{R1+r}, v{R2+r}, v5')
    for m in range(4): A(f'v_cvt_pk_bf16_f32 v{20+m}, v{R1+2*m}, v{R1+2*m+1}')
    A(f'buffer_store_dwordx4 v[20:23], v{OST_}, s[52:55], {S_OA} offen sc1')
    if OPT['wprio']: A('s_setprio 0')
    stamp(A, 17)

def bunit(A, checks, fast, hooks, sfx):
    lq = Q(A, 'lgkmcnt', 15)
    KF = {j: 144 + 4 * j for j in range(9)}
    M, X, Y, Z, NM = 64, 80, 96, 112, 128
    O = OACC
    order = [8, 0, 7, 6, 5, 4, 3, 2, 1]
    for j in order: A(f'ds_read_b128 {vr(KF[j],4)}, v{KRD} offset:{j*1024}'); lq.push(('k', j))
    buf = {8: M, 0: X, 7: Y, 6: Z, 5: NM, 4: X, 3: Y, 2: Z, 1: NM}
    def qk(j, dst):
        lq.wait(('k', j))
        A(mfma32(dst, KF[j], 28, None))
    def hook0():
        if hooks: stamp(A, 9)
    if fast:
        qk(8, M)
        if checks:
            A('v_mov_b32 v2, 0xff800000')
            for r in range(0, 16, 2): A(f'v_mov_b64 v[{NM+r}:{NM+r+1}], 0')
        else: qk(0, NM)
    else:
        for j in (8, 0, 7, 6, 5): qk(j, buf[j])
        if checks:
            A(f's_cmp_ge_u32 {S_T}, 8\ns_cbranch_scc1 L_t0{sfx}\ns_nop 7')
            for r in range(16): A(f'v_mov_b32 v{X+r}, 0xff800000')
            A.label(f'L_t0{sfx}'); A('s_nop 7')
        for r in range(16): A(f'v_cndmask_b32_e64 v{M+r}, v{X+r}, v{M+r}, s[{64+2*r}:{65+2*r}]')
        qk(4, buf[4])
        A(f'v_max_f32 v2, v{M}, v{M+1}\nv_max_f32 v3, v{M+2}, v{M+3}')
        for m in range(1, 4): A(f'v_max3_f32 v2, v2, v{M+4*m}, v{M+4*m+1}\nv_max3_f32 v3, v3, v{M+4*m+2}, v{M+4*m+3}')
        for j in (7, 6, 5, 4, 3, 2, 1):
            b = buf[j]
            if checks: A(f's_cmp_lt_u32 {S_T}, {8-j}\ns_cbranch_scc1 L_bm{sfx}')
            for m in range(4): A(f'v_max3_f32 v2, v2, v{b+4*m}, v{b+4*m+1}\nv_max3_f32 v3, v3, v{b+4*m+2}, v{b+4*m+3}')
            if j - 4 >= 1: qk(j - 4, buf[j - 4])
        if checks:
            A.label(f'L_bm{sfx}'); A.fence(); A('s_waitcnt lgkmcnt(0)\ns_nop 15'); lq.q = []
        A('v_max_f32 v2, v2, v3\nv_mov_b32 v3, v2\nv_permlane32_swap_b32 v2, v3\nv_max_f32 v2, v2, v3')
        hook0()
        A(f'v_sub_f32 v{NM}, 0, v2\nv_sub_f32 v{NM+1}, 0, v2')
        for r in range(2, 16, 2): A(f'v_mov_b64 v[{NM+r}:{NM+r+1}], v[{NM}:{NM+1}]')
    vs = [0]
    def vreads(js):
        A('s_mov_b64 exec, s[28:29]')
        out = {}
        for j in js:
            for blk in range(2):
                st = VRING + 4 * (vs[0] % 4); vs[0] += 1
                A(f'ds_read_b128 {vr(st,4)}, v{VRD} offset:{j*1024 + blk*512}'); lq.push(('v', j, blk)); out[(j, blk)] = st
        A('s_mov_b64 exec, -1')
        return out
    first = [True]
    def pv(j, blk, vreg, p):
        def f():
            lq.wait(('v', j, blk))
            A(mfma32(O, vreg, p, None if first[0] else O))
            first[0] = False
        return f
    buf2 = {7: X, 6: Y, 5: Z, 4: X, 3: Y, 2: Z, 1: X}
    def qk2(j):
        def f():
            if checks:
                uid[0] += 1; n = uid[0]
                A(f's_cmp_lg_u32 {S_T}, {7-j}\ns_cbranch_scc1 L_ni{n}\ns_nop 7')
                for r in range(16): A(f'v_mov_b32 v{NM+r}, 0xff800000')
                A.label(f'L_ni{n}'); A.fence(); A('s_nop 1')
            lq.wait(('k', j))
            A(mfma32(buf2[j], KF[j], 28, None if fast and not checks else NM))
        return f
    def tile(b, pend, pre=()):
        ops = list(pre) + [f'v_exp_f32 v{b+r}, v{b+r}' for r in range(16)] + [f'v_cvt_pk_bf16_f32 v{b+m}, v{b+2*m}, v{b+2*m+1}' for m in range(8)]
        n0 = len(pre); step = max(1, 16 // max(1, len(pend)))
        pos = {n0 + 1 + i * step: f for i, f in enumerate(pend)}
        for i, o in enumerate(ops):
            if i in pos: pos[i]()
            A(o)
    WD = [int(c) for c in str(OPT['wd'])]
    def hook(j):
        nd = 4 * sum(1 for x in WD if x > j)
        if j == OPT['hg']:
            A(f's_cmp_eq_u32 s38, 1\ns_cbranch_scc1 L_bq{sfx}')
            gran_wait(A, 32, 1, 24, False, nd)
            A.label(f'L_bq{sfx}')
        if j == OPT['hc'] and not OPT['c2e']:
            A(f's_cmp_eq_u32 s38, 0\ns_cbranch_scc1 L_bc{sfx}\ns_cmp_ge_u32 s41, 4\ns_cbranch_scc1 L_bc{sfx}\ns_waitcnt vmcnt({nd})')
            count_add(A, 's31', 2304)
            stamp(A, 19)
            A.label(f'L_bc{sfx}')
        for k, x in enumerate(WD):
            if x != j: continue
            A(f's_lshl_b32 s24, s41, 10\ns_add_u32 m0, s24, {[WO1, WO1 + 32768, WO2 + 32768][k]}\ns_add_u32 s24, {S_WO}, {262144 if k else 0}')
            for i in range(4):
                A(f'buffer_load_dwordx4 v{WOL}, s[{48 if k == 2 else 44}:{51 if k == 2 else 47}], s24 offen lds')
                if i < 3: A('s_add_u32 m0, m0, 8192\ns_add_u32 s24, s24, 65536')
        if j == OPT['hq'] + 1:
            A(f's_cmp_eq_u32 s38, 1\ns_cbranch_scc1 L_hp{sfx}')
            A(mfma32(M, 20, 24, None))
            A.label(f'L_hp{sfx}')
        if j == OPT['hq']:
            A(f's_cmp_eq_u32 s38, 1\ns_cbranch_scc1 L_hq{sfx}')
            dual_exp(A, M, M + 8, 4)
            for m in range(8): A(f'v_cvt_pk_bf16_f32 v{48+m}, v{M+2*m}, v{M+2*m+1}')
            A.label(f'L_hq{sfx}')
        for g, (h2, hr) in enumerate([(OPT['h2'], OPT['hr']), (OPT['g2'], OPT['gr'])]):
            if j not in (hr, hr - 1, h2 + 1, h2): continue
            A(f's_cmp_{"ge" if g == 0 else "lt"}_u32 s41, 4\ns_cbranch_scc1 L_hg{g}{j+1}{sfx}')
            if j == hr: readout(A, R1, 180)
            if j == hr - 1: readout2(A, R1, 180)
            if j == h2 + 1: poll_issue(A, PD, V0, S_ACC, count=16, off=2304)
            if j == h2:
                poll(A, PD, V0, S_ACC, count=16, off=2304)
                stamp(A, 10)
                for m in range(4): A(f'buffer_load_dwordx4 {vr(32+4*m,4)}, v{KVOFF}, s[52:55], {S_ACC} offen offset:{16*m} sc1')
            A.label(f'L_hg{g}{j+1}{sfx}')
    R1 = M
    vv = vreads([8, 0])
    if fast: pre = [f'v_cndmask_b32_e64 v{M+r}, v{2 if checks else NM+r}, v{M+r}, s[{64+2*r}:{65+2*r}]' for r in range(16)]
    else: pre = [f'v_sub_f32 v{M+r}, v{M+r}, v2' for r in range(16)]
    tile(M, [qk2(7), qk2(6)], pre=pre)
    for m in range(8): A(f'v_bfi_b32 v{M+8+m}, v{PMASK+m}, 0, v{M+m}')
    for m in range(8): A(f'v_and_b32 v{M+m}, v{PMASK+m}, v{M+m}')
    pend = [pv(8, 0, vv[(8, 0)], M), pv(8, 1, vv[(8, 1)], M + 4), pv(0, 0, vv[(0, 0)], M + 8), pv(0, 1, vv[(0, 1)], M + 12), qk2(5)]
    if fast: hook0()
    for j in (7, 6, 5, 4, 3, 2, 1):
        b = buf2[j]
        if hooks: hook(j)
        if j == 7:
            tile(b, pend); vv = vreads([j])
        else:
            vv = vreads([j]); tile(b, pend)
        pend = [pv(j, 0, vv[(j, 0)], b), pv(j, 1, vv[(j, 1)], b + 4)]
        if j - 3 >= 1: pend.append(qk2(j - 3))
    for f in pend: f()
    if hooks:
        hook(0); hook(-1)

def add_pads(txt):
    import subprocess, re, tempfile
    lines = txt.split('\n')
    d = tempfile.mkdtemp()
    tmp = txt.replace(';PAD', '    s_nop 0').replace('L_code_end:', 'L_chain0:\nL_chain1:\nL_chain2:\nL_chain3:\nL_code_end:')
    open(d + '/a.s', 'w').write(tmp)
    subprocess.check_call(['clang', '-x', 'assembler', '-target', 'amdgcn-amd-amdhsa', '-mcpu=gfx950', '-c', d + '/a.s', '-o', d + '/a.o'])
    dis = subprocess.check_output(['llvm-objdump', '-d', d + '/a.o']).decode()
    addrs = [int(m.group(1), 16) for m in re.finditer(r'// ([0-9A-F]{12}):', dis)]
    out = []; k = 0; shift = 0x300; nxt = 4096; skip = True
    for ln in lines:
        if ln.startswith('L_padret'): skip = False
        if ln.startswith('L_cold'): skip = True
        if ln == ';PAD' or (ln.startswith('    ') and not ln.strip().startswith('.')):
            a = addrs[k] + shift; k += 1
            if a >= nxt:
                nxt += 4096
                if ln != ';PAD' and not skip: out.append(';PAD'); shift += 4
        out.append(ln)
    idx = [i for i, ln in enumerate(out) if ln == ';PAD']
    n = len(idx)
    for j, i in enumerate(idx):
        head = f'L_chain{j}:\n' if j < 4 else ''
        out[i] = f'{head}L_pad{j}:\n    s_cbranch_execz ' + (f'L_pad{j+4}' if j + 4 < n else 'L_padret')
    return '\n'.join(out)

def main():
    A = Asm()
    A.raw(f'; @launch grid=(256,1,1) block=(512,1,1) lds={LDS_SIZE}')
    A.raw('.amdgcn_target "amdgcn-amd-amdhsa--gfx950"\n.text')
    gen(A)
    A.raw('L_code_end:\n.p2align 8\n.fill 64, 4, 0xbf800000')
    A.raw(kd(NAME, 256, 102 if OPT['stamps'] else 96))
    txt = A.text()
    if OPT['pads']: txt = add_pads(txt)
    sys.stdout.write(txt)
main()
```

```python
import sys, math, struct
sys.path.insert(0, 'work')
from asmlib import *

OPT = dict(stamps=0, gst=0, skip='', pfc=1, psl=4, ssl=0, order='01234567', grp=1, gsh=9, tagl=4, la='88888888', n0=10, cst=11, cn=8, e0n=72, ot='', dpos=2, pw2=-1, aw=0, bw=0, qr=1, pr=24, ua=0, clr=107, wa=1, gp=1, th=16, ap=4, a2=1, gpp=5, hq=-1, hk=-1, e0w=0, e0pos=6, e0a=24, fastk=1, fasta=1, epn=28, cprio=1,
           nat=8, fw=1, pads=1, qd=5, qpoll=56, bq=65, lprio=1, aprio=0, stag=28, ost='sc1', wprio=0, pre=1, wd='8', g2=5, gr=1, hp=4, h2=1, hpos=0, fp=16, sp='B', hl=0, xa=8, xm=1, xs=7)
for a in sys.argv[1:]:
    k, v = a.split('='); assert k in OPT, k; OPT[k] = int(v) if v.lstrip('-').isdigit() else v
OST = '' if OPT['ost'] == 'plain' else OPT['ost']
NAME = 'concat_heads__linear_kernel_hedgehog__sliding_block__prompt_kernel'

def f2u(x): return struct.unpack('<I', struct.pack('<f', x))[0]
LOG2E = math.log2(math.e)
WS_KVG, WS_O, WS_QG = 0x000000, 0x400000, 0x800000
WS_F1, WS_ACC, WS_EP = 0xC00200, 0xC20000, 0xC80000
WS_SIZE = 0xC90000
ACCB, AUX = 2048, 65536
WS_STAMP = 0x1000000
SPIN_MAX = 1 << 16
SLOT = 32768
RING = [0, 32768, 65536, 98304]
KL, VL, PHI = 65536, 90112, 114688
PHI_PLANE, PHI_HEAD, PHI_WAVE = 1088, 4352, 8704
TAG = PHI + 4 * PHI_WAVE - 64
QX, PQX, WPH = 149504, 153600, 161792
WO1 = 0
LDS_SIZE = 163840
C_ATT, C_WQ, C_PQ, C_WO, C_KV, C_WQ2, C_PAIR, C_PART = 8, 12, 16, 20, 24, 28, 32, 48
OACC, VRING, PMASK, ONES = 200, 216, 232, 240
SEL = 200
KVOFF, V1, V0, KRD, VRD, WOL, OST_, QRD, PD = 242, 243, 244, 245, 246, 247, 248, 249, 250
S_T, S_WO, S_ACC, S_OA, S_C3, S_FC, S_FO, S_OUT, S_QG = 's4', 's5', 's6', 's7', 's8', 's12', 's13', 's14', 's15'

class Q:
    def __init__(self, A, name, mx): self.A = A; self.q = []; self.name = name; self.mx = mx
    def push(self, tag): self.q.append(tag)
    def wait(self, *tags):
        idx = -1
        for i, t in enumerate(self.q):
            if t in tags: idx = i
        if idx < 0: return
        n = min(len(self.q) - 1 - idx, self.mx)
        self.A(f's_waitcnt {self.name}({n})')
        self.q = self.q[len(self.q) - n:] if n else []
    def all(self):
        self.A(f's_waitcnt {self.name}(0)'); self.q = []

def stamp(A, idx):
    if not OPT['stamps'] or str(idx) in str(OPT['skip']).split('.'): return
    if OPT['gst'] == 3:
        if 32 <= idx < 42: idx -= 12
        elif idx >= 60: idx -= 60
        elif idx not in (30, 31): return
    elif idx >= 60: return
    elif OPT['gst'] == 2:
        if idx < 10 or 32 <= idx < 50: return
        if idx >= 50: idx -= 50
    elif OPT['gst']:
        if idx < 30 or idx > 47: return
        if idx >= 32: idx -= 32
    elif idx >= 32: return
    A(('s_memrealtime' if OPT['stamps'] == 1 else 's_memtime') + ' s[96:97]')
    A('s_waitcnt lgkmcnt(0)')
    A(f'v_writelane_b32 v253, s96, {idx}')
def stamp_flush(A, srd, wavereg):
    if not OPT['stamps']: return
    stamp(A, 31)
    A(f's_lshl_b32 s98, s2, 3\ns_add_u32 s98, s98, {wavereg}\ns_lshl_b32 s98, s98, 7\ns_add_u32 s98, s98, {WS_STAMP}')
    A('v_mbcnt_lo_u32_b32 v252, -1, 0\nv_lshlrev_b32 v252, 2, v252\ns_mov_b32 exec_hi, 0')
    A(f'buffer_store_dword v253, v252, {srd}, s98 offen')

def rowof(r, hi): return (r & 3) + 8 * (r >> 2) + 4 * hi

def dual_exp(A, p, em, t):
    A(f'v_max3_f32 v{t}, v{p}, v{p+1}, v{p+2}\nv_max3_f32 v{t+1}, -v{p}, -v{p+1}, -v{p+2}')
    A(f'v_max3_f32 v{t}, v{t}, v{p+3}, v{p+4}\nv_max3_f32 v{t+1}, v{t+1}, -v{p+3}, -v{p+4}')
    A(f'v_max3_f32 v{t}, v{t}, v{p+5}, v{p+6}\nv_max3_f32 v{t+1}, v{t+1}, -v{p+5}, -v{p+6}')
    A(f'v_max_f32_e64 v{t}, v{t}, v{p+7}\nv_max_f32_e64 v{t+1}, v{t+1}, -v{p+7}')
    A(f'v_permlane32_swap_b32 v{t}, v{t+1}')
    A(f'v_max_f32 v{t}, v{t}, v{t+1}')
    A(f'v_mul_f32 v{t}, s62, v{t}')
    A(f'v_mov_b32 v{t+1}, v{t}')
    A(f'v_permlane32_swap_b32 v{t}, v{t+1}')
    for r in range(8): A(f'v_fma_f32 v{em+r}, -v{p+r}, s62, -v{t+1}\nv_fma_f32 v{p+r}, v{p+r}, s62, -v{t}')
    for r in range(8): A(f'v_exp_f32 v{em+r}, v{em+r}\nv_exp_f32 v{p+r}, v{p+r}')

uid = [0]
OOL = []
COLD = []
def sp_issue(A, loads):
    for d, so, off in loads: A(f's_buffer_load_dword s{d}, s[52:55], {so} offset:{off} glc')
def sp_wait(A, loads, test, inline=True):
    uid[0] += 1; n = uid[0]
    def loop():
        A(f's_mov_b32 s3, {SPIN_MAX}')
        A.label(f'L_pl{n}')
        if OPT['ssl']: A(f's_sleep {OPT["ssl"]}')
        sp_issue(A, loads)
        A(f's_waitcnt lgkmcnt(0)\n{test}\ns_cselect_b32 s3, s3, 0\ns_sub_u32 s3, s3, 1\ns_cbranch_scc0 L_pl{n}')
    if inline:
        A(f's_waitcnt lgkmcnt(0)\n{test}\ns_cbranch_scc0 L_pd{n}')
        loop()
        A.label(f'L_pd{n}')
        return
    A(f's_waitcnt lgkmcnt(0)\n{test}\ns_cbranch_scc1 L_ps{n}')
    A.label(f'L_pd{n}')
    def slow():
        A.label(f'L_ps{n}'); A.fence()
        loop()
        A(f's_branch L_pd{n}')
    OOL.append(slow)
def poll_issue(A, vdst, voff, soff, count=None, off=0):
    o = f' offset:{off}' if off else ''
    A(f'buffer_load_dword v{vdst}, v{voff}, s[52:55], {soff} offen{o} sc1')
def poll(A, vdst, voff, soff, count=None, off=0, inline=False, first=0):
    uid[0] += 1; n = uid[0]
    cmp = f'v_cmp_ne_u32 vcc, {count}, v{vdst}'
    if inline:
        A(f's_waitcnt vmcnt({first})\n{cmp}\ns_cbranch_vccz L_pd{n}\ns_mov_b32 s3, {SPIN_MAX}')
        A.label(f'L_pl{n}')
        if OPT['psl']: A(f's_sleep {OPT["psl"]}')
        poll_issue(A, vdst, voff, soff, count, off)
        A(f's_sub_u32 s3, s3, 1\ns_waitcnt vmcnt(0)\n{cmp}\ns_cselect_b64 vcc, 0, vcc\ns_cbranch_vccnz L_pl{n}')
        A.label(f'L_pd{n}')
        return
    A(f's_waitcnt vmcnt(0)\n{cmp}\ns_cbranch_vccnz L_ps{n}')
    A.label(f'L_pd{n}')
    def slow():
        A.label(f'L_ps{n}'); A.fence()
        A('s_mov_b32 s3, 0')
        A.label(f'L_pl{n}')
        if OPT['psl']: A(f's_sleep {OPT["psl"]}')
        poll_issue(A, vdst, voff, soff, count, off)
        A(f's_add_u32 s3, s3, 1\ns_waitcnt vmcnt(0)\n{cmp}\ns_cbranch_vccz L_pd{n}')
        A(f's_cmp_lt_u32 s3, {SPIN_MAX}\ns_cbranch_scc1 L_pl{n}\ns_branch L_pd{n}')
    OOL.append(slow)
GR = [0, 1, 2, 4, 5, 6, 8, 9]
def gran_issue(A, v, nh):
    for h in range(3): A(f'buffer_load_dwordx4 {vr(v+4*h,4)}, v8, s[52:55], {S_QG} offen offset:{h*1024} sc1')
def gran_wait(A, v, nh, dst, inline, first=0):
    uid[0] += 1; n = uid[0]
    def check(cnt=0):
        A(f's_waitcnt vmcnt({cnt})\nv_cmp_ne_u32_e64 s[24:25], s60, v{v+3}')
        for r in range(1, 3): A(f'v_cmp_ne_u32 vcc, s60, v{v+3+4*r}\ns_or_b64 s[24:25], s[24:25], vcc')
    def retry():
        if OPT['psl']: A(f's_sleep {OPT["psl"]}')
        gran_issue(A, v, nh)
    if inline:
        A('s_mov_b32 s3, 0')
        A.label(f'L_gl{n}')
        check()
        A(f's_cbranch_scc0 L_gd{n}')
        retry()
        A(f's_add_u32 s3, s3, 1\ns_cmp_lt_u32 s3, {SPIN_MAX}\ns_cbranch_scc1 L_gl{n}\ns_waitcnt vmcnt(0)')
    else:
        check(first)
        A(f's_cbranch_scc1 L_gs{n}')
        def slow():
            A.label(f'L_gs{n}'); A.fence()
            A('s_mov_b32 s3, 0')
            A.label(f'L_gl{n}')
            retry(); check()
            A(f's_cbranch_scc0 L_gd{n}\ns_add_u32 s3, s3, 1\ns_cmp_lt_u32 s3, {SPIN_MAX}\ns_cbranch_scc1 L_gl{n}\ns_branch L_gd{n}')
        OOL.append(slow)
    A.label(f'L_gd{n}')
    for r in range(8): A(f'v_mov_b32 v{dst+r}, v{v+GR[r]}')

def lds_add(A, off, va):
    A(f'v_mov_b32 v{va}, {TAG}\ns_mov_b64 exec, 1\nds_add_u32 v{va}, v{V1} offset:{off}\ns_mov_b64 exec, -1')
def lds_spin(A, off, cnt, va, vt, sleep=True):
    uid[0] += 1; n = uid[0]
    A(f'v_mov_b32 v{va}, {TAG}\ns_mov_b32 s3, {SPIN_MAX * 4}')
    A.label(f'L_sp{n}')
    if sleep: A('s_sleep 1')
    A(f's_sub_u32 s3, s3, 1\nds_read_b32 v{vt}, v{va} offset:{off}\ns_waitcnt lgkmcnt(0)\nv_cmp_gt_u32 vcc, {cnt}, v{vt}\ns_cselect_b64 vcc, 0, vcc\ns_cbranch_vccnz L_sp{n}')
def count_add(A, soff, off=0):
    A('s_mov_b64 exec, 1')
    A(f'buffer_atomic_add v{V1}, v{V0}, s[52:55], {soff} offen' + (f' offset:{off}' if off else ''))
    A('s_mov_b64 exec, -1')

def srd(A, d, lo, size):
    A(f's_mov_b32 s{d}, s{lo}\ns_mov_b32 s{d+1}, s{lo+1}\ns_mov_b32 s{d+2}, 0x{size:x}\ns_mov_b32 s{d+3}, 0x20000')
def flag(A, soff, tmp):
    A(f'v_mov_b32 v{tmp}, s60\nv_mov_b32 v{tmp+1}, s61\nv_mov_b32 v{tmp+2}, s60\nv_mov_b32 v{tmp+3}, s61\ns_waitcnt vmcnt(0)\ns_mov_b64 exec, 0xff')
    A(f'buffer_store_dwordx4 v[{tmp}:{tmp+3}], v8, s[52:55], {soff} offen sc1')
    A('s_mov_b64 exec, -1')
def stream(fn, *a):
    L = []
    fn(lambda t: L.extend(x for x in t.split('\n') if x.strip()), *a)
    return L
def tr_lane(A, d, rowsh, hish):
    A(f'v_bfe_u32 v{d}, v1, 2, 2\nv_lshl_add_u32 v{d}, v11, {hish}, v{d}\nv_lshlrev_b32 v{d}, {rowsh}, v{d}')
def mfma32(d, a, b, c): return f'v_mfma_f32_32x32x16_bf16 {vr(d,16)}, {vr(a,4)}, {vr(b,4)}, {vr(c,16) if c is not None else "0"}'

def common(A):
    for r in range(16):
        for hi in range(2):
            m = 0
            for c in range(32):
                if rowof(r, hi) <= c: m |= 1 << c
            A(f's_mov_b32 s{64+2*r+hi}, 0x{m:x}')
    A(f's_mov_b32 s62, 0x{f2u(LOG2E):x}\ns_mov_b32 s63, 0x{f2u(2.0**100):x}\ns_mov_b32 s28, 0xffff\ns_mov_b32 s29, 0xffff')
    A(f'v_mov_b32 v{ONES}, 0x3f803f80\nv_mov_b32 v{ONES+1}, 0x3f803f80\nv_mov_b32 v{V1}, 0xffff')
    for r in range(0, 16, 2): A(f'v_mov_b64 v[{VRING+r}:{VRING+r+1}], v[{ONES}:{ONES+1}]')
    for m in range(8): A(f'v_cndmask_b32_e64 v{PMASK+m}, 0, v{V1}, s[{64+4*m}:{65+4*m}]')
    for m in range(8): A(f'v_cndmask_b32_e64 v{PMASK+m}, v{PMASK+m}, -1, s[{66+4*m}:{67+4*m}]')
    A(f'v_and_b32 v{V1}, 1, v10\nv_add_u32 v{V1}, {AUX//128}, v{V1}\nv_cndmask_b32_e64 v{KVOFF}, v{V1}, v10, s[28:29]\nv_lshlrev_b32 v{KVOFF}, 7, v{KVOFF}\nv_lshl_add_u32 v{KVOFF}, v11, 6, v{KVOFF}')
    A('s_and_b32 s21, s41, 3\ns_lshr_b32 s22, s41, 2\ns_lshl1_add_u32 s20, s22, s38')
    A(f's_lshl_b32 s24, s21, 10\ns_add_u32 s25, s24, {QX}\nv_add_u32 v{QRD}, s25, v8')
    A(f's_mul_i32 s25, s22, 12288\ns_add_u32 s24, s24, s25\ns_add_u32 s25, s24, {KL}\nv_add_u32 v{KRD}, s25, v8')
    A(f'v_and_b32 v{VRD}, 15, v1\nv_lshlrev_b32 v{VRD}, 4, v{VRD}\nv_lshl_add_u32 v{VRD}, v11, 8, v{VRD}\ns_add_u32 s25, s24, {VL}\nv_add_u32 v{VRD}, s25, v{VRD}')
    A(f'v_lshrrev_b32 v{WOL}, 3, v1\nv_and_b32 v{V0}, 7, v1\nv_bfe_u32 v{V1}, v1, 4, 1\nv_lshlrev_b32 v{V1}, 2, v{V1}\nv_xor_b32 v{V0}, v{V0}, v{V1}\nv_lshlrev_b32 v{V0}, 4, v{V0}\nv_lshl_add_u32 v{WOL}, v{WOL}, 10, v{V0}')
    A(f'v_mov_b32 v{V1}, 1\nv_mov_b32 v{V0}, 0\nv_mov_b64 v[52:53], 0\nv_mov_b64 v[54:55], 0')
    A(f's_lshl_b32 {S_T}, s39, 2\ns_add_u32 {S_T}, {S_T}, s21')
    A(f's_lshr_b32 s23, s37, 2\ns_lshl_b32 s23, s23, 7\ns_mov_b32 {S_WO}, s23')
    A(f's_lshl_b32 s24, s40, 1\ns_add_u32 s24, s24, s22\ns_mul_i32 {S_ACC}, s24, {ACCB}\ns_add_u32 {S_ACC}, {S_ACC}, {WS_ACC}')
    A(f's_lshl_b32 s24, s40, 10\ns_lshl_b32 s25, {S_T}, 15\ns_add_u32 s24, s24, s25\ns_lshl_b32 {S_FO}, s22, 14\ns_add_u32 {S_FO}, {S_FO}, {WS_O}\ns_add_u32 {S_OA}, s24, {S_FO}')
    A(f's_lshl_b32 s24, s21, 1\ns_add_u32 s24, s24, s22\ns_lshl_b32 s24, s24, 7\ns_add_u32 {S_FC}, s24, {WS_ACC + AUX + 1024}\ns_mul_i32 s25, s39, {ACCB}\ns_add_u32 {S_C3}, {S_FC}, s25')
    A(f's_lshl_b32 s24, s40, 4\ns_add_u32 s24, s24, s39\ns_lshl_b32 s24, s24, 2\ns_add_u32 s24, s24, s21\ns_mul_i32 {S_QG}, s24, 3072\ns_add_u32 {S_QG}, {S_QG}, {WS_QG}')
    A('s_add_u32 s24, s36, 1\ns_and_b32 s24, s24, 3\ns_lshl_b32 s24, s24, 2\ns_and_b32 s25, s37, 3\ns_add_u32 s24, s24, s25\ns_lshr_b32 s22, s36, 2')
    A(f's_lshl_b32 s25, s22, 4\ns_add_u32 s25, s25, s24\ns_mul_i32 s25, s25, {ACCB}\ns_add_u32 {S_FC}, {S_FC}, s25')
    A('s_lshl_b32 s24, s24, 2\ns_add_u32 s24, s24, s21')
    A(f's_lshl_b32 {S_OUT}, s24, 16\ns_lshl_b32 s25, s22, 10\ns_add_u32 {S_OUT}, {S_OUT}, s25\ns_add_u32 {S_OUT}, {S_OUT}, s23')
    A(f's_lshl_b32 s24, s24, 15\ns_lshl_b32 s25, s22, 21\ns_add_u32 s24, s24, s25\ns_add_u32 {S_FO}, {S_FO}, s24')

def wo_srd(A):
    A('s_cmp_lt_u32 s36, 4\ns_cselect_b32 s44, s10, s16\ns_cselect_b32 s45, s11, s17\ns_mov_b32 s46, 0x80000\ns_mov_b32 s47, 0x20000')

WD = [int(c) for c in str(OPT['wd']) if c.isdigit()]
def wo_dma(A, j):
    cnt = 0
    for k, x in enumerate(WD):
        if x != j: continue
        n = 16 // len(WD)
        A(f's_lshl_b32 s25, s37, 4\ns_add_u32 s25, s25, s41')
        for i in range(n):
            A(f's_add_u32 s25, s25, {4*n*k if i == 0 else 4}\ns_and_b32 s25, s25, 63\ns_lshl_b32 m0, s25, 10\ns_lshl_b32 s24, s25, 13\ns_add_u32 s24, s24, {S_WO}')
            A(f'buffer_load_dwordx4 v{WOL}, s[44:47], s24 offen lds'); cnt += 1
    return cnt

def halo_edge(A, x):
    A(f's_cmp_lt_u32 s39, 2\ns_cbranch_scc1 L_nb{x}')
    A.label(f'L_nb2{x}')
    def edge():
        A.label(f'L_nb{x}'); A.fence(); A.raw(';PAD')
        A('v_mov_b32 v48, 0\nv_mov_b32 v49, 0\nv_mov_b32 v50, 0\nv_mov_b32 v51, 0\nv_add_u32 v7, s27, v8')
        for i in range(4): A(f'ds_write_b128 v7, v[48:51] offset:{i*1024}')
        A(f's_cmp_eq_u32 s39, 1\ns_cbranch_scc1 L_nb2{x}')
        for i in range(4, 8): A(f'ds_write_b128 v7, v[48:51] offset:{i*1024}')
        A(f's_branch L_nb2{x}')
    OOL.append(edge)
def halo_loads(x): return [([48, 50, 0][nb] + i, f's{9+nb}', 128*i) for nb in range(3 if x == 'A' else 2) for i in range(2)][-OPT['hl']:]
def halo_issue(A, x):
    if x in OPT['sp']: sp_issue(A, halo_loads(x)); return
    A(f'v_and_b32 v55, 1, v1\nv_lshlrev_b32 v55, 7, v55\ns_mov_b64 exec, 3\nv_add_u32 v55, s9, v55\ns_mov_b64 exec, 12\nv_add_u32 v55, s10, v55\ns_mov_b64 exec, 48\nv_add_u32 v55, s11, v55')
    A(f's_mov_b64 exec, {63 if x == "A" else 15}')
    poll_issue(A, PD, 55, '0', 's60')
    A('s_mov_b64 exec, -1')
def halo_fetch(A, x, first=0):
    t = 's_xor_b64 s[48:49], s[48:49], s[60:61]\ns_xor_b64 s[50:51], s[50:51], s[60:61]\ns_or_b64 s[48:49], s[48:49], s[50:51]'
    if x == 'A': t += '\ns_xor_b64 s[0:1], s[0:1], s[60:61]\ns_or_b64 s[48:49], s[48:49], s[0:1]'
    if OPT['hl']: t = f's_cmp_lg_u32 s{halo_loads(x)[-1][0]}, s60'
    if x in OPT['sp']: sp_wait(A, halo_loads(x), t)
    else:
        A(f's_mov_b64 exec, {63 if x == "A" else 15}')
        poll(A, PD, 55, '0', 's60', inline=True, first=first)
        A('s_mov_b64 exec, -1')
    stamp(A, 5)
    for nb in range(3 if x == 'A' else 2):
        if nb < 2: A(f's_cmp_lt_u32 s39, {2-nb}\ns_cbranch_scc1 L_sk{nb}{x}')
        A(f's_sub_u32 s25, s33, {(2-nb)*16384}\ns_add_u32 m0, s27, {nb*4096}')
        for i in range(4): A(f'buffer_load_dwordx4 v8, s[52:55], s25 offen offset:{i*1024} sc1 lds')
        if nb < 2: A.label(f'L_sk{nb}{x}')
    stamp(A, 7)

def gen(A):
    name = NAME
    WSZ = WS_SIZE if not OPT['stamps'] else 0x2000000
    A.raw(f'.globl {name}\n.p2align 12\n.type {name},@function\n{name}:')
    stamp(A, 30)
    A('s_cmp_ge_u32 s2, 256\ns_cbranch_scc1 L_end')
    A('s_load_dwordx16 s[4:19], s[0:1], 0\ns_load_dwordx4 s[20:23], s[0:1], 64')
    A('v_lshrrev_b32 v2, 6, v0\nv_and_b32 v1, 63, v0')
    A('s_and_b32 s36, s2, 7\ns_lshr_b32 s37, s2, 3')
    A('v_readfirstlane_b32 s41, v2')
    A('s_and_b32 s38, s37, 1')
    A('s_and_b32 s39, s36, 3\ns_lshl_b32 s39, s39, 2\ns_bfe_u32 s42, s37, 0x20001\ns_add_u32 s39, s39, s42')
    A('s_lshl_b32 s35, s38, 2\ns_xor_b32 s35, s35, s36\ns_and_b32 s35, s35, 4\ns_lshr_b32 s42, s37, 3\ns_add_u32 s35, s35, s42')
    A('s_lshl_b32 s40, s35, 1\ns_add_u32 s40, s40, s38')
    A('v_lshlrev_b32 v8, 4, v1\nv_and_b32 v10, 31, v1\nv_lshrrev_b32 v11, 5, v1')
    A('s_cmp_lt_u32 s41, 4\ns_cbranch_scc1 L_cpre')
    A('s_mov_b32 s46, 0x200000\ns_mov_b32 s47, 0x20000\ns_mov_b32 s50, 0x180000\ns_mov_b32 s51, 0x20000')
    A('s_sub_u32 s43, s41, 4')
    A('v_lshrrev_b32 v3, 3, v1\nv_and_b32 v4, 7, v1\nv_lshrrev_b32 v5, 4, v1')
    A('v_xor_b32 v6, v4, v5\nv_lshlrev_b32 v6, 4, v6\nv_lshl_add_u32 v6, v3, 10, v6')
    A('s_lshl_b32 s24, s39, 17\ns_lshl_b32 s25, s43, 15\ns_add_u32 s24, s24, s25')
    A('v_add_u32 v16, s24, v6\nv_xor_b32 v17, 64, v16\nv_add_u32 v17, 8192, v17\nv_add_u32 v18, 16384, v16\nv_add_u32 v19, 16384, v17')
    A('v_and_b32 v5, 1, v5\nv_lshlrev_b32 v5, 2, v5\nv_xor_b32 v4, v4, v5\nv_mul_u32_u24 v3, 3072, v3\nv_lshl_add_u32 v3, v4, 4, v3')
    A('s_mul_i32 s24, s43, 49152\ns_lshl_b32 s25, s35, 7\ns_add_u32 s24, s24, s25')
    A('v_add_u32 v20, s24, v3\nv_add_u32 v21, 24576, v20')
    A(f's_lshl_b32 s30, s43, 12\ns_lshl_b32 s31, s43, 11')
    A(f's_add_u32 s26, s39, s35\ns_and_b32 s26, s26, {OPT["grp"]}\ns_lshl_b32 s26, s26, {OPT["gsh"]}')
    if OPT['xa'] >= 0: A(f's_lshl_b32 s27, s38, {OPT["xa"]}\ns_xor_b32 s26, s26, s27')
    if OPT['xm']: A(f's_and_b32 s27, s36, {OPT["xm"]}\ns_lshl_b32 s27, s27, {OPT["xs"]}\ns_xor_b32 s26, s26, s27')
    if OPT['ot']:
        T = [sum(int(c) << (4*i) for i, c in enumerate(o)) for o in OPT['ot'].split('.')]
        assert all(sorted(o) == list('01234567') for o in OPT['ot'].split('.'))
        A(f's_add_u32 s24, s39, s35\ns_mov_b32 s34, 0x{T[0]:x}\ns_mov_b32 s25, 0x{T[2]:x}\ns_bitcmp0_b32 s24, 0\ns_cselect_b32 s34, s34, 0x{T[1]:x}\ns_cselect_b32 s25, s25, 0x{T[3]:x}\ns_bitcmp0_b32 s24, 1\ns_cselect_b32 s34, s34, s25')
    A('s_cmp_eq_u32 s38, 0')
    A('s_waitcnt lgkmcnt(0)')
    A('s_cselect_b32 s44, s12, s4\ns_cselect_b32 s45, s13, s5\ns_cselect_b32 s48, s14, s6\ns_cselect_b32 s49, s15, s7')
    stamp(A, 0); stamp(A, 60)
    ORD = [int(c) for c in str(OPT['order']).zfill(8)]
    vq = Q(A, 'vmcnt', 63)
    def wsoff(st):
        if OPT['ot']: A(f's_bfe_u32 s32, s34, 0x{0x30000 + 4*st:x}\ns_lshl_b32 s32, s32, 7\ns_xor_b32 s32, s26, s32\ns_mul_i32 s33, s32, 1536')
        else: A(f's_xor_b32 s32, s26, {st*128}\ns_mul_i32 s33, s32, 1536')
    LT = []
    nis = [0]
    def issue(upto):
        while nis[0] < min(upto, 80):
            n = nis[0]; nis[0] += 1
            s, i = divmod(n, 8); base = RING[s % 4]
            if s >= 8:
                if n == 64 and OPT['qr']:
                    assert ORD == list(range(8)) and not OPT['ot']
                    A('s_add_u32 s24, s39, s35\ns_and_b32 s24, s24, 2\ns_lshl_b32 s25, s24, 7\ns_xor_b32 s26, s26, s25\ns_lshl_b32 s25, s24, 13\ns_xor_b32 s31, s31, s25')
                if i % 2 == 0: wsoff(ORD[4*(s-8) + i//2])
                A(f's_xor_b32 m0, s31, {base + (i//2)*8192 + (i%2)*1024}')
                A(f'buffer_load_dwordx4 v{20+i%2}, s[48:51], s33 offen lds')
            elif i < 4:
                if i == 0: wsoff(ORD[s])
                A(f's_add_u32 m0, s30, {base + i*1024}')
                A(f'buffer_load_dwordx4 v{16+i}, s[44:47], s32 offen lds')
            else:
                seg = i // 2 - 1
                A(f's_add_u32 m0, s31, {base + 8192 + seg*7168 + (i%2)*1024}')
                A(f'buffer_load_dwordx4 v{20+i%2}, s[48:51], s33 offen offset:{seg*1024} lds')
            vq.push(('st', s))
            if n % 2 and n < 38: stamp(A, 61 + n//2)
            if n == OPT['hq']:
                A('s_mov_b64 exec, 15\nglobal_load_dword v255, v29, s[0:1] offset:384\ns_mov_b64 exec, -1'); vq.push('pf')
            if n == OPT['hk']:
                A('s_mov_b64 exec, 15\nglobal_load_dword v255, v29, s[0:1] offset:1408\nglobal_load_dword v255, v29, s[0:1] offset:2432\ns_mov_b64 exec, -1'); vq.push('pf'); vq.push('pf')
            if n >= OPT['cst']:
                for _ in range(OPT['cn']):
                    if LT: A(LT.pop(0))
    if OPT['hq'] >= 0 or OPT['hk'] >= 0:
        issue(min(8, OPT['hk'] if OPT['hk'] >= 0 else 8))
        A('s_cmp_lt_u32 s36, 4\ns_cselect_b32 s0, s14, s6\ns_cselect_b32 s1, s15, s7\ns_lshl_b32 s24, s37, 2\ns_add_u32 s24, s24, s43\ns_lshl_b32 s24, s24, 2\nv_add_u32 v29, s24, v1\nv_mul_u32_u24 v29, 3072, v29')
    issue(OPT['n0'])
    stamp(A, 1)
    srd(A, 52, 22, WSZ); srd(A, 56, 20, 0x100)
    A('s_branch L_load')
    A.label('L_cpre'); A.fence()
    A('s_lshr_b32 s42, s41, 1\ns_and_b32 s43, s41, 1')
    for r in range(0, 8, 2): A(f'v_mov_b64 v[{16+r}:{17+r}], 0')
    A('s_lshl_b32 s24, s35, 1\ns_add_u32 s24, s24, s43\ns_lshl_b32 s24, s24, 4\ns_add_u32 s24, s24, s39')
    A('s_lshl_b32 s25, s42, 11\ns_lshl_b32 s32, s24, 14\ns_add_u32 s32, s32, s25')
    A(f's_lshl_b32 s34, s24, 8\ns_lshl_b32 s24, s42, 7\ns_add_u32 s34, s34, s24\ns_add_u32 s34, s34, {WS_F1}')
    A('s_waitcnt lgkmcnt(0)')
    srd(A, 52, 22, WSZ); srd(A, 56, 20, 0x100)
    A('s_cmp_lg_u32 s41, 0\ns_cbranch_scc1 L_d1')
    if OPT['pfc']:
        A('s_getpc_b64 s[24:25]')
        A.label('L_pc0')
        A(f's_add_u32 s24, s24, {name}-L_pc0\ns_addc_u32 s25, s25, -1')
        A(f's_lshl_b32 s30, s37, 7\nv_lshlrev_b32 v13, 12, v1\nv_add_u32 v13, s30, v13\nv_min_u32 v13, L_cold-{name}-4, v13\ns_mov_b64 exec, 0xff')
        A('global_load_dword v255, v13, s[24:25]')
        A('s_mov_b64 exec, -1')
    srd(A, 44, 8, 0x4000)
    A(f's_lshl_b32 s24, s35, 11\ns_mov_b32 m0, {WPH}')
    for i in range(2): A(f'buffer_load_dwordx4 v8, s[44:47], s24 offen offset:{i*1024} lds')
    A(f'v_mov_b32 v12, {TAG}\nv_lshl_add_u32 v12, v1, 2, v12\ns_mov_b64 exec, 0xffff\nds_write_b32 v12, v16\ns_mov_b64 exec, -1')
    A.label('L_d1'); A.fence()
    A('s_cmp_lg_u32 s41, 1\ns_cbranch_scc1 L_d2\ns_cmp_ge_u32 s2, 32\ns_cbranch_scc1 L_d2')
    A(f's_mul_i32 s24, s2, {ACCB}\ns_add_u32 s24, s24, {WS_ACC}')
    A('buffer_store_dwordx4 v[16:19], v8, s[52:55], s24 offen sc1\nbuffer_store_dwordx4 v[16:19], v8, s[52:55], s24 offen offset:1024 sc1')
    A(f's_add_u32 s24, s24, {AUX}\nbuffer_store_dwordx4 v[16:19], v8, s[52:55], s24 offen offset:1024 sc1')
    A('s_mov_b64 exec, 0xff00')
    for r in range(4): A(f'v_mov_b32 v{20+r}, 1.0')
    A('s_mov_b64 exec, -1')
    A('buffer_store_dwordx4 v[20:23], v8, s[52:55], s24 offen sc1')
    A.label('L_d2'); A.fence()
    A('s_cmp_lg_u32 s41, 3\ns_cbranch_scc1 L_d3\ns_cmp_lg_u32 s2, 0\ns_cbranch_scc1 L_d3')
    A(f's_mov_b32 s24, {WS_EP}\nbuffer_load_dword v{PD}, v16, s[52:55], s24 offen sc1')
    A.label('L_d3'); A.fence()
    if OPT['fw']:
        A('s_cmp_eq_u32 s38, 1\ns_cbranch_scc1 L_nofw\ns_mov_b64 exec, 0xff')
        A('buffer_store_dwordx4 v[16:19], v8, s[52:55], s34 offen sc1')
        A.label('L_nofw')
        A('s_mov_b64 exec, -1')
    if min(WD + [8]) < 8: wo_srd(A)
    stamp(A, 0)
    common(A)
    A('v_bfe_u32 v12, v1, 1, 3\nv_xor_b32 v12, v12, v11\nv_lshlrev_b32 v12, 4, v12')
    A('s_lshl_b32 s24, s42, 13\nv_lshl_add_u32 v13, v10, 7, s24')
    for ks in range(4): A(f'v_xor_b32 v14, {ks*32}, v12\nv_add_u32 v{2+ks}, v13, v14')
    for ks in range(4): A(f'v_add_u32 v{48+ks}, 0x10000, v{2+ks}')
    tr_lane(A, 12, 7, 3)
    A('v_bfe_u32 v13, v1, 3, 1\nv_xor_b32 v13, s43, v13\nv_lshl_add_u32 v12, v13, 6, v12')
    A('v_bfe_u32 v13, v1, 4, 1\nv_lshl_add_u32 v12, v13, 5, v12\nv_and_b32 v14, 3, v1\nv_lshl_add_u32 v12, v14, 3, v12')
    A(f'v_add_u32 v6, 16384, v12\nv_add_u32 v7, {16384 + 65536}, v12')
    tr_lane(A, 9, 5, 2)
    A(f'v_lshl_add_u32 v9, v14, 3, v9\ns_lshl_b32 s24, s43, 10\ns_add_u32 s24, s24, {WPH}\nv_add_u32 v9, s24, v9')
    A(f'v_mov_b32 v15, {TAG}')
    A(f's_lshl_b32 s24, s40, 4\ns_add_u32 s24, s24, s39\ns_lshl_b32 s25, s24, 8\ns_add_u32 s11, s25, {WS_F1}')
    A(f's_lshl_b32 s33, s24, 14\ns_lshl_b32 s25, s41, 12\ns_add_u32 s33, s33, s25\ns_mul_i32 s27, s41, 12288\ns_add_u32 s27, s27, {KL}')
    A('s_min_u32 s24, s39, 2\ns_lshl_b32 s24, s24, 8\ns_sub_u32 s9, s11, s24\ns_min_u32 s24, s24, 256\ns_sub_u32 s10, s11, s24')
    A('s_cmp_eq_u32 s38, 1\ns_cbranch_scc1 L_cpA')
    A('v_and_b32 v12, 15, v1\nv_lshlrev_b32 v12, 4, v12\nv_lshl_add_u32 v12, v11, 8, v12\nv_lshl_add_u32 v52, v13, 12, v12')
    A(f's_lshl_b32 s25, s42, 11\nv_mul_u32_u24 v13, 12288, v13\nv_add_u32 v12, v12, v13\ns_add_u32 s24, s25, {VL + 8192}\nv_add_u32 v53, s24, v12')
    A(f's_add_u32 s24, s25, {KL + 8192}\nv_add_u32 v54, s24, v8\ns_add_u32 s30, s32, 4096\ns_add_u32 s31, s32, 8192')
    A('s_branch L_cpd')
    A.label('L_cpA'); A.fence()
    for r in range(0, 32, 2): A(f'v_mov_b64 v[{168+r}:{169+r}], v[{ONES}:{ONES+1}]')
    A(f's_mul_i32 s30, s41, {PHI_WAVE}\ns_add_u32 s30, s30, {PHI}')
    A('v_and_b32 v12, 1, v1\nv_lshlrev_b32 v12, 4, v12\nv_mov_b32 v13, 0x3f80\nv_lshlrev_b32 v13, v12, v13')
    A('v_lshlrev_b32 v12, 4, v11\nv_sub_u32 v12, v10, v12\nv_lshrrev_b32 v12, 1, v12')
    for r in range(8): A(f'v_cmp_eq_u32 vcc, {r}, v12\nv_cndmask_b32 v{SEL+r}, 0, v13, vcc')
    A('v_lshlrev_b32 v54, 2, v10\nv_lshl_add_u32 v54, v11, 9, v54')
    A(f'v_add_u32 v52, s30, v8\ns_xor_b32 s24, s41, 2\ns_mul_i32 s25, s24, {PHI_WAVE}\ns_add_u32 s25, s25, {PHI}\nv_add_u32 v53, s25, v8')
    A(f's_lshl_b32 s24, s35, 2\ns_lshl_b32 s25, s43, 1\ns_add_u32 s24, s24, s25\ns_add_u32 s24, s24, s42\ns_mul_i32 s31, s24, {ACCB}\ns_add_u32 s31, s31, {WS_ACC}')
    A.label('L_cpd'); A.fence()
    def padwalk(k):
        if not OPT['pads']: return
        A('s_mov_b64 exec, 0')
        for w in range(3): A(f's_cmp_eq_u32 s41, {w}\ns_cbranch_scc1 L_chain{4*k+w}')
        A(f's_branch L_chain{4*k+3}')
        A.label(f'L_padret{k}')
        A('s_mov_b64 exec, -1')
    def duties():
        A('s_cmp_lt_u32 s2, 32\ns_cbranch_scc1 L_d4')
        A.label('L_d5')
        def f():
            A.label('L_d4'); A.fence(); A.raw(';PAD')
            A('s_mov_b64 exec, 1\ns_cmp_lg_u32 s41, 1\ns_cbranch_scc1 L_d6')
            A(f's_waitcnt vmcnt(0)\nbuffer_atomic_add v{V1}, v{V0}, s[56:59], 0 offen offset:4')
            A.label('L_d6')
            A('s_cmp_lg_u32 s41, 3\ns_cbranch_scc1 L_d7\ns_cmp_lg_u32 s2, 0\ns_cbranch_scc1 L_d7')
            A(f's_waitcnt vmcnt(0)\nv_add_u32 v{PD}, 1, v{PD}\nv_max_u32 v{PD}, 1, v{PD}\ns_mov_b32 s24, {WS_EP}')
            A(f'buffer_store_dword v{PD}, v{V0}, s[56:59], 0 offen sc1')
            A(f'buffer_store_dword v{PD}, v{V0}, s[52:55], s24 offen sc1')
            A.label('L_d7')
            A('s_mov_b64 exec, -1\ns_branch L_d5')
        OOL.insert(0, f)
    def clear():
        if not OPT['ua']: return
        A(f'v_mov_b64 v[56:57], -1\nv_mov_b64 v[58:59], -1\ns_add_u32 s24, {S_OA}, 0x4000\ns_add_u32 s25, {S_OA}, 0x200000\ns_add_u32 s3, {S_OA}, 0x204000')
        for so in (S_OA, 's24', 's25', 's3'): A(f'buffer_store_dwordx4 v[56:59], v8, s[52:55], {so} offen sc1')
    if OPT['clr'] < 0: clear()
    padwalk(0)
    if OPT['pw2'] < 0: padwalk(1)
    if OPT['dpos'] < 0: duties()
    A('s_branch L_cons')
    A.label('L_load'); A.fence()
    A(f'v_bfe_u32 v12, v1, 1, 3\nv_xor_b32 v12, v12, v11\nv_lshlrev_b32 v12, 4, v12')
    A('v_lshl_add_u32 v13, v10, 7, s30')
    for ks in range(4): A(f'v_xor_b32 v14, {ks*32}, v12\nv_add_u32 v{2+ks}, v13, v14')
    for ks in range(4): A(f'v_add_u32 v{12+ks}, 0x10000, v{2+ks}')
    def later(E):
        common(E)
        tr_lane(E, 6, 7, 3)
        E('v_bfe_u32 v7, v1, 3, 1\nv_xor_b32 v7, s38, v7\nv_lshl_add_u32 v6, v7, 6, v6')
        E('v_bfe_u32 v7, v1, 4, 1\nv_lshl_add_u32 v6, v7, 5, v6\nv_and_b32 v7, 3, v1\nv_lshl_add_u32 v7, v7, 3, v6\nv_xor_b32 v6, 64, v7')
        E(f's_mul_i32 s9, s38, {2*64*3072}\ns_sub_u32 s9, {64*3072}, s9\ns_add_u32 s9, s9, {S_QG}')
    LT.extend(stream(later))
    LA = [int(c, 36) for c in str(OPT['la'])]
    XF = 64
    for s in range(8):
        assert LA[s] <= 16
        issue(8*s + 8 + LA[s])
        vq.wait(('st', s))
        A('s_waitcnt lgkmcnt(0)\ns_barrier')
        stamp(A, 32 + s)
        for ks in range(4):
            A(f'ds_read_b128 {vr(XF + 16*s + 4*ks, 4)}, v{(2 if RING[s % 4] < 65536 else 12) + ks} offset:{RING[s % 4] & 65535}')
        if s == OPT['tagl']: A('s_buffer_load_dwordx2 s[60:61], s[56:59], 0')
        if s == 6:
            assert not LT and OPT['tagl'] < 6
            A('s_cmp_lg_u32 s60, 0\ns_cselect_b32 s61, s61, 0\ns_cmp_lt_u32 s61, 32\ns_cbranch_scc1 L_tgw')
            A.label('L_tgd')
            A(f'v_mov_b32 v22, {TAG}\nv_mov_b32 v24, s60\nds_write_b32 v22, v24')
            def tgw():
                A.label('L_tgw'); A.fence()
                A(f's_mov_b32 s3, {SPIN_MAX}')
                A.label('L_tg')
                A(f's_sleep 1\nbuffer_load_dwordx2 v[24:25], v{V0}, s[56:59], 0 offen sc1\ns_waitcnt vmcnt(0)\nv_readfirstlane_b32 s60, v24\nv_readfirstlane_b32 s61, v25')
                A('s_cmp_lg_u32 s60, 0\ns_cselect_b32 s61, s61, 0\ns_cmp_lt_u32 s61, 32\ns_cselect_b32 s3, s3, 0\ns_sub_u32 s3, s3, 1\ns_cbranch_scc0 L_tg\ns_branch L_tgd')
            OOL.append(tgw)
    if OPT['e0w'] == 0:
        issue(OPT['e0n'])
        A('s_waitcnt lgkmcnt(0)\ns_barrier')
    issue(80)
    wo_srd(A)
    def awtouch():
        A('s_lshr_b32 s24, s37, 1\ns_lshl_b32 s24, s24, 2\ns_add_u32 s24, s24, s43\ns_xor_b32 s25, s38, 1\ns_lshl_b32 s25, s25, 6\ns_add_u32 s24, s24, s25\ns_lshl_b32 s24, s24, 13\nv_lshl_add_u32 v28, v1, 7, s24')
        A('buffer_load_dword v255, v28, s[44:47], 0 offen'); vq.push('aw')
    if OPT['aw'] == 1: awtouch()
    A(f's_cmp_eq_u32 s38, 0\ns_cselect_b32 s27, 0x{f2u(0.25*LOG2E):x}, 1.0')
    vq.wait(('st', 7 + max(1, OPT['e0w'])))
    if OPT['e0w']: A('s_waitcnt lgkmcnt(0)\ns_barrier')
    else:
        lds_add(A, C_WQ, 22)
        lds_spin(A, C_WQ, 4, 22, 23, sleep=False)
    stamp(A, 40)
    stamp(A, 42); stamp(A, 2)
    if OPT['lprio']:
        if not OPT['aprio']: A('s_cmp_eq_u32 s38, 1\ns_cbranch_scc1 L_noprio')
        A(f's_setprio {OPT["lprio"]}')
        A.label('L_noprio')
    lq = Q(A, 'lgkmcnt', 15)
    NR = 6; WF = 192; QD = OPT['qd']
    def qread(m):
        n = m % 32; f = WF + 4 * (m % NR)
        for rd in range(2):
            A(f'ds_read_b64_tr_b16 v[{f+2*rd}:{f+2*rd+1}], v{6 + m//32} offset:{n*2048 + rd*512}'); lq.push(('q', m))
    for m in range(QD): qread(m)
    ep = []
    for h in range(3):
        rr = range(3*h, min(3*h + 3, 8))
        ep += [f'v_mul_f32 v{32+2*r+e}, s27, v{32+2*r+e}' for r in rr for e in range(2)] + [f'v_cvt_pk_bf16_f32 v{16+GR[r]}, v{32+2*r}, v{33+2*r}' for r in rr]
        ep += [f'buffer_store_dwordx4 {vr(16+4*h,4)}, v8, s[52:55], s9 offen offset:{h*1024} sc1']
    for m in range(64):
        lq.wait(('q', m))
        acc = 32 + 16 * (m // 32)
        A(mfma32(acc, WF + 4*(m % NR), XF + 4*(m % 32), acc if m % 32 else None))
        if m == 16 - QD - 4 and OPT['e0w'] < 2:
            vq.wait(('st', 9))
            lds_add(A, C_WQ2, 22); lq.push('cnt')
        if m + QD == 16 and OPT['e0w'] < 2:
            lds_spin(A, C_WQ2, 4, 22, 23, sleep=False); lq.q = []
            stamp(A, 41); stamp(A, 22)
        if m + QD < 64: qread(m + QD)
        if m >= 32:
            for _ in range(OPT['epn']):
                if ep: A(ep.pop(0))
        if m == OPT['aw'] and m > 1: awtouch()
        if m == 31: stamp(A, 23)
        if m == 33: stamp(A, 24)
        if m == 20:
            for r in (19, 23, 26, 27): A(f'v_mov_b32 v{r}, s60')
        if m == 44:
            tr_lane(A, 15, 5, 2)
            A(f'v_and_b32 v14, 3, v1\nv_lshl_add_u32 v15, v14, 3, v15\ns_lshl_b32 s24, s38, 10\ns_add_u32 s24, s24, {WPH}\nv_add_u32 v15, s24, v15')
        if m == 46:
            for hs in range(2):
                for rd in range(2): A(f'ds_read_b64_tr_b16 v[{16+4*hs+2*rd}:{17+4*hs+2*rd}], v15 offset:{hs*512 + rd*256}'); lq.push('wphi')
        if m == OPT['qpoll'] or m == OPT['bq']:
            if OPT['qpoll'] != OPT['bq']: A(f's_cmp_eq_u32 s38, {0 if m == OPT["qpoll"] else 1}\ns_cbranch_scc1 L_noqp{m}')
            gran_issue(A, 32, 2)
            A.label(f'L_noqp{m}')
    stamp(A, 4)
    if OPT['lprio']: A('s_setprio 0')
    A(f's_lshl_b32 s24, s43, 10\nv_add_u32 v15, s24, v{QRD}')
    A('s_cmp_eq_u32 s38, 1\ns_cbranch_scc1 L_qa')
    for r in range(16): A(f'v_mul_f32 v{48+r}, s27, v{48+r}')
    for r in range(8): A(f'v_cvt_pk_bf16_f32 v{24+r}, v{48+2*r}, v{49+2*r}')
    A(f'ds_write_b128 v{QRD}, v[24:27]')
    if OPT['bq'] == 64: gran_issue(A, 32, 2)
    A('s_waitcnt lgkmcnt(0)\ns_barrier')
    if OPT['bq'] == 65: gran_issue(A, 32, 2)
    A.label('L_wo'); A.fence()
    stamp(A, 8)
    nwo = wo_dma(A, 8)
    A('s_cmp_eq_u32 s38, 1\ns_cbranch_scc1 L_att')
    gran_wait(A, 32, 2, 104, False, nwo)
    stamp(A, 7)
    A('s_branch L_qb')
    A.label('L_qa'); A.fence()
    A('s_nop 8')
    for r in range(8): A(f'v_cvt_pk_bf16_f32 v{104+r}, v{48+2*r}, v{49+2*r}')
    A.label('L_qb'); A.fence(); A('s_nop 1')
    for hs in range(2): A(mfma32(64+16*hs, 16+4*hs, 104+4*hs, None))
    def phiq(E, hs):
        p = 64 + 16 * hs
        dual_exp(E, p, p + 8, 96 + 2*hs)
        for m in range(8): E(f'v_cvt_pk_bf16_f32 v{(104 if hs == 0 else 48)+m}, v{p+2*m}, v{p+2*m+1}')
    for a, b in zip(stream(phiq, 0), stream(phiq, 1)): A(a); A(b)
    A(f'ds_write_b128 v15, v[104:107] offset:{PQX-QX}\nds_write_b128 v15, v[108:111] offset:{PQX-QX+1024}')
    lds_add(A, C_PQ, 14)
    stamp(A, 6)
    A('s_cmp_eq_u32 s38, 0\ns_cbranch_scc1 L_att')
    gran_wait(A, 32, 2, 24, True)
    A(f'ds_write_b128 v{QRD}, v[24:27]')
    stamp(A, 7)
    A('s_waitcnt lgkmcnt(0)\ns_barrier')
    A('s_branch L_wo')
    A.label('L_cons'); A.fence(); A.raw(';PAD')
    stamp(A, 21)
    KA, VA = [96, 112], [128, 144]
    FS = [16, 32, 64, 80]
    lq = Q(A, 'lgkmcnt', 15)
    def reads(n):
        s, ks = divmod(n, 4); f = FS[n % 4]
        xa, wa = (2, 6) if RING[s % 4] < 65536 else (48, 7)
        so = RING[s % 4] & 65535
        def rx(tt): return (f'ds_read_b128 v[{f+4*tt}:{f+4*tt+3}], v{xa+ks} offset:{so + tt*4096}', (n, 'x', tt))
        def rw(seg, rd): return (f'ds_read_b64_tr_b16 v[{f+8+4*seg+2*rd}:{f+9+4*seg+2*rd}], v{wa} offset:{so + seg*8192 + ks*2048 + rd*512}', (n, 'w', seg))
        return [rx(0), rw(0, 0), rw(0, 1), rx(1), rw(1, 0), rw(1, 1)]
    def mk(n, tt): return mfma32(KA[tt], FS[n % 4] + 8, FS[n % 4] + 4*tt, KA[tt] if n else None)
    def mv(n, tt): return mfma32(VA[tt], FS[n % 4] + 4*tt, FS[n % 4] + 12, VA[tt] if n else None)
    A('s_waitcnt lgkmcnt(0)\ns_barrier')
    stamp(A, 1)
    for n in range(2):
        for t, tag in reads(n): A(t); lq.push(tag)
    for n in range(28):
        nxt = reads(n + 2)
        newstage = (n % 4 == 2)
        k = 0
        for mi, (seg, tt) in enumerate([(0, 0), (0, 1), (1, 0), (1, 1)]):
            if newstage and mi == 0: lq.all()
            else: lq.wait((n, 'x', tt), (n, 'w', seg))
            A(mv(n, tt) if seg else mk(n, tt))
            if mi == 0 and n == OPT['pw2']: padwalk(1)
            if mi == 0 and n == OPT['dpos']: duties()
            if mi == 0 and n == OPT['clr']: clear()
            if newstage and mi == 0: A('s_barrier')
            for _ in range(2):
                if k < len(nxt):
                    t, tag = nxt[k]; A(t); lq.push(tag); k += 1
        if n == 20: A('s_waitcnt vmcnt(0)')
        if n == 23:
            for hs in range(2):
                for rd in range(2): A(f'ds_read_b64_tr_b16 v[{56+4*hs+2*rd}:{57+4*hs+2*rd}], v9 offset:{hs*512 + rd*256}'); lq.push('wphi')
        if n == 26:
            A('s_not_b64 exec, s[28:29]\nv_mov_b64 v[56:57], 0\nv_mov_b64 v[58:59], 0\ns_mov_b64 exec, s[28:29]\nv_mov_b64 v[60:61], 0\nv_mov_b64 v[62:63], 0\ns_mov_b64 exec, -1')
        if n == 27: A('ds_read_b32 v12, v15'); lq.push('tag')
    if OPT['cprio']: A('s_setprio 2')
    r30, r31 = reads(30), reads(31)
    nxt = r30[:4] + r31[:4] + r30[4:] + r31[4:]
    for g, (n, tt) in enumerate([(n, tt) for n in range(28, 32) for tt in range(2)]):
        if g == min(OPT['e0pos'], 7): lq.all()
        else: lq.wait((n, 'x', tt), (n, 'w', 0))
        A(mk(n, tt))
        if g == OPT['e0pos']: A('s_barrier')
        for t, tag in nxt[3*g:3*g+3]: A(t); lq.push(tag)
        if g == 5: A('v_readfirstlane_b32 s60, v12\nv_readfirstlane_b32 s61, v12')
    stamp(A, 2)
    A('s_cmp_eq_u32 s38, 1\ns_cbranch_scc1 L_epA')
    hist = list(A.hist)
    def weave(mf, fill, per):
        fill = list(fill)
        for m in mf:
            A(m)
            for _ in range(per):
                if fill: A(fill.pop(0))
        for f in fill: A(f)
    def cv(d, a): return [f'v_cvt_pk_bf16_f32 v{d+m}, v{a+2*m}, v{a+2*m+1}' for m in range(4)]
    ckv = [x for tt in range(2) for e in range(2) for x in cv(160+8*tt+4*e, KA[tt]+8*e)]
    sk = [f'buffer_store_dwordx4 {vr(160+8*tt+4*e,4)}, v8, s[52:55], {"s30" if e else "s32"} offen offset:{tt*1024} sc1' for tt in range(2) for e in range(2)]
    cvv = [[x for e in range(2) for x in cv(176+8*tt+4*e, VA[tt]+8*e)] for tt in range(2)]
    sv = [f'buffer_store_dwordx4 {vr(176+8*tt+4*e,4)}, v52, s[52:55], s31 offen offset:{tt*1024+e*512} sc1' for tt in range(2) for e in range(2)]
    A(mv(28, 0))
    weave([mv(n, 0) for n in range(29, 32)] + [mv(28, 1), mv(29, 1)], ckv, 4)
    weave([mv(30, 1), mv(31, 1)], cvv[0], 4)
    if OPT['cprio']: A('s_setprio 0')
    if OPT['e0pos'] >= 8: A('s_barrier')
    if OPT['bw']: lds_spin(A, C_WQ, 4, 2, 3)
    for x in sk + sv[:2] + cvv[1] + sv[2:]: A(x)
    stamp(A, 3)
    flag(A, 's34', 2)
    stamp(A, 4)
    halo_edge(A, 'B')
    A('s_cmp_eq_u32 s43, 1\ns_cbranch_scc1 L_epB1')
    for tt in range(2):
        for e in range(2):
            A(f'ds_write_b128 v54, {vr(160+8*tt+4*e,4)} offset:{e*12288 + tt*1024}')
            A(f'ds_write_b128 v53, {vr(176+8*tt+4*e,4)} offset:{tt*1024 + e*512}')
    A.label('L_epB1')
    A('s_cmp_eq_u32 s39, 0\ns_cbranch_scc1 L_epB2')
    halo_issue(A, 'B'); halo_fetch(A, 'B')
    A.label('L_epB2')
    A('s_waitcnt vmcnt(0) lgkmcnt(0)\ns_branch L_e1')
    A.label('L_epA'); A.hist = hist; A.raw(';PAD')
    KPK = {0: 160, 1: 208}
    VM = [168, 184]
    EM = {(0, 0): 16, (0, 1): 24, (1, 0): 32, (1, 1): 40}
    TM = {(0, 0): 2, (0, 1): 4, (1, 0): 12, (1, 1): 14}
    PT = {(0, 0): 64, (0, 1): 80, (1, 0): 96, (1, 1): 16}
    def phik(E, tt, hs, fast):
        p = KA[tt] + 8*hs; em = EM[(tt, hs)]; t = TM[(tt, hs)]; d = PT[(tt, hs)]
        if fast:
            for r in range(8): E(f'v_mul_f32 v{p+r}, s62, v{p+r}')
            for r in range(8): E(f'v_exp_f32_e64 v{em+r}, -v{p+r}\nv_exp_f32 v{p+r}, v{p+r}')
        else: dual_exp(E, p, em, t)
        E(f'v_add_f32 v{t}, v{p}, v{p+1}\nv_add_f32 v{t+1}, v{em}, v{em+1}')
        for r in range(2, 8): E(f'v_add_f32 v{t}, v{t}, v{p+r}\nv_add_f32 v{t+1}, v{t+1}, v{em+r}')
        E(f'v_permlane32_swap_b32 v{t}, v{t+1}\nv_add_f32 v{t}, v{t}, v{t+1}')
        if fast: E(f'v_max_f32 v6, v6, v{t}')
        E(f'v_rcp_f32 v{t}, v{t}\nv_mov_b32 v{t+1}, v{t}\nv_permlane32_swap_b32 v{t}, v{t+1}')
        for r in range(8): E(f'v_mul_f32 v{p+r}, v{p+r}, v{t}')
        for x in cv(p, p): E(x)
        for r in range(8):
            E(f'v_mul_f32 v{em+r}, v{em+r}, v{t+1}')
            if r == 1: E(mfma32(d, p, SEL, None))
        for x in cv(em, em): E(x)
    def phik2(E, tt, hs):
        d = PT[(tt, hs)]
        for x in cv(d, d) + cv(d + 4, d + 8): E(x)
    def tm2(tt): return [mfma32(PT[(tt, hs)], EM[(tt, hs)], SEL + 4, PT[(tt, hs)]) for hs in range(2)]
    def pair(fn, tt, *a): return [x for ab in zip(stream(fn, tt, 0, *a), stream(fn, tt, 1, *a)) for x in ab]
    ck = [cv(KPK[tt], KA[tt]) + cv(KPK[tt]+4, KA[tt]+8) for tt in range(2)]
    pm = [[mfma32(KA[tt], 56, KPK[tt], None), mfma32(KA[tt], 60, KPK[tt]+4, KA[tt])] for tt in range(2)]
    KV = [128, 144]
    def kvm(tt): return [mfma32(KV[hs], VM[hs] + 8*tt + 4*blk, PT[(tt, hs)] + 4*blk, KV[hs] if tt or blk else None) for blk in range(2) for hs in range(2)]
    A(mv(28, 0))
    weave([mv(28, 1), mv(29, 0)], ck[0], 4)
    weave(pm[0], ck[1], 4)
    for m in pm[1]: A(m)
    A(mv(29, 1))
    A('v_mov_b32 v6, 0')
    fast = bool(OPT['fastk'])
    S = [pair(phik, tt, fast) for tt in range(2)]
    vc = ['s_mov_b64 exec, s[28:29]'] + [x for tt in range(2) for x in cv(VM[0]+8*tt, VA[tt]) + cv(VM[0]+8*tt+4, VA[tt]+8)]
    vc += ['s_not_b64 exec, s[28:29]'] + [x for tt in range(2) for x in cv(VM[1]+8*tt, VA[tt]) + cv(VM[1]+8*tt+4, VA[tt]+8)] + ['s_mov_b64 exec, -1']
    D = 2 * OPT['stag']
    rest = [mv(30, 0), mv(30, 1), mv(31, 0), mv(31, 1)]
    L = len(S[0])
    tail0 = {L: tm2(0), L + 14: pair(phik2, 0), L + 18: kvm(0)[:2], L + 24: kvm(0)[2:]}
    assert D >= 26
    for i in range(0, L + D, 2):
        if i < L: A(S[0][i]); A(S[0][i+1])
        if rest and i % 4 == 2:
            A(rest.pop(0))
            if not rest and OPT['cprio']: A('s_setprio 0')
        if OPT['e0pos'] >= 8 and i == OPT['e0a']: A('s_barrier')
        if i == D - 2:
            halo_edge(A, 'A')
            for x in vc: A(x)
            stamp(A, 6)
        if i >= D: A(S[1][i-D]); A(S[1][i-D+1])
        for x in tail0.get(i, []): A(x)
    for m in tm2(1): A(m)
    stamp(A, 3)
    A(f's_lshl_b32 s25, s41, 2\ns_add_u32 s25, s25, {TAG + C_PAIR}')
    if fast: A('v_cmp_nlt_f32 vcc, v6, s63\ns_cbranch_vccnz L_kexact'.replace('v6, s63', 's63, v6').replace('nlt', 'ngt'))
    for x in pair(phik2, 1): A(x)
    for m in kvm(1): A(m)
    A.label('L_kdone')
    A('v_mov_b32 v6, s25\nv_xor_b32 v7, 8, v6')
    if fast:
        def kexact():
            A.label('L_kexact'); A.fence()
            A('s_nop 15')
            for tt in range(2):
                for m in pm[tt]: A(m)
            for tt in range(2):
                for x in pair(phik, tt, False) + tm2(tt) + pair(phik2, tt) + kvm(tt): A(x)
            A('s_branch L_kdone')
        COLD.append(kexact)
    A('s_nop 7')
    A('s_cmp_eq_u32 s42, 1\ns_cbranch_scc1 L_ex1')
    for i in range(2):
        if i == 1: A.label('L_ex1')
        keep, kz = (KV[0], KV[0] + 8) if i == 0 else (KV[1] + 8, KV[1])
        send, sz = (KV[1] + 8, KV[1]) if i == 0 else (KV[0], KV[0] + 8)
        A(f'ds_write_b128 v52, {vr(send,4)}\nds_write_b128 v52, {vr(send+4,4)} offset:1024\nds_write_b32 v52, v{sz} offset:2048')
        A(f'ds_write_b32 v6, v{V1}\ns_mov_b32 s3, {SPIN_MAX * 4}')
        A.label(f'L_exs{i}')
        A('ds_read_b32 v12, v7\nds_read_b128 v[32:35], v53\nds_read_b128 v[36:39], v53 offset:1024\nds_read_b32 v40, v53 offset:2048')
        A(f's_sub_u32 s3, s3, 1\ns_waitcnt lgkmcnt(0)\nv_cmp_eq_u32 vcc, 0, v12\ns_cselect_b64 vcc, 0, vcc\ns_cbranch_vccnz L_exs{i}')
        for r in range(9): A(f'v_add_f32 v{32+r}, v{keep + r if r < 8 else kz}, v{32+r}')
        if i == 0: A('s_branch L_exd')
    A.label('L_exd'); A.fence()
    stamp(A, 20)
    def atomics():
        for r in range(OPT['nat']): A(f'buffer_atomic_add_f32 v{32+r}, v54, s[52:55], s31 offen offset:{rowof(r,0)*128}')
        A(f's_mov_b32 exec_hi, 0\ns_add_u32 s31, s31, {AUX}')
        A(f'buffer_atomic_add_f32 v40, v54, s[52:55], s31 offen')
        A('s_mov_b64 exec, -1')
    if 'A' in OPT['sp']:
        if OPT['hpos'] == 0: halo_issue(A, 'A')
        atomics()
        stamp(A, 4)
        if OPT['hpos'] == 1: halo_issue(A, 'A')
        halo_fetch(A, 'A')
        A('s_cmp_lt_u32 s39, 2\ns_cbranch_scc0 L_c2\ns_waitcnt vmcnt(4)')
        A.label('L_c2')
        A('s_waitcnt vmcnt(12)')
        count_add(A, 's31', 256)
        stamp(A, 19)
        A('s_waitcnt vmcnt(1)')
    else:
        atomics()
        stamp(A, 4)
        halo_issue(A, 'A')
        A('s_waitcnt vmcnt(1)')
        count_add(A, 's31', 256)
        stamp(A, 19)
        halo_fetch(A, 'A', 1)
        A('s_waitcnt vmcnt(0)')
    A.label('L_e1'); A.fence()
    A(f's_lshl_b32 s24, s41, 10\nv_add_u32 v9, s24, v{QRD}')
    A('s_barrier')
    stamp(A, 8)
    A(f'ds_read_b128 v[28:31], v{QRD}')
    A.label('L_att'); A.fence(); A.raw(';PAD')
    if OPT['wprio']:
        A('s_cmp_lt_u32 s41, 4\ns_cbranch_scc1 L_wp\ns_setprio 1')
        A.label('L_wp')
    A('s_cmp_lt_u32 s39, 2\ns_cbranch_scc1 L_bslow')
    FA = bool(OPT['fasta'])
    bunit(A, False, FA, True, 'f')
    A.label('L_bdone'); A.fence()
    stamp(A, 11)
    O = OACC
    A(f's_add_u32 s24, {S_OA}, 0x200000\ns_add_u32 s27, {S_C3}, {16*ACCB}\ns_nop 9')
    if FA:
        A(f'v_pk_mul_f32 v[2:3], v[{O}:{O+1}], 0')
        for m in range(1, 4): A(f'v_pk_fma_f32 v[2:3], v[{O+2*m}:{O+2*m+1}], 0, v[2:3]')
        A(f'v_add_f32 v2, v2, v3\nv_add_f32 v2, v2, v{O+8}\nv_subrev_u32 v2, 0x{f2u(2.0**-60):x}, v2')
        A(f'v_cmp_lt_u32 vcc, 0x{f2u(2.0**60) - f2u(2.0**-60):x}, v2\ns_cbranch_vccnz L_bexact')
        A.label('L_bdone2')
    A(f'v_rcp_f32 v4, v{O+8}')
    for m in range(4): A(f'v_pk_mul_f32 v[{O+2*m}:{O+2*m+1}], v[{O+2*m}:{O+2*m+1}], v[4:5] op_sel_hi:[1,0]')
    for m in range(4): A(f'v_cvt_pk_bf16_f32 v{16+m}, v{O+2*m}, v{O+2*m+1}')
    A(f'buffer_store_dwordx4 v[16:19], v8, s[52:55], s24 offen sc1')
    UA = OPT['ua']
    if UA: count_add(A, 's27'); stamp(A, 12)
    A('s_cmp_ge_u32 s41, 4\ns_cbranch_scc1 L_nord')
    if not UA: A(f's_mov_b32 s25, s27\ns_mov_b32 s27, {S_C3}\ns_mov_b32 {S_C3}, s25')
    lds_spin(A, C_PQ, 4, 4, 5, sleep=False)
    A(f'ds_read_b128 v[48:51], v9 offset:{PQX-QX}\nds_read_b128 v[52:55], v9 offset:{PQX-QX+1024}')
    readout(A, 64, 180, 1 + UA); readout2(A, 64, 180)
    A.label('L_nord')
    tr_lane(A, 6, 7, 2)
    A('v_and_b32 v7, 1, v1\nv_lshl_add_u32 v6, v7, 5, v6\nv_bfe_u32 v7, v1, 1, 1\nv_lshl_add_u32 v6, v7, 3, v6\nv_and_b32 v7, 16, v1\nv_add_u32 v6, v6, v7')
    A('s_lshr_b32 s24, s41, 2\ns_lshl_b32 s24, s24, 11\nv_bfe_u32 v7, v1, 3, 1\nv_lshl_add_u32 v6, v7, 6, v6\nv_add_u32 v2, s24, v6\nv_xor_b32 v3, 64, v2')
    if not UA:
        A('s_waitcnt vmcnt(1)')
        count_add(A, S_C3)
        stamp(A, 12)
        A('s_waitcnt vmcnt(1)')
        count_add(A, 's27')
        stamp(A, 13)
    if OPT['wa']:
        A('s_cmp_lt_u32 s41, 4\ns_cbranch_scc1 L_noatt')
        lds_add(A, C_ATT, 12)
        A.label('L_noatt')
    if OPT['gp'] == 1: A('s_setprio 0')
    OFR, PRE, AC = 16, 80, 208
    lds_spin(A, C_WO, 4, 12, 13)
    for m in range(32):
        for rd in range(2): A(f'ds_read_b64_tr_b16 v[{PRE+4*m+2*rd}:{PRE+4*m+2*rd+1}], v{2+m%2} offset:{(m//2)*4096 + rd*1024}')
    if OPT['wa']: lds_spin(A, C_ATT, 4, 12, 13)
    poll_issue(A, PD, V0, S_FC, count=16)
    A('v_and_b32 v9, 15, v1\nv_lshlrev_b32 v9, 11, v9\nv_and_b32 v12, 48, v1\nv_add_u32 v9, v9, v12')
    A(f's_and_b32 s24, s41, 3\ns_lshl_b32 s25, s24, 13\ns_add_u32 s25, s25, {PHI}\nv_add_u32 v4, s25, v8\ns_lshl_b32 s24, s24, 2\ns_add_u32 s24, s24, {TAG + C_PART}\nv_mov_b32 v5, s24')
    srd(A, 56, 18, 0x400000)
    A(f's_add_u32 s24, {S_FO}, 8192\ns_add_u32 s25, {S_FO}, 12288\ns_add_u32 s26, {S_FO}, 4096\ns_add_u32 s27, {S_OUT}, 32768')
    stamp(A, 25)
    poll(A, PD, V0, S_FC, count=16, inline=True)
    stamp(A, 14)
    A('s_mov_b32 s30, 0')
    A.label('L_again')
    def oload(k): A(f'buffer_load_dwordx4 {vr(OFR+4*k,4)}, v8, s[52:55], {[S_FO,"s26","s24","s25"][k//4]} offen offset:{(k%4)*1024} sc1')
    TH = OPT['th']
    for k in range(TH): oload(k)
    if TH < 16:
        A('s_cmp_ge_u32 s41, 4\ns_cbranch_scc1 L_oall')
        for k in range(TH, 16): A(f's_waitcnt vmcnt({TH-1})'); oload(k)
        A('s_branch L_odone')
        A.label('L_oall')
        for k in range(TH, 16): oload(k)
        A.label('L_odone')
    A('s_waitcnt lgkmcnt(0)')
    for m in range(32):
        k, ct = m // 2, m % 2
        if ct == 0: A(f's_waitcnt vmcnt({15-k})')
        A(mfma32(AC+16*ct, PRE+4*m, OFR+4*k, AC+16*ct if k else None))
        if m == 30 and UA:
            A(f's_cmp_lg_u32 s30, 0\ns_cbranch_scc1 L_acked\ns_mov_b64 exec, 3\nv_lshlrev_b32 v12, 15, v1\nbuffer_atomic_add v{V1}, v12, s[52:55], {S_C3} offen offset:64\ns_mov_b64 exec, -1')
            A.label('L_acked'); A.hist = A.hist[:-4]
        if m == OPT['pr']:
            assert m >= 17
            A(f's_cmp_lt_u32 s41, 4\ns_cbranch_scc1 L_nopr\ns_mov_b32 s3, {SPIN_MAX * 4}')
            A.label('L_prs')
            A('ds_read_b32 v12, v5\ns_sub_u32 s3, s3, 1\ns_waitcnt lgkmcnt(0)\nv_cmp_eq_u32 vcc, 0, v12\ns_cselect_b64 vcc, 0, vcc\ns_cbranch_vccnz L_prs')
            stamp(A, 15)
            for i in range(8): A(f'ds_read_b128 {vr(OFR+4*i,4)}, v4 offset:{i*1024}')
            A.label('L_nopr')
    stamp(A, 16)
    if UA:
        A(f'v_cmp_u_f32 vcc, v{AC}, v{AC}\ns_cbranch_vccnz L_late')
        A.label('L_late2')
        def late():
            A.label('L_late'); A.fence()
            A('s_cmp_lg_u32 s30, 0\ns_cbranch_scc1 L_late2\ns_mov_b32 s30, 1\ns_waitcnt lgkmcnt(0)')
            poll_issue(A, PD, V0, S_FC, count=16, off=64)
            poll(A, PD, V0, S_FC, count=16, off=64, inline=True)
            A('s_branch L_again')
        COLD.append(late)
    A('s_cmp_ge_u32 s41, 4\ns_cbranch_scc1 L_fin')
    for i in range(8): A(f'ds_write_b128 v4, {vr(AC+4*i,4)} offset:{i*1024}')
    A(f'ds_write_b32 v5, v{V1}\ns_waitcnt lgkmcnt(0)\ns_branch L_fin2')
    A.label('L_fin')
    A('s_waitcnt lgkmcnt(0)' + ('' if UA else '\ns_nop 7'))
    for ct in range(2):
        for r in range(0, 16, 2): A(f'v_pk_add_f32 v[{AC+16*ct+r}:{AC+16*ct+r+1}], v[{AC+16*ct+r}:{AC+16*ct+r+1}], v[{OFR+16*ct+r}:{OFR+16*ct+r+1}]')
        b = 48 + 8 * ct
        for m in range(8): A(f'v_cvt_pk_bf16_f32 v{b+m}, v{AC+16*ct+2*m}, v{AC+16*ct+2*m+1}')
        for m in range(4): A(f'v_permlane16_swap_b32 v{b+m}, v{b+4+m}')
        for h in range(2): A(f'buffer_store_dwordx4 {vr(b+4*h,4)}, v9, s[56:59], {"s27" if h else S_OUT} offen offset:{ct*64} {OST}')
    A.label('L_fin2')
    stamp_flush(A, 's[52:55]', 's41')
    A.label('L_end'); A.fence()
    A('s_endpgm')
    A.label('L_bslow'); A.fence(); A.raw(';PAD')
    bunit(A, True, FA, True, 's')
    A('s_branch L_bdone')
    for f in OOL: f()
    A.label('L_cold')
    if FA:
        A.label('L_bexact'); A.fence()
        bunit(A, True, False, False, 'x')
        A('s_nop 11\ns_branch L_bdone2')
    for f in COLD: f()

def readout(A, R1, R2, n):
    A(f's_waitcnt vmcnt({n})')
    for m in range(8): A(f'v_cvt_pk_bf16_f32 v{32+m}, v{32+2*m}, v{33+2*m}')
    if n: A('s_waitcnt lgkmcnt(0)')
    A(mfma32(R1, 32, 48, None)); A(mfma32(R2, 36, 52, None))
def readout2(A, R1, R2):
    A(f'v_mov_b32 v6, 0x{f2u(1e-6):x}')
    A(f'v_rcp_f32 v4, v{R1+9}\nv_rcp_f32 v5, v{R2+9}')
    A(f'v_fmac_f32 v6, v{R1+8}, v4\nv_fmac_f32 v6, v{R2+8}, v5')
    A('v_rcp_f32 v6, v6')
    A('v_mul_f32 v4, v4, v6\nv_mul_f32 v5, v5, v6')
    for r in range(8): A(f'v_mul_f32 v{R1+r}, v{R1+r}, v4')
    for r in range(8): A(f'v_fmac_f32 v{R1+r}, v{R2+r}, v5')
    for m in range(4): A(f'v_cvt_pk_bf16_f32 v{20+m}, v{R1+2*m}, v{R1+2*m+1}')
    A(f'buffer_store_dwordx4 v[20:23], v8, s[52:55], {S_OA} offen sc1')
    if OPT['ua']: count_add(A, S_C3)
    if OPT['wprio']: A('s_setprio 0')
    stamp(A, 17)

def bunit(A, checks, fast, hooks, sfx):
    lq = Q(A, 'lgkmcnt', 15)
    KF = {j: 144 + 4 * j for j in range(9)}
    M, X, Y, Z, NM = 64, 80, 96, 112, 128
    O = OACC
    order = [8, 0, 7, 6, 5, 4, 3, 2, 1]
    def kvload():
        for m in range(4): A(f'buffer_load_dwordx4 {vr(32+4*m,4)}, v{KVOFF}, s[52:55], {S_ACC} offen offset:{16*m} sc1')
    def hook(j):
        stamp(A, 58 - j)
        if j + 100 == OPT['clr'] and OPT['ua']:
            assert j > OPT['h2']
            A(f's_cmp_ge_u32 s41, 4\ns_cbranch_scc1 L_nclr{sfx}')
            A(f'v_mov_b64 v[56:57], -1\nv_mov_b64 v[58:59], -1\ns_add_u32 s24, {S_OA}, 0x4000\ns_add_u32 s25, {S_OA}, 0x200000\ns_add_u32 s3, {S_OA}, 0x204000')
            for so in (S_OA, 's24', 's25', 's3'): A(f'buffer_store_dwordx4 v[56:59], v8, s[52:55], {so} offen sc1')
            A.label(f'L_nclr{sfx}')
        same = (OPT['hp'], OPT['h2']) == (OPT['ap'], OPT['a2'])
        for ty, (hp, h2) in enumerate([(OPT['hp'], OPT['h2']), (OPT['ap'], OPT['a2'])][:1 if same else 2]):
            if j not in (hp, h2): continue
            A((f's_cmp_ge_u32 s41, 4' if same else f's_cmp_lg_u32 s20, {ty}') + f'\ns_cbranch_scc1 L_hg0{ty}{j+1}{sfx}')
            if j == hp:
                A(f's_mov_b64 exec, 3\nv_lshlrev_b32 v5, 11, v1\nv_add_u32 v5, {AUX}, v5')
                poll_issue(A, PD, 5, S_ACC, count=16, off=256)
                A('s_mov_b64 exec, -1')
            if j == h2:
                A('s_mov_b64 exec, 3')
                poll(A, PD, 5, S_ACC, count=16, off=256)
                lds_add(A, C_KV, 4)
                stamp(A, 10)
                kvload()
            A.label(f'L_hg0{ty}{j+1}{sfx}')
        if j in WD or j in (OPT['g2'], OPT['gr'], OPT['gr'] - 1, OPT['gpp']):
            A(f's_cmp_lt_u32 s41, 4\ns_cbranch_scc1 L_hg1{j+1}{sfx}')
            if OPT['gp'] and j == OPT['gpp']: A('s_setprio 1')
            wo_dma(A, j)
            if j == OPT['gr']: readout(A, R1, 180, 0)
            if j == OPT['gr'] - 1: readout2(A, R1, 180)
            if j == OPT['g2']:
                assert min(WD + [8]) > j
                A('s_waitcnt vmcnt(0)')
                lds_add(A, C_WO, 4)
                lds_spin(A, C_KV, 4 if OPT['ua'] and OPT['clr'] >= 100 else 1, 4, 5)
                stamp(A, 10)
                kvload()
            A.label(f'L_hg1{j+1}{sfx}')
    R1 = M
    if hooks: stamp(A, 50)
    for j in order: A(f'ds_read_b128 {vr(KF[j],4)}, v{KRD} offset:{j*1024}'); lq.push(('k', j))
    buf = {8: M, 0: X, 7: Y, 6: Z, 5: NM, 4: X, 3: Y, 2: Z, 1: NM}
    def qk(j, dst):
        lq.wait(('k', j))
        A(mfma32(dst, KF[j], 28, None))
    def hook0():
        if hooks: stamp(A, 9)
    if fast:
        qk(8, M)
        if checks:
            A('v_mov_b32 v2, 0xff800000')
            for r in range(0, 16, 2): A(f'v_mov_b64 v[{NM+r}:{NM+r+1}], 0')
        else: qk(0, NM)
    else:
        for j in (8, 0, 7, 6, 5): qk(j, buf[j])
        if checks:
            A(f's_cmp_ge_u32 {S_T}, 8\ns_cbranch_scc1 L_t0{sfx}\ns_nop 7')
            for r in range(16): A(f'v_mov_b32 v{X+r}, 0xff800000')
            A.label(f'L_t0{sfx}'); A('s_nop 7')
        for r in range(16): A(f'v_cndmask_b32_e64 v{M+r}, v{X+r}, v{M+r}, s[{64+2*r}:{65+2*r}]')
        qk(4, buf[4])
        A(f'v_max_f32 v2, v{M}, v{M+1}\nv_max_f32 v3, v{M+2}, v{M+3}')
        for m in range(1, 4): A(f'v_max3_f32 v2, v2, v{M+4*m}, v{M+4*m+1}\nv_max3_f32 v3, v3, v{M+4*m+2}, v{M+4*m+3}')
        for j in (7, 6, 5, 4, 3, 2, 1):
            b = buf[j]
            if checks: A(f's_cmp_lt_u32 {S_T}, {8-j}\ns_cbranch_scc1 L_bm{sfx}')
            for m in range(4): A(f'v_max3_f32 v2, v2, v{b+4*m}, v{b+4*m+1}\nv_max3_f32 v3, v3, v{b+4*m+2}, v{b+4*m+3}')
            if j - 4 >= 1: qk(j - 4, buf[j - 4])
        if checks:
            A.label(f'L_bm{sfx}'); A.fence(); A('s_waitcnt lgkmcnt(0)\ns_nop 15'); lq.q = []
        A('v_max_f32 v2, v2, v3\nv_mov_b32 v3, v2\nv_permlane32_swap_b32 v2, v3\nv_max_f32 v2, v2, v3')
        hook0()
        A(f'v_sub_f32 v{NM}, 0, v2\nv_sub_f32 v{NM+1}, 0, v2')
        for r in range(2, 16, 2): A(f'v_mov_b64 v[{NM+r}:{NM+r+1}], v[{NM}:{NM+1}]')
    vs = [0]
    def vreads(js):
        A('s_mov_b64 exec, s[28:29]')
        out = {}
        for j in js:
            for blk in range(2):
                st = VRING + 4 * (vs[0] % 4); vs[0] += 1
                A(f'ds_read_b128 {vr(st,4)}, v{VRD} offset:{j*1024 + blk*512}'); lq.push(('v', j, blk)); out[(j, blk)] = st
        A('s_mov_b64 exec, -1')
        return out
    first = [True]
    def pv(j, blk, vreg, p):
        def f():
            lq.wait(('v', j, blk))
            A(mfma32(O, vreg, p, None if first[0] else O))
            first[0] = False
        return f
    buf2 = {7: X, 6: Y, 5: Z, 4: X, 3: Y, 2: Z, 1: X}
    def qk2(j):
        def f():
            if checks:
                uid[0] += 1; n = uid[0]
                A(f's_cmp_lg_u32 {S_T}, {7-j}\ns_cbranch_scc1 L_ni{n}\ns_nop 7')
                for r in range(16): A(f'v_mov_b32 v{NM+r}, 0xff800000')
                A.label(f'L_ni{n}'); A.fence(); A('s_nop 1')
            lq.wait(('k', j))
            A(mfma32(buf2[j], KF[j], 28, None if fast and not checks else NM))
        return f
    def tile(b, pend, pre=()):
        ops = list(pre) + [f'v_exp_f32 v{b+r}, v{b+r}' for r in range(16)] + [f'v_cvt_pk_bf16_f32 v{b+m}, v{b+2*m}, v{b+2*m+1}' for m in range(8)]
        n0 = len(pre); step = max(1, 16 // max(1, len(pend)))
        pos = {n0 + 1 + i * step: f for i, f in enumerate(pend)}
        for i, o in enumerate(ops):
            if i in pos: pos[i]()
            A(o)
    vv = vreads([8, 0])
    if fast: pre = [f'v_cndmask_b32_e64 v{M+r}, v{2 if checks else NM+r}, v{M+r}, s[{64+2*r}:{65+2*r}]' for r in range(16)]
    else: pre = [f'v_sub_f32 v{M+r}, v{M+r}, v2' for r in range(16)]
    tile(M, [qk2(7), qk2(6)], pre=pre)
    for m in range(8): A(f'v_bfi_b32 v{M+8+m}, v{PMASK+m}, 0, v{M+m}')
    for m in range(8): A(f'v_and_b32 v{M+m}, v{PMASK+m}, v{M+m}')
    pend = [pv(8, 0, vv[(8, 0)], M), pv(8, 1, vv[(8, 1)], M + 4), pv(0, 0, vv[(0, 0)], M + 8), pv(0, 1, vv[(0, 1)], M + 12), qk2(5)]
    if fast: hook0()
    for j in (7, 6, 5, 4, 3, 2, 1):
        b = buf2[j]
        if hooks: hook(j)
        if j == 7:
            tile(b, pend); vv = vreads([j])
        else:
            vv = vreads([j]); tile(b, pend)
        pend = [pv(j, 0, vv[(j, 0)], b), pv(j, 1, vv[(j, 1)], b + 4)]
        if j - 3 >= 1: pend.append(qk2(j - 3))
    for f in pend: f()
    if hooks:
        hook(0); hook(-1)

def add_pads(txt):
    import subprocess, re, tempfile
    lines = txt.split('\n')
    d = tempfile.mkdtemp()
    tmp = txt.replace(';PAD', '    s_nop 0').replace('L_code_end:', ''.join(f'L_chain{i}:\n' for i in range(8)) + 'L_code_end:')
    open(d + '/a.s', 'w').write(tmp)
    subprocess.check_call(['clang', '-x', 'assembler', '-target', 'amdgcn-amd-amdhsa', '-mcpu=gfx950', '-c', d + '/a.s', '-o', d + '/a.o'])
    dis = subprocess.check_output(['llvm-objdump', '-d', d + '/a.o']).decode()
    addrs = [int(m.group(1), 16) for m in re.finditer(r'// ([0-9A-F]{12}):', dis)]
    out = []; k = 0; shift = 0x300; nxt = 4096; skip = True; walk = False
    for ln in lines:
        if ln.strip() == 's_mov_b64 exec, 0': walk = True
        if ln.startswith('L_padret0'): skip = False
        if ln.startswith('L_cold'): skip = True
        if ln == ';PAD' or (ln.startswith('    ') and not ln.strip().startswith('.')):
            a = addrs[k] + shift; k += 1
            if a >= nxt and not walk:
                nxt += 4096
                if ln != ';PAD' and not skip: out.append(';PAD'); shift += 4
        out.append(ln)
        if ln.strip() == 's_mov_b64 exec, -1': walk = False
    idx = [i for i, ln in enumerate(out) if ln == ';PAD']
    n = len(idx)
    for j, i in enumerate(idx):
        head = f'L_chain{j}:\n' if j < 8 else ''
        out[i] = f'{head}L_pad{j}:\n    s_cbranch_execz ' + ('L_padret0' if j < 4 else f'L_pad{j+4}' if j + 4 < n else 'L_padret1')
    return '\n'.join(out)

def main():
    A = Asm()
    A.raw(f'; @launch grid=(256,1,1) block=(512,1,1) lds={LDS_SIZE}')
    A.raw('.amdgcn_target "amdgcn-amd-amdhsa--gfx950"\n.text')
    gen(A)
    A.raw('L_code_end:\n.p2align 8\n.fill 64, 4, 0xbf800000')
    A.raw(kd(NAME, 256, 102 if OPT['stamps'] else 96))
    txt = A.text()
    if OPT['pads']: txt = add_pads(txt)
    sys.stdout.write(txt)
main()
```

```python
import sys, math, struct
sys.path.insert(0, 'work')
from asmlib import *

OPT = dict(stamps=0, gst=0, skip='', pfc=1, psl=2, ssl=0, order='01234567', grp=1, gsh=9, tagl=4, la='88888888', n0=10, cst=11, cn=8, e0n=72, ot='', dpos=2, pw2=-1, aw=0, bw=1, npre=12, w4w=0, wf=0, qr=1, pr=24, ua=0, clr=107, wa=1, gp=1, th=16, ap=4, a2=1, gpp=5, hq=-1, hk=-1, e0w=0, e0pos=6, e0a=24, fastk=1, fasta=1, epn=28, cprio=1,
           nat=8, fw=1, pads=1, qd=5, qpoll=56, bq=65, lprio=1, aprio=0, stag=28, ost='sc1', wprio=0, pre=1, wd='8', w0='x', bt=0, hf=0, pol=2, nrep=2, rot=1, mis=0, nohook=0, g2=5, gr=1, hp=4, h2=1, hpos=0, fp=16, sp='x', hl=0, xa=8, xm=1, xs=7)
for a in sys.argv[1:]:
    k, v = a.split('='); assert k in OPT, k; OPT[k] = int(v) if v.lstrip('-').isdigit() else v
OST = '' if OPT['ost'] == 'plain' else OPT['ost']
NAME = 'concat_heads__linear_kernel_hedgehog__sliding_block__prompt_kernel'

def f2u(x): return struct.unpack('<I', struct.pack('<f', x))[0]
LOG2E = math.log2(math.e)
RBS, TWIN = 18, 0x202000
WS_K, WS_O, WS_QG, WS_F1 = 0x000000, 0x400000, 0x800000, 0x1400000
WS_ACC, WS_EP, WS_PR = 0x1100000, 0x1120000, 0x1128000
WS_SIZE = 0x1800000
ACCB, AUX = 2048, 65536
WS_STAMP = 0x1000000
SPIN_MAX = 1 << 16
SLOT = 32768
RING = [0, 32768, 65536, 98304]
KL, VL, PHI = 65536, 90112, 114688
PHI_PLANE, PHI_HEAD, PHI_WAVE = 1088, 4352, 8704
TAG = PHI + 4 * PHI_WAVE - 64
QX, PQX, WPH = 149504, 153600, 161792
WO1 = 0
LDS_SIZE = 163840
C_ATT, C_WQ, C_PQ, C_WO, C_KV, C_WQ2, C_PAIR, C_PART = 8, 12, 16, 20, 24, 28, 32, 48
OACC, VRING, PMASK, ONES = 200, 216, 232, 240
SEL = 200
KVOFF, V1, V0, KRD, VRD, WOL, OST_, QRD, PD = 242, 243, 244, 245, 246, 247, 248, 249, 250
S_T, S_WO, S_ACC, S_OA, S_C3, S_FC, S_FO, S_OUT, S_QG = 's4', 's5', 's6', 's7', 's8', 's12', 's13', 's14', 's15'

class Q:
    def __init__(self, A, name, mx): self.A = A; self.q = []; self.name = name; self.mx = mx
    def push(self, tag): self.q.append(tag)
    def wait(self, *tags):
        idx = -1
        for i, t in enumerate(self.q):
            if t in tags: idx = i
        if idx < 0: return
        n = min(len(self.q) - 1 - idx, self.mx)
        self.A(f's_waitcnt {self.name}({n})')
        self.q = self.q[len(self.q) - n:] if n else []
    def all(self):
        self.A(f's_waitcnt {self.name}(0)'); self.q = []

def stamp(A, idx):
    if not OPT['stamps'] or str(idx) in str(OPT['skip']).split('.'): return
    if OPT['gst'] == 3:
        if 32 <= idx < 42: idx -= 12
        elif idx >= 60: idx -= 60
        elif idx not in (30, 31): return
    elif idx >= 60: return
    elif OPT['gst'] == 2:
        if idx < 10 or 32 <= idx < 50: return
        if idx >= 50: idx -= 50
    elif OPT['gst']:
        if idx < 30 or idx > 47: return
        if idx >= 32: idx -= 32
    elif idx >= 32: return
    A(('s_memrealtime' if OPT['stamps'] == 1 else 's_memtime') + ' s[96:97]')
    A('s_waitcnt lgkmcnt(0)')
    A(f'v_writelane_b32 v253, s96, {idx}')
def stamp_flush(A, srd, wavereg):
    if not OPT['stamps']: return
    stamp(A, 31)
    A(f's_lshl_b32 s98, s37, 3\ns_add_u32 s98, s98, s99\ns_lshl_b32 s98, s98, 3\ns_add_u32 s98, s98, {wavereg}\ns_lshl_b32 s98, s98, 7\ns_add_u32 s98, s98, {WS_STAMP}\ns_and_b32 s52, s52, 0xffffdfff')
    A('v_mbcnt_lo_u32_b32 v252, -1, 0\nv_lshlrev_b32 v252, 2, v252\ns_mov_b32 exec_hi, 0')
    A(f'buffer_store_dword v253, v252, {srd}, s98 offen')

def rowof(r, hi): return (r & 3) + 8 * (r >> 2) + 4 * hi

def dual_exp(A, p, em, t):
    A(f'v_max3_f32 v{t}, v{p}, v{p+1}, v{p+2}\nv_max3_f32 v{t+1}, -v{p}, -v{p+1}, -v{p+2}')
    A(f'v_max3_f32 v{t}, v{t}, v{p+3}, v{p+4}\nv_max3_f32 v{t+1}, v{t+1}, -v{p+3}, -v{p+4}')
    A(f'v_max3_f32 v{t}, v{t}, v{p+5}, v{p+6}\nv_max3_f32 v{t+1}, v{t+1}, -v{p+5}, -v{p+6}')
    A(f'v_max_f32_e64 v{t}, v{t}, v{p+7}\nv_max_f32_e64 v{t+1}, v{t+1}, -v{p+7}')
    A(f'v_permlane32_swap_b32 v{t}, v{t+1}')
    A(f'v_max_f32 v{t}, v{t}, v{t+1}')
    A(f'v_mul_f32 v{t}, s62, v{t}')
    A(f'v_mov_b32 v{t+1}, v{t}')
    A(f'v_permlane32_swap_b32 v{t}, v{t+1}')
    for r in range(8): A(f'v_fma_f32 v{em+r}, -v{p+r}, s62, -v{t+1}\nv_fma_f32 v{p+r}, v{p+r}, s62, -v{t}')
    for r in range(8): A(f'v_exp_f32 v{em+r}, v{em+r}\nv_exp_f32 v{p+r}, v{p+r}')

uid = [0]
OOL = []
COLD = []
def sp_issue(A, loads):
    for d, so, off in loads: A(f's_buffer_load_dword s{d}, s[52:55], {so} offset:{off} glc')
def sp_wait(A, loads, test, inline=True):
    uid[0] += 1; n = uid[0]
    def loop():
        A(f's_mov_b32 s3, {SPIN_MAX}')
        A.label(f'L_pl{n}')
        if OPT['ssl']: A(f's_sleep {OPT["ssl"]}')
        sp_issue(A, loads)
        A(f's_waitcnt lgkmcnt(0)\n{test}\ns_cselect_b32 s3, s3, 0\ns_sub_u32 s3, s3, 1\ns_cbranch_scc0 L_pl{n}')
    if inline:
        A(f's_waitcnt lgkmcnt(0)\n{test}\ns_cbranch_scc0 L_pd{n}')
        loop()
        A.label(f'L_pd{n}')
        return
    A(f's_waitcnt lgkmcnt(0)\n{test}\ns_cbranch_scc1 L_ps{n}')
    A.label(f'L_pd{n}')
    def slow():
        A.label(f'L_ps{n}'); A.fence()
        loop()
        A(f's_branch L_pd{n}')
    OOL.append(slow)
def poll_issue(A, vdst, voff, soff, count=None, off=0):
    o = f' offset:{off}' if off else ''
    A(f'buffer_load_dword v{vdst}, v{voff}, s[52:55], {soff} offen{o} sc1')
def poll(A, vdst, voff, soff, count=None, off=0, inline=False, first=0):
    uid[0] += 1; n = uid[0]
    cmp = f'v_cmp_ne_u32 vcc, {count}, v{vdst}'
    if inline:
        A(f's_waitcnt vmcnt({first})\n{cmp}\ns_cbranch_vccz L_pd{n}\ns_mov_b32 s3, {SPIN_MAX}')
        A.label(f'L_pl{n}')
        if OPT['psl']: A(f's_sleep {OPT["psl"]}')
        poll_issue(A, vdst, voff, soff, count, off)
        A(f's_sub_u32 s3, s3, 1\ns_waitcnt vmcnt(0)\n{cmp}\ns_cselect_b64 vcc, 0, vcc\ns_cbranch_vccnz L_pl{n}')
        A.label(f'L_pd{n}')
        return
    A(f's_waitcnt vmcnt({first})\n{cmp}\ns_cbranch_vccnz L_ps{n}')
    A.label(f'L_pd{n}')
    def slow():
        A.label(f'L_ps{n}'); A.fence()
        A('s_mov_b32 s3, 0')
        A.label(f'L_pl{n}')
        if OPT['psl']: A(f's_sleep {OPT["psl"]}')
        poll_issue(A, vdst, voff, soff, count, off)
        A(f's_add_u32 s3, s3, 1\ns_waitcnt vmcnt(0)\n{cmp}\ns_cbranch_vccz L_pd{n}')
        A(f's_cmp_lt_u32 s3, {SPIN_MAX}\ns_cbranch_scc1 L_pl{n}\ns_branch L_pd{n}')
    OOL.append(slow)
GR = [0, 1, 2, 4, 5, 6, 8, 9]
def gran_issue(A, v, nh):
    for h in range(3): A(f'buffer_load_dwordx4 {vr(v+4*h,4)}, v8, s[52:55], {S_QG} offen offset:{h*1024} sc1')
def gran_wait(A, v, nh, dst, inline, first=0):
    uid[0] += 1; n = uid[0]
    def check(cnt=0):
        A(f's_waitcnt vmcnt({cnt})\nv_cmp_ne_u32_e64 s[24:25], s60, v{v+3}')
        for r in range(1, 3): A(f'v_cmp_ne_u32 vcc, s60, v{v+3+4*r}\ns_or_b64 s[24:25], s[24:25], vcc')
    def retry():
        if OPT['psl']: A(f's_sleep {OPT["psl"]}')
        gran_issue(A, v, nh)
    if inline:
        A('s_mov_b32 s3, 0')
        A.label(f'L_gl{n}')
        check()
        A(f's_cbranch_scc0 L_gd{n}')
        retry()
        A(f's_add_u32 s3, s3, 1\ns_cmp_lt_u32 s3, {SPIN_MAX}\ns_cbranch_scc1 L_gl{n}\ns_waitcnt vmcnt(0)')
    else:
        check(first)
        A(f's_cbranch_scc1 L_gs{n}')
        def slow():
            A.label(f'L_gs{n}'); A.fence()
            A('s_mov_b32 s3, 0')
            A.label(f'L_gl{n}')
            retry(); check()
            A(f's_cbranch_scc0 L_gd{n}\ns_add_u32 s3, s3, 1\ns_cmp_lt_u32 s3, {SPIN_MAX}\ns_cbranch_scc1 L_gl{n}\ns_branch L_gd{n}')
        OOL.append(slow)
    A.label(f'L_gd{n}')
    for r in range(8): A(f'v_mov_b32 v{dst+r}, v{v+GR[r]}')

def lds_add(A, off, va):
    A(f'v_mov_b32 v{va}, {TAG}\ns_mov_b64 exec, 1\nds_add_u32 v{va}, v{V1} offset:{off}\ns_mov_b64 exec, -1')
def lds_spin(A, off, cnt, va, vt, sleep=True):
    uid[0] += 1; n = uid[0]
    A(f'v_mov_b32 v{va}, {TAG}\ns_mov_b32 s3, {SPIN_MAX * 4}')
    A.label(f'L_sp{n}')
    if sleep: A('s_sleep 1')
    A(f's_sub_u32 s3, s3, 1\nds_read_b32 v{vt}, v{va} offset:{off}\ns_waitcnt lgkmcnt(0)\nv_cmp_gt_u32 vcc, {cnt}, v{vt}\ns_cselect_b64 vcc, 0, vcc\ns_cbranch_vccnz L_sp{n}')
def count_add(A, soff, off=0):
    A('s_mov_b64 exec, 1')
    A(f'buffer_atomic_add v{V1}, v{V0}, s[52:55], {soff} offen' + (f' offset:{off}' if off else ''))
    A('s_mov_b64 exec, -1')

def srd(A, d, lo, size):
    A(f's_mov_b32 s{d}, s{lo}\ns_mov_b32 s{d+1}, s{lo+1}\ns_mov_b32 s{d+2}, 0x{size:x}\ns_mov_b32 s{d+3}, 0x20000')
def flag(A, soff, tmp):
    A(f'v_mov_b32 v{tmp}, s60\nv_mov_b32 v{tmp+1}, s61\nv_mov_b32 v{tmp+2}, s60\nv_mov_b32 v{tmp+3}, s61\ns_waitcnt vmcnt(0)\ns_mov_b64 exec, 0xff')
    A(f'buffer_store_dwordx4 v[{tmp}:{tmp+3}], v8, s[52:55], {soff} offen sc1')
    A('s_mov_b64 exec, -1')
def stream(fn, *a):
    L = []
    fn(lambda t: L.extend(x for x in t.split('\n') if x.strip()), *a)
    return L
def tr_lane(A, d, rowsh, hish):
    A(f'v_bfe_u32 v{d}, v1, 2, 2\nv_lshl_add_u32 v{d}, v11, {hish}, v{d}\nv_lshlrev_b32 v{d}, {rowsh}, v{d}')
def mfma32(d, a, b, c): return f'v_mfma_f32_32x32x16_bf16 {vr(d,16)}, {vr(a,4)}, {vr(b,4)}, {vr(c,16) if c is not None else "0"}'

def common(A):
    for r in range(16):
        for hi in range(2):
            m = 0
            for c in range(32):
                if rowof(r, hi) <= c: m |= 1 << c
            A(f's_mov_b32 s{64+2*r+hi}, 0x{m:x}')
    A(f's_mov_b32 s62, 0x{f2u(LOG2E):x}\ns_mov_b32 s63, 0x{f2u(2.0**100):x}\ns_mov_b32 s28, 0xffff\ns_mov_b32 s29, 0xffff')
    A(f'v_mov_b32 v{ONES}, 0x3f803f80\nv_mov_b32 v{ONES+1}, 0x3f803f80\nv_mov_b32 v{V1}, 0xffff')
    for r in range(0, 16, 2): A(f'v_mov_b64 v[{VRING+r}:{VRING+r+1}], v[{ONES}:{ONES+1}]')
    for m in range(8): A(f'v_cndmask_b32_e64 v{PMASK+m}, 0, v{V1}, s[{64+4*m}:{65+4*m}]')
    for m in range(8): A(f'v_cndmask_b32_e64 v{PMASK+m}, v{PMASK+m}, -1, s[{66+4*m}:{67+4*m}]')
    A(f'v_and_b32 v{V1}, 1, v10\nv_add_u32 v{V1}, {AUX//128}, v{V1}\nv_cndmask_b32_e64 v{KVOFF}, v{V1}, v10, s[28:29]\nv_lshlrev_b32 v{KVOFF}, 7, v{KVOFF}\nv_lshl_add_u32 v{KVOFF}, v11, 6, v{KVOFF}')
    A('s_and_b32 s21, s41, 3\ns_lshr_b32 s22, s41, 2\ns_lshl1_add_u32 s20, s22, s38')
    A(f's_lshl_b32 s24, s21, 10\ns_add_u32 s25, s24, {QX}\nv_add_u32 v{QRD}, s25, v8')
    A(f's_mul_i32 s25, s22, 12288\ns_add_u32 s24, s24, s25\ns_add_u32 s25, s24, {KL}\nv_add_u32 v{KRD}, s25, v8')
    A(f'v_and_b32 v{VRD}, 15, v1\nv_lshlrev_b32 v{VRD}, 4, v{VRD}\nv_lshl_add_u32 v{VRD}, v11, 8, v{VRD}\ns_add_u32 s25, s24, {VL}\nv_add_u32 v{VRD}, s25, v{VRD}')
    A(f'v_lshrrev_b32 v{WOL}, 3, v1\nv_and_b32 v{V0}, 7, v1\nv_bfe_u32 v{V1}, v1, 4, 1\nv_lshlrev_b32 v{V1}, 2, v{V1}\nv_xor_b32 v{V0}, v{V0}, v{V1}\nv_lshlrev_b32 v{V0}, 4, v{V0}\nv_lshl_add_u32 v{WOL}, v{WOL}, 10, v{V0}')
    A(f'v_mov_b32 v{V1}, 1\nv_mov_b32 v{V0}, 0\nv_mov_b64 v[52:53], 0\nv_mov_b64 v[54:55], 0')
    A(f's_lshl_b32 {S_T}, s39, 2\ns_add_u32 {S_T}, {S_T}, s21')
    A(f's_lshr_b32 s23, s37, 2\ns_lshl_b32 s23, s23, 7\nv_add_u32 v{WOL}, s23, v{WOL}\ns_and_b32 s24, s37, 3\ns_lshl_b32 s24, s24, 4\ns_add_u32 s24, s24, s21\ns_lshl_b32 {S_WO}, s24, 10')
    A(f's_lshl_b32 s24, s40, 1\ns_add_u32 s24, s24, s22\ns_mul_i32 {S_ACC}, s24, {ACCB}\ns_add_u32 {S_ACC}, {S_ACC}, {WS_ACC}')
    A(f's_lshl_b32 s24, s21, 1\ns_add_u32 s24, s24, s22\ns_lshl_b32 {S_FO}, s24, 15\ns_add_u32 {S_FO}, {S_FO}, {WS_O}\ns_lshl_b32 s24, s24, 7\ns_add_u32 {S_FC}, s24, {WS_F1 + 4096}')
    A(f's_and_b32 s24, s40, 8\ns_add_u32 s24, s24, s40\ns_lshl_b32 s24, s24, 10\ns_lshl_b32 s25, s39, {RBS}\ns_add_u32 s24, s24, s25\ns_add_u32 {S_OA}, s24, {S_FO}\ns_add_u32 {S_C3}, {S_FC}, s25')
    A(f's_lshl_b32 s24, s35, 15\ns_add_u32 s25, s25, s24\ns_and_b32 s24, s21, 2\ns_add_u32 s24, s24, s21\ns_add_u32 s24, s24, s24\ns_and_b32 s24, s24, 10\ns_lshl_b32 s24, s24, 11\ns_add_u32 s25, s25, s24')
    A(f's_and_b32 s24, s35, 1\ns_lshl_b32 s24, s24, 10\ns_add_u32 s25, s25, s24\ns_mul_i32 s24, s38, {TWIN}\ns_add_u32 s25, s25, s24\ns_add_u32 {S_QG}, s25, {WS_QG}')
    A('s_and_b32 s24, s39, 12\ns_xor_b32 s24, s24, 4\ns_and_b32 s25, s37, 3\ns_add_u32 s24, s24, s25\ns_lshr_b32 s22, s36, 2')
    A(f's_lshl_b32 {S_OUT}, s24, {RBS}\ns_add_u32 {S_FC}, {S_FC}, {S_OUT}\ns_add_u32 {S_FO}, {S_FO}, {S_OUT}\ns_mul_i32 s25, s22, {TWIN}\ns_add_u32 {S_FO}, {S_FO}, s25')
    A(f's_lshl_b32 s25, s22, 10\ns_add_u32 {S_FC}, {S_FC}, s25\ns_add_u32 {S_OUT}, {S_OUT}, s25\ns_lshl_b32 s25, s21, 16\ns_add_u32 {S_OUT}, {S_OUT}, s25\ns_add_u32 {S_OUT}, {S_OUT}, s23')

def place(A, x):
    if OPT['pol'] != 2: return
    A(f's_lshr_b32 s24, s61, 14\ns_and_b32 s61, s61, 0xffff\ns_cmp_le_u32 s24, s61\ns_cbranch_scc1 L_pl{x}\ns_add_u32 s52, s52, 8192\ns_addc_u32 s53, s53, 0\ns_sub_u32 {S_ACC}, {S_ACC}, 8192')
    if x == 'c': A('s_lshl_b32 s24, s38, 13\ns_sub_u32 s31, s31, s24')
    A.label(f'L_pl{x}')

ROLE = 's_add_u32 s24, s2, s60\ns_and_b32 s24, s24, 7\ns_cmp_lg_u32 s24, s99\n'
def wrong(A):
    A.label('L_wrong'); A.fence()
    A('s_mov_b32 s99, s24\ns_or_b32 s2, s2, 256\ns_setprio 0\ns_waitcnt vmcnt(0) lgkmcnt(0)\ns_barrier\ns_nop 15\ns_branch L_restart')

def wo_srd(A):
    A('s_cmp_lt_u32 s36, 4\ns_cselect_b32 s44, s10, s16\ns_cselect_b32 s45, s11, s17\ns_mov_b32 s46, 0x80000\ns_mov_b32 s47, 0x20000')

WD = [int(c) for c in str(OPT['wd']) if c.isdigit()]
W0 = [int(c) for c in str(OPT['w0']) if c.isdigit()]
NWO = 4 * (bool(WD) + bool(W0))
def wo_dma(A, j, g=1):
    cnt = 0; n = 16 // max(1, len(WD) + len(W0))
    for k, x in enumerate(WD if g else W0):
        if x != j: continue
        for i in range(n):
            A(f's_xor_b32 m0, {S_WO}, {4096 * (n * (k + (len(W0) if g else 0)) + i)}\ns_lshl_b32 s24, m0, 3')
            A(f'buffer_load_dwordx4 v{WOL}, s[44:47], s24 offen lds'); cnt += 1
    return cnt

def halo_edge(A, x):
    A(f's_cmp_lt_u32 s39, 2\ns_cbranch_scc1 L_nb{x}')
    A.label(f'L_nb2{x}')
    def edge():
        A.label(f'L_nb{x}'); A.fence(); A.raw(';PAD')
        A('v_mov_b32 v48, 0\nv_mov_b32 v49, 0\nv_mov_b32 v50, 0\nv_mov_b32 v51, 0\nv_add_u32 v7, s27, v8')
        for i in range(4): A(f'ds_write_b128 v7, v[48:51] offset:{i*1024}')
        A(f's_cmp_eq_u32 s39, 1\ns_cbranch_scc1 L_nb2{x}')
        for i in range(4, 8): A(f'ds_write_b128 v7, v[48:51] offset:{i*1024}')
        A(f's_branch L_nb2{x}')
    OOL.append(edge)
def halo_loads(x): return [([48, 50, 0][nb] + i, f's{9+nb}', 128*i) for nb in range(3 if x == 'A' else 2) for i in range(2)][-OPT['hl']:]
def halo_issue(A, x):
    if x in OPT['sp']: sp_issue(A, halo_loads(x)); return
    A(f'v_and_b32 v55, 1, v1\nv_lshlrev_b32 v55, 7, v55\ns_mov_b64 exec, 3\nv_add_u32 v55, s9, v55\ns_mov_b64 exec, 12\nv_add_u32 v55, s10, v55\ns_mov_b64 exec, 48\nv_add_u32 v55, s11, v55')
    A(f's_mov_b64 exec, {63 if x == "A" else 15}')
    poll_issue(A, PD, 55, '0', 's60')
    A('s_mov_b64 exec, -1')
def halo_fetch(A, x, first=0):
    t = 's_xor_b64 s[48:49], s[48:49], s[60:61]\ns_xor_b64 s[50:51], s[50:51], s[60:61]\ns_or_b64 s[48:49], s[48:49], s[50:51]'
    if x == 'A': t += '\ns_xor_b64 s[0:1], s[0:1], s[60:61]\ns_or_b64 s[48:49], s[48:49], s[0:1]'
    if OPT['hl']: t = f's_cmp_lg_u32 s{halo_loads(x)[-1][0]}, s60'
    if x in OPT['sp']: sp_wait(A, halo_loads(x), t)
    else:
        A(f's_mov_b64 exec, {63 if x == "A" else 15}')
        poll(A, PD, 55, '0', 's60', inline=True, first=first)
        A('s_mov_b64 exec, -1')
    halo_dma(A, x, x)
def halo_dma(A, x, u):
    stamp(A, 5)
    for nb in range(3 if x == 'A' else 2):
        if nb < 2: A(f's_cmp_lt_u32 s39, {2-nb}\ns_cbranch_scc1 L_sk{nb}{u}')
        A(f's_sub_u32 s25, s33, {(2-nb) << RBS}\ns_add_u32 m0, s27, {nb*4096}')
        for i in range(4): A(f'buffer_load_dwordx4 v8, s[52:55], s25 offen offset:{i*1024} sc1 lds')
        if nb < 2: A.label(f'L_sk{nb}{u}')
    stamp(A, 7)

def gen(A):
    name = NAME
    WSZ = WS_SIZE if not OPT['stamps'] else 0x2000000
    A.raw(f'.globl {name}\n.p2align 12\n.type {name},@function\n{name}:')
    stamp(A, 30)
    A('s_cmp_ge_u32 s2, 256\ns_cbranch_scc1 L_end')
    A('s_getreg_b32 s99, hwreg(HW_REG_XCC_ID, 0, 3)' if OPT['rot'] else 's_and_b32 s99, s2, 7')
    if OPT['mis']: A(f's_lshr_b32 s3, s2, {OPT["mis"]}\ns_add_u32 s99, s99, s3\ns_and_b32 s99, s99, 7')
    A.label('L_restart')
    A('s_load_dwordx16 s[4:19], s[0:1], 0\ns_load_dwordx4 s[20:23], s[0:1], 64')
    A('v_lshrrev_b32 v2, 6, v0\nv_and_b32 v1, 63, v0')
    A('s_lshl_b32 s36, s99, 2\ns_lshr_b32 s36, 0x76325410, s36\ns_and_b32 s36, s36, 7\ns_bfe_u32 s37, s2, 0x50003')
    A('v_readfirstlane_b32 s41, v2')
    A('s_and_b32 s38, s37, 1')
    A('s_and_b32 s39, s36, 3\ns_lshl_b32 s39, s39, 2\ns_bfe_u32 s42, s37, 0x20001\ns_add_u32 s39, s39, s42')
    A('s_lshl_b32 s35, s38, 2\ns_xor_b32 s35, s35, s36\ns_and_b32 s35, s35, 4\ns_lshr_b32 s42, s37, 3\ns_add_u32 s35, s35, s42')
    A('s_lshl_b32 s40, s35, 1\ns_add_u32 s40, s40, s38')
    A('v_lshlrev_b32 v8, 4, v1\nv_and_b32 v10, 31, v1\nv_lshrrev_b32 v11, 5, v1')
    A('s_cmp_lt_u32 s41, 4\ns_cbranch_scc1 L_cpre')
    A('s_mov_b32 s46, 0x200000\ns_mov_b32 s47, 0x20000\ns_mov_b32 s50, 0x180000\ns_mov_b32 s51, 0x20000')
    A('s_sub_u32 s43, s41, 4')
    A('v_lshrrev_b32 v3, 3, v1\nv_and_b32 v4, 7, v1\nv_lshrrev_b32 v5, 4, v1')
    A('v_xor_b32 v6, v4, v5\nv_lshlrev_b32 v6, 4, v6\nv_lshl_add_u32 v6, v3, 10, v6')
    A('s_lshl_b32 s24, s39, 17\ns_lshl_b32 s25, s43, 15\ns_add_u32 s24, s24, s25')
    A('v_add_u32 v16, s24, v6\nv_xor_b32 v17, 64, v16\nv_add_u32 v17, 8192, v17\nv_add_u32 v18, 16384, v16\nv_add_u32 v19, 16384, v17')
    A('v_and_b32 v5, 1, v5\nv_lshlrev_b32 v5, 2, v5\nv_xor_b32 v4, v4, v5\nv_mul_u32_u24 v3, 3072, v3\nv_lshl_add_u32 v3, v4, 4, v3')
    A('s_mul_i32 s24, s43, 49152\ns_lshl_b32 s25, s35, 7\ns_add_u32 s24, s24, s25')
    A('v_add_u32 v20, s24, v3\nv_add_u32 v21, 24576, v20')
    A(f's_lshl_b32 s30, s43, 12\ns_lshl_b32 s31, s43, 11')
    A(f's_add_u32 s26, s39, s35\ns_and_b32 s26, s26, {OPT["grp"]}\ns_lshl_b32 s26, s26, {OPT["gsh"]}')
    if OPT['xa'] >= 0: A(f's_lshl_b32 s27, s38, {OPT["xa"]}\ns_xor_b32 s26, s26, s27')
    if OPT['xm']: A(f's_and_b32 s27, s36, {OPT["xm"]}\ns_lshl_b32 s27, s27, {OPT["xs"]}\ns_xor_b32 s26, s26, s27')
    if OPT['ot']:
        T = [sum(int(c) << (4*i) for i, c in enumerate(o)) for o in OPT['ot'].split('.')]
        assert all(sorted(o) == list('01234567') for o in OPT['ot'].split('.'))
        A(f's_add_u32 s24, s39, s35\ns_mov_b32 s34, 0x{T[0]:x}\ns_mov_b32 s25, 0x{T[2]:x}\ns_bitcmp0_b32 s24, 0\ns_cselect_b32 s34, s34, 0x{T[1]:x}\ns_cselect_b32 s25, s25, 0x{T[3]:x}\ns_bitcmp0_b32 s24, 1\ns_cselect_b32 s34, s34, s25')
    A('s_cmp_eq_u32 s38, 0')
    A('s_waitcnt lgkmcnt(0)')
    A('s_cselect_b32 s44, s12, s4\ns_cselect_b32 s45, s13, s5\ns_cselect_b32 s48, s14, s6\ns_cselect_b32 s49, s15, s7')
    stamp(A, 0); stamp(A, 60)
    ORD = [int(c) for c in str(OPT['order']).zfill(8)]
    vq = Q(A, 'vmcnt', 63)
    def wsoff(st):
        if OPT['ot']: A(f's_bfe_u32 s32, s34, 0x{0x30000 + 4*st:x}\ns_lshl_b32 s32, s32, 7\ns_xor_b32 s32, s26, s32\ns_mul_i32 s33, s32, 1536')
        else: A(f's_xor_b32 s32, s26, {st*128}\ns_mul_i32 s33, s32, 1536')
    LT = []
    nis = [0]
    def issue(upto):
        while nis[0] < min(upto, 80):
            n = nis[0]; nis[0] += 1
            s, i = divmod(n, 8); base = RING[s % 4]
            if s >= 8:
                if n == 64 and OPT['qr']:
                    assert ORD == list(range(8)) and not OPT['ot']
                    A('s_add_u32 s24, s39, s35\ns_and_b32 s24, s24, 2\ns_lshl_b32 s25, s24, 7\ns_xor_b32 s26, s26, s25\ns_lshl_b32 s25, s24, 13\ns_xor_b32 s31, s31, s25')
                if i % 2 == 0: wsoff(ORD[4*(s-8) + i//2])
                A(f's_xor_b32 m0, s31, {base + (i//2)*8192 + (i%2)*1024}')
                A(f'buffer_load_dwordx4 v{20+i%2}, s[48:51], s33 offen lds')
            elif i < 4:
                if i == 0: wsoff(ORD[s])
                A(f's_add_u32 m0, s30, {base + i*1024}')
                A(f'buffer_load_dwordx4 v{16+i}, s[44:47], s32 offen lds')
            else:
                seg = i // 2 - 1
                A(f's_add_u32 m0, s31, {base + 8192 + seg*7168 + (i%2)*1024}')
                A(f'buffer_load_dwordx4 v{20+i%2}, s[48:51], s33 offen offset:{seg*1024} lds')
            vq.push(('st', s))
            if n % 2 and n < 38: stamp(A, 61 + n//2)
            if n >= OPT['cst']:
                for _ in range(OPT['cn']):
                    if LT: A(LT.pop(0))
    issue(OPT['n0'])
    stamp(A, 1)
    srd(A, 52, 22, WSZ); srd(A, 56, 20, 0x100)
    if OPT['pol'] == 1: A('s_add_u32 s52, s52, 8192\ns_addc_u32 s53, s53, 0')
    A('s_branch L_load')
    A.label('L_cpre'); A.fence()
    A('s_lshr_b32 s42, s41, 1\ns_and_b32 s43, s41, 1')
    for r in range(0, 8, 2): A(f'v_mov_b64 v[{16+r}:{17+r}], 0')
    A(f's_lshl_b32 s24, s35, 1\ns_add_u32 s24, s24, s43\ns_lshl_b32 s34, s39, {RBS}')
    A('s_lshl_b32 s25, s42, 11\ns_lshl_b32 s32, s24, 14\ns_add_u32 s32, s32, s25\ns_add_u32 s32, s32, s34')
    A(f's_lshl_b32 s24, s24, 1\ns_add_u32 s24, s24, s42\ns_lshl_b32 s24, s24, 7\ns_add_u32 s34, s34, s24\ns_add_u32 s34, s34, {WS_F1}')
    A('s_waitcnt lgkmcnt(0)')
    srd(A, 52, 22, WSZ); srd(A, 56, 20, 0x100)
    if OPT['pol'] == 1: A('s_add_u32 s52, s52, 8192\ns_addc_u32 s53, s53, 0')
    A('s_cmp_lg_u32 s41, 0\ns_cbranch_scc1 L_d1')
    if OPT['pfc']:
        A('s_getpc_b64 s[24:25]')
        A.label('L_pc0')
        A(f's_add_u32 s24, s24, {name}-L_pc0\ns_addc_u32 s25, s25, -1')
        A(f's_lshl_b32 s30, s37, 7\nv_lshlrev_b32 v13, 12, v1\nv_add_u32 v13, s30, v13\nv_min_u32 v13, L_cold-{name}-4, v13\ns_mov_b64 exec, 0xff')
        A('global_load_dword v255, v13, s[24:25]')
        A('s_mov_b64 exec, -1')
    srd(A, 44, 8, 0x4000)
    A(f's_lshl_b32 s24, s35, 11\ns_mov_b32 m0, {WPH}')
    for i in range(2): A(f'buffer_load_dwordx4 v8, s[44:47], s24 offen offset:{i*1024} lds')
    A(f'v_mov_b32 v12, {TAG}\nv_lshl_add_u32 v12, v1, 2, v12\ns_mov_b64 exec, 0xffff\nds_write_b32 v12, v16\ns_mov_b64 exec, -1')
    A.label('L_d1'); A.fence()
    A('s_cmp_lg_u32 s41, 1\ns_cbranch_scc1 L_d2\ns_cmp_ge_u32 s2, 32\ns_cbranch_scc1 L_d2')
    A(f's_mul_i32 s24, s2, {ACCB}\ns_add_u32 s24, s24, {WS_ACC}')
    A('buffer_store_dwordx4 v[16:19], v8, s[52:55], s24 offen sc1\nbuffer_store_dwordx4 v[16:19], v8, s[52:55], s24 offen offset:1024 sc1')
    A(f's_add_u32 s24, s24, {AUX}\ns_lshr_b32 s25, s2, 1\ns_lshl_b32 s25, s25, {RBS}\ns_and_b32 s3, s2, 1\ns_lshl_b32 s3, s3, 13\ns_add_u32 s25, s25, s3\ns_add_u32 s25, s25, {WS_F1}\ns_add_u32 s3, s25, 4096')
    A('buffer_store_dwordx4 v[16:19], v8, s[52:55], s3 offen sc1\nbuffer_store_dwordx4 v[16:19], v8, s[52:55], s3 offen offset:1024 sc1')
    if OPT['fw']:
        for i in range(4): A(f'buffer_store_dwordx4 v[16:19], v8, s[52:55], s25 offen offset:{i*1024} sc1')
    A('s_mov_b64 exec, 0xff00')
    for r in range(4): A(f'v_mov_b32 v{20+r}, 1.0')
    A('s_mov_b64 exec, -1')
    A('buffer_store_dwordx4 v[20:23], v8, s[52:55], s24 offen sc1')
    A.label('L_d2'); A.fence()
    DYN = OPT['pol'] == 2
    if DYN:
        A('s_cmp_lg_u32 s41, 2\ns_cbranch_scc1 L_d21\ns_cmp_ge_u32 s2, 32\ns_cbranch_scc1 L_d21')
        A(f's_and_b32 s24, s37, 2\ns_add_u32 s24, s24, s37\ns_add_u32 s24, s24, s24\ns_and_b32 s24, s24, 10\ns_lshl_b32 s24, s24, 11\ns_lshl_b32 s26, s36, 8\ns_add_u32 s26, s26, s24\ns_add_u32 s26, s26, {WS_PR}')
        A('s_buffer_load_dword s60, s[52:55], s26 glc\ns_buffer_load_dword s60, s[52:55], s26 offset:8192 glc')
        A.label('L_d21'); A.fence()
    A('s_cmp_lg_u32 s41, 3\ns_cbranch_scc1 L_d3\ns_cmp_lg_u32 s2, 0\ns_cbranch_scc1 L_d3')
    A(f's_mov_b32 s24, {WS_EP}\nbuffer_load_dword v{PD}, v16, s[52:55], s24 offen sc1')
    A.label('L_d3'); A.fence()
    wo_srd(A)
    stamp(A, 0)
    common(A)
    A('v_bfe_u32 v12, v1, 1, 3\nv_xor_b32 v12, v12, v11\nv_lshlrev_b32 v12, 4, v12')
    A('s_lshl_b32 s24, s42, 13\nv_lshl_add_u32 v13, v10, 7, s24')
    for ks in range(4): A(f'v_xor_b32 v14, {ks*32}, v12\nv_add_u32 v{2+ks}, v13, v14')
    for ks in range(4): A(f'v_add_u32 v{48+ks}, 0x10000, v{2+ks}')
    tr_lane(A, 12, 7, 3)
    A('v_bfe_u32 v13, v1, 3, 1\nv_xor_b32 v13, s43, v13\nv_lshl_add_u32 v12, v13, 6, v12')
    A('v_bfe_u32 v13, v1, 4, 1\nv_lshl_add_u32 v12, v13, 5, v12\nv_and_b32 v14, 3, v1\nv_lshl_add_u32 v12, v14, 3, v12')
    A(f'v_add_u32 v6, 16384, v12\nv_add_u32 v7, {16384 + 65536}, v12')
    tr_lane(A, 9, 5, 2)
    A(f'v_lshl_add_u32 v9, v14, 3, v9\ns_lshl_b32 s24, s43, 10\ns_add_u32 s24, s24, {WPH}\nv_add_u32 v9, s24, v9')
    A(f'v_mov_b32 v15, {TAG}')
    A(f's_lshl_b32 s24, s39, {RBS}\ns_lshl_b32 s25, s40, 8\ns_add_u32 s11, s25, s24\ns_add_u32 s11, s11, {WS_F1}')
    A(f's_lshl_b32 s33, s40, 14\ns_add_u32 s33, s33, s24\ns_lshl_b32 s25, s43, 12\ns_add_u32 s33, s33, s25\ns_mul_i32 s25, s42, {TWIN}\ns_add_u32 s33, s33, s25\ns_mul_i32 s27, s41, 12288\ns_add_u32 s27, s27, {KL}')
    A(f's_min_u32 s24, s39, 2\ns_lshl_b32 s24, s24, {RBS}\ns_sub_u32 s9, s11, s24\ns_min_u32 s24, s24, {1 << RBS}\ns_sub_u32 s10, s11, s24')
    A('s_cmp_eq_u32 s38, 1\ns_cbranch_scc1 L_cpA')
    A('v_and_b32 v12, 15, v1\nv_lshlrev_b32 v12, 4, v12\nv_lshl_add_u32 v12, v11, 8, v12\nv_lshl_add_u32 v52, v13, 12, v12')
    A(f's_lshl_b32 s25, s42, 11\nv_mul_u32_u24 v13, 12288, v13\nv_add_u32 v12, v12, v13\ns_add_u32 s24, s25, {VL + 8192}\nv_add_u32 v53, s24, v12')
    A(f's_add_u32 s24, s25, {KL + 8192}\nv_add_u32 v54, s24, v8\ns_add_u32 s30, s32, 4096\ns_add_u32 s31, s32, {TWIN}')
    A('s_branch L_cpd')
    A.label('L_cpA'); A.fence()
    for r in range(0, 32, 2): A(f'v_mov_b64 v[{168+r}:{169+r}], v[{ONES}:{ONES+1}]')
    A(f's_mul_i32 s30, s41, {PHI_WAVE}\ns_add_u32 s30, s30, {PHI}')
    A('v_and_b32 v12, 1, v1\nv_lshlrev_b32 v12, 4, v12\nv_mov_b32 v13, 0x3f80\nv_lshlrev_b32 v13, v12, v13')
    A('v_lshlrev_b32 v12, 4, v11\nv_sub_u32 v12, v10, v12\nv_lshrrev_b32 v12, 1, v12')
    for r in range(8): A(f'v_cmp_eq_u32 vcc, {r}, v12\nv_cndmask_b32 v{SEL+r}, 0, v13, vcc')
    A('v_lshlrev_b32 v54, 2, v10\nv_lshl_add_u32 v54, v11, 9, v54')
    A(f'v_add_u32 v52, s30, v8\ns_xor_b32 s24, s41, 2\ns_mul_i32 s25, s24, {PHI_WAVE}\ns_add_u32 s25, s25, {PHI}\nv_add_u32 v53, s25, v8')
    A(f's_lshl_b32 s24, s35, 2\ns_lshl_b32 s25, s43, 1\ns_add_u32 s24, s24, s25\ns_add_u32 s24, s24, s42\ns_mul_i32 s31, s24, {ACCB}\ns_add_u32 s31, s31, {WS_ACC}')
    A.label('L_cpd'); A.fence()
    def padwalk(k):
        if not OPT['pads']: return
        A('s_mov_b64 exec, 0')
        for w in range(3): A(f's_cmp_eq_u32 s41, {w}\ns_cbranch_scc1 L_chain{4*k+w}')
        A(f's_branch L_chain{4*k+3}')
        A.label(f'L_padret{k}')
        A('s_mov_b64 exec, -1')
    def duties():
        A('s_cmp_lt_u32 s2, 32\ns_cbranch_scc1 L_d4')
        A.label('L_d5')
        def f():
            A.label('L_d4'); A.fence(); A.raw(';PAD')
            A('s_mov_b64 exec, 1\ns_cmp_lg_u32 s41, 1\ns_cbranch_scc1 L_d6')
            A(f's_waitcnt vmcnt(0)\nbuffer_atomic_add v{V1}, v{V0}, s[56:59], 0 offen offset:4')
            A.label('L_d6')
            A('s_cmp_lg_u32 s41, 3\ns_cbranch_scc1 L_d7\ns_cmp_lg_u32 s2, 0\ns_cbranch_scc1 L_d7')
            A(f's_waitcnt vmcnt(0)\nv_add_u32 v{PD}, 8, v{PD}\nv_and_b32 v{PD}, -8, v{PD}\nv_max_u32 v{PD}, 8, v{PD}\nv_or_b32 v{PD}, s99, v{PD}\ns_mov_b32 s24, {WS_EP}')
            A(f'buffer_store_dword v{PD}, v{V0}, s[56:59], 0 offen sc1')
            A(f'buffer_store_dword v{PD}, v{V0}, s[52:55], s24 offen sc1')
            A.label('L_d7')
            A('s_mov_b64 exec, -1\ns_branch L_d5')
        OOL.insert(0, f)
    def clear():
        if not OPT['ua']: return
        A(f'v_mov_b64 v[56:57], -1\nv_mov_b64 v[58:59], -1\ns_add_u32 s24, {S_OA}, 0x4000\ns_add_u32 s25, {S_OA}, 0x200000\ns_add_u32 s3, {S_OA}, 0x204000')
        for so in (S_OA, 's24', 's25', 's3'): A(f'buffer_store_dwordx4 v[56:59], v8, s[52:55], {so} offen sc1')
    if DYN:
        A('s_cmp_lg_u32 s41, 2\ns_cbranch_scc1 L_d8\ns_cmp_ge_u32 s2, 32\ns_cbranch_scc1 L_d8\ns_mov_b64 s[24:25], -1\ns_waitcnt lgkmcnt(0)')
        stamp(A, 27)
        A('s_memtime s[48:49]')
        for r in range(2 * OPT['nrep']):
            a, b = (48, 50) if r % 2 == 0 else (50, 48)
            A(f's_waitcnt lgkmcnt(0)\ns_buffer_load_dword s60, s[52:55], s26 offset:{8192 * (r % 2)} glc\ns_waitcnt lgkmcnt(0)\ns_memtime s[{b}:{b+1}]\ns_waitcnt lgkmcnt(0)')
            A(f's_sub_u32 s3, s{b}, s{a}\ns_min_u32 s{24 + r % 2}, s{24 + r % 2}, s3')
        A('s_cmp_gt_u32 s24, s25\ns_cselect_b32 s3, 2, 0\ns_xor_b32 s3, s3, s36\ns_and_b32 s3, s3, 2\ns_lshl_b32 s3, s3, 15\ns_add_u32 s3, s3, 1')
        A(f'v_mov_b32 v{PD}, s3\ns_mov_b64 exec, 1\nbuffer_atomic_add v{PD}, v{V0}, s[56:59], 0 offen offset:4\ns_mov_b64 exec, -1')
        stamp(A, 28)
        A.label('L_d8'); A.fence()
    padwalk(0)
    if OPT['pw2'] < 0: padwalk(1)
    if OPT['dpos'] < 0: duties()
    A('s_branch L_cons')
    A.label('L_load'); A.fence()
    for r in (52, 54, 242, 244, 246): A(f'v_mov_b64 v[{r}:{r+1}], 0')
    A(f'v_bfe_u32 v12, v1, 1, 3\nv_xor_b32 v12, v12, v11\nv_lshlrev_b32 v12, 4, v12')
    A('v_lshl_add_u32 v13, v10, 7, s30')
    for ks in range(4): A(f'v_xor_b32 v14, {ks*32}, v12\nv_add_u32 v{2+ks}, v13, v14')
    for ks in range(4): A(f'v_add_u32 v{12+ks}, 0x10000, v{2+ks}')
    def later(E):
        common(E)
        tr_lane(E, 6, 7, 3)
        E('v_bfe_u32 v7, v1, 3, 1\nv_xor_b32 v7, s38, v7\nv_lshl_add_u32 v6, v7, 6, v6')
        E('v_bfe_u32 v7, v1, 4, 1\nv_lshl_add_u32 v6, v7, 5, v6\nv_and_b32 v7, 3, v1\nv_lshl_add_u32 v7, v7, 3, v6\nv_xor_b32 v6, 64, v7')
        E(f's_mul_i32 s9, s38, {2*TWIN}\ns_sub_u32 s9, {TWIN}, s9\ns_add_u32 s9, s9, {S_QG}')
    LT.extend(stream(later))
    LA = [int(c, 36) for c in str(OPT['la'])]
    XF = 64
    for s in range(8):
        assert LA[s] <= 16
        issue(8*s + 8 + LA[s])
        vq.wait(('st', s))
        A('s_waitcnt lgkmcnt(0)\ns_barrier')
        stamp(A, 32 + s)
        for ks in range(4):
            A(f'ds_read_b128 {vr(XF + 16*s + 4*ks, 4)}, v{(2 if RING[s % 4] < 65536 else 12) + ks} offset:{RING[s % 4] & 65535}')
        if s == OPT['tagl']: A('s_buffer_load_dwordx2 s[60:61], s[56:59], 0')
        if s == 6:
            assert not LT and OPT['tagl'] < 6
            TST = f's_and_b32 s24, s61, 0xffff\ns_cmp_lg_u32 s60, 0\ns_cselect_b32 s24, s24, 0\ns_cmp_lt_u32 s24, {64 if DYN else 32}'
            A(TST + '\ns_cbranch_scc1 L_tgw')
            A.label('L_tgd')
            A(f'v_mov_b32 v22, {TAG}\nv_mov_b32 v24, s60\nv_mov_b32 v25, s61\nds_write_b64 v22, v[24:25]')
            place(A, 'l')
            def tgw():
                A.label('L_tgw'); A.fence()
                A(f's_mov_b32 s3, {SPIN_MAX}')
                A.label('L_tg')
                A(f's_sleep 1\nbuffer_load_dwordx2 v[24:25], v{V0}, s[56:59], 0 offen sc1\ns_waitcnt vmcnt(0)\nv_readfirstlane_b32 s60, v24\nv_readfirstlane_b32 s61, v25')
                A(TST + '\ns_cselect_b32 s3, s3, 0\ns_sub_u32 s3, s3, 1\ns_cbranch_scc0 L_tg\ns_branch L_tgd')
            OOL.append(tgw)
    if OPT['e0w'] == 0:
        issue(OPT['e0n'])
        A(ROLE + 's_cbranch_scc1 L_wrong\ns_waitcnt lgkmcnt(0)\ns_barrier')
    issue(80)
    wo_srd(A)
    def awtouch():
        A('s_lshr_b32 s24, s37, 1\ns_lshl_b32 s24, s24, 2\ns_add_u32 s24, s24, s43\ns_xor_b32 s25, s38, 1\ns_lshl_b32 s25, s25, 6\ns_add_u32 s24, s24, s25\ns_lshl_b32 s24, s24, 13\nv_lshl_add_u32 v28, v1, 7, s24')
        A('buffer_load_dword v255, v28, s[44:47], 0 offen'); vq.push('aw')
    if OPT['aw'] == 1: awtouch()
    A(f's_cmp_eq_u32 s38, 0\ns_cselect_b32 s27, 0x{f2u(0.25*LOG2E):x}, 1.0')
    vq.wait(('st', 7 + max(1, OPT['e0w'])))
    if OPT['e0w']: A('s_waitcnt lgkmcnt(0)\ns_barrier')
    else:
        lds_add(A, C_WQ, 22)
        lds_spin(A, C_WQ, 4, 22, 23, sleep=False)
    stamp(A, 40)
    stamp(A, 42); stamp(A, 2)
    if OPT['lprio']:
        if not OPT['aprio']: A('s_cmp_eq_u32 s38, 1\ns_cbranch_scc1 L_noprio')
        A(f's_setprio {OPT["lprio"]}')
        A.label('L_noprio')
    lq = Q(A, 'lgkmcnt', 15)
    NR = 6; WF = 192; QD = OPT['qd']
    def qread(m):
        n = m % 32; f = WF + 4 * (m % NR)
        for rd in range(2):
            A(f'ds_read_b64_tr_b16 v[{f+2*rd}:{f+2*rd+1}], v{6 + m//32} offset:{n*2048 + rd*512}'); lq.push(('q', m))
    for m in range(QD): qread(m)
    ep = []
    for h in range(3):
        rr = range(3*h, min(3*h + 3, 8))
        ep += [f'v_mul_f32 v{32+2*r+e}, s27, v{32+2*r+e}' for r in rr for e in range(2)] + [f'v_cvt_pk_bf16_f32 v{16+GR[r]}, v{32+2*r}, v{33+2*r}' for r in rr]
        ep += [f'buffer_store_dwordx4 {vr(16+4*h,4)}, v8, s[52:55], s9 offen offset:{h*1024} sc1']
    for m in range(64):
        lq.wait(('q', m))
        acc = 32 + 16 * (m // 32)
        A(mfma32(acc, WF + 4*(m % NR), XF + 4*(m % 32), acc if m % 32 else None))
        if m == 16 - QD - 4 and OPT['e0w'] < 2:
            vq.wait(('st', 9))
            lds_add(A, C_WQ2, 22); lq.push('cnt')
        if m + QD == 16 and OPT['e0w'] < 2:
            lds_spin(A, C_WQ2, 4, 22, 23, sleep=False); lq.q = []
            stamp(A, 41); stamp(A, 22)
        if m + QD < 64: qread(m + QD)
        if m >= 32:
            for _ in range(OPT['epn']):
                if ep: A(ep.pop(0))
        if m == OPT['aw'] and m > 1: awtouch()
        if m == 31: stamp(A, 23)
        if m == 33: stamp(A, 24)
        if m == 20:
            for r in (19, 23, 26, 27): A(f'v_mov_b32 v{r}, s60')
        if m == 44:
            tr_lane(A, 15, 5, 2)
            A(f'v_and_b32 v14, 3, v1\nv_lshl_add_u32 v15, v14, 3, v15\ns_lshl_b32 s24, s38, 10\ns_add_u32 s24, s24, {WPH}\nv_add_u32 v15, s24, v15')
        if m == 46:
            for hs in range(2):
                for rd in range(2): A(f'ds_read_b64_tr_b16 v[{16+4*hs+2*rd}:{17+4*hs+2*rd}], v15 offset:{hs*512 + rd*256}'); lq.push('wphi')
        if m == OPT['qpoll'] or m == OPT['bq']:
            if OPT['qpoll'] != OPT['bq']: A(f's_cmp_eq_u32 s38, {0 if m == OPT["qpoll"] else 1}\ns_cbranch_scc1 L_noqp{m}')
            gran_issue(A, 32, 2)
            A.label(f'L_noqp{m}')
    stamp(A, 4)
    if OPT['lprio']: A('s_setprio 0')
    A(f's_lshl_b32 s24, s43, 10\nv_add_u32 v15, s24, v{QRD}')
    A('s_cmp_eq_u32 s38, 1\ns_cbranch_scc1 L_qa')
    for r in range(16): A(f'v_mul_f32 v{48+r}, s27, v{48+r}')
    for r in range(8): A(f'v_cvt_pk_bf16_f32 v{24+r}, v{48+2*r}, v{49+2*r}')
    A(f'ds_write_b128 v{QRD}, v[24:27]')
    if OPT['bq'] == 64: gran_issue(A, 32, 2)
    A('s_waitcnt lgkmcnt(0)\ns_barrier')
    if OPT['bq'] == 65: gran_issue(A, 32, 2)
    if OPT['bt']:
        A('s_bfe_u32 s24, s37, 0x10001\ns_lshl_b32 s24, s24, 2\ns_add_u32 s24, s24, s43\ns_lshl_b32 s24, s24, 16\ns_lshr_b32 s25, s37, 2\ns_lshl_b32 s25, s25, 7\ns_add_u32 s24, s24, s25\nv_lshlrev_b32 v14, 10, v1')
        A('buffer_load_dword v255, v14, s[44:47], s24 offen')
    A.label('L_wo'); A.fence()
    stamp(A, 8)
    nwo = wo_dma(A, 8) + OPT['bt']
    A('s_cmp_eq_u32 s38, 1\ns_cbranch_scc1 L_att')
    gran_wait(A, 32, 2, 104, False, nwo)
    stamp(A, 7)
    A('s_branch L_qb')
    A.label('L_qa'); A.fence()
    A('s_nop 8')
    for r in range(8): A(f'v_cvt_pk_bf16_f32 v{104+r}, v{48+2*r}, v{49+2*r}')
    A.label('L_qb'); A.fence(); A('s_nop 1')
    for hs in range(2): A(mfma32(64+16*hs, 16+4*hs, 104+4*hs, None))
    def phiq(E, hs):
        p = 64 + 16 * hs
        dual_exp(E, p, p + 8, 96 + 2*hs)
        for m in range(8): E(f'v_cvt_pk_bf16_f32 v{(104 if hs == 0 else 48)+m}, v{p+2*m}, v{p+2*m+1}')
    for a, b in zip(stream(phiq, 0), stream(phiq, 1)): A(a); A(b)
    A(f'ds_write_b128 v15, v[104:107] offset:{PQX-QX}\nds_write_b128 v15, v[108:111] offset:{PQX-QX+1024}')
    lds_add(A, C_PQ, 14)
    stamp(A, 6)
    A('s_cmp_eq_u32 s38, 0\ns_cbranch_scc1 L_att')
    gran_wait(A, 32, 2, 24, True)
    A(f'ds_write_b128 v{QRD}, v[24:27]')
    stamp(A, 7)
    A('s_waitcnt lgkmcnt(0)\ns_barrier')
    A('s_branch L_wo')
    A.label('L_cons'); A.fence(); A.raw(';PAD')
    stamp(A, 21)
    KA, VA = [96, 112], [128, 144]
    FS = [16, 32, 64, 80]
    lq = Q(A, 'lgkmcnt', 15)
    def reads(n):
        s, ks = divmod(n, 4); f = FS[n % 4]
        xa, wa = (2, 6) if RING[s % 4] < 65536 else (48, 7)
        so = RING[s % 4] & 65535
        def rx(tt): return (f'ds_read_b128 v[{f+4*tt}:{f+4*tt+3}], v{xa+ks} offset:{so + tt*4096}', (n, 'x', tt))
        def rw(seg, rd): return (f'ds_read_b64_tr_b16 v[{f+8+4*seg+2*rd}:{f+9+4*seg+2*rd}], v{wa} offset:{so + seg*8192 + ks*2048 + rd*512}', (n, 'w', seg))
        return [rx(0), rw(0, 0), rw(0, 1), rx(1), rw(1, 0), rw(1, 1)]
    def mk(n, tt): return mfma32(KA[tt], FS[n % 4] + 8, FS[n % 4] + 4*tt, KA[tt] if n else None)
    def mv(n, tt): return mfma32(VA[tt], FS[n % 4] + 4*tt, FS[n % 4] + 12, VA[tt] if n else None)
    A('s_waitcnt lgkmcnt(0)\ns_barrier')
    stamp(A, 1)
    for n in range(2):
        for t, tag in reads(n): A(t); lq.push(tag)
    for n in range(28):
        nxt = reads(n + 2)
        newstage = (n % 4 == 2)
        k = 0
        for mi, (seg, tt) in enumerate([(0, 0), (0, 1), (1, 0), (1, 1)]):
            if newstage and mi == 0: lq.all()
            else: lq.wait((n, 'x', tt), (n, 'w', seg))
            A(mv(n, tt) if seg else mk(n, tt))
            if mi == 0 and n == OPT['pw2']: padwalk(1)
            if mi == 0 and n == OPT['dpos']: duties()
            if mi == 0 and n == OPT['clr']: clear()
            if newstage and mi == 0: A('s_barrier')
            for _ in range(2):
                if k < len(nxt):
                    t, tag = nxt[k]; A(t); lq.push(tag); k += 1
        if n == 20: A('s_waitcnt vmcnt(0)')
        if n == 23:
            for hs in range(2):
                for rd in range(2): A(f'ds_read_b64_tr_b16 v[{56+4*hs+2*rd}:{57+4*hs+2*rd}], v9 offset:{hs*512 + rd*256}'); lq.push('wphi')
        if n == 26:
            A('s_not_b64 exec, s[28:29]\nv_mov_b64 v[56:57], 0\nv_mov_b64 v[58:59], 0\ns_mov_b64 exec, s[28:29]\nv_mov_b64 v[60:61], 0\nv_mov_b64 v[62:63], 0\ns_mov_b64 exec, -1')
        if n == 27: A('ds_read_b64 v[12:13], v15'); lq.push('tag')
    if OPT['cprio']: A('s_setprio 2')
    r30, r31 = reads(30), reads(31)
    nxt = r30[:4] + r31[:4] + r30[4:] + r31[4:]
    for g, (n, tt) in enumerate([(n, tt) for n in range(28, 32) for tt in range(2)]):
        if g == min(OPT['e0pos'], 7): lq.all()
        else: lq.wait((n, 'x', tt), (n, 'w', 0))
        A(mk(n, tt))
        if g == OPT['e0pos']: A(ROLE + 's_cbranch_scc1 L_wrong\ns_barrier')
        for t, tag in nxt[3*g:3*g+3]: A(t); lq.push(tag)
        if g == 5: A('v_readfirstlane_b32 s60, v12\nv_readfirstlane_b32 s61, v13')
        if g == 7: place(A, 'c'); A('s_mov_b32 s61, s60')
    stamp(A, 2)
    A('s_cmp_eq_u32 s38, 1\ns_cbranch_scc1 L_epA')
    hist = list(A.hist)
    def weave(mf, fill, per):
        fill = list(fill)
        for m in mf:
            A(m)
            for _ in range(per):
                if fill: A(fill.pop(0))
        for f in fill: A(f)
    def cv(d, a): return [f'v_cvt_pk_bf16_f32 v{d+m}, v{a+2*m}, v{a+2*m+1}' for m in range(4)]
    ckv = [x for tt in range(2) for e in range(2) for x in cv(160+8*tt+4*e, KA[tt]+8*e)]
    sk = [f'buffer_store_dwordx4 {vr(160+8*tt+4*e,4)}, v8, s[52:55], {"s30" if e else "s32"} offen offset:{tt*1024} sc1' for tt in range(2) for e in range(2)]
    cvv = [[x for e in range(2) for x in cv(176+8*tt+4*e, VA[tt]+8*e)] for tt in range(2)]
    sv = [f'buffer_store_dwordx4 {vr(176+8*tt+4*e,4)}, v52, s[52:55], s31 offen offset:{tt*1024+e*512} sc1' for tt in range(2) for e in range(2)]
    A(mv(28, 0))
    weave([mv(n, 0) for n in range(29, 32)] + [mv(28, 1), mv(29, 1)], ckv, 4)
    weave([mv(30, 1), mv(31, 1)], cvv[0], 4)
    if OPT['cprio']: A('s_setprio 0')
    if OPT['e0pos'] >= 8: A('s_barrier')
    if OPT['bw']: lds_spin(A, C_WQ, 4, 2, 3)
    for x in sk + sv[:2] + cvv[1] + sv[2:]: A(x)
    stamp(A, 3)
    flag(A, 's34', 2)
    stamp(A, 4)
    halo_edge(A, 'B')
    A('s_cmp_eq_u32 s43, 1\ns_cbranch_scc1 L_epB1')
    for tt in range(2):
        for e in range(2):
            A(f'ds_write_b128 v54, {vr(160+8*tt+4*e,4)} offset:{e*12288 + tt*1024}')
            A(f'ds_write_b128 v53, {vr(176+8*tt+4*e,4)} offset:{tt*1024 + e*512}')
    A.label('L_epB1')
    A('s_cmp_eq_u32 s39, 0\ns_cbranch_scc1 L_epB2')
    halo_issue(A, 'B'); halo_fetch(A, 'B')
    A.label('L_epB2')
    A('s_waitcnt vmcnt(0) lgkmcnt(0)\ns_branch L_e1')
    A.label('L_epA'); A.hist = hist; A.raw(';PAD')
    KPK = {0: 160, 1: 208}
    VM = [168, 184]
    EM = {(0, 0): 16, (0, 1): 24, (1, 0): 32, (1, 1): 40}
    TM = {(0, 0): 2, (0, 1): 4, (1, 0): 12, (1, 1): 14}
    PT = {(0, 0): 64, (0, 1): 80, (1, 0): 96, (1, 1): 16}
    def phik(E, tt, hs, fast):
        p = KA[tt] + 8*hs; em = EM[(tt, hs)]; t = TM[(tt, hs)]; d = PT[(tt, hs)]
        if fast:
            for r in range(8): E(f'v_mul_f32 v{p+r}, s62, v{p+r}')
            for r in range(8): E(f'v_exp_f32_e64 v{em+r}, -v{p+r}\nv_exp_f32 v{p+r}, v{p+r}')
        else: dual_exp(E, p, em, t)
        E(f'v_add_f32 v{t}, v{p}, v{p+1}\nv_add_f32 v{t+1}, v{em}, v{em+1}')
        for r in range(2, 8): E(f'v_add_f32 v{t}, v{t}, v{p+r}\nv_add_f32 v{t+1}, v{t+1}, v{em+r}')
        E(f'v_permlane32_swap_b32 v{t}, v{t+1}\nv_add_f32 v{t}, v{t}, v{t+1}')
        if fast: E(f'v_max_f32 v6, v6, v{t}')
        E(f'v_rcp_f32 v{t}, v{t}\nv_mov_b32 v{t+1}, v{t}\nv_permlane32_swap_b32 v{t}, v{t+1}')
        for r in range(8): E(f'v_mul_f32 v{p+r}, v{p+r}, v{t}')
        for x in cv(p, p): E(x)
        for r in range(8):
            E(f'v_mul_f32 v{em+r}, v{em+r}, v{t+1}')
            if r == 1: E(mfma32(d, p, SEL, None))
        for x in cv(em, em): E(x)
    def phik2(E, tt, hs):
        d = PT[(tt, hs)]
        for x in cv(d, d) + cv(d + 4, d + 8): E(x)
    def tm2(tt): return [mfma32(PT[(tt, hs)], EM[(tt, hs)], SEL + 4, PT[(tt, hs)]) for hs in range(2)]
    def pair(fn, tt, *a): return [x for ab in zip(stream(fn, tt, 0, *a), stream(fn, tt, 1, *a)) for x in ab]
    ck = [cv(KPK[tt], KA[tt]) + cv(KPK[tt]+4, KA[tt]+8) for tt in range(2)]
    pm = [[mfma32(KA[tt], 56, KPK[tt], None), mfma32(KA[tt], 60, KPK[tt]+4, KA[tt])] for tt in range(2)]
    KV = [128, 144]
    def kvm(tt): return [mfma32(KV[hs], VM[hs] + 8*tt + 4*blk, PT[(tt, hs)] + 4*blk, KV[hs] if tt or blk else None) for blk in range(2) for hs in range(2)]
    A(mv(28, 0))
    weave([mv(28, 1), mv(29, 0)], ck[0], 4)
    weave(pm[0], ck[1], 4)
    for m in pm[1]: A(m)
    A(mv(29, 1))
    A('v_mov_b32 v6, 0')
    fast = bool(OPT['fastk'])
    S = [pair(phik, tt, fast) for tt in range(2)]
    vc = ['s_mov_b64 exec, s[28:29]'] + [x for tt in range(2) for x in cv(VM[0]+8*tt, VA[tt]) + cv(VM[0]+8*tt+4, VA[tt]+8)]
    vc += ['s_not_b64 exec, s[28:29]'] + [x for tt in range(2) for x in cv(VM[1]+8*tt, VA[tt]) + cv(VM[1]+8*tt+4, VA[tt]+8)] + ['s_mov_b64 exec, -1']
    D = 2 * OPT['stag']
    rest = [mv(30, 0), mv(30, 1), mv(31, 0), mv(31, 1)]
    L = len(S[0])
    tail0 = {L: tm2(0), L + 14: pair(phik2, 0), L + 18: kvm(0)[:2], L + 24: kvm(0)[2:]}
    assert D >= 26
    for i in range(0, L + D, 2):
        if i < L: A(S[0][i]); A(S[0][i+1])
        if rest and i % 4 == 2:
            A(rest.pop(0))
            if not rest and OPT['cprio']: A('s_setprio 0')
        if OPT['e0pos'] >= 8 and i == OPT['e0a']: A('s_barrier')
        if i == D - 2:
            halo_edge(A, 'A')
            for x in vc: A(x)
            stamp(A, 6)
        if i >= D: A(S[1][i-D]); A(S[1][i-D+1])
        for x in tail0.get(i, []): A(x)
    for m in tm2(1): A(m)
    if OPT['hf'] == 2: halo_issue(A, 'A')
    stamp(A, 3)
    A(f's_lshl_b32 s25, s41, 2\ns_add_u32 s25, s25, {TAG + C_PAIR}')
    if fast: A('v_cmp_nlt_f32 vcc, v6, s63\ns_cbranch_vccnz L_kexact'.replace('v6, s63', 's63, v6').replace('nlt', 'ngt'))
    for x in pair(phik2, 1): A(x)
    for m in kvm(1): A(m)
    A.label('L_kdone')
    if OPT['hf'] == 1: halo_issue(A, 'A')
    A('v_mov_b32 v6, s25\nv_xor_b32 v7, 8, v6')
    if fast:
        def kexact():
            A.label('L_kexact'); A.fence()
            A('s_nop 15')
            for tt in range(2):
                for m in pm[tt]: A(m)
            for tt in range(2):
                for x in pair(phik, tt, False) + tm2(tt) + pair(phik2, tt) + kvm(tt): A(x)
            A('s_branch L_kdone')
        COLD.append(kexact)
    A('s_nop 7')
    A('s_cmp_eq_u32 s42, 1\ns_cbranch_scc1 L_ex1')
    for i in range(2):
        if i == 1: A.label('L_ex1')
        keep, kz = (KV[0], KV[0] + 8) if i == 0 else (KV[1] + 8, KV[1])
        send, sz = (KV[1] + 8, KV[1]) if i == 0 else (KV[0], KV[0] + 8)
        A(f'ds_write_b128 v52, {vr(send,4)}\nds_write_b128 v52, {vr(send+4,4)} offset:1024\nds_write_b32 v52, v{sz} offset:2048')
        A(f'ds_write_b32 v6, v{V1}\ns_mov_b32 s3, {SPIN_MAX * 4}')
        A.label(f'L_exs{i}')
        A('ds_read_b32 v12, v7\nds_read_b128 v[32:35], v53\nds_read_b128 v[36:39], v53 offset:1024\nds_read_b32 v40, v53 offset:2048')
        A(f's_sub_u32 s3, s3, 1\ns_waitcnt lgkmcnt(0)\nv_cmp_eq_u32 vcc, 0, v12\ns_cselect_b64 vcc, 0, vcc\ns_cbranch_vccnz L_exs{i}')
        for r in range(9): A(f'v_add_f32 v{32+r}, v{keep + r if r < 8 else kz}, v{32+r}')
        if i == 0: A('s_branch L_exd')
    A.label('L_exd'); A.fence()
    stamp(A, 20)
    def atomics():
        for r in range(OPT['nat']): A(f'buffer_atomic_add_f32 v{32+r}, v54, s[52:55], s31 offen offset:{rowof(r,0)*128}')
        A(f's_mov_b32 exec_hi, 0\ns_add_u32 s31, s31, {AUX}')
        A(f'buffer_atomic_add_f32 v40, v54, s[52:55], s31 offen')
        A('s_mov_b64 exec, -1')
    if 'A' in OPT['sp']:
        if OPT['hpos'] == 0: halo_issue(A, 'A')
        atomics()
        stamp(A, 4)
        if OPT['hpos'] == 1: halo_issue(A, 'A')
        halo_fetch(A, 'A')
        A('s_cmp_lt_u32 s39, 2\ns_cbranch_scc0 L_c2\ns_waitcnt vmcnt(4)')
        A.label('L_c2')
        A('s_waitcnt vmcnt(12)')
        count_add(A, 's31', 256)
        stamp(A, 19)
        A('s_waitcnt vmcnt(1)')
    else:
        if OPT['hf']:
            A(f's_mov_b64 exec, 63\ns_waitcnt vmcnt(0)\nv_cmp_ne_u32 vcc, s60, v{PD}\ns_mov_b64 exec, -1\ns_cbranch_vccnz L_hlate')
            halo_dma(A, 'A', 'E')
            atomics()
            stamp(A, 4)
            A('s_waitcnt vmcnt(0)')
            count_add(A, 's31', 256)
            stamp(A, 19)
            A('s_branch L_e1')
            A.label('L_hlate'); A.fence()
        atomics()
        stamp(A, 4)
        halo_issue(A, 'A')
        A('s_waitcnt vmcnt(1)')
        count_add(A, 's31', 256)
        stamp(A, 19)
        halo_fetch(A, 'A', 1)
        A('s_waitcnt vmcnt(0)')
    A.label('L_e1'); A.fence()
    A(f's_lshl_b32 s24, s41, 10\nv_add_u32 v9, s24, v{QRD}')
    A('s_barrier')
    stamp(A, 8)
    A(f'ds_read_b128 v[28:31], v{QRD}')
    A.label('L_att'); A.fence(); A.raw(';PAD')
    if OPT['wprio']:
        A('s_cmp_lt_u32 s41, 4\ns_cbranch_scc1 L_wp\ns_setprio 1')
        A.label('L_wp')
    A('s_cmp_lt_u32 s39, 2\ns_cbranch_scc1 L_bslow')
    FA = bool(OPT['fasta'])
    bunit(A, False, FA, not OPT['nohook'], 'f')
    A.label('L_bdone'); A.fence()
    stamp(A, 11)
    if OPT['nohook']: A('s_branch L_fin2')
    O = OACC
    A(f's_add_u32 s24, {S_OA}, {TWIN}\ns_add_u32 s27, {S_C3}, 1024\ns_nop 9')
    if FA:
        A(f'v_pk_mul_f32 v[2:3], v[{O}:{O+1}], 0')
        for m in range(1, 4): A(f'v_pk_fma_f32 v[2:3], v[{O+2*m}:{O+2*m+1}], 0, v[2:3]')
        A(f'v_add_f32 v2, v2, v3\nv_add_f32 v2, v2, v{O+8}\nv_subrev_u32 v2, 0x{f2u(2.0**-60):x}, v2')
        A(f'v_cmp_lt_u32 vcc, 0x{f2u(2.0**60) - f2u(2.0**-60):x}, v2\ns_cbranch_vccnz L_bexact')
        A.label('L_bdone2')
    A(f'v_rcp_f32 v4, v{O+8}')
    for m in range(4): A(f'v_pk_mul_f32 v[{O+2*m}:{O+2*m+1}], v[{O+2*m}:{O+2*m+1}], v[4:5] op_sel_hi:[1,0]')
    for m in range(4): A(f'v_cvt_pk_bf16_f32 v{16+m}, v{O+2*m}, v{O+2*m+1}')
    A(f'buffer_store_dwordx4 v[16:19], v8, s[52:55], s24 offen sc1')
    UA = OPT['ua']
    if UA: count_add(A, 's27'); stamp(A, 12)
    A('s_cmp_ge_u32 s41, 4\ns_cbranch_scc1 L_nord')
    lds_spin(A, C_PQ, 4, 4, 5, sleep=False)
    A(f'ds_read_b128 v[48:51], v9 offset:{PQX-QX}\nds_read_b128 v[52:55], v9 offset:{PQX-QX+1024}')
    readout(A, 64, 180, 1 + UA + 16 // max(1, len(WD) + len(W0)) * sum(1 for x in W0 if x <= OPT['h2'])); readout2(A, 64, 180)
    A.label('L_nord')
    tr_lane(A, 6, 7, 2)
    A('v_and_b32 v7, 1, v1\nv_lshl_add_u32 v6, v7, 5, v6\nv_bfe_u32 v7, v1, 1, 1\nv_lshl_add_u32 v6, v7, 3, v6\nv_and_b32 v7, 16, v1\nv_add_u32 v6, v6, v7')
    A('s_lshr_b32 s24, s41, 2\ns_lshl_b32 s24, s24, 11\nv_bfe_u32 v7, v1, 3, 1\nv_lshl_add_u32 v6, v7, 6, v6\nv_add_u32 v2, s24, v6\nv_xor_b32 v3, 64, v2')
    assert OPT['wa'] and not UA and not W0
    OFR, PRE, AC = 16, 80, 208
    def wread(m):
        for rd in range(2): A(f'ds_read_b64_tr_b16 v[{PRE+4*m+2*rd}:{PRE+4*m+2*rd+1}], v{2+m%2} offset:{(m//2)*4096 + rd*1024}')
    lds_spin(A, C_WO, NWO, 12, 13, sleep=False)
    for m in range(OPT['npre']): wread(m)
    A('v_lshlrev_b32 v13, 10, v1\ns_waitcnt vmcnt(0)')
    SF = 'F' in OPT['sp']
    if not SF and not OPT['wf']: poll_issue(A, PD, V0, S_FC, count=16)
    A(f's_mov_b64 exec, 3\nbuffer_atomic_add v{V1}, v13, s[52:55], {S_C3} offen\ns_lshr_b32 s24, s41, 2\nv_mov_b32 v13, s24\ns_mov_b64 exec, 1\nds_add_u32 v12, v13 offset:{C_ATT}\ns_mov_b64 exec, -1')
    stamp(A, 13)
    if OPT['gp'] == 1: A('s_setprio 0')
    for m in range(OPT['npre'], 32): wread(m)
    A('v_and_b32 v9, 15, v1\nv_lshlrev_b32 v9, 11, v9\nv_and_b32 v14, 48, v1\nv_add_u32 v9, v9, v14')
    A(f's_and_b32 s24, s41, 3\ns_lshl_b32 s25, s24, 13\ns_add_u32 s25, s25, {PHI}\nv_add_u32 v4, s25, v8\ns_lshl_b32 s24, s24, 2\ns_add_u32 s24, s24, {TAG + C_PART}\nv_mov_b32 v5, s24')
    srd(A, 56, 18, 0x400000)
    A(f's_add_u32 s24, {S_FO}, 16384\ns_add_u32 s25, {S_FO}, 20480\ns_add_u32 s26, {S_FO}, 4096\ns_add_u32 s27, {S_OUT}, 32768')
    stamp(A, 25)
    def fpoll():
        if SF:
            sp_issue(A, [(48, S_FC, 0)]); sp_wait(A, [(48, S_FC, 0)], 's_cmp_lg_u32 s48, 16')
        else:
            if OPT['wf']: poll_issue(A, PD, V0, S_FC, count=16)
            poll(A, PD, V0, S_FC, count=16, inline=True, first=1 - OPT['wf'])
    if not OPT['wf']: fpoll()
    stamp(A, 12)
    if not OPT['w4w']: A('s_cmp_ge_u32 s41, 4\ns_cbranch_scc1 L_noatt')
    lds_spin(A, C_ATT, 4, 12, 13)
    A.label('L_noatt')
    if OPT['wf']: fpoll()
    stamp(A, 14)
    A('s_mov_b32 s30, 0')
    A.label('L_again')
    def oload(k): A(f'buffer_load_dwordx4 {vr(OFR+4*k,4)}, v8, s[52:55], {[S_FO,"s26","s24","s25"][k//4]} offen offset:{(k%4)*1024} sc1')
    TH = OPT['th']
    for k in range(TH): oload(k)
    if TH < 16:
        A('s_cmp_ge_u32 s41, 4\ns_cbranch_scc1 L_oall')
        for k in range(TH, 16): A(f's_waitcnt vmcnt({TH-1})'); oload(k)
        A('s_branch L_odone')
        A.label('L_oall')
        for k in range(TH, 16): oload(k)
        A.label('L_odone')
    A('s_waitcnt lgkmcnt(0)')
    for m in range(32):
        k, ct = m // 2, m % 2
        if ct == 0: A(f's_waitcnt vmcnt({15-k})')
        A(mfma32(AC+16*ct, PRE+4*m, OFR+4*k, AC+16*ct if k else None))
        if m == 30 and UA:
            A(f's_cmp_lg_u32 s30, 0\ns_cbranch_scc1 L_acked\ns_mov_b64 exec, 3\nv_lshlrev_b32 v12, 15, v1\nbuffer_atomic_add v{V1}, v12, s[52:55], {S_C3} offen offset:64\ns_mov_b64 exec, -1')
            A.label('L_acked'); A.hist = A.hist[:-4]
        if m == OPT['pr']:
            assert m >= 17
            A(f's_cmp_lt_u32 s41, 4\ns_cbranch_scc1 L_nopr\ns_mov_b32 s3, {SPIN_MAX * 4}')
            A.label('L_prs')
            A('ds_read_b32 v12, v5\ns_sub_u32 s3, s3, 1\ns_waitcnt lgkmcnt(0)\nv_cmp_eq_u32 vcc, 0, v12\ns_cselect_b64 vcc, 0, vcc\ns_cbranch_vccnz L_prs')
            stamp(A, 15)
            for i in range(8): A(f'ds_read_b128 {vr(OFR+4*i,4)}, v4 offset:{i*1024}')
            A.label('L_nopr')
    stamp(A, 16)
    if UA:
        A(f'v_cmp_u_f32 vcc, v{AC}, v{AC}\ns_cbranch_vccnz L_late')
        A.label('L_late2')
        def late():
            A.label('L_late'); A.fence()
            A('s_cmp_lg_u32 s30, 0\ns_cbranch_scc1 L_late2\ns_mov_b32 s30, 1\ns_waitcnt lgkmcnt(0)')
            poll_issue(A, PD, V0, S_FC, count=16, off=64)
            poll(A, PD, V0, S_FC, count=16, off=64, inline=True)
            A('s_branch L_again')
        COLD.append(late)
    A('s_cmp_ge_u32 s41, 4\ns_cbranch_scc1 L_fin')
    for i in range(8): A(f'ds_write_b128 v4, {vr(AC+4*i,4)} offset:{i*1024}')
    A(f'ds_write_b32 v5, v{V1}\ns_waitcnt lgkmcnt(0)\ns_branch L_fin2')
    A.label('L_fin')
    A('s_waitcnt lgkmcnt(0)' + ('' if UA else '\ns_nop 7'))
    for ct in range(2):
        for r in range(0, 16, 2): A(f'v_pk_add_f32 v[{AC+16*ct+r}:{AC+16*ct+r+1}], v[{AC+16*ct+r}:{AC+16*ct+r+1}], v[{OFR+16*ct+r}:{OFR+16*ct+r+1}]')
        b = 48 + 8 * ct
        for m in range(8): A(f'v_cvt_pk_bf16_f32 v{b+m}, v{AC+16*ct+2*m}, v{AC+16*ct+2*m+1}')
        for m in range(4): A(f'v_permlane16_swap_b32 v{b+m}, v{b+4+m}')
        for h in range(2): A(f'buffer_store_dwordx4 {vr(b+4*h,4)}, v9, s[56:59], {"s27" if h else S_OUT} offen offset:{ct*64} {OST}')
    A.label('L_fin2')
    stamp_flush(A, 's[52:55]', 's41')
    A.label('L_end'); A.fence()
    A('s_endpgm')
    A.label('L_bslow'); A.fence(); A.raw(';PAD')
    bunit(A, True, FA, not OPT['nohook'], 's')
    A('s_branch L_bdone')
    for f in OOL: f()
    A.label('L_cold')
    if FA:
        A.label('L_bexact'); A.fence()
        bunit(A, True, False, False, 'x')
        A('s_nop 11\ns_branch L_bdone2')
    for f in COLD: f()
    wrong(A)

def readout(A, R1, R2, n):
    A(f's_waitcnt vmcnt({n})')
    for m in range(8): A(f'v_cvt_pk_bf16_f32 v{32+m}, v{32+2*m}, v{33+2*m}')
    if n: A('s_waitcnt lgkmcnt(0)')
    A(mfma32(R1, 32, 48, None)); A(mfma32(R2, 36, 52, None))
def readout2(A, R1, R2):
    A(f'v_mov_b32 v6, 0x{f2u(1e-6):x}')
    A(f'v_rcp_f32 v4, v{R1+9}\nv_rcp_f32 v5, v{R2+9}')
    A(f'v_fmac_f32 v6, v{R1+8}, v4\nv_fmac_f32 v6, v{R2+8}, v5')
    A('v_rcp_f32 v6, v6')
    A('v_mul_f32 v4, v4, v6\nv_mul_f32 v5, v5, v6')
    for r in range(8): A(f'v_mul_f32 v{R1+r}, v{R1+r}, v4')
    for r in range(8): A(f'v_fmac_f32 v{R1+r}, v{R2+r}, v5')
    for m in range(4): A(f'v_cvt_pk_bf16_f32 v{20+m}, v{R1+2*m}, v{R1+2*m+1}')
    A(f'buffer_store_dwordx4 v[20:23], v8, s[52:55], {S_OA} offen sc1')
    if OPT['ua']: count_add(A, S_C3)
    if OPT['wprio']: A('s_setprio 0')
    stamp(A, 17)

def bunit(A, checks, fast, hooks, sfx):
    lq = Q(A, 'lgkmcnt', 15)
    KF = {j: 144 + 4 * j for j in range(9)}
    M, X, Y, Z, NM = 64, 80, 96, 112, 128
    O = OACC
    order = [8, 0, 7, 6, 5, 4, 3, 2, 1]
    def kvload():
        for m in range(4): A(f'buffer_load_dwordx4 {vr(32+4*m,4)}, v{KVOFF}, s[52:55], {S_ACC} offen offset:{16*m} sc1')
    def hook(j):
        stamp(A, 58 - j)
        if j + 100 == OPT['clr'] and OPT['ua']:
            assert j > OPT['h2']
            A(f's_cmp_ge_u32 s41, 4\ns_cbranch_scc1 L_nclr{sfx}')
            A(f'v_mov_b64 v[56:57], -1\nv_mov_b64 v[58:59], -1\ns_add_u32 s24, {S_OA}, 0x4000\ns_add_u32 s25, {S_OA}, 0x200000\ns_add_u32 s3, {S_OA}, 0x204000')
            for so in (S_OA, 's24', 's25', 's3'): A(f'buffer_store_dwordx4 v[56:59], v8, s[52:55], {so} offen sc1')
            A.label(f'L_nclr{sfx}')
        same = (OPT['hp'], OPT['h2']) == (OPT['ap'], OPT['a2'])
        for ty, (hp, h2) in enumerate([(OPT['hp'], OPT['h2']), (OPT['ap'], OPT['a2'])][:1 if same else 2]):
            if j not in (hp, h2) and not (same and j in W0): continue
            A((f's_cmp_ge_u32 s41, 4' if same else f's_cmp_lg_u32 s20, {ty}') + f'\ns_cbranch_scc1 L_hg0{ty}{j+1}{sfx}')
            if j == hp:
                A(f's_mov_b64 exec, 3\nv_lshlrev_b32 v5, 11, v1\nv_add_u32 v5, {AUX}, v5')
                poll_issue(A, PD, 5, S_ACC, count=16, off=256)
                A('s_mov_b64 exec, -1')
            if j == h2:
                A('s_mov_b64 exec, 3')
                poll(A, PD, 5, S_ACC, count=16, off=256, first=16 // max(1, len(WD) + len(W0)) * sum(1 for x in W0 if h2 < x <= hp))
                lds_add(A, C_KV, 4)
                stamp(A, 10)
                kvload()
            assert same or not W0
            wo_dma(A, j, 0)
            A.label(f'L_hg0{ty}{j+1}{sfx}')
        if j in WD or j in (OPT['g2'], OPT['gr'], OPT['gr'] - 1, OPT['gpp']):
            A(f's_cmp_lt_u32 s41, 4\ns_cbranch_scc1 L_hg1{j+1}{sfx}')
            if OPT['gp'] and j == OPT['gpp']: A('s_setprio 1')
            wo_dma(A, j)
            if j == OPT['gr']: readout(A, R1, 180, 0)
            if j == OPT['gr'] - 1: readout2(A, R1, 180)
            if j == OPT['g2']:
                assert min(WD + [8]) > j
                if WD:
                    A('s_waitcnt vmcnt(0)')
                    lds_add(A, C_WO, 4)
                lds_spin(A, C_KV, 4 if OPT['ua'] and OPT['clr'] >= 100 else 1, 4, 5)
                stamp(A, 10)
                kvload()
            A.label(f'L_hg1{j+1}{sfx}')
    R1 = M
    if hooks: stamp(A, 50)
    for j in order: A(f'ds_read_b128 {vr(KF[j],4)}, v{KRD} offset:{j*1024}'); lq.push(('k', j))
    buf = {8: M, 0: X, 7: Y, 6: Z, 5: NM, 4: X, 3: Y, 2: Z, 1: NM}
    def qk(j, dst):
        lq.wait(('k', j))
        A(mfma32(dst, KF[j], 28, None))
    def hook0():
        if hooks: stamp(A, 9)
    if fast:
        qk(8, M)
        if checks:
            A('v_mov_b32 v2, 0xff800000')
            for r in range(0, 16, 2): A(f'v_mov_b64 v[{NM+r}:{NM+r+1}], 0')
        else: qk(0, NM)
    else:
        for j in (8, 0, 7, 6, 5): qk(j, buf[j])
        if checks:
            A(f's_cmp_ge_u32 {S_T}, 8\ns_cbranch_scc1 L_t0{sfx}\ns_nop 7')
            for r in range(16): A(f'v_mov_b32 v{X+r}, 0xff800000')
            A.label(f'L_t0{sfx}'); A('s_nop 7')
        for r in range(16): A(f'v_cndmask_b32_e64 v{M+r}, v{X+r}, v{M+r}, s[{64+2*r}:{65+2*r}]')
        qk(4, buf[4])
        A(f'v_max_f32 v2, v{M}, v{M+1}\nv_max_f32 v3, v{M+2}, v{M+3}')
        for m in range(1, 4): A(f'v_max3_f32 v2, v2, v{M+4*m}, v{M+4*m+1}\nv_max3_f32 v3, v3, v{M+4*m+2}, v{M+4*m+3}')
        for j in (7, 6, 5, 4, 3, 2, 1):
            b = buf[j]
            if checks: A(f's_cmp_lt_u32 {S_T}, {8-j}\ns_cbranch_scc1 L_bm{sfx}')
            for m in range(4): A(f'v_max3_f32 v2, v2, v{b+4*m}, v{b+4*m+1}\nv_max3_f32 v3, v3, v{b+4*m+2}, v{b+4*m+3}')
            if j - 4 >= 1: qk(j - 4, buf[j - 4])
        if checks:
            A.label(f'L_bm{sfx}'); A.fence(); A('s_waitcnt lgkmcnt(0)\ns_nop 15'); lq.q = []
        A('v_max_f32 v2, v2, v3\nv_mov_b32 v3, v2\nv_permlane32_swap_b32 v2, v3\nv_max_f32 v2, v2, v3')
        hook0()
        A(f'v_sub_f32 v{NM}, 0, v2\nv_sub_f32 v{NM+1}, 0, v2')
        for r in range(2, 16, 2): A(f'v_mov_b64 v[{NM+r}:{NM+r+1}], v[{NM}:{NM+1}]')
    vs = [0]
    def vreads(js):
        A('s_mov_b64 exec, s[28:29]')
        out = {}
        for j in js:
            for blk in range(2):
                st = VRING + 4 * (vs[0] % 4); vs[0] += 1
                A(f'ds_read_b128 {vr(st,4)}, v{VRD} offset:{j*1024 + blk*512}'); lq.push(('v', j, blk)); out[(j, blk)] = st
        A('s_mov_b64 exec, -1')
        return out
    first = [True]
    def pv(j, blk, vreg, p):
        def f():
            lq.wait(('v', j, blk))
            A(mfma32(O, vreg, p, None if first[0] else O))
            first[0] = False
        return f
    buf2 = {7: X, 6: Y, 5: Z, 4: X, 3: Y, 2: Z, 1: X}
    def qk2(j):
        def f():
            if checks:
                uid[0] += 1; n = uid[0]
                A(f's_cmp_lg_u32 {S_T}, {7-j}\ns_cbranch_scc1 L_ni{n}\ns_nop 7')
                for r in range(16): A(f'v_mov_b32 v{NM+r}, 0xff800000')
                A.label(f'L_ni{n}'); A.fence(); A('s_nop 1')
            lq.wait(('k', j))
            A(mfma32(buf2[j], KF[j], 28, None if fast and not checks else NM))
        return f
    def tile(b, pend, pre=()):
        ops = list(pre) + [f'v_exp_f32 v{b+r}, v{b+r}' for r in range(16)] + [f'v_cvt_pk_bf16_f32 v{b+m}, v{b+2*m}, v{b+2*m+1}' for m in range(8)]
        n0 = len(pre); step = max(1, 16 // max(1, len(pend)))
        pos = {n0 + 1 + i * step: f for i, f in enumerate(pend)}
        for i, o in enumerate(ops):
            if i in pos: pos[i]()
            A(o)
    vv = vreads([8, 0])
    if fast: pre = [f'v_cndmask_b32_e64 v{M+r}, v{2 if checks else NM+r}, v{M+r}, s[{64+2*r}:{65+2*r}]' for r in range(16)]
    else: pre = [f'v_sub_f32 v{M+r}, v{M+r}, v2' for r in range(16)]
    tile(M, [qk2(7), qk2(6)], pre=pre)
    for m in range(8): A(f'v_bfi_b32 v{M+8+m}, v{PMASK+m}, 0, v{M+m}')
    for m in range(8): A(f'v_and_b32 v{M+m}, v{PMASK+m}, v{M+m}')
    pend = [pv(8, 0, vv[(8, 0)], M), pv(8, 1, vv[(8, 1)], M + 4), pv(0, 0, vv[(0, 0)], M + 8), pv(0, 1, vv[(0, 1)], M + 12), qk2(5)]
    if fast: hook0()
    for j in (7, 6, 5, 4, 3, 2, 1):
        b = buf2[j]
        if hooks: hook(j)
        if j == 7:
            tile(b, pend); vv = vreads([j])
        else:
            vv = vreads([j]); tile(b, pend)
        pend = [pv(j, 0, vv[(j, 0)], b), pv(j, 1, vv[(j, 1)], b + 4)]
        if j - 3 >= 1: pend.append(qk2(j - 3))
    for f in pend: f()
    if hooks:
        hook(0); hook(-1)

def add_pads(txt):
    import subprocess, re, tempfile
    lines = txt.split('\n')
    d = tempfile.mkdtemp()
    tmp = txt.replace(';PAD', '    s_nop 0').replace('L_code_end:', ''.join(f'L_chain{i}:\n' for i in range(8)) + 'L_code_end:')
    open(d + '/a.s', 'w').write(tmp)
    subprocess.check_call(['clang', '-x', 'assembler', '-target', 'amdgcn-amd-amdhsa', '-mcpu=gfx950', '-c', d + '/a.s', '-o', d + '/a.o'])
    dis = subprocess.check_output(['llvm-objdump', '-d', d + '/a.o']).decode()
    addrs = [int(m.group(1), 16) for m in re.finditer(r'// ([0-9A-F]{12}):', dis)]
    out = []; k = 0; shift = 0x300; nxt = 4096; skip = True; walk = False
    for ln in lines:
        if ln.strip() == 's_mov_b64 exec, 0': walk = True
        if ln.startswith('L_padret0'): skip = False
        if ln.startswith('L_cold'): skip = True
        if ln == ';PAD' or (ln.startswith('    ') and not ln.strip().startswith('.')):
            a = addrs[k] + shift; k += 1
            if a >= nxt and not walk:
                nxt += 4096
                if ln != ';PAD' and not skip: out.append(';PAD'); shift += 4
        out.append(ln)
        if ln.strip() == 's_mov_b64 exec, -1': walk = False
    idx = [i for i, ln in enumerate(out) if ln == ';PAD']
    n = len(idx)
    for j, i in enumerate(idx):
        head = f'L_chain{j}:\n' if j < 8 else ''
        out[i] = f'{head}L_pad{j}:\n    s_cbranch_execz ' + ('L_padret0' if j < 4 else f'L_pad{j+4}' if j + 4 < n else 'L_padret1')
    return '\n'.join(out)

def main():
    A = Asm()
    A.raw(f'; @launch grid=(256,1,1) block=(512,1,1) lds={LDS_SIZE}')
    A.raw('.amdgcn_target "amdgcn-amd-amdhsa--gfx950"\n.text')
    gen(A)
    A.raw('L_code_end:\n.p2align 8\n.fill 64, 4, 0xbf800000')
    A.raw(kd(NAME, 256, 100))
    txt = A.text()
    if OPT['pads']: txt = add_pads(txt)
    sys.stdout.write(txt)
main()
```

```python
import sys, math, struct
sys.path.insert(0, 'work')
from asmlib import *

OPT = dict(stamps=0, gst=0, skip='', pfc=1, psl=2, ssl=0, order='01234567', grp=1, gsh=9, tagl=4, la='88888888', n0=10, cst=11, cn=8, e0n=72, ot='', dpos=2, pw2=-1, aw=0, bw=1, npre=12, w4w=0, wf=0, qr=1, pr=24, ua=0, clr=107, wa=1, gp=1, th=16, ap=4, a2=1, gpp=5, hq=-1, hk=-1, e0w=0, e0pos=6, e0a=24, fastk=1, fasta=1, epn=28, cprio=1,
           nat=8, fw=1, pads=1, qd=5, qpoll=56, bq=65, lprio=1, aprio=0, stag=28, ost='sc1', wprio=0, pre=1, wd='8', w0='x', bt=0, hf=0, pol=2, nrep=2, rot=1, mis=0, vb=32, dg=0, nohook=0, g2=5, gr=1, hp=4, h2=1, hpos=0, fp=16, sp='x', hl=0, xa=8, xm=1, xs=7)
for a in sys.argv[1:]:
    k, v = a.split('='); assert k in OPT, k; OPT[k] = int(v) if v.lstrip('-').isdigit() else v
OST = '' if OPT['ost'] == 'plain' else OPT['ost']
NAME = 'concat_heads__linear_kernel_hedgehog__sliding_block__prompt_kernel'

def f2u(x): return struct.unpack('<I', struct.pack('<f', x))[0]
LOG2E = math.log2(math.e)
RBS, TWIN = 18, 0x202000
WS_K, WS_O, WS_QG, WS_F1 = 0x000000, 0x400000, 0x800000, 0x1400000
WS_ACC, WS_EP, WS_PR = 0x1100000, 0x1120000, 0x1128000
WS_SIZE = 0x1800000
ACCB, AUX = 2048, 65536
WS_STAMP = 0x1000000
SPIN_MAX = 1 << 16
SLOT = 32768
RING = [0, 32768, 65536, 98304]
KL, VL, PHI = 65536, 90112, 114688
PHI_PLANE, PHI_HEAD, PHI_WAVE = 1088, 4352, 8704
TAG = PHI + 4 * PHI_WAVE - 64
QX, PQX, WPH = 149504, 153600, 161792
WO1 = 0
LDS_SIZE = 163840
C_ATT, C_WQ, C_PQ, C_WO, C_KV, C_WQ2, C_PAIR, C_PART = 8, 12, 16, 20, 24, 28, 32, 48
OACC, VRING, PMASK, ONES = 200, 216, 232, 240
SEL = 200
KVOFF, V1, V0, KRD, VRD, WOL, OST_, QRD, PD = 242, 243, 244, 245, 246, 247, 248, 249, 250
S_T, S_WO, S_ACC, S_OA, S_C3, S_FC, S_FO, S_OUT, S_QG = 's4', 's5', 's6', 's7', 's8', 's12', 's13', 's14', 's15'

class Q:
    def __init__(self, A, name, mx): self.A = A; self.q = []; self.name = name; self.mx = mx
    def push(self, tag): self.q.append(tag)
    def wait(self, *tags):
        idx = -1
        for i, t in enumerate(self.q):
            if t in tags: idx = i
        if idx < 0: return
        n = min(len(self.q) - 1 - idx, self.mx)
        self.A(f's_waitcnt {self.name}({n})')
        self.q = self.q[len(self.q) - n:] if n else []
    def all(self):
        self.A(f's_waitcnt {self.name}(0)'); self.q = []

def stamp(A, idx):
    if not OPT['stamps'] or str(idx) in str(OPT['skip']).split('.'): return
    if OPT['gst'] == 3:
        if 32 <= idx < 42: idx -= 12
        elif idx >= 60: idx -= 60
        elif idx not in (30, 31): return
    elif idx >= 60: return
    elif OPT['gst'] == 2:
        if idx < 10 or 32 <= idx < 50: return
        if idx >= 50: idx -= 50
    elif OPT['gst']:
        if idx < 30 or idx > 47: return
        if idx >= 32: idx -= 32
    elif idx >= 32: return
    A(('s_memrealtime' if OPT['stamps'] == 1 else 's_memtime') + ' s[96:97]')
    A('s_waitcnt lgkmcnt(0)')
    A(f'v_writelane_b32 v253, s96, {idx}')
def stamp_flush(A, srd, wavereg):
    if not OPT['stamps']: return
    stamp(A, 31)
    A(f's_lshl_b32 s98, s37, 3\ns_add_u32 s98, s98, s99\ns_lshl_b32 s98, s98, 3\ns_add_u32 s98, s98, {wavereg}\ns_lshl_b32 s98, s98, 7\ns_add_u32 s98, s98, {WS_STAMP}\ns_and_b32 s52, s52, 0xffffdfff')
    A('v_mbcnt_lo_u32_b32 v252, -1, 0\nv_lshlrev_b32 v252, 2, v252\ns_mov_b32 exec_hi, 0')
    A(f'buffer_store_dword v253, v252, {srd}, s98 offen')

def rowof(r, hi): return (r & 3) + 8 * (r >> 2) + 4 * hi

def dual_exp(A, p, em, t):
    A(f'v_max3_f32 v{t}, v{p}, v{p+1}, v{p+2}\nv_max3_f32 v{t+1}, -v{p}, -v{p+1}, -v{p+2}')
    A(f'v_max3_f32 v{t}, v{t}, v{p+3}, v{p+4}\nv_max3_f32 v{t+1}, v{t+1}, -v{p+3}, -v{p+4}')
    A(f'v_max3_f32 v{t}, v{t}, v{p+5}, v{p+6}\nv_max3_f32 v{t+1}, v{t+1}, -v{p+5}, -v{p+6}')
    A(f'v_max_f32_e64 v{t}, v{t}, v{p+7}\nv_max_f32_e64 v{t+1}, v{t+1}, -v{p+7}')
    A(f'v_permlane32_swap_b32 v{t}, v{t+1}')
    A(f'v_max_f32 v{t}, v{t}, v{t+1}')
    A(f'v_mul_f32 v{t}, s62, v{t}')
    A(f'v_mov_b32 v{t+1}, v{t}')
    A(f'v_permlane32_swap_b32 v{t}, v{t+1}')
    for r in range(8): A(f'v_fma_f32 v{em+r}, -v{p+r}, s62, -v{t+1}\nv_fma_f32 v{p+r}, v{p+r}, s62, -v{t}')
    for r in range(8): A(f'v_exp_f32 v{em+r}, v{em+r}\nv_exp_f32 v{p+r}, v{p+r}')

uid = [0]
OOL = []
COLD = []
def sp_issue(A, loads):
    for d, so, off in loads: A(f's_buffer_load_dword s{d}, s[52:55], {so} offset:{off} glc')
def sp_wait(A, loads, test, inline=True):
    uid[0] += 1; n = uid[0]
    def loop():
        A(f's_mov_b32 s3, {SPIN_MAX}')
        A.label(f'L_pl{n}')
        if OPT['ssl']: A(f's_sleep {OPT["ssl"]}')
        sp_issue(A, loads)
        A(f's_waitcnt lgkmcnt(0)\n{test}\ns_cselect_b32 s3, s3, 0\ns_sub_u32 s3, s3, 1\ns_cbranch_scc0 L_pl{n}')
    if inline:
        A(f's_waitcnt lgkmcnt(0)\n{test}\ns_cbranch_scc0 L_pd{n}')
        loop()
        A.label(f'L_pd{n}')
        return
    A(f's_waitcnt lgkmcnt(0)\n{test}\ns_cbranch_scc1 L_ps{n}')
    A.label(f'L_pd{n}')
    def slow():
        A.label(f'L_ps{n}'); A.fence()
        loop()
        A(f's_branch L_pd{n}')
    OOL.append(slow)
def poll_issue(A, vdst, voff, soff, count=None, off=0):
    o = f' offset:{off}' if off else ''
    A(f'buffer_load_dword v{vdst}, v{voff}, s[52:55], {soff} offen{o} sc1')
def poll(A, vdst, voff, soff, count=None, off=0, inline=False, first=0):
    uid[0] += 1; n = uid[0]
    cmp = f'v_cmp_ne_u32 vcc, {count}, v{vdst}'
    if inline:
        A(f's_waitcnt vmcnt({first})\n{cmp}\ns_cbranch_vccz L_pd{n}\ns_mov_b32 s3, {SPIN_MAX}')
        A.label(f'L_pl{n}')
        if OPT['psl']: A(f's_sleep {OPT["psl"]}')
        poll_issue(A, vdst, voff, soff, count, off)
        A(f's_sub_u32 s3, s3, 1\ns_waitcnt vmcnt(0)\n{cmp}\ns_cselect_b64 vcc, 0, vcc\ns_cbranch_vccnz L_pl{n}')
        A.label(f'L_pd{n}')
        return
    A(f's_waitcnt vmcnt({first})\n{cmp}\ns_cbranch_vccnz L_ps{n}')
    A.label(f'L_pd{n}')
    def slow():
        A.label(f'L_ps{n}'); A.fence()
        A('s_mov_b32 s3, 0')
        A.label(f'L_pl{n}')
        if OPT['psl']: A(f's_sleep {OPT["psl"]}')
        poll_issue(A, vdst, voff, soff, count, off)
        A(f's_add_u32 s3, s3, 1\ns_waitcnt vmcnt(0)\n{cmp}\ns_cbranch_vccz L_pd{n}')
        A(f's_cmp_lt_u32 s3, {SPIN_MAX}\ns_cbranch_scc1 L_pl{n}\ns_branch L_pd{n}')
    OOL.append(slow)
GR = [0, 1, 2, 4, 5, 6, 8, 9]
def gran_issue(A, v, nh):
    for h in range(3): A(f'buffer_load_dwordx4 {vr(v+4*h,4)}, v8, s[52:55], {S_QG} offen offset:{h*1024} sc1')
def gran_wait(A, v, nh, dst, inline, first=0):
    uid[0] += 1; n = uid[0]
    def check(cnt=0):
        A(f's_waitcnt vmcnt({cnt})\nv_cmp_ne_u32_e64 s[24:25], s60, v{v+3}')
        for r in range(1, 3): A(f'v_cmp_ne_u32 vcc, s60, v{v+3+4*r}\ns_or_b64 s[24:25], s[24:25], vcc')
    def retry():
        if OPT['psl']: A(f's_sleep {OPT["psl"]}')
        gran_issue(A, v, nh)
    if inline:
        A('s_mov_b32 s3, 0')
        A.label(f'L_gl{n}')
        check()
        A(f's_cbranch_scc0 L_gd{n}')
        retry()
        A(f's_add_u32 s3, s3, 1\ns_cmp_lt_u32 s3, {SPIN_MAX}\ns_cbranch_scc1 L_gl{n}\ns_waitcnt vmcnt(0)')
    else:
        check(first)
        A(f's_cbranch_scc1 L_gs{n}')
        def slow():
            A.label(f'L_gs{n}'); A.fence()
            A('s_mov_b32 s3, 0')
            A.label(f'L_gl{n}')
            retry(); check()
            A(f's_cbranch_scc0 L_gd{n}\ns_add_u32 s3, s3, 1\ns_cmp_lt_u32 s3, {SPIN_MAX}\ns_cbranch_scc1 L_gl{n}\ns_branch L_gd{n}')
        OOL.append(slow)
    A.label(f'L_gd{n}')
    for r in range(8): A(f'v_mov_b32 v{dst+r}, v{v+GR[r]}')

def lds_add(A, off, va):
    A(f'v_mov_b32 v{va}, {TAG}\ns_mov_b64 exec, 1\nds_add_u32 v{va}, v{V1} offset:{off}\ns_mov_b64 exec, -1')
def lds_spin(A, off, cnt, va, vt, sleep=True):
    uid[0] += 1; n = uid[0]
    A(f'v_mov_b32 v{va}, {TAG}\ns_mov_b32 s3, {SPIN_MAX * 4}')
    A.label(f'L_sp{n}')
    if sleep: A('s_sleep 1')
    A(f's_sub_u32 s3, s3, 1\nds_read_b32 v{vt}, v{va} offset:{off}\ns_waitcnt lgkmcnt(0)\nv_cmp_gt_u32 vcc, {cnt}, v{vt}\ns_cselect_b64 vcc, 0, vcc\ns_cbranch_vccnz L_sp{n}')
def count_add(A, soff, off=0):
    A('s_mov_b64 exec, 1')
    A(f'buffer_atomic_add v{V1}, v{V0}, s[52:55], {soff} offen' + (f' offset:{off}' if off else ''))
    A('s_mov_b64 exec, -1')

def srd(A, d, lo, size):
    A(f's_mov_b32 s{d}, s{lo}\ns_mov_b32 s{d+1}, s{lo+1}\ns_mov_b32 s{d+2}, 0x{size:x}\ns_mov_b32 s{d+3}, 0x20000')
def flag(A, soff, tmp):
    A(f'v_mov_b32 v{tmp}, s60\nv_mov_b32 v{tmp+1}, s61\nv_mov_b32 v{tmp+2}, s60\nv_mov_b32 v{tmp+3}, s61\ns_waitcnt vmcnt(0)\ns_mov_b64 exec, 0xff')
    A(f'buffer_store_dwordx4 v[{tmp}:{tmp+3}], v8, s[52:55], {soff} offen sc1')
    A('s_mov_b64 exec, -1')
def stream(fn, *a):
    L = []
    fn(lambda t: L.extend(x for x in t.split('\n') if x.strip()), *a)
    return L
def tr_lane(A, d, rowsh, hish):
    A(f'v_bfe_u32 v{d}, v1, 2, 2\nv_lshl_add_u32 v{d}, v11, {hish}, v{d}\nv_lshlrev_b32 v{d}, {rowsh}, v{d}')
def mfma32(d, a, b, c): return f'v_mfma_f32_32x32x16_bf16 {vr(d,16)}, {vr(a,4)}, {vr(b,4)}, {vr(c,16) if c is not None else "0"}'

def common(A):
    for r in range(16):
        for hi in range(2):
            m = 0
            for c in range(32):
                if rowof(r, hi) <= c: m |= 1 << c
            A(f's_mov_b32 s{64+2*r+hi}, 0x{m:x}')
    A(f's_mov_b32 s62, 0x{f2u(LOG2E):x}\ns_mov_b32 s63, 0x{f2u(2.0**100):x}\ns_mov_b32 s28, 0xffff\ns_mov_b32 s29, 0xffff')
    A(f'v_mov_b32 v{ONES}, 0x3f803f80\nv_mov_b32 v{ONES+1}, 0x3f803f80\nv_mov_b32 v{V1}, 0xffff')
    for r in range(0, 16, 2): A(f'v_mov_b64 v[{VRING+r}:{VRING+r+1}], v[{ONES}:{ONES+1}]')
    for m in range(8): A(f'v_cndmask_b32_e64 v{PMASK+m}, 0, v{V1}, s[{64+4*m}:{65+4*m}]')
    for m in range(8): A(f'v_cndmask_b32_e64 v{PMASK+m}, v{PMASK+m}, -1, s[{66+4*m}:{67+4*m}]')
    A(f'v_and_b32 v{V1}, 1, v10\nv_add_u32 v{V1}, {AUX//128}, v{V1}\nv_cndmask_b32_e64 v{KVOFF}, v{V1}, v10, s[28:29]\nv_lshlrev_b32 v{KVOFF}, 7, v{KVOFF}\nv_lshl_add_u32 v{KVOFF}, v11, 6, v{KVOFF}')
    A('s_and_b32 s21, s41, 3\ns_lshr_b32 s22, s41, 2\ns_lshl1_add_u32 s20, s22, s38')
    A(f's_lshl_b32 s24, s21, 10\ns_add_u32 s25, s24, {QX}\nv_add_u32 v{QRD}, s25, v8')
    A(f's_mul_i32 s25, s22, 12288\ns_add_u32 s24, s24, s25\ns_add_u32 s25, s24, {KL}\nv_add_u32 v{KRD}, s25, v8')
    A(f'v_and_b32 v{VRD}, 15, v1\nv_lshlrev_b32 v{VRD}, 4, v{VRD}\nv_lshl_add_u32 v{VRD}, v11, 8, v{VRD}\ns_add_u32 s25, s24, {VL}\nv_add_u32 v{VRD}, s25, v{VRD}')
    A(f'v_lshrrev_b32 v{WOL}, 3, v1\nv_and_b32 v{V0}, 7, v1\nv_bfe_u32 v{V1}, v1, 4, 1\nv_lshlrev_b32 v{V1}, 2, v{V1}\nv_xor_b32 v{V0}, v{V0}, v{V1}\nv_lshlrev_b32 v{V0}, 4, v{V0}\nv_lshl_add_u32 v{WOL}, v{WOL}, 10, v{V0}')
    A(f'v_mov_b32 v{V1}, 1\nv_mov_b32 v{V0}, 0\nv_mov_b64 v[52:53], 0\nv_mov_b64 v[54:55], 0')
    A(f's_lshl_b32 {S_T}, s39, 2\ns_add_u32 {S_T}, {S_T}, s21')
    A(f's_lshr_b32 s23, s37, 2\ns_lshl_b32 s23, s23, 7\nv_add_u32 v{WOL}, s23, v{WOL}\ns_and_b32 s24, s37, 3\ns_lshl_b32 s24, s24, 4\ns_add_u32 s24, s24, s21\ns_lshl_b32 {S_WO}, s24, 10')
    A(f's_lshl_b32 s24, s40, 1\ns_add_u32 s24, s24, s22\ns_mul_i32 {S_ACC}, s24, {ACCB}\ns_add_u32 {S_ACC}, {S_ACC}, {WS_ACC}')
    A(f's_lshl_b32 s24, s21, 1\ns_add_u32 s24, s24, s22\ns_lshl_b32 {S_FO}, s24, 15\ns_add_u32 {S_FO}, {S_FO}, {WS_O}\ns_lshl_b32 s24, s24, 7\ns_add_u32 {S_FC}, s24, {WS_F1 + 4096}')
    A(f's_and_b32 s24, s40, 8\ns_add_u32 s24, s24, s40\ns_lshl_b32 s24, s24, 10\ns_lshl_b32 s25, s39, {RBS}\ns_add_u32 s24, s24, s25\ns_add_u32 {S_OA}, s24, {S_FO}\ns_add_u32 {S_C3}, {S_FC}, s25')
    A(f's_lshl_b32 s24, s35, 15\ns_add_u32 s25, s25, s24\ns_and_b32 s24, s21, 2\ns_add_u32 s24, s24, s21\ns_add_u32 s24, s24, s24\ns_and_b32 s24, s24, 10\ns_lshl_b32 s24, s24, 11\ns_add_u32 s25, s25, s24')
    A(f's_and_b32 s24, s35, 1\ns_lshl_b32 s24, s24, 10\ns_add_u32 s25, s25, s24\ns_mul_i32 s24, s38, {TWIN}\ns_add_u32 s25, s25, s24\ns_add_u32 {S_QG}, s25, {WS_QG}')
    A('s_and_b32 s24, s39, 12\ns_xor_b32 s24, s24, 4\ns_and_b32 s25, s37, 3\ns_add_u32 s24, s24, s25\ns_lshr_b32 s22, s36, 2')
    A(f's_lshl_b32 {S_OUT}, s24, {RBS}\ns_add_u32 {S_FC}, {S_FC}, {S_OUT}\ns_add_u32 {S_FO}, {S_FO}, {S_OUT}\ns_mul_i32 s25, s22, {TWIN}\ns_add_u32 {S_FO}, {S_FO}, s25')
    A(f's_lshl_b32 s25, s22, 10\ns_add_u32 {S_FC}, {S_FC}, s25\ns_add_u32 {S_OUT}, {S_OUT}, s25\ns_lshl_b32 s25, s21, 16\ns_add_u32 {S_OUT}, {S_OUT}, s25\ns_add_u32 {S_OUT}, {S_OUT}, s23')

def place(A, x):
    if OPT['pol'] != 2: return
    A(f's_lshr_b32 s24, s61, 14\ns_and_b32 s61, s61, 0xffff\ns_cmp_le_u32 s24, s61\ns_cbranch_scc1 L_pl{x}\ns_add_u32 s52, s52, 8192\ns_addc_u32 s53, s53, 0\ns_sub_u32 {S_ACC}, {S_ACC}, 8192')
    if x == 'c': A('s_lshl_b32 s24, s38, 13\ns_sub_u32 s31, s31, s24')
    A.label(f'L_pl{x}')

ROLE = 's_add_u32 s24, s2, s60\ns_and_b32 s24, s24, 7\ns_cmp_lg_u32 s24, s99\n'
def wrong(A):
    A.label('L_wrong'); A.fence()
    A('s_mov_b32 s99, s24\ns_or_b32 s2, s2, 256\ns_setprio 0\ns_waitcnt vmcnt(0) lgkmcnt(0)\ns_barrier\ns_nop 15\ns_branch L_restart')

def wo_srd(A):
    A('s_cmp_lt_u32 s36, 4\ns_cselect_b32 s44, s10, s16\ns_cselect_b32 s45, s11, s17\ns_mov_b32 s46, 0x80000\ns_mov_b32 s47, 0x20000')

WD = [int(c) for c in str(OPT['wd']) if c.isdigit()]
W0 = [int(c) for c in str(OPT['w0']) if c.isdigit()]
NWO = 4 * (bool(WD) + bool(W0))
def wo_dma(A, j, g=1):
    cnt = 0; n = 16 // max(1, len(WD) + len(W0))
    for k, x in enumerate(WD if g else W0):
        if x != j: continue
        for i in range(n):
            A(f's_xor_b32 m0, {S_WO}, {4096 * (n * (k + (len(W0) if g else 0)) + i)}\ns_lshl_b32 s24, m0, 3')
            A(f'buffer_load_dwordx4 v{WOL}, s[44:47], s24 offen lds'); cnt += 1
    return cnt

def halo_edge(A, x):
    A(f's_cmp_lt_u32 s39, 2\ns_cbranch_scc1 L_nb{x}')
    A.label(f'L_nb2{x}')
    def edge():
        A.label(f'L_nb{x}'); A.fence(); A.raw(';PAD')
        A('v_mov_b32 v48, 0\nv_mov_b32 v49, 0\nv_mov_b32 v50, 0\nv_mov_b32 v51, 0\nv_add_u32 v7, s27, v8')
        for i in range(4): A(f'ds_write_b128 v7, v[48:51] offset:{i*1024}')
        A(f's_cmp_eq_u32 s39, 1\ns_cbranch_scc1 L_nb2{x}')
        for i in range(4, 8): A(f'ds_write_b128 v7, v[48:51] offset:{i*1024}')
        A(f's_branch L_nb2{x}')
    OOL.append(edge)
def halo_loads(x): return [([48, 50, 0][nb] + i, f's{9+nb}', 128*i) for nb in range(3 if x == 'A' else 2) for i in range(2)][-OPT['hl']:]
def halo_issue(A, x):
    if x in OPT['sp']: sp_issue(A, halo_loads(x)); return
    A(f'v_and_b32 v55, 1, v1\nv_lshlrev_b32 v55, 7, v55\ns_mov_b64 exec, 3\nv_add_u32 v55, s9, v55\ns_mov_b64 exec, 12\nv_add_u32 v55, s10, v55\ns_mov_b64 exec, 48\nv_add_u32 v55, s11, v55')
    A(f's_mov_b64 exec, {63 if x == "A" else 15}')
    poll_issue(A, PD, 55, '0', 's60')
    A('s_mov_b64 exec, -1')
def halo_fetch(A, x, first=0):
    t = 's_xor_b64 s[48:49], s[48:49], s[60:61]\ns_xor_b64 s[50:51], s[50:51], s[60:61]\ns_or_b64 s[48:49], s[48:49], s[50:51]'
    if x == 'A': t += '\ns_xor_b64 s[0:1], s[0:1], s[60:61]\ns_or_b64 s[48:49], s[48:49], s[0:1]'
    if OPT['hl']: t = f's_cmp_lg_u32 s{halo_loads(x)[-1][0]}, s60'
    if x in OPT['sp']: sp_wait(A, halo_loads(x), t)
    else:
        A(f's_mov_b64 exec, {63 if x == "A" else 15}')
        poll(A, PD, 55, '0', 's60', inline=True, first=first)
        A('s_mov_b64 exec, -1')
    halo_dma(A, x, x)
def halo_dma(A, x, u):
    stamp(A, 5)
    for nb in range(3 if x == 'A' else 2):
        if nb < 2: A(f's_cmp_lt_u32 s39, {2-nb}\ns_cbranch_scc1 L_sk{nb}{u}')
        A(f's_sub_u32 s25, s33, {(2-nb) << RBS}\ns_add_u32 m0, s27, {nb*4096}')
        for i in range(4): A(f'buffer_load_dwordx4 v8, s[52:55], s25 offen offset:{i*1024} sc1 lds')
        if nb < 2: A.label(f'L_sk{nb}{u}')
    stamp(A, 7)

def gen(A):
    name = NAME
    WSZ = WS_SIZE if not OPT['stamps'] else 0x2000000
    A.raw(f'.globl {name}\n.p2align 12\n.type {name},@function\n{name}:')
    stamp(A, 30)
    A('s_cmp_ge_u32 s2, 256\ns_cbranch_scc1 L_end')
    A('s_getreg_b32 s99, hwreg(HW_REG_XCC_ID, 0, 3)' if OPT['rot'] else 's_and_b32 s99, s2, 7')
    if OPT['mis']: A(f's_lshr_b32 s3, s2, {OPT["mis"]}\ns_add_u32 s99, s99, s3\ns_and_b32 s99, s99, 7')
    A.label('L_restart')
    A('s_load_dwordx16 s[4:19], s[0:1], 0\ns_load_dwordx4 s[20:23], s[0:1], 64')
    A('v_lshrrev_b32 v2, 6, v0\nv_and_b32 v1, 63, v0')
    A('s_lshl_b32 s36, s99, 2\ns_lshr_b32 s36, 0x76325410, s36\ns_and_b32 s36, s36, 7\ns_bfe_u32 s37, s2, 0x50003')
    A('v_readfirstlane_b32 s41, v2')
    A('s_and_b32 s38, s37, 1')
    A('s_and_b32 s39, s36, 3\ns_lshl_b32 s39, s39, 2\ns_bfe_u32 s42, s37, 0x20001\ns_add_u32 s39, s39, s42')
    A('s_lshl_b32 s35, s38, 2\ns_xor_b32 s35, s35, s36\ns_and_b32 s35, s35, 4\ns_lshr_b32 s42, s37, 3\ns_add_u32 s35, s35, s42')
    A('s_lshl_b32 s40, s35, 1\ns_add_u32 s40, s40, s38')
    A('v_lshlrev_b32 v8, 4, v1\nv_and_b32 v10, 31, v1\nv_lshrrev_b32 v11, 5, v1')
    A('s_cmp_lt_u32 s41, 4\ns_cbranch_scc1 L_cpre')
    A('s_mov_b32 s46, 0x200000\ns_mov_b32 s47, 0x20000\ns_mov_b32 s50, 0x180000\ns_mov_b32 s51, 0x20000')
    A('s_sub_u32 s43, s41, 4')
    A('v_lshrrev_b32 v3, 3, v1\nv_and_b32 v4, 7, v1\nv_lshrrev_b32 v5, 4, v1')
    A('v_xor_b32 v6, v4, v5\nv_lshlrev_b32 v6, 4, v6\nv_lshl_add_u32 v6, v3, 10, v6')
    A('s_lshl_b32 s24, s39, 17\ns_lshl_b32 s25, s43, 15\ns_add_u32 s24, s24, s25')
    A('v_add_u32 v16, s24, v6\nv_xor_b32 v17, 64, v16\nv_add_u32 v17, 8192, v17\nv_add_u32 v18, 16384, v16\nv_add_u32 v19, 16384, v17')
    A('v_and_b32 v5, 1, v5\nv_lshlrev_b32 v5, 2, v5\nv_xor_b32 v4, v4, v5\nv_mul_u32_u24 v3, 3072, v3\nv_lshl_add_u32 v3, v4, 4, v3')
    A('s_mul_i32 s24, s43, 49152\ns_lshl_b32 s25, s35, 7\ns_add_u32 s24, s24, s25')
    A('v_add_u32 v20, s24, v3\nv_add_u32 v21, 24576, v20')
    A(f's_lshl_b32 s30, s43, 12\ns_lshl_b32 s31, s43, 11')
    A(f's_add_u32 s26, s39, s35\ns_and_b32 s26, s26, {OPT["grp"]}\ns_lshl_b32 s26, s26, {OPT["gsh"]}')
    if OPT['xa'] >= 0: A(f's_lshl_b32 s27, s38, {OPT["xa"]}\ns_xor_b32 s26, s26, s27')
    if OPT['xm']: A(f's_and_b32 s27, s36, {OPT["xm"]}\ns_lshl_b32 s27, s27, {OPT["xs"]}\ns_xor_b32 s26, s26, s27')
    if OPT['ot']:
        T = [sum(int(c) << (4*i) for i, c in enumerate(o)) for o in OPT['ot'].split('.')]
        assert all(sorted(o) == list('01234567') for o in OPT['ot'].split('.'))
        A(f's_add_u32 s24, s39, s35\ns_mov_b32 s34, 0x{T[0]:x}\ns_mov_b32 s25, 0x{T[2]:x}\ns_bitcmp0_b32 s24, 0\ns_cselect_b32 s34, s34, 0x{T[1]:x}\ns_cselect_b32 s25, s25, 0x{T[3]:x}\ns_bitcmp0_b32 s24, 1\ns_cselect_b32 s34, s34, s25')
    A('s_cmp_eq_u32 s38, 0')
    A('s_waitcnt lgkmcnt(0)')
    A('s_cselect_b32 s44, s12, s4\ns_cselect_b32 s45, s13, s5\ns_cselect_b32 s48, s14, s6\ns_cselect_b32 s49, s15, s7')
    stamp(A, 0); stamp(A, 60)
    ORD = [int(c) for c in str(OPT['order']).zfill(8)]
    vq = Q(A, 'vmcnt', 63)
    def wsoff(st):
        if OPT['ot']: A(f's_bfe_u32 s32, s34, 0x{0x30000 + 4*st:x}\ns_lshl_b32 s32, s32, 7\ns_xor_b32 s32, s26, s32\ns_mul_i32 s33, s32, 1536')
        else: A(f's_xor_b32 s32, s26, {st*128}\ns_mul_i32 s33, s32, 1536')
    LT = []
    nis = [0]
    def issue(upto):
        while nis[0] < min(upto, 80):
            n = nis[0]; nis[0] += 1
            s, i = divmod(n, 8); base = RING[s % 4]
            if s >= 8:
                if n == 64 and OPT['qr']:
                    assert ORD == list(range(8)) and not OPT['ot']
                    A('s_add_u32 s24, s39, s35\ns_and_b32 s24, s24, 2\ns_lshl_b32 s25, s24, 7\ns_xor_b32 s26, s26, s25\ns_lshl_b32 s25, s24, 13\ns_xor_b32 s31, s31, s25')
                if i % 2 == 0: wsoff(ORD[4*(s-8) + i//2])
                A(f's_xor_b32 m0, s31, {base + (i//2)*8192 + (i%2)*1024}')
                A(f'buffer_load_dwordx4 v{20+i%2}, s[48:51], s33 offen lds')
            elif i < 4:
                if i == 0: wsoff(ORD[s])
                A(f's_add_u32 m0, s30, {base + i*1024}')
                A(f'buffer_load_dwordx4 v{16+i}, s[44:47], s32 offen lds')
            else:
                seg = i // 2 - 1
                A(f's_add_u32 m0, s31, {base + 8192 + seg*7168 + (i%2)*1024}')
                A(f'buffer_load_dwordx4 v{20+i%2}, s[48:51], s33 offen offset:{seg*1024} lds')
            vq.push(('st', s))
            if n % 2 and n < 38: stamp(A, 61 + n//2)
            if n >= OPT['cst']:
                for _ in range(OPT['cn']):
                    if LT: A(LT.pop(0))
    issue(OPT['n0'])
    stamp(A, 1)
    srd(A, 52, 22, WSZ); srd(A, 56, 20, 0x100)
    if OPT['pol'] == 1: A('s_add_u32 s52, s52, 8192\ns_addc_u32 s53, s53, 0')
    A('s_branch L_load')
    A.label('L_cpre'); A.fence()
    A('s_lshr_b32 s42, s41, 1\ns_and_b32 s43, s41, 1')
    for r in range(0, 8, 2): A(f'v_mov_b64 v[{16+r}:{17+r}], 0')
    A(f's_lshl_b32 s24, s35, 1\ns_add_u32 s24, s24, s43\ns_lshl_b32 s34, s39, {RBS}')
    A('s_lshl_b32 s25, s42, 11\ns_lshl_b32 s32, s24, 14\ns_add_u32 s32, s32, s25\ns_add_u32 s32, s32, s34')
    A(f's_lshl_b32 s24, s24, 1\ns_add_u32 s24, s24, s42\ns_lshl_b32 s24, s24, 7\ns_add_u32 s34, s34, s24\ns_add_u32 s34, s34, {WS_F1}')
    A('s_waitcnt lgkmcnt(0)')
    srd(A, 52, 22, WSZ); srd(A, 56, 20, 0x100)
    if OPT['pol'] == 1: A('s_add_u32 s52, s52, 8192\ns_addc_u32 s53, s53, 0')
    A('s_cmp_lg_u32 s41, 0\ns_cbranch_scc1 L_d1')
    if OPT['pfc']:
        A('s_getpc_b64 s[24:25]')
        A.label('L_pc0')
        A(f's_add_u32 s24, s24, {name}-L_pc0\ns_addc_u32 s25, s25, -1')
        A(f's_lshl_b32 s30, s37, 7\nv_lshlrev_b32 v13, 12, v1\nv_add_u32 v13, s30, v13\nv_min_u32 v13, L_cold-{name}-4, v13\ns_mov_b64 exec, 0xff')
        A('global_load_dword v255, v13, s[24:25]')
        A('s_mov_b64 exec, -1')
    srd(A, 44, 8, 0x4000)
    A(f's_lshl_b32 s24, s35, 11\ns_mov_b32 m0, {WPH}')
    for i in range(2): A(f'buffer_load_dwordx4 v8, s[44:47], s24 offen offset:{i*1024} lds')
    A(f'v_mov_b32 v12, {TAG}\nv_lshl_add_u32 v12, v1, 2, v12\ns_mov_b64 exec, 0xffff\nds_write_b32 v12, v16\ns_mov_b64 exec, -1')
    A.label('L_d1'); A.fence()
    A('s_cmp_lg_u32 s41, 1\ns_cbranch_scc1 L_d2\ns_cmp_ge_u32 s2, 32\ns_cbranch_scc1 L_d2')
    A(f's_mul_i32 s24, s2, {ACCB}\ns_add_u32 s24, s24, {WS_ACC}')
    A('buffer_store_dwordx4 v[16:19], v8, s[52:55], s24 offen sc1\nbuffer_store_dwordx4 v[16:19], v8, s[52:55], s24 offen offset:1024 sc1')
    A(f's_add_u32 s24, s24, {AUX}\ns_lshr_b32 s25, s2, 1\ns_lshl_b32 s25, s25, {RBS}\ns_and_b32 s3, s2, 1\ns_lshl_b32 s3, s3, 13\ns_add_u32 s25, s25, s3\ns_add_u32 s25, s25, {WS_F1}\ns_add_u32 s3, s25, 4096')
    A('buffer_store_dwordx4 v[16:19], v8, s[52:55], s3 offen sc1\nbuffer_store_dwordx4 v[16:19], v8, s[52:55], s3 offen offset:1024 sc1')
    if OPT['fw']:
        for i in range(4): A(f'buffer_store_dwordx4 v[16:19], v8, s[52:55], s25 offen offset:{i*1024} sc1')
    A('s_mov_b64 exec, 0xff00')
    for r in range(4): A(f'v_mov_b32 v{20+r}, 1.0')
    A('s_mov_b64 exec, -1')
    A('buffer_store_dwordx4 v[20:23], v8, s[52:55], s24 offen sc1')
    A.label('L_d2'); A.fence()
    DYN = OPT['pol'] == 2
    if DYN:
        A(f's_cmp_lg_u32 s41, 2\ns_cbranch_scc1 L_d21\ns_sub_u32 s24, s2, {OPT["vb"]}\ns_cmp_ge_u32 s24, 32\ns_cbranch_scc1 L_d21')
        A(f's_and_b32 s24, s37, 2\ns_add_u32 s24, s24, s37\ns_add_u32 s24, s24, s24\ns_and_b32 s24, s24, 10\ns_lshl_b32 s24, s24, 11\ns_lshl_b32 s26, s36, 8\ns_add_u32 s26, s26, s24\ns_add_u32 s26, s26, {WS_PR}')
        A('s_buffer_load_dword s60, s[52:55], s26 glc\ns_buffer_load_dword s60, s[52:55], s26 offset:8192 glc')
        A.label('L_d21'); A.fence()
    A('s_cmp_lg_u32 s41, 3\ns_cbranch_scc1 L_d3\ns_cmp_lg_u32 s2, 0\ns_cbranch_scc1 L_d3')
    A(f's_mov_b32 s24, {WS_EP}\nbuffer_load_dword v{PD}, v16, s[52:55], s24 offen sc1')
    A.label('L_d3'); A.fence()
    wo_srd(A)
    stamp(A, 0)
    common(A)
    A('v_bfe_u32 v12, v1, 1, 3\nv_xor_b32 v12, v12, v11\nv_lshlrev_b32 v12, 4, v12')
    A('s_lshl_b32 s24, s42, 13\nv_lshl_add_u32 v13, v10, 7, s24')
    for ks in range(4): A(f'v_xor_b32 v14, {ks*32}, v12\nv_add_u32 v{2+ks}, v13, v14')
    for ks in range(4): A(f'v_add_u32 v{48+ks}, 0x10000, v{2+ks}')
    tr_lane(A, 12, 7, 3)
    A('v_bfe_u32 v13, v1, 3, 1\nv_xor_b32 v13, s43, v13\nv_lshl_add_u32 v12, v13, 6, v12')
    A('v_bfe_u32 v13, v1, 4, 1\nv_lshl_add_u32 v12, v13, 5, v12\nv_and_b32 v14, 3, v1\nv_lshl_add_u32 v12, v14, 3, v12')
    A(f'v_add_u32 v6, 16384, v12\nv_add_u32 v7, {16384 + 65536}, v12')
    tr_lane(A, 9, 5, 2)
    A(f'v_lshl_add_u32 v9, v14, 3, v9\ns_lshl_b32 s24, s43, 10\ns_add_u32 s24, s24, {WPH}\nv_add_u32 v9, s24, v9')
    A(f'v_mov_b32 v15, {TAG}')
    A(f's_lshl_b32 s24, s39, {RBS}\ns_lshl_b32 s25, s40, 8\ns_add_u32 s11, s25, s24\ns_add_u32 s11, s11, {WS_F1}')
    A(f's_lshl_b32 s33, s40, 14\ns_add_u32 s33, s33, s24\ns_lshl_b32 s25, s43, 12\ns_add_u32 s33, s33, s25\ns_mul_i32 s25, s42, {TWIN}\ns_add_u32 s33, s33, s25\ns_mul_i32 s27, s41, 12288\ns_add_u32 s27, s27, {KL}')
    A(f's_min_u32 s24, s39, 2\ns_lshl_b32 s24, s24, {RBS}\ns_sub_u32 s9, s11, s24\ns_min_u32 s24, s24, {1 << RBS}\ns_sub_u32 s10, s11, s24')
    A('s_cmp_eq_u32 s38, 1\ns_cbranch_scc1 L_cpA')
    A('v_and_b32 v12, 15, v1\nv_lshlrev_b32 v12, 4, v12\nv_lshl_add_u32 v12, v11, 8, v12\nv_lshl_add_u32 v52, v13, 12, v12')
    A(f's_lshl_b32 s25, s42, 11\nv_mul_u32_u24 v13, 12288, v13\nv_add_u32 v12, v12, v13\ns_add_u32 s24, s25, {VL + 8192}\nv_add_u32 v53, s24, v12')
    A(f's_add_u32 s24, s25, {KL + 8192}\nv_add_u32 v54, s24, v8\ns_add_u32 s30, s32, 4096\ns_add_u32 s31, s32, {TWIN}')
    A('s_branch L_cpd')
    A.label('L_cpA'); A.fence()
    for r in range(0, 32, 2): A(f'v_mov_b64 v[{168+r}:{169+r}], v[{ONES}:{ONES+1}]')
    A(f's_mul_i32 s30, s41, {PHI_WAVE}\ns_add_u32 s30, s30, {PHI}')
    A('v_and_b32 v12, 1, v1\nv_lshlrev_b32 v12, 4, v12\nv_mov_b32 v13, 0x3f80\nv_lshlrev_b32 v13, v12, v13')
    A('v_lshlrev_b32 v12, 4, v11\nv_sub_u32 v12, v10, v12\nv_lshrrev_b32 v12, 1, v12')
    for r in range(8): A(f'v_cmp_eq_u32 vcc, {r}, v12\nv_cndmask_b32 v{SEL+r}, 0, v13, vcc')
    A('v_lshlrev_b32 v54, 2, v10\nv_lshl_add_u32 v54, v11, 9, v54')
    A(f'v_add_u32 v52, s30, v8\ns_xor_b32 s24, s41, 2\ns_mul_i32 s25, s24, {PHI_WAVE}\ns_add_u32 s25, s25, {PHI}\nv_add_u32 v53, s25, v8')
    A(f's_lshl_b32 s24, s35, 2\ns_lshl_b32 s25, s43, 1\ns_add_u32 s24, s24, s25\ns_add_u32 s24, s24, s42\ns_mul_i32 s31, s24, {ACCB}\ns_add_u32 s31, s31, {WS_ACC}')
    A.label('L_cpd'); A.fence()
    def padwalk(k):
        if not OPT['pads']: return
        A('s_mov_b64 exec, 0')
        for w in range(3): A(f's_cmp_eq_u32 s41, {w}\ns_cbranch_scc1 L_chain{4*k+w}')
        A(f's_branch L_chain{4*k+3}')
        A.label(f'L_padret{k}')
        A('s_mov_b64 exec, -1')
    def duties():
        A('s_cmp_lt_u32 s2, 32\ns_cbranch_scc1 L_d4')
        A.label('L_d5')
        def f():
            A.label('L_d4'); A.fence(); A.raw(';PAD')
            A('s_mov_b64 exec, 1\ns_cmp_lg_u32 s41, 1\ns_cbranch_scc1 L_d6')
            A(f's_waitcnt vmcnt(0)\nbuffer_atomic_add v{V1}, v{V0}, s[56:59], 0 offen offset:4')
            A.label('L_d6')
            A('s_cmp_lg_u32 s41, 3\ns_cbranch_scc1 L_d7\ns_cmp_lg_u32 s2, 0\ns_cbranch_scc1 L_d7')
            A(f's_waitcnt vmcnt(0)\nv_add_u32 v{PD}, 8, v{PD}\nv_and_b32 v{PD}, -8, v{PD}\nv_max_u32 v{PD}, 8, v{PD}\nv_or_b32 v{PD}, s99, v{PD}\ns_mov_b32 s24, {WS_EP}')
            A(f'buffer_store_dword v{PD}, v{V0}, s[56:59], 0 offen sc1')
            A(f'buffer_store_dword v{PD}, v{V0}, s[52:55], s24 offen sc1')
            A.label('L_d7')
            A('s_mov_b64 exec, -1\ns_branch L_d5')
        OOL.insert(0, f)
    def clear():
        if not OPT['ua']: return
        A(f'v_mov_b64 v[56:57], -1\nv_mov_b64 v[58:59], -1\ns_add_u32 s24, {S_OA}, 0x4000\ns_add_u32 s25, {S_OA}, 0x200000\ns_add_u32 s3, {S_OA}, 0x204000')
        for so in (S_OA, 's24', 's25', 's3'): A(f'buffer_store_dwordx4 v[56:59], v8, s[52:55], {so} offen sc1')
    if DYN:
        A(f's_cmp_lg_u32 s41, 2\ns_cbranch_scc1 L_d8\ns_sub_u32 s24, s2, {OPT["vb"]}\ns_cmp_ge_u32 s24, 32\ns_cbranch_scc1 L_d8\ns_mov_b64 s[24:25], -1\ns_waitcnt lgkmcnt(0)')
        stamp(A, 27)
        A('s_memtime s[48:49]')
        for r in range(2 * OPT['nrep']):
            a, b = (48, 50) if r % 2 == 0 else (50, 48)
            A(f's_waitcnt lgkmcnt(0)\ns_buffer_load_dword s60, s[52:55], s26 offset:{8192 * (r % 2)} glc\ns_waitcnt lgkmcnt(0)\ns_memtime s[{b}:{b+1}]\ns_waitcnt lgkmcnt(0)')
            A(f's_sub_u32 s3, s{b}, s{a}\ns_min_u32 s{24 + r % 2}, s{24 + r % 2}, s3')
        A('s_cmp_gt_u32 s24, s25\ns_cselect_b32 s3, 2, 0\ns_xor_b32 s3, s3, s36\ns_and_b32 s3, s3, 2\ns_lshl_b32 s3, s3, 15\ns_add_u32 s3, s3, 1')
        A(f'v_mov_b32 v{PD}, s3\ns_mov_b64 exec, 1\nbuffer_atomic_add v{PD}, v{V0}, s[56:59], 0 offen offset:4\ns_mov_b64 exec, -1')
        stamp(A, 28)
        A.label('L_d8'); A.fence()
    padwalk(0)
    if OPT['pw2'] < 0: padwalk(1)
    if OPT['dpos'] < 0: duties()
    A('s_branch L_cons')
    A.label('L_load'); A.fence()
    for r in (52, 54, 242, 244, 246): A(f'v_mov_b64 v[{r}:{r+1}], 0')
    A(f'v_bfe_u32 v12, v1, 1, 3\nv_xor_b32 v12, v12, v11\nv_lshlrev_b32 v12, 4, v12')
    A('v_lshl_add_u32 v13, v10, 7, s30')
    for ks in range(4): A(f'v_xor_b32 v14, {ks*32}, v12\nv_add_u32 v{2+ks}, v13, v14')
    for ks in range(4): A(f'v_add_u32 v{12+ks}, 0x10000, v{2+ks}')
    def later(E):
        common(E)
        tr_lane(E, 6, 7, 3)
        E('v_bfe_u32 v7, v1, 3, 1\nv_xor_b32 v7, s38, v7\nv_lshl_add_u32 v6, v7, 6, v6')
        E('v_bfe_u32 v7, v1, 4, 1\nv_lshl_add_u32 v6, v7, 5, v6\nv_and_b32 v7, 3, v1\nv_lshl_add_u32 v7, v7, 3, v6\nv_xor_b32 v6, 64, v7')
        E(f's_mul_i32 s9, s38, {2*TWIN}\ns_sub_u32 s9, {TWIN}, s9\ns_add_u32 s9, s9, {S_QG}')
    LT.extend(stream(later))
    LA = [int(c, 36) for c in str(OPT['la'])]
    XF = 64
    for s in range(8):
        assert LA[s] <= 16
        issue(8*s + 8 + LA[s])
        vq.wait(('st', s))
        A('s_waitcnt lgkmcnt(0)\ns_barrier')
        stamp(A, 32 + s)
        for ks in range(4):
            A(f'ds_read_b128 {vr(XF + 16*s + 4*ks, 4)}, v{(2 if RING[s % 4] < 65536 else 12) + ks} offset:{RING[s % 4] & 65535}')
        if s == OPT['tagl']: A('s_buffer_load_dwordx2 s[60:61], s[56:59], 0')
        if s == 6:
            assert not LT and OPT['tagl'] < 6
            TST = f's_and_b32 s24, s61, 0xffff\ns_cmp_lg_u32 s60, 0\ns_cselect_b32 s24, s24, 0\ns_cmp_lt_u32 s24, {64 if DYN else 32}'
            A(TST + '\ns_cbranch_scc1 L_tgw')
            A.label('L_tgd')
            A(f'v_mov_b32 v22, {TAG}\nv_mov_b32 v24, s60\nv_mov_b32 v25, s61\nds_write_b64 v22, v[24:25]')
            place(A, 'l')
            def tgw():
                A.label('L_tgw'); A.fence()
                A(f's_mov_b32 s3, {SPIN_MAX}')
                A.label('L_tg')
                if OPT['dg']: A(f's_mov_b64 exec, 1\nbuffer_atomic_add v{V1}, v{V0}, s[56:59], 0 offen offset:8\ns_mov_b64 exec, -1')
                A(f's_sleep 1\nbuffer_load_dwordx2 v[24:25], v{V0}, s[56:59], 0 offen sc1\ns_waitcnt vmcnt(0)\nv_readfirstlane_b32 s60, v24\nv_readfirstlane_b32 s61, v25')
                A(TST + '\ns_cselect_b32 s3, s3, 0\ns_sub_u32 s3, s3, 1\ns_cbranch_scc0 L_tg\ns_branch L_tgd')
            OOL.append(tgw)
    if OPT['e0w'] == 0:
        issue(OPT['e0n'])
        A(ROLE + 's_cbranch_scc1 L_wrong\ns_waitcnt lgkmcnt(0)\ns_barrier')
    issue(80)
    wo_srd(A)
    def awtouch():
        A('s_lshr_b32 s24, s37, 1\ns_lshl_b32 s24, s24, 2\ns_add_u32 s24, s24, s43\ns_xor_b32 s25, s38, 1\ns_lshl_b32 s25, s25, 6\ns_add_u32 s24, s24, s25\ns_lshl_b32 s24, s24, 13\nv_lshl_add_u32 v28, v1, 7, s24')
        A('buffer_load_dword v255, v28, s[44:47], 0 offen'); vq.push('aw')
    if OPT['aw'] == 1: awtouch()
    A(f's_cmp_eq_u32 s38, 0\ns_cselect_b32 s27, 0x{f2u(0.25*LOG2E):x}, 1.0')
    vq.wait(('st', 7 + max(1, OPT['e0w'])))
    if OPT['e0w']: A('s_waitcnt lgkmcnt(0)\ns_barrier')
    else:
        lds_add(A, C_WQ, 22)
        lds_spin(A, C_WQ, 4, 22, 23, sleep=False)
    stamp(A, 40)
    stamp(A, 42); stamp(A, 2)
    if OPT['lprio']:
        if not OPT['aprio']: A('s_cmp_eq_u32 s38, 1\ns_cbranch_scc1 L_noprio')
        A(f's_setprio {OPT["lprio"]}')
        A.label('L_noprio')
    lq = Q(A, 'lgkmcnt', 15)
    NR = 6; WF = 192; QD = OPT['qd']
    def qread(m):
        n = m % 32; f = WF + 4 * (m % NR)
        for rd in range(2):
            A(f'ds_read_b64_tr_b16 v[{f+2*rd}:{f+2*rd+1}], v{6 + m//32} offset:{n*2048 + rd*512}'); lq.push(('q', m))
    for m in range(QD): qread(m)
    ep = []
    for h in range(3):
        rr = range(3*h, min(3*h + 3, 8))
        ep += [f'v_mul_f32 v{32+2*r+e}, s27, v{32+2*r+e}' for r in rr for e in range(2)] + [f'v_cvt_pk_bf16_f32 v{16+GR[r]}, v{32+2*r}, v{33+2*r}' for r in rr]
        ep += [f'buffer_store_dwordx4 {vr(16+4*h,4)}, v8, s[52:55], s9 offen offset:{h*1024} sc1']
    for m in range(64):
        lq.wait(('q', m))
        acc = 32 + 16 * (m // 32)
        A(mfma32(acc, WF + 4*(m % NR), XF + 4*(m % 32), acc if m % 32 else None))
        if m == 16 - QD - 4 and OPT['e0w'] < 2:
            vq.wait(('st', 9))
            lds_add(A, C_WQ2, 22); lq.push('cnt')
        if m + QD == 16 and OPT['e0w'] < 2:
            lds_spin(A, C_WQ2, 4, 22, 23, sleep=False); lq.q = []
            stamp(A, 41); stamp(A, 22)
        if m + QD < 64: qread(m + QD)
        if m >= 32:
            for _ in range(OPT['epn']):
                if ep: A(ep.pop(0))
        if m == OPT['aw'] and m > 1: awtouch()
        if m == 31: stamp(A, 23)
        if m == 33: stamp(A, 24)
        if m == 20:
            for r in (19, 23, 26, 27): A(f'v_mov_b32 v{r}, s60')
        if m == 44:
            tr_lane(A, 15, 5, 2)
            A(f'v_and_b32 v14, 3, v1\nv_lshl_add_u32 v15, v14, 3, v15\ns_lshl_b32 s24, s38, 10\ns_add_u32 s24, s24, {WPH}\nv_add_u32 v15, s24, v15')
        if m == 46:
            for hs in range(2):
                for rd in range(2): A(f'ds_read_b64_tr_b16 v[{16+4*hs+2*rd}:{17+4*hs+2*rd}], v15 offset:{hs*512 + rd*256}'); lq.push('wphi')
        if m == OPT['qpoll'] or m == OPT['bq']:
            if OPT['qpoll'] != OPT['bq']: A(f's_cmp_eq_u32 s38, {0 if m == OPT["qpoll"] else 1}\ns_cbranch_scc1 L_noqp{m}')
            gran_issue(A, 32, 2)
            A.label(f'L_noqp{m}')
    stamp(A, 4)
    if OPT['lprio']: A('s_setprio 0')
    A(f's_lshl_b32 s24, s43, 10\nv_add_u32 v15, s24, v{QRD}')
    A('s_cmp_eq_u32 s38, 1\ns_cbranch_scc1 L_qa')
    for r in range(16): A(f'v_mul_f32 v{48+r}, s27, v{48+r}')
    for r in range(8): A(f'v_cvt_pk_bf16_f32 v{24+r}, v{48+2*r}, v{49+2*r}')
    A(f'ds_write_b128 v{QRD}, v[24:27]')
    if OPT['bq'] == 64: gran_issue(A, 32, 2)
    A('s_waitcnt lgkmcnt(0)\ns_barrier')
    if OPT['bq'] == 65: gran_issue(A, 32, 2)
    if OPT['bt']:
        A('s_bfe_u32 s24, s37, 0x10001\ns_lshl_b32 s24, s24, 2\ns_add_u32 s24, s24, s43\ns_lshl_b32 s24, s24, 16\ns_lshr_b32 s25, s37, 2\ns_lshl_b32 s25, s25, 7\ns_add_u32 s24, s24, s25\nv_lshlrev_b32 v14, 10, v1')
        A('buffer_load_dword v255, v14, s[44:47], s24 offen')
    A.label('L_wo'); A.fence()
    stamp(A, 8)
    nwo = wo_dma(A, 8) + OPT['bt']
    A('s_cmp_eq_u32 s38, 1\ns_cbranch_scc1 L_att')
    gran_wait(A, 32, 2, 104, False, nwo)
    stamp(A, 7)
    A('s_branch L_qb')
    A.label('L_qa'); A.fence()
    A('s_nop 8')
    for r in range(8): A(f'v_cvt_pk_bf16_f32 v{104+r}, v{48+2*r}, v{49+2*r}')
    A.label('L_qb'); A.fence(); A('s_nop 1')
    for hs in range(2): A(mfma32(64+16*hs, 16+4*hs, 104+4*hs, None))
    def phiq(E, hs):
        p = 64 + 16 * hs
        dual_exp(E, p, p + 8, 96 + 2*hs)
        for m in range(8): E(f'v_cvt_pk_bf16_f32 v{(104 if hs == 0 else 48)+m}, v{p+2*m}, v{p+2*m+1}')
    for a, b in zip(stream(phiq, 0), stream(phiq, 1)): A(a); A(b)
    A(f'ds_write_b128 v15, v[104:107] offset:{PQX-QX}\nds_write_b128 v15, v[108:111] offset:{PQX-QX+1024}')
    lds_add(A, C_PQ, 14)
    stamp(A, 6)
    A('s_cmp_eq_u32 s38, 0\ns_cbranch_scc1 L_att')
    gran_wait(A, 32, 2, 24, True)
    A(f'ds_write_b128 v{QRD}, v[24:27]')
    stamp(A, 7)
    A('s_waitcnt lgkmcnt(0)\ns_barrier')
    A('s_branch L_wo')
    A.label('L_cons'); A.fence(); A.raw(';PAD')
    stamp(A, 21)
    KA, VA = [96, 112], [128, 144]
    FS = [16, 32, 64, 80]
    lq = Q(A, 'lgkmcnt', 15)
    def reads(n):
        s, ks = divmod(n, 4); f = FS[n % 4]
        xa, wa = (2, 6) if RING[s % 4] < 65536 else (48, 7)
        so = RING[s % 4] & 65535
        def rx(tt): return (f'ds_read_b128 v[{f+4*tt}:{f+4*tt+3}], v{xa+ks} offset:{so + tt*4096}', (n, 'x', tt))
        def rw(seg, rd): return (f'ds_read_b64_tr_b16 v[{f+8+4*seg+2*rd}:{f+9+4*seg+2*rd}], v{wa} offset:{so + seg*8192 + ks*2048 + rd*512}', (n, 'w', seg))
        return [rx(0), rw(0, 0), rw(0, 1), rx(1), rw(1, 0), rw(1, 1)]
    def mk(n, tt): return mfma32(KA[tt], FS[n % 4] + 8, FS[n % 4] + 4*tt, KA[tt] if n else None)
    def mv(n, tt): return mfma32(VA[tt], FS[n % 4] + 4*tt, FS[n % 4] + 12, VA[tt] if n else None)
    A('s_waitcnt lgkmcnt(0)\ns_barrier')
    stamp(A, 1)
    for n in range(2):
        for t, tag in reads(n): A(t); lq.push(tag)
    for n in range(28):
        nxt = reads(n + 2)
        newstage = (n % 4 == 2)
        k = 0
        for mi, (seg, tt) in enumerate([(0, 0), (0, 1), (1, 0), (1, 1)]):
            if newstage and mi == 0: lq.all()
            else: lq.wait((n, 'x', tt), (n, 'w', seg))
            A(mv(n, tt) if seg else mk(n, tt))
            if mi == 0 and n == OPT['pw2']: padwalk(1)
            if mi == 0 and n == OPT['dpos']: duties()
            if mi == 0 and n == OPT['clr']: clear()
            if newstage and mi == 0: A('s_barrier')
            for _ in range(2):
                if k < len(nxt):
                    t, tag = nxt[k]; A(t); lq.push(tag); k += 1
        if n == 20: A('s_waitcnt vmcnt(0)')
        if n == 23:
            for hs in range(2):
                for rd in range(2): A(f'ds_read_b64_tr_b16 v[{56+4*hs+2*rd}:{57+4*hs+2*rd}], v9 offset:{hs*512 + rd*256}'); lq.push('wphi')
        if n == 26:
            A('s_not_b64 exec, s[28:29]\nv_mov_b64 v[56:57], 0\nv_mov_b64 v[58:59], 0\ns_mov_b64 exec, s[28:29]\nv_mov_b64 v[60:61], 0\nv_mov_b64 v[62:63], 0\ns_mov_b64 exec, -1')
        if n == 27: A('ds_read_b64 v[12:13], v15'); lq.push('tag')
    if OPT['cprio']: A('s_setprio 2')
    r30, r31 = reads(30), reads(31)
    nxt = r30[:4] + r31[:4] + r30[4:] + r31[4:]
    for g, (n, tt) in enumerate([(n, tt) for n in range(28, 32) for tt in range(2)]):
        if g == min(OPT['e0pos'], 7): lq.all()
        else: lq.wait((n, 'x', tt), (n, 'w', 0))
        A(mk(n, tt))
        if g == OPT['e0pos']: A(ROLE + 's_cbranch_scc1 L_wrong\ns_barrier')
        for t, tag in nxt[3*g:3*g+3]: A(t); lq.push(tag)
        if g == 5: A('v_readfirstlane_b32 s60, v12\nv_readfirstlane_b32 s61, v13')
        if g == 7: place(A, 'c'); A('s_mov_b32 s61, s60')
    stamp(A, 2)
    A('s_cmp_eq_u32 s38, 1\ns_cbranch_scc1 L_epA')
    hist = list(A.hist)
    def weave(mf, fill, per):
        fill = list(fill)
        for m in mf:
            A(m)
            for _ in range(per):
                if fill: A(fill.pop(0))
        for f in fill: A(f)
    def cv(d, a): return [f'v_cvt_pk_bf16_f32 v{d+m}, v{a+2*m}, v{a+2*m+1}' for m in range(4)]
    ckv = [x for tt in range(2) for e in range(2) for x in cv(160+8*tt+4*e, KA[tt]+8*e)]
    sk = [f'buffer_store_dwordx4 {vr(160+8*tt+4*e,4)}, v8, s[52:55], {"s30" if e else "s32"} offen offset:{tt*1024} sc1' for tt in range(2) for e in range(2)]
    cvv = [[x for e in range(2) for x in cv(176+8*tt+4*e, VA[tt]+8*e)] for tt in range(2)]
    sv = [f'buffer_store_dwordx4 {vr(176+8*tt+4*e,4)}, v52, s[52:55], s31 offen offset:{tt*1024+e*512} sc1' for tt in range(2) for e in range(2)]
    A(mv(28, 0))
    weave([mv(n, 0) for n in range(29, 32)] + [mv(28, 1), mv(29, 1)], ckv, 4)
    weave([mv(30, 1), mv(31, 1)], cvv[0], 4)
    if OPT['cprio']: A('s_setprio 0')
    if OPT['e0pos'] >= 8: A('s_barrier')
    if OPT['bw']: lds_spin(A, C_WQ, 4, 2, 3)
    for x in sk + sv[:2] + cvv[1] + sv[2:]: A(x)
    stamp(A, 3)
    flag(A, 's34', 2)
    stamp(A, 4)
    halo_edge(A, 'B')
    A('s_cmp_eq_u32 s43, 1\ns_cbranch_scc1 L_epB1')
    for tt in range(2):
        for e in range(2):
            A(f'ds_write_b128 v54, {vr(160+8*tt+4*e,4)} offset:{e*12288 + tt*1024}')
            A(f'ds_write_b128 v53, {vr(176+8*tt+4*e,4)} offset:{tt*1024 + e*512}')
    A.label('L_epB1')
    A('s_cmp_eq_u32 s39, 0\ns_cbranch_scc1 L_epB2')
    halo_issue(A, 'B'); halo_fetch(A, 'B')
    A.label('L_epB2')
    A('s_waitcnt vmcnt(0) lgkmcnt(0)\ns_branch L_e1')
    A.label('L_epA'); A.hist = hist; A.raw(';PAD')
    KPK = {0: 160, 1: 208}
    VM = [168, 184]
    EM = {(0, 0): 16, (0, 1): 24, (1, 0): 32, (1, 1): 40}
    TM = {(0, 0): 2, (0, 1): 4, (1, 0): 12, (1, 1): 14}
    PT = {(0, 0): 64, (0, 1): 80, (1, 0): 96, (1, 1): 16}
    def phik(E, tt, hs, fast):
        p = KA[tt] + 8*hs; em = EM[(tt, hs)]; t = TM[(tt, hs)]; d = PT[(tt, hs)]
        if fast:
            for r in range(8): E(f'v_mul_f32 v{p+r}, s62, v{p+r}')
            for r in range(8): E(f'v_exp_f32_e64 v{em+r}, -v{p+r}\nv_exp_f32 v{p+r}, v{p+r}')
        else: dual_exp(E, p, em, t)
        E(f'v_add_f32 v{t}, v{p}, v{p+1}\nv_add_f32 v{t+1}, v{em}, v{em+1}')
        for r in range(2, 8): E(f'v_add_f32 v{t}, v{t}, v{p+r}\nv_add_f32 v{t+1}, v{t+1}, v{em+r}')
        E(f'v_permlane32_swap_b32 v{t}, v{t+1}\nv_add_f32 v{t}, v{t}, v{t+1}')
        if fast: E(f'v_max_f32 v6, v6, v{t}')
        E(f'v_rcp_f32 v{t}, v{t}\nv_mov_b32 v{t+1}, v{t}\nv_permlane32_swap_b32 v{t}, v{t+1}')
        for r in range(8): E(f'v_mul_f32 v{p+r}, v{p+r}, v{t}')
        for x in cv(p, p): E(x)
        for r in range(8):
            E(f'v_mul_f32 v{em+r}, v{em+r}, v{t+1}')
            if r == 1: E(mfma32(d, p, SEL, None))
        for x in cv(em, em): E(x)
    def phik2(E, tt, hs):
        d = PT[(tt, hs)]
        for x in cv(d, d) + cv(d + 4, d + 8): E(x)
    def tm2(tt): return [mfma32(PT[(tt, hs)], EM[(tt, hs)], SEL + 4, PT[(tt, hs)]) for hs in range(2)]
    def pair(fn, tt, *a): return [x for ab in zip(stream(fn, tt, 0, *a), stream(fn, tt, 1, *a)) for x in ab]
    ck = [cv(KPK[tt], KA[tt]) + cv(KPK[tt]+4, KA[tt]+8) for tt in range(2)]
    pm = [[mfma32(KA[tt], 56, KPK[tt], None), mfma32(KA[tt], 60, KPK[tt]+4, KA[tt])] for tt in range(2)]
    KV = [128, 144]
    def kvm(tt): return [mfma32(KV[hs], VM[hs] + 8*tt + 4*blk, PT[(tt, hs)] + 4*blk, KV[hs] if tt or blk else None) for blk in range(2) for hs in range(2)]
    A(mv(28, 0))
    weave([mv(28, 1), mv(29, 0)], ck[0], 4)
    weave(pm[0], ck[1], 4)
    for m in pm[1]: A(m)
    A(mv(29, 1))
    A('v_mov_b32 v6, 0')
    fast = bool(OPT['fastk'])
    S = [pair(phik, tt, fast) for tt in range(2)]
    vc = ['s_mov_b64 exec, s[28:29]'] + [x for tt in range(2) for x in cv(VM[0]+8*tt, VA[tt]) + cv(VM[0]+8*tt+4, VA[tt]+8)]
    vc += ['s_not_b64 exec, s[28:29]'] + [x for tt in range(2) for x in cv(VM[1]+8*tt, VA[tt]) + cv(VM[1]+8*tt+4, VA[tt]+8)] + ['s_mov_b64 exec, -1']
    D = 2 * OPT['stag']
    rest = [mv(30, 0), mv(30, 1), mv(31, 0), mv(31, 1)]
    L = len(S[0])
    tail0 = {L: tm2(0), L + 14: pair(phik2, 0), L + 18: kvm(0)[:2], L + 24: kvm(0)[2:]}
    assert D >= 26
    for i in range(0, L + D, 2):
        if i < L: A(S[0][i]); A(S[0][i+1])
        if rest and i % 4 == 2:
            A(rest.pop(0))
            if not rest and OPT['cprio']: A('s_setprio 0')
        if OPT['e0pos'] >= 8 and i == OPT['e0a']: A('s_barrier')
        if i == D - 2:
            halo_edge(A, 'A')
            for x in vc: A(x)
            stamp(A, 6)
        if i >= D: A(S[1][i-D]); A(S[1][i-D+1])
        for x in tail0.get(i, []): A(x)
    for m in tm2(1): A(m)
    if OPT['hf'] == 2: halo_issue(A, 'A')
    stamp(A, 3)
    A(f's_lshl_b32 s25, s41, 2\ns_add_u32 s25, s25, {TAG + C_PAIR}')
    if fast: A('v_cmp_nlt_f32 vcc, v6, s63\ns_cbranch_vccnz L_kexact'.replace('v6, s63', 's63, v6').replace('nlt', 'ngt'))
    for x in pair(phik2, 1): A(x)
    for m in kvm(1): A(m)
    A.label('L_kdone')
    if OPT['hf'] == 1: halo_issue(A, 'A')
    A('v_mov_b32 v6, s25\nv_xor_b32 v7, 8, v6')
    if fast:
        def kexact():
            A.label('L_kexact'); A.fence()
            A('s_nop 15')
            for tt in range(2):
                for m in pm[tt]: A(m)
            for tt in range(2):
                for x in pair(phik, tt, False) + tm2(tt) + pair(phik2, tt) + kvm(tt): A(x)
            A('s_branch L_kdone')
        COLD.append(kexact)
    A('s_nop 7')
    A('s_cmp_eq_u32 s42, 1\ns_cbranch_scc1 L_ex1')
    for i in range(2):
        if i == 1: A.label('L_ex1')
        keep, kz = (KV[0], KV[0] + 8) if i == 0 else (KV[1] + 8, KV[1])
        send, sz = (KV[1] + 8, KV[1]) if i == 0 else (KV[0], KV[0] + 8)
        A(f'ds_write_b128 v52, {vr(send,4)}\nds_write_b128 v52, {vr(send+4,4)} offset:1024\nds_write_b32 v52, v{sz} offset:2048')
        A(f'ds_write_b32 v6, v{V1}\ns_mov_b32 s3, {SPIN_MAX * 4}')
        A.label(f'L_exs{i}')
        A('ds_read_b32 v12, v7\nds_read_b128 v[32:35], v53\nds_read_b128 v[36:39], v53 offset:1024\nds_read_b32 v40, v53 offset:2048')
        A(f's_sub_u32 s3, s3, 1\ns_waitcnt lgkmcnt(0)\nv_cmp_eq_u32 vcc, 0, v12\ns_cselect_b64 vcc, 0, vcc\ns_cbranch_vccnz L_exs{i}')
        for r in range(9): A(f'v_add_f32 v{32+r}, v{keep + r if r < 8 else kz}, v{32+r}')
        if i == 0: A('s_branch L_exd')
    A.label('L_exd'); A.fence()
    stamp(A, 20)
    def atomics():
        for r in range(OPT['nat']): A(f'buffer_atomic_add_f32 v{32+r}, v54, s[52:55], s31 offen offset:{rowof(r,0)*128}')
        A(f's_mov_b32 exec_hi, 0\ns_add_u32 s31, s31, {AUX}')
        A(f'buffer_atomic_add_f32 v40, v54, s[52:55], s31 offen')
        A('s_mov_b64 exec, -1')
    if 'A' in OPT['sp']:
        if OPT['hpos'] == 0: halo_issue(A, 'A')
        atomics()
        stamp(A, 4)
        if OPT['hpos'] == 1: halo_issue(A, 'A')
        halo_fetch(A, 'A')
        A('s_cmp_lt_u32 s39, 2\ns_cbranch_scc0 L_c2\ns_waitcnt vmcnt(4)')
        A.label('L_c2')
        A('s_waitcnt vmcnt(12)')
        count_add(A, 's31', 256)
        stamp(A, 19)
        A('s_waitcnt vmcnt(1)')
    else:
        if OPT['hf']:
            A(f's_mov_b64 exec, 63\ns_waitcnt vmcnt(0)\nv_cmp_ne_u32 vcc, s60, v{PD}\ns_mov_b64 exec, -1\ns_cbranch_vccnz L_hlate')
            halo_dma(A, 'A', 'E')
            atomics()
            stamp(A, 4)
            A('s_waitcnt vmcnt(0)')
            count_add(A, 's31', 256)
            stamp(A, 19)
            A('s_branch L_e1')
            A.label('L_hlate'); A.fence()
        atomics()
        stamp(A, 4)
        halo_issue(A, 'A')
        A('s_waitcnt vmcnt(1)')
        count_add(A, 's31', 256)
        stamp(A, 19)
        halo_fetch(A, 'A', 1)
        A('s_waitcnt vmcnt(0)')
    A.label('L_e1'); A.fence()
    A(f's_lshl_b32 s24, s41, 10\nv_add_u32 v9, s24, v{QRD}')
    A('s_barrier')
    stamp(A, 8)
    A(f'ds_read_b128 v[28:31], v{QRD}')
    A.label('L_att'); A.fence(); A.raw(';PAD')
    if OPT['wprio']:
        A('s_cmp_lt_u32 s41, 4\ns_cbranch_scc1 L_wp\ns_setprio 1')
        A.label('L_wp')
    A('s_cmp_lt_u32 s39, 2\ns_cbranch_scc1 L_bslow')
    FA = bool(OPT['fasta'])
    bunit(A, False, FA, not OPT['nohook'], 'f')
    A.label('L_bdone'); A.fence()
    stamp(A, 11)
    if OPT['nohook']: A('s_branch L_fin2')
    O = OACC
    A(f's_add_u32 s24, {S_OA}, {TWIN}\ns_add_u32 s27, {S_C3}, 1024\ns_nop 9')
    if FA:
        A(f'v_pk_mul_f32 v[2:3], v[{O}:{O+1}], 0')
        for m in range(1, 4): A(f'v_pk_fma_f32 v[2:3], v[{O+2*m}:{O+2*m+1}], 0, v[2:3]')
        A(f'v_add_f32 v2, v2, v3\nv_add_f32 v2, v2, v{O+8}\nv_subrev_u32 v2, 0x{f2u(2.0**-60):x}, v2')
        A(f'v_cmp_lt_u32 vcc, 0x{f2u(2.0**60) - f2u(2.0**-60):x}, v2\ns_cbranch_vccnz L_bexact')
        A.label('L_bdone2')
    A(f'v_rcp_f32 v4, v{O+8}')
    for m in range(4): A(f'v_pk_mul_f32 v[{O+2*m}:{O+2*m+1}], v[{O+2*m}:{O+2*m+1}], v[4:5] op_sel_hi:[1,0]')
    for m in range(4): A(f'v_cvt_pk_bf16_f32 v{16+m}, v{O+2*m}, v{O+2*m+1}')
    A(f'buffer_store_dwordx4 v[16:19], v8, s[52:55], s24 offen sc1')
    UA = OPT['ua']
    if UA: count_add(A, 's27'); stamp(A, 12)
    A('s_cmp_ge_u32 s41, 4\ns_cbranch_scc1 L_nord')
    lds_spin(A, C_PQ, 4, 4, 5, sleep=False)
    A(f'ds_read_b128 v[48:51], v9 offset:{PQX-QX}\nds_read_b128 v[52:55], v9 offset:{PQX-QX+1024}')
    readout(A, 64, 180, 1 + UA + 16 // max(1, len(WD) + len(W0)) * sum(1 for x in W0 if x <= OPT['h2'])); readout2(A, 64, 180)
    A.label('L_nord')
    tr_lane(A, 6, 7, 2)
    A('v_and_b32 v7, 1, v1\nv_lshl_add_u32 v6, v7, 5, v6\nv_bfe_u32 v7, v1, 1, 1\nv_lshl_add_u32 v6, v7, 3, v6\nv_and_b32 v7, 16, v1\nv_add_u32 v6, v6, v7')
    A('s_lshr_b32 s24, s41, 2\ns_lshl_b32 s24, s24, 11\nv_bfe_u32 v7, v1, 3, 1\nv_lshl_add_u32 v6, v7, 6, v6\nv_add_u32 v2, s24, v6\nv_xor_b32 v3, 64, v2')
    assert OPT['wa'] and not UA and not W0
    OFR, PRE, AC = 16, 80, 208
    def wread(m):
        for rd in range(2): A(f'ds_read_b64_tr_b16 v[{PRE+4*m+2*rd}:{PRE+4*m+2*rd+1}], v{2+m%2} offset:{(m//2)*4096 + rd*1024}')
    lds_spin(A, C_WO, NWO, 12, 13, sleep=False)
    for m in range(OPT['npre']): wread(m)
    A('v_lshlrev_b32 v13, 10, v1\ns_waitcnt vmcnt(0)')
    SF = 'F' in OPT['sp']
    if not SF and not OPT['wf']: poll_issue(A, PD, V0, S_FC, count=16)
    A(f's_mov_b64 exec, 3\nbuffer_atomic_add v{V1}, v13, s[52:55], {S_C3} offen\ns_lshr_b32 s24, s41, 2\nv_mov_b32 v13, s24\ns_mov_b64 exec, 1\nds_add_u32 v12, v13 offset:{C_ATT}\ns_mov_b64 exec, -1')
    stamp(A, 13)
    if OPT['gp'] == 1: A('s_setprio 0')
    for m in range(OPT['npre'], 32): wread(m)
    A('v_and_b32 v9, 15, v1\nv_lshlrev_b32 v9, 11, v9\nv_and_b32 v14, 48, v1\nv_add_u32 v9, v9, v14')
    A(f's_and_b32 s24, s41, 3\ns_lshl_b32 s25, s24, 13\ns_add_u32 s25, s25, {PHI}\nv_add_u32 v4, s25, v8\ns_lshl_b32 s24, s24, 2\ns_add_u32 s24, s24, {TAG + C_PART}\nv_mov_b32 v5, s24')
    srd(A, 56, 18, 0x400000)
    A(f's_add_u32 s24, {S_FO}, 16384\ns_add_u32 s25, {S_FO}, 20480\ns_add_u32 s26, {S_FO}, 4096\ns_add_u32 s27, {S_OUT}, 32768')
    stamp(A, 25)
    def fpoll():
        if SF:
            sp_issue(A, [(48, S_FC, 0)]); sp_wait(A, [(48, S_FC, 0)], 's_cmp_lg_u32 s48, 16')
        else:
            if OPT['wf']: poll_issue(A, PD, V0, S_FC, count=16)
            poll(A, PD, V0, S_FC, count=16, inline=True, first=1 - OPT['wf'])
    if not OPT['wf']: fpoll()
    stamp(A, 12)
    if not OPT['w4w']: A('s_cmp_ge_u32 s41, 4\ns_cbranch_scc1 L_noatt')
    lds_spin(A, C_ATT, 4, 12, 13)
    A.label('L_noatt')
    if OPT['wf']: fpoll()
    stamp(A, 14)
    A('s_mov_b32 s30, 0')
    A.label('L_again')
    def oload(k): A(f'buffer_load_dwordx4 {vr(OFR+4*k,4)}, v8, s[52:55], {[S_FO,"s26","s24","s25"][k//4]} offen offset:{(k%4)*1024} sc1')
    TH = OPT['th']
    for k in range(TH): oload(k)
    if TH < 16:
        A('s_cmp_ge_u32 s41, 4\ns_cbranch_scc1 L_oall')
        for k in range(TH, 16): A(f's_waitcnt vmcnt({TH-1})'); oload(k)
        A('s_branch L_odone')
        A.label('L_oall')
        for k in range(TH, 16): oload(k)
        A.label('L_odone')
    A('s_waitcnt lgkmcnt(0)')
    for m in range(32):
        k, ct = m // 2, m % 2
        if ct == 0: A(f's_waitcnt vmcnt({15-k})')
        A(mfma32(AC+16*ct, PRE+4*m, OFR+4*k, AC+16*ct if k else None))
        if m == 30 and UA:
            A(f's_cmp_lg_u32 s30, 0\ns_cbranch_scc1 L_acked\ns_mov_b64 exec, 3\nv_lshlrev_b32 v12, 15, v1\nbuffer_atomic_add v{V1}, v12, s[52:55], {S_C3} offen offset:64\ns_mov_b64 exec, -1')
            A.label('L_acked'); A.hist = A.hist[:-4]
        if m == OPT['pr']:
            assert m >= 17
            A(f's_cmp_lt_u32 s41, 4\ns_cbranch_scc1 L_nopr\ns_mov_b32 s3, {SPIN_MAX * 4}')
            A.label('L_prs')
            A('ds_read_b32 v12, v5\ns_sub_u32 s3, s3, 1\ns_waitcnt lgkmcnt(0)\nv_cmp_eq_u32 vcc, 0, v12\ns_cselect_b64 vcc, 0, vcc\ns_cbranch_vccnz L_prs')
            stamp(A, 15)
            for i in range(8): A(f'ds_read_b128 {vr(OFR+4*i,4)}, v4 offset:{i*1024}')
            A.label('L_nopr')
    stamp(A, 16)
    if UA:
        A(f'v_cmp_u_f32 vcc, v{AC}, v{AC}\ns_cbranch_vccnz L_late')
        A.label('L_late2')
        def late():
            A.label('L_late'); A.fence()
            A('s_cmp_lg_u32 s30, 0\ns_cbranch_scc1 L_late2\ns_mov_b32 s30, 1\ns_waitcnt lgkmcnt(0)')
            poll_issue(A, PD, V0, S_FC, count=16, off=64)
            poll(A, PD, V0, S_FC, count=16, off=64, inline=True)
            A('s_branch L_again')
        COLD.append(late)
    A('s_cmp_ge_u32 s41, 4\ns_cbranch_scc1 L_fin')
    for i in range(8): A(f'ds_write_b128 v4, {vr(AC+4*i,4)} offset:{i*1024}')
    A(f'ds_write_b32 v5, v{V1}\ns_waitcnt lgkmcnt(0)\ns_branch L_fin2')
    A.label('L_fin')
    A('s_waitcnt lgkmcnt(0)' + ('' if UA else '\ns_nop 7'))
    for ct in range(2):
        for r in range(0, 16, 2): A(f'v_pk_add_f32 v[{AC+16*ct+r}:{AC+16*ct+r+1}], v[{AC+16*ct+r}:{AC+16*ct+r+1}], v[{OFR+16*ct+r}:{OFR+16*ct+r+1}]')
        b = 48 + 8 * ct
        for m in range(8): A(f'v_cvt_pk_bf16_f32 v{b+m}, v{AC+16*ct+2*m}, v{AC+16*ct+2*m+1}')
        for m in range(4): A(f'v_permlane16_swap_b32 v{b+m}, v{b+4+m}')
        for h in range(2): A(f'buffer_store_dwordx4 {vr(b+4*h,4)}, v9, s[56:59], {"s27" if h else S_OUT} offen offset:{ct*64} {OST}')
    A.label('L_fin2')
    stamp_flush(A, 's[52:55]', 's41')
    A.label('L_end'); A.fence()
    A('s_endpgm')
    A.label('L_bslow'); A.fence(); A.raw(';PAD')
    bunit(A, True, FA, not OPT['nohook'], 's')
    A('s_branch L_bdone')
    for f in OOL: f()
    A.label('L_cold')
    if FA:
        A.label('L_bexact'); A.fence()
        bunit(A, True, False, False, 'x')
        A('s_nop 11\ns_branch L_bdone2')
    for f in COLD: f()
    wrong(A)

def readout(A, R1, R2, n):
    A(f's_waitcnt vmcnt({n})')
    for m in range(8): A(f'v_cvt_pk_bf16_f32 v{32+m}, v{32+2*m}, v{33+2*m}')
    if n: A('s_waitcnt lgkmcnt(0)')
    A(mfma32(R1, 32, 48, None)); A(mfma32(R2, 36, 52, None))
def readout2(A, R1, R2):
    A(f'v_mov_b32 v6, 0x{f2u(1e-6):x}')
    A(f'v_rcp_f32 v4, v{R1+9}\nv_rcp_f32 v5, v{R2+9}')
    A(f'v_fmac_f32 v6, v{R1+8}, v4\nv_fmac_f32 v6, v{R2+8}, v5')
    A('v_rcp_f32 v6, v6')
    A('v_mul_f32 v4, v4, v6\nv_mul_f32 v5, v5, v6')
    for r in range(8): A(f'v_mul_f32 v{R1+r}, v{R1+r}, v4')
    for r in range(8): A(f'v_fmac_f32 v{R1+r}, v{R2+r}, v5')
    for m in range(4): A(f'v_cvt_pk_bf16_f32 v{20+m}, v{R1+2*m}, v{R1+2*m+1}')
    A(f'buffer_store_dwordx4 v[20:23], v8, s[52:55], {S_OA} offen sc1')
    if OPT['ua']: count_add(A, S_C3)
    if OPT['wprio']: A('s_setprio 0')
    stamp(A, 17)

def bunit(A, checks, fast, hooks, sfx):
    lq = Q(A, 'lgkmcnt', 15)
    KF = {j: 144 + 4 * j for j in range(9)}
    M, X, Y, Z, NM = 64, 80, 96, 112, 128
    O = OACC
    order = [8, 0, 7, 6, 5, 4, 3, 2, 1]
    def kvload():
        for m in range(4): A(f'buffer_load_dwordx4 {vr(32+4*m,4)}, v{KVOFF}, s[52:55], {S_ACC} offen offset:{16*m} sc1')
    def hook(j):
        stamp(A, 58 - j)
        if j + 100 == OPT['clr'] and OPT['ua']:
            assert j > OPT['h2']
            A(f's_cmp_ge_u32 s41, 4\ns_cbranch_scc1 L_nclr{sfx}')
            A(f'v_mov_b64 v[56:57], -1\nv_mov_b64 v[58:59], -1\ns_add_u32 s24, {S_OA}, 0x4000\ns_add_u32 s25, {S_OA}, 0x200000\ns_add_u32 s3, {S_OA}, 0x204000')
            for so in (S_OA, 's24', 's25', 's3'): A(f'buffer_store_dwordx4 v[56:59], v8, s[52:55], {so} offen sc1')
            A.label(f'L_nclr{sfx}')
        same = (OPT['hp'], OPT['h2']) == (OPT['ap'], OPT['a2'])
        for ty, (hp, h2) in enumerate([(OPT['hp'], OPT['h2']), (OPT['ap'], OPT['a2'])][:1 if same else 2]):
            if j not in (hp, h2) and not (same and j in W0): continue
            A((f's_cmp_ge_u32 s41, 4' if same else f's_cmp_lg_u32 s20, {ty}') + f'\ns_cbranch_scc1 L_hg0{ty}{j+1}{sfx}')
            if j == hp:
                A(f's_mov_b64 exec, 3\nv_lshlrev_b32 v5, 11, v1\nv_add_u32 v5, {AUX}, v5')
                poll_issue(A, PD, 5, S_ACC, count=16, off=256)
                A('s_mov_b64 exec, -1')
            if j == h2:
                A('s_mov_b64 exec, 3')
                poll(A, PD, 5, S_ACC, count=16, off=256, first=16 // max(1, len(WD) + len(W0)) * sum(1 for x in W0 if h2 < x <= hp))
                lds_add(A, C_KV, 4)
                stamp(A, 10)
                kvload()
            assert same or not W0
            wo_dma(A, j, 0)
            A.label(f'L_hg0{ty}{j+1}{sfx}')
        if j in WD or j in (OPT['g2'], OPT['gr'], OPT['gr'] - 1, OPT['gpp']):
            A(f's_cmp_lt_u32 s41, 4\ns_cbranch_scc1 L_hg1{j+1}{sfx}')
            if OPT['gp'] and j == OPT['gpp']: A('s_setprio 1')
            wo_dma(A, j)
            if j == OPT['gr']: readout(A, R1, 180, 0)
            if j == OPT['gr'] - 1: readout2(A, R1, 180)
            if j == OPT['g2']:
                assert min(WD + [8]) > j
                if WD:
                    A('s_waitcnt vmcnt(0)')
                    lds_add(A, C_WO, 4)
                lds_spin(A, C_KV, 4 if OPT['ua'] and OPT['clr'] >= 100 else 1, 4, 5)
                stamp(A, 10)
                kvload()
            A.label(f'L_hg1{j+1}{sfx}')
    R1 = M
    if hooks: stamp(A, 50)
    for j in order: A(f'ds_read_b128 {vr(KF[j],4)}, v{KRD} offset:{j*1024}'); lq.push(('k', j))
    buf = {8: M, 0: X, 7: Y, 6: Z, 5: NM, 4: X, 3: Y, 2: Z, 1: NM}
    def qk(j, dst):
        lq.wait(('k', j))
        A(mfma32(dst, KF[j], 28, None))
    def hook0():
        if hooks: stamp(A, 9)
    if fast:
        qk(8, M)
        if checks:
            A('v_mov_b32 v2, 0xff800000')
            for r in range(0, 16, 2): A(f'v_mov_b64 v[{NM+r}:{NM+r+1}], 0')
        else: qk(0, NM)
    else:
        for j in (8, 0, 7, 6, 5): qk(j, buf[j])
        if checks:
            A(f's_cmp_ge_u32 {S_T}, 8\ns_cbranch_scc1 L_t0{sfx}\ns_nop 7')
            for r in range(16): A(f'v_mov_b32 v{X+r}, 0xff800000')
            A.label(f'L_t0{sfx}'); A('s_nop 7')
        for r in range(16): A(f'v_cndmask_b32_e64 v{M+r}, v{X+r}, v{M+r}, s[{64+2*r}:{65+2*r}]')
        qk(4, buf[4])
        A(f'v_max_f32 v2, v{M}, v{M+1}\nv_max_f32 v3, v{M+2}, v{M+3}')
        for m in range(1, 4): A(f'v_max3_f32 v2, v2, v{M+4*m}, v{M+4*m+1}\nv_max3_f32 v3, v3, v{M+4*m+2}, v{M+4*m+3}')
        for j in (7, 6, 5, 4, 3, 2, 1):
            b = buf[j]
            if checks: A(f's_cmp_lt_u32 {S_T}, {8-j}\ns_cbranch_scc1 L_bm{sfx}')
            for m in range(4): A(f'v_max3_f32 v2, v2, v{b+4*m}, v{b+4*m+1}\nv_max3_f32 v3, v3, v{b+4*m+2}, v{b+4*m+3}')
            if j - 4 >= 1: qk(j - 4, buf[j - 4])
        if checks:
            A.label(f'L_bm{sfx}'); A.fence(); A('s_waitcnt lgkmcnt(0)\ns_nop 15'); lq.q = []
        A('v_max_f32 v2, v2, v3\nv_mov_b32 v3, v2\nv_permlane32_swap_b32 v2, v3\nv_max_f32 v2, v2, v3')
        hook0()
        A(f'v_sub_f32 v{NM}, 0, v2\nv_sub_f32 v{NM+1}, 0, v2')
        for r in range(2, 16, 2): A(f'v_mov_b64 v[{NM+r}:{NM+r+1}], v[{NM}:{NM+1}]')
    vs = [0]
    def vreads(js):
        A('s_mov_b64 exec, s[28:29]')
        out = {}
        for j in js:
            for blk in range(2):
                st = VRING + 4 * (vs[0] % 4); vs[0] += 1
                A(f'ds_read_b128 {vr(st,4)}, v{VRD} offset:{j*1024 + blk*512}'); lq.push(('v', j, blk)); out[(j, blk)] = st
        A('s_mov_b64 exec, -1')
        return out
    first = [True]
    def pv(j, blk, vreg, p):
        def f():
            lq.wait(('v', j, blk))
            A(mfma32(O, vreg, p, None if first[0] else O))
            first[0] = False
        return f
    buf2 = {7: X, 6: Y, 5: Z, 4: X, 3: Y, 2: Z, 1: X}
    def qk2(j):
        def f():
            if checks:
                uid[0] += 1; n = uid[0]
                A(f's_cmp_lg_u32 {S_T}, {7-j}\ns_cbranch_scc1 L_ni{n}\ns_nop 7')
                for r in range(16): A(f'v_mov_b32 v{NM+r}, 0xff800000')
                A.label(f'L_ni{n}'); A.fence(); A('s_nop 1')
            lq.wait(('k', j))
            A(mfma32(buf2[j], KF[j], 28, None if fast and not checks else NM))
        return f
    def tile(b, pend, pre=()):
        ops = list(pre) + [f'v_exp_f32 v{b+r}, v{b+r}' for r in range(16)] + [f'v_cvt_pk_bf16_f32 v{b+m}, v{b+2*m}, v{b+2*m+1}' for m in range(8)]
        n0 = len(pre); step = max(1, 16 // max(1, len(pend)))
        pos = {n0 + 1 + i * step: f for i, f in enumerate(pend)}
        for i, o in enumerate(ops):
            if i in pos: pos[i]()
            A(o)
    vv = vreads([8, 0])
    if fast: pre = [f'v_cndmask_b32_e64 v{M+r}, v{2 if checks else NM+r}, v{M+r}, s[{64+2*r}:{65+2*r}]' for r in range(16)]
    else: pre = [f'v_sub_f32 v{M+r}, v{M+r}, v2' for r in range(16)]
    tile(M, [qk2(7), qk2(6)], pre=pre)
    for m in range(8): A(f'v_bfi_b32 v{M+8+m}, v{PMASK+m}, 0, v{M+m}')
    for m in range(8): A(f'v_and_b32 v{M+m}, v{PMASK+m}, v{M+m}')
    pend = [pv(8, 0, vv[(8, 0)], M), pv(8, 1, vv[(8, 1)], M + 4), pv(0, 0, vv[(0, 0)], M + 8), pv(0, 1, vv[(0, 1)], M + 12), qk2(5)]
    if fast: hook0()
    for j in (7, 6, 5, 4, 3, 2, 1):
        b = buf2[j]
        if hooks: hook(j)
        if j == 7:
            tile(b, pend); vv = vreads([j])
        else:
            vv = vreads([j]); tile(b, pend)
        pend = [pv(j, 0, vv[(j, 0)], b), pv(j, 1, vv[(j, 1)], b + 4)]
        if j - 3 >= 1: pend.append(qk2(j - 3))
    for f in pend: f()
    if hooks:
        hook(0); hook(-1)

def add_pads(txt):
    import subprocess, re, tempfile
    lines = txt.split('\n')
    d = tempfile.mkdtemp()
    tmp = txt.replace(';PAD', '    s_nop 0').replace('L_code_end:', ''.join(f'L_chain{i}:\n' for i in range(8)) + 'L_code_end:')
    open(d + '/a.s', 'w').write(tmp)
    subprocess.check_call(['clang', '-x', 'assembler', '-target', 'amdgcn-amd-amdhsa', '-mcpu=gfx950', '-c', d + '/a.s', '-o', d + '/a.o'])
    dis = subprocess.check_output(['llvm-objdump', '-d', d + '/a.o']).decode()
    addrs = [int(m.group(1), 16) for m in re.finditer(r'// ([0-9A-F]{12}):', dis)]
    out = []; k = 0; shift = 0x300; nxt = 4096; skip = True; walk = False
    for ln in lines:
        if ln.strip() == 's_mov_b64 exec, 0': walk = True
        if ln.startswith('L_padret0'): skip = False
        if ln.startswith('L_cold'): skip = True
        if ln == ';PAD' or (ln.startswith('    ') and not ln.strip().startswith('.')):
            a = addrs[k] + shift; k += 1
            if a >= nxt and not walk:
                nxt += 4096
                if ln != ';PAD' and not skip: out.append(';PAD'); shift += 4
        out.append(ln)
        if ln.strip() == 's_mov_b64 exec, -1': walk = False
    idx = [i for i, ln in enumerate(out) if ln == ';PAD']
    n = len(idx)
    for j, i in enumerate(idx):
        head = f'L_chain{j}:\n' if j < 8 else ''
        out[i] = f'{head}L_pad{j}:\n    s_cbranch_execz ' + ('L_padret0' if j < 4 else f'L_pad{j+4}' if j + 4 < n else 'L_padret1')
    return '\n'.join(out)

def main():
    A = Asm()
    A.raw(f'; @launch grid=(256,1,1) block=(512,1,1) lds={LDS_SIZE}')
    A.raw('.amdgcn_target "amdgcn-amd-amdhsa--gfx950"\n.text')
    gen(A)
    A.raw('L_code_end:\n.p2align 8\n.fill 64, 4, 0xbf800000')
    A.raw(kd(NAME, 256, 100))
    txt = A.text()
    if OPT['pads']: txt = add_pads(txt)
    sys.stdout.write(txt)
main()
```

```python
import sys, math, struct
sys.path.insert(0, 'work')
from asmlib import *

OPT = dict(stamps=0, gst=0, skip='', pfc=1, psl=2, ssl=0, order='01234567', grp=1, gsh=9, tagl=5, la='88888888', n0=10, cst=11, cn=8, e0n=72, ot='', dpos=2, pw2=-1, aw=0, bw=1, npre=12, w4w=0, wf=0, qr=1, pr=24, ua=0, clr=107, wa=1, gp=1, th=16, ap=4, a2=1, gpp=5, hq=-1, hk=-1, e0w=0, e0pos=6, e0a=24, fastk=1, fasta=1, epn=28, cprio=1,
           nat=8, fw=1, pads=1, qd=5, qpoll=56, bq=65, lprio=1, aprio=0, stag=28, ost='sc1', wprio=0, pre=1, wd='8', w0='x', bt=0, hf=0, pol=2, nrep=1, rot=1, mis=0, vb=32, tl=0, dg=0, nohook=0, g2=5, gr=1, hp=4, h2=1, hpos=0, fp=16, sp='x', hl=0, xa=8, xm=1, xs=7)
for a in sys.argv[1:]:
    k, v = a.split('='); assert k in OPT, k; OPT[k] = int(v) if v.lstrip('-').isdigit() else v
OST = '' if OPT['ost'] == 'plain' else OPT['ost']
NAME = 'concat_heads__linear_kernel_hedgehog__sliding_block__prompt_kernel'

def f2u(x): return struct.unpack('<I', struct.pack('<f', x))[0]
LOG2E = math.log2(math.e)
RBS, TWIN = 18, 0x202000
WS_K, WS_O, WS_QG, WS_F1 = 0x000000, 0x400000, 0x800000, 0x1400000
WS_ACC, WS_EP, WS_PR = 0x1100000, 0x1120000, 0x1128000
WS_SIZE = 0x1800000
ACCB, AUX = 2048, 65536
WS_STAMP = 0x1000000
SPIN_MAX = 1 << 16
SLOT = 32768
RING = [0, 32768, 65536, 98304]
KL, VL, PHI = 65536, 90112, 114688
PHI_PLANE, PHI_HEAD, PHI_WAVE = 1088, 4352, 8704
TAG = PHI + 4 * PHI_WAVE - 64
QX, PQX, WPH = 149504, 153600, 161792
WO1 = 0
LDS_SIZE = 163840
C_ATT, C_WQ, C_PQ, C_WO, C_KV, C_WQ2, C_PAIR, C_PART = 8, 12, 16, 20, 24, 28, 32, 48
OACC, VRING, PMASK, ONES = 200, 216, 232, 240
SEL = 200
KVOFF, V1, V0, KRD, VRD, WOL, OST_, QRD, PD = 242, 243, 244, 245, 246, 247, 248, 249, 250
S_T, S_WO, S_ACC, S_OA, S_C3, S_FC, S_FO, S_OUT, S_QG = 's4', 's5', 's6', 's7', 's8', 's12', 's13', 's14', 's15'

class Q:
    def __init__(self, A, name, mx): self.A = A; self.q = []; self.name = name; self.mx = mx
    def push(self, tag): self.q.append(tag)
    def wait(self, *tags):
        idx = -1
        for i, t in enumerate(self.q):
            if t in tags: idx = i
        if idx < 0: return
        n = min(len(self.q) - 1 - idx, self.mx)
        self.A(f's_waitcnt {self.name}({n})')
        self.q = self.q[len(self.q) - n:] if n else []
    def all(self):
        self.A(f's_waitcnt {self.name}(0)'); self.q = []

def stamp(A, idx):
    if not OPT['stamps'] or str(idx) in str(OPT['skip']).split('.'): return
    if OPT['gst'] == 3:
        if 32 <= idx < 42: idx -= 12
        elif idx >= 60: idx -= 60
        elif idx not in (30, 31): return
    elif idx >= 60: return
    elif OPT['gst'] == 2:
        if idx < 10 or 32 <= idx < 50: return
        if idx >= 50: idx -= 50
    elif OPT['gst']:
        if idx < 30 or idx > 47: return
        if idx >= 32: idx -= 32
    elif idx >= 32: return
    A(('s_memrealtime' if OPT['stamps'] == 1 else 's_memtime') + ' s[96:97]')
    A('s_waitcnt lgkmcnt(0)')
    A(f'v_writelane_b32 v253, s96, {idx}')
def stamp_flush(A, srd, wavereg):
    if not OPT['stamps']: return
    stamp(A, 31)
    A(f's_lshl_b32 s98, s37, 3\ns_add_u32 s98, s98, s99\ns_lshl_b32 s98, s98, 3\ns_add_u32 s98, s98, {wavereg}\ns_lshl_b32 s98, s98, 7\ns_add_u32 s98, s98, {WS_STAMP}\ns_and_b32 s52, s52, 0xffffdfff')
    A('v_mbcnt_lo_u32_b32 v252, -1, 0\nv_lshlrev_b32 v252, 2, v252\ns_mov_b32 exec_hi, 0')
    A(f'buffer_store_dword v253, v252, {srd}, s98 offen')

def rowof(r, hi): return (r & 3) + 8 * (r >> 2) + 4 * hi

def dual_exp(A, p, em, t):
    A(f'v_max3_f32 v{t}, v{p}, v{p+1}, v{p+2}\nv_max3_f32 v{t+1}, -v{p}, -v{p+1}, -v{p+2}')
    A(f'v_max3_f32 v{t}, v{t}, v{p+3}, v{p+4}\nv_max3_f32 v{t+1}, v{t+1}, -v{p+3}, -v{p+4}')
    A(f'v_max3_f32 v{t}, v{t}, v{p+5}, v{p+6}\nv_max3_f32 v{t+1}, v{t+1}, -v{p+5}, -v{p+6}')
    A(f'v_max_f32_e64 v{t}, v{t}, v{p+7}\nv_max_f32_e64 v{t+1}, v{t+1}, -v{p+7}')
    A(f'v_permlane32_swap_b32 v{t}, v{t+1}')
    A(f'v_max_f32 v{t}, v{t}, v{t+1}')
    A(f'v_mul_f32 v{t}, s62, v{t}')
    A(f'v_mov_b32 v{t+1}, v{t}')
    A(f'v_permlane32_swap_b32 v{t}, v{t+1}')
    for r in range(8): A(f'v_fma_f32 v{em+r}, -v{p+r}, s62, -v{t+1}\nv_fma_f32 v{p+r}, v{p+r}, s62, -v{t}')
    for r in range(8): A(f'v_exp_f32 v{em+r}, v{em+r}\nv_exp_f32 v{p+r}, v{p+r}')

uid = [0]
OOL = []
COLD = []
def sp_issue(A, loads):
    for d, so, off in loads: A(f's_buffer_load_dword s{d}, s[52:55], {so} offset:{off} glc')
def sp_wait(A, loads, test, inline=True):
    uid[0] += 1; n = uid[0]
    def loop():
        A(f's_mov_b32 s3, {SPIN_MAX}')
        A.label(f'L_pl{n}')
        if OPT['ssl']: A(f's_sleep {OPT["ssl"]}')
        sp_issue(A, loads)
        A(f's_waitcnt lgkmcnt(0)\n{test}\ns_cselect_b32 s3, s3, 0\ns_sub_u32 s3, s3, 1\ns_cbranch_scc0 L_pl{n}')
    if inline:
        A(f's_waitcnt lgkmcnt(0)\n{test}\ns_cbranch_scc0 L_pd{n}')
        loop()
        A.label(f'L_pd{n}')
        return
    A(f's_waitcnt lgkmcnt(0)\n{test}\ns_cbranch_scc1 L_ps{n}')
    A.label(f'L_pd{n}')
    def slow():
        A.label(f'L_ps{n}'); A.fence()
        loop()
        A(f's_branch L_pd{n}')
    OOL.append(slow)
def poll_issue(A, vdst, voff, soff, count=None, off=0):
    o = f' offset:{off}' if off else ''
    A(f'buffer_load_dword v{vdst}, v{voff}, s[52:55], {soff} offen{o} sc1')
def poll(A, vdst, voff, soff, count=None, off=0, inline=False, first=0):
    uid[0] += 1; n = uid[0]
    cmp = f'v_cmp_ne_u32 vcc, {count}, v{vdst}'
    if inline:
        A(f's_waitcnt vmcnt({first})\n{cmp}\ns_cbranch_vccz L_pd{n}\ns_mov_b32 s3, {SPIN_MAX}')
        A.label(f'L_pl{n}')
        if OPT['psl']: A(f's_sleep {OPT["psl"]}')
        poll_issue(A, vdst, voff, soff, count, off)
        A(f's_sub_u32 s3, s3, 1\ns_waitcnt vmcnt(0)\n{cmp}\ns_cselect_b64 vcc, 0, vcc\ns_cbranch_vccnz L_pl{n}')
        A.label(f'L_pd{n}')
        return
    A(f's_waitcnt vmcnt({first})\n{cmp}\ns_cbranch_vccnz L_ps{n}')
    A.label(f'L_pd{n}')
    def slow():
        A.label(f'L_ps{n}'); A.fence()
        A('s_mov_b32 s3, 0')
        A.label(f'L_pl{n}')
        if OPT['psl']: A(f's_sleep {OPT["psl"]}')
        poll_issue(A, vdst, voff, soff, count, off)
        A(f's_add_u32 s3, s3, 1\ns_waitcnt vmcnt(0)\n{cmp}\ns_cbranch_vccz L_pd{n}')
        A(f's_cmp_lt_u32 s3, {SPIN_MAX}\ns_cbranch_scc1 L_pl{n}\ns_branch L_pd{n}')
    OOL.append(slow)
GR = [0, 1, 2, 4, 5, 6, 8, 9]
def gran_issue(A, v, nh):
    for h in range(3): A(f'buffer_load_dwordx4 {vr(v+4*h,4)}, v8, s[52:55], {S_QG} offen offset:{h*1024} sc1')
def gran_wait(A, v, nh, dst, inline, first=0):
    uid[0] += 1; n = uid[0]
    def check(cnt=0):
        A(f's_waitcnt vmcnt({cnt})\nv_cmp_ne_u32_e64 s[24:25], s60, v{v+3}')
        for r in range(1, 3): A(f'v_cmp_ne_u32 vcc, s60, v{v+3+4*r}\ns_or_b64 s[24:25], s[24:25], vcc')
    def retry():
        if OPT['psl']: A(f's_sleep {OPT["psl"]}')
        gran_issue(A, v, nh)
    if inline:
        A('s_mov_b32 s3, 0')
        A.label(f'L_gl{n}')
        check()
        A(f's_cbranch_scc0 L_gd{n}')
        retry()
        A(f's_add_u32 s3, s3, 1\ns_cmp_lt_u32 s3, {SPIN_MAX}\ns_cbranch_scc1 L_gl{n}\ns_waitcnt vmcnt(0)')
    else:
        check(first)
        A(f's_cbranch_scc1 L_gs{n}')
        def slow():
            A.label(f'L_gs{n}'); A.fence()
            A('s_mov_b32 s3, 0')
            A.label(f'L_gl{n}')
            retry(); check()
            A(f's_cbranch_scc0 L_gd{n}\ns_add_u32 s3, s3, 1\ns_cmp_lt_u32 s3, {SPIN_MAX}\ns_cbranch_scc1 L_gl{n}\ns_branch L_gd{n}')
        OOL.append(slow)
    A.label(f'L_gd{n}')
    for r in range(8): A(f'v_mov_b32 v{dst+r}, v{v+GR[r]}')

def lds_add(A, off, va):
    A(f'v_mov_b32 v{va}, {TAG}\ns_mov_b64 exec, 1\nds_add_u32 v{va}, v{V1} offset:{off}\ns_mov_b64 exec, -1')
def lds_spin(A, off, cnt, va, vt, sleep=True):
    uid[0] += 1; n = uid[0]
    A(f'v_mov_b32 v{va}, {TAG}\ns_mov_b32 s3, {SPIN_MAX * 4}')
    A.label(f'L_sp{n}')
    if sleep: A('s_sleep 1')
    A(f's_sub_u32 s3, s3, 1\nds_read_b32 v{vt}, v{va} offset:{off}\ns_waitcnt lgkmcnt(0)\nv_cmp_gt_u32 vcc, {cnt}, v{vt}\ns_cselect_b64 vcc, 0, vcc\ns_cbranch_vccnz L_sp{n}')
def count_add(A, soff, off=0):
    A('s_mov_b64 exec, 1')
    A(f'buffer_atomic_add v{V1}, v{V0}, s[52:55], {soff} offen' + (f' offset:{off}' if off else ''))
    A('s_mov_b64 exec, -1')

def srd(A, d, lo, size):
    A(f's_mov_b32 s{d}, s{lo}\ns_mov_b32 s{d+1}, s{lo+1}\ns_mov_b32 s{d+2}, 0x{size:x}\ns_mov_b32 s{d+3}, 0x20000')
def flag(A, soff, tmp):
    A(f'v_mov_b32 v{tmp}, s60\nv_mov_b32 v{tmp+1}, s61\nv_mov_b32 v{tmp+2}, s60\nv_mov_b32 v{tmp+3}, s61\ns_waitcnt vmcnt(0)\ns_mov_b64 exec, 0xff')
    A(f'buffer_store_dwordx4 v[{tmp}:{tmp+3}], v8, s[52:55], {soff} offen sc1')
    A('s_mov_b64 exec, -1')
def stream(fn, *a):
    L = []
    fn(lambda t: L.extend(x for x in t.split('\n') if x.strip()), *a)
    return L
def tr_lane(A, d, rowsh, hish):
    A(f'v_bfe_u32 v{d}, v1, 2, 2\nv_lshl_add_u32 v{d}, v11, {hish}, v{d}\nv_lshlrev_b32 v{d}, {rowsh}, v{d}')
def mfma32(d, a, b, c): return f'v_mfma_f32_32x32x16_bf16 {vr(d,16)}, {vr(a,4)}, {vr(b,4)}, {vr(c,16) if c is not None else "0"}'

def common(A):
    for r in range(16):
        for hi in range(2):
            m = 0
            for c in range(32):
                if rowof(r, hi) <= c: m |= 1 << c
            A(f's_mov_b32 s{64+2*r+hi}, 0x{m:x}')
    A(f's_mov_b32 s62, 0x{f2u(LOG2E):x}\ns_mov_b32 s63, 0x{f2u(2.0**100):x}\ns_mov_b32 s28, 0xffff\ns_mov_b32 s29, 0xffff')
    A(f'v_mov_b32 v{ONES}, 0x3f803f80\nv_mov_b32 v{ONES+1}, 0x3f803f80\nv_mov_b32 v{V1}, 0xffff')
    for r in range(0, 16, 2): A(f'v_mov_b64 v[{VRING+r}:{VRING+r+1}], v[{ONES}:{ONES+1}]')
    for m in range(8): A(f'v_cndmask_b32_e64 v{PMASK+m}, 0, v{V1}, s[{64+4*m}:{65+4*m}]')
    for m in range(8): A(f'v_cndmask_b32_e64 v{PMASK+m}, v{PMASK+m}, -1, s[{66+4*m}:{67+4*m}]')
    A(f'v_and_b32 v{V1}, 1, v10\nv_add_u32 v{V1}, {AUX//128}, v{V1}\nv_cndmask_b32_e64 v{KVOFF}, v{V1}, v10, s[28:29]\nv_lshlrev_b32 v{KVOFF}, 7, v{KVOFF}\nv_lshl_add_u32 v{KVOFF}, v11, 6, v{KVOFF}')
    A('s_and_b32 s21, s41, 3\ns_lshr_b32 s22, s41, 2\ns_lshl1_add_u32 s20, s22, s38')
    A(f's_lshl_b32 s24, s21, 10\ns_add_u32 s25, s24, {QX}\nv_add_u32 v{QRD}, s25, v8')
    A(f's_mul_i32 s25, s22, 12288\ns_add_u32 s24, s24, s25\ns_add_u32 s25, s24, {KL}\nv_add_u32 v{KRD}, s25, v8')
    A(f'v_and_b32 v{VRD}, 15, v1\nv_lshlrev_b32 v{VRD}, 4, v{VRD}\nv_lshl_add_u32 v{VRD}, v11, 8, v{VRD}\ns_add_u32 s25, s24, {VL}\nv_add_u32 v{VRD}, s25, v{VRD}')
    A(f'v_lshrrev_b32 v{WOL}, 3, v1\nv_and_b32 v{V0}, 7, v1\nv_bfe_u32 v{V1}, v1, 4, 1\nv_lshlrev_b32 v{V1}, 2, v{V1}\nv_xor_b32 v{V0}, v{V0}, v{V1}\nv_lshlrev_b32 v{V0}, 4, v{V0}\nv_lshl_add_u32 v{WOL}, v{WOL}, 10, v{V0}')
    A(f'v_mov_b32 v{V1}, 1\nv_mov_b32 v{V0}, 0\nv_mov_b64 v[52:53], 0\nv_mov_b64 v[54:55], 0')
    A(f's_lshl_b32 {S_T}, s39, 2\ns_add_u32 {S_T}, {S_T}, s21')
    A(f's_lshr_b32 s23, s37, 2\ns_lshl_b32 s23, s23, 7\nv_add_u32 v{WOL}, s23, v{WOL}\ns_and_b32 s24, s37, 3\ns_lshl_b32 s24, s24, 4\ns_add_u32 s24, s24, s21\ns_lshl_b32 {S_WO}, s24, 10')
    A(f's_lshl_b32 s24, s40, 1\ns_add_u32 s24, s24, s22\ns_mul_i32 {S_ACC}, s24, {ACCB}\ns_add_u32 {S_ACC}, {S_ACC}, {WS_ACC}')
    A(f's_lshl_b32 s24, s21, 1\ns_add_u32 s24, s24, s22\ns_lshl_b32 {S_FO}, s24, 15\ns_add_u32 {S_FO}, {S_FO}, {WS_O}\ns_lshl_b32 s24, s24, 7\ns_add_u32 {S_FC}, s24, {WS_F1 + 4096}')
    A(f's_and_b32 s24, s40, 8\ns_add_u32 s24, s24, s40\ns_lshl_b32 s24, s24, 10\ns_lshl_b32 s25, s39, {RBS}\ns_add_u32 s24, s24, s25\ns_add_u32 {S_OA}, s24, {S_FO}\ns_add_u32 {S_C3}, {S_FC}, s25')
    A(f's_lshl_b32 s24, s35, 15\ns_add_u32 s25, s25, s24\ns_and_b32 s24, s21, 2\ns_add_u32 s24, s24, s21\ns_add_u32 s24, s24, s24\ns_and_b32 s24, s24, 10\ns_lshl_b32 s24, s24, 11\ns_add_u32 s25, s25, s24')
    A(f's_and_b32 s24, s35, 1\ns_lshl_b32 s24, s24, 10\ns_add_u32 s25, s25, s24\ns_mul_i32 s24, s38, {TWIN}\ns_add_u32 s25, s25, s24\ns_add_u32 {S_QG}, s25, {WS_QG}')
    A('s_and_b32 s24, s39, 12\ns_xor_b32 s24, s24, 4\ns_and_b32 s25, s37, 3\ns_add_u32 s24, s24, s25\ns_lshr_b32 s22, s36, 2')
    A(f's_lshl_b32 {S_OUT}, s24, {RBS}\ns_add_u32 {S_FC}, {S_FC}, {S_OUT}\ns_add_u32 {S_FO}, {S_FO}, {S_OUT}\ns_mul_i32 s25, s22, {TWIN}\ns_add_u32 {S_FO}, {S_FO}, s25')
    A(f's_lshl_b32 s25, s22, 10\ns_add_u32 {S_FC}, {S_FC}, s25\ns_add_u32 {S_OUT}, {S_OUT}, s25\ns_lshl_b32 s25, s21, 16\ns_add_u32 {S_OUT}, {S_OUT}, s25\ns_add_u32 {S_OUT}, {S_OUT}, s23')

def place(A, x):
    if OPT['pol'] != 2: return
    A(f's_lshr_b32 s24, s61, 14\ns_and_b32 s61, s61, 0xffff\ns_cmp_le_u32 s24, s61\ns_cbranch_scc1 L_pl{x}\ns_add_u32 s52, s52, 8192\ns_addc_u32 s53, s53, 0\ns_sub_u32 {S_ACC}, {S_ACC}, 8192')
    if x == 'c': A('s_lshl_b32 s24, s38, 13\ns_sub_u32 s31, s31, s24')
    A.label(f'L_pl{x}')

ROLE = 's_add_u32 s24, s2, s60\ns_and_b32 s24, s24, 7\ns_cmp_lg_u32 s24, s99\n'
def wrong(A):
    A.label('L_wrong'); A.fence()
    A('s_mov_b32 s99, s24\ns_or_b32 s2, s2, 256\ns_setprio 0\ns_waitcnt vmcnt(0) lgkmcnt(0)\ns_barrier\ns_nop 15\ns_branch L_restart')

def wo_srd(A):
    A('s_cmp_lt_u32 s36, 4\ns_cselect_b32 s44, s10, s16\ns_cselect_b32 s45, s11, s17\ns_mov_b32 s46, 0x80000\ns_mov_b32 s47, 0x20000')

WD = [int(c) for c in str(OPT['wd']) if c.isdigit()]
W0 = [int(c) for c in str(OPT['w0']) if c.isdigit()]
NWO = 4 * (bool(WD) + bool(W0))
def wo_dma(A, j, g=1):
    cnt = 0; n = 16 // max(1, len(WD) + len(W0))
    for k, x in enumerate(WD if g else W0):
        if x != j: continue
        for i in range(n):
            A(f's_xor_b32 m0, {S_WO}, {4096 * (n * (k + (len(W0) if g else 0)) + i)}\ns_lshl_b32 s24, m0, 3')
            A(f'buffer_load_dwordx4 v{WOL}, s[44:47], s24 offen lds'); cnt += 1
    return cnt

def halo_edge(A, x):
    A(f's_cmp_lt_u32 s39, 2\ns_cbranch_scc1 L_nb{x}')
    A.label(f'L_nb2{x}')
    def edge():
        A.label(f'L_nb{x}'); A.fence(); A.raw(';PAD')
        A('v_mov_b32 v48, 0\nv_mov_b32 v49, 0\nv_mov_b32 v50, 0\nv_mov_b32 v51, 0\nv_add_u32 v7, s27, v8')
        for i in range(4): A(f'ds_write_b128 v7, v[48:51] offset:{i*1024}')
        A(f's_cmp_eq_u32 s39, 1\ns_cbranch_scc1 L_nb2{x}')
        for i in range(4, 8): A(f'ds_write_b128 v7, v[48:51] offset:{i*1024}')
        A(f's_branch L_nb2{x}')
    OOL.append(edge)
def halo_loads(x): return [([48, 50, 0][nb] + i, f's{9+nb}', 128*i) for nb in range(3 if x == 'A' else 2) for i in range(2)][-OPT['hl']:]
def halo_issue(A, x):
    if x in OPT['sp']: sp_issue(A, halo_loads(x)); return
    A(f'v_and_b32 v55, 1, v1\nv_lshlrev_b32 v55, 7, v55\ns_mov_b64 exec, 3\nv_add_u32 v55, s9, v55\ns_mov_b64 exec, 12\nv_add_u32 v55, s10, v55\ns_mov_b64 exec, 48\nv_add_u32 v55, s11, v55')
    A(f's_mov_b64 exec, {63 if x == "A" else 15}')
    poll_issue(A, PD, 55, '0', 's60')
    A('s_mov_b64 exec, -1')
def halo_fetch(A, x, first=0):
    t = 's_xor_b64 s[48:49], s[48:49], s[60:61]\ns_xor_b64 s[50:51], s[50:51], s[60:61]\ns_or_b64 s[48:49], s[48:49], s[50:51]'
    if x == 'A': t += '\ns_xor_b64 s[0:1], s[0:1], s[60:61]\ns_or_b64 s[48:49], s[48:49], s[0:1]'
    if OPT['hl']: t = f's_cmp_lg_u32 s{halo_loads(x)[-1][0]}, s60'
    if x in OPT['sp']: sp_wait(A, halo_loads(x), t)
    else:
        A(f's_mov_b64 exec, {63 if x == "A" else 15}')
        poll(A, PD, 55, '0', 's60', inline=True, first=first)
        A('s_mov_b64 exec, -1')
    halo_dma(A, x, x)
def halo_dma(A, x, u):
    stamp(A, 5)
    for nb in range(3 if x == 'A' else 2):
        if nb < 2: A(f's_cmp_lt_u32 s39, {2-nb}\ns_cbranch_scc1 L_sk{nb}{u}')
        A(f's_sub_u32 s25, s33, {(2-nb) << RBS}\ns_add_u32 m0, s27, {nb*4096}')
        for i in range(4): A(f'buffer_load_dwordx4 v8, s[52:55], s25 offen offset:{i*1024} sc1 lds')
        if nb < 2: A.label(f'L_sk{nb}{u}')
    stamp(A, 7)

def gen(A):
    name = NAME
    WSZ = WS_SIZE if not OPT['stamps'] else 0x2000000
    A.raw(f'.globl {name}\n.p2align 12\n.type {name},@function\n{name}:')
    stamp(A, 30)
    A('s_cmp_ge_u32 s2, 256\ns_cbranch_scc1 L_end')
    A('s_getreg_b32 s99, hwreg(HW_REG_XCC_ID, 0, 3)' if OPT['rot'] else 's_and_b32 s99, s2, 7')
    if OPT['mis']: A(f's_lshr_b32 s3, s2, {OPT["mis"]}\ns_add_u32 s99, s99, s3\ns_and_b32 s99, s99, 7')
    A.label('L_restart')
    A('s_load_dwordx16 s[4:19], s[0:1], 0\ns_load_dwordx4 s[20:23], s[0:1], 64')
    A('v_lshrrev_b32 v2, 6, v0\nv_and_b32 v1, 63, v0')
    A('s_lshl_b32 s36, s99, 2\ns_lshr_b32 s36, 0x76325410, s36\ns_and_b32 s36, s36, 7\ns_bfe_u32 s37, s2, 0x50003')
    A('v_readfirstlane_b32 s41, v2')
    A('s_and_b32 s38, s37, 1')
    A('s_and_b32 s39, s36, 3\ns_lshl_b32 s39, s39, 2\ns_bfe_u32 s42, s37, 0x20001\ns_add_u32 s39, s39, s42')
    A('s_lshl_b32 s35, s38, 2\ns_xor_b32 s35, s35, s36\ns_and_b32 s35, s35, 4\ns_lshr_b32 s42, s37, 3\ns_add_u32 s35, s35, s42')
    A('s_lshl_b32 s40, s35, 1\ns_add_u32 s40, s40, s38')
    A('v_lshlrev_b32 v8, 4, v1\nv_and_b32 v10, 31, v1\nv_lshrrev_b32 v11, 5, v1')
    A('s_cmp_lt_u32 s41, 4\ns_cbranch_scc1 L_cpre')
    A('s_mov_b32 s46, 0x200000\ns_mov_b32 s47, 0x20000\ns_mov_b32 s50, 0x180000\ns_mov_b32 s51, 0x20000')
    A('s_sub_u32 s43, s41, 4')
    A('v_lshrrev_b32 v3, 3, v1\nv_and_b32 v4, 7, v1\nv_lshrrev_b32 v5, 4, v1')
    A('v_xor_b32 v6, v4, v5\nv_lshlrev_b32 v6, 4, v6\nv_lshl_add_u32 v6, v3, 10, v6')
    A('s_lshl_b32 s24, s39, 17\ns_lshl_b32 s25, s43, 15\ns_add_u32 s24, s24, s25')
    A('v_add_u32 v16, s24, v6\nv_xor_b32 v17, 64, v16\nv_add_u32 v17, 8192, v17\nv_add_u32 v18, 16384, v16\nv_add_u32 v19, 16384, v17')
    A('v_and_b32 v5, 1, v5\nv_lshlrev_b32 v5, 2, v5\nv_xor_b32 v4, v4, v5\nv_mul_u32_u24 v3, 3072, v3\nv_lshl_add_u32 v3, v4, 4, v3')
    A('s_mul_i32 s24, s43, 49152\ns_lshl_b32 s25, s35, 7\ns_add_u32 s24, s24, s25')
    A('v_add_u32 v20, s24, v3\nv_add_u32 v21, 24576, v20')
    A(f's_lshl_b32 s30, s43, 12\ns_lshl_b32 s31, s43, 11')
    A(f's_add_u32 s26, s39, s35\ns_and_b32 s26, s26, {OPT["grp"]}\ns_lshl_b32 s26, s26, {OPT["gsh"]}')
    if OPT['xa'] >= 0: A(f's_lshl_b32 s27, s38, {OPT["xa"]}\ns_xor_b32 s26, s26, s27')
    if OPT['xm']: A(f's_and_b32 s27, s36, {OPT["xm"]}\ns_lshl_b32 s27, s27, {OPT["xs"]}\ns_xor_b32 s26, s26, s27')
    if OPT['ot']:
        T = [sum(int(c) << (4*i) for i, c in enumerate(o)) for o in OPT['ot'].split('.')]
        assert all(sorted(o) == list('01234567') for o in OPT['ot'].split('.'))
        A(f's_add_u32 s24, s39, s35\ns_mov_b32 s34, 0x{T[0]:x}\ns_mov_b32 s25, 0x{T[2]:x}\ns_bitcmp0_b32 s24, 0\ns_cselect_b32 s34, s34, 0x{T[1]:x}\ns_cselect_b32 s25, s25, 0x{T[3]:x}\ns_bitcmp0_b32 s24, 1\ns_cselect_b32 s34, s34, s25')
    A('s_cmp_eq_u32 s38, 0')
    A('s_waitcnt lgkmcnt(0)')
    A('s_cselect_b32 s44, s12, s4\ns_cselect_b32 s45, s13, s5\ns_cselect_b32 s48, s14, s6\ns_cselect_b32 s49, s15, s7')
    stamp(A, 0); stamp(A, 60)
    ORD = [int(c) for c in str(OPT['order']).zfill(8)]
    vq = Q(A, 'vmcnt', 63)
    def wsoff(st):
        if OPT['ot']: A(f's_bfe_u32 s32, s34, 0x{0x30000 + 4*st:x}\ns_lshl_b32 s32, s32, 7\ns_xor_b32 s32, s26, s32\ns_mul_i32 s33, s32, 1536')
        else: A(f's_xor_b32 s32, s26, {st*128}\ns_mul_i32 s33, s32, 1536')
    LT = []
    nis = [0]
    def issue(upto):
        while nis[0] < min(upto, 80):
            n = nis[0]; nis[0] += 1
            s, i = divmod(n, 8); base = RING[s % 4]
            if s >= 8:
                if n == 64 and OPT['qr']:
                    assert ORD == list(range(8)) and not OPT['ot']
                    A('s_add_u32 s24, s39, s35\ns_and_b32 s24, s24, 2\ns_lshl_b32 s25, s24, 7\ns_xor_b32 s26, s26, s25\ns_lshl_b32 s25, s24, 13\ns_xor_b32 s31, s31, s25')
                if i % 2 == 0: wsoff(ORD[4*(s-8) + i//2])
                A(f's_xor_b32 m0, s31, {base + (i//2)*8192 + (i%2)*1024}')
                A(f'buffer_load_dwordx4 v{20+i%2}, s[48:51], s33 offen lds')
            elif i < 4:
                if i == 0: wsoff(ORD[s])
                A(f's_add_u32 m0, s30, {base + i*1024}')
                A(f'buffer_load_dwordx4 v{16+i}, s[44:47], s32 offen lds')
            else:
                seg = i // 2 - 1
                A(f's_add_u32 m0, s31, {base + 8192 + seg*7168 + (i%2)*1024}')
                A(f'buffer_load_dwordx4 v{20+i%2}, s[48:51], s33 offen offset:{seg*1024} lds')
            vq.push(('st', s))
            if n % 2 and n < 38: stamp(A, 61 + n//2)
            if n >= OPT['cst']:
                for _ in range(OPT['cn']):
                    if LT: A(LT.pop(0))
    issue(OPT['n0'])
    stamp(A, 1)
    srd(A, 52, 22, WSZ); srd(A, 56, 20, 0x100)
    if OPT['pol'] == 1: A('s_add_u32 s52, s52, 8192\ns_addc_u32 s53, s53, 0')
    A('s_branch L_load')
    A.label('L_cpre'); A.fence()
    A('s_lshr_b32 s42, s41, 1\ns_and_b32 s43, s41, 1')
    for r in range(0, 8, 2): A(f'v_mov_b64 v[{16+r}:{17+r}], 0')
    A(f's_lshl_b32 s24, s35, 1\ns_add_u32 s24, s24, s43\ns_lshl_b32 s34, s39, {RBS}')
    A('s_lshl_b32 s25, s42, 11\ns_lshl_b32 s32, s24, 14\ns_add_u32 s32, s32, s25\ns_add_u32 s32, s32, s34')
    A(f's_lshl_b32 s24, s24, 1\ns_add_u32 s24, s24, s42\ns_lshl_b32 s24, s24, 7\ns_add_u32 s34, s34, s24\ns_add_u32 s34, s34, {WS_F1}')
    A('s_waitcnt lgkmcnt(0)')
    srd(A, 52, 22, WSZ); srd(A, 56, 20, 0x100)
    if OPT['pol'] == 1: A('s_add_u32 s52, s52, 8192\ns_addc_u32 s53, s53, 0')
    A('s_cmp_lg_u32 s41, 0\ns_cbranch_scc1 L_d1')
    if OPT['pfc']:
        A('s_getpc_b64 s[24:25]')
        A.label('L_pc0')
        A(f's_add_u32 s24, s24, {name}-L_pc0\ns_addc_u32 s25, s25, -1')
        A(f's_lshl_b32 s30, s37, 7\nv_lshlrev_b32 v13, 12, v1\nv_add_u32 v13, s30, v13\nv_min_u32 v13, L_cold-{name}-4, v13\ns_mov_b64 exec, 0xff')
        A('global_load_dword v255, v13, s[24:25]')
        A('s_mov_b64 exec, -1')
    srd(A, 44, 8, 0x4000)
    A(f's_lshl_b32 s24, s35, 11\ns_mov_b32 m0, {WPH}')
    for i in range(2): A(f'buffer_load_dwordx4 v8, s[44:47], s24 offen offset:{i*1024} lds')
    A(f'v_mov_b32 v12, {TAG}\nv_lshl_add_u32 v12, v1, 2, v12\ns_mov_b64 exec, 0xffff\nds_write_b32 v12, v16\ns_mov_b64 exec, -1')
    A.label('L_d1'); A.fence()
    A('s_cmp_lg_u32 s41, 1\ns_cbranch_scc1 L_d2\ns_cmp_ge_u32 s2, 32\ns_cbranch_scc1 L_d2')
    A(f's_mul_i32 s24, s2, {ACCB}\ns_add_u32 s24, s24, {WS_ACC}')
    A('buffer_store_dwordx4 v[16:19], v8, s[52:55], s24 offen sc1\nbuffer_store_dwordx4 v[16:19], v8, s[52:55], s24 offen offset:1024 sc1')
    A(f's_add_u32 s24, s24, {AUX}\ns_lshr_b32 s25, s2, 1\ns_lshl_b32 s25, s25, {RBS}\ns_and_b32 s3, s2, 1\ns_lshl_b32 s3, s3, 13\ns_add_u32 s25, s25, s3\ns_add_u32 s25, s25, {WS_F1}\ns_add_u32 s3, s25, 4096')
    A('buffer_store_dwordx4 v[16:19], v8, s[52:55], s3 offen sc1\nbuffer_store_dwordx4 v[16:19], v8, s[52:55], s3 offen offset:1024 sc1')
    if OPT['fw']:
        for i in range(4): A(f'buffer_store_dwordx4 v[16:19], v8, s[52:55], s25 offen offset:{i*1024} sc1')
    A('s_mov_b64 exec, 0xff00')
    for r in range(4): A(f'v_mov_b32 v{20+r}, 1.0')
    A('s_mov_b64 exec, -1')
    A('buffer_store_dwordx4 v[20:23], v8, s[52:55], s24 offen sc1')
    A.label('L_d2'); A.fence()
    DYN = OPT['pol'] == 2
    if DYN:
        A(f's_cmp_lg_u32 s41, 2\ns_cbranch_scc1 L_d21\ns_sub_u32 s24, s2, {OPT["vb"]}\ns_cmp_ge_u32 s24, 32\ns_cbranch_scc1 L_d21')
        A(f's_and_b32 s24, s37, 2\ns_add_u32 s24, s24, s37\ns_add_u32 s24, s24, s24\ns_and_b32 s24, s24, 10\ns_lshl_b32 s24, s24, 11\ns_lshl_b32 s26, s36, 8\ns_add_u32 s26, s26, s24\ns_add_u32 s26, s26, {WS_PR}')
        A('s_buffer_load_dword s60, s[52:55], s26 glc\ns_buffer_load_dword s60, s[52:55], s26 offset:8192 glc')
        A.label('L_d21'); A.fence()
    A('s_cmp_lg_u32 s41, 3\ns_cbranch_scc1 L_d3\ns_cmp_lg_u32 s2, 0\ns_cbranch_scc1 L_d3')
    A(f's_mov_b32 s24, {WS_EP}\nbuffer_load_dword v{PD}, v16, s[52:55], s24 offen sc1')
    A.label('L_d3'); A.fence()
    wo_srd(A)
    stamp(A, 0)
    common(A)
    if OPT['tl']:
        A('s_cmp_lg_u32 s41, 0\ns_cbranch_scc1 L_tl')
        if OPT['tl'] & 1: A('v_lshlrev_b32 v12, 20, v1\ns_mov_b64 exec, 0xffffff\nbuffer_load_dword v255, v12, s[52:55], 0 offen offset:3968 sc1')
        A('s_mov_b64 exec, 1')
        if OPT['tl'] & 2: A(f'buffer_load_dword v255, v{WOL}, s[44:47], 0 offen')
        if OPT['tl'] & 4:
            srd(A, 48, 18, 0x400000)
            A(f'buffer_load_dword v255, v{V0}, s[48:51], {S_OUT} offen sc1')
        A('s_mov_b64 exec, -1')
        A.label('L_tl')
    A('v_bfe_u32 v12, v1, 1, 3\nv_xor_b32 v12, v12, v11\nv_lshlrev_b32 v12, 4, v12')
    A('s_lshl_b32 s24, s42, 13\nv_lshl_add_u32 v13, v10, 7, s24')
    for ks in range(4): A(f'v_xor_b32 v14, {ks*32}, v12\nv_add_u32 v{2+ks}, v13, v14')
    for ks in range(4): A(f'v_add_u32 v{48+ks}, 0x10000, v{2+ks}')
    tr_lane(A, 12, 7, 3)
    A('v_bfe_u32 v13, v1, 3, 1\nv_xor_b32 v13, s43, v13\nv_lshl_add_u32 v12, v13, 6, v12')
    A('v_bfe_u32 v13, v1, 4, 1\nv_lshl_add_u32 v12, v13, 5, v12\nv_and_b32 v14, 3, v1\nv_lshl_add_u32 v12, v14, 3, v12')
    A(f'v_add_u32 v6, 16384, v12\nv_add_u32 v7, {16384 + 65536}, v12')
    tr_lane(A, 9, 5, 2)
    A(f'v_lshl_add_u32 v9, v14, 3, v9\ns_lshl_b32 s24, s43, 10\ns_add_u32 s24, s24, {WPH}\nv_add_u32 v9, s24, v9')
    A(f'v_mov_b32 v15, {TAG}')
    A(f's_lshl_b32 s24, s39, {RBS}\ns_lshl_b32 s25, s40, 8\ns_add_u32 s11, s25, s24\ns_add_u32 s11, s11, {WS_F1}')
    A(f's_lshl_b32 s33, s40, 14\ns_add_u32 s33, s33, s24\ns_lshl_b32 s25, s43, 12\ns_add_u32 s33, s33, s25\ns_mul_i32 s25, s42, {TWIN}\ns_add_u32 s33, s33, s25\ns_mul_i32 s27, s41, 12288\ns_add_u32 s27, s27, {KL}')
    A(f's_min_u32 s24, s39, 2\ns_lshl_b32 s24, s24, {RBS}\ns_sub_u32 s9, s11, s24\ns_min_u32 s24, s24, {1 << RBS}\ns_sub_u32 s10, s11, s24')
    A('s_cmp_eq_u32 s38, 1\ns_cbranch_scc1 L_cpA')
    A('v_and_b32 v12, 15, v1\nv_lshlrev_b32 v12, 4, v12\nv_lshl_add_u32 v12, v11, 8, v12\nv_lshl_add_u32 v52, v13, 12, v12')
    A(f's_lshl_b32 s25, s42, 11\nv_mul_u32_u24 v13, 12288, v13\nv_add_u32 v12, v12, v13\ns_add_u32 s24, s25, {VL + 8192}\nv_add_u32 v53, s24, v12')
    A(f's_add_u32 s24, s25, {KL + 8192}\nv_add_u32 v54, s24, v8\ns_add_u32 s30, s32, 4096\ns_add_u32 s31, s32, {TWIN}')
    A('s_branch L_cpd')
    A.label('L_cpA'); A.fence()
    for r in range(0, 32, 2): A(f'v_mov_b64 v[{168+r}:{169+r}], v[{ONES}:{ONES+1}]')
    A(f's_mul_i32 s30, s41, {PHI_WAVE}\ns_add_u32 s30, s30, {PHI}')
    A('v_and_b32 v12, 1, v1\nv_lshlrev_b32 v12, 4, v12\nv_mov_b32 v13, 0x3f80\nv_lshlrev_b32 v13, v12, v13')
    A('v_lshlrev_b32 v12, 4, v11\nv_sub_u32 v12, v10, v12\nv_lshrrev_b32 v12, 1, v12')
    for r in range(8): A(f'v_cmp_eq_u32 vcc, {r}, v12\nv_cndmask_b32 v{SEL+r}, 0, v13, vcc')
    A('v_lshlrev_b32 v54, 2, v10\nv_lshl_add_u32 v54, v11, 9, v54')
    A(f'v_add_u32 v52, s30, v8\ns_xor_b32 s24, s41, 2\ns_mul_i32 s25, s24, {PHI_WAVE}\ns_add_u32 s25, s25, {PHI}\nv_add_u32 v53, s25, v8')
    A(f's_lshl_b32 s24, s35, 2\ns_lshl_b32 s25, s43, 1\ns_add_u32 s24, s24, s25\ns_add_u32 s24, s24, s42\ns_mul_i32 s31, s24, {ACCB}\ns_add_u32 s31, s31, {WS_ACC}')
    A.label('L_cpd'); A.fence()
    def padwalk(k):
        if not OPT['pads']: return
        A('s_mov_b64 exec, 0')
        for w in range(3): A(f's_cmp_eq_u32 s41, {w}\ns_cbranch_scc1 L_chain{4*k+w}')
        A(f's_branch L_chain{4*k+3}')
        A.label(f'L_padret{k}')
        A('s_mov_b64 exec, -1')
    def duties():
        A('s_cmp_lt_u32 s2, 32\ns_cbranch_scc1 L_d4')
        A.label('L_d5')
        def f():
            A.label('L_d4'); A.fence(); A.raw(';PAD')
            A('s_mov_b64 exec, 1\ns_cmp_lg_u32 s41, 1\ns_cbranch_scc1 L_d6')
            A(f's_waitcnt vmcnt(0)\nbuffer_atomic_add v{V1}, v{V0}, s[56:59], 0 offen offset:4')
            A.label('L_d6')
            A('s_cmp_lg_u32 s41, 3\ns_cbranch_scc1 L_d7\ns_cmp_lg_u32 s2, 0\ns_cbranch_scc1 L_d7')
            A(f's_waitcnt vmcnt(0)\nv_add_u32 v{PD}, 8, v{PD}\nv_and_b32 v{PD}, -8, v{PD}\nv_max_u32 v{PD}, 8, v{PD}\nv_or_b32 v{PD}, s99, v{PD}\ns_mov_b32 s24, {WS_EP}')
            A(f'buffer_store_dword v{PD}, v{V0}, s[56:59], 0 offen sc1')
            A(f'buffer_store_dword v{PD}, v{V0}, s[52:55], s24 offen sc1')
            A.label('L_d7')
            A('s_mov_b64 exec, -1\ns_branch L_d5')
        OOL.insert(0, f)
    def clear():
        if not OPT['ua']: return
        A(f'v_mov_b64 v[56:57], -1\nv_mov_b64 v[58:59], -1\ns_add_u32 s24, {S_OA}, 0x4000\ns_add_u32 s25, {S_OA}, 0x200000\ns_add_u32 s3, {S_OA}, 0x204000')
        for so in (S_OA, 's24', 's25', 's3'): A(f'buffer_store_dwordx4 v[56:59], v8, s[52:55], {so} offen sc1')
    if DYN:
        A(f's_cmp_lg_u32 s41, 2\ns_cbranch_scc1 L_d8\ns_sub_u32 s24, s2, {OPT["vb"]}\ns_cmp_ge_u32 s24, 32\ns_cbranch_scc1 L_d8\ns_mov_b64 s[24:25], -1\ns_waitcnt lgkmcnt(0)')
        stamp(A, 27)
        A('s_memtime s[48:49]')
        for r in range(2 * OPT['nrep']):
            a, b = (48, 50) if r % 2 == 0 else (50, 48)
            A(f's_waitcnt lgkmcnt(0)\ns_buffer_load_dword s60, s[52:55], s26 offset:{8192 * (r % 2)} glc\ns_waitcnt lgkmcnt(0)\ns_memtime s[{b}:{b+1}]\ns_waitcnt lgkmcnt(0)')
            A(f's_sub_u32 s3, s{b}, s{a}\ns_min_u32 s{24 + r % 2}, s{24 + r % 2}, s3')
        A('s_cmp_gt_u32 s24, s25\ns_cselect_b32 s3, 2, 0\ns_xor_b32 s3, s3, s36\ns_and_b32 s3, s3, 2\ns_lshl_b32 s3, s3, 15\ns_add_u32 s3, s3, 1')
        A(f'v_mov_b32 v{PD}, s3\ns_mov_b64 exec, 1\nbuffer_atomic_add v{PD}, v{V0}, s[56:59], 0 offen offset:4\ns_mov_b64 exec, -1')
        stamp(A, 28)
        A.label('L_d8'); A.fence()
    padwalk(0)
    if OPT['pw2'] < 0: padwalk(1)
    if OPT['dpos'] < 0: duties()
    A('s_branch L_cons')
    A.label('L_load'); A.fence()
    for r in (52, 54, 242, 244, 246): A(f'v_mov_b64 v[{r}:{r+1}], 0')
    A(f'v_bfe_u32 v12, v1, 1, 3\nv_xor_b32 v12, v12, v11\nv_lshlrev_b32 v12, 4, v12')
    A('v_lshl_add_u32 v13, v10, 7, s30')
    for ks in range(4): A(f'v_xor_b32 v14, {ks*32}, v12\nv_add_u32 v{2+ks}, v13, v14')
    for ks in range(4): A(f'v_add_u32 v{12+ks}, 0x10000, v{2+ks}')
    def later(E):
        common(E)
        tr_lane(E, 6, 7, 3)
        E('v_bfe_u32 v7, v1, 3, 1\nv_xor_b32 v7, s38, v7\nv_lshl_add_u32 v6, v7, 6, v6')
        E('v_bfe_u32 v7, v1, 4, 1\nv_lshl_add_u32 v6, v7, 5, v6\nv_and_b32 v7, 3, v1\nv_lshl_add_u32 v7, v7, 3, v6\nv_xor_b32 v6, 64, v7')
        E(f's_mul_i32 s9, s38, {2*TWIN}\ns_sub_u32 s9, {TWIN}, s9\ns_add_u32 s9, s9, {S_QG}')
    LT.extend(stream(later))
    LA = [int(c, 36) for c in str(OPT['la'])]
    XF = 64
    for s in range(8):
        assert LA[s] <= 16
        issue(8*s + 8 + LA[s])
        vq.wait(('st', s))
        A('s_waitcnt lgkmcnt(0)\ns_barrier')
        stamp(A, 32 + s)
        for ks in range(4):
            A(f'ds_read_b128 {vr(XF + 16*s + 4*ks, 4)}, v{(2 if RING[s % 4] < 65536 else 12) + ks} offset:{RING[s % 4] & 65535}')
        if s == OPT['tagl']: A('s_buffer_load_dwordx2 s[60:61], s[56:59], 0')
        if s == 6:
            assert not LT and OPT['tagl'] < 6
            TST = f's_and_b32 s24, s61, 0xffff\ns_cmp_lg_u32 s60, 0\ns_cselect_b32 s24, s24, 0\ns_cmp_lt_u32 s24, {64 if DYN else 32}'
            A(TST + '\ns_cbranch_scc1 L_tgw')
            A.label('L_tgd')
            A(f'v_mov_b32 v22, {TAG}\nv_mov_b32 v24, s60\nv_mov_b32 v25, s61\nds_write_b64 v22, v[24:25]')
            place(A, 'l')
            def tgw():
                A.label('L_tgw'); A.fence()
                A(f's_mov_b32 s3, {SPIN_MAX}')
                A.label('L_tg')
                if OPT['dg']: A(f's_mov_b64 exec, 1\nbuffer_atomic_add v{V1}, v{V0}, s[56:59], 0 offen offset:8\ns_mov_b64 exec, -1')
                A(f's_sleep 1\nbuffer_load_dwordx2 v[24:25], v{V0}, s[56:59], 0 offen sc1\ns_waitcnt vmcnt(0)\nv_readfirstlane_b32 s60, v24\nv_readfirstlane_b32 s61, v25')
                A(TST + '\ns_cselect_b32 s3, s3, 0\ns_sub_u32 s3, s3, 1\ns_cbranch_scc0 L_tg\ns_branch L_tgd')
            OOL.append(tgw)
    if OPT['e0w'] == 0:
        issue(OPT['e0n'])
        A(ROLE + 's_cbranch_scc1 L_wrong\ns_waitcnt lgkmcnt(0)\ns_barrier')
    issue(80)
    wo_srd(A)
    def awtouch():
        A('s_lshr_b32 s24, s37, 1\ns_lshl_b32 s24, s24, 2\ns_add_u32 s24, s24, s43\ns_xor_b32 s25, s38, 1\ns_lshl_b32 s25, s25, 6\ns_add_u32 s24, s24, s25\ns_lshl_b32 s24, s24, 13\nv_lshl_add_u32 v28, v1, 7, s24')
        A('buffer_load_dword v255, v28, s[44:47], 0 offen'); vq.push('aw')
    if OPT['aw'] == 1: awtouch()
    A(f's_cmp_eq_u32 s38, 0\ns_cselect_b32 s27, 0x{f2u(0.25*LOG2E):x}, 1.0')
    vq.wait(('st', 7 + max(1, OPT['e0w'])))
    if OPT['e0w']: A('s_waitcnt lgkmcnt(0)\ns_barrier')
    else:
        lds_add(A, C_WQ, 22)
        lds_spin(A, C_WQ, 4, 22, 23, sleep=False)
    stamp(A, 40)
    stamp(A, 42); stamp(A, 2)
    if OPT['lprio']:
        if not OPT['aprio']: A('s_cmp_eq_u32 s38, 1\ns_cbranch_scc1 L_noprio')
        A(f's_setprio {OPT["lprio"]}')
        A.label('L_noprio')
    lq = Q(A, 'lgkmcnt', 15)
    NR = 6; WF = 192; QD = OPT['qd']
    def qread(m):
        n = m % 32; f = WF + 4 * (m % NR)
        for rd in range(2):
            A(f'ds_read_b64_tr_b16 v[{f+2*rd}:{f+2*rd+1}], v{6 + m//32} offset:{n*2048 + rd*512}'); lq.push(('q', m))
    for m in range(QD): qread(m)
    ep = []
    for h in range(3):
        rr = range(3*h, min(3*h + 3, 8))
        ep += [f'v_mul_f32 v{32+2*r+e}, s27, v{32+2*r+e}' for r in rr for e in range(2)] + [f'v_cvt_pk_bf16_f32 v{16+GR[r]}, v{32+2*r}, v{33+2*r}' for r in rr]
        ep += [f'buffer_store_dwordx4 {vr(16+4*h,4)}, v8, s[52:55], s9 offen offset:{h*1024} sc1']
    for m in range(64):
        lq.wait(('q', m))
        acc = 32 + 16 * (m // 32)
        A(mfma32(acc, WF + 4*(m % NR), XF + 4*(m % 32), acc if m % 32 else None))
        if m == 16 - QD - 4 and OPT['e0w'] < 2:
            vq.wait(('st', 9))
            lds_add(A, C_WQ2, 22); lq.push('cnt')
        if m + QD == 16 and OPT['e0w'] < 2:
            lds_spin(A, C_WQ2, 4, 22, 23, sleep=False); lq.q = []
            stamp(A, 41); stamp(A, 22)
        if m + QD < 64: qread(m + QD)
        if m >= 32:
            for _ in range(OPT['epn']):
                if ep: A(ep.pop(0))
        if m == OPT['aw'] and m > 1: awtouch()
        if m == 31: stamp(A, 23)
        if m == 33: stamp(A, 24)
        if m == 20:
            for r in (19, 23, 26, 27): A(f'v_mov_b32 v{r}, s60')
        if m == 44:
            tr_lane(A, 15, 5, 2)
            A(f'v_and_b32 v14, 3, v1\nv_lshl_add_u32 v15, v14, 3, v15\ns_lshl_b32 s24, s38, 10\ns_add_u32 s24, s24, {WPH}\nv_add_u32 v15, s24, v15')
        if m == 46:
            for hs in range(2):
                for rd in range(2): A(f'ds_read_b64_tr_b16 v[{16+4*hs+2*rd}:{17+4*hs+2*rd}], v15 offset:{hs*512 + rd*256}'); lq.push('wphi')
        if m == OPT['qpoll'] or m == OPT['bq']:
            if OPT['qpoll'] != OPT['bq']: A(f's_cmp_eq_u32 s38, {0 if m == OPT["qpoll"] else 1}\ns_cbranch_scc1 L_noqp{m}')
            gran_issue(A, 32, 2)
            A.label(f'L_noqp{m}')
    stamp(A, 4)
    if OPT['lprio']: A('s_setprio 0')
    A(f's_lshl_b32 s24, s43, 10\nv_add_u32 v15, s24, v{QRD}')
    A('s_cmp_eq_u32 s38, 1\ns_cbranch_scc1 L_qa')
    for r in range(16): A(f'v_mul_f32 v{48+r}, s27, v{48+r}')
    for r in range(8): A(f'v_cvt_pk_bf16_f32 v{24+r}, v{48+2*r}, v{49+2*r}')
    A(f'ds_write_b128 v{QRD}, v[24:27]')
    if OPT['bq'] == 64: gran_issue(A, 32, 2)
    A('s_waitcnt lgkmcnt(0)\ns_barrier')
    if OPT['bq'] == 65: gran_issue(A, 32, 2)
    if OPT['bt']:
        A('s_bfe_u32 s24, s37, 0x10001\ns_lshl_b32 s24, s24, 2\ns_add_u32 s24, s24, s43\ns_lshl_b32 s24, s24, 16\ns_lshr_b32 s25, s37, 2\ns_lshl_b32 s25, s25, 7\ns_add_u32 s24, s24, s25\nv_lshlrev_b32 v14, 10, v1')
        A('buffer_load_dword v255, v14, s[44:47], s24 offen')
    A.label('L_wo'); A.fence()
    stamp(A, 8)
    nwo = wo_dma(A, 8) + OPT['bt']
    A('s_cmp_eq_u32 s38, 1\ns_cbranch_scc1 L_att')
    gran_wait(A, 32, 2, 104, False, nwo)
    stamp(A, 7)
    A('s_branch L_qb')
    A.label('L_qa'); A.fence()
    A('s_nop 8')
    for r in range(8): A(f'v_cvt_pk_bf16_f32 v{104+r}, v{48+2*r}, v{49+2*r}')
    A.label('L_qb'); A.fence(); A('s_nop 1')
    for hs in range(2): A(mfma32(64+16*hs, 16+4*hs, 104+4*hs, None))
    def phiq(E, hs):
        p = 64 + 16 * hs
        dual_exp(E, p, p + 8, 96 + 2*hs)
        for m in range(8): E(f'v_cvt_pk_bf16_f32 v{(104 if hs == 0 else 48)+m}, v{p+2*m}, v{p+2*m+1}')
    for a, b in zip(stream(phiq, 0), stream(phiq, 1)): A(a); A(b)
    A(f'ds_write_b128 v15, v[104:107] offset:{PQX-QX}\nds_write_b128 v15, v[108:111] offset:{PQX-QX+1024}')
    lds_add(A, C_PQ, 14)
    stamp(A, 6)
    A('s_cmp_eq_u32 s38, 0\ns_cbranch_scc1 L_att')
    gran_wait(A, 32, 2, 24, True)
    A(f'ds_write_b128 v{QRD}, v[24:27]')
    stamp(A, 7)
    A('s_waitcnt lgkmcnt(0)\ns_barrier')
    A('s_branch L_wo')
    A.label('L_cons'); A.fence(); A.raw(';PAD')
    stamp(A, 21)
    KA, VA = [96, 112], [128, 144]
    FS = [16, 32, 64, 80]
    lq = Q(A, 'lgkmcnt', 15)
    def reads(n):
        s, ks = divmod(n, 4); f = FS[n % 4]
        xa, wa = (2, 6) if RING[s % 4] < 65536 else (48, 7)
        so = RING[s % 4] & 65535
        def rx(tt): return (f'ds_read_b128 v[{f+4*tt}:{f+4*tt+3}], v{xa+ks} offset:{so + tt*4096}', (n, 'x', tt))
        def rw(seg, rd): return (f'ds_read_b64_tr_b16 v[{f+8+4*seg+2*rd}:{f+9+4*seg+2*rd}], v{wa} offset:{so + seg*8192 + ks*2048 + rd*512}', (n, 'w', seg))
        return [rx(0), rw(0, 0), rw(0, 1), rx(1), rw(1, 0), rw(1, 1)]
    def mk(n, tt): return mfma32(KA[tt], FS[n % 4] + 8, FS[n % 4] + 4*tt, KA[tt] if n else None)
    def mv(n, tt): return mfma32(VA[tt], FS[n % 4] + 4*tt, FS[n % 4] + 12, VA[tt] if n else None)
    A('s_waitcnt lgkmcnt(0)\ns_barrier')
    stamp(A, 1)
    for n in range(2):
        for t, tag in reads(n): A(t); lq.push(tag)
    for n in range(28):
        nxt = reads(n + 2)
        newstage = (n % 4 == 2)
        k = 0
        for mi, (seg, tt) in enumerate([(0, 0), (0, 1), (1, 0), (1, 1)]):
            if newstage and mi == 0: lq.all()
            else: lq.wait((n, 'x', tt), (n, 'w', seg))
            A(mv(n, tt) if seg else mk(n, tt))
            if mi == 0 and n == OPT['pw2']: padwalk(1)
            if mi == 0 and n == OPT['dpos']: duties()
            if mi == 0 and n == OPT['clr']: clear()
            if newstage and mi == 0: A('s_barrier')
            for _ in range(2):
                if k < len(nxt):
                    t, tag = nxt[k]; A(t); lq.push(tag); k += 1
        if n == 20: A('s_waitcnt vmcnt(0)')
        if n == 23:
            for hs in range(2):
                for rd in range(2): A(f'ds_read_b64_tr_b16 v[{56+4*hs+2*rd}:{57+4*hs+2*rd}], v9 offset:{hs*512 + rd*256}'); lq.push('wphi')
        if n == 26:
            A('s_not_b64 exec, s[28:29]\nv_mov_b64 v[56:57], 0\nv_mov_b64 v[58:59], 0\ns_mov_b64 exec, s[28:29]\nv_mov_b64 v[60:61], 0\nv_mov_b64 v[62:63], 0\ns_mov_b64 exec, -1')
        if n == 27: A('ds_read_b64 v[12:13], v15'); lq.push('tag')
    if OPT['cprio']: A('s_setprio 2')
    r30, r31 = reads(30), reads(31)
    nxt = r30[:4] + r31[:4] + r30[4:] + r31[4:]
    for g, (n, tt) in enumerate([(n, tt) for n in range(28, 32) for tt in range(2)]):
        if g == min(OPT['e0pos'], 7): lq.all()
        else: lq.wait((n, 'x', tt), (n, 'w', 0))
        A(mk(n, tt))
        if g == OPT['e0pos']: A(ROLE + 's_cbranch_scc1 L_wrong\ns_barrier')
        for t, tag in nxt[3*g:3*g+3]: A(t); lq.push(tag)
        if g == 5: A('v_readfirstlane_b32 s60, v12\nv_readfirstlane_b32 s61, v13')
        if g == 7: place(A, 'c'); A('s_mov_b32 s61, s60')
    stamp(A, 2)
    A('s_cmp_eq_u32 s38, 1\ns_cbranch_scc1 L_epA')
    hist = list(A.hist)
    def weave(mf, fill, per):
        fill = list(fill)
        for m in mf:
            A(m)
            for _ in range(per):
                if fill: A(fill.pop(0))
        for f in fill: A(f)
    def cv(d, a): return [f'v_cvt_pk_bf16_f32 v{d+m}, v{a+2*m}, v{a+2*m+1}' for m in range(4)]
    ckv = [x for tt in range(2) for e in range(2) for x in cv(160+8*tt+4*e, KA[tt]+8*e)]
    sk = [f'buffer_store_dwordx4 {vr(160+8*tt+4*e,4)}, v8, s[52:55], {"s30" if e else "s32"} offen offset:{tt*1024} sc1' for tt in range(2) for e in range(2)]
    cvv = [[x for e in range(2) for x in cv(176+8*tt+4*e, VA[tt]+8*e)] for tt in range(2)]
    sv = [f'buffer_store_dwordx4 {vr(176+8*tt+4*e,4)}, v52, s[52:55], s31 offen offset:{tt*1024+e*512} sc1' for tt in range(2) for e in range(2)]
    A(mv(28, 0))
    weave([mv(n, 0) for n in range(29, 32)] + [mv(28, 1), mv(29, 1)], ckv, 4)
    weave([mv(30, 1), mv(31, 1)], cvv[0], 4)
    if OPT['cprio']: A('s_setprio 0')
    if OPT['e0pos'] >= 8: A('s_barrier')
    if OPT['bw']: lds_spin(A, C_WQ, 4, 2, 3)
    for x in sk + sv[:2] + cvv[1] + sv[2:]: A(x)
    stamp(A, 3)
    flag(A, 's34', 2)
    stamp(A, 4)
    halo_edge(A, 'B')
    A('s_cmp_eq_u32 s43, 1\ns_cbranch_scc1 L_epB1')
    for tt in range(2):
        for e in range(2):
            A(f'ds_write_b128 v54, {vr(160+8*tt+4*e,4)} offset:{e*12288 + tt*1024}')
            A(f'ds_write_b128 v53, {vr(176+8*tt+4*e,4)} offset:{tt*1024 + e*512}')
    A.label('L_epB1')
    A('s_cmp_eq_u32 s39, 0\ns_cbranch_scc1 L_epB2')
    halo_issue(A, 'B'); halo_fetch(A, 'B')
    A.label('L_epB2')
    A('s_waitcnt vmcnt(0) lgkmcnt(0)\ns_branch L_e1')
    A.label('L_epA'); A.hist = hist; A.raw(';PAD')
    KPK = {0: 160, 1: 208}
    VM = [168, 184]
    EM = {(0, 0): 16, (0, 1): 24, (1, 0): 32, (1, 1): 40}
    TM = {(0, 0): 2, (0, 1): 4, (1, 0): 12, (1, 1): 14}
    PT = {(0, 0): 64, (0, 1): 80, (1, 0): 96, (1, 1): 16}
    def phik(E, tt, hs, fast):
        p = KA[tt] + 8*hs; em = EM[(tt, hs)]; t = TM[(tt, hs)]; d = PT[(tt, hs)]
        if fast:
            for r in range(8): E(f'v_mul_f32 v{p+r}, s62, v{p+r}')
            for r in range(8): E(f'v_exp_f32_e64 v{em+r}, -v{p+r}\nv_exp_f32 v{p+r}, v{p+r}')
        else: dual_exp(E, p, em, t)
        E(f'v_add_f32 v{t}, v{p}, v{p+1}\nv_add_f32 v{t+1}, v{em}, v{em+1}')
        for r in range(2, 8): E(f'v_add_f32 v{t}, v{t}, v{p+r}\nv_add_f32 v{t+1}, v{t+1}, v{em+r}')
        E(f'v_permlane32_swap_b32 v{t}, v{t+1}\nv_add_f32 v{t}, v{t}, v{t+1}')
        if fast: E(f'v_max_f32 v6, v6, v{t}')
        E(f'v_rcp_f32 v{t}, v{t}\nv_mov_b32 v{t+1}, v{t}\nv_permlane32_swap_b32 v{t}, v{t+1}')
        for r in range(8): E(f'v_mul_f32 v{p+r}, v{p+r}, v{t}')
        for x in cv(p, p): E(x)
        for r in range(8):
            E(f'v_mul_f32 v{em+r}, v{em+r}, v{t+1}')
            if r == 1: E(mfma32(d, p, SEL, None))
        for x in cv(em, em): E(x)
    def phik2(E, tt, hs):
        d = PT[(tt, hs)]
        for x in cv(d, d) + cv(d + 4, d + 8): E(x)
    def tm2(tt): return [mfma32(PT[(tt, hs)], EM[(tt, hs)], SEL + 4, PT[(tt, hs)]) for hs in range(2)]
    def pair(fn, tt, *a): return [x for ab in zip(stream(fn, tt, 0, *a), stream(fn, tt, 1, *a)) for x in ab]
    ck = [cv(KPK[tt], KA[tt]) + cv(KPK[tt]+4, KA[tt]+8) for tt in range(2)]
    pm = [[mfma32(KA[tt], 56, KPK[tt], None), mfma32(KA[tt], 60, KPK[tt]+4, KA[tt])] for tt in range(2)]
    KV = [128, 144]
    def kvm(tt): return [mfma32(KV[hs], VM[hs] + 8*tt + 4*blk, PT[(tt, hs)] + 4*blk, KV[hs] if tt or blk else None) for blk in range(2) for hs in range(2)]
    A(mv(28, 0))
    weave([mv(28, 1), mv(29, 0)], ck[0], 4)
    weave(pm[0], ck[1], 4)
    for m in pm[1]: A(m)
    A(mv(29, 1))
    A('v_mov_b32 v6, 0')
    fast = bool(OPT['fastk'])
    S = [pair(phik, tt, fast) for tt in range(2)]
    vc = ['s_mov_b64 exec, s[28:29]'] + [x for tt in range(2) for x in cv(VM[0]+8*tt, VA[tt]) + cv(VM[0]+8*tt+4, VA[tt]+8)]
    vc += ['s_not_b64 exec, s[28:29]'] + [x for tt in range(2) for x in cv(VM[1]+8*tt, VA[tt]) + cv(VM[1]+8*tt+4, VA[tt]+8)] + ['s_mov_b64 exec, -1']
    D = 2 * OPT['stag']
    rest = [mv(30, 0), mv(30, 1), mv(31, 0), mv(31, 1)]
    L = len(S[0])
    tail0 = {L: tm2(0), L + 14: pair(phik2, 0), L + 18: kvm(0)[:2], L + 24: kvm(0)[2:]}
    assert D >= 26
    for i in range(0, L + D, 2):
        if i < L: A(S[0][i]); A(S[0][i+1])
        if rest and i % 4 == 2:
            A(rest.pop(0))
            if not rest and OPT['cprio']: A('s_setprio 0')
        if OPT['e0pos'] >= 8 and i == OPT['e0a']: A('s_barrier')
        if i == D - 2:
            halo_edge(A, 'A')
            for x in vc: A(x)
            stamp(A, 6)
        if i >= D: A(S[1][i-D]); A(S[1][i-D+1])
        for x in tail0.get(i, []): A(x)
    for m in tm2(1): A(m)
    if OPT['hf'] == 2: halo_issue(A, 'A')
    stamp(A, 3)
    A(f's_lshl_b32 s25, s41, 2\ns_add_u32 s25, s25, {TAG + C_PAIR}')
    if fast: A('v_cmp_nlt_f32 vcc, v6, s63\ns_cbranch_vccnz L_kexact'.replace('v6, s63', 's63, v6').replace('nlt', 'ngt'))
    for x in pair(phik2, 1): A(x)
    for m in kvm(1): A(m)
    A.label('L_kdone')
    if OPT['hf'] == 1: halo_issue(A, 'A')
    A('v_mov_b32 v6, s25\nv_xor_b32 v7, 8, v6')
    if fast:
        def kexact():
            A.label('L_kexact'); A.fence()
            A('s_nop 15')
            for tt in range(2):
                for m in pm[tt]: A(m)
            for tt in range(2):
                for x in pair(phik, tt, False) + tm2(tt) + pair(phik2, tt) + kvm(tt): A(x)
            A('s_branch L_kdone')
        COLD.append(kexact)
    A('s_nop 7')
    A('s_cmp_eq_u32 s42, 1\ns_cbranch_scc1 L_ex1')
    for i in range(2):
        if i == 1: A.label('L_ex1')
        keep, kz = (KV[0], KV[0] + 8) if i == 0 else (KV[1] + 8, KV[1])
        send, sz = (KV[1] + 8, KV[1]) if i == 0 else (KV[0], KV[0] + 8)
        A(f'ds_write_b128 v52, {vr(send,4)}\nds_write_b128 v52, {vr(send+4,4)} offset:1024\nds_write_b32 v52, v{sz} offset:2048')
        A(f'ds_write_b32 v6, v{V1}\ns_mov_b32 s3, {SPIN_MAX * 4}')
        A.label(f'L_exs{i}')
        A('ds_read_b32 v12, v7\nds_read_b128 v[32:35], v53\nds_read_b128 v[36:39], v53 offset:1024\nds_read_b32 v40, v53 offset:2048')
        A(f's_sub_u32 s3, s3, 1\ns_waitcnt lgkmcnt(0)\nv_cmp_eq_u32 vcc, 0, v12\ns_cselect_b64 vcc, 0, vcc\ns_cbranch_vccnz L_exs{i}')
        for r in range(9): A(f'v_add_f32 v{32+r}, v{keep + r if r < 8 else kz}, v{32+r}')
        if i == 0: A('s_branch L_exd')
    A.label('L_exd'); A.fence()
    stamp(A, 20)
    def atomics():
        for r in range(OPT['nat']): A(f'buffer_atomic_add_f32 v{32+r}, v54, s[52:55], s31 offen offset:{rowof(r,0)*128}')
        A(f's_mov_b32 exec_hi, 0\ns_add_u32 s31, s31, {AUX}')
        A(f'buffer_atomic_add_f32 v40, v54, s[52:55], s31 offen')
        A('s_mov_b64 exec, -1')
    if 'A' in OPT['sp']:
        if OPT['hpos'] == 0: halo_issue(A, 'A')
        atomics()
        stamp(A, 4)
        if OPT['hpos'] == 1: halo_issue(A, 'A')
        halo_fetch(A, 'A')
        A('s_cmp_lt_u32 s39, 2\ns_cbranch_scc0 L_c2\ns_waitcnt vmcnt(4)')
        A.label('L_c2')
        A('s_waitcnt vmcnt(12)')
        count_add(A, 's31', 256)
        stamp(A, 19)
        A('s_waitcnt vmcnt(1)')
    else:
        if OPT['hf']:
            A(f's_mov_b64 exec, 63\ns_waitcnt vmcnt(0)\nv_cmp_ne_u32 vcc, s60, v{PD}\ns_mov_b64 exec, -1\ns_cbranch_vccnz L_hlate')
            halo_dma(A, 'A', 'E')
            atomics()
            stamp(A, 4)
            A('s_waitcnt vmcnt(0)')
            count_add(A, 's31', 256)
            stamp(A, 19)
            A('s_branch L_e1')
            A.label('L_hlate'); A.fence()
        atomics()
        stamp(A, 4)
        halo_issue(A, 'A')
        A('s_waitcnt vmcnt(1)')
        count_add(A, 's31', 256)
        stamp(A, 19)
        halo_fetch(A, 'A', 1)
        A('s_waitcnt vmcnt(0)')
    A.label('L_e1'); A.fence()
    A(f's_lshl_b32 s24, s41, 10\nv_add_u32 v9, s24, v{QRD}')
    A('s_barrier')
    stamp(A, 8)
    A(f'ds_read_b128 v[28:31], v{QRD}')
    A.label('L_att'); A.fence(); A.raw(';PAD')
    if OPT['wprio']:
        A('s_cmp_lt_u32 s41, 4\ns_cbranch_scc1 L_wp\ns_setprio 1')
        A.label('L_wp')
    A('s_cmp_lt_u32 s39, 2\ns_cbranch_scc1 L_bslow')
    FA = bool(OPT['fasta'])
    bunit(A, False, FA, not OPT['nohook'], 'f')
    A.label('L_bdone'); A.fence()
    stamp(A, 11)
    if OPT['nohook']: A('s_branch L_fin2')
    O = OACC
    A(f's_add_u32 s24, {S_OA}, {TWIN}\ns_add_u32 s27, {S_C3}, 1024\ns_nop 9')
    if FA:
        A(f'v_pk_mul_f32 v[2:3], v[{O}:{O+1}], 0')
        for m in range(1, 4): A(f'v_pk_fma_f32 v[2:3], v[{O+2*m}:{O+2*m+1}], 0, v[2:3]')
        A(f'v_add_f32 v2, v2, v3\nv_add_f32 v2, v2, v{O+8}\nv_subrev_u32 v2, 0x{f2u(2.0**-60):x}, v2')
        A(f'v_cmp_lt_u32 vcc, 0x{f2u(2.0**60) - f2u(2.0**-60):x}, v2\ns_cbranch_vccnz L_bexact')
        A.label('L_bdone2')
    A(f'v_rcp_f32 v4, v{O+8}')
    for m in range(4): A(f'v_pk_mul_f32 v[{O+2*m}:{O+2*m+1}], v[{O+2*m}:{O+2*m+1}], v[4:5] op_sel_hi:[1,0]')
    for m in range(4): A(f'v_cvt_pk_bf16_f32 v{16+m}, v{O+2*m}, v{O+2*m+1}')
    A(f'buffer_store_dwordx4 v[16:19], v8, s[52:55], s24 offen sc1')
    UA = OPT['ua']
    if UA: count_add(A, 's27'); stamp(A, 12)
    A('s_cmp_ge_u32 s41, 4\ns_cbranch_scc1 L_nord')
    lds_spin(A, C_PQ, 4, 4, 5, sleep=False)
    A(f'ds_read_b128 v[48:51], v9 offset:{PQX-QX}\nds_read_b128 v[52:55], v9 offset:{PQX-QX+1024}')
    readout(A, 64, 180, 1 + UA + 16 // max(1, len(WD) + len(W0)) * sum(1 for x in W0 if x <= OPT['h2'])); readout2(A, 64, 180)
    A.label('L_nord')
    tr_lane(A, 6, 7, 2)
    A('v_and_b32 v7, 1, v1\nv_lshl_add_u32 v6, v7, 5, v6\nv_bfe_u32 v7, v1, 1, 1\nv_lshl_add_u32 v6, v7, 3, v6\nv_and_b32 v7, 16, v1\nv_add_u32 v6, v6, v7')
    A('s_lshr_b32 s24, s41, 2\ns_lshl_b32 s24, s24, 11\nv_bfe_u32 v7, v1, 3, 1\nv_lshl_add_u32 v6, v7, 6, v6\nv_add_u32 v2, s24, v6\nv_xor_b32 v3, 64, v2')
    assert OPT['wa'] and not UA and not W0
    OFR, PRE, AC = 16, 80, 208
    def wread(m):
        for rd in range(2): A(f'ds_read_b64_tr_b16 v[{PRE+4*m+2*rd}:{PRE+4*m+2*rd+1}], v{2+m%2} offset:{(m//2)*4096 + rd*1024}')
    lds_spin(A, C_WO, NWO, 12, 13, sleep=False)
    for m in range(OPT['npre']): wread(m)
    A('v_lshlrev_b32 v13, 10, v1\ns_waitcnt vmcnt(0)')
    SF = 'F' in OPT['sp']
    if not SF and not OPT['wf']: poll_issue(A, PD, V0, S_FC, count=16)
    A(f's_mov_b64 exec, 3\nbuffer_atomic_add v{V1}, v13, s[52:55], {S_C3} offen\ns_lshr_b32 s24, s41, 2\nv_mov_b32 v13, s24\ns_mov_b64 exec, 1\nds_add_u32 v12, v13 offset:{C_ATT}\ns_mov_b64 exec, -1')
    stamp(A, 13)
    if OPT['gp'] == 1: A('s_setprio 0')
    for m in range(OPT['npre'], 32): wread(m)
    A('v_and_b32 v9, 15, v1\nv_lshlrev_b32 v9, 11, v9\nv_and_b32 v14, 48, v1\nv_add_u32 v9, v9, v14')
    A(f's_and_b32 s24, s41, 3\ns_lshl_b32 s25, s24, 13\ns_add_u32 s25, s25, {PHI}\nv_add_u32 v4, s25, v8\ns_lshl_b32 s24, s24, 2\ns_add_u32 s24, s24, {TAG + C_PART}\nv_mov_b32 v5, s24')
    srd(A, 56, 18, 0x400000)
    A(f's_add_u32 s24, {S_FO}, 16384\ns_add_u32 s25, {S_FO}, 20480\ns_add_u32 s26, {S_FO}, 4096\ns_add_u32 s27, {S_OUT}, 32768')
    stamp(A, 25)
    def fpoll():
        if SF:
            sp_issue(A, [(48, S_FC, 0)]); sp_wait(A, [(48, S_FC, 0)], 's_cmp_lg_u32 s48, 16')
        else:
            if OPT['wf']: poll_issue(A, PD, V0, S_FC, count=16)
            poll(A, PD, V0, S_FC, count=16, inline=True, first=1 - OPT['wf'])
    if not OPT['wf']: fpoll()
    stamp(A, 12)
    if not OPT['w4w']: A('s_cmp_ge_u32 s41, 4\ns_cbranch_scc1 L_noatt')
    lds_spin(A, C_ATT, 4, 12, 13)
    A.label('L_noatt')
    if OPT['wf']: fpoll()
    stamp(A, 14)
    A('s_mov_b32 s30, 0')
    A.label('L_again')
    def oload(k): A(f'buffer_load_dwordx4 {vr(OFR+4*k,4)}, v8, s[52:55], {[S_FO,"s26","s24","s25"][k//4]} offen offset:{(k%4)*1024} sc1')
    TH = OPT['th']
    for k in range(TH): oload(k)
    if TH < 16:
        A('s_cmp_ge_u32 s41, 4\ns_cbranch_scc1 L_oall')
        for k in range(TH, 16): A(f's_waitcnt vmcnt({TH-1})'); oload(k)
        A('s_branch L_odone')
        A.label('L_oall')
        for k in range(TH, 16): oload(k)
        A.label('L_odone')
    A('s_waitcnt lgkmcnt(0)')
    for m in range(32):
        k, ct = m // 2, m % 2
        if ct == 0: A(f's_waitcnt vmcnt({15-k})')
        A(mfma32(AC+16*ct, PRE+4*m, OFR+4*k, AC+16*ct if k else None))
        if m == 30 and UA:
            A(f's_cmp_lg_u32 s30, 0\ns_cbranch_scc1 L_acked\ns_mov_b64 exec, 3\nv_lshlrev_b32 v12, 15, v1\nbuffer_atomic_add v{V1}, v12, s[52:55], {S_C3} offen offset:64\ns_mov_b64 exec, -1')
            A.label('L_acked'); A.hist = A.hist[:-4]
        if m == OPT['pr']:
            assert m >= 17
            A(f's_cmp_lt_u32 s41, 4\ns_cbranch_scc1 L_nopr\ns_mov_b32 s3, {SPIN_MAX * 4}')
            A.label('L_prs')
            A('ds_read_b32 v12, v5\ns_sub_u32 s3, s3, 1\ns_waitcnt lgkmcnt(0)\nv_cmp_eq_u32 vcc, 0, v12\ns_cselect_b64 vcc, 0, vcc\ns_cbranch_vccnz L_prs')
            stamp(A, 15)
            for i in range(8): A(f'ds_read_b128 {vr(OFR+4*i,4)}, v4 offset:{i*1024}')
            A.label('L_nopr')
    stamp(A, 16)
    if UA:
        A(f'v_cmp_u_f32 vcc, v{AC}, v{AC}\ns_cbranch_vccnz L_late')
        A.label('L_late2')
        def late():
            A.label('L_late'); A.fence()
            A('s_cmp_lg_u32 s30, 0\ns_cbranch_scc1 L_late2\ns_mov_b32 s30, 1\ns_waitcnt lgkmcnt(0)')
            poll_issue(A, PD, V0, S_FC, count=16, off=64)
            poll(A, PD, V0, S_FC, count=16, off=64, inline=True)
            A('s_branch L_again')
        COLD.append(late)
    A('s_cmp_ge_u32 s41, 4\ns_cbranch_scc1 L_fin')
    for i in range(8): A(f'ds_write_b128 v4, {vr(AC+4*i,4)} offset:{i*1024}')
    A(f'ds_write_b32 v5, v{V1}\ns_waitcnt lgkmcnt(0)\ns_branch L_fin2')
    A.label('L_fin')
    A('s_waitcnt lgkmcnt(0)' + ('' if UA else '\ns_nop 7'))
    for ct in range(2):
        for r in range(0, 16, 2): A(f'v_pk_add_f32 v[{AC+16*ct+r}:{AC+16*ct+r+1}], v[{AC+16*ct+r}:{AC+16*ct+r+1}], v[{OFR+16*ct+r}:{OFR+16*ct+r+1}]')
        b = 48 + 8 * ct
        for m in range(8): A(f'v_cvt_pk_bf16_f32 v{b+m}, v{AC+16*ct+2*m}, v{AC+16*ct+2*m+1}')
        for m in range(4): A(f'v_permlane16_swap_b32 v{b+m}, v{b+4+m}')
        for h in range(2): A(f'buffer_store_dwordx4 {vr(b+4*h,4)}, v9, s[56:59], {"s27" if h else S_OUT} offen offset:{ct*64} {OST}')
    A.label('L_fin2')
    stamp_flush(A, 's[52:55]', 's41')
    A.label('L_end'); A.fence()
    A('s_endpgm')
    A.label('L_bslow'); A.fence(); A.raw(';PAD')
    bunit(A, True, FA, not OPT['nohook'], 's')
    A('s_branch L_bdone')
    for f in OOL: f()
    A.label('L_cold')
    if FA:
        A.label('L_bexact'); A.fence()
        bunit(A, True, False, False, 'x')
        A('s_nop 11\ns_branch L_bdone2')
    for f in COLD: f()
    wrong(A)

def readout(A, R1, R2, n):
    A(f's_waitcnt vmcnt({n})')
    for m in range(8): A(f'v_cvt_pk_bf16_f32 v{32+m}, v{32+2*m}, v{33+2*m}')
    if n: A('s_waitcnt lgkmcnt(0)')
    A(mfma32(R1, 32, 48, None)); A(mfma32(R2, 36, 52, None))
def readout2(A, R1, R2):
    A(f'v_mov_b32 v6, 0x{f2u(1e-6):x}')
    A(f'v_rcp_f32 v4, v{R1+9}\nv_rcp_f32 v5, v{R2+9}')
    A(f'v_fmac_f32 v6, v{R1+8}, v4\nv_fmac_f32 v6, v{R2+8}, v5')
    A('v_rcp_f32 v6, v6')
    A('v_mul_f32 v4, v4, v6\nv_mul_f32 v5, v5, v6')
    for r in range(8): A(f'v_mul_f32 v{R1+r}, v{R1+r}, v4')
    for r in range(8): A(f'v_fmac_f32 v{R1+r}, v{R2+r}, v5')
    for m in range(4): A(f'v_cvt_pk_bf16_f32 v{20+m}, v{R1+2*m}, v{R1+2*m+1}')
    A(f'buffer_store_dwordx4 v[20:23], v8, s[52:55], {S_OA} offen sc1')
    if OPT['ua']: count_add(A, S_C3)
    if OPT['wprio']: A('s_setprio 0')
    stamp(A, 17)

def bunit(A, checks, fast, hooks, sfx):
    lq = Q(A, 'lgkmcnt', 15)
    KF = {j: 144 + 4 * j for j in range(9)}
    M, X, Y, Z, NM = 64, 80, 96, 112, 128
    O = OACC
    order = [8, 0, 7, 6, 5, 4, 3, 2, 1]
    def kvload():
        for m in range(4): A(f'buffer_load_dwordx4 {vr(32+4*m,4)}, v{KVOFF}, s[52:55], {S_ACC} offen offset:{16*m} sc1')
    def hook(j):
        stamp(A, 58 - j)
        if j + 100 == OPT['clr'] and OPT['ua']:
            assert j > OPT['h2']
            A(f's_cmp_ge_u32 s41, 4\ns_cbranch_scc1 L_nclr{sfx}')
            A(f'v_mov_b64 v[56:57], -1\nv_mov_b64 v[58:59], -1\ns_add_u32 s24, {S_OA}, 0x4000\ns_add_u32 s25, {S_OA}, 0x200000\ns_add_u32 s3, {S_OA}, 0x204000')
            for so in (S_OA, 's24', 's25', 's3'): A(f'buffer_store_dwordx4 v[56:59], v8, s[52:55], {so} offen sc1')
            A.label(f'L_nclr{sfx}')
        same = (OPT['hp'], OPT['h2']) == (OPT['ap'], OPT['a2'])
        for ty, (hp, h2) in enumerate([(OPT['hp'], OPT['h2']), (OPT['ap'], OPT['a2'])][:1 if same else 2]):
            if j not in (hp, h2) and not (same and j in W0): continue
            A((f's_cmp_ge_u32 s41, 4' if same else f's_cmp_lg_u32 s20, {ty}') + f'\ns_cbranch_scc1 L_hg0{ty}{j+1}{sfx}')
            if j == hp:
                A(f's_mov_b64 exec, 3\nv_lshlrev_b32 v5, 11, v1\nv_add_u32 v5, {AUX}, v5')
                poll_issue(A, PD, 5, S_ACC, count=16, off=256)
                A('s_mov_b64 exec, -1')
            if j == h2:
                A('s_mov_b64 exec, 3')
                poll(A, PD, 5, S_ACC, count=16, off=256, first=16 // max(1, len(WD) + len(W0)) * sum(1 for x in W0 if h2 < x <= hp))
                lds_add(A, C_KV, 4)
                stamp(A, 10)
                kvload()
            assert same or not W0
            wo_dma(A, j, 0)
            A.label(f'L_hg0{ty}{j+1}{sfx}')
        if j in WD or j in (OPT['g2'], OPT['gr'], OPT['gr'] - 1, OPT['gpp']):
            A(f's_cmp_lt_u32 s41, 4\ns_cbranch_scc1 L_hg1{j+1}{sfx}')
            if OPT['gp'] and j == OPT['gpp']: A('s_setprio 1')
            wo_dma(A, j)
            if j == OPT['gr']: readout(A, R1, 180, 0)
            if j == OPT['gr'] - 1: readout2(A, R1, 180)
            if j == OPT['g2']:
                assert min(WD + [8]) > j
                if WD:
                    A('s_waitcnt vmcnt(0)')
                    lds_add(A, C_WO, 4)
                lds_spin(A, C_KV, 4 if OPT['ua'] and OPT['clr'] >= 100 else 1, 4, 5)
                stamp(A, 10)
                kvload()
            A.label(f'L_hg1{j+1}{sfx}')
    R1 = M
    if hooks: stamp(A, 50)
    for j in order: A(f'ds_read_b128 {vr(KF[j],4)}, v{KRD} offset:{j*1024}'); lq.push(('k', j))
    buf = {8: M, 0: X, 7: Y, 6: Z, 5: NM, 4: X, 3: Y, 2: Z, 1: NM}
    def qk(j, dst):
        lq.wait(('k', j))
        A(mfma32(dst, KF[j], 28, None))
    def hook0():
        if hooks: stamp(A, 9)
    if fast:
        qk(8, M)
        if checks:
            A('v_mov_b32 v2, 0xff800000')
            for r in range(0, 16, 2): A(f'v_mov_b64 v[{NM+r}:{NM+r+1}], 0')
        else: qk(0, NM)
    else:
        for j in (8, 0, 7, 6, 5): qk(j, buf[j])
        if checks:
            A(f's_cmp_ge_u32 {S_T}, 8\ns_cbranch_scc1 L_t0{sfx}\ns_nop 7')
            for r in range(16): A(f'v_mov_b32 v{X+r}, 0xff800000')
            A.label(f'L_t0{sfx}'); A('s_nop 7')
        for r in range(16): A(f'v_cndmask_b32_e64 v{M+r}, v{X+r}, v{M+r}, s[{64+2*r}:{65+2*r}]')
        qk(4, buf[4])
        A(f'v_max_f32 v2, v{M}, v{M+1}\nv_max_f32 v3, v{M+2}, v{M+3}')
        for m in range(1, 4): A(f'v_max3_f32 v2, v2, v{M+4*m}, v{M+4*m+1}\nv_max3_f32 v3, v3, v{M+4*m+2}, v{M+4*m+3}')
        for j in (7, 6, 5, 4, 3, 2, 1):
            b = buf[j]
            if checks: A(f's_cmp_lt_u32 {S_T}, {8-j}\ns_cbranch_scc1 L_bm{sfx}')
            for m in range(4): A(f'v_max3_f32 v2, v2, v{b+4*m}, v{b+4*m+1}\nv_max3_f32 v3, v3, v{b+4*m+2}, v{b+4*m+3}')
            if j - 4 >= 1: qk(j - 4, buf[j - 4])
        if checks:
            A.label(f'L_bm{sfx}'); A.fence(); A('s_waitcnt lgkmcnt(0)\ns_nop 15'); lq.q = []
        A('v_max_f32 v2, v2, v3\nv_mov_b32 v3, v2\nv_permlane32_swap_b32 v2, v3\nv_max_f32 v2, v2, v3')
        hook0()
        A(f'v_sub_f32 v{NM}, 0, v2\nv_sub_f32 v{NM+1}, 0, v2')
        for r in range(2, 16, 2): A(f'v_mov_b64 v[{NM+r}:{NM+r+1}], v[{NM}:{NM+1}]')
    vs = [0]
    def vreads(js):
        A('s_mov_b64 exec, s[28:29]')
        out = {}
        for j in js:
            for blk in range(2):
                st = VRING + 4 * (vs[0] % 4); vs[0] += 1
                A(f'ds_read_b128 {vr(st,4)}, v{VRD} offset:{j*1024 + blk*512}'); lq.push(('v', j, blk)); out[(j, blk)] = st
        A('s_mov_b64 exec, -1')
        return out
    first = [True]
    def pv(j, blk, vreg, p):
        def f():
            lq.wait(('v', j, blk))
            A(mfma32(O, vreg, p, None if first[0] else O))
            first[0] = False
        return f
    buf2 = {7: X, 6: Y, 5: Z, 4: X, 3: Y, 2: Z, 1: X}
    def qk2(j):
        def f():
            if checks:
                uid[0] += 1; n = uid[0]
                A(f's_cmp_lg_u32 {S_T}, {7-j}\ns_cbranch_scc1 L_ni{n}\ns_nop 7')
                for r in range(16): A(f'v_mov_b32 v{NM+r}, 0xff800000')
                A.label(f'L_ni{n}'); A.fence(); A('s_nop 1')
            lq.wait(('k', j))
            A(mfma32(buf2[j], KF[j], 28, None if fast and not checks else NM))
        return f
    def tile(b, pend, pre=()):
        ops = list(pre) + [f'v_exp_f32 v{b+r}, v{b+r}' for r in range(16)] + [f'v_cvt_pk_bf16_f32 v{b+m}, v{b+2*m}, v{b+2*m+1}' for m in range(8)]
        n0 = len(pre); step = max(1, 16 // max(1, len(pend)))
        pos = {n0 + 1 + i * step: f for i, f in enumerate(pend)}
        for i, o in enumerate(ops):
            if i in pos: pos[i]()
            A(o)
    vv = vreads([8, 0])
    if fast: pre = [f'v_cndmask_b32_e64 v{M+r}, v{2 if checks else NM+r}, v{M+r}, s[{64+2*r}:{65+2*r}]' for r in range(16)]
    else: pre = [f'v_sub_f32 v{M+r}, v{M+r}, v2' for r in range(16)]
    tile(M, [qk2(7), qk2(6)], pre=pre)
    for m in range(8): A(f'v_bfi_b32 v{M+8+m}, v{PMASK+m}, 0, v{M+m}')
    for m in range(8): A(f'v_and_b32 v{M+m}, v{PMASK+m}, v{M+m}')
    pend = [pv(8, 0, vv[(8, 0)], M), pv(8, 1, vv[(8, 1)], M + 4), pv(0, 0, vv[(0, 0)], M + 8), pv(0, 1, vv[(0, 1)], M + 12), qk2(5)]
    if fast: hook0()
    for j in (7, 6, 5, 4, 3, 2, 1):
        b = buf2[j]
        if hooks: hook(j)
        if j == 7:
            tile(b, pend); vv = vreads([j])
        else:
            vv = vreads([j]); tile(b, pend)
        pend = [pv(j, 0, vv[(j, 0)], b), pv(j, 1, vv[(j, 1)], b + 4)]
        if j - 3 >= 1: pend.append(qk2(j - 3))
    for f in pend: f()
    if hooks:
        hook(0); hook(-1)

def add_pads(txt):
    import subprocess, re, tempfile
    lines = txt.split('\n')
    d = tempfile.mkdtemp()
    tmp = txt.replace(';PAD', '    s_nop 0').replace('L_code_end:', ''.join(f'L_chain{i}:\n' for i in range(8)) + 'L_code_end:')
    open(d + '/a.s', 'w').write(tmp)
    subprocess.check_call(['clang', '-x', 'assembler', '-target', 'amdgcn-amd-amdhsa', '-mcpu=gfx950', '-c', d + '/a.s', '-o', d + '/a.o'])
    dis = subprocess.check_output(['llvm-objdump', '-d', d + '/a.o']).decode()
    addrs = [int(m.group(1), 16) for m in re.finditer(r'// ([0-9A-F]{12}):', dis)]
    out = []; k = 0; shift = 0x300; nxt = 4096; skip = True; walk = False
    for ln in lines:
        if ln.strip() == 's_mov_b64 exec, 0': walk = True
        if ln.startswith('L_padret0'): skip = False
        if ln.startswith('L_cold'): skip = True
        if ln == ';PAD' or (ln.startswith('    ') and not ln.strip().startswith('.')):
            a = addrs[k] + shift; k += 1
            if a >= nxt and not walk:
                nxt += 4096
                if ln != ';PAD' and not skip: out.append(';PAD'); shift += 4
        out.append(ln)
        if ln.strip() == 's_mov_b64 exec, -1': walk = False
    idx = [i for i, ln in enumerate(out) if ln == ';PAD']
    n = len(idx)
    for j, i in enumerate(idx):
        head = f'L_chain{j}:\n' if j < 8 else ''
        out[i] = f'{head}L_pad{j}:\n    s_cbranch_execz ' + ('L_padret0' if j < 4 else f'L_pad{j+4}' if j + 4 < n else 'L_padret1')
    return '\n'.join(out)

def main():
    A = Asm()
    A.raw(f'; @launch grid=(256,1,1) block=(512,1,1) lds={LDS_SIZE}')
    A.raw('.amdgcn_target "amdgcn-amd-amdhsa--gfx950"\n.text')
    gen(A)
    A.raw('L_code_end:\n.p2align 8\n.fill 64, 4, 0xbf800000')
    A.raw(kd(NAME, 256, 100))
    txt = A.text()
    if OPT['pads']: txt = add_pads(txt)
    sys.stdout.write(txt)
main()
```

```python
import sys, math, struct
sys.path.insert(0, 'work')
from asmlib import *

OPT = dict(stamps=0, gst=0, skip='', pfc=1, psl=2, ssl=2, order='01234567', grp=1, gsh=9, tagl=5, la='88888888', n0=10, cst=11, cn=8, e0n=72, ot='', dpos=2, pw2=-1, aw=0, bw=1, npre=12, w4w=0, wf=0, qr=1, pr=24, ua=0, clr=107, wa=1, gp=1, th=16, ap=4, a2=1, gpp=5, hq=-1, hk=-1, e0w=0, e0pos=6, e0a=24, fastk=1, fasta=1, epn=28, cprio=0,
           nat=8, fw=1, pads=1, qd=5, qpoll=56, bq=65, lprio=1, aprio=0, stag=28, ost='sc1', wprio=0, pre=1, wd='8', w0='x', bt=0, hf=0, pol=2, nrep=1, rot=1, mis=0, vb=32, kvs='p', v7=1, tp=1, cw=0, kt=0, kd=1, gl=2, w1=1, ew=0, ko='', bp16=2, re=1, rodd=1, sprio=1, rt=2, vl=0, ro=0, tu=-1, wb9=1, wA=8, bp=1, ng=3, sw=36, k0=18, w0n=0, u2=0, tl=0, dg=0, nohook=0, g2=5, gr=1, hp=4, h2=1, hpos=0, fp=16, sp='x', hl=0, xa=8, xm=1, xs=7)
for a in sys.argv[1:]:
    k, v = a.split('='); assert k in OPT, k; OPT[k] = int(v) if v.lstrip('-').isdigit() else v
OST = '' if OPT['ost'] == 'plain' else OPT['ost']
NAME = 'concat_heads__linear_kernel_hedgehog__sliding_block__prompt_kernel'

def f2u(x): return struct.unpack('<I', struct.pack('<f', x))[0]
LOG2E = math.log2(math.e)
RBS, TWIN = 18, 0x202000
WS_K, WS_O, WS_QG, WS_F1 = 0x000000, 0x400000, 0x800000, 0x1400000
WS_ACC, WS_EP, WS_PR = 0x1100000, 0x1120000, 0x1128000
WS_SIZE = 0x1800000
ACCB, AUX = 2048, 65536
WS_STAMP = 0x1000000
SPIN_MAX = 1 << 16
SLOT = 32768
RING = [0, 32768, 65536, 98304]
KL, VL, PHI = 65536, 90112, 114688
PHI_PLANE, PHI_HEAD, PHI_WAVE = 1088, 4352, 8704
TAG = PHI + 4 * PHI_WAVE - 128
QX, PQX, WPH = 149504, 153600, 161792
WO1 = 0
LDS_SIZE = 163840
C_ATT, C_WQ, C_PQ, C_WO, C_KV, C_WQ2, C_PAIR, C_PART = 8, 12, 16, 20, 24, 28, 32, 48
OACC, VRING, PMASK, ONES = 200, 216, 232, 240
SEL = 200
KVOFF, V1, V0, KRD, VRD, WOL, KVS, QRD, PD = 242, 243, 244, 245, 246, 247, 248, 249, 250
S_T, S_WO, S_ACC, S_OA, S_C3, S_FC, S_FO, S_OUT, S_QG = 's4', 's5', 's6', 's7', 's8', 's12', 's13', 's14', 's15'

class Q:
    def __init__(self, A, name, mx): self.A = A; self.q = []; self.name = name; self.mx = mx
    def push(self, tag): self.q.append(tag)
    def wait(self, *tags):
        idx = -1
        for i, t in enumerate(self.q):
            if t in tags: idx = i
        if idx < 0: return
        n = min(len(self.q) - 1 - idx, self.mx)
        self.A(f's_waitcnt {self.name}({n})')
        self.q = self.q[len(self.q) - n:] if n else []
    def all(self):
        self.A(f's_waitcnt {self.name}(0)'); self.q = []

def stamp(A, idx):
    if not OPT['stamps'] or str(idx) in str(OPT['skip']).split('.'): return
    if OPT['gst'] == 9 and idx not in (30, 31): return
    if OPT['gst'] == 3:
        if 32 <= idx < 42: idx -= 12
        elif idx >= 60: idx -= 60
        elif idx not in (30, 31): return
    elif idx >= 60: return
    elif OPT['gst'] == 2:
        if idx < 10 or 32 <= idx < 50: return
        if idx >= 50: idx -= 50
    elif OPT['gst']:
        if idx < 30 or idx > 47: return
        if idx >= 32: idx -= 32
    elif idx >= 32: return
    A(('s_memrealtime' if OPT['stamps'] == 1 else 's_memtime') + ' s[96:97]')
    A('s_waitcnt lgkmcnt(0)')
    A(f'v_writelane_b32 v253, s96, {idx}')
def stamp_flush(A, srd, wavereg):
    if not OPT['stamps']: return
    stamp(A, 31)
    A(f's_lshl_b32 s98, s37, 3\ns_add_u32 s98, s98, s99\ns_lshl_b32 s98, s98, 3\ns_add_u32 s98, s98, {wavereg}\ns_lshl_b32 s98, s98, 7\ns_add_u32 s98, s98, {WS_STAMP}\ns_and_b32 s52, s52, 0xffffdfff')
    A('v_mbcnt_lo_u32_b32 v252, -1, 0\nv_lshlrev_b32 v252, 2, v252\ns_mov_b32 exec_hi, 0')
    A(f'buffer_store_dword v253, v252, {srd}, s98 offen')

def rowof(r, hi): return (r & 3) + 8 * (r >> 2) + 4 * hi

def dual_exp(A, p, em, t):
    A(f'v_max3_f32 v{t}, v{p}, v{p+1}, v{p+2}\nv_max3_f32 v{t+1}, -v{p}, -v{p+1}, -v{p+2}')
    A(f'v_max3_f32 v{t}, v{t}, v{p+3}, v{p+4}\nv_max3_f32 v{t+1}, v{t+1}, -v{p+3}, -v{p+4}')
    A(f'v_max3_f32 v{t}, v{t}, v{p+5}, v{p+6}\nv_max3_f32 v{t+1}, v{t+1}, -v{p+5}, -v{p+6}')
    A(f'v_max_f32_e64 v{t}, v{t}, v{p+7}\nv_max_f32_e64 v{t+1}, v{t+1}, -v{p+7}')
    A(f'v_permlane32_swap_b32 v{t}, v{t+1}')
    A(f'v_max_f32 v{t}, v{t}, v{t+1}')
    A(f'v_mul_f32 v{t}, s62, v{t}')
    A(f'v_mov_b32 v{t+1}, v{t}')
    A(f'v_permlane32_swap_b32 v{t}, v{t+1}')
    for r in range(8): A(f'v_fma_f32 v{em+r}, -v{p+r}, s62, -v{t+1}\nv_fma_f32 v{p+r}, v{p+r}, s62, -v{t}')
    for r in range(8): A(f'v_exp_f32 v{em+r}, v{em+r}\nv_exp_f32 v{p+r}, v{p+r}')

uid = [0]
OOL = []
COLD = []
def sp_issue(A, loads):
    for d, so, off in loads: A(f's_buffer_load_dword s{d}, s[52:55], {so} offset:{off} glc')
def sp_wait(A, loads, test, inline=True):
    uid[0] += 1; n = uid[0]
    def loop():
        A(f's_mov_b32 s3, {SPIN_MAX}')
        A.label(f'L_pl{n}')
        if OPT['ssl']: A(f's_sleep {OPT["ssl"]}')
        sp_issue(A, loads)
        A(f's_waitcnt lgkmcnt(0)\n{test}\ns_cselect_b32 s3, s3, 0\ns_sub_u32 s3, s3, 1\ns_cbranch_scc0 L_pl{n}')
    if inline:
        A(f's_waitcnt lgkmcnt(0)\n{test}\ns_cbranch_scc0 L_pd{n}')
        loop()
        A.label(f'L_pd{n}')
        return
    A(f's_waitcnt lgkmcnt(0)\n{test}\ns_cbranch_scc1 L_ps{n}')
    A.label(f'L_pd{n}')
    def slow():
        A.label(f'L_ps{n}'); A.fence()
        loop()
        A(f's_branch L_pd{n}')
    OOL.append(slow)
def poll_issue(A, vdst, voff, soff, count=None, off=0):
    o = f' offset:{off}' if off else ''
    A(f'buffer_load_dword v{vdst}, v{voff}, s[52:55], {soff} offen{o} sc1')
def poll(A, vdst, voff, soff, count=None, off=0, inline=False, first=0):
    uid[0] += 1; n = uid[0]
    cmp = f'v_cmp_ne_u32 vcc, {count}, v{vdst}'
    if inline:
        A(f's_waitcnt vmcnt({first})\n{cmp}\ns_cbranch_vccz L_pd{n}\ns_mov_b32 s3, {SPIN_MAX}')
        A.label(f'L_pl{n}')
        if OPT['psl']: A(f's_sleep {OPT["psl"]}')
        poll_issue(A, vdst, voff, soff, count, off)
        A(f's_sub_u32 s3, s3, 1\ns_waitcnt vmcnt(0)\n{cmp}\ns_cselect_b64 vcc, 0, vcc\ns_cbranch_vccnz L_pl{n}')
        A.label(f'L_pd{n}')
        return
    A(f's_waitcnt vmcnt({first})\n{cmp}\ns_cbranch_vccnz L_ps{n}')
    A.label(f'L_pd{n}')
    def slow():
        A.label(f'L_ps{n}'); A.fence()
        A('s_mov_b32 s3, 0')
        A.label(f'L_pl{n}')
        if OPT['psl']: A(f's_sleep {OPT["psl"]}')
        poll_issue(A, vdst, voff, soff, count, off)
        A(f's_add_u32 s3, s3, 1\ns_waitcnt vmcnt(0)\n{cmp}\ns_cbranch_vccz L_pd{n}')
        A(f's_cmp_lt_u32 s3, {SPIN_MAX}\ns_cbranch_scc1 L_pl{n}\ns_branch L_pd{n}')
    OOL.append(slow)
GR = [0, 1, 2, 4, 5, 6, 8, 9]
def gran_issue(A, v, nh):
    if 'q' in OPT['ko']:
        for h in range(3): A(f'v_mov_b32 v{v+4*h+3}, s60')
        return
    for h in range(OPT['ng']): A(f'buffer_load_dwordx4 {vr(v+4*h,4)}, v8, s[52:55], {S_QG} offen offset:{h*1024} sc1')
def gran_wait(A, v, nh, dst, inline, first=0):
    uid[0] += 1; n = uid[0]
    def check(cnt=0):
        A(f's_waitcnt vmcnt({cnt})\nv_cmp_ne_u32_e64 s[24:25], s60, v{v+3}')
        for r in range(1, OPT['ng']): A(f'v_cmp_ne_u32 vcc, s60, v{v+3+4*r}\ns_or_b64 s[24:25], s[24:25], vcc')
    def retry():
        if OPT['psl']: A(f's_sleep {OPT["psl"]}')
        gran_issue(A, v, nh)
    if inline:
        A('s_mov_b32 s3, 0')
        A.label(f'L_gl{n}')
        check()
        A(f's_cbranch_scc0 L_gd{n}')
        retry()
        A(f's_add_u32 s3, s3, 1\ns_cmp_lt_u32 s3, {SPIN_MAX}\ns_cbranch_scc1 L_gl{n}\ns_waitcnt vmcnt(0)')
    else:
        check(first)
        A(f's_cbranch_scc1 L_gs{n}')
        def slow():
            A.label(f'L_gs{n}'); A.fence()
            A('s_mov_b32 s3, 0')
            A.label(f'L_gl{n}')
            retry(); check()
            A(f's_cbranch_scc0 L_gd{n}\ns_add_u32 s3, s3, 1\ns_cmp_lt_u32 s3, {SPIN_MAX}\ns_cbranch_scc1 L_gl{n}\ns_branch L_gd{n}')
        OOL.append(slow)
    A.label(f'L_gd{n}')
    for r in range(8): A(f'v_mov_b32 v{dst+r}, v{v+GR[r % (3*OPT["ng"])]}')

def lds_add(A, off, va):
    A(f'v_mov_b32 v{va}, {TAG}\ns_mov_b64 exec, 1\nds_add_u32 v{va}, v{V1} offset:{off}\ns_mov_b64 exec, -1')
def lds_spin(A, off, cnt, va, vt, sleep=True):
    uid[0] += 1; n = uid[0]
    A(f'v_mov_b32 v{va}, {TAG}\ns_mov_b32 s3, {SPIN_MAX * 4}')
    A.label(f'L_sp{n}')
    if sleep: A('s_sleep 1')
    A(f's_sub_u32 s3, s3, 1\nds_read_b32 v{vt}, v{va} offset:{off}\ns_waitcnt lgkmcnt(0)\nv_cmp_gt_u32 vcc, {cnt}, v{vt}\ns_cselect_b64 vcc, 0, vcc\ns_cbranch_vccnz L_sp{n}')
def count_add(A, soff, off=0):
    A('s_mov_b64 exec, 1')
    A(f'buffer_atomic_add v{V1}, v{V0}, s[52:55], {soff} offen' + (f' offset:{off}' if off else ''))
    A('s_mov_b64 exec, -1')

def srd(A, d, lo, size):
    A(f's_mov_b32 s{d}, s{lo}\ns_mov_b32 s{d+1}, s{lo+1}\ns_mov_b32 s{d+2}, 0x{size:x}\ns_mov_b32 s{d+3}, 0x20000')
def flag(A, soff, tmp):
    A(f'v_mov_b32 v{tmp}, s60\nv_mov_b32 v{tmp+1}, s61\nv_mov_b32 v{tmp+2}, s60\nv_mov_b32 v{tmp+3}, s61\ns_waitcnt vmcnt(0)\ns_mov_b64 exec, 0xff')
    A(f'buffer_store_dwordx4 v[{tmp}:{tmp+3}], v8, s[52:55], {soff} offen sc1')
    A('s_mov_b64 exec, -1')
def stream(fn, *a):
    L = []
    fn(lambda t: L.extend(x for x in t.split('\n') if x.strip()), *a)
    return L
def tr_lane(A, d, rowsh, hish):
    A(f'v_bfe_u32 v{d}, v1, 2, 2\nv_lshl_add_u32 v{d}, v11, {hish}, v{d}\nv_lshlrev_b32 v{d}, {rowsh}, v{d}')
def mfma32(d, a, b, c): return f'v_mfma_f32_32x32x16_bf16 {vr(d,16)}, {vr(a,4)}, {vr(b,4)}, {vr(c,16) if c is not None else "0"}'

def common(A):
    for r in range(16):
        for hi in range(2):
            m = 0
            for c in range(32):
                if rowof(r, hi) <= c: m |= 1 << c
            A(f's_mov_b32 s{64+2*r+hi}, 0x{m:x}')
    A(f's_mov_b32 s62, 0x{f2u(LOG2E):x}\ns_mov_b32 s63, 0x{f2u(2.0**100):x}\ns_mov_b32 s28, 0xffff\ns_mov_b32 s29, 0xffff')
    A(f'v_mov_b32 v{ONES}, 0x3f803f80\nv_mov_b32 v{ONES+1}, 0x3f803f80\nv_mov_b32 v{V1}, 0xffff')
    for r in range(0, 16, 2): A(f'v_mov_b64 v[{VRING+r}:{VRING+r+1}], v[{ONES}:{ONES+1}]')
    for m in range(8): A(f'v_cndmask_b32_e64 v{PMASK+m}, 0, v{V1}, s[{64+4*m}:{65+4*m}]')
    for m in range(8): A(f'v_cndmask_b32_e64 v{PMASK+m}, v{PMASK+m}, -1, s[{66+4*m}:{67+4*m}]')
    A('s_and_b32 s21, s41, 3\ns_lshr_b32 s22, s41, 2\ns_lshl1_add_u32 s20, s22, s38')
    if OPT['kd']:
        A(f's_lshl1_add_u32 s98, s21, s22\ns_lshl_b32 s98, s98, 12\ns_add_u32 s98, s98, {PHI}')
        A(f'v_and_b32 v{V1}, 17, v10\nv_cndmask_b32_e64 v{KVOFF}, v{V1}, v10, s[28:29]\nv_and_b32 v{V1}, 7, v{KVOFF}\nv_lshlrev_b32 v{KVS}, 2, v11\nv_xor_b32 v{V1}, v{V1}, v{KVS}')
        A(f'v_lshl_add_u32 v{KVOFF}, v{KVOFF}, 3, v{V1}\nv_lshl_add_u32 v{KVOFF}, v{KVOFF}, 4, s98')
        A(f'v_lshrrev_b32 v{KVS}, 3, v1\nv_xor_b32 v{KVS}, v{KVS}, v1\nv_lshlrev_b32 v{KVS}, 4, v{KVS}')
    else: A(f'v_and_b32 v{V1}, 1, v10\nv_add_u32 v{V1}, {AUX//128}, v{V1}\nv_cndmask_b32_e64 v{KVOFF}, v{V1}, v10, s[28:29]\nv_lshlrev_b32 v{KVOFF}, 7, v{KVOFF}\nv_lshl_add_u32 v{KVOFF}, v11, 6, v{KVOFF}')
    A(f's_lshl_b32 s24, s21, 10\ns_add_u32 s25, s24, {QX}\nv_add_u32 v{QRD}, s25, v8')
    A(f's_mul_i32 s25, s22, 12288\ns_add_u32 s24, s24, s25\ns_add_u32 s25, s24, {KL}\nv_add_u32 v{KRD}, s25, v8')
    A(f'v_and_b32 v{VRD}, 15, v1\nv_lshlrev_b32 v{VRD}, 4, v{VRD}\nv_lshl_add_u32 v{VRD}, v11, 8, v{VRD}\ns_add_u32 s25, s24, {VL}\nv_add_u32 v{VRD}, s25, v{VRD}')
    A(f'v_lshrrev_b32 v{WOL}, 3, v1\nv_and_b32 v{V0}, 7, v1\nv_bfe_u32 v{V1}, v1, 4, 1\nv_lshlrev_b32 v{V1}, 2, v{V1}\nv_xor_b32 v{V0}, v{V0}, v{V1}\nv_lshlrev_b32 v{V0}, 4, v{V0}\nv_lshl_add_u32 v{WOL}, v{WOL}, 10, v{V0}')
    A(f'v_mov_b32 v{V1}, 1\nv_mov_b32 v{V0}, 0\nv_mov_b64 v[52:53], 0\nv_mov_b64 v[54:55], 0')
    A(f's_lshl_b32 {S_T}, s39, 2\ns_add_u32 {S_T}, {S_T}, s21')
    A(f's_lshr_b32 s23, s37, 2\ns_lshl_b32 s23, s23, 7\nv_add_u32 v{WOL}, s23, v{WOL}\ns_and_b32 s24, s37, 3\ns_lshl_b32 s24, s24, 4\ns_add_u32 s24, s24, s21\ns_lshl_b32 {S_WO}, s24, 10')
    A(f's_lshl_b32 s24, s40, 1\ns_add_u32 s24, s24, s22\ns_mul_i32 {S_ACC}, s24, {ACCB}\ns_add_u32 {S_ACC}, {S_ACC}, {WS_ACC}')
    A(f's_lshl_b32 s24, s21, 1\ns_add_u32 s24, s24, s22\ns_lshl_b32 {S_FO}, s24, 15\ns_add_u32 {S_FO}, {S_FO}, {WS_O}\ns_lshl_b32 s24, s24, 7\ns_add_u32 {S_FC}, s24, {WS_F1 + 4096}')
    A(f's_lshl4_add_u32 s24, s38, s35\ns_lshl_b32 s24, s24, 10\ns_lshl_b32 s25, s39, {RBS}\ns_add_u32 s24, s24, s25\ns_add_u32 {S_OA}, s24, {S_FO}\ns_add_u32 {S_C3}, {S_FC}, s25')
    A(f's_lshl_b32 s24, s35, 15\ns_add_u32 s25, s25, s24\ns_and_b32 s24, s21, 2\ns_add_u32 s24, s24, s21\ns_add_u32 s24, s24, s24\ns_and_b32 s24, s24, 10\ns_lshl_b32 s24, s24, 11\ns_add_u32 s25, s25, s24')
    A(f's_and_b32 s24, s35, 1\ns_lshl_b32 s24, s24, 10\ns_add_u32 s25, s25, s24\ns_mul_i32 s24, s38, {TWIN}\ns_add_u32 s25, s25, s24\ns_add_u32 {S_QG}, s25, {WS_QG}')
    A('s_and_b32 s24, s39, 12\ns_xor_b32 s24, s24, 4\ns_and_b32 s25, s37, 3\ns_add_u32 s24, s24, s25\ns_lshr_b32 s22, s36, 2')
    A(f's_lshl_b32 {S_OUT}, s24, {RBS}\ns_add_u32 {S_FC}, {S_FC}, {S_OUT}\ns_add_u32 {S_FO}, {S_FO}, {S_OUT}\ns_mul_i32 s25, s22, {TWIN}\ns_add_u32 {S_FO}, {S_FO}, s25')
    A(f's_lshl_b32 s25, s22, 10\ns_add_u32 {S_FC}, {S_FC}, s25\ns_add_u32 {S_OUT}, {S_OUT}, s25\ns_lshl_b32 s25, s21, 16\ns_add_u32 {S_OUT}, {S_OUT}, s25\ns_add_u32 {S_OUT}, {S_OUT}, s23')

def place(A, x):
    if OPT['pol'] != 2: return
    A(f's_lshr_b32 s24, s61, 14\ns_and_b32 s61, s61, 0xffff\ns_cmp_le_u32 s24, s61\ns_cbranch_scc1 L_pl{x}\ns_add_u32 s52, s52, 8192\ns_addc_u32 s53, s53, 0\ns_sub_u32 {S_ACC}, {S_ACC}, 8192')
    if x == 'c': A('s_lshl_b32 s24, s38, 13\ns_sub_u32 s31, s31, s24')
    A.label(f'L_pl{x}')

ROLE = 's_add_u32 s24, s2, s60\ns_and_b32 s24, s24, 7\ns_cmp_lg_u32 s24, s99\n'
def wrong(A):
    A.label('L_wrong'); A.fence()
    A('s_mov_b32 s99, s24\ns_or_b32 s2, s2, 256\ns_setprio 0\ns_waitcnt vmcnt(0) lgkmcnt(0)\ns_barrier\ns_nop 15\ns_branch L_restart')

def wo_srd(A):
    A('s_cmp_lt_u32 s36, 4\ns_cselect_b32 s44, s10, s16\ns_cselect_b32 s45, s11, s17\ns_mov_b32 s46, 0x80000\ns_mov_b32 s47, 0x20000')

WD = [int(c) for c in str(OPT['wd']) if c.isdigit()]
W0 = [int(c) for c in str(OPT['w0']) if c.isdigit()]
NWO = 4 * (bool(WD) + bool(W0))
def wo_dma(A, j, g=1):
    cnt = 0; n = 16 // max(1, len(WD) + len(W0))
    for k, x in enumerate(WD if g else W0):
        if x != j: continue
        for i in range(n):
            A(f's_xor_b32 m0, {S_WO}, {4096 * (n * (k + (len(W0) if g else 0)) + i)}\ns_lshl_b32 s24, m0, 3')
            if 'w' not in OPT['ko']: A(f'buffer_load_dwordx4 v{WOL}, s[44:47], s24 offen lds'); cnt += 1
    return cnt

def halo_edge(A, x):
    A(f's_cmp_lt_u32 s39, 2\ns_cbranch_scc1 L_nb{x}')
    A.label(f'L_nb2{x}')
    def edge():
        A.label(f'L_nb{x}'); A.fence(); A.raw(';PAD')
        A('v_mov_b32 v48, 0\nv_mov_b32 v49, 0\nv_mov_b32 v50, 0\nv_mov_b32 v51, 0\nv_add_u32 v7, s27, v8')
        for i in range(4): A(f'ds_write_b128 v7, v[48:51] offset:{i*1024}')
        A(f's_cmp_eq_u32 s39, 1\ns_cbranch_scc1 L_nb2{x}')
        for i in range(4, 8): A(f'ds_write_b128 v7, v[48:51] offset:{i*1024}')
        A(f's_branch L_nb2{x}')
    OOL.append(edge)
def halo_loads(x): return [([48, 50, 0][nb] + i, f's{9+nb}', 128*i) for nb in range(3 if x == 'A' else 2) for i in range(2)][-OPT['hl']:]
def halo_addr(A):
    A(f'v_and_b32 v55, 1, v1\nv_lshlrev_b32 v55, 7, v55\ns_mov_b64 exec, 3\nv_add_u32 v55, s9, v55\ns_mov_b64 exec, 12\nv_add_u32 v55, s10, v55\ns_mov_b64 exec, 48\nv_add_u32 v55, s11, v55\ns_mov_b64 exec, -1')
def halo_issue(A, x):
    if x in OPT['sp']: sp_issue(A, halo_loads(x)); return
    if x == 'B': halo_addr(A)
    A(f's_mov_b64 exec, {63 if x == "A" else 15}')
    poll_issue(A, PD, 55, '0', 's60')
    A('s_mov_b64 exec, -1')
def halo_fetch(A, x, first=0):
    t = 's_xor_b64 s[48:49], s[48:49], s[60:61]\ns_xor_b64 s[50:51], s[50:51], s[60:61]\ns_or_b64 s[48:49], s[48:49], s[50:51]'
    if x == 'A': t += '\ns_xor_b64 s[0:1], s[0:1], s[60:61]\ns_or_b64 s[48:49], s[48:49], s[0:1]'
    if OPT['hl']: t = f's_cmp_lg_u32 s{halo_loads(x)[-1][0]}, s60'
    if x in OPT['sp']: sp_wait(A, halo_loads(x), t)
    else:
        A(f's_mov_b64 exec, {63 if x == "A" else 15}')
        if 'p' not in OPT['ko']: poll(A, PD, 55, '0', 's60', inline=True, first=first)
        A('s_mov_b64 exec, -1')
    halo_dma(A, x, x)
def halo_dma(A, x, u):
    stamp(A, 5)
    for nb in range(3 if x == 'A' else 2):
        if nb < 2: A(f's_cmp_lt_u32 s39, {2-nb}\ns_cbranch_scc1 L_sk{nb}{u}')
        A(f's_sub_u32 s25, s33, {(2-nb) << RBS}\ns_add_u32 m0, s27, {nb*4096}')
        for i in range(4 * ('h' not in OPT['ko'])): A(f'buffer_load_dwordx4 v8, s[52:55], s25 offen offset:{i*1024} sc1 lds')
        if nb < 2: A.label(f'L_sk{nb}{u}')
    stamp(A, 7)

def gen(A):
    name = NAME
    WSZ = WS_SIZE if not OPT['stamps'] else 0x2000000
    A.raw(f'.globl {name}\n.p2align 12\n.type {name},@function\n{name}:')
    stamp(A, 30)
    A('s_cmp_ge_u32 s2, 256\ns_cbranch_scc1 L_end')
    A('s_getreg_b32 s99, hwreg(HW_REG_XCC_ID, 0, 3)' if OPT['rot'] else 's_and_b32 s99, s2, 7')
    if OPT['mis']: A(f's_lshr_b32 s3, s2, {OPT["mis"]}\ns_add_u32 s99, s99, s3\ns_and_b32 s99, s99, 7')
    A.label('L_restart')
    A('s_load_dwordx16 s[4:19], s[0:1], 0\ns_load_dwordx4 s[20:23], s[0:1], 64')
    A('v_lshrrev_b32 v2, 6, v0\nv_and_b32 v1, 63, v0')
    A('s_lshl_b32 s36, s99, 2\ns_lshr_b32 s36, 0x76325410, s36\ns_and_b32 s36, s36, 7\ns_bfe_u32 s37, s2, 0x50003')
    A('v_readfirstlane_b32 s41, v2')
    A('s_and_b32 s38, s37, 1')
    A('s_and_b32 s39, s36, 3\ns_lshl_b32 s39, s39, 2\ns_bfe_u32 s42, s37, 0x20001\ns_add_u32 s39, s39, s42')
    A('s_lshl_b32 s35, s38, 2\ns_xor_b32 s35, s35, s36\ns_and_b32 s35, s35, 4\ns_lshr_b32 s42, s37, 3\ns_add_u32 s35, s35, s42')
    A('s_lshl_b32 s40, s35, 1\ns_add_u32 s40, s40, s38')
    A('v_lshlrev_b32 v8, 4, v1\nv_and_b32 v10, 31, v1\nv_lshrrev_b32 v11, 5, v1')
    A('s_cmp_lt_u32 s41, 4\ns_cbranch_scc1 L_cpre')
    A('s_mov_b32 s46, 0x200000\ns_mov_b32 s47, 0x20000\ns_mov_b32 s50, 0x180000\ns_mov_b32 s51, 0x20000')
    A('s_sub_u32 s43, s41, 4')
    A('v_lshrrev_b32 v3, 3, v1\nv_and_b32 v4, 7, v1\nv_lshrrev_b32 v5, 4, v1')
    A('v_xor_b32 v6, v4, v5\nv_lshlrev_b32 v6, 4, v6\nv_lshl_add_u32 v6, v3, 10, v6')
    A('s_lshl_b32 s24, s39, 17\ns_lshl_b32 s25, s43, 15\ns_add_u32 s24, s24, s25')
    A('v_add_u32 v16, s24, v6\nv_xor_b32 v17, 64, v16\nv_add_u32 v17, 8192, v17\nv_add_u32 v18, 16384, v16\nv_add_u32 v19, 16384, v17')
    A('v_and_b32 v5, 1, v5\nv_lshlrev_b32 v5, 2, v5\nv_xor_b32 v4, v4, v5\nv_mul_u32_u24 v3, 3072, v3\nv_lshl_add_u32 v3, v4, 4, v3')
    A('s_mul_i32 s24, s43, 49152\ns_lshl_b32 s25, s35, 7\ns_add_u32 s24, s24, s25')
    A('v_add_u32 v20, s24, v3\nv_xor_b32 v21, 32, v20\nv_add_u32 v21, 24576, v21')
    A(f's_lshl_b32 s30, s43, 12\ns_lshl_b32 s31, s43, 11')
    A(f's_add_u32 s26, s39, s35\ns_and_b32 s26, s26, {OPT["grp"]}\ns_lshl_b32 s26, s26, {OPT["gsh"]}')
    if OPT['xa'] >= 0: A(f's_lshl_b32 s27, s38, {OPT["xa"]}\ns_xor_b32 s26, s26, s27')
    if OPT['xm']: A(f's_and_b32 s27, s36, {OPT["xm"]}\ns_lshl_b32 s27, s27, {OPT["xs"]}\ns_xor_b32 s26, s26, s27')
    if OPT['ot']:
        T = [sum(int(c) << (4*i) for i, c in enumerate(o)) for o in OPT['ot'].split('.')]
        assert all(sorted(o) == list('01234567') for o in OPT['ot'].split('.'))
        A(f's_add_u32 s24, s39, s35\ns_mov_b32 s34, 0x{T[0]:x}\ns_mov_b32 s25, 0x{T[2]:x}\ns_bitcmp0_b32 s24, 0\ns_cselect_b32 s34, s34, 0x{T[1]:x}\ns_cselect_b32 s25, s25, 0x{T[3]:x}\ns_bitcmp0_b32 s24, 1\ns_cselect_b32 s34, s34, s25')
    A('s_cmp_eq_u32 s38, 0')
    A('s_waitcnt lgkmcnt(0)')
    A('s_cselect_b32 s44, s12, s4\ns_cselect_b32 s45, s13, s5\ns_cselect_b32 s48, s14, s6\ns_cselect_b32 s49, s15, s7')
    stamp(A, 0); stamp(A, 60)
    ORD = [int(c) for c in str(OPT['order']).zfill(8)]
    vq = Q(A, 'vmcnt', 63)
    def wsoff(st):
        if OPT['ot']: A(f's_bfe_u32 s32, s34, 0x{0x30000 + 4*st:x}\ns_lshl_b32 s32, s32, 7\ns_xor_b32 s32, s26, s32\ns_mul_i32 s33, s32, 1536')
        else: A(f's_xor_b32 s32, s26, {st*128}\ns_mul_i32 s33, s32, 1536')
    LT = []
    nis = [0]
    def issue(upto):
        while nis[0] < min(upto, 80):
            n = nis[0]; nis[0] += 1
            s, i = divmod(n, 8); base = RING[s % 4]
            if s >= 8:
                if n == 64 and OPT['qr']:
                    assert ORD == list(range(8)) and not OPT['ot']
                    A('s_add_u32 s24, s39, s35\ns_and_b32 s24, s24, 2\ns_lshl_b32 s25, s24, 7\ns_xor_b32 s26, s26, s25\ns_lshl_b32 s25, s24, 13\ns_xor_b32 s31, s31, s25')
                if i % 2 == 0: wsoff(ORD[4*(s-8) + i//2])
                A(f's_xor_b32 m0, s31, {base + (i//2)*8192 + (i%2)*1024}')
                A(f'buffer_load_dwordx4 v{20+i%2}, s[48:51], s33 offen lds')
            elif i < 4:
                if i == 0: wsoff(ORD[s])
                A(f's_add_u32 m0, s30, {base + i*1024}')
                A(f'buffer_load_dwordx4 v{16+i}, s[44:47], s32 offen lds')
            else:
                seg = i // 2 - 1
                A(f's_add_u32 m0, s31, {base + 8192 + seg*7168 + (i%2)*1024}')
                A(f'buffer_load_dwordx4 v{20+i%2}, s[48:51], s33 offen offset:{seg*1024} lds')
            vq.push(('st', s))
            if n % 2 and n < 38: stamp(A, 61 + n//2)
            if n >= OPT['cst']:
                for _ in range(OPT['cn']):
                    if LT: A(LT.pop(0))
    issue(OPT['n0'])
    stamp(A, 1)
    srd(A, 52, 22, WSZ); srd(A, 56, 20, 0x100)
    if OPT['pol'] == 1: A('s_add_u32 s52, s52, 8192\ns_addc_u32 s53, s53, 0')
    A('s_branch L_load')
    A.label('L_cpre'); A.fence()
    A('s_lshr_b32 s42, s41, 1\ns_and_b32 s43, s41, 1')
    for r in range(0, 8, 2): A(f'v_mov_b64 v[{16+r}:{17+r}], 0')
    A(f's_lshl_b32 s24, s35, 1\ns_add_u32 s24, s24, s43\ns_lshl_b32 s34, s39, {RBS}')
    A('s_lshl_b32 s25, s42, 11\ns_lshl_b32 s32, s24, 14\ns_add_u32 s32, s32, s25\ns_add_u32 s32, s32, s34')
    A(f's_lshl_b32 s24, s24, 1\ns_add_u32 s24, s24, s42\ns_lshl_b32 s24, s24, 7\ns_add_u32 s34, s34, s24\ns_add_u32 s34, s34, {WS_F1}')
    A('s_waitcnt lgkmcnt(0)')
    srd(A, 52, 22, WSZ); srd(A, 56, 20, 0x100)
    if OPT['pol'] == 1: A('s_add_u32 s52, s52, 8192\ns_addc_u32 s53, s53, 0')
    A('s_cmp_lg_u32 s41, 0\ns_cbranch_scc1 L_d1')
    if OPT['pfc']:
        A('s_getpc_b64 s[24:25]')
        A.label('L_pc0')
        A(f's_add_u32 s24, s24, {name}-L_pc0\ns_addc_u32 s25, s25, -1')
        A(f's_lshl_b32 s30, s37, 7\nv_lshlrev_b32 v13, 12, v1\nv_add_u32 v13, s30, v13\nv_min_u32 v13, L_cold-{name}-4, v13\ns_mov_b64 exec, 0xff')
        A('global_load_dword v255, v13, s[24:25]')
        A('s_mov_b64 exec, -1')
    srd(A, 44, 8, 0x4000)
    A(f's_lshl_b32 s24, s35, 11\ns_mov_b32 m0, {WPH}')
    for i in range(2): A(f'buffer_load_dwordx4 v8, s[44:47], s24 offen offset:{i*1024} lds')
    A(f'v_mov_b32 v12, {TAG}\nv_lshl_add_u32 v12, v1, 2, v12\ns_mov_b32 exec_hi, 0\nds_write_b32 v12, v16\ns_mov_b64 exec, -1')
    A.label('L_d1'); A.fence()
    A('s_cmp_lg_u32 s41, 1\ns_cbranch_scc1 L_d2\ns_cmp_ge_u32 s2, 32\ns_cbranch_scc1 L_d2')
    A(f's_mul_i32 s24, s2, {ACCB}\ns_add_u32 s24, s24, {WS_ACC}')
    A('buffer_store_dwordx4 v[16:19], v8, s[52:55], s24 offen sc1\nbuffer_store_dwordx4 v[16:19], v8, s[52:55], s24 offen offset:1024 sc1')
    A(f's_add_u32 s24, s24, {AUX}\ns_lshr_b32 s25, s2, 1\ns_lshl_b32 s25, s25, {RBS}\ns_and_b32 s3, s2, 1\ns_lshl_b32 s3, s3, 13\ns_add_u32 s25, s25, s3\ns_add_u32 s25, s25, {WS_F1}\ns_add_u32 s3, s25, 4096')
    A('buffer_store_dwordx4 v[16:19], v8, s[52:55], s3 offen sc1\nbuffer_store_dwordx4 v[16:19], v8, s[52:55], s3 offen offset:1024 sc1')
    if OPT['fw']:
        for i in range(4): A(f'buffer_store_dwordx4 v[16:19], v8, s[52:55], s25 offen offset:{i*1024} sc1')
    A('s_mov_b64 exec, 0xff00')
    for r in range(4): A(f'v_mov_b32 v{20+r}, 1.0')
    A('s_mov_b64 exec, -1')
    A('buffer_store_dwordx4 v[20:23], v8, s[52:55], s24 offen sc1')
    A.label('L_d2'); A.fence()
    DYN = OPT['pol'] == 2
    if DYN:
        A(f's_cmp_lg_u32 s41, 2\ns_cbranch_scc1 L_d21\ns_sub_u32 s24, s2, {OPT["vb"]}\ns_cmp_ge_u32 s24, 32\ns_cbranch_scc1 L_d21')
        A(f's_and_b32 s24, s37, 2\ns_add_u32 s24, s24, s37\ns_add_u32 s24, s24, s24\ns_and_b32 s24, s24, 10\ns_lshl_b32 s24, s24, 11\ns_lshl_b32 s26, s36, 8\ns_add_u32 s26, s26, s24\ns_add_u32 s26, s26, {WS_PR}')
        A('s_buffer_load_dword s60, s[52:55], s26 glc\ns_buffer_load_dword s60, s[52:55], s26 offset:8192 glc')
        A.label('L_d21'); A.fence()
    A('s_cmp_lg_u32 s41, 3\ns_cbranch_scc1 L_d3\ns_cmp_lg_u32 s2, 0\ns_cbranch_scc1 L_d3')
    A(f's_mov_b32 s24, {WS_EP}\nbuffer_load_dword v{PD}, v16, s[52:55], s24 offen sc1')
    A.label('L_d3'); A.fence()
    wo_srd(A)
    stamp(A, 0)
    common(A)
    if OPT['tl']:
        A('s_cmp_lg_u32 s41, 0\ns_cbranch_scc1 L_tl')
        if OPT['tl'] & 1: A('v_lshlrev_b32 v12, 20, v1\ns_mov_b64 exec, 0xffffff\nbuffer_load_dword v255, v12, s[52:55], 0 offen offset:3968 sc1')
        A('s_mov_b64 exec, 1')
        if OPT['tl'] & 2: A(f'buffer_load_dword v255, v{WOL}, s[44:47], 0 offen')
        if OPT['tl'] & 4:
            srd(A, 48, 18, 0x400000)
            A(f'buffer_load_dword v255, v{V0}, s[48:51], {S_OUT} offen sc1')
        A('s_mov_b64 exec, -1')
        A.label('L_tl')
    A('v_lshrrev_b32 v4, 4, v1\nv_bfe_u32 v12, v1, 1, 3\nv_xor_b32 v12, v12, v4\nv_and_b32 v13, 15, v1\nv_lshl_add_u32 v12, v13, 3, v12')
    A('s_lshl_b32 s24, s42, 13\nv_lshl_add_u32 v2, v12, 4, s24\nv_xor_b32 v3, 64, v2')
    A('v_bfe_u32 v12, v1, 2, 2\nv_lshl_add_u32 v12, v4, 3, v12\nv_lshlrev_b32 v12, 7, v12')
    A('v_bfe_u32 v13, v1, 3, 1\nv_xor_b32 v13, s43, v13\nv_lshl_add_u32 v12, v13, 6, v12')
    A('v_bfe_u32 v13, v1, 4, 1\nv_lshl_add_u32 v12, v13, 5, v12\nv_and_b32 v14, 3, v1\nv_lshl_add_u32 v6, v14, 3, v12')
    A('v_bfrev_b32 v4, v14\nv_lshrrev_b32 v4, 27, v4\nv_add_u32 v4, v4, v12')
    tr_lane(A, 9, 5, 2)
    A(f'v_lshl_add_u32 v9, v14, 3, v9\ns_lshl_b32 s24, s43, 10\ns_add_u32 s24, s24, {WPH}\nv_add_u32 v9, s24, v9')
    A(f'v_mov_b32 v15, {TAG}')
    A('s_and_b32 s24, s38, s42\ns_lshl_b32 s25, s24, 5\nv_xor_b32 v4, s25, v4\nv_xor_b32 v6, s25, v6\ns_lshl_b32 s25, s24, 9\nv_xor_b32 v9, s25, v9\nv_xor_b32 v14, 512, v9')
    A('v_xor_b32 v5, 32, v4\nv_xor_b32 v7, 32, v6')
    for r in range(6): A(f'v_add_u32 v{160+r}, 0x10000, v{2+r}')
    A(f's_lshl_b32 s24, s39, {RBS}\ns_lshl_b32 s25, s40, 8\ns_add_u32 s11, s25, s24\ns_add_u32 s11, s11, {WS_F1}')
    A(f's_lshl_b32 s33, s40, 14\ns_add_u32 s33, s33, s24\ns_lshl_b32 s25, s43, 12\ns_add_u32 s33, s33, s25\ns_mul_i32 s25, s42, {TWIN}\ns_add_u32 s33, s33, s25\ns_mul_i32 s27, s41, 12288\ns_add_u32 s27, s27, {KL}')
    A(f's_min_u32 s24, s39, 2\ns_lshl_b32 s24, s24, {RBS}\ns_sub_u32 s9, s11, s24\ns_min_u32 s24, s24, {1 << RBS}\ns_sub_u32 s10, s11, s24')
    A('s_cmp_eq_u32 s38, 1\ns_cbranch_scc1 L_cpA')
    A('v_and_b32 v12, 15, v1\nv_lshlrev_b32 v12, 4, v12\nv_lshl_add_u32 v12, v11, 8, v12\nv_lshl_add_u32 v52, v13, 12, v12')
    A(f's_lshl_b32 s25, s42, 11\nv_mul_u32_u24 v13, 12288, v13\nv_add_u32 v12, v12, v13\ns_add_u32 s24, s25, {VL + 8192}\nv_add_u32 v53, s24, v12')
    A(f's_add_u32 s24, s25, {KL + 8192}\nv_add_u32 v54, s24, v8\ns_add_u32 s30, s32, 4096\ns_add_u32 s31, s32, {TWIN}')
    A('s_branch L_cpd')
    A.label('L_cpA'); A.fence()
    for r in range(0, 32, 2): A(f'v_mov_b64 v[{168+r}:{169+r}], v[{ONES}:{ONES+1}]')
    A(f's_mul_i32 s30, s41, {PHI_WAVE}\ns_add_u32 s30, s30, {PHI}')
    A('v_and_b32 v12, 1, v1\nv_lshlrev_b32 v12, 4, v12\nv_mov_b32 v13, 0x3f80\nv_lshlrev_b32 v13, v12, v13')
    A('v_lshlrev_b32 v12, 4, v11\nv_sub_u32 v12, v10, v12\nv_lshrrev_b32 v12, 1, v12')
    for r in range(8): A(f'v_cmp_eq_u32 vcc, {r}, v12\nv_cndmask_b32 v{SEL+r}, 0, v13, vcc')
    A('v_lshlrev_b32 v54, 2, v10\nv_lshl_add_u32 v54, v11, 9, v54')
    A(f'v_add_u32 v52, s30, v8\ns_xor_b32 s24, s41, 2\ns_mul_i32 s25, s24, {PHI_WAVE}\ns_add_u32 s25, s25, {PHI}\nv_add_u32 v53, s25, v8')
    A('v_and_b32 v12, 31, v1\nv_lshl_add_u32 v12, v12, 1, v11\nv_lshl_add_u32 v251, v12, 3, s30\nv_and_b32 v12, 15, v1\nv_lshl_add_u32 v12, v11, 4, v12\nv_lshl_add_u32 v55, v12, 4, s30')
    A(f's_lshl_b32 s24, s35, 2\ns_lshl_b32 s25, s43, 1\ns_add_u32 s24, s24, s25\ns_add_u32 s24, s24, s42\ns_xor_b32 s24, s24, 1\ns_mul_i32 s31, s24, {ACCB}\ns_add_u32 s31, s31, {WS_ACC}')
    A.label('L_cpd'); A.fence()
    def padwalk(k):
        if not OPT['pads']: return
        A('s_mov_b64 exec, 0')
        for w in range(3): A(f's_cmp_eq_u32 s41, {w}\ns_cbranch_scc1 L_chain{4*k+w}')
        A(f's_branch L_chain{4*k+3}')
        A.label(f'L_padret{k}')
        A('s_mov_b64 exec, -1')
    def duties():
        A('s_cmp_lt_u32 s2, 32\ns_cbranch_scc1 L_d4')
        A.label('L_d5')
        def f():
            A.label('L_d4'); A.fence(); A.raw(';PAD')
            A('s_mov_b64 exec, 1\ns_cmp_lg_u32 s41, 1\ns_cbranch_scc1 L_d6')
            A(f's_waitcnt vmcnt(0)\nbuffer_atomic_add v{V1}, v{V0}, s[56:59], 0 offen offset:4')
            A.label('L_d6')
            A('s_cmp_lg_u32 s41, 3\ns_cbranch_scc1 L_d7\ns_cmp_lg_u32 s2, 0\ns_cbranch_scc1 L_d7')
            A(f's_waitcnt vmcnt(0)\nv_add_u32 v{PD}, 8, v{PD}\nv_and_b32 v{PD}, -8, v{PD}\nv_max_u32 v{PD}, 8, v{PD}\nv_or_b32 v{PD}, s99, v{PD}\ns_mov_b32 s24, {WS_EP}')
            A(f'buffer_store_dword v{PD}, v{V0}, s[56:59], 0 offen sc1')
            A(f'buffer_store_dword v{PD}, v{V0}, s[52:55], s24 offen sc1')
            A.label('L_d7')
            A('s_mov_b64 exec, -1\ns_branch L_d5')
        OOL.insert(0, f)
    def clear():
        if not OPT['ua']: return
        A(f'v_mov_b64 v[56:57], -1\nv_mov_b64 v[58:59], -1\ns_add_u32 s24, {S_OA}, 0x4000\ns_add_u32 s25, {S_OA}, 0x200000\ns_add_u32 s3, {S_OA}, 0x204000')
        for so in (S_OA, 's24', 's25', 's3'): A(f'buffer_store_dwordx4 v[56:59], v8, s[52:55], {so} offen sc1')
    if DYN:
        A(f's_cmp_lg_u32 s41, 2\ns_cbranch_scc1 L_d8\ns_sub_u32 s24, s2, {OPT["vb"]}\ns_cmp_ge_u32 s24, 32\ns_cbranch_scc1 L_d8\ns_mov_b64 s[24:25], -1\ns_waitcnt lgkmcnt(0)')
        stamp(A, 27)
        A('s_memtime s[48:49]')
        for r in range(2 * OPT['nrep']):
            a, b = (48, 50) if r % 2 == 0 else (50, 48)
            A(f's_waitcnt lgkmcnt(0)\ns_buffer_load_dword s60, s[52:55], s26 offset:{8192 * (r % 2)} glc\ns_waitcnt lgkmcnt(0)\ns_memtime s[{b}:{b+1}]\ns_waitcnt lgkmcnt(0)')
            A(f's_sub_u32 s3, s{b}, s{a}\ns_min_u32 s{24 + r % 2}, s{24 + r % 2}, s3')
        A('s_cmp_gt_u32 s24, s25\ns_cselect_b32 s3, 2, 0\ns_xor_b32 s3, s3, s36\ns_and_b32 s3, s3, 2\ns_lshl_b32 s3, s3, 15\ns_add_u32 s3, s3, 1')
        A(f'v_mov_b32 v{PD}, s3\ns_mov_b64 exec, 1\nbuffer_atomic_add v{PD}, v{V0}, s[56:59], 0 offen offset:4\ns_mov_b64 exec, -1')
        stamp(A, 28)
        A.label('L_d8'); A.fence()
    padwalk(0)
    if OPT['pw2'] < 0: padwalk(1)
    if OPT['dpos'] < 0: duties()
    A('s_branch L_cons')
    A.label('L_load'); A.fence()
    if OPT['sprio']: A(f's_setprio {OPT["sprio"]}')
    for r in (52, 54, 242, 244, 246, 248): A(f'v_mov_b64 v[{r}:{r+1}], 0')
    A(f'v_bfe_u32 v12, v1, 1, 3\nv_xor_b32 v12, v12, v11\nv_lshlrev_b32 v12, 4, v12')
    A('v_lshl_add_u32 v13, v10, 7, s30')
    for ks in range(4): A(f'v_xor_b32 v14, {ks*32}, v12\nv_add_u32 v{2+ks}, v13, v14')
    for ks in range(4): A(f'v_add_u32 v{12+ks}, 0x10000, v{2+ks}')
    def later(E):
        common(E)
        tr_lane(E, 6, 7, 3)
        E('v_bfe_u32 v7, v1, 3, 1\nv_xor_b32 v7, s38, v7\nv_lshl_add_u32 v6, v7, 6, v6')
        E('v_bfe_u32 v7, v1, 4, 1\nv_xor_b32 v7, v7, v11\nv_lshl_add_u32 v6, v7, 5, v6\nv_and_b32 v7, 3, v1\nv_lshl_add_u32 v7, v7, 3, v6\nv_xor_b32 v6, 64, v7')
        E(f's_mul_i32 s9, s38, {2*TWIN}\ns_sub_u32 s9, {TWIN}, s9\ns_add_u32 s9, s9, {S_QG}')
    LT.extend(stream(later))
    LA = [int(c, 36) for c in str(OPT['la'])]
    XF = 64
    for s in range(8):
        assert LA[s] <= 16
        issue(8*s + 8 + LA[s])
        vq.wait(('st', s))
        A('s_waitcnt lgkmcnt(0)\ns_barrier')
        stamp(A, 32 + s)
        for ks in range(4):
            A(f'ds_read_b128 {vr(XF + 16*s + 4*ks, 4)}, v{(2 if RING[s % 4] < 65536 else 12) + ks} offset:{RING[s % 4] & 65535}')
        if s == OPT['tagl']: A('s_buffer_load_dwordx2 s[60:61], s[56:59], 0')
        if s == 6:
            assert not LT and OPT['tagl'] < 6
            TST = f's_and_b32 s24, s61, 0xffff\ns_cmp_lg_u32 s60, 0\ns_cselect_b32 s24, s24, 0\ns_cmp_lt_u32 s24, {64 if DYN else 32}'
            A(TST + '\ns_cbranch_scc1 L_tgw')
            A.label('L_tgd')
            A(f'v_mov_b32 v22, {TAG}\nv_mov_b32 v24, s60\nv_mov_b32 v25, s61\nds_write_b64 v22, v[24:25]')
            place(A, 'l')
            def tgw():
                A.label('L_tgw'); A.fence()
                A(f's_mov_b32 s3, {SPIN_MAX}')
                A.label('L_tg')
                if OPT['dg']: A(f's_mov_b64 exec, 1\nbuffer_atomic_add v{V1}, v{V0}, s[56:59], 0 offen offset:8\ns_mov_b64 exec, -1')
                A(f's_sleep 1\nbuffer_load_dwordx2 v[24:25], v{V0}, s[56:59], 0 offen sc1\ns_waitcnt vmcnt(0)\nv_readfirstlane_b32 s60, v24\nv_readfirstlane_b32 s61, v25')
                A(TST + '\ns_cselect_b32 s3, s3, 0\ns_sub_u32 s3, s3, 1\ns_cbranch_scc0 L_tg\ns_branch L_tgd')
            OOL.append(tgw)
    if OPT['e0w'] == 0:
        issue(OPT['e0n'])
        A(ROLE + 's_cbranch_scc1 L_wrong\ns_waitcnt lgkmcnt(0)\ns_barrier')
    issue(80)
    wo_srd(A)
    def awtouch():
        A('s_lshr_b32 s24, s37, 1\ns_lshl_b32 s24, s24, 2\ns_add_u32 s24, s24, s43\ns_xor_b32 s25, s38, 1\ns_lshl_b32 s25, s25, 6\ns_add_u32 s24, s24, s25\ns_lshl_b32 s24, s24, 13\nv_lshl_add_u32 v28, v1, 7, s24')
        A('buffer_load_dword v255, v28, s[44:47], 0 offen'); vq.push('aw')
    if OPT['aw'] == 1: awtouch()
    A(f's_cmp_eq_u32 s38, 0\ns_cselect_b32 s27, 0x{f2u(0.25*LOG2E):x}, 1.0')
    vq.wait(('st', 7 + max(1, OPT['e0w'])))
    if OPT['e0w']: A('s_waitcnt lgkmcnt(0)\ns_barrier')
    else:
        lds_add(A, C_WQ, 22)
        lds_spin(A, C_WQ, 4, 22, 23, sleep=False)
    stamp(A, 40)
    stamp(A, 42); stamp(A, 2)
    if OPT['sprio']: A('s_setprio 0')
    if OPT['lprio']:
        if not OPT['aprio']: A('s_cmp_eq_u32 s38, 1\ns_cbranch_scc1 L_noprio')
        A(f's_setprio {OPT["lprio"]}')
        A.label('L_noprio')
    lq = Q(A, 'lgkmcnt', 15)
    NR = 6; WF = 192; QD = OPT['qd']
    def qread(m):
        n = m % 32; f = WF + 4 * (m % NR)
        for rd in range(2):
            A(f'ds_read_b64_tr_b16 v[{f+2*rd}:{f+2*rd+1}], v{6 + m//32} offset:{n*2048 + rd*512}'); lq.push(('q', m))
    for m in range(QD): qread(m)
    ep = []
    for h in range(3):
        rr = range(3*h, min(3*h + 3, 8))
        ep += [f'v_mul_f32 v{32+2*r+e}, s27, v{32+2*r+e}' for r in rr for e in range(2)] + [f'v_cvt_pk_bf16_f32 v{16+GR[r]}, v{32+2*r}, v{33+2*r}' for r in rr]
        if h < OPT['ng'] and 'Q' not in OPT['ko']: ep += [f'buffer_store_dwordx4 {vr(16+4*h,4)}, v8, s[52:55], s9 offen offset:{h*1024} sc1']
    for m in range(64):
        lq.wait(('q', m))
        acc = 32 + 16 * (m // 32)
        if 'c' in OPT['ko'] and m % 32: A('s_nop 7')
        else: A(mfma32(acc, WF + 4*(m % NR), XF + 4*(m % 32), acc if m % 32 else None))
        if m == 16 - QD - 4 and OPT['e0w'] < 2:
            vq.wait(('st', 9))
            lds_add(A, C_WQ2, 22); lq.push('cnt')
        if m + QD == 16 and OPT['e0w'] < 2:
            lds_spin(A, C_WQ2, 4, 22, 23, sleep=False); lq.q = []
            stamp(A, 41); stamp(A, 22)
        if m + QD < 64: qread(m + QD)
        if m >= 32:
            for _ in range(OPT['epn']):
                if ep: A(ep.pop(0))
        if m == OPT['aw'] and m > 1: awtouch()
        if m == 31: stamp(A, 23)
        if m == 33: stamp(A, 24)
        if m == 20:
            for r in (19, 23, 26, 27): A(f'v_mov_b32 v{r}, s60')
        if m == 44:
            tr_lane(A, 15, 5, 2)
            A(f'v_and_b32 v14, 3, v1\nv_lshl_add_u32 v15, v14, 3, v15\ns_lshl_b32 s24, s38, 10\ns_add_u32 s24, s24, {WPH}\nv_add_u32 v15, s24, v15')
        if m == 46:
            for hs in range(2):
                for rd in range(2): A(f'ds_read_b64_tr_b16 v[{16+4*hs+2*rd}:{17+4*hs+2*rd}], v15 offset:{hs*512 + rd*256}'); lq.push('wphi')
        if m == OPT['qpoll'] or m == OPT['bq']:
            if OPT['qpoll'] != OPT['bq']: A(f's_cmp_eq_u32 s38, {0 if m == OPT["qpoll"] else 1}\ns_cbranch_scc1 L_noqp{m}')
            gran_issue(A, 32, 2)
            A.label(f'L_noqp{m}')
    stamp(A, 4)
    if OPT['lprio']: A('s_setprio 0')
    A(f's_lshl_b32 s24, s43, 10\nv_add_u32 v15, s24, v{QRD}')
    A('s_cmp_eq_u32 s38, 1\ns_cbranch_scc1 L_qa')
    for r in range(16): A(f'v_mul_f32 v{48+r}, s27, v{48+r}')
    for r in range(8): A(f'v_cvt_pk_bf16_f32 v{24+r}, v{48+2*r}, v{49+2*r}')
    A(f'ds_write_b128 v{QRD}, v[24:27]')
    if OPT['bq'] == 64: gran_issue(A, 32, 2)
    A('s_waitcnt lgkmcnt(0)\ns_barrier')
    if OPT['bq'] == 65: gran_issue(A, 32, 2)
    if OPT['bt']:
        A('s_bfe_u32 s24, s37, 0x10001\ns_lshl_b32 s24, s24, 2\ns_add_u32 s24, s24, s43\ns_lshl_b32 s24, s24, 16\ns_lshr_b32 s25, s37, 2\ns_lshl_b32 s25, s25, 7\ns_add_u32 s24, s24, s25\nv_lshlrev_b32 v14, 10, v1')
        A('buffer_load_dword v255, v14, s[44:47], s24 offen')
    if OPT['wb9']:
        stamp(A, 8)
        gran_wait(A, 32, 2, 104, False, 0)
        if OPT['bp']: A('s_setprio 1')
        A('s_branch L_qb')
    A.label('L_wo'); A.fence()
    if not OPT['wb9']: stamp(A, 8)
    if OPT['bp']: A('s_setprio 0')
    nwo = wo_dma(A, 8) + OPT['bt']
    if OPT['wb9']:
        stamp(A, 26)
        A('s_branch L_att')
    else:
        A('s_cmp_eq_u32 s38, 1\ns_cbranch_scc1 L_att')
        gran_wait(A, 32, 2, 104, False, nwo)
        stamp(A, 7)
        A('s_branch L_qb')
    A.label('L_qa'); A.fence()
    A('s_nop 8')
    for r in range(8): A(f'v_cvt_pk_bf16_f32 v{104+r}, v{48+2*r}, v{49+2*r}')
    A.label('L_qb'); A.fence(); A('s_nop 1')
    for hs in range(2): A(mfma32(64+16*hs, 16+4*hs, 104+4*hs, None))
    def phiq(E, hs):
        p = 64 + 16 * hs
        dual_exp(E, p, p + 8, 96 + 2*hs)
        for m in range(8): E(f'v_cvt_pk_bf16_f32 v{(104 if hs == 0 else 48)+m}, v{p+2*m}, v{p+2*m+1}')
    for a, b in zip(stream(phiq, 0), stream(phiq, 1)): A(a); A(b)
    A(f'ds_write_b128 v15, v[104:107] offset:{PQX-QX}\nds_write_b128 v15, v[108:111] offset:{PQX-QX+1024}')
    lds_add(A, C_PQ, 14)
    stamp(A, 6)
    A('s_cmp_eq_u32 s38, 0\ns_cbranch_scc1 ' + ('L_wo' if OPT['wb9'] else 'L_att'))
    gran_wait(A, 32, 2, 24, True)
    A(f'ds_write_b128 v{QRD}, v[24:27]')
    stamp(A, 7)
    A('s_waitcnt lgkmcnt(0)\ns_barrier')
    if OPT['wb9'] or OPT['wA'] < 8: stamp(A, 8)
    A('s_branch L_wo' if OPT['wA'] == 8 else 's_branch L_att')
    A.label('L_cons'); A.fence(); A.raw(';PAD')
    stamp(A, 21)
    KA, VA = [96, 112], [128, 144]
    FS = [16, 64]
    lq = Q(A, 'lgkmcnt', 12)
    def reads(n):
        s, ks = divmod(n, 2); f = FS[n % 2]
        ab = 2 if RING[s % 4] < 65536 else 160
        so = RING[s % 4] & 65535
        def rx(u): return [(f'ds_read_b128 {vr(f+4*u,4)}, v{ab+ks} offset:{so + u*2048}', (n, 'x', u))]
        def rw(c): return [(f'ds_read_b64_tr_b16 v[{f+16+4*c+2*rd}:{f+17+4*c+2*rd}], v{ab+2+c} offset:{so + 16384 + (c//2)*8192 + ks*4096 + rd*512}', (n, 'w', c)) for rd in range(2)]
        return rx(0) + rw(0) + rx(1) + rw(1) + rx(2) + rx(3) + rw(2) + rw(3)
    def mfma16(d, a, b, c): return f'v_mfma_f32_16x16x32_bf16 {vr(d,4)}, {vr(a,4)}, {vr(b,4)}, {vr(c,4) if c is not None else "0"}'
    def mk(n, u, hs):
        d = KA[u//2] + 8*hs + 4*(u % 2)
        return mfma16(d, FS[n % 2] + 16 + 4*hs, FS[n % 2] + 4*u, d if n else None)
    def mv1(n, u, hs):
        d = VA[u//2] + 8*(u % 2) + 4*hs
        return mfma16(d, FS[n % 2] + 4*u, FS[n % 2] + 24 + 4*hs, d if n else None)
    def mv(n, u): return mv1(n, u, 0) + '\n' + mv1(n, u, 1)
    KO = [(0, 0), (1, 0), (1, 1), (0, 1), (2, 1), (2, 0), (3, 0), (3, 1)]
    A('s_waitcnt lgkmcnt(0)\ns_barrier')
    stamp(A, 1)
    for t, tag in reads(0): A(t); lq.push(tag)
    for n in range(14):
        nxt = reads(n + 1)
        newstage = (n % 2 == 1)
        for mi in range(16):
            seg = mi // 8; u, hs = KO[mi % 8] if not seg else KO[7 - mi % 8]
            if newstage and mi == OPT['bp16']: lq.all()
            elif n and mi == 0: lq.wait((n, 'x', 3) if OPT['rodd'] == 1 else (n, 'w', 3))
            else: lq.wait((n, 'x', u), (n, 'w', 2*seg + hs))
            A(mv1(n, u, hs) if seg else mk(n, u, hs))
            if mi == 0 and 2*n == OPT['pw2']: padwalk(1)
            if mi == 0 and 2*n == OPT['dpos']: duties()
            if newstage and mi == OPT['bp16']: A('s_barrier')
            for _ in range(OPT['rodd' if newstage else 're']):
                if nxt and (not newstage or mi >= OPT['bp16']):
                    t, tag = nxt.pop(0); A(t); lq.push(tag)
        assert not nxt
        if n == 10: A('s_waitcnt vmcnt(0)')
        if n == 11:
            for hs in range(2):
                for rd in range(2): A(f'ds_read_b64_tr_b16 v[{56+4*hs+2*rd}:{57+4*hs+2*rd}], v{14 if hs else 9} offset:{rd*256}'); lq.push('wphi')
        if n == 13:
            A('s_not_b64 exec, s[28:29]\nv_mov_b64 v[56:57], 0\nv_mov_b64 v[58:59], 0\ns_mov_b64 exec, s[28:29]\nv_mov_b64 v[60:61], 0\nv_mov_b64 v[62:63], 0\ns_mov_b64 exec, -1')
            A('ds_read_b64 v[12:13], v15'); lq.push('tag')
    if OPT['cprio']: A('s_setprio 2')
    nxt = reads(15)
    E0P = 2 * OPT['e0pos']
    assert 10 < E0P < 16
    for g in range(16):
        n = 14 + g // 8; u, hs = KO[g % 8]
        if g == E0P: lq.all()
        elif g == 0: lq.wait((n, 'x', 3) if OPT['rodd'] == 1 else (n, 'w', 3))
        else: lq.wait((n, 'x', u), (n, 'w', hs))
        A(mk(n, u, hs))
        if g == E0P: A(ROLE + 's_cbranch_scc1 L_wrong\ns_barrier')
        for t, tag in nxt[OPT['rt']*g:OPT['rt']*(g+1)]: A(t); lq.push(tag)
        if g == 10: A('v_readfirstlane_b32 s60, v12\nv_readfirstlane_b32 s61, v13')
        if g == 15: place(A, 'c'); A('s_mov_b32 s61, s60')
    stamp(A, 2)
    A('s_cmp_eq_u32 s38, 1\ns_cbranch_scc1 L_epA')
    hist = list(A.hist)
    def weave(mf, fill, per):
        fill = list(fill)
        for m in mf:
            A(m)
            for _ in range(per):
                if fill: A(fill.pop(0))
        for f in fill: A(f)
    def cv(d, a): return [f'v_cvt_pk_bf16_f32 v{d+m}, v{a+2*m}, v{a+2*m+1}' for m in range(4)]
    def sw(d, *ks): return [f'v_permlane{k}_swap_b32 v{d+m}, v{d+2+m}' for k in ks for m in range(2)]
    def two(d, a, *ks): return cv(d, a) + cv(d+4, a+8) + [x for k in ks for e in range(2) for x in sw(d+4*e, k)]
    ckv = [x for tt in range(2) for x in two(160+8*tt, KA[tt], 16)]
    sk = [f'buffer_store_dwordx4 {vr(160+8*tt+4*e,4)}, v8, s[52:55], {"s30" if e else "s32"} offen offset:{tt*1024} sc1' for tt in range(2) for e in range(2)]
    cvv = [two(176+8*tt, VA[tt], 16, 32) for tt in range(2)]
    sv = [f'buffer_store_dwordx4 {vr(176+8*tt+4*e,4)}, v52, s[52:55], s31 offen offset:{tt*1024+e*512} sc1' for tt in range(2) for e in range(2)]
    VO = [mv1(n, u, hs) for tt in range(2) for n in (14, 15) for u in (2*tt, 2*tt+1) for hs in range(2)]
    A(VO[0]); A(VO[1])
    weave(VO[2:], ckv + cvv[0], 2)
    if OPT['cprio']: A('s_setprio 0')
    if OPT['e0pos'] >= 8: A('s_barrier')
    if OPT['bw']:
        for x in cvv[1]: A(x)
        cvv[1] = []
        lds_spin(A, C_WQ, 4, 2, 3)
    for x in sk + sv[:2] + cvv[1] + sv[2:]:
        if 's' not in OPT['ko'] or not x.startswith('buffer'): A(x)
    stamp(A, 3)
    flag(A, 's34', 2)
    stamp(A, 4)
    halo_edge(A, 'B')
    A('s_cmp_eq_u32 s43, 1\ns_cbranch_scc1 L_epB1')
    for tt in range(2):
        for e in range(2):
            A(f'ds_write_b128 v54, {vr(160+8*tt+4*e,4)} offset:{e*12288 + tt*1024}')
            A(f'ds_write_b128 v53, {vr(176+8*tt+4*e,4)} offset:{tt*1024 + e*512}')
    A.label('L_epB1')
    A('s_cmp_eq_u32 s39, 0\ns_cbranch_scc1 L_epB2')
    halo_issue(A, 'B'); halo_fetch(A, 'B')
    A.label('L_epB2')
    A('s_waitcnt vmcnt(0) lgkmcnt(0)\ns_branch L_e1')
    A.label('L_epA'); A.hist = hist; A.raw(';PAD')
    KPK = {0: 160, 1: 208}
    VM = [168, 184]
    EM = {(0, 0): 16, (1, 0): 24, (0, 1): 32, (1, 1): 40}
    TM = {(0, 0): 2, (1, 0): 4, (0, 1): 12, (1, 1): 14}
    PT = {(0, 0): 64, (1, 0): 80, (0, 1): 80, (1, 1): 16}
    PP = {(0, 0): 64, (1, 0): 72, (0, 1): 80, (1, 1): 16}
    def phik(E, tt, hs, fast):
        p = KA[tt] + 8*hs; em = EM[(tt, hs)]; t = TM[(tt, hs)]; d = PT[(tt, hs)]
        if fast:
            for r in range(8): E(f'v_mul_f32 v{p+r}, s62, v{p+r}')
            for r in range(8): E(f'v_exp_f32_e64 v{em+r}, -v{p+r}\nv_exp_f32 v{p+r}, v{p+r}')
        else: dual_exp(E, p, em, t)
        E(f'v_add_f32 v{t}, v{p}, v{p+1}\nv_add_f32 v{t+1}, v{em}, v{em+1}')
        for r in range(2, 8): E(f'v_add_f32 v{t}, v{t}, v{p+r}\nv_add_f32 v{t+1}, v{t+1}, v{em+r}')
        E(f'v_permlane32_swap_b32 v{t}, v{t+1}\nv_add_f32 v{t}, v{t}, v{t+1}')
        if fast: E(f'v_max_f32 v6, v6, v{t}')
        E(f'v_rcp_f32 v{t}, v{t}\nv_mov_b32 v{t+1}, v{t}\nv_permlane32_swap_b32 v{t}, v{t+1}')
        for r in range(8): E(f'v_mul_f32 v{p+r}, v{p+r}, v{t}')
        for x in cv(p, p): E(x)
        for r in range(8):
            E(f'v_mul_f32 v{em+r}, v{em+r}, v{t+1}')
            if r == 1: E(mfma32(d, p, SEL, None))
        for x in cv(em, em): E(x)
    def phik2(hs): return [x for tt in range(2) for x in cv(PP[(tt, hs)], PT[(tt, hs)]) + cv(PP[(tt, hs)] + 4, PT[(tt, hs)] + 8)]
    def tm2(hs): return [mfma32(PT[(tt, hs)], EM[(tt, hs)], SEL + 4, PT[(tt, hs)]) for tt in range(2)]
    def pair(fn, hs, *a): return [x for ab in zip(stream(fn, 0, hs, *a), stream(fn, 1, hs, *a)) for x in ab]
    ck = [two(KPK[tt], KA[tt], 16) for tt in range(2)]
    pm = [[mfma32(KA[tt], 56, KPK[tt], None), mfma32(KA[tt], 60, KPK[tt]+4, KA[tt])] for tt in range(2)]
    KV = [128, 144]
    def kvm(hs): return [mfma32(KV[hs], VM[hs] + 8*tt + 4*blk, PP[(tt, hs)] + 4*blk, KV[hs] if hs or tt or blk else None) for tt in range(2) for blk in range(2)]
    send = [f'ds_write_b128 v52, {vr(KV[0],4)}', f'ds_write_b128 v52, {vr(KV[0]+4,4)} offset:1024', f'ds_write_b32 v52, v{KV[0]+8} offset:2048', f'ds_write_b32 v48, v{V1}']
    recv = f'ds_read_b32 v50, v49\nds_read_b128 {vr(KV[1],4)}, v53\nds_read_b128 {vr(KV[1]+4,4)}, v53 offset:1024\nds_read_b32 v{KV[1]+8}, v53 offset:2048'
    weave([mv1(14, u, hs) for u in range(3) for hs in range(2)], ck[0], 2)
    weave(pm[0], ck[1], 6)
    for m in pm[1]: A(m)
    A(mv(14, 3))
    A(f'v_mov_b32 v6, 0\ns_lshl_b32 s25, s41, 2\ns_add_u32 s25, s25, {TAG + C_PAIR}')
    fast = bool(OPT['fastk'])
    S = [pair(phik, hs, fast) for hs in range(2)]
    vb = [(VM[hs] + 8*tt + 4*blk, VA[tt] + 8*blk + 4*hs) for hs in range(2) for tt in range(2) for blk in range(2)]
    vc = [x for d, a in vb for x in cv(d, a)[:2]] + [x for k in (16, 32) for d, a in vb for x in sw(d, k)]
    if OPT['vl']:
        vc = [x for d, a in vb for x in cv(a, a)[:2]] + [f'ds_write_b64 v166, v[{a}:{a+1}] offset:{4096 + 512*i}' for i, (d, a) in enumerate(vb)]
        vc = [x.replace('v166', 'v251') for x in vc]
        vc += ['s_mov_b64 exec, s[28:29]'] + [f'ds_read_b128 {vr(d,4)}, v55 offset:{4096 + 512*i}' for i, (d, a) in enumerate(vb)] + ['s_mov_b64 exec, -1']
    D = 2 * OPT['stag']
    rest = [mv(15, u) for u in range(4)]
    L = len(S[0])
    K0 = OPT['k0']
    tail0 = {L: tm2(0), L + K0 - 4: phik2(0), L + K0: ['s_waitcnt lgkmcnt(0)'] + kvm(0)[:1], L + K0 + 2: kvm(0)[1:2], L + K0 + 6: kvm(0)[2:3], L + K0 + 10: kvm(0)[3:],
             L + OPT['sw']: (['v_cmp_ngt_f32 vcc, s63, v6', 's_cbranch_vccnz L_kexa'] if fast else []) + send}
    assert K0 + 10 < OPT['sw'] < D and K0 - 4 < D - 24
    assert D >= 26
    for i in range(0, L + D, 2):
        if i < L: A(S[0][i]); A(S[0][i+1])
        if rest and i % 4 == 2:
            A(rest.pop(0))
            if not rest and OPT['cprio']: A('s_setprio 0')
        if OPT['e0pos'] >= 8 and i == OPT['e0a']: A('s_barrier')
        if i == D - 2:
            halo_edge(A, 'A')
            for x in vc: A(x)
            A('v_mov_b32 v48, s25\nv_xor_b32 v49, 8, v48')
            stamp(A, 6)
        if i >= D: A(S[1][i-D]); A(S[1][i-D+1])
        for x in tail0.get(i, []): A(x)
    for m in tm2(1): A(m)
    if OPT['hf'] == 2: halo_issue(A, 'A')
    stamp(A, 3)
    two2 = fast and max(i for i, x in enumerate(S[1]) if x.startswith('v_max_f32 v6,')) + D > L + OPT['sw']
    if two2: A('v_cmp_ngt_f32 vcc, s63, v6\ns_cbranch_vccnz L_kexb')
    A.label('L_kdone')
    A(recv)
    for x in phik2(1)[:8]: A(x)
    A('s_waitcnt lgkmcnt(0)\nv_cmp_eq_u32 vcc, 0, v50\ns_cbranch_vccnz L_exs')
    A.label('L_exd')
    def exs():
        A.label('L_exs'); A.fence()
        A(f's_mov_b32 s3, {SPIN_MAX * 4}')
        A.label('L_exs2')
        A(recv)
        A('s_sub_u32 s3, s3, 1\ns_waitcnt lgkmcnt(0)\nv_cmp_eq_u32 vcc, 0, v50\ns_cselect_b64 vcc, 0, vcc\ns_cbranch_vccnz L_exs2\ns_branch L_exd')
    OOL.append(exs)
    weave(kvm(1), phik2(1)[8:], 4)
    halo_addr(A)
    if fast:
        def kexact():
            for hs in range(2):
                if hs == 0 or two2:
                    A.label('L_kex' + 'ab'[hs]); A.fence()
                    A('s_nop 15')
                    for tt in range(2):
                        for m in pm[tt]: A(m)
                for x in pair(phik, hs, False) + tm2(hs): A(x)
                if hs == 0:
                    for x in phik2(0) + kvm(0) + send: A(x)
            A('s_nop 1\ns_branch L_kdone')
        COLD.append(kexact)
    stamp(A, 20)
    def atomics():
        for r in range(OPT['nat']): A(f'buffer_atomic_add_f32 v{KV[1]+r}, v54, s[52:55], s31 offen offset:{rowof(r,0)*128}')
        A(f's_mov_b32 exec_hi, 0\ns_add_u32 s31, s31, {AUX}')
        A(f'buffer_atomic_add_f32 v{KV[1]+8}, v54, s[52:55], s31 offen')
        A('s_mov_b64 exec, -1')
    if 'A' in OPT['sp']:
        if OPT['hpos'] == 0: halo_issue(A, 'A')
        atomics()
        stamp(A, 4)
        if OPT['hpos'] == 1: halo_issue(A, 'A')
        halo_fetch(A, 'A')
        A('s_cmp_lt_u32 s39, 2\ns_cbranch_scc0 L_c2\ns_waitcnt vmcnt(4)')
        A.label('L_c2')
        A('s_waitcnt vmcnt(12)')
        count_add(A, 's31', 256)
        stamp(A, 19)
        A('s_waitcnt vmcnt(1)')
    else:
        if OPT['hf']:
            A(f's_mov_b64 exec, 63\ns_waitcnt vmcnt(0)\nv_cmp_ne_u32 vcc, s60, v{PD}\ns_mov_b64 exec, -1\ns_cbranch_vccnz L_hlate')
            halo_dma(A, 'A', 'E')
            atomics()
            stamp(A, 4)
            A('s_waitcnt vmcnt(0)')
            count_add(A, 's31', 256)
            stamp(A, 19)
            A('s_branch L_e1')
            A.label('L_hlate'); A.fence()
        atomics()
        stamp(A, 4)
        halo_issue(A, 'A')
        A('s_waitcnt vmcnt(1)')
        count_add(A, 's31', 256)
        stamp(A, 19)
        halo_fetch(A, 'A', 1)
        A('s_waitcnt vmcnt(0)')
    A.label('L_e1'); A.fence()
    A(f's_lshl_b32 s24, s41, 10\nv_add_u32 v9, s24, v{QRD}')
    A('s_barrier')
    stamp(A, 8)
    A(f'ds_read_b128 v[28:31], v{QRD}')
    A.label('L_att'); A.fence(); A.raw(';PAD')
    if OPT['wprio']:
        A('s_cmp_lt_u32 s41, 4\ns_cbranch_scc1 L_wp\ns_setprio 1')
        A.label('L_wp')
    A('s_cmp_lt_u32 s39, 2\ns_cbranch_scc1 L_bslow')
    FA = bool(OPT['fasta'])
    bunit(A, False, FA, not OPT['nohook'], 'f')
    A.label('L_bdone'); A.fence()
    stamp(A, 11)
    if OPT['nohook']: A('s_branch L_fin2')
    O = OACC
    A(f's_add_u32 s24, {S_OA}, {TWIN}\ns_add_u32 s27, {S_C3}, 1024\ns_nop 9')
    if FA:
        A(f'v_pk_mul_f32 v[2:3], v[{O}:{O+1}], 0')
        for m in range(1, 4): A(f'v_pk_fma_f32 v[2:3], v[{O+2*m}:{O+2*m+1}], 0, v[2:3]')
        A(f'v_add_f32 v2, v2, v3\nv_add_f32 v2, v2, v{O+8}\nv_subrev_u32 v2, 0x{f2u(2.0**-60):x}, v2')
        A(f'v_cmp_lt_u32 vcc, 0x{f2u(2.0**60) - f2u(2.0**-60):x}, v2\ns_cbranch_vccnz L_bexact'.replace('vccnz', 'execz' if OPT['ko'] else 'vccnz'))
        A.label('L_bdone2')
    A(f'v_rcp_f32 v4, v{O+8}')
    for m in range(4): A(f'v_pk_mul_f32 v[{O+2*m}:{O+2*m+1}], v[{O+2*m}:{O+2*m+1}], v[4:5] op_sel_hi:[1,0]')
    for m in range(4): A(f'v_cvt_pk_bf16_f32 v{16+m}, v{O+2*m}, v{O+2*m+1}')
    A(f'buffer_store_dwordx4 v[16:19], v8, s[52:55], s24 offen sc1')
    UA = OPT['ua']
    if UA: count_add(A, 's27'); stamp(A, 12)
    A('s_cmp_ge_u32 s41, 4\ns_cbranch_scc1 L_nord')
    lds_spin(A, C_PQ, 4, 4, 5, sleep=False)
    A(f'ds_read_b128 v[48:51], v9 offset:{PQX-QX}\nds_read_b128 v[52:55], v9 offset:{PQX-QX+1024}')
    readout(A, 64, 180, 1 + UA + 16 // max(1, len(WD) + len(W0)) * sum(1 for x in W0 if x <= OPT['h2'])); readout2(A, 64, 180)
    if OPT['tp'] == 1: A('s_setprio 0')
    A.label('L_nord')
    tr_lane(A, 6, 7, 2)
    A('v_and_b32 v7, 1, v1\nv_lshl_add_u32 v6, v7, 5, v6\nv_bfe_u32 v7, v1, 1, 1\nv_lshl_add_u32 v6, v7, 3, v6\nv_and_b32 v7, 16, v1\nv_add_u32 v6, v6, v7')
    A('s_lshr_b32 s24, s41, 2\ns_lshl_b32 s24, s24, 11\nv_bfe_u32 v7, v1, 3, 1\nv_lshl_add_u32 v6, v7, 6, v6\nv_add_u32 v2, s24, v6\nv_xor_b32 v3, 64, v2')
    assert OPT['wa'] and not UA and not W0
    A('s_bfe_u32 s25, s37, 0x10002' if OPT['ro'] else 's_mov_b32 s25, 0')
    if OPT['ro'] == 1: A('s_lshr_b32 s24, s41, 2\ns_and_b32 s25, s25, s24')
    A(f's_lshl_b32 s24, s25, 12\nv_add_u32 v2, s24, v2\nv_add_u32 v3, s24, v3\nv_xor_b32 v6, 4096, v2\nv_xor_b32 v7, 4096, v3')
    A(f's_lshl_b32 s24, s25, 14\ns_sub_u32 s31, {S_FO}, s24\ns_add_u32 {S_FO}, {S_FO}, s24')
    OFR, PRE, AC = 16, 80, 208
    def wread(m):
        for rd in range(2): A(f'ds_read_b64_tr_b16 v[{PRE+4*m+2*rd}:{PRE+4*m+2*rd+1}], v{2 + m//16*4 + m%2} offset:{(m//2 % 8)*8192 + rd*1024}')
    def early():
        if OPT['ew'] == 1: A('v_mov_b32 v251, 0\ns_cmp_ge_u32 s41, 4\ns_cbranch_scc1 L_nosp')
        if OPT['ew']: poll_issue(A, 251, V0, S_FC)
        A.label('L_nosp')
    early()
    if OPT['cw']: A(f'v_mov_b32 v12, {TAG}'); assert OPT['npre'] == 0
    else: lds_spin(A, C_WO, NWO, 12, 13, sleep=False)
    for m in range(OPT['npre']): wread(m)
    def oload(k): A(f'buffer_load_dwordx4 {vr(OFR+4*k,4)}, v8, s[52:55], {[S_FO,"s26","s24","s25"][k//4]} offen offset:{(k%4)*1024} sc1')
    SF = 'F' in OPT['sp']
    FULL = 0x810
    A(f's_xor_b32 s24, s38, 1\ns_lshl_b32 s24, s24, 8\ns_add_u32 s24, s24, 1\nv_mov_b32 v14, s24\ns_add_u32 s26, {S_FO}, 4096')
    A('v_lshlrev_b32 v13, 10, v1' + ('' if OPT['u2'] else '\ns_waitcnt vmcnt(0)'))
    if not SF and not OPT['wf']: poll_issue(A, PD, V0, S_FC, count=FULL)
    A(f's_mov_b64 exec, 3\nbuffer_atomic_add v14, v13, s[52:55], {S_C3} offen\ns_lshr_b32 s24, s41, 2\ns_lshl_b32 s3, s24, 3\nv_lshlrev_b32 v13, s3, v{V1}\ns_mov_b64 exec, 1\nds_add_u32 v12, v13 offset:{C_ATT}\ns_mov_b64 exec, -1')
    if OPT['ew']:
        A('v_readfirstlane_b32 s30, v251\ns_lshr_b32 s30, s30, 11')
        A('s_cbranch_scc0 L_noear')
        for k in range(8): oload(k)
        A.label('L_noear')
    stamp(A, 13)
    if OPT['gp'] == 1: A('s_setprio 0')
    if OPT['cw']: lds_spin(A, C_WO, NWO, 12, 13, sleep=False)
    for m in range(OPT['npre'], 32): wread(m)
    A('v_and_b32 v9, 15, v1\nv_lshlrev_b32 v9, 11, v9\nv_and_b32 v14, 48, v1\nv_add_u32 v9, v9, v14')
    A(f's_and_b32 s24, s41, 3\ns_lshl_b32 s25, s24, 13\ns_add_u32 s25, s25, {PHI}\nv_add_u32 v4, s25, v8\ns_lshl_b32 s24, s24, 2\ns_add_u32 s24, s24, {TAG + C_PART}\nv_mov_b32 v5, s24')
    srd(A, 56, 18, 0x400000)
    A(f's_add_u32 s24, s31, 16384\ns_add_u32 s25, s31, 20480\ns_add_u32 s27, {S_OUT}, 32768')
    stamp(A, 25)
    def fpoll():
        if SF:
            sp_issue(A, [(48, S_FC, 0)]); sp_wait(A, [(48, S_FC, 0)], f's_cmp_lg_u32 s48, {FULL}')
        else:
            if OPT['wf']: poll_issue(A, PD, V0, S_FC, count=FULL)
            poll(A, PD, V0, S_FC, count=FULL, inline=True, first=1 - OPT['wf'])
    if not OPT['wf']: fpoll()
    stamp(A, 12)
    if not OPT['w4w']: A('s_cmp_ge_u32 s41, 4\ns_cbranch_scc1 L_noatt')
    if OPT['w0n']: A('s_cmp_lg_u32 s30, 0\ns_cbranch_scc1 L_noatt')
    lds_spin(A, C_ATT, 0x400, 12, 13)
    A.label('L_noatt')
    if OPT['wf']: fpoll()
    stamp(A, 14)
    if OPT['ew']: A('s_cmp_lg_u32 s30, 0\ns_cbranch_scc1 L_late8')
    for k in range(8): oload(k)
    A.label('L_late8')
    for k in range(8, 16): oload(k)
    A('s_waitcnt lgkmcnt(0)')
    for m in range(32):
        k, ct = m // 2, m % 2
        if ct == 0: A(f's_waitcnt vmcnt({15-k})')
        A(mfma32(AC+16*ct, PRE+4*m, OFR+4*k, AC+16*ct if k else None))
        if m == 30 and UA:
            A(f's_cmp_lg_u32 s30, 0\ns_cbranch_scc1 L_acked\ns_mov_b64 exec, 3\nv_lshlrev_b32 v12, 15, v1\nbuffer_atomic_add v{V1}, v12, s[52:55], {S_C3} offen offset:64\ns_mov_b64 exec, -1')
            A.label('L_acked'); A.hist = A.hist[:-4]
        if m == OPT['tu']:
            A(f'ds_read_b32 v13, v12 offset:{C_ATT}\ns_mov_b64 exec, 1\nds_add_rtn_u32 v14, v5, v{V1} offset:16\ns_mov_b64 exec, -1')
        if m == OPT['pr']:
            assert m >= 17
            if OPT['tu'] >= 0: A('s_waitcnt lgkmcnt(0)\nv_readfirstlane_b32 s30, v14')
            else: A('s_lshr_b32 s30, s41, 2')
            A(f's_cmp_eq_u32 s30, 0\ns_cbranch_scc1 L_nopr\ns_mov_b32 s3, {SPIN_MAX * 4}')
            A.label('L_prs')
            A('ds_read_b32 v12, v5\ns_sub_u32 s3, s3, 1\ns_waitcnt lgkmcnt(0)\nv_cmp_eq_u32 vcc, 0, v12\ns_cselect_b64 vcc, 0, vcc\ns_cbranch_vccnz L_prs')
            stamp(A, 15)
            for i in range(8): A(f'ds_read_b128 {vr(OFR+4*i,4)}, v4 offset:{i*1024}')
            A.label('L_nopr')
    stamp(A, 16)
    if UA:
        A(f'v_cmp_u_f32 vcc, v{AC}, v{AC}\ns_cbranch_vccnz L_late')
        A.label('L_late2')
        def late():
            A.label('L_late'); A.fence()
            A('s_cmp_lg_u32 s30, 0\ns_cbranch_scc1 L_late2\ns_mov_b32 s30, 1\ns_waitcnt lgkmcnt(0)')
            poll_issue(A, PD, V0, S_FC, count=16, off=64)
            poll(A, PD, V0, S_FC, count=16, off=64, inline=True)
            A('s_branch L_again')
        COLD.append(late)
    A('s_cmp_lg_u32 s30, 0\ns_cbranch_scc1 L_fin')
    if OPT['tu'] >= 0:
        A('v_cmp_gt_u32 vcc, 0x404, v13\ns_cbranch_vccnz L_aw')
        A.label('L_aw2')
        def aw():
            A.label('L_aw'); A.fence()
            lds_spin(A, C_ATT, 0x404, 12, 13)
            A('s_branch L_aw2')
        COLD.append(aw)
    else: assert not OPT['w0n']
    for i in range(8): A(f'ds_write_b128 v4, {vr(AC+4*i,4)} offset:{i*1024}')
    A(f'ds_write_b32 v5, v{V1}\ns_waitcnt lgkmcnt(0)\ns_branch L_fin2')
    A.label('L_fin')
    A('s_waitcnt lgkmcnt(0)' + ('' if UA else '\ns_nop 7'))
    for ct in range(2):
        for r in range(0, 16, 2): A(f'v_pk_add_f32 v[{AC+16*ct+r}:{AC+16*ct+r+1}], v[{AC+16*ct+r}:{AC+16*ct+r+1}], v[{OFR+16*ct+r}:{OFR+16*ct+r+1}]')
        b = 48 + 8 * ct
        for m in range(8): A(f'v_cvt_pk_bf16_f32 v{b+m}, v{AC+16*ct+2*m}, v{AC+16*ct+2*m+1}')
        for m in range(4): A(f'v_permlane16_swap_b32 v{b+m}, v{b+4+m}')
        for h in range(2): A(f'buffer_store_dwordx4 {vr(b+4*h,4)}, v9, s[56:59], {"s27" if h else S_OUT} offen offset:{ct*64} {OST}')
    A.label('L_fin2')
    stamp_flush(A, 's[52:55]', 's41')
    A.label('L_end'); A.fence()
    A('s_endpgm')
    A.label('L_bslow'); A.fence(); A.raw(';PAD')
    bunit(A, True, FA, not OPT['nohook'], 's')
    A('s_branch L_bdone')
    for f in OOL: f()
    A.label('L_cold')
    if FA:
        A.label('L_bexact'); A.fence()
        bunit(A, True, False, False, 'x')
        A('s_nop 11\ns_branch L_bdone2')
    for f in COLD: f()
    wrong(A)

def kvread(A, n):
    for m in range(1, 4): A(f'v_xor_b32 v{32+4*m}, {16*m}, v{KVOFF}')
    A(f's_waitcnt vmcnt({n})')
    for m in range(4): A(f'ds_read_b128 {vr(32+4*m,4)}, v{32+4*m if m else KVOFF}')
def readout(A, R1, R2, n):
    if not OPT['kd']: A(f's_waitcnt vmcnt({n})')
    elif n: kvread(A, n); A('s_waitcnt lgkmcnt(0)')
    for m in range(8): A(f'v_cvt_pk_bf16_f32 v{32+m}, v{32+2*m}, v{33+2*m}')
    if n and not OPT['kd']: A('s_waitcnt lgkmcnt(0)')
    A(mfma32(R1, 32, 48, None)); A(mfma32(R2, 36, 52, None))
def readout2(A, R1, R2):
    A(f'v_mov_b32 v6, 0x{f2u(1e-6):x}')
    A(f'v_rcp_f32 v4, v{R1+9}\nv_rcp_f32 v5, v{R2+9}')
    A(f'v_fmac_f32 v6, v{R1+8}, v4\nv_fmac_f32 v6, v{R2+8}, v5')
    A('v_rcp_f32 v6, v6')
    A('v_mul_f32 v4, v4, v6\nv_mul_f32 v5, v5, v6')
    for r in range(8): A(f'v_mul_f32 v{R1+r}, v{R1+r}, v4')
    for r in range(8): A(f'v_fmac_f32 v{R1+r}, v{R2+r}, v5')
    for m in range(4): A(f'v_cvt_pk_bf16_f32 v{20+m}, v{R1+2*m}, v{R1+2*m+1}')
    A(f'buffer_store_dwordx4 v[20:23], v8, s[52:55], {S_OA} offen sc1')
    if OPT['ua']: count_add(A, S_C3)
    if OPT['wprio']: A('s_setprio 0')
    stamp(A, 17)

def bunit(A, checks, fast, hooks, sfx):
    lq = Q(A, 'lgkmcnt', 15)
    KF = {j: 144 + 4 * j for j in range(9)}
    M, X, Y, Z, NM = 64, 80, 96, 112, 128
    O = OACC
    order = [8, 0, 7, 6, 5, 4, 3, 2, 1]
    def kvload():
        if OPT['kd']:
            fl = OPT["kvs"].replace("p", "")
            A(f's_mov_b32 m0, s98\ns_add_u32 s24, {S_ACC}, {AUX - 2048}')
            for i in range(2): A(f'buffer_load_dwordx4 v{KVS}, s[52:55], {S_ACC} offen offset:{1024*i} {fl} lds')
            A(f's_mov_b64 exec, 0xffff\nbuffer_load_dwordx4 v{KVS}, s[52:55], s24 offen offset:2048 {fl} lds\ns_mov_b64 exec, -1')
            return
        for m in range(4): A(f'buffer_load_dwordx4 {vr(32+4*m,4)}, v{KVOFF}, s[52:55], {S_ACC} offen offset:{16*m} {OPT["kvs"].replace("p", "")}')
    def hook(j):
        stamp(A, 58 - j)
        if j + 100 == OPT['clr'] and OPT['ua']:
            assert j > OPT['h2']
            A(f's_cmp_ge_u32 s41, 4\ns_cbranch_scc1 L_nclr{sfx}')
            A(f'v_mov_b64 v[56:57], -1\nv_mov_b64 v[58:59], -1\ns_add_u32 s24, {S_OA}, 0x4000\ns_add_u32 s25, {S_OA}, 0x200000\ns_add_u32 s3, {S_OA}, 0x204000')
            for so in (S_OA, 's24', 's25', 's3'): A(f'buffer_store_dwordx4 v[56:59], v8, s[52:55], {so} offen sc1')
            A.label(f'L_nclr{sfx}')
        same = (OPT['hp'], OPT['h2']) == (OPT['ap'], OPT['a2'])
        for ty, (hp, h2) in enumerate([(OPT['hp'], OPT['h2']), (OPT['ap'], OPT['a2'])][:1 if same else 2]):
            if j not in (hp, h2) and not (same and j in W0): continue
            A((f's_cmp_ge_u32 s41, 4' if same else f's_cmp_lg_u32 s20, {ty}') + f'\ns_cbranch_scc1 L_hg0{ty}{j+1}{sfx}')
            if j == hp:
                A(f's_mov_b64 exec, 3\nv_lshlrev_b32 v5, 11, v1\nv_add_u32 v5, {AUX}, v5')
                poll_issue(A, PD, 5, S_ACC, count=16, off=256)
                A('s_mov_b64 exec, -1')
            if j == h2:
                A('s_mov_b64 exec, 3')
                poll(A, PD, 5, S_ACC, count=16, off=256, first=16 // max(1, len(WD) + len(W0)) * sum(1 for x in W0 if h2 < x <= hp))
                lds_add(A, C_KV, 4)
                if OPT['tp']: A('s_setprio 2')
                stamp(A, 10)
                kvload()
                if OPT['kt']: A(f'buffer_load_dword v255, v{KVOFF}, s[52:55], {S_ACC} offen offset:{ACCB}')
            assert same or not W0
            wo_dma(A, j, 0)
            A.label(f'L_hg0{ty}{j+1}{sfx}')
        if j == OPT['wA']:
            assert j > OPT['g2']
            A(f's_cmp_lg_u32 s20, 3\ns_cbranch_scc1 L_hwa{sfx}')
            wo_dma(A, 8); stamp(A, 26)
            A.label(f'L_hwa{sfx}')
        if j in WD or j in (OPT['g2'], OPT['gr'], OPT['gr'] - 1, OPT['gpp']) or (OPT['kd'] and j == OPT['gl']):
            A(f's_cmp_lt_u32 s41, 4\ns_cbranch_scc1 L_hg1{j+1}{sfx}')
            if OPT['gp'] and j == OPT['gpp']: A('s_setprio 1')
            wo_dma(A, j)
            if j == OPT['gl'] and OPT['kd']:
                assert OPT['g2'] > j >= OPT['gr']
                kvread(A, 0)
                if j == OPT['gr']: A('s_waitcnt lgkmcnt(0)')
            if j == OPT['gr']: readout(A, R1, 180, 0)
            if j == OPT['gr'] - 1: readout2(A, R1, 180)
            if j == OPT['g2']:
                assert min(WD + [8]) > j
                if WD:
                    A('s_waitcnt vmcnt(0)')
                    lds_add(A, C_WO, 4)
                lds_spin(A, C_KV, 4 if OPT['ua'] and OPT['clr'] >= 100 else 1, 4, 5)
                stamp(A, 10)
                kvload()
            A.label(f'L_hg1{j+1}{sfx}')
    R1 = M
    if hooks: stamp(A, 50)
    for j in order: A(f'ds_read_b128 {vr(KF[j],4)}, v{KRD} offset:{j*1024}'); lq.push(('k', j))
    buf = {8: M, 0: X, 7: Y, 6: Z, 5: NM, 4: X, 3: Y, 2: Z, 1: NM}
    def qk(j, dst):
        lq.wait(('k', j))
        A(mfma32(dst, KF[j], 28, None))
    def hook0():
        if hooks: stamp(A, 9)
    if fast:
        qk(8, M)
        if checks:
            A('v_mov_b32 v2, 0xff800000')
            for r in range(0, 16, 2): A(f'v_mov_b64 v[{NM+r}:{NM+r+1}], 0')
        else: qk(0, NM)
    else:
        for j in (8, 0, 7, 6, 5): qk(j, buf[j])
        if checks:
            A(f's_cmp_ge_u32 {S_T}, 8\ns_cbranch_scc1 L_t0{sfx}\ns_nop 7')
            for r in range(16): A(f'v_mov_b32 v{X+r}, 0xff800000')
            A.label(f'L_t0{sfx}'); A('s_nop 7')
        for r in range(16): A(f'v_cndmask_b32_e64 v{M+r}, v{X+r}, v{M+r}, s[{64+2*r}:{65+2*r}]')
        qk(4, buf[4])
        A(f'v_max_f32 v2, v{M}, v{M+1}\nv_max_f32 v3, v{M+2}, v{M+3}')
        for m in range(1, 4): A(f'v_max3_f32 v2, v2, v{M+4*m}, v{M+4*m+1}\nv_max3_f32 v3, v3, v{M+4*m+2}, v{M+4*m+3}')
        for j in (7, 6, 5, 4, 3, 2, 1):
            b = buf[j]
            if checks: A(f's_cmp_lt_u32 {S_T}, {8-j}\ns_cbranch_scc1 L_bm{sfx}')
            for m in range(4): A(f'v_max3_f32 v2, v2, v{b+4*m}, v{b+4*m+1}\nv_max3_f32 v3, v3, v{b+4*m+2}, v{b+4*m+3}')
            if j - 4 >= 1: qk(j - 4, buf[j - 4])
        if checks:
            A.label(f'L_bm{sfx}'); A.fence(); A('s_waitcnt lgkmcnt(0)\ns_nop 15'); lq.q = []
        A('v_max_f32 v2, v2, v3\nv_mov_b32 v3, v2\nv_permlane32_swap_b32 v2, v3\nv_max_f32 v2, v2, v3')
        hook0()
        A(f'v_sub_f32 v{NM}, 0, v2\nv_sub_f32 v{NM+1}, 0, v2')
        for r in range(2, 16, 2): A(f'v_mov_b64 v[{NM+r}:{NM+r+1}], v[{NM}:{NM+1}]')
    vs = [0]
    def vreads(js):
        A('s_mov_b64 exec, s[28:29]')
        out = {}
        for j in js:
            for blk in range(2):
                st = VRING + 4 * (vs[0] % 4); vs[0] += 1
                A(f'ds_read_b128 {vr(st,4)}, v{VRD} offset:{j*1024 + blk*512}'); lq.push(('v', j, blk)); out[(j, blk)] = st
        A('s_mov_b64 exec, -1')
        return out
    first = [True]
    def pv(j, blk, vreg, p):
        def f():
            lq.wait(('v', j, blk))
            A(mfma32(O, vreg, p, None if first[0] else O))
            first[0] = False
        return f
    buf2 = {7: X, 6: Y, 5: Z, 4: X, 3: Y, 2: Z, 1: X}
    def qk2(j):
        def f():
            if checks:
                uid[0] += 1; n = uid[0]
                A(f's_cmp_lg_u32 {S_T}, {7-j}\ns_cbranch_scc1 L_ni{n}\ns_nop 7')
                for r in range(16): A(f'v_mov_b32 v{NM+r}, 0xff800000')
                A.label(f'L_ni{n}'); A.fence(); A('s_nop 1')
            lq.wait(('k', j))
            A(mfma32(buf2[j], KF[j], 28, None if fast and not checks else NM))
        return f
    def tile(b, pend, pre=()):
        ops = list(pre) + [f'v_exp_f32 v{b+r}, v{b+r}' for r in range(16)] + [f'v_cvt_pk_bf16_f32 v{b+m}, v{b+2*m}, v{b+2*m+1}' for m in range(8)]
        n0 = len(pre); step = max(1, 16 // max(1, len(pend)))
        pos = {n0 + 1 + i * step: f for i, f in enumerate(pend)}
        for i, o in enumerate(ops):
            if i in pos: pos[i]()
            A(o)
    vv = vreads([8, 0])
    if fast: pre = [f'v_cndmask_b32_e64 v{M+r}, v{2 if checks else NM+r}, v{M+r}, s[{64+2*r}:{65+2*r}]' for r in range(16)]
    else: pre = [f'v_sub_f32 v{M+r}, v{M+r}, v2' for r in range(16)]
    tile(M, [qk2(7), qk2(6)], pre=pre)
    for m in range(8): A(f'v_bfi_b32 v{M+8+m}, v{PMASK+m}, 0, v{M+m}')
    for m in range(8): A(f'v_and_b32 v{M+m}, v{PMASK+m}, v{M+m}')
    pend = [pv(8, 0, vv[(8, 0)], M), pv(8, 1, vv[(8, 1)], M + 4), pv(0, 0, vv[(0, 0)], M + 8), pv(0, 1, vv[(0, 1)], M + 12), qk2(5)]
    if fast: hook0()
    for j in (7, 6, 5, 4, 3, 2, 1):
        b = buf2[j]
        if OPT['w1']: lq.all()
        if hooks: hook(j)
        if j == 7 and OPT['v7']:
            vv = {}
            k7 = 3 - OPT['w1']
            f3 = pend[k7]
            pend[k7] = lambda: (f3(), vv.update(vreads([7])))
            tile(b, pend)
        elif j == 7:
            tile(b, pend); vv = vreads([j])
        else:
            vv = vreads([j]); tile(b, pend)
        pend = [pv(j, 0, vv[(j, 0)], b), pv(j, 1, vv[(j, 1)], b + 4)]
        if j - 3 >= 1: pend.append(qk2(j - 3))
    for f in pend: f()
    if hooks:
        hook(0); hook(-1)

def add_pads(txt):
    import subprocess, re, tempfile
    lines = txt.split('\n')
    d = tempfile.mkdtemp()
    tmp = txt.replace(';PAD', '    s_nop 0').replace('L_code_end:', ''.join(f'L_chain{i}:\n' for i in range(8)) + 'L_code_end:')
    open(d + '/a.s', 'w').write(tmp)
    subprocess.check_call(['clang', '-x', 'assembler', '-target', 'amdgcn-amd-amdhsa', '-mcpu=gfx950', '-c', d + '/a.s', '-o', d + '/a.o'])
    dis = subprocess.check_output(['llvm-objdump', '-d', d + '/a.o']).decode()
    addrs = [int(m.group(1), 16) for m in re.finditer(r'// ([0-9A-F]{12}):', dis)]
    out = []; k = 0; shift = 0x300; nxt = 4096; skip = True; walk = False
    for ln in lines:
        if ln.strip() == 's_mov_b64 exec, 0': walk = True
        if ln.startswith('L_padret0'): skip = False
        if ln.startswith('L_cold'): skip = True
        if ln == ';PAD' or (ln.startswith('    ') and not ln.strip().startswith('.')):
            a = addrs[k] + shift; k += 1
            if a >= nxt and not walk:
                nxt += 4096
                if ln != ';PAD' and not skip: out.append(';PAD'); shift += 4
        out.append(ln)
        if ln.strip() == 's_mov_b64 exec, -1': walk = False
    idx = [i for i, ln in enumerate(out) if ln == ';PAD']
    n = len(idx)
    for j, i in enumerate(idx):
        head = f'L_chain{j}:\n' if j < 8 else ''
        out[i] = f'{head}L_pad{j}:\n    s_cbranch_execz ' + ('L_padret0' if j < 4 else f'L_pad{j+4}' if j + 4 < n else 'L_padret1')
    return '\n'.join(out)

def main():
    A = Asm()
    A.raw(f'; @launch grid=(256,1,1) block=(512,1,1) lds={LDS_SIZE}')
    A.raw('.amdgcn_target "amdgcn-amd-amdhsa--gfx950"\n.text')
    gen(A)
    A.raw('L_code_end:\n.p2align 8\n.fill 64, 4, 0xbf800000')
    A.raw(kd(NAME, 256, 100))
    txt = A.text()
    if OPT['pads']: txt = add_pads(txt)
    sys.stdout.write(txt)
main()
```

```python
import sys, math, struct
sys.path.insert(0, 'work')
from asmlib import *

OPT = dict(stamps=0, gst=0, skip='', pfc=1, psl=2, ssl=2, order='01234567', grp=1, gsh=9, tagl=5, la='88888888', n0=10, cst=11, cn=8, e0n=72, ot='', dpos=2, pw2=-1, aw=0, bw=1, npre=6, w4w=0, wf=0, qr=1, pr=18, ua=0, clr=107, wa=1, gp=1, th=16, ap=5, a2=2, gpp=6, hq=-1, hk=-1, e0w=0, e0pos=6, e0a=24, fastk=1, fasta=1, epn=28, cprio=0,
           nat=8, fw=1, pads=1, qd=5, qpoll=56, bq=65, lprio=1, aprio=0, stag=28, ost='sc1', wprio=0, pre=1, wd='8', w0='x', bt=0, hf=0, pol=2, nrep=1, rot=1, mis=0, vb=32, kvs='p', v7=1, tp=2, cw=0, kt=0, kd=1, gl=4, w1=1, ew=0, ko='', bp16=2, re=1, rodd=1, sprio=1, rt=2, vl=2, oz=1, ca=-9, fl=1, lt=1, spo=0, wqs=0, ro=0, tu=-1, wb9=1, wA=8, bp=1, ng=3, sw=36, k0=18, w0n=0, u2=0, tl=0, dg=0, nohook=0, g2=6, gr=3, hp=3, h2=1, hpos=0, fp=16, sp='x', hl=0, xa=8, xm=1, xs=7)
for a in sys.argv[1:]:
    k, v = a.split('='); assert k in OPT, k; OPT[k] = int(v) if v.lstrip('-').isdigit() else v
OST = '' if OPT['ost'] == 'plain' else OPT['ost']
NAME = 'concat_heads__linear_kernel_hedgehog__sliding_block__prompt_kernel'

def f2u(x): return struct.unpack('<I', struct.pack('<f', x))[0]
LOG2E = math.log2(math.e)
RBS, TWIN = 18, 0x202000
WS_K, WS_O, WS_QG, WS_F1 = 0x000000, 0x400000, 0x800000, 0x1400000
WS_ACC, WS_EP, WS_PR = 0x1100000, 0x1120000, 0x1128000
WS_SIZE = 0x1800000
ACCB, AUX = 2048, 65536
WS_STAMP = 0x1000000
SPIN_MAX = 1 << 16
SLOT = 32768
RING = [0, 32768, 65536, 98304]
KL, VL, PHI = 65536, 90112, 114688
PHI_PLANE, PHI_HEAD, PHI_WAVE = 1088, 4352, 8704
TAG = PHI + 4 * PHI_WAVE - 128
QX, PQX, WPH = 149504, 153600, 161792
WO1 = 0
LDS_SIZE = 163840
C_ATT, C_WQ, C_PQ, C_WO, C_KV, C_WQ2, C_PAIR, C_PART = 8, 12, 16, 20, 24, 28, 32, 48
OACC, VRING, PMASK, ONES = 200, 216, 232, 240
SEL = 200
KVOFF, V1, V0, KRD, VRD, WOL, KVS, QRD, PD = 242, 243, 244, 245, 246, 247, 248, 249, 250
S_T, S_WO, S_ACC, S_OA, S_C3, S_FC, S_FO, S_OUT, S_QG = 's4', 's5', 's6', 's7', 's8', 's12', 's13', 's14', 's15'

class Q:
    def __init__(self, A, name, mx): self.A = A; self.q = []; self.name = name; self.mx = mx
    def push(self, tag): self.q.append(tag)
    def wait(self, *tags):
        idx = -1
        for i, t in enumerate(self.q):
            if t in tags: idx = i
        if idx < 0: return
        n = min(len(self.q) - 1 - idx, self.mx)
        self.A(f's_waitcnt {self.name}({n})')
        self.q = self.q[len(self.q) - n:] if n else []
    def all(self):
        self.A(f's_waitcnt {self.name}(0)'); self.q = []

def stamp(A, idx):
    if not OPT['stamps'] or str(idx) in str(OPT['skip']).split('.'): return
    if OPT['gst'] == 9 and idx not in (30, 31): return
    if OPT['gst'] == 3:
        if 32 <= idx < 42: idx -= 12
        elif idx >= 60: idx -= 60
        elif idx not in (30, 31): return
    elif idx >= 60: return
    elif OPT['gst'] == 2:
        if idx < 10 or 32 <= idx < 50: return
        if idx >= 50: idx -= 50
    elif OPT['gst']:
        if idx < 30 or idx > 47: return
        if idx >= 32: idx -= 32
    elif idx >= 32: return
    A(('s_memrealtime' if OPT['stamps'] == 1 else 's_memtime') + ' s[96:97]')
    A('s_waitcnt lgkmcnt(0)')
    A(f'v_writelane_b32 v253, s96, {idx}')
def stamp_flush(A, srd, wavereg):
    if not OPT['stamps']: return
    stamp(A, 31)
    A(f's_lshl_b32 s98, s37, 3\ns_add_u32 s98, s98, s99\ns_lshl_b32 s98, s98, 3\ns_add_u32 s98, s98, {wavereg}\ns_lshl_b32 s98, s98, 7\ns_add_u32 s98, s98, {WS_STAMP}\ns_and_b32 s52, s52, 0xffffdfff')
    A('v_mbcnt_lo_u32_b32 v252, -1, 0\nv_lshlrev_b32 v252, 2, v252\ns_mov_b32 exec_hi, 0')
    A(f'buffer_store_dword v253, v252, {srd}, s98 offen')

def rowof(r, hi): return (r & 3) + 8 * (r >> 2) + 4 * hi

def dual_exp(A, p, em, t):
    A(f'v_max3_f32 v{t}, v{p}, v{p+1}, v{p+2}\nv_max3_f32 v{t+1}, -v{p}, -v{p+1}, -v{p+2}')
    A(f'v_max3_f32 v{t}, v{t}, v{p+3}, v{p+4}\nv_max3_f32 v{t+1}, v{t+1}, -v{p+3}, -v{p+4}')
    A(f'v_max3_f32 v{t}, v{t}, v{p+5}, v{p+6}\nv_max3_f32 v{t+1}, v{t+1}, -v{p+5}, -v{p+6}')
    A(f'v_max_f32_e64 v{t}, v{t}, v{p+7}\nv_max_f32_e64 v{t+1}, v{t+1}, -v{p+7}')
    A(f'v_permlane32_swap_b32 v{t}, v{t+1}')
    A(f'v_max_f32 v{t}, v{t}, v{t+1}')
    A(f'v_mul_f32 v{t}, s62, v{t}')
    A(f'v_mov_b32 v{t+1}, v{t}')
    A(f'v_permlane32_swap_b32 v{t}, v{t+1}')
    for r in range(8): A(f'v_fma_f32 v{em+r}, -v{p+r}, s62, -v{t+1}\nv_fma_f32 v{p+r}, v{p+r}, s62, -v{t}')
    for r in range(8): A(f'v_exp_f32 v{em+r}, v{em+r}\nv_exp_f32 v{p+r}, v{p+r}')

uid = [0]
OOL = []
COLD = []
FIN = []
def sp_issue(A, loads):
    for d, so, off in loads: A(f's_buffer_load_dword s{d}, s[52:55], {so} offset:{off} glc')
def sp_wait(A, loads, test, inline=True):
    uid[0] += 1; n = uid[0]
    def loop():
        A(f's_mov_b32 s3, {SPIN_MAX}')
        A.label(f'L_pl{n}')
        if OPT['ssl']: A(f's_sleep {OPT["ssl"]}')
        sp_issue(A, loads)
        A(f's_waitcnt lgkmcnt(0)\n{test}\ns_cselect_b32 s3, s3, 0\ns_sub_u32 s3, s3, 1\ns_cbranch_scc0 L_pl{n}')
    if inline:
        A(f's_waitcnt lgkmcnt(0)\n{test}\ns_cbranch_scc0 L_pd{n}')
        loop()
        A.label(f'L_pd{n}')
        return
    A(f's_waitcnt lgkmcnt(0)\n{test}\ns_cbranch_scc1 L_ps{n}')
    A.label(f'L_pd{n}')
    def slow():
        A.label(f'L_ps{n}'); A.fence()
        loop()
        A(f's_branch L_pd{n}')
    OOL.append(slow)
def poll_issue(A, vdst, voff, soff, count=None, off=0):
    o = f' offset:{off}' if off else ''
    A(f'buffer_load_dword v{vdst}, v{voff}, s[52:55], {soff} offen{o} sc1')
def poll(A, vdst, voff, soff, count=None, off=0, inline=False, first=0):
    uid[0] += 1; n = uid[0]
    cmp = f'v_cmp_ne_u32 vcc, {count}, v{vdst}'
    if inline:
        A(f's_waitcnt vmcnt({first})\n{cmp}\ns_cbranch_vccz L_pd{n}\ns_mov_b32 s3, {SPIN_MAX}')
        A.label(f'L_pl{n}')
        if OPT['psl']: A(f's_sleep {OPT["psl"]}')
        poll_issue(A, vdst, voff, soff, count, off)
        A(f's_sub_u32 s3, s3, 1\ns_waitcnt vmcnt(0)\n{cmp}\ns_cselect_b64 vcc, 0, vcc\ns_cbranch_vccnz L_pl{n}')
        A.label(f'L_pd{n}')
        return
    A(f's_waitcnt vmcnt({first})\n{cmp}\ns_cbranch_vccnz L_ps{n}')
    A.label(f'L_pd{n}')
    def slow():
        A.label(f'L_ps{n}'); A.fence()
        A('s_mov_b32 s3, 0')
        A.label(f'L_pl{n}')
        if OPT['psl']: A(f's_sleep {OPT["psl"]}')
        poll_issue(A, vdst, voff, soff, count, off)
        A(f's_add_u32 s3, s3, 1\ns_waitcnt vmcnt(0)\n{cmp}\ns_cbranch_vccz L_pd{n}')
        A(f's_cmp_lt_u32 s3, {SPIN_MAX}\ns_cbranch_scc1 L_pl{n}\ns_branch L_pd{n}')
    OOL.append(slow)
GR = [0, 1, 2, 4, 5, 6, 8, 9]
def gran_issue(A, v, nh):
    if 'q' in OPT['ko']:
        for h in range(3): A(f'v_mov_b32 v{v+4*h+3}, s60')
        return
    for h in range(OPT['ng']): A(f'buffer_load_dwordx4 {vr(v+4*h,4)}, v8, s[52:55], {S_QG} offen offset:{h*1024} sc1')
def gran_wait(A, v, nh, dst, inline, first=0):
    uid[0] += 1; n = uid[0]
    def check(cnt=0):
        A(f's_waitcnt vmcnt({cnt})\nv_cmp_ne_u32_e64 s[24:25], s60, v{v+3}')
        for r in range(1, OPT['ng']): A(f'v_cmp_ne_u32 vcc, s60, v{v+3+4*r}\ns_or_b64 s[24:25], s[24:25], vcc')
    def retry():
        if OPT['psl']: A(f's_sleep {OPT["psl"]}')
        gran_issue(A, v, nh)
    if inline:
        A('s_mov_b32 s3, 0')
        A.label(f'L_gl{n}')
        check()
        A(f's_cbranch_scc0 L_gd{n}')
        retry()
        A(f's_add_u32 s3, s3, 1\ns_cmp_lt_u32 s3, {SPIN_MAX}\ns_cbranch_scc1 L_gl{n}\ns_waitcnt vmcnt(0)')
    else:
        check(first)
        A(f's_cbranch_scc1 L_gs{n}')
        def slow():
            A.label(f'L_gs{n}'); A.fence()
            A('s_mov_b32 s3, 0')
            A.label(f'L_gl{n}')
            retry(); check()
            A(f's_cbranch_scc0 L_gd{n}\ns_add_u32 s3, s3, 1\ns_cmp_lt_u32 s3, {SPIN_MAX}\ns_cbranch_scc1 L_gl{n}\ns_branch L_gd{n}')
        OOL.append(slow)
    A.label(f'L_gd{n}')
    for r in range(8): A(f'v_mov_b32 v{dst+r}, v{v+GR[r % (3*OPT["ng"])]}')

def lds_add(A, off, va):
    A(f'v_mov_b32 v{va}, {TAG}\ns_mov_b64 exec, 1\nds_add_u32 v{va}, v{V1} offset:{off}\ns_mov_b64 exec, -1')
def lds_spin(A, off, cnt, va, vt, sleep=True):
    uid[0] += 1; n = uid[0]
    A(f'v_mov_b32 v{va}, {TAG}\ns_mov_b32 s3, {SPIN_MAX * 4}')
    A.label(f'L_sp{n}')
    if sleep: A('s_sleep 1')
    A(f's_sub_u32 s3, s3, 1\nds_read_b32 v{vt}, v{va} offset:{off}\ns_waitcnt lgkmcnt(0)\nv_cmp_gt_u32 vcc, {cnt}, v{vt}\ns_cselect_b64 vcc, 0, vcc\ns_cbranch_vccnz L_sp{n}')
def count_add(A, soff, off=0):
    A('s_mov_b64 exec, 1')
    A(f'buffer_atomic_add v{V1}, v{V0}, s[52:55], {soff} offen' + (f' offset:{off}' if off else ''))
    A('s_mov_b64 exec, -1')

def srd(A, d, lo, size):
    A(f's_mov_b32 s{d}, s{lo}\ns_mov_b32 s{d+1}, s{lo+1}\ns_mov_b32 s{d+2}, 0x{size:x}\ns_mov_b32 s{d+3}, 0x20000')
def flag(A, soff, tmp):
    A(f'v_mov_b32 v{tmp}, s60\nv_mov_b32 v{tmp+1}, s61\nv_mov_b32 v{tmp+2}, s60\nv_mov_b32 v{tmp+3}, s61\ns_waitcnt vmcnt(0)\ns_mov_b64 exec, 0xff')
    A(f'buffer_store_dwordx4 v[{tmp}:{tmp+3}], v8, s[52:55], {soff} offen sc1')
    A('s_mov_b64 exec, -1')
def stream(fn, *a):
    L = []
    fn(lambda t: L.extend(x for x in t.split('\n') if x.strip()), *a)
    return L
def tr_lane(A, d, rowsh, hish):
    A(f'v_bfe_u32 v{d}, v1, 2, 2\nv_lshl_add_u32 v{d}, v11, {hish}, v{d}\nv_lshlrev_b32 v{d}, {rowsh}, v{d}')
def mfma32(d, a, b, c): return f'v_mfma_f32_32x32x16_bf16 {vr(d,16)}, {vr(a,4)}, {vr(b,4)}, {vr(c,16) if c is not None else "0"}'

def common(A):
    for r in range(16):
        for hi in range(2):
            m = 0
            for c in range(32):
                if rowof(r, hi) <= c: m |= 1 << c
            A(f's_mov_b32 s{64+2*r+hi}, 0x{m:x}')
    A(f's_mov_b32 s62, 0x{f2u(LOG2E):x}\ns_mov_b32 s63, 0x{f2u(2.0**100):x}\ns_mov_b32 s28, 0xffff\ns_mov_b32 s29, 0xffff')
    A(f'v_mov_b32 v{ONES}, 0x3f803f80')
    if OPT['oz']: A(f'v_and_b32 v{V1}, 11, v1\nv_cmp_eq_u32 vcc, 0, v{V1}\nv_cndmask_b32 v{ONES}, 0, v{ONES}, vcc')
    A(f'v_mov_b32 v{ONES+1}, v{ONES}\nv_mov_b32 v{V1}, 0xffff')
    for r in range(0, 16, 2): A(f'v_mov_b64 v[{VRING+r}:{VRING+r+1}], v[{ONES}:{ONES+1}]')
    for m in range(8): A(f'v_cndmask_b32_e64 v{PMASK+m}, 0, v{V1}, s[{64+4*m}:{65+4*m}]')
    for m in range(8): A(f'v_cndmask_b32_e64 v{PMASK+m}, v{PMASK+m}, -1, s[{66+4*m}:{67+4*m}]')
    A('s_and_b32 s21, s41, 3\ns_lshr_b32 s22, s41, 2\ns_lshl1_add_u32 s20, s22, s38')
    if OPT['kd']:
        A(f's_lshl1_add_u32 s98, s21, s22\ns_lshl_b32 s98, s98, 12\ns_add_u32 s98, s98, {PHI}')
        A(f'v_and_b32 v{V1}, 17, v10\nv_cndmask_b32_e64 v{KVOFF}, v{V1}, v10, s[28:29]\nv_and_b32 v{V1}, 7, v{KVOFF}\nv_lshlrev_b32 v{KVS}, 2, v11\nv_xor_b32 v{V1}, v{V1}, v{KVS}')
        A(f'v_lshl_add_u32 v{KVOFF}, v{KVOFF}, 3, v{V1}\nv_lshl_add_u32 v{KVOFF}, v{KVOFF}, 4, s98')
        A(f'v_lshrrev_b32 v{KVS}, 3, v1\nv_xor_b32 v{KVS}, v{KVS}, v1\nv_lshlrev_b32 v{KVS}, 4, v{KVS}')
    else: A(f'v_and_b32 v{V1}, 1, v10\nv_add_u32 v{V1}, {AUX//128}, v{V1}\nv_cndmask_b32_e64 v{KVOFF}, v{V1}, v10, s[28:29]\nv_lshlrev_b32 v{KVOFF}, 7, v{KVOFF}\nv_lshl_add_u32 v{KVOFF}, v11, 6, v{KVOFF}')
    A(f's_lshl_b32 s24, s21, 10\ns_add_u32 s25, s24, {QX}\nv_add_u32 v{QRD}, s25, v8')
    A(f's_mul_i32 s25, s22, 12288\ns_add_u32 s24, s24, s25\ns_add_u32 s25, s24, {KL}\nv_add_u32 v{KRD}, s25, v8')
    A(f'v_and_b32 v{VRD}, 15, v1\nv_lshlrev_b32 v{VRD}, 4, v{VRD}\nv_lshl_add_u32 v{VRD}, v11, 8, v{VRD}\ns_add_u32 s25, s24, {VL}\nv_add_u32 v{VRD}, s25, v{VRD}')
    A(f'v_lshrrev_b32 v{WOL}, 3, v1\nv_and_b32 v{V0}, 7, v1\nv_bfe_u32 v{V1}, v1, 4, 1\nv_lshlrev_b32 v{V1}, 2, v{V1}\nv_xor_b32 v{V0}, v{V0}, v{V1}\nv_lshlrev_b32 v{V0}, 4, v{V0}\nv_lshl_add_u32 v{WOL}, v{WOL}, 10, v{V0}')
    A(f'v_mov_b32 v{V1}, 1\nv_mov_b32 v{V0}, 0\nv_mov_b64 v[52:53], 0\nv_mov_b64 v[54:55], 0')
    A(f's_lshl_b32 {S_T}, s39, 2\ns_add_u32 {S_T}, {S_T}, s21')
    A(f's_lshr_b32 s23, s37, 2\ns_lshl_b32 s23, s23, 7\nv_add_u32 v{WOL}, s23, v{WOL}\ns_and_b32 s24, s37, 3\ns_lshl_b32 s24, s24, 4\ns_add_u32 s24, s24, s21\ns_lshl_b32 {S_WO}, s24, 10')
    A(f's_lshl_b32 s24, s40, 1\ns_add_u32 s24, s24, s22\ns_mul_i32 {S_ACC}, s24, {ACCB}\ns_add_u32 {S_ACC}, {S_ACC}, {WS_ACC}')
    A(f's_lshl_b32 s24, s21, 1\ns_add_u32 s24, s24, s22\ns_lshl_b32 {S_FO}, s24, 15\ns_add_u32 {S_FO}, {S_FO}, {WS_O}\ns_lshl_b32 s24, s24, 7\ns_add_u32 {S_FC}, s24, {WS_F1 + 4096}')
    A(f's_lshl4_add_u32 s24, s38, s35\ns_lshl_b32 s24, s24, 10\ns_lshl_b32 s25, s39, {RBS}\ns_add_u32 s24, s24, s25\ns_add_u32 {S_OA}, s24, {S_FO}\ns_add_u32 {S_C3}, {S_FC}, s25')
    A(f's_lshl_b32 s24, s35, 15\ns_add_u32 s25, s25, s24\ns_and_b32 s24, s21, 2\ns_add_u32 s24, s24, s21\ns_add_u32 s24, s24, s24\ns_and_b32 s24, s24, 10\ns_lshl_b32 s24, s24, 11\ns_add_u32 s25, s25, s24')
    A(f's_and_b32 s24, s35, 1\ns_lshl_b32 s24, s24, 10\ns_add_u32 s25, s25, s24\ns_mul_i32 s24, s38, {TWIN}\ns_add_u32 s25, s25, s24\ns_add_u32 {S_QG}, s25, {WS_QG}')
    A('s_and_b32 s24, s39, 12\ns_xor_b32 s24, s24, 4\ns_and_b32 s25, s37, 3\ns_add_u32 s24, s24, s25\ns_lshr_b32 s22, s36, 2')
    A(f's_lshl_b32 {S_OUT}, s24, {RBS}\ns_add_u32 {S_FC}, {S_FC}, {S_OUT}\ns_add_u32 {S_FO}, {S_FO}, {S_OUT}\ns_mul_i32 s25, s22, {TWIN}\ns_add_u32 {S_FO}, {S_FO}, s25')
    A(f's_lshl_b32 s25, s22, 10\ns_add_u32 {S_FC}, {S_FC}, s25\ns_add_u32 {S_OUT}, {S_OUT}, s25\ns_lshl_b32 s25, s21, 16\ns_add_u32 {S_OUT}, {S_OUT}, s25\ns_add_u32 {S_OUT}, {S_OUT}, s23')

def place(A, x):
    if OPT['pol'] != 2: return
    A(f's_lshr_b32 s24, s61, 14\ns_and_b32 s61, s61, 0xffff\ns_cmp_le_u32 s24, s61\ns_cbranch_scc1 L_pl{x}\ns_add_u32 s52, s52, 8192\ns_addc_u32 s53, s53, 0\ns_sub_u32 {S_ACC}, {S_ACC}, 8192')
    if x == 'c': A('s_lshl_b32 s24, s38, 13\ns_sub_u32 s31, s31, s24')
    A.label(f'L_pl{x}')

ROLE = 's_add_u32 s24, s2, s60\ns_and_b32 s24, s24, 7\ns_cmp_lg_u32 s24, s99\n'
def wrong(A):
    A.label('L_wrong'); A.fence()
    A('s_mov_b32 s99, s24\ns_or_b32 s2, s2, 256\ns_setprio 0\ns_waitcnt vmcnt(0) lgkmcnt(0)\ns_barrier\ns_nop 15\ns_branch L_restart')

def wo_srd(A):
    A('s_cmp_lt_u32 s36, 4\ns_cselect_b32 s44, s10, s16\ns_cselect_b32 s45, s11, s17\ns_mov_b32 s46, 0x80000\ns_mov_b32 s47, 0x20000')

WD = [int(c) for c in str(OPT['wd']) if c.isdigit()]
W0 = [int(c) for c in str(OPT['w0']) if c.isdigit()]
NWO = 4 * (bool(WD) + bool(W0))
def wo_dma(A, j, g=1):
    cnt = 0; n = 16 // max(1, len(WD) + len(W0))
    for k, x in enumerate(WD if g else W0):
        if x != j: continue
        for i in range(n):
            A(f's_xor_b32 m0, {S_WO}, {4096 * (n * (k + (len(W0) if g else 0)) + i)}\ns_lshl_b32 s24, m0, 3')
            if 'w' not in OPT['ko']: A(f'buffer_load_dwordx4 v{WOL}, s[44:47], s24 offen lds'); cnt += 1
    return cnt

def halo_edge(A, x):
    A(f's_cmp_lt_u32 s39, 2\ns_cbranch_scc1 L_nb{x}')
    A.label(f'L_nb2{x}')
    def edge():
        A.label(f'L_nb{x}'); A.fence(); A.raw(';PAD')
        A('v_mov_b32 v48, 0\nv_mov_b32 v49, 0\nv_mov_b32 v50, 0\nv_mov_b32 v51, 0\nv_add_u32 v7, s27, v8')
        for i in range(4): A(f'ds_write_b128 v7, v[48:51] offset:{i*1024}')
        A(f's_cmp_eq_u32 s39, 1\ns_cbranch_scc1 L_nb2{x}')
        for i in range(4, 8): A(f'ds_write_b128 v7, v[48:51] offset:{i*1024}')
        A(f's_branch L_nb2{x}')
    OOL.append(edge)
def halo_loads(x): return [([48, 50, 0][nb] + i, f's{9+nb}', 128*i) for nb in range(3 if x == 'A' else 2) for i in range(2)][-OPT['hl']:]
def halo_addr(A):
    A(f'v_and_b32 v55, 1, v1\nv_lshlrev_b32 v55, 7, v55\ns_mov_b64 exec, 3\nv_add_u32 v55, s9, v55\ns_mov_b64 exec, 12\nv_add_u32 v55, s10, v55\ns_mov_b64 exec, 48\nv_add_u32 v55, s11, v55\ns_mov_b64 exec, -1')
def halo_issue(A, x):
    if x in OPT['sp']: sp_issue(A, halo_loads(x)); return
    if x == 'B': halo_addr(A)
    A(f's_mov_b64 exec, {63 if x == "A" else 15}')
    poll_issue(A, PD, 55, '0', 's60')
    A('s_mov_b64 exec, -1')
def halo_fetch(A, x, first=0):
    t = 's_xor_b64 s[48:49], s[48:49], s[60:61]\ns_xor_b64 s[50:51], s[50:51], s[60:61]\ns_or_b64 s[48:49], s[48:49], s[50:51]'
    if x == 'A': t += '\ns_xor_b64 s[0:1], s[0:1], s[60:61]\ns_or_b64 s[48:49], s[48:49], s[0:1]'
    if OPT['hl']: t = f's_cmp_lg_u32 s{halo_loads(x)[-1][0]}, s60'
    if x in OPT['sp']: sp_wait(A, halo_loads(x), t)
    else:
        A(f's_mov_b64 exec, {63 if x == "A" else 15}')
        if 'p' not in OPT['ko']: poll(A, PD, 55, '0', 's60', inline=True, first=first)
        A('s_mov_b64 exec, -1')
    halo_dma(A, x, x)
def halo_dma(A, x, u):
    stamp(A, 5)
    for nb in range(3 if x == 'A' else 2):
        if nb < 2: A(f's_cmp_lt_u32 s39, {2-nb}\ns_cbranch_scc1 L_sk{nb}{u}')
        A(f's_sub_u32 s25, s33, {(2-nb) << RBS}\ns_add_u32 m0, s27, {nb*4096}')
        for i in range(4 * ('h' not in OPT['ko'])): A(f'buffer_load_dwordx4 v8, s[52:55], s25 offen offset:{i*1024} sc1 lds')
        if nb < 2: A.label(f'L_sk{nb}{u}')
    stamp(A, 7)

def gen(A):
    name = NAME
    WSZ = WS_SIZE if not OPT['stamps'] else 0x2000000
    A.raw(f'.globl {name}\n.p2align 12\n.type {name},@function\n{name}:')
    stamp(A, 30)
    A('s_cmp_ge_u32 s2, 256\ns_cbranch_scc1 L_end')
    A('s_getreg_b32 s99, hwreg(HW_REG_XCC_ID, 0, 3)' if OPT['rot'] else 's_and_b32 s99, s2, 7')
    if OPT['mis']: A(f's_lshr_b32 s3, s2, {OPT["mis"]}\ns_add_u32 s99, s99, s3\ns_and_b32 s99, s99, 7')
    A.label('L_restart')
    A('s_load_dwordx16 s[4:19], s[0:1], 0\ns_load_dwordx4 s[20:23], s[0:1], 64')
    A('v_lshrrev_b32 v2, 6, v0\nv_and_b32 v1, 63, v0')
    A('s_lshl_b32 s36, s99, 2\ns_lshr_b32 s36, 0x76325410, s36\ns_and_b32 s36, s36, 7\ns_bfe_u32 s37, s2, 0x50003')
    A('v_readfirstlane_b32 s41, v2')
    A('s_and_b32 s38, s37, 1')
    A('s_and_b32 s39, s36, 3\ns_lshl_b32 s39, s39, 2\ns_bfe_u32 s42, s37, 0x20001\ns_add_u32 s39, s39, s42')
    A('s_lshl_b32 s35, s38, 2\ns_xor_b32 s35, s35, s36\ns_and_b32 s35, s35, 4\ns_lshr_b32 s42, s37, 3\ns_add_u32 s35, s35, s42')
    A('s_lshl_b32 s40, s35, 1\ns_add_u32 s40, s40, s38')
    A('v_lshlrev_b32 v8, 4, v1\nv_and_b32 v10, 31, v1\nv_lshrrev_b32 v11, 5, v1')
    A('s_cmp_lt_u32 s41, 4\ns_cbranch_scc1 L_cpre')
    A('s_mov_b32 s46, 0x200000\ns_mov_b32 s47, 0x20000\ns_mov_b32 s50, 0x180000\ns_mov_b32 s51, 0x20000')
    A('s_sub_u32 s43, s41, 4')
    A('v_lshrrev_b32 v3, 3, v1\nv_and_b32 v4, 7, v1\nv_lshrrev_b32 v5, 4, v1')
    A('v_xor_b32 v6, v4, v5\nv_lshlrev_b32 v6, 4, v6\nv_lshl_add_u32 v6, v3, 10, v6')
    A('s_lshl_b32 s24, s39, 17\ns_lshl_b32 s25, s43, 15\ns_add_u32 s24, s24, s25')
    A('v_add_u32 v16, s24, v6\nv_xor_b32 v17, 64, v16\nv_add_u32 v17, 8192, v17\nv_add_u32 v18, 16384, v16\nv_add_u32 v19, 16384, v17')
    A('v_and_b32 v5, 1, v5\nv_lshlrev_b32 v5, 2, v5\nv_xor_b32 v4, v4, v5\nv_mul_u32_u24 v3, 3072, v3\nv_lshl_add_u32 v3, v4, 4, v3')
    A('s_mul_i32 s24, s43, 49152\ns_lshl_b32 s25, s35, 7\ns_add_u32 s24, s24, s25')
    A('v_add_u32 v20, s24, v3\nv_xor_b32 v21, 32, v20\nv_add_u32 v21, 24576, v21')
    A(f's_lshl_b32 s30, s43, 12\ns_lshl_b32 s31, s43, 11')
    A(f's_add_u32 s26, s39, s35\ns_and_b32 s26, s26, {OPT["grp"]}\ns_lshl_b32 s26, s26, {OPT["gsh"]}')
    if OPT['xa'] >= 0: A(f's_lshl_b32 s27, s38, {OPT["xa"]}\ns_xor_b32 s26, s26, s27')
    if OPT['xm']: A(f's_and_b32 s27, s36, {OPT["xm"]}\ns_lshl_b32 s27, s27, {OPT["xs"]}\ns_xor_b32 s26, s26, s27')
    if OPT['ot']:
        T = [sum(int(c) << (4*i) for i, c in enumerate(o)) for o in OPT['ot'].split('.')]
        assert all(sorted(o) == list('01234567') for o in OPT['ot'].split('.'))
        A(f's_add_u32 s24, s39, s35\ns_mov_b32 s34, 0x{T[0]:x}\ns_mov_b32 s25, 0x{T[2]:x}\ns_bitcmp0_b32 s24, 0\ns_cselect_b32 s34, s34, 0x{T[1]:x}\ns_cselect_b32 s25, s25, 0x{T[3]:x}\ns_bitcmp0_b32 s24, 1\ns_cselect_b32 s34, s34, s25')
    A('s_cmp_eq_u32 s38, 0')
    A('s_waitcnt lgkmcnt(0)')
    A('s_cselect_b32 s44, s12, s4\ns_cselect_b32 s45, s13, s5\ns_cselect_b32 s48, s14, s6\ns_cselect_b32 s49, s15, s7')
    stamp(A, 0); stamp(A, 60)
    ORD = [int(c) for c in str(OPT['order']).zfill(8)]
    vq = Q(A, 'vmcnt', 63)
    def wsoff(st):
        if OPT['ot']: A(f's_bfe_u32 s32, s34, 0x{0x30000 + 4*st:x}\ns_lshl_b32 s32, s32, 7\ns_xor_b32 s32, s26, s32\ns_mul_i32 s33, s32, 1536')
        else: A(f's_xor_b32 s32, s26, {st*128}\ns_mul_i32 s33, s32, 1536')
    LT = []
    nis = [0]
    def issue(upto):
        while nis[0] < min(upto, 80):
            n = nis[0]; nis[0] += 1
            s, i = divmod(n, 8); base = RING[s % 4]
            if s >= 8:
                if n == 64 and OPT['qr']:
                    assert ORD == list(range(8)) and not OPT['ot']
                    A('s_add_u32 s24, s39, s35\ns_and_b32 s24, s24, 2\ns_lshl_b32 s25, s24, 7\ns_xor_b32 s26, s26, s25\ns_lshl_b32 s25, s24, 13\ns_xor_b32 s31, s31, s25')
                if i % 2 == 0: wsoff(ORD[4*(s-8) + i//2])
                A(f's_xor_b32 m0, s31, {base + (i//2)*8192 + (i%2)*1024}')
                A(f'buffer_load_dwordx4 v{20+i%2}, s[48:51], s33 offen lds')
            elif i < 4:
                if i == 0: wsoff(ORD[s])
                A(f's_add_u32 m0, s30, {base + i*1024}')
                A(f'buffer_load_dwordx4 v{16+i}, s[44:47], s32 offen lds')
            else:
                seg = i // 2 - 1
                A(f's_add_u32 m0, s31, {base + 8192 + seg*7168 + (i%2)*1024}')
                A(f'buffer_load_dwordx4 v{20+i%2}, s[48:51], s33 offen offset:{seg*1024} lds')
            vq.push(('st', s))
            if n % 2 and n < 38: stamp(A, 61 + n//2)
            if n >= OPT['cst']:
                for _ in range(OPT['cn']):
                    if LT: A(LT.pop(0))
    issue(OPT['n0'])
    stamp(A, 1)
    srd(A, 52, 22, WSZ); srd(A, 56, 20, 0x100)
    if OPT['pol'] == 1: A('s_add_u32 s52, s52, 8192\ns_addc_u32 s53, s53, 0')
    A('s_branch L_load')
    A.label('L_cpre'); A.fence()
    A('s_lshr_b32 s42, s41, 1\ns_and_b32 s43, s41, 1')
    for r in range(0, 8, 2): A(f'v_mov_b64 v[{16+r}:{17+r}], 0')
    A(f's_lshl_b32 s24, s35, 1\ns_add_u32 s24, s24, s43\ns_lshl_b32 s34, s39, {RBS}')
    A('s_lshl_b32 s25, s42, 11\ns_lshl_b32 s32, s24, 14\ns_add_u32 s32, s32, s25\ns_add_u32 s32, s32, s34')
    A(f's_lshl_b32 s24, s24, 1\ns_add_u32 s24, s24, s42\ns_lshl_b32 s24, s24, 7\ns_add_u32 s34, s34, s24\ns_add_u32 s34, s34, {WS_F1}')
    A('s_waitcnt lgkmcnt(0)')
    srd(A, 52, 22, WSZ); srd(A, 56, 20, 0x100)
    if OPT['pol'] == 1: A('s_add_u32 s52, s52, 8192\ns_addc_u32 s53, s53, 0')
    A('s_cmp_lg_u32 s41, 0\ns_cbranch_scc1 L_d1')
    if OPT['pfc']:
        A('s_getpc_b64 s[24:25]')
        A.label('L_pc0')
        A(f's_add_u32 s24, s24, {name}-L_pc0\ns_addc_u32 s25, s25, -1')
        A(f's_lshl_b32 s30, s37, 7\nv_lshlrev_b32 v13, 12, v1\nv_add_u32 v13, s30, v13\nv_min_u32 v13, L_cold-{name}-4, v13\ns_mov_b64 exec, 0xff')
        A('global_load_dword v255, v13, s[24:25]')
        A('s_mov_b64 exec, -1')
    srd(A, 44, 8, 0x4000)
    A(f's_lshl_b32 s24, s35, 11\ns_mov_b32 m0, {WPH}')
    for i in range(2): A(f'buffer_load_dwordx4 v8, s[44:47], s24 offen offset:{i*1024} lds')
    A(f'v_mov_b32 v12, {TAG}\nv_lshl_add_u32 v12, v1, 2, v12\ns_mov_b32 exec_hi, 0\nds_write_b32 v12, v16\ns_mov_b64 exec, -1')
    A.label('L_d1'); A.fence()
    A('s_cmp_lg_u32 s41, 1\ns_cbranch_scc1 L_d2\ns_cmp_ge_u32 s2, 32\ns_cbranch_scc1 L_d2')
    A(f's_mul_i32 s24, s2, {ACCB}\ns_add_u32 s24, s24, {WS_ACC}')
    A('buffer_store_dwordx4 v[16:19], v8, s[52:55], s24 offen sc1\nbuffer_store_dwordx4 v[16:19], v8, s[52:55], s24 offen offset:1024 sc1')
    A(f's_add_u32 s24, s24, {AUX}\ns_lshr_b32 s25, s2, 1\ns_lshl_b32 s25, s25, {RBS}\ns_and_b32 s3, s2, 1\ns_lshl_b32 s3, s3, 13\ns_add_u32 s25, s25, s3\ns_add_u32 s25, s25, {WS_F1}\ns_add_u32 s3, s25, 4096')
    A('buffer_store_dwordx4 v[16:19], v8, s[52:55], s3 offen sc1\nbuffer_store_dwordx4 v[16:19], v8, s[52:55], s3 offen offset:1024 sc1')
    if OPT['fw']:
        for i in range(4): A(f'buffer_store_dwordx4 v[16:19], v8, s[52:55], s25 offen offset:{i*1024} sc1')
    A('s_mov_b64 exec, 0xff00')
    for r in range(4): A(f'v_mov_b32 v{20+r}, 1.0')
    A('s_mov_b64 exec, -1')
    A('buffer_store_dwordx4 v[20:23], v8, s[52:55], s24 offen sc1')
    A.label('L_d2'); A.fence()
    DYN = OPT['pol'] == 2
    if DYN:
        A(f's_cmp_lg_u32 s41, 2\ns_cbranch_scc1 L_d21\ns_sub_u32 s24, s2, {OPT["vb"]}\ns_cmp_ge_u32 s24, 32\ns_cbranch_scc1 L_d21')
        A(f's_and_b32 s24, s37, 2\ns_add_u32 s24, s24, s37\ns_add_u32 s24, s24, s24\ns_and_b32 s24, s24, 10\ns_lshl_b32 s24, s24, 11\ns_lshl_b32 s26, s36, 8\ns_add_u32 s26, s26, s24\ns_add_u32 s26, s26, {WS_PR}')
        A('s_buffer_load_dword s60, s[52:55], s26 glc\ns_buffer_load_dword s60, s[52:55], s26 offset:8192 glc')
        A.label('L_d21'); A.fence()
    A('s_cmp_lg_u32 s41, 3\ns_cbranch_scc1 L_d3\ns_cmp_lg_u32 s2, 0\ns_cbranch_scc1 L_d3')
    A(f's_mov_b32 s24, {WS_EP}\nbuffer_load_dword v{PD}, v16, s[52:55], s24 offen sc1')
    A.label('L_d3'); A.fence()
    wo_srd(A)
    stamp(A, 0)
    common(A)
    if OPT['tl']:
        A('s_cmp_lg_u32 s41, 0\ns_cbranch_scc1 L_tl')
        if OPT['tl'] & 1: A('v_lshlrev_b32 v12, 20, v1\ns_mov_b64 exec, 0xffffff\nbuffer_load_dword v255, v12, s[52:55], 0 offen offset:3968 sc1')
        A('s_mov_b64 exec, 1')
        if OPT['tl'] & 2: A(f'buffer_load_dword v255, v{WOL}, s[44:47], 0 offen')
        if OPT['tl'] & 4:
            srd(A, 48, 18, 0x400000)
            A(f'buffer_load_dword v255, v{V0}, s[48:51], {S_OUT} offen sc1')
        A('s_mov_b64 exec, -1')
        A.label('L_tl')
    A('v_lshrrev_b32 v4, 4, v1\nv_bfe_u32 v12, v1, 1, 3\nv_xor_b32 v12, v12, v4\nv_and_b32 v13, 15, v1\nv_lshl_add_u32 v12, v13, 3, v12')
    A('s_lshl_b32 s24, s42, 13\nv_lshl_add_u32 v2, v12, 4, s24\nv_xor_b32 v3, 64, v2')
    A('v_bfe_u32 v12, v1, 2, 2\nv_lshl_add_u32 v12, v4, 3, v12\nv_lshlrev_b32 v12, 7, v12')
    A('v_bfe_u32 v13, v1, 3, 1\nv_xor_b32 v13, s43, v13\nv_lshl_add_u32 v12, v13, 6, v12')
    A('v_bfe_u32 v13, v1, 4, 1\nv_lshl_add_u32 v12, v13, 5, v12\nv_and_b32 v14, 3, v1\nv_lshl_add_u32 v6, v14, 3, v12')
    A('v_bfrev_b32 v4, v14\nv_lshrrev_b32 v4, 27, v4\nv_add_u32 v4, v4, v12')
    tr_lane(A, 9, 5, 2)
    A(f'v_lshl_add_u32 v9, v14, 3, v9\ns_lshl_b32 s24, s43, 10\ns_add_u32 s24, s24, {WPH}\nv_add_u32 v9, s24, v9')
    A(f'v_mov_b32 v15, {TAG}')
    A('s_and_b32 s24, s38, s42\ns_lshl_b32 s25, s24, 5\nv_xor_b32 v4, s25, v4\nv_xor_b32 v6, s25, v6\ns_lshl_b32 s25, s24, 9\nv_xor_b32 v9, s25, v9\nv_xor_b32 v14, 512, v9')
    A('v_xor_b32 v5, 32, v4\nv_xor_b32 v7, 32, v6')
    for r in range(6): A(f'v_add_u32 v{160+r}, 0x10000, v{2+r}')
    A(f's_lshl_b32 s24, s39, {RBS}\ns_lshl_b32 s25, s40, 8\ns_add_u32 s11, s25, s24\ns_add_u32 s11, s11, {WS_F1}')
    A(f's_lshl_b32 s33, s40, 14\ns_add_u32 s33, s33, s24\ns_lshl_b32 s25, s43, 12\ns_add_u32 s33, s33, s25\ns_mul_i32 s25, s42, {TWIN}\ns_add_u32 s33, s33, s25\ns_mul_i32 s27, s41, 12288\ns_add_u32 s27, s27, {KL}')
    A(f's_min_u32 s24, s39, 2\ns_lshl_b32 s24, s24, {RBS}\ns_sub_u32 s9, s11, s24\ns_min_u32 s24, s24, {1 << RBS}\ns_sub_u32 s10, s11, s24')
    A('s_cmp_eq_u32 s38, 1\ns_cbranch_scc1 L_cpA')
    A('v_and_b32 v12, 15, v1\nv_lshlrev_b32 v12, 4, v12\nv_lshl_add_u32 v12, v11, 8, v12\nv_lshl_add_u32 v52, v13, 12, v12')
    A(f's_lshl_b32 s25, s42, 11\nv_mul_u32_u24 v13, 12288, v13\nv_add_u32 v12, v12, v13\ns_add_u32 s24, s25, {VL + 8192}\nv_add_u32 v53, s24, v12')
    A(f's_add_u32 s24, s25, {KL + 8192}\nv_add_u32 v54, s24, v8\ns_add_u32 s30, s32, 4096\ns_add_u32 s31, s32, {TWIN}')
    A('s_branch L_cpd')
    A.label('L_cpA'); A.fence()
    for r in range(0, 32, 2): A(f'v_mov_b64 v[{168+r}:{169+r}], v[{ONES}:{ONES+1}]')
    A(f's_mul_i32 s30, s41, {PHI_WAVE}\ns_add_u32 s30, s30, {PHI}')
    A('v_and_b32 v12, 1, v1\nv_lshlrev_b32 v12, 4, v12\nv_mov_b32 v13, 0x3f80\nv_lshlrev_b32 v13, v12, v13')
    A('v_lshlrev_b32 v12, 4, v11\nv_sub_u32 v12, v10, v12\nv_lshrrev_b32 v12, 1, v12')
    for r in range(8): A(f'v_cmp_eq_u32 vcc, {r}, v12\nv_cndmask_b32 v{SEL+r}, 0, v13, vcc')
    A('v_lshlrev_b32 v54, 2, v10\nv_lshl_add_u32 v54, v11, 9, v54')
    A(f'v_add_u32 v52, s30, v8\ns_xor_b32 s24, s41, 2\ns_mul_i32 s25, s24, {PHI_WAVE}\ns_add_u32 s25, s25, {PHI}\nv_add_u32 v53, s25, v8')
    A('v_and_b32 v12, 31, v1\nv_lshl_add_u32 v12, v12, 1, v11\nv_lshl_add_u32 v251, v12, 3, s30\nv_and_b32 v12, 15, v1\nv_lshl_add_u32 v12, v11, 4, v12\nv_lshl_add_u32 v55, v12, 4, s30')
    A(f's_lshl_b32 s24, s35, 2\ns_lshl_b32 s25, s43, 1\ns_add_u32 s24, s24, s25\ns_add_u32 s24, s24, s42\ns_xor_b32 s24, s24, 1\ns_mul_i32 s31, s24, {ACCB}\ns_add_u32 s31, s31, {WS_ACC}')
    A.label('L_cpd'); A.fence()
    def padwalk(k):
        if not OPT['pads']: return
        A('s_mov_b64 exec, 0')
        for w in range(3): A(f's_cmp_eq_u32 s41, {w}\ns_cbranch_scc1 L_chain{4*k+w}')
        A(f's_branch L_chain{4*k+3}')
        A.label(f'L_padret{k}')
        A('s_mov_b64 exec, -1')
    def duties():
        A('s_cmp_lt_u32 s2, 32\ns_cbranch_scc1 L_d4')
        A.label('L_d5')
        def f():
            A.label('L_d4'); A.fence(); A.raw(';PAD')
            A('s_mov_b64 exec, 1\ns_cmp_lg_u32 s41, 1\ns_cbranch_scc1 L_d6')
            A(f's_waitcnt vmcnt(0)\nbuffer_atomic_add v{V1}, v{V0}, s[56:59], 0 offen offset:4')
            A.label('L_d6')
            A('s_cmp_lg_u32 s41, 3\ns_cbranch_scc1 L_d7\ns_cmp_lg_u32 s2, 0\ns_cbranch_scc1 L_d7')
            A(f's_waitcnt vmcnt(0)\nv_add_u32 v{PD}, 8, v{PD}\nv_and_b32 v{PD}, -8, v{PD}\nv_max_u32 v{PD}, 8, v{PD}\nv_or_b32 v{PD}, s99, v{PD}\ns_mov_b32 s24, {WS_EP}')
            A(f'buffer_store_dword v{PD}, v{V0}, s[56:59], 0 offen sc1')
            A(f'buffer_store_dword v{PD}, v{V0}, s[52:55], s24 offen sc1')
            A.label('L_d7')
            A('s_mov_b64 exec, -1\ns_branch L_d5')
        OOL.insert(0, f)
    def clear():
        if not OPT['ua']: return
        A(f'v_mov_b64 v[56:57], -1\nv_mov_b64 v[58:59], -1\ns_add_u32 s24, {S_OA}, 0x4000\ns_add_u32 s25, {S_OA}, 0x200000\ns_add_u32 s3, {S_OA}, 0x204000')
        for so in (S_OA, 's24', 's25', 's3'): A(f'buffer_store_dwordx4 v[56:59], v8, s[52:55], {so} offen sc1')
    if DYN:
        A(f's_cmp_lg_u32 s41, 2\ns_cbranch_scc1 L_d8\ns_sub_u32 s24, s2, {OPT["vb"]}\ns_cmp_ge_u32 s24, 32\ns_cbranch_scc1 L_d8\ns_mov_b64 s[24:25], -1\ns_waitcnt lgkmcnt(0)')
        stamp(A, 27)
        A('s_memtime s[48:49]')
        for r in range(2 * OPT['nrep']):
            a, b = (48, 50) if r % 2 == 0 else (50, 48)
            A(f's_waitcnt lgkmcnt(0)\ns_buffer_load_dword s60, s[52:55], s26 offset:{8192 * (r % 2)} glc\ns_waitcnt lgkmcnt(0)\ns_memtime s[{b}:{b+1}]\ns_waitcnt lgkmcnt(0)')
            A(f's_sub_u32 s3, s{b}, s{a}\ns_min_u32 s{24 + r % 2}, s{24 + r % 2}, s3')
        A('s_cmp_gt_u32 s24, s25\ns_cselect_b32 s3, 2, 0\ns_xor_b32 s3, s3, s36\ns_and_b32 s3, s3, 2\ns_lshl_b32 s3, s3, 15\ns_add_u32 s3, s3, 1')
        A(f'v_mov_b32 v{PD}, s3\ns_mov_b64 exec, 1\nbuffer_atomic_add v{PD}, v{V0}, s[56:59], 0 offen offset:4\ns_mov_b64 exec, -1')
        stamp(A, 28)
        A.label('L_d8'); A.fence()
    padwalk(0)
    if OPT['pw2'] < 0: padwalk(1)
    if OPT['dpos'] < 0: duties()
    A('s_branch L_cons')
    A.label('L_load'); A.fence()
    if OPT['sprio']: A(f's_setprio {OPT["sprio"]}')
    for r in (52, 54, 242, 244, 246, 248): A(f'v_mov_b64 v[{r}:{r+1}], 0')
    A(f'v_bfe_u32 v12, v1, 1, 3\nv_xor_b32 v12, v12, v11\nv_lshlrev_b32 v12, 4, v12')
    A('v_lshl_add_u32 v13, v10, 7, s30')
    for ks in range(4): A(f'v_xor_b32 v14, {ks*32}, v12\nv_add_u32 v{2+ks}, v13, v14')
    for ks in range(4): A(f'v_add_u32 v{12+ks}, 0x10000, v{2+ks}')
    def later(E):
        common(E)
        tr_lane(E, 6, 7, 3)
        E('v_bfe_u32 v7, v1, 3, 1\nv_xor_b32 v7, s38, v7\nv_lshl_add_u32 v6, v7, 6, v6')
        E('v_bfe_u32 v7, v1, 4, 1\nv_xor_b32 v7, v7, v11\nv_lshl_add_u32 v6, v7, 5, v6\nv_and_b32 v7, 3, v1\nv_lshl_add_u32 v7, v7, 3, v6\nv_xor_b32 v6, 64, v7')
        E(f's_mul_i32 s9, s38, {2*TWIN}\ns_sub_u32 s9, {TWIN}, s9\ns_add_u32 s9, s9, {S_QG}')
    LT.extend(stream(later))
    LA = [int(c, 36) for c in str(OPT['la'])]
    XF = 64
    for s in range(8):
        assert LA[s] <= 16
        issue(8*s + 8 + LA[s])
        vq.wait(('st', s))
        A('s_waitcnt lgkmcnt(0)\ns_barrier')
        stamp(A, 32 + s)
        for ks in range(4):
            A(f'ds_read_b128 {vr(XF + 16*s + 4*ks, 4)}, v{(2 if RING[s % 4] < 65536 else 12) + ks} offset:{RING[s % 4] & 65535}')
        if s == OPT['tagl']: A('s_buffer_load_dwordx2 s[60:61], s[56:59], 0')
        if s == 6:
            assert not LT and OPT['tagl'] < 6
            TST = f's_and_b32 s24, s61, 0xffff\ns_cmp_lg_u32 s60, 0\ns_cselect_b32 s24, s24, 0\ns_cmp_lt_u32 s24, {64 if DYN else 32}'
            A(TST + '\ns_cbranch_scc1 L_tgw')
            A.label('L_tgd')
            A(f'v_mov_b32 v22, {TAG}\nv_mov_b32 v24, s60\nv_mov_b32 v25, s61\nds_write_b64 v22, v[24:25]')
            place(A, 'l')
            def tgw():
                A.label('L_tgw'); A.fence()
                A(f's_mov_b32 s3, {SPIN_MAX}')
                A.label('L_tg')
                if OPT['dg']: A(f's_mov_b64 exec, 1\nbuffer_atomic_add v{V1}, v{V0}, s[56:59], 0 offen offset:8\ns_mov_b64 exec, -1')
                A(f's_sleep 1\nbuffer_load_dwordx2 v[24:25], v{V0}, s[56:59], 0 offen sc1\ns_waitcnt vmcnt(0)\nv_readfirstlane_b32 s60, v24\nv_readfirstlane_b32 s61, v25')
                A(TST + '\ns_cselect_b32 s3, s3, 0\ns_sub_u32 s3, s3, 1\ns_cbranch_scc0 L_tg\ns_branch L_tgd')
            OOL.append(tgw)
    if OPT['e0w'] == 0:
        issue(OPT['e0n'])
        A(ROLE + 's_cbranch_scc1 L_wrong\ns_waitcnt lgkmcnt(0)\ns_barrier')
    issue(80)
    if OPT['sprio'] and OPT['spo']: A('s_setprio 0')
    wo_srd(A)
    def awtouch():
        A('s_lshr_b32 s24, s37, 1\ns_lshl_b32 s24, s24, 2\ns_add_u32 s24, s24, s43\ns_xor_b32 s25, s38, 1\ns_lshl_b32 s25, s25, 6\ns_add_u32 s24, s24, s25\ns_lshl_b32 s24, s24, 13\nv_lshl_add_u32 v28, v1, 7, s24')
        A('buffer_load_dword v255, v28, s[44:47], 0 offen'); vq.push('aw')
    if OPT['aw'] == 1: awtouch()
    A(f's_cmp_eq_u32 s38, 0\ns_cselect_b32 s27, 0x{f2u(0.25*LOG2E):x}, 1.0')
    vq.wait(('st', 7 + max(1, OPT['e0w'])))
    if OPT['e0w']: A('s_waitcnt lgkmcnt(0)\ns_barrier')
    else:
        lds_add(A, C_WQ, 22)
        lds_spin(A, C_WQ, 4, 22, 23, sleep=bool(OPT['wqs']))
    stamp(A, 40)
    stamp(A, 42); stamp(A, 2)
    if OPT['sprio']: A('s_setprio 0')
    if OPT['lprio']:
        if not OPT['aprio']: A('s_cmp_eq_u32 s38, 1\ns_cbranch_scc1 L_noprio')
        A(f's_setprio {OPT["lprio"]}')
        A.label('L_noprio')
    lq = Q(A, 'lgkmcnt', 15)
    NR = 6; WF = 192; QD = OPT['qd']
    def qread(m):
        n = m % 32; f = WF + 4 * (m % NR)
        for rd in range(2):
            A(f'ds_read_b64_tr_b16 v[{f+2*rd}:{f+2*rd+1}], v{6 + m//32} offset:{n*2048 + rd*512}'); lq.push(('q', m))
    for m in range(QD): qread(m)
    ep = []
    for h in range(3):
        rr = range(3*h, min(3*h + 3, 8))
        ep += [f'v_mul_f32 v{32+2*r+e}, s27, v{32+2*r+e}' for r in rr for e in range(2)] + [f'v_cvt_pk_bf16_f32 v{16+GR[r]}, v{32+2*r}, v{33+2*r}' for r in rr]
        if h < OPT['ng'] and 'Q' not in OPT['ko']: ep += [f'buffer_store_dwordx4 {vr(16+4*h,4)}, v8, s[52:55], s9 offen offset:{h*1024} sc1']
    for m in range(64):
        lq.wait(('q', m))
        acc = 32 + 16 * (m // 32)
        if 'c' in OPT['ko'] and m % 32: A('s_nop 7')
        else: A(mfma32(acc, WF + 4*(m % NR), XF + 4*(m % 32), acc if m % 32 else None))
        if m == 16 - QD - 4 and OPT['e0w'] < 2:
            vq.wait(('st', 9))
            lds_add(A, C_WQ2, 22); lq.push('cnt')
        if m + QD == 16 and OPT['e0w'] < 2:
            lds_spin(A, C_WQ2, 4, 22, 23, sleep=False); lq.q = []
            stamp(A, 41); stamp(A, 22)
        if m + QD < 64: qread(m + QD)
        if m >= 32:
            for _ in range(OPT['epn']):
                if ep: A(ep.pop(0))
        if m == OPT['aw'] and m > 1: awtouch()
        if m == 31: stamp(A, 23)
        if m == 33: stamp(A, 24)
        if m == 20:
            for r in (19, 23, 26, 27): A(f'v_mov_b32 v{r}, s60')
        if m == 44:
            tr_lane(A, 15, 5, 2)
            A(f'v_and_b32 v14, 3, v1\nv_lshl_add_u32 v15, v14, 3, v15\ns_lshl_b32 s24, s38, 10\ns_add_u32 s24, s24, {WPH}\nv_add_u32 v15, s24, v15')
        if m == 46:
            for hs in range(2):
                for rd in range(2): A(f'ds_read_b64_tr_b16 v[{16+4*hs+2*rd}:{17+4*hs+2*rd}], v15 offset:{hs*512 + rd*256}'); lq.push('wphi')
        if m == OPT['qpoll'] or m == OPT['bq']:
            if OPT['qpoll'] != OPT['bq']: A(f's_cmp_eq_u32 s38, {0 if m == OPT["qpoll"] else 1}\ns_cbranch_scc1 L_noqp{m}')
            gran_issue(A, 32, 2)
            A.label(f'L_noqp{m}')
    stamp(A, 4)
    if OPT['lprio']: A('s_setprio 0')
    A(f's_lshl_b32 s24, s43, 10\nv_add_u32 v15, s24, v{QRD}')
    A('s_cmp_eq_u32 s38, 1\ns_cbranch_scc1 L_qa')
    for r in range(16): A(f'v_mul_f32 v{48+r}, s27, v{48+r}')
    for r in range(8): A(f'v_cvt_pk_bf16_f32 v{24+r}, v{48+2*r}, v{49+2*r}')
    A(f'ds_write_b128 v{QRD}, v[24:27]')
    if OPT['bq'] == 64: gran_issue(A, 32, 2)
    A('s_waitcnt lgkmcnt(0)\ns_barrier')
    if OPT['bq'] == 65: gran_issue(A, 32, 2)
    if OPT['bt']:
        A('s_bfe_u32 s24, s37, 0x10001\ns_lshl_b32 s24, s24, 2\ns_add_u32 s24, s24, s43\ns_lshl_b32 s24, s24, 16\ns_lshr_b32 s25, s37, 2\ns_lshl_b32 s25, s25, 7\ns_add_u32 s24, s24, s25\nv_lshlrev_b32 v14, 10, v1')
        A('buffer_load_dword v255, v14, s[44:47], s24 offen')
    if OPT['wb9']:
        stamp(A, 8)
        gran_wait(A, 32, 2, 104, False, 0)
        if OPT['bp']: A('s_setprio 1')
        A('s_branch L_qb')
    A.label('L_wo'); A.fence()
    if not OPT['wb9']: stamp(A, 8)
    if OPT['bp']: A('s_setprio 0')
    nwo = wo_dma(A, 8) + OPT['bt']
    if OPT['wb9']:
        stamp(A, 26)
        A('s_branch L_att')
    else:
        A('s_cmp_eq_u32 s38, 1\ns_cbranch_scc1 L_att')
        gran_wait(A, 32, 2, 104, False, nwo)
        stamp(A, 7)
        A('s_branch L_qb')
    A.label('L_qa'); A.fence()
    A('s_nop 8')
    for r in range(8): A(f'v_cvt_pk_bf16_f32 v{104+r}, v{48+2*r}, v{49+2*r}')
    A.label('L_qb'); A.fence(); A('s_nop 1')
    for hs in range(2): A(mfma32(64+16*hs, 16+4*hs, 104+4*hs, None))
    def phiq(E, hs):
        p = 64 + 16 * hs
        dual_exp(E, p, p + 8, 96 + 2*hs)
        for m in range(8): E(f'v_cvt_pk_bf16_f32 v{(104 if hs == 0 else 48)+m}, v{p+2*m}, v{p+2*m+1}')
    for a, b in zip(stream(phiq, 0), stream(phiq, 1)): A(a); A(b)
    A(f'ds_write_b128 v15, v[104:107] offset:{PQX-QX}\nds_write_b128 v15, v[108:111] offset:{PQX-QX+1024}')
    lds_add(A, C_PQ, 14)
    stamp(A, 6)
    A('s_cmp_eq_u32 s38, 0\ns_cbranch_scc1 ' + ('L_wo' if OPT['wb9'] else 'L_att'))
    gran_wait(A, 32, 2, 24, True)
    A(f'ds_write_b128 v{QRD}, v[24:27]')
    stamp(A, 7)
    A('s_waitcnt lgkmcnt(0)\ns_barrier')
    if OPT['wb9'] or OPT['wA'] < 8: stamp(A, 8)
    A('s_branch L_wo' if OPT['wA'] == 8 else 's_branch L_att')
    A.label('L_cons'); A.fence(); A.raw(';PAD')
    stamp(A, 21)
    KA, VA = [96, 112], [128, 144]
    FS = [16, 64]
    lq = Q(A, 'lgkmcnt', 12)
    def reads(n):
        s, ks = divmod(n, 2); f = FS[n % 2]
        ab = 2 if RING[s % 4] < 65536 else 160
        so = RING[s % 4] & 65535
        def rx(u): return [(f'ds_read_b128 {vr(f+4*u,4)}, v{ab+ks} offset:{so + u*2048}', (n, 'x', u))]
        def rw(c): return [(f'ds_read_b64_tr_b16 v[{f+16+4*c+2*rd}:{f+17+4*c+2*rd}], v{ab+2+c} offset:{so + 16384 + (c//2)*8192 + ks*4096 + rd*512}', (n, 'w', c)) for rd in range(2)]
        return rx(0) + rw(0) + rx(1) + rw(1) + rx(2) + rx(3) + rw(2) + rw(3)
    def mfma16(d, a, b, c): return f'v_mfma_f32_16x16x32_bf16 {vr(d,4)}, {vr(a,4)}, {vr(b,4)}, {vr(c,4) if c is not None else "0"}'
    def mk(n, u, hs):
        d = KA[u//2] + 8*hs + 4*(u % 2)
        return mfma16(d, FS[n % 2] + 16 + 4*hs, FS[n % 2] + 4*u, d if n else None)
    def mv1(n, u, hs):
        d = VA[u//2] + 8*(u % 2) + 4*hs
        return mfma16(d, FS[n % 2] + 4*u, FS[n % 2] + 24 + 4*hs, d if n else None)
    def mv(n, u): return mv1(n, u, 0) + '\n' + mv1(n, u, 1)
    KO = [(0, 0), (1, 0), (1, 1), (0, 1), (2, 1), (2, 0), (3, 0), (3, 1)]
    A('s_waitcnt lgkmcnt(0)\ns_barrier')
    stamp(A, 1)
    for t, tag in reads(0): A(t); lq.push(tag)
    for n in range(14):
        nxt = reads(n + 1)
        newstage = (n % 2 == 1)
        for mi in range(16):
            seg = mi // 8; u, hs = KO[mi % 8] if not seg else KO[7 - mi % 8]
            if newstage and mi == OPT['bp16']: lq.all()
            elif n and mi == 0: lq.wait((n, 'x', 3) if OPT['rodd'] == 1 else (n, 'w', 3))
            else: lq.wait((n, 'x', u), (n, 'w', 2*seg + hs))
            A(mv1(n, u, hs) if seg else mk(n, u, hs))
            if mi == 0 and 2*n == OPT['pw2']: padwalk(1)
            if mi == 0 and 2*n == OPT['dpos']: duties()
            if newstage and mi == OPT['bp16']: A('s_barrier')
            for _ in range(OPT['rodd' if newstage else 're']):
                if nxt and (not newstage or mi >= OPT['bp16']):
                    t, tag = nxt.pop(0); A(t); lq.push(tag)
        assert not nxt
        if n == 10: A('s_waitcnt vmcnt(0)')
        if n == 11:
            for hs in range(2):
                for rd in range(2): A(f'ds_read_b64_tr_b16 v[{56+4*hs+2*rd}:{57+4*hs+2*rd}], v{14 if hs else 9} offset:{rd*256}'); lq.push('wphi')
        if n == 13:
            A('s_not_b64 exec, s[28:29]\nv_mov_b64 v[56:57], 0\nv_mov_b64 v[58:59], 0\ns_mov_b64 exec, s[28:29]\nv_mov_b64 v[60:61], 0\nv_mov_b64 v[62:63], 0\ns_mov_b64 exec, -1')
            A('ds_read_b64 v[12:13], v15'); lq.push('tag')
    if OPT['cprio']: A('s_setprio 2')
    nxt = reads(15)
    E0P = 2 * OPT['e0pos']
    assert 10 < E0P < 16
    for g in range(16):
        n = 14 + g // 8; u, hs = KO[g % 8]
        if g == E0P: lq.all()
        elif g == 0: lq.wait((n, 'x', 3) if OPT['rodd'] == 1 else (n, 'w', 3))
        else: lq.wait((n, 'x', u), (n, 'w', hs))
        A(mk(n, u, hs))
        if g == E0P: A(ROLE + 's_cbranch_scc1 L_wrong\ns_barrier')
        for t, tag in nxt[OPT['rt']*g:OPT['rt']*(g+1)]: A(t); lq.push(tag)
        if g == 10: A('v_readfirstlane_b32 s60, v12\nv_readfirstlane_b32 s61, v13')
        if g == 15: place(A, 'c'); A('s_mov_b32 s61, s60')
    stamp(A, 2)
    A('s_cmp_eq_u32 s38, 1\ns_cbranch_scc1 L_epA')
    hist = list(A.hist)
    def weave(mf, fill, per):
        fill = list(fill)
        for m in mf:
            A(m)
            for _ in range(per):
                if fill: A(fill.pop(0))
        for f in fill: A(f)
    def cv(d, a): return [f'v_cvt_pk_bf16_f32 v{d+m}, v{a+2*m}, v{a+2*m+1}' for m in range(4)]
    def sw(d, *ks): return [f'v_permlane{k}_swap_b32 v{d+m}, v{d+2+m}' for k in ks for m in range(2)]
    def two(d, a, *ks): return cv(d, a) + cv(d+4, a+8) + [x for k in ks for e in range(2) for x in sw(d+4*e, k)]
    ckv = [x for tt in range(2) for x in two(160+8*tt, KA[tt], 16)]
    sk = [f'buffer_store_dwordx4 {vr(160+8*tt+4*e,4)}, v8, s[52:55], {"s30" if e else "s32"} offen offset:{tt*1024} sc1' for tt in range(2) for e in range(2)]
    cvv = [two(176+8*tt, VA[tt], 16, 32) for tt in range(2)]
    sv = [f'buffer_store_dwordx4 {vr(176+8*tt+4*e,4)}, v52, s[52:55], s31 offen offset:{tt*1024+e*512} sc1' for tt in range(2) for e in range(2)]
    VO = [mv1(n, u, hs) for tt in range(2) for n in (14, 15) for u in (2*tt, 2*tt+1) for hs in range(2)]
    A(VO[0]); A(VO[1])
    weave(VO[2:], ckv + cvv[0], 2)
    if OPT['cprio']: A('s_setprio 0')
    if OPT['e0pos'] >= 8: A('s_barrier')
    if OPT['bw']:
        for x in cvv[1]: A(x)
        cvv[1] = []
        lds_spin(A, C_WQ, 4, 2, 3)
    for x in sk + sv[:2] + cvv[1] + sv[2:]:
        if 's' not in OPT['ko'] or not x.startswith('buffer'): A(x)
    stamp(A, 3)
    flag(A, 's34', 2)
    stamp(A, 4)
    halo_edge(A, 'B')
    A('s_cmp_eq_u32 s43, 1\ns_cbranch_scc1 L_epB1')
    for tt in range(2):
        for e in range(2):
            A(f'ds_write_b128 v54, {vr(160+8*tt+4*e,4)} offset:{e*12288 + tt*1024}')
            A(f'ds_write_b128 v53, {vr(176+8*tt+4*e,4)} offset:{tt*1024 + e*512}')
    A.label('L_epB1')
    A('s_cmp_eq_u32 s39, 0\ns_cbranch_scc1 L_epB2')
    halo_issue(A, 'B'); halo_fetch(A, 'B')
    A.label('L_epB2')
    A('s_waitcnt vmcnt(0) lgkmcnt(0)\ns_branch L_e1')
    A.label('L_epA'); A.hist = hist; A.raw(';PAD')
    KPK = {0: 160, 1: 208}
    VM = [168, 184]
    EM = {(0, 0): 16, (1, 0): 24, (0, 1): 32, (1, 1): 40}
    TM = {(0, 0): 2, (1, 0): 4, (0, 1): 12, (1, 1): 14}
    PT = {(0, 0): 64, (1, 0): 80, (0, 1): 80, (1, 1): 16}
    PP = {(0, 0): 64, (1, 0): 72, (0, 1): 80, (1, 1): 16}
    def phik(E, tt, hs, fast):
        p = KA[tt] + 8*hs; em = EM[(tt, hs)]; t = TM[(tt, hs)]; d = PT[(tt, hs)]
        if fast:
            for r in range(8): E(f'v_mul_f32 v{p+r}, s62, v{p+r}')
            for r in range(8): E(f'v_exp_f32_e64 v{em+r}, -v{p+r}\nv_exp_f32 v{p+r}, v{p+r}')
        else: dual_exp(E, p, em, t)
        E(f'v_add_f32 v{t}, v{p}, v{p+1}\nv_add_f32 v{t+1}, v{em}, v{em+1}')
        for r in range(2, 8): E(f'v_add_f32 v{t}, v{t}, v{p+r}\nv_add_f32 v{t+1}, v{t+1}, v{em+r}')
        E(f'v_permlane32_swap_b32 v{t}, v{t+1}\nv_add_f32 v{t}, v{t}, v{t+1}')
        if fast: E(f'v_max_f32 v6, v6, v{t}')
        E(f'v_rcp_f32 v{t}, v{t}\nv_mov_b32 v{t+1}, v{t}\nv_permlane32_swap_b32 v{t}, v{t+1}')
        for r in range(8): E(f'v_mul_f32 v{p+r}, v{p+r}, v{t}')
        for x in cv(p, p): E(x)
        for r in range(8):
            E(f'v_mul_f32 v{em+r}, v{em+r}, v{t+1}')
            if r == 1: E(mfma32(d, p, SEL, None))
        for x in cv(em, em): E(x)
    def phik2(hs): return [x for tt in range(2) for x in cv(PP[(tt, hs)], PT[(tt, hs)]) + cv(PP[(tt, hs)] + 4, PT[(tt, hs)] + 8)]
    def tm2(hs): return [mfma32(PT[(tt, hs)], EM[(tt, hs)], SEL + 4, PT[(tt, hs)]) for tt in range(2)]
    def pair(fn, hs, *a): return [x for ab in zip(stream(fn, 0, hs, *a), stream(fn, 1, hs, *a)) for x in ab]
    ck = [two(KPK[tt], KA[tt], 16) for tt in range(2)]
    pm = [[mfma32(KA[tt], 56, KPK[tt], None), mfma32(KA[tt], 60, KPK[tt]+4, KA[tt])] for tt in range(2)]
    KV = [128, 144]
    def kvm(hs): return [mfma32(KV[hs], VM[hs] + 8*tt + 4*blk, PP[(tt, hs)] + 4*blk, KV[hs] if hs or tt or blk else None) for tt in range(2) for blk in range(2)]
    send = [f'ds_write_b128 v52, {vr(KV[0],4)}', f'ds_write_b128 v52, {vr(KV[0]+4,4)} offset:1024', f'ds_write_b32 v52, v{KV[0]+8} offset:2048', f'ds_write_b32 v48, v{V1}']
    recv = f'ds_read_b32 v50, v49\nds_read_b128 {vr(KV[1],4)}, v53\nds_read_b128 {vr(KV[1]+4,4)}, v53 offset:1024\nds_read_b32 v{KV[1]+8}, v53 offset:2048'
    weave([mv1(14, u, hs) for u in range(3) for hs in range(2)], ck[0], 2)
    weave(pm[0], ck[1], 6)
    for m in pm[1]: A(m)
    A(mv(14, 3))
    A(f'v_mov_b32 v6, 0\ns_lshl_b32 s25, s41, 2\ns_add_u32 s25, s25, {TAG + C_PAIR}')
    fast = bool(OPT['fastk'])
    S = [pair(phik, hs, fast) for hs in range(2)]
    vb = [(VM[hs] + 8*tt + 4*blk, VA[tt] + 8*blk + 4*hs) for hs in range(2) for tt in range(2) for blk in range(2)]
    vc = [x for d, a in vb for x in cv(d, a)[:2]] + [x for k in (16, 32) for d, a in vb for x in sw(d, k)]
    KD, KZ = (KV[1] + 8, KV[1]) if OPT['vl'] == 2 else (KV[1], KV[1] + 8)
    recv = f'ds_read_b32 v50, v49\nds_read_b128 {vr(KD,4)}, v53\nds_read_b128 {vr(KD+4,4)}, v53 offset:1024\nds_read_b32 v{KZ}, v53 offset:2048'
    if OPT['vl'] == 2:
        vc = [x for tt in range(2) for x in two(VM[1] + 8*tt, VA[tt], 16, 32)] + ['s_mov_b64 exec, s[28:29]']
        vc += [f'v_mov_b64 v[{VM[0]+r}:{VM[0]+r+1}], v[{VM[1]+r}:{VM[1]+r+1}]' for r in range(0, 16, 2)] + [f'v_mov_b64 v[{VM[1]+r}:{VM[1]+r+1}], v[{ONES}:{ONES+1}]' for r in range(0, 16, 2)] + ['s_mov_b64 exec, -1']
    vr2 = []
    if OPT['vl'] == 3:
        vc = [x for i, (d, a) in enumerate(vb) for x in cv(a, a)[:2] + ([f'ds_write_b64 v251, v[{vb[i-1][1]}:{vb[i-1][1]+1}] offset:{4096 + 512*(i-1)}'] if i else [])] + [f'ds_write_b64 v251, v[{vb[7][1]}:{vb[7][1]+1}] offset:{4096 + 512*7}']
        vr2 = [['s_mov_b64 exec, s[28:29]'] + [f'ds_read_b128 {vr(vb[i][0],4)}, v55 offset:{4096 + 512*i}' for i in range(4*h, 4*h+4)] + ['s_mov_b64 exec, -1'] for h in range(2)]
    if OPT['vl'] == 1:
        vc = [x for d, a in vb for x in cv(a, a)[:2]] + [f'ds_write_b64 v166, v[{a}:{a+1}] offset:{4096 + 512*i}' for i, (d, a) in enumerate(vb)]
        vc = [x.replace('v166', 'v251') for x in vc]
        vc += ['s_mov_b64 exec, s[28:29]'] + [f'ds_read_b128 {vr(d,4)}, v55 offset:{4096 + 512*i}' for i, (d, a) in enumerate(vb)] + ['s_mov_b64 exec, -1']
    D = 2 * OPT['stag']
    rest = [mv(15, u) for u in range(4)]
    L = len(S[0])
    K0 = OPT['k0']
    tail0 = {L: tm2(0), L + K0 - 4: phik2(0), L + K0: ['s_waitcnt lgkmcnt(0)'] + kvm(0)[:1], L + K0 + 2: kvm(0)[1:2], L + K0 + 6: kvm(0)[2:3], L + K0 + 10: kvm(0)[3:],
             L + OPT['sw']: (['v_cmp_ngt_f32 vcc, s63, v6', 's_cbranch_vccnz L_kexa'] if fast else []) + send}
    assert K0 + 10 < OPT['sw'] < D and K0 - 4 < D - 24
    assert D >= 26
    for i in range(0, L + D, 2):
        if i < L: A(S[0][i]); A(S[0][i+1])
        if rest and i % 4 == 2:
            A(rest.pop(0))
            if not rest and OPT['cprio']: A('s_setprio 0')
        if OPT['e0pos'] >= 8 and i == OPT['e0a']: A('s_barrier')
        if i == D - 2:
            halo_edge(A, 'A')
            for x in vc: A(x)
            A('v_mov_b32 v48, s25\nv_xor_b32 v49, 8, v48')
            stamp(A, 6)
        if vr2 and i in (D + 20, D + 40):
            for x in vr2.pop(0): A(x)
        if i >= D: A(S[1][i-D]); A(S[1][i-D+1])
        for x in tail0.get(i, []): A(x)
    for m in tm2(1): A(m)
    if OPT['hf'] == 2: halo_issue(A, 'A')
    stamp(A, 3)
    two2 = fast and max(i for i, x in enumerate(S[1]) if x.startswith('v_max_f32 v6,')) + D > L + OPT['sw']
    if two2: A('v_cmp_ngt_f32 vcc, s63, v6\ns_cbranch_vccnz L_kexb')
    A.label('L_kdone')
    A(recv)
    for x in phik2(1)[:8]: A(x)
    A('s_waitcnt lgkmcnt(0)\nv_cmp_eq_u32 vcc, 0, v50\ns_cbranch_vccnz L_exs')
    A.label('L_exd')
    def exs():
        A.label('L_exs'); A.fence()
        A(f's_mov_b32 s3, {SPIN_MAX * 4}')
        A.label('L_exs2')
        A(recv)
        A('s_sub_u32 s3, s3, 1\ns_waitcnt lgkmcnt(0)\nv_cmp_eq_u32 vcc, 0, v50\ns_cselect_b64 vcc, 0, vcc\ns_cbranch_vccnz L_exs2\ns_branch L_exd')
    OOL.append(exs)
    weave(kvm(1), phik2(1)[8:], 4)
    halo_addr(A)
    if fast:
        def kexact():
            for hs in range(2):
                if hs == 0 or two2:
                    A.label('L_kex' + 'ab'[hs]); A.fence()
                    A('s_nop 15')
                    for tt in range(2):
                        for m in pm[tt]: A(m)
                for x in pair(phik, hs, False) + tm2(hs): A(x)
                if hs == 0:
                    for x in phik2(0) + kvm(0) + send: A(x)
            A('s_nop 1\ns_branch L_kdone')
        COLD.append(kexact)
    stamp(A, 20)
    def atomics():
        for r in range(OPT['nat']): A(f'buffer_atomic_add_f32 v{KD+r}, v54, s[52:55], s31 offen offset:{rowof(r,0)*128}')
        A(f's_mov_b32 exec_hi, 0\ns_add_u32 s31, s31, {AUX}')
        A(f'buffer_atomic_add_f32 v{KZ}, v54, s[52:55], s31 offen')
        A('s_mov_b64 exec, -1')
    if 'A' in OPT['sp']:
        if OPT['hpos'] == 0: halo_issue(A, 'A')
        atomics()
        stamp(A, 4)
        if OPT['hpos'] == 1: halo_issue(A, 'A')
        halo_fetch(A, 'A')
        A('s_cmp_lt_u32 s39, 2\ns_cbranch_scc0 L_c2\ns_waitcnt vmcnt(4)')
        A.label('L_c2')
        A('s_waitcnt vmcnt(12)')
        count_add(A, 's31', 256)
        stamp(A, 19)
        A('s_waitcnt vmcnt(1)')
    else:
        if OPT['hf']:
            A(f's_mov_b64 exec, 63\ns_waitcnt vmcnt(0)\nv_cmp_ne_u32 vcc, s60, v{PD}\ns_mov_b64 exec, -1\ns_cbranch_vccnz L_hlate')
            halo_dma(A, 'A', 'E')
            atomics()
            stamp(A, 4)
            A('s_waitcnt vmcnt(0)')
            count_add(A, 's31', 256)
            stamp(A, 19)
            A('s_branch L_e1')
            A.label('L_hlate'); A.fence()
        atomics()
        stamp(A, 4)
        halo_issue(A, 'A')
        A('s_waitcnt vmcnt(1)')
        count_add(A, 's31', 256)
        stamp(A, 19)
        halo_fetch(A, 'A', 1)
        A('s_waitcnt vmcnt(0)')
    A.label('L_e1'); A.fence()
    A(f's_lshl_b32 s24, s41, 10\nv_add_u32 v9, s24, v{QRD}')
    A('s_barrier')
    stamp(A, 8)
    A(f'ds_read_b128 v[28:31], v{QRD}')
    A.label('L_att'); A.fence(); A.raw(';PAD')
    if OPT['wprio']:
        A('s_cmp_lt_u32 s41, 4\ns_cbranch_scc1 L_wp\ns_setprio 1')
        A.label('L_wp')
    A('s_cmp_lt_u32 s39, 2\ns_cbranch_scc1 L_bslow')
    FA = bool(OPT['fasta'])
    bunit(A, False, FA, not OPT['nohook'], 'f')
    A.label('L_bdone'); A.fence()
    stamp(A, 11)
    if OPT['nohook']: A('s_branch L_fin2')
    O = OACC
    A(f's_add_u32 s24, {S_OA}, {TWIN}\ns_add_u32 s27, {S_C3}, 1024\ns_nop 9')
    if FA:
        A(f'v_pk_mul_f32 v[2:3], v[{O}:{O+1}], 0')
        for m in range(1, 4): A(f'v_pk_fma_f32 v[2:3], v[{O+2*m}:{O+2*m+1}], 0, v[2:3]')
        A(f'v_add_f32 v2, v2, v3\nv_add_f32 v2, v2, v{O+8}\nv_subrev_u32 v2, 0x{f2u(2.0**-60):x}, v2')
        A(f'v_cmp_lt_u32 vcc, 0x{f2u(2.0**60) - f2u(2.0**-60):x}, v2\ns_cbranch_vccnz L_bexact'.replace('vccnz', 'execz' if OPT['ko'] else 'vccnz'))
        A.label('L_bdone2')
    A(f'v_rcp_f32 v4, v{O+8}')
    for m in range(4): A(f'v_pk_mul_f32 v[{O+2*m}:{O+2*m+1}], v[{O+2*m}:{O+2*m+1}], v[4:5] op_sel_hi:[1,0]')
    for m in range(4): A(f'v_cvt_pk_bf16_f32 v{16+m}, v{O+2*m}, v{O+2*m+1}')
    A(f'buffer_store_dwordx4 v[16:19], v8, s[52:55], s24 offen sc1')
    UA = OPT['ua']
    if UA: count_add(A, 's27'); stamp(A, 12)
    A('s_cmp_ge_u32 s41, 4\ns_cbranch_scc1 L_nord')
    lds_spin(A, C_PQ, 4, 4, 5, sleep=False)
    A(f'ds_read_b128 v[48:51], v9 offset:{PQX-QX}\nds_read_b128 v[52:55], v9 offset:{PQX-QX+1024}')
    readout(A, 64, 180, 1 + UA + 16 // max(1, len(WD) + len(W0)) * sum(1 for x in W0 if x <= OPT['h2'])); readout2(A, 64, 180)
    if OPT['tp'] == 1: A('s_setprio 0')
    A.label('L_nord')
    tr_lane(A, 6, 7, 2)
    A('v_and_b32 v7, 1, v1\nv_lshl_add_u32 v6, v7, 5, v6\nv_bfe_u32 v7, v1, 1, 1\nv_lshl_add_u32 v6, v7, 3, v6\nv_and_b32 v7, 16, v1\nv_add_u32 v6, v6, v7')
    A('s_lshr_b32 s24, s41, 2\ns_lshl_b32 s24, s24, 11\nv_bfe_u32 v7, v1, 3, 1\nv_lshl_add_u32 v6, v7, 6, v6\nv_add_u32 v2, s24, v6\nv_xor_b32 v3, 64, v2')
    assert OPT['wa'] and not UA and not W0
    A('s_bfe_u32 s25, s37, 0x10002' if OPT['ro'] else 's_mov_b32 s25, 0')
    if OPT['ro'] == 1: A('s_lshr_b32 s24, s41, 2\ns_and_b32 s25, s25, s24')
    A(f's_lshl_b32 s24, s25, 12\nv_add_u32 v2, s24, v2\nv_add_u32 v3, s24, v3\nv_xor_b32 v6, 4096, v2\nv_xor_b32 v7, 4096, v3')
    A(f's_lshl_b32 s24, s25, 14\ns_sub_u32 s31, {S_FO}, s24\ns_add_u32 {S_FO}, {S_FO}, s24')
    OFR, PRE, AC = 16, 80, 208
    def wread(m):
        for rd in range(2): A(f'ds_read_b64_tr_b16 v[{PRE+4*m+2*rd}:{PRE+4*m+2*rd+1}], v{2 + m//16*4 + m%2} offset:{(m//2 % 8)*8192 + rd*1024}')
    def early():
        if OPT['ew'] == 1: A('v_mov_b32 v251, 0\ns_cmp_ge_u32 s41, 4\ns_cbranch_scc1 L_nosp')
        if OPT['ew']: poll_issue(A, 251, V0, S_FC)
        A.label('L_nosp')
    early()
    if OPT['cw']: A(f'v_mov_b32 v12, {TAG}'); assert OPT['npre'] == 0
    else: lds_spin(A, C_WO, NWO, 12, 13, sleep=False)
    for m in range(OPT['npre']): wread(m)
    def oload(k): A(f'buffer_load_dwordx4 {vr(OFR+4*k,4)}, v8, s[52:55], {[S_FO,"s26","s24","s25"][k//4]} offen offset:{(k%4)*1024} sc1')
    SF = 'F' in OPT['sp']
    FULL = 0x810 if OPT['ew'] else 16
    if OPT['ew']: A(f's_xor_b32 s24, s38, 1\ns_lshl_b32 s24, s24, 8\ns_add_u32 s24, s24, 1\nv_mov_b32 v14, s24')
    A(f's_add_u32 s26, {S_FO}, 4096\ns_lshr_b32 s24, s41, 2\ns_lshl_b32 s3, s24, 3\nv_lshlrev_b32 v15, s3, v{V1}')
    A('v_lshlrev_b32 v13, 10, v1' + ('' if OPT['u2'] else '\ns_waitcnt vmcnt(0)'))
    if not SF and not OPT['wf']: poll_issue(A, PD, V0, S_FC, count=FULL)
    A('s_mov_b64 exec, 3' + ('\ns_sub_u32 exec_lo, 3, s24' if OPT['ca'] >= -1 else ''))
    A(f'buffer_atomic_add v{14 if OPT["ew"] else V1}, v13, s[52:55], {S_C3} offen\ns_mov_b64 exec, 1\nds_add_u32 v12, v15 offset:{C_ATT}\ns_mov_b64 exec, -1')
    if OPT['ew']:
        A('v_readfirstlane_b32 s30, v251\ns_lshr_b32 s30, s30, 11')
        A('s_cbranch_scc0 L_noear')
        for k in range(8): oload(k)
        A.label('L_noear')
    stamp(A, 13)
    if OPT['gp'] == 1: A('s_setprio 0')
    if OPT['cw']: lds_spin(A, C_WO, NWO, 12, 13, sleep=False)
    for m in range(OPT['npre'], 32): wread(m)
    A('v_and_b32 v9, 15, v1\nv_lshlrev_b32 v9, 11, v9\nv_and_b32 v14, 48, v1\nv_add_u32 v9, v9, v14')
    if 'f' in OPT['ko']: A('v_and_b32 v9, 7, v1\nv_lshlrev_b32 v9, 12, v9\nv_and_b32 v14, 48, v1\nv_add_u32 v9, v9, v14\nv_and_b32 v14, 8, v1\nv_lshl_add_u32 v9, v14, 3, v9')
    if 'F' in OPT['ko']: A('v_lshrrev_b32 v9, 3, v1\nv_lshlrev_b32 v9, 12, v9\nv_and_b32 v14, 7, v1\nv_lshl_add_u32 v9, v14, 4, v9')
    A(f's_and_b32 s24, s41, 3\ns_lshl_b32 s25, s24, 13\ns_add_u32 s25, s25, {PHI}\nv_add_u32 v4, s25, v8\ns_lshl_b32 s24, s24, 2\ns_add_u32 s24, s24, {TAG + C_PART}\nv_mov_b32 v5, s24')
    if OPT['fl']:
        A('v_and_b32 v14, 7, v1\nv_lshlrev_b32 v9, 1, v11\nv_xor_b32 v9, v9, v14\nv_lshl_add_u32 v9, v10, 3, v9\nv_lshl_add_u32 v245, v9, 4, s25')
        A(f'v_add_u32 v249, s25, v{KVS}\nv_xor_b32 v246, 16, v245\nv_xor_b32 v247, 64, v245\nv_xor_b32 v248, 80, v245')
        A('v_lshrrev_b32 v9, 3, v1\nv_lshlrev_b32 v9, 11, v9\nv_lshl_add_u32 v9, v14, 4, v9')
        A(f's_add_u32 s28, {S_OUT}, 16384\ns_add_u32 s29, {S_OUT}, 49152')
    srd(A, 56, 18, 0x400000)
    A(f's_add_u32 s24, s31, 16384\ns_add_u32 s25, s31, 20480\ns_add_u32 s27, {S_OUT}, 32768')
    stamp(A, 25)
    def fpoll():
        if SF:
            sp_issue(A, [(48, S_FC, 0)]); sp_wait(A, [(48, S_FC, 0)], f's_cmp_lg_u32 s48, {FULL}')
        else:
            if OPT['wf']: poll_issue(A, PD, V0, S_FC, count=FULL)
            poll(A, PD, V0, S_FC, count=FULL, inline=True, first=1 - OPT['wf'])
    if not OPT['wf']: fpoll()
    stamp(A, 12)
    if not OPT['w4w']: A('s_cmp_ge_u32 s41, 4\ns_cbranch_scc1 L_noatt')
    if OPT['w0n']: A('s_cmp_lg_u32 s30, 0\ns_cbranch_scc1 L_noatt')
    lds_spin(A, C_ATT, 0x400, 12, 13)
    A.label('L_noatt')
    if OPT['wf']: fpoll()
    stamp(A, 14)
    if OPT['ew']: A('s_cmp_lg_u32 s30, 0\ns_cbranch_scc1 L_late8')
    for k in range(8): oload(k)
    A.label('L_late8')
    for k in range(8, 16): oload(k)
    A('s_waitcnt lgkmcnt(0)')
    if OPT['fl']:
        def fm(k, ct): return mfma32(AC+16*ct, PRE + 8*k + 4*ct, OFR+4*k, AC+16*ct if k else None)
        def common_mf(m0, m1):
            for m in range(m0, m1):
                k, ct = m // 2, m % 2
                if ct == 0: A(f's_waitcnt vmcnt({15-k})')
                A(fm(k, ct))
        PR = OPT['pr']
        assert 16 <= PR <= 21
        common_mf(0, PR + 1)
        A('s_cmp_ge_u32 s41, 4\ns_cbranch_scc1 L_fin')
        hist = list(A.hist)
        common_mf(PR + 1, 32)
        stamp(A, 16)
        for i in range(8): A(f'ds_write_b128 v4, {vr(AC+4*i,4)} offset:{i*1024}')
        A(f'ds_write_b32 v5, v{V1}\ns_waitcnt lgkmcnt(0)\ns_branch L_fin2')
        A.label('L_fin'); A.hist = hist
        prd = 'ds_read_b32 v12, v5\n' + '\n'.join(f'ds_read_b128 {vr(OFR+4*i,4)}, v4 offset:{i*1024}' for i in range(8))
        A(prd)
        common_mf(PR + 1, 22)
        def adds(ct): return [f'v_add_f32 v{AC+16*ct+r}, v{AC+16*ct+r}, v{OFR+16*ct+r}' for r in range(16)]
        def pack(ct): return [x for e in range(2) for x in cv(48 + 8*ct + 4*e, AC + 16*ct + 8*e) + [f'ds_write_b128 v{245 + 2*ct + e}, {vr(48 + 8*ct + 4*e, 4)}']]
        def vm(n): return f's_waitcnt vmcnt({n})\n'
        def lag():
            A.hist = A.hist[-1:]
        A(vm(4) + fm(11, 1)); lag()
        A('s_waitcnt lgkmcnt(0)\nv_cmp_eq_u32 vcc, 0, v12\ns_cbranch_vccnz L_prs')
        A.label('L_prd')
        def prs():
            A.label('L_prs'); A.fence()
            if OPT['lt']:
                A(fm(11, 0)); common_mf(24, 32)
            A(f's_mov_b32 s3, {SPIN_MAX * 4}')
            A.label('L_prs2')
            A('ds_read_b32 v12, v5\ns_sub_u32 s3, s3, 1\ns_waitcnt lgkmcnt(0)\nv_cmp_eq_u32 vcc, 0, v12\ns_cselect_b64 vcc, 0, vcc\ns_cbranch_vccnz L_prs2')
            if not OPT['lt']: A(prd + '\ns_waitcnt lgkmcnt(0)\ns_branch L_prd'); return
            A(prd)
            for i in range(8):
                A(f's_waitcnt lgkmcnt({7-i})')
                for r in (4*i, 4*i + 2): A(f'v_pk_add_f32 v[{AC+r}:{AC+r+1}], v[{AC+r}:{AC+r+1}], v[{OFR+r}:{OFR+r+1}]')
            A('s_branch L_pk')
        FIN.append(prs)
        stamp(A, 15)
        for x in adds(0)[:4]: A(x)
        weave([vm(3) + fm(12, 1), vm(2) + fm(13, 1)], adds(0)[4:], 6)
        A(fm(11, 0)); A(fm(12, 0)); lag()
        for x in adds(1)[:5]: A(x)
        weave([fm(13, 0), vm(1) + fm(14, 0)], adds(1)[5:], 6)
        A(vm(0) + fm(15, 0)); A(fm(14, 1)); A(fm(15, 1)); lag()
        A.label('L_pk')
        for x in pack(0): A(x)
        stamp(A, 16)
        for x in pack(1): A(x)
        for i in range(4): A(f'ds_read_b128 {vr(OFR+4*i,4)}, v249 offset:{i*1024}')
        for i in range(4): A(f's_waitcnt lgkmcnt({3-i})\nbuffer_store_dwordx4 {vr(OFR+4*i,4)}, v9, s[56:59], {[S_OUT, "s28", "s27", "s29"][i]} offen {OST}')
    else:
        for m in range(32):
            k, ct = m // 2, m % 2
            if ct == 0: A(f's_waitcnt vmcnt({15-k})')
            A(mfma32(AC+16*ct, PRE+4*m, OFR+4*k, AC+16*ct if k else None))
            if m == 30 and UA:
                A(f's_cmp_lg_u32 s30, 0\ns_cbranch_scc1 L_acked\ns_mov_b64 exec, 3\nv_lshlrev_b32 v12, 15, v1\nbuffer_atomic_add v{V1}, v12, s[52:55], {S_C3} offen offset:64\ns_mov_b64 exec, -1')
                A.label('L_acked'); A.hist = A.hist[:-4]
            if m == OPT['tu']:
                A(f'ds_read_b32 v13, v12 offset:{C_ATT}\ns_mov_b64 exec, 1\nds_add_rtn_u32 v14, v5, v{V1} offset:16\ns_mov_b64 exec, -1')
            if m == OPT['pr']:
                assert m >= 17
                if OPT['tu'] >= 0: A('s_waitcnt lgkmcnt(0)\nv_readfirstlane_b32 s30, v14')
                else: A('s_lshr_b32 s30, s41, 2')
                A(f's_cmp_eq_u32 s30, 0\ns_cbranch_scc1 L_nopr\ns_mov_b32 s3, {SPIN_MAX * 4}')
                A.label('L_prs')
                A('ds_read_b32 v12, v5\ns_sub_u32 s3, s3, 1\ns_waitcnt lgkmcnt(0)\nv_cmp_eq_u32 vcc, 0, v12\ns_cselect_b64 vcc, 0, vcc\ns_cbranch_vccnz L_prs')
                stamp(A, 15)
                for i in range(8): A(f'ds_read_b128 {vr(OFR+4*i,4)}, v4 offset:{i*1024}')
                A.label('L_nopr')
        stamp(A, 16)
        if UA:
            A(f'v_cmp_u_f32 vcc, v{AC}, v{AC}\ns_cbranch_vccnz L_late')
            A.label('L_late2')
            def late():
                A.label('L_late'); A.fence()
                A('s_cmp_lg_u32 s30, 0\ns_cbranch_scc1 L_late2\ns_mov_b32 s30, 1\ns_waitcnt lgkmcnt(0)')
                poll_issue(A, PD, V0, S_FC, count=16, off=64)
                poll(A, PD, V0, S_FC, count=16, off=64, inline=True)
                A('s_branch L_again')
            COLD.append(late)
        A('s_cmp_lg_u32 s30, 0\ns_cbranch_scc1 L_fin')
        if OPT['tu'] >= 0:
            A('v_cmp_gt_u32 vcc, 0x404, v13\ns_cbranch_vccnz L_aw')
            A.label('L_aw2')
            def aw():
                A.label('L_aw'); A.fence()
                lds_spin(A, C_ATT, 0x404, 12, 13)
                A('s_branch L_aw2')
            COLD.append(aw)
        else: assert not OPT['w0n']
        for i in range(8): A(f'ds_write_b128 v4, {vr(AC+4*i,4)} offset:{i*1024}')
        A(f'ds_write_b32 v5, v{V1}\ns_waitcnt lgkmcnt(0)\ns_branch L_fin2')
        A.label('L_fin')
        A('s_waitcnt lgkmcnt(0)' + ('' if UA else '\ns_nop 7'))
        for ct in range(2):
            for r in range(0, 16, 2): A(f'v_pk_add_f32 v[{AC+16*ct+r}:{AC+16*ct+r+1}], v[{AC+16*ct+r}:{AC+16*ct+r+1}], v[{OFR+16*ct+r}:{OFR+16*ct+r+1}]')
            b = 48 + 8 * ct
            for m in range(8): A(f'v_cvt_pk_bf16_f32 v{b+m}, v{AC+16*ct+2*m}, v{AC+16*ct+2*m+1}')
            for m in range(4): A(f'v_permlane16_swap_b32 v{b+m}, v{b+4+m}')
            for h in range(2 if 'o' not in OPT['ko'] else 1 - ct if 'O' in OPT['ko'] else 0): A(f'buffer_store_dwordx4 {vr(b+4*h,4)}, v9, s[56:59], {"s27" if h else S_OUT} offen offset:{ct*(2048 if "f" in OPT["ko"].lower() else 64)} {OST}')
    A.label('L_fin2')
    stamp_flush(A, 's[52:55]', 's41')
    A.label('L_end'); A.fence()
    A('s_endpgm')
    for f in FIN: f()
    A.label('L_bslow'); A.fence(); A.raw(';PAD')
    bunit(A, True, FA, not OPT['nohook'], 's')
    A('s_branch L_bdone')
    for f in OOL: f()
    A.label('L_cold')
    if FA:
        A.label('L_bexact'); A.fence()
        bunit(A, True, False, False, 'x')
        A('s_nop 11\ns_branch L_bdone2')
    for f in COLD: f()
    wrong(A)

def kvread(A, n):
    for m in range(1, 4): A(f'v_xor_b32 v{32+4*m}, {16*m}, v{KVOFF}')
    A(f's_waitcnt vmcnt({n})')
    for m in range(4): A(f'ds_read_b128 {vr(32+4*m,4)}, v{32+4*m if m else KVOFF}')
def readout(A, R1, R2, n):
    if not OPT['kd']: A(f's_waitcnt vmcnt({n})')
    elif n: kvread(A, n); A('s_waitcnt lgkmcnt(0)')
    for m in range(8): A(f'v_cvt_pk_bf16_f32 v{32+m}, v{32+2*m}, v{33+2*m}')
    if n and not OPT['kd']: A('s_waitcnt lgkmcnt(0)')
    A(mfma32(R1, 32, 48, None)); A(mfma32(R2, 36, 52, None))
def readout2(A, R1, R2):
    A(f'v_mov_b32 v6, 0x{f2u(1e-6):x}')
    A(f'v_rcp_f32 v4, v{R1+9}\nv_rcp_f32 v5, v{R2+9}')
    A(f'v_fmac_f32 v6, v{R1+8}, v4\nv_fmac_f32 v6, v{R2+8}, v5')
    A('v_rcp_f32 v6, v6')
    A('v_mul_f32 v4, v4, v6\nv_mul_f32 v5, v5, v6')
    for r in range(8): A(f'v_mul_f32 v{R1+r}, v{R1+r}, v4')
    for r in range(8): A(f'v_fmac_f32 v{R1+r}, v{R2+r}, v5')
    for m in range(4): A(f'v_cvt_pk_bf16_f32 v{20+m}, v{R1+2*m}, v{R1+2*m+1}')
    A(f'buffer_store_dwordx4 v[20:23], v8, s[52:55], {S_OA} offen sc1')
    if OPT['ua']: count_add(A, S_C3)
    if OPT['wprio']: A('s_setprio 0')
    stamp(A, 17)

def bunit(A, checks, fast, hooks, sfx):
    lq = Q(A, 'lgkmcnt', 15)
    KF = {j: 144 + 4 * j for j in range(9)}
    M, X, Y, Z, NM = 64, 80, 96, 112, 128
    O = OACC
    order = [8, 0, 7, 6, 5, 4, 3, 2, 1]
    def kvload():
        if OPT['kd']:
            fl = OPT["kvs"].replace("p", "")
            A(f's_mov_b32 m0, s98\ns_add_u32 s24, {S_ACC}, {AUX - 2048}')
            for i in range(2): A(f'buffer_load_dwordx4 v{KVS}, s[52:55], {S_ACC} offen offset:{1024*i} {fl} lds')
            A(f's_mov_b64 exec, 0xffff\nbuffer_load_dwordx4 v{KVS}, s[52:55], s24 offen offset:2048 {fl} lds\ns_mov_b64 exec, -1')
            return
        for m in range(4): A(f'buffer_load_dwordx4 {vr(32+4*m,4)}, v{KVOFF}, s[52:55], {S_ACC} offen offset:{16*m} {OPT["kvs"].replace("p", "")}')
    def hook(j):
        stamp(A, 58 - j)
        if j + 100 == OPT['clr'] and OPT['ua']:
            assert j > OPT['h2']
            A(f's_cmp_ge_u32 s41, 4\ns_cbranch_scc1 L_nclr{sfx}')
            A(f'v_mov_b64 v[56:57], -1\nv_mov_b64 v[58:59], -1\ns_add_u32 s24, {S_OA}, 0x4000\ns_add_u32 s25, {S_OA}, 0x200000\ns_add_u32 s3, {S_OA}, 0x204000')
            for so in (S_OA, 's24', 's25', 's3'): A(f'buffer_store_dwordx4 v[56:59], v8, s[52:55], {so} offen sc1')
            A.label(f'L_nclr{sfx}')
        same = (OPT['hp'], OPT['h2']) == (OPT['ap'], OPT['a2'])
        for ty, (hp, h2) in enumerate([(OPT['hp'], OPT['h2']), (OPT['ap'], OPT['a2'])][:1 if same else 2]):
            if j not in (hp, h2) and not (same and j in W0): continue
            A((f's_cmp_ge_u32 s41, 4' if same else f's_cmp_lg_u32 s20, {ty}') + f'\ns_cbranch_scc1 L_hg0{ty}{j+1}{sfx}')
            if j == hp:
                A(f's_mov_b64 exec, 3\nv_lshlrev_b32 v5, 11, v1\nv_add_u32 v5, {AUX}, v5')
                poll_issue(A, PD, 5, S_ACC, count=16, off=256)
                A('s_mov_b64 exec, -1')
            if j == h2:
                A('s_mov_b64 exec, 3')
                poll(A, PD, 5, S_ACC, count=16, off=256, first=16 // max(1, len(WD) + len(W0)) * sum(1 for x in W0 if h2 < x <= hp))
                lds_add(A, C_KV, 4)
                if OPT['tp']: A('s_setprio 2')
                stamp(A, 10)
                kvload()
                if OPT['kt']: A(f'buffer_load_dword v255, v{KVOFF}, s[52:55], {S_ACC} offen offset:{ACCB}')
            assert same or not W0
            wo_dma(A, j, 0)
            A.label(f'L_hg0{ty}{j+1}{sfx}')
        if j == OPT['wA']:
            assert j > OPT['g2']
            A(f's_cmp_lg_u32 s20, 3\ns_cbranch_scc1 L_hwa{sfx}')
            wo_dma(A, 8); stamp(A, 26)
            A.label(f'L_hwa{sfx}')
        if j in WD or j in (OPT['g2'], OPT['gr'], OPT['gr'] - 1, OPT['gpp'], OPT['ca']) or (OPT['kd'] and j == OPT['gl']):
            A(f's_cmp_lt_u32 s41, 4\ns_cbranch_scc1 L_hg1{j+1}{sfx}')
            if OPT['gp'] and j == OPT['gpp']: A('s_setprio 1')
            wo_dma(A, j)
            if j == OPT['gl'] and OPT['kd']:
                assert OPT['g2'] > j >= OPT['gr']
                kvread(A, 0)
                if j == OPT['gr']: A('s_waitcnt lgkmcnt(0)')
            if j == OPT['gr']: readout(A, R1, 180, 0)
            if j == OPT['gr'] - 1: readout2(A, R1, 180)
            if j == OPT['ca']:
                assert j < OPT['gr'] - 1 and not OPT['ew']
                A('s_waitcnt vmcnt(0)'); count_add(A, S_C3)
            if j == OPT['g2']:
                assert min(WD + [8]) > j
                if WD:
                    A('s_waitcnt vmcnt(0)')
                    lds_add(A, C_WO, 4)
                lds_spin(A, C_KV, 4 if OPT['ua'] and OPT['clr'] >= 100 else 1, 4, 5)
                stamp(A, 10)
                kvload()
            A.label(f'L_hg1{j+1}{sfx}')
    R1 = M
    if hooks: stamp(A, 50)
    for j in order: A(f'ds_read_b128 {vr(KF[j],4)}, v{KRD} offset:{j*1024}'); lq.push(('k', j))
    buf = {8: M, 0: X, 7: Y, 6: Z, 5: NM, 4: X, 3: Y, 2: Z, 1: NM}
    def qk(j, dst):
        lq.wait(('k', j))
        A(mfma32(dst, KF[j], 28, None))
    def hook0():
        if hooks: stamp(A, 9)
    if fast:
        qk(8, M)
        if checks:
            A('v_mov_b32 v2, 0xff800000')
            for r in range(0, 16, 2): A(f'v_mov_b64 v[{NM+r}:{NM+r+1}], 0')
        else: qk(0, NM)
    else:
        for j in (8, 0, 7, 6, 5): qk(j, buf[j])
        if checks:
            A(f's_cmp_ge_u32 {S_T}, 8\ns_cbranch_scc1 L_t0{sfx}\ns_nop 7')
            for r in range(16): A(f'v_mov_b32 v{X+r}, 0xff800000')
            A.label(f'L_t0{sfx}'); A('s_nop 7')
        for r in range(16): A(f'v_cndmask_b32_e64 v{M+r}, v{X+r}, v{M+r}, s[{64+2*r}:{65+2*r}]')
        qk(4, buf[4])
        A(f'v_max_f32 v2, v{M}, v{M+1}\nv_max_f32 v3, v{M+2}, v{M+3}')
        for m in range(1, 4): A(f'v_max3_f32 v2, v2, v{M+4*m}, v{M+4*m+1}\nv_max3_f32 v3, v3, v{M+4*m+2}, v{M+4*m+3}')
        for j in (7, 6, 5, 4, 3, 2, 1):
            b = buf[j]
            if checks: A(f's_cmp_lt_u32 {S_T}, {8-j}\ns_cbranch_scc1 L_bm{sfx}')
            for m in range(4): A(f'v_max3_f32 v2, v2, v{b+4*m}, v{b+4*m+1}\nv_max3_f32 v3, v3, v{b+4*m+2}, v{b+4*m+3}')
            if j - 4 >= 1: qk(j - 4, buf[j - 4])
        if checks:
            A.label(f'L_bm{sfx}'); A.fence(); A('s_waitcnt lgkmcnt(0)\ns_nop 15'); lq.q = []
        A('v_max_f32 v2, v2, v3\nv_mov_b32 v3, v2\nv_permlane32_swap_b32 v2, v3\nv_max_f32 v2, v2, v3')
        hook0()
        A(f'v_sub_f32 v{NM}, 0, v2\nv_sub_f32 v{NM+1}, 0, v2')
        for r in range(2, 16, 2): A(f'v_mov_b64 v[{NM+r}:{NM+r+1}], v[{NM}:{NM+1}]')
    vs = [0]
    def vreads(js):
        A('s_mov_b64 exec, s[28:29]')
        out = {}
        for j in js:
            for blk in range(2):
                st = VRING + 4 * (vs[0] % 4); vs[0] += 1
                A(f'ds_read_b128 {vr(st,4)}, v{VRD} offset:{j*1024 + blk*512}'); lq.push(('v', j, blk)); out[(j, blk)] = st
        A('s_mov_b64 exec, -1')
        return out
    first = [True]
    def pv(j, blk, vreg, p):
        def f():
            lq.wait(('v', j, blk))
            A(mfma32(O, vreg, p, None if first[0] else O))
            first[0] = False
        return f
    buf2 = {7: X, 6: Y, 5: Z, 4: X, 3: Y, 2: Z, 1: X}
    def qk2(j):
        def f():
            if checks:
                uid[0] += 1; n = uid[0]
                A(f's_cmp_lg_u32 {S_T}, {7-j}\ns_cbranch_scc1 L_ni{n}\ns_nop 7')
                for r in range(16): A(f'v_mov_b32 v{NM+r}, 0xff800000')
                A.label(f'L_ni{n}'); A.fence(); A('s_nop 1')
            lq.wait(('k', j))
            A(mfma32(buf2[j], KF[j], 28, None if fast and not checks else NM))
        return f
    def tile(b, pend, pre=()):
        ops = list(pre) + [f'v_exp_f32 v{b+r}, v{b+r}' for r in range(16)] + [f'v_cvt_pk_bf16_f32 v{b+m}, v{b+2*m}, v{b+2*m+1}' for m in range(8)]
        n0 = len(pre); step = max(1, 16 // max(1, len(pend)))
        pos = {n0 + 1 + i * step: f for i, f in enumerate(pend)}
        for i, o in enumerate(ops):
            if i in pos: pos[i]()
            A(o)
    vv = vreads([8, 0])
    if fast: pre = [f'v_cndmask_b32_e64 v{M+r}, v{2 if checks else NM+r}, v{M+r}, s[{64+2*r}:{65+2*r}]' for r in range(16)]
    else: pre = [f'v_sub_f32 v{M+r}, v{M+r}, v2' for r in range(16)]
    tile(M, [qk2(7), qk2(6)], pre=pre)
    for m in range(8): A(f'v_bfi_b32 v{M+8+m}, v{PMASK+m}, 0, v{M+m}')
    for m in range(8): A(f'v_and_b32 v{M+m}, v{PMASK+m}, v{M+m}')
    pend = [pv(8, 0, vv[(8, 0)], M), pv(8, 1, vv[(8, 1)], M + 4), pv(0, 0, vv[(0, 0)], M + 8), pv(0, 1, vv[(0, 1)], M + 12), qk2(5)]
    if fast: hook0()
    for j in (7, 6, 5, 4, 3, 2, 1):
        b = buf2[j]
        if OPT['w1']: lq.all()
        if hooks: hook(j)
        if j == 7 and OPT['v7']:
            vv = {}
            k7 = 3 - OPT['w1']
            f3 = pend[k7]
            pend[k7] = lambda: (f3(), vv.update(vreads([7])))
            tile(b, pend)
        elif j == 7:
            tile(b, pend); vv = vreads([j])
        else:
            vv = vreads([j]); tile(b, pend)
        pend = [pv(j, 0, vv[(j, 0)], b), pv(j, 1, vv[(j, 1)], b + 4)]
        if j - 3 >= 1: pend.append(qk2(j - 3))
    for f in pend: f()
    if hooks:
        hook(0); hook(-1)

def add_pads(txt):
    import subprocess, re, tempfile
    lines = txt.split('\n')
    d = tempfile.mkdtemp()
    tmp = txt.replace(';PAD', '    s_nop 0').replace('L_code_end:', ''.join(f'L_chain{i}:\n' for i in range(8)) + 'L_code_end:')
    open(d + '/a.s', 'w').write(tmp)
    subprocess.check_call(['clang', '-x', 'assembler', '-target', 'amdgcn-amd-amdhsa', '-mcpu=gfx950', '-c', d + '/a.s', '-o', d + '/a.o'])
    dis = subprocess.check_output(['llvm-objdump', '-d', d + '/a.o']).decode()
    addrs = [int(m.group(1), 16) for m in re.finditer(r'// ([0-9A-F]{12}):', dis)]
    out = []; k = 0; shift = 0x300; nxt = 4096; skip = True; walk = False
    for ln in lines:
        if ln.strip() == 's_mov_b64 exec, 0': walk = True
        if ln.startswith('L_padret0'): skip = False
        if ln.startswith('L_cold'): skip = True
        if ln == ';PAD' or (ln.startswith('    ') and not ln.strip().startswith('.')):
            a = addrs[k] + shift; k += 1
            if a >= nxt and not walk:
                nxt += 4096
                if ln != ';PAD' and not skip: out.append(';PAD'); shift += 4
        out.append(ln)
        if ln.strip() == 's_mov_b64 exec, -1': walk = False
    idx = [i for i, ln in enumerate(out) if ln == ';PAD']
    n = len(idx)
    for j, i in enumerate(idx):
        head = f'L_chain{j}:\n' if j < 8 else ''
        out[i] = f'{head}L_pad{j}:\n    s_cbranch_execz ' + ('L_padret0' if j < 4 else f'L_pad{j+4}' if j + 4 < n else 'L_padret1')
    return '\n'.join(out)

def main():
    A = Asm()
    A.raw(f'; @launch grid=(256,1,1) block=(512,1,1) lds={LDS_SIZE}')
    A.raw('.amdgcn_target "amdgcn-amd-amdhsa--gfx950"\n.text')
    gen(A)
    A.raw('L_code_end:\n.p2align 8\n.fill 64, 4, 0xbf800000')
    A.raw(kd(NAME, 256, 100))
    txt = A.text()
    if OPT['pads']: txt = add_pads(txt)
    sys.stdout.write(txt)
main()
```

```python
import sys, math, struct
sys.path.insert(0, 'work')
from asmlib import *

OPT = dict(stamps=0, gst=0, skip='', pfc=2, psl=2, ssl=2, order='01234567', grp=1, gsh=9, tagl=5, la='88664888', n0=10, cst=11, cn=8, e0n=72, ot='', dpos=0, pw2=-1, aw=0, bw=1, npre=6, w4w=0, wf=0, qr=1, pr=18, ua=0, clr=107, wa=1, gp=1, th=16, ap=5, a2=2, gpp=6, hq=-1, hk=-1, e0w=0, e0pos=6, e0a=24, fastk=1, fasta=1, epn=28, cprio=0,
           nat=8, fw=1, pads=1, qd=5, qpoll=56, bq=65, lprio=1, aprio=0, stag=28, ost='sc1', wprio=0, pre=1, wd='8', w0='x', bt=0, hf=0, pol=2, nrep=1, rot=1, mis=0, vb=32, kvs='p', v7=1, tp=2, cw=0, kt=0, kd=1, gl=4, w1=1, ew=0, ko='', bp16=2, re=2, rodd=1, sprio=1, rt=2, vl=2, oz=1, ca=-9, fl=1, lt=1, mt=0, lin='x1001', po='x4567012389abcdef', pn=32, mo16=1, bk=0, fq=0, mq=-1, mo=-1, spo=0, wqs=0, ro=0, tu=-1, wb9=1, wA=8, bp=1, ng=3, sw=36, k0=18, w0n=0, u2=0, tl=0, dg=0, nohook=0, g2=6, gr=3, hp=3, h2=1, hpos=0, fp=16, sp='x', hl=0, xa=8, xm=1, xs=7)
for a in sys.argv[1:]:
    k, v = a.split('='); assert k in OPT, k; OPT[k] = int(v) if v.lstrip('-').isdigit() else v
OST = '' if OPT['ost'] == 'plain' else OPT['ost'].replace('_', ' ')
NAME = 'concat_heads__linear_kernel_hedgehog__sliding_block__prompt_kernel'

def f2u(x): return struct.unpack('<I', struct.pack('<f', x))[0]
LOG2E = math.log2(math.e)
RBS, TWIN = 18, 0x202000
WS_K, WS_O, WS_QG, WS_F1 = 0x000000, 0x400000, 0x800000, 0x1400000
WS_ACC, WS_EP, WS_PR = 0x1100000, 0x1120000, 0x1128000
WS_SIZE = 0x1800000
ACCB, AUX = 2048, 65536
WS_STAMP = 0x1000000
SPIN_MAX = 1 << 16
SLOT = 32768
RING = [0, 32768, 65536, 98304]
KL, VL, PHI = 65536, 90112, 114688
PHI_PLANE, PHI_HEAD, PHI_WAVE = 1088, 4352, 8704
TAG = PHI + 4 * PHI_WAVE - 128
QX, PQX, WPH = 149504, 153600, 161792
WO1 = 0
LDS_SIZE = 163840
C_ATT, C_WQ, C_PQ, C_WO, C_KV, C_WQ2, C_PAIR, C_PART = 8, 12, 16, 20, 24, 28, 32, 48
OACC, VRING, PMASK, ONES = 200, 216, 232, 240
SEL = 200
KVOFF, V1, V0, KRD, VRD, WOL, KVS, QRD, PD = 242, 243, 244, 245, 246, 247, 248, 249, 250
S_T, S_WO, S_ACC, S_OA, S_C3, S_FC, S_FO, S_OUT, S_QG = 's4', 's5', 's6', 's7', 's8', 's12', 's13', 's14', 's15'

class Q:
    def __init__(self, A, name, mx): self.A = A; self.q = []; self.name = name; self.mx = mx
    def push(self, tag): self.q.append(tag)
    def wait(self, *tags):
        idx = -1
        for i, t in enumerate(self.q):
            if t in tags: idx = i
        if idx < 0: return
        n = min(len(self.q) - 1 - idx, self.mx)
        self.A(f's_waitcnt {self.name}({n})')
        self.q = self.q[len(self.q) - n:] if n else []
    def all(self):
        self.A(f's_waitcnt {self.name}(0)'); self.q = []

def stamp(A, idx):
    if not OPT['stamps'] or str(idx) in str(OPT['skip']).split('.'): return
    if OPT['gst'] == 9 and idx not in (30, 31): return
    if OPT['gst'] == 3:
        if 32 <= idx < 42: idx -= 12
        elif idx >= 60: idx -= 60
        elif idx not in (30, 31): return
    elif idx >= 60: return
    elif OPT['gst'] == 2:
        if idx < 10 or 32 <= idx < 50: return
        if idx >= 50: idx -= 50
    elif OPT['gst']:
        if idx < 30 or idx > 47: return
        if idx >= 32: idx -= 32
    elif idx >= 32: return
    A(('s_memrealtime' if OPT['stamps'] == 1 else 's_memtime') + ' s[96:97]')
    A('s_waitcnt lgkmcnt(0)')
    A(f'v_writelane_b32 v253, s96, {idx}')
def stamp_flush(A, srd, wavereg):
    if not OPT['stamps']: return
    stamp(A, 31)
    A(f's_lshl_b32 s98, s37, 3\ns_add_u32 s98, s98, s99\ns_lshl_b32 s98, s98, 3\ns_add_u32 s98, s98, {wavereg}\ns_lshl_b32 s98, s98, 7\ns_add_u32 s98, s98, {WS_STAMP}\ns_and_b32 s52, s52, 0xffffdfff')
    A('v_mbcnt_lo_u32_b32 v252, -1, 0\nv_lshlrev_b32 v252, 2, v252\ns_mov_b32 exec_hi, 0')
    A(f'buffer_store_dword v253, v252, {srd}, s98 offen')

def rowof(r, hi): return (r & 3) + 8 * (r >> 2) + 4 * hi

def dual_exp(A, p, em, t):
    A(f'v_max3_f32 v{t}, v{p}, v{p+1}, v{p+2}\nv_max3_f32 v{t+1}, -v{p}, -v{p+1}, -v{p+2}')
    A(f'v_max3_f32 v{t}, v{t}, v{p+3}, v{p+4}\nv_max3_f32 v{t+1}, v{t+1}, -v{p+3}, -v{p+4}')
    A(f'v_max3_f32 v{t}, v{t}, v{p+5}, v{p+6}\nv_max3_f32 v{t+1}, v{t+1}, -v{p+5}, -v{p+6}')
    A(f'v_max_f32_e64 v{t}, v{t}, v{p+7}\nv_max_f32_e64 v{t+1}, v{t+1}, -v{p+7}')
    A(f'v_permlane32_swap_b32 v{t}, v{t+1}')
    A(f'v_max_f32 v{t}, v{t}, v{t+1}')
    A(f'v_mul_f32 v{t}, s62, v{t}')
    A(f'v_mov_b32 v{t+1}, v{t}')
    A(f'v_permlane32_swap_b32 v{t}, v{t+1}')
    for r in range(8): A(f'v_fma_f32 v{em+r}, -v{p+r}, s62, -v{t+1}\nv_fma_f32 v{p+r}, v{p+r}, s62, -v{t}')
    for r in range(8): A(f'v_exp_f32 v{em+r}, v{em+r}\nv_exp_f32 v{p+r}, v{p+r}')

uid = [0]
OOL = []
COLD = []
FIN = []
def sp_issue(A, loads):
    for d, so, off in loads: A(f's_buffer_load_dword s{d}, s[52:55], {so} offset:{off} glc')
def sp_wait(A, loads, test, inline=True):
    uid[0] += 1; n = uid[0]
    def loop():
        A(f's_mov_b32 s3, {SPIN_MAX}')
        A.label(f'L_pl{n}')
        if OPT['ssl']: A(f's_sleep {OPT["ssl"]}')
        sp_issue(A, loads)
        A(f's_waitcnt lgkmcnt(0)\n{test}\ns_cselect_b32 s3, s3, 0\ns_sub_u32 s3, s3, 1\ns_cbranch_scc0 L_pl{n}')
    if inline:
        A(f's_waitcnt lgkmcnt(0)\n{test}\ns_cbranch_scc0 L_pd{n}')
        loop()
        A.label(f'L_pd{n}')
        return
    A(f's_waitcnt lgkmcnt(0)\n{test}\ns_cbranch_scc1 L_ps{n}')
    A.label(f'L_pd{n}')
    def slow():
        A.label(f'L_ps{n}'); A.fence()
        loop()
        A(f's_branch L_pd{n}')
    OOL.append(slow)
def poll_issue(A, vdst, voff, soff, count=None, off=0):
    o = f' offset:{off}' if off else ''
    A(f'buffer_load_dword v{vdst}, v{voff}, s[52:55], {soff} offen{o} sc1')
def poll(A, vdst, voff, soff, count=None, off=0, inline=False, first=0):
    uid[0] += 1; n = uid[0]
    cmp = f'v_cmp_ne_u32 vcc, {count}, v{vdst}'
    if inline:
        A(f's_waitcnt vmcnt({first})\n{cmp}\ns_cbranch_vccz L_pd{n}\ns_mov_b32 s3, {SPIN_MAX}')
        A.label(f'L_pl{n}')
        if OPT['psl']: A(f's_sleep {OPT["psl"]}')
        poll_issue(A, vdst, voff, soff, count, off)
        A(f's_sub_u32 s3, s3, 1\ns_waitcnt vmcnt(0)\n{cmp}\ns_cselect_b64 vcc, 0, vcc\ns_cbranch_vccnz L_pl{n}')
        A.label(f'L_pd{n}')
        return
    A(f's_waitcnt vmcnt({first})\n{cmp}\ns_cbranch_vccnz L_ps{n}')
    A.label(f'L_pd{n}')
    def slow():
        A.label(f'L_ps{n}'); A.fence()
        A('s_mov_b32 s3, 0')
        A.label(f'L_pl{n}')
        if OPT['psl']: A(f's_sleep {OPT["psl"]}')
        poll_issue(A, vdst, voff, soff, count, off)
        A(f's_add_u32 s3, s3, 1\ns_waitcnt vmcnt(0)\n{cmp}\ns_cbranch_vccz L_pd{n}')
        A(f's_cmp_lt_u32 s3, {SPIN_MAX}\ns_cbranch_scc1 L_pl{n}\ns_branch L_pd{n}')
    OOL.append(slow)
GR = [0, 1, 2, 4, 5, 6, 8, 9]
def gran_issue(A, v, nh):
    if 'q' in OPT['ko']:
        for h in range(3): A(f'v_mov_b32 v{v+4*h+3}, s60')
        return
    for h in range(OPT['ng']): A(f'buffer_load_dwordx4 {vr(v+4*h,4)}, v8, s[52:55], {S_QG} offen offset:{h*1024} sc1')
def gran_wait(A, v, nh, dst, inline, first=0):
    uid[0] += 1; n = uid[0]
    def check(cnt=0):
        A(f's_waitcnt vmcnt({cnt})\nv_cmp_ne_u32_e64 s[24:25], s60, v{v+3}')
        for r in range(1, OPT['ng']): A(f'v_cmp_ne_u32 vcc, s60, v{v+3+4*r}\ns_or_b64 s[24:25], s[24:25], vcc')
    def retry():
        if OPT['psl']: A(f's_sleep {OPT["psl"]}')
        gran_issue(A, v, nh)
    if inline:
        A('s_mov_b32 s3, 0')
        A.label(f'L_gl{n}')
        check()
        A(f's_cbranch_scc0 L_gd{n}')
        retry()
        A(f's_add_u32 s3, s3, 1\ns_cmp_lt_u32 s3, {SPIN_MAX}\ns_cbranch_scc1 L_gl{n}\ns_waitcnt vmcnt(0)')
    else:
        check(first)
        A(f's_cbranch_scc1 L_gs{n}')
        def slow():
            A.label(f'L_gs{n}'); A.fence()
            A('s_mov_b32 s3, 0')
            A.label(f'L_gl{n}')
            retry(); check()
            A(f's_cbranch_scc0 L_gd{n}\ns_add_u32 s3, s3, 1\ns_cmp_lt_u32 s3, {SPIN_MAX}\ns_cbranch_scc1 L_gl{n}\ns_branch L_gd{n}')
        OOL.append(slow)
    A.label(f'L_gd{n}')
    for r in range(8): A(f'v_mov_b32 v{dst+r}, v{v+GR[r % (3*OPT["ng"])]}')

def lds_add(A, off, va):
    A(f'v_mov_b32 v{va}, {TAG}\ns_mov_b64 exec, 1\nds_add_u32 v{va}, v{V1} offset:{off}\ns_mov_b64 exec, -1')
def lds_spin(A, off, cnt, va, vt, sleep=True):
    uid[0] += 1; n = uid[0]
    A(f'v_mov_b32 v{va}, {TAG}\ns_mov_b32 s3, {SPIN_MAX * 4}')
    A.label(f'L_sp{n}')
    if sleep: A('s_sleep 1')
    A(f's_sub_u32 s3, s3, 1\nds_read_b32 v{vt}, v{va} offset:{off}\ns_waitcnt lgkmcnt(0)\nv_cmp_gt_u32 vcc, {cnt}, v{vt}\ns_cselect_b64 vcc, 0, vcc\ns_cbranch_vccnz L_sp{n}')
def count_add(A, soff, off=0):
    A('s_mov_b64 exec, 1')
    A(f'buffer_atomic_add v{V1}, v{V0}, s[52:55], {soff} offen' + (f' offset:{off}' if off else ''))
    A('s_mov_b64 exec, -1')

def srd(A, d, lo, size):
    A(f's_mov_b32 s{d}, s{lo}\ns_mov_b32 s{d+1}, s{lo+1}\ns_mov_b32 s{d+2}, 0x{size:x}\ns_mov_b32 s{d+3}, 0x20000')
def flag(A, soff, tmp):
    A(f'v_mov_b32 v{tmp}, s60\nv_mov_b32 v{tmp+1}, s61\nv_mov_b32 v{tmp+2}, s60\nv_mov_b32 v{tmp+3}, s61\ns_waitcnt vmcnt(0)\ns_mov_b64 exec, 0xff')
    A(f'buffer_store_dwordx4 v[{tmp}:{tmp+3}], v8, s[52:55], {soff} offen sc1')
    A('s_mov_b64 exec, -1')
def stream(fn, *a):
    L = []
    fn(lambda t: L.extend(x for x in t.split('\n') if x.strip()), *a)
    return L
def tr_lane(A, d, rowsh, hish):
    A(f'v_bfe_u32 v{d}, v1, 2, 2\nv_lshl_add_u32 v{d}, v11, {hish}, v{d}\nv_lshlrev_b32 v{d}, {rowsh}, v{d}')
def mfma32(d, a, b, c): return f'v_mfma_f32_32x32x16_bf16 {vr(d,16)}, {vr(a,4)}, {vr(b,4)}, {vr(c,16) if c is not None else "0"}'

def common(A):
    for r in range(16):
        for hi in range(2):
            m = 0
            for c in range(32):
                if rowof(r, hi) <= c: m |= 1 << c
            A(f's_mov_b32 s{64+2*r+hi}, 0x{m:x}')
    A(f's_mov_b32 s62, 0x{f2u(LOG2E):x}\ns_mov_b32 s63, 0x{f2u(2.0**100):x}\ns_mov_b32 s28, 0xffff\ns_mov_b32 s29, 0xffff')
    A(f'v_mov_b32 v{ONES}, 0x3f803f80')
    if OPT['oz']: A(f'v_and_b32 v{V1}, 11, v1\nv_cmp_eq_u32 vcc, 0, v{V1}\nv_cndmask_b32 v{ONES}, 0, v{ONES}, vcc')
    A(f'v_mov_b32 v{ONES+1}, v{ONES}\nv_mov_b32 v{V1}, 0xffff')
    for r in range(0, 16, 2): A(f'v_mov_b64 v[{VRING+r}:{VRING+r+1}], v[{ONES}:{ONES+1}]')
    for m in range(8): A(f'v_cndmask_b32_e64 v{PMASK+m}, 0, v{V1}, s[{64+4*m}:{65+4*m}]')
    for m in range(8): A(f'v_cndmask_b32_e64 v{PMASK+m}, v{PMASK+m}, -1, s[{66+4*m}:{67+4*m}]')
    A('s_and_b32 s21, s41, 3\ns_lshr_b32 s22, s41, 2\ns_lshl1_add_u32 s20, s22, s38')
    if OPT['kd']:
        A(f's_lshl1_add_u32 s98, s21, s22\ns_lshl_b32 s98, s98, 12\ns_add_u32 s98, s98, {PHI}')
        A(f'v_and_b32 v{V1}, 17, v10\nv_cndmask_b32_e64 v{KVOFF}, v{V1}, v10, s[28:29]\nv_and_b32 v{V1}, 7, v{KVOFF}\nv_lshlrev_b32 v{KVS}, 2, v11\nv_xor_b32 v{V1}, v{V1}, v{KVS}')
        A(f'v_lshl_add_u32 v{KVOFF}, v{KVOFF}, 3, v{V1}\nv_lshl_add_u32 v{KVOFF}, v{KVOFF}, 4, s98')
        A(f'v_lshrrev_b32 v{KVS}, 3, v1\nv_xor_b32 v{KVS}, v{KVS}, v1\nv_lshlrev_b32 v{KVS}, 4, v{KVS}')
    else: A(f'v_and_b32 v{V1}, 1, v10\nv_add_u32 v{V1}, {AUX//128}, v{V1}\nv_cndmask_b32_e64 v{KVOFF}, v{V1}, v10, s[28:29]\nv_lshlrev_b32 v{KVOFF}, 7, v{KVOFF}\nv_lshl_add_u32 v{KVOFF}, v11, 6, v{KVOFF}')
    A(f's_lshl_b32 s24, s21, 10\ns_add_u32 s25, s24, {QX}\nv_add_u32 v{QRD}, s25, v8')
    A(f's_mul_i32 s25, s22, 12288\ns_add_u32 s24, s24, s25\ns_add_u32 s25, s24, {KL}\nv_add_u32 v{KRD}, s25, v8')
    A(f'v_and_b32 v{VRD}, 15, v1\nv_lshlrev_b32 v{VRD}, 4, v{VRD}\nv_lshl_add_u32 v{VRD}, v11, 8, v{VRD}\ns_add_u32 s25, s24, {VL}\nv_add_u32 v{VRD}, s25, v{VRD}')
    A(f'v_lshrrev_b32 v{WOL}, 3, v1\nv_and_b32 v{V0}, 7, v1\nv_bfe_u32 v{V1}, v1, 4, 1\nv_lshlrev_b32 v{V1}, 2, v{V1}\nv_xor_b32 v{V0}, v{V0}, v{V1}\nv_lshlrev_b32 v{V0}, 4, v{V0}\nv_lshl_add_u32 v{WOL}, v{WOL}, 10, v{V0}')
    A(f'v_mov_b32 v{V1}, 1\nv_mov_b32 v{V0}, 0\nv_mov_b64 v[52:53], 0\nv_mov_b64 v[54:55], 0')
    A(f's_lshl_b32 {S_T}, s39, 2\ns_add_u32 {S_T}, {S_T}, s21')
    A(f's_lshr_b32 s23, s37, 2\ns_lshl_b32 s23, s23, 7\nv_add_u32 v{WOL}, s23, v{WOL}\ns_and_b32 s24, s37, 3\ns_lshl_b32 s24, s24, 4\ns_add_u32 s24, s24, s21\ns_lshl_b32 {S_WO}, s24, 10')
    A(f's_lshl_b32 s24, s40, 1\ns_add_u32 s24, s24, s22\ns_mul_i32 {S_ACC}, s24, {ACCB}\ns_add_u32 {S_ACC}, {S_ACC}, {WS_ACC}')
    A(f's_lshl_b32 s24, s21, 1\ns_add_u32 s24, s24, s22\ns_lshl_b32 {S_FO}, s24, 15\ns_add_u32 {S_FO}, {S_FO}, {WS_O}\ns_lshl_b32 s24, s24, 7\ns_add_u32 {S_FC}, s24, {WS_F1 + 4096}')
    A(f's_lshl4_add_u32 s24, s38, s35\ns_lshl_b32 s24, s24, 10\ns_lshl_b32 s25, s39, {RBS}\ns_add_u32 s24, s24, s25\ns_add_u32 {S_OA}, s24, {S_FO}\ns_add_u32 {S_C3}, {S_FC}, s25')
    A(f's_lshl_b32 s24, s35, 15\ns_add_u32 s25, s25, s24\ns_and_b32 s24, s21, 2\ns_add_u32 s24, s24, s21\ns_add_u32 s24, s24, s24\ns_and_b32 s24, s24, 10\ns_lshl_b32 s24, s24, 11\ns_add_u32 s25, s25, s24')
    A(f's_and_b32 s24, s35, 1\ns_lshl_b32 s24, s24, 10\ns_add_u32 s25, s25, s24\ns_mul_i32 s24, s38, {TWIN}\ns_add_u32 s25, s25, s24\ns_add_u32 {S_QG}, s25, {WS_QG}')
    A('s_and_b32 s24, s39, 12\ns_xor_b32 s24, s24, 4\ns_and_b32 s25, s37, 3\ns_add_u32 s24, s24, s25\ns_lshr_b32 s22, s36, 2')
    A(f's_lshl_b32 {S_OUT}, s24, {RBS}\ns_add_u32 {S_FC}, {S_FC}, {S_OUT}\ns_add_u32 {S_FO}, {S_FO}, {S_OUT}\ns_mul_i32 s25, s22, {TWIN}\ns_add_u32 {S_FO}, {S_FO}, s25')
    A(f's_lshl_b32 s25, s22, 10\ns_add_u32 {S_FC}, {S_FC}, s25\ns_add_u32 {S_OUT}, {S_OUT}, s25\ns_lshl_b32 s25, s21, 16\ns_add_u32 {S_OUT}, {S_OUT}, s25\ns_add_u32 {S_OUT}, {S_OUT}, s23')

def place(A, x):
    if OPT['pol'] != 2: return
    A(f's_lshr_b32 s24, s61, 14\ns_and_b32 s61, s61, 0xffff\ns_cmp_le_u32 s24, s61\ns_cbranch_scc1 L_pl{x}\ns_add_u32 s52, s52, 8192\ns_addc_u32 s53, s53, 0\ns_sub_u32 {S_ACC}, {S_ACC}, 8192')
    if x == 'c': A('s_lshl_b32 s24, s38, 13\ns_sub_u32 s31, s31, s24')
    A.label(f'L_pl{x}')

ROLE = 's_add_u32 s24, s2, s60\ns_and_b32 s24, s24, 7\ns_cmp_lg_u32 s24, s99\n'
def wrong(A):
    A.label('L_wrong'); A.fence()
    A('s_mov_b32 s99, s24\ns_or_b32 s2, s2, 256\ns_setprio 0\ns_waitcnt vmcnt(0) lgkmcnt(0)\ns_barrier\ns_nop 15\ns_branch L_restart')

def wo_srd(A):
    A('s_cmp_lt_u32 s36, 4\ns_cselect_b32 s44, s10, s16\ns_cselect_b32 s45, s11, s17\ns_mov_b32 s46, 0x80000\ns_mov_b32 s47, 0x20000')

WD = [int(c) for c in str(OPT['wd']) if c.isdigit()]
W0 = [int(c) for c in str(OPT['w0']) if c.isdigit()]
NWO = 4 * (bool(WD) + bool(W0))
def wo_dma(A, j, g=1):
    cnt = 0; n = 16 // max(1, len(WD) + len(W0))
    for k, x in enumerate(WD if g else W0):
        if x != j: continue
        for i in range(n):
            A(f's_xor_b32 m0, {S_WO}, {4096 * (n * (k + (len(W0) if g else 0)) + i)}\ns_lshl_b32 s24, m0, 3')
            if 'w' not in OPT['ko']: A(f'buffer_load_dwordx4 v{WOL}, s[44:47], s24 offen lds'); cnt += 1
    return cnt

def halo_edge(A, x):
    A(f's_cmp_lt_u32 s39, 2\ns_cbranch_scc1 L_nb{x}')
    A.label(f'L_nb2{x}')
    def edge():
        A.label(f'L_nb{x}'); A.fence(); A.raw(';PAD')
        A('v_mov_b32 v48, 0\nv_mov_b32 v49, 0\nv_mov_b32 v50, 0\nv_mov_b32 v51, 0\nv_add_u32 v7, s27, v8')
        for i in range(4): A(f'ds_write_b128 v7, v[48:51] offset:{i*1024}')
        A(f's_cmp_eq_u32 s39, 1\ns_cbranch_scc1 L_nb2{x}')
        for i in range(4, 8): A(f'ds_write_b128 v7, v[48:51] offset:{i*1024}')
        A(f's_branch L_nb2{x}')
    OOL.append(edge)
def halo_loads(x): return [([48, 50, 0][nb] + i, f's{9+nb}', 128*i) for nb in range(3 if x == 'A' else 2) for i in range(2)][-OPT['hl']:]
def halo_addr(A):
    A(f'v_and_b32 v55, 1, v1\nv_lshlrev_b32 v55, 7, v55\ns_mov_b64 exec, 3\nv_add_u32 v55, s9, v55\ns_mov_b64 exec, 12\nv_add_u32 v55, s10, v55\ns_mov_b64 exec, 48\nv_add_u32 v55, s11, v55\ns_mov_b64 exec, -1')
def halo_issue(A, x):
    if x in OPT['sp']: sp_issue(A, halo_loads(x)); return
    if x == 'B': halo_addr(A)
    A(f's_mov_b64 exec, {63 if x == "A" else 15}')
    poll_issue(A, PD, 55, '0', 's60')
    A('s_mov_b64 exec, -1')
def halo_fetch(A, x, first=0):
    t = 's_xor_b64 s[48:49], s[48:49], s[60:61]\ns_xor_b64 s[50:51], s[50:51], s[60:61]\ns_or_b64 s[48:49], s[48:49], s[50:51]'
    if x == 'A': t += '\ns_xor_b64 s[0:1], s[0:1], s[60:61]\ns_or_b64 s[48:49], s[48:49], s[0:1]'
    if OPT['hl']: t = f's_cmp_lg_u32 s{halo_loads(x)[-1][0]}, s60'
    if x in OPT['sp']: sp_wait(A, halo_loads(x), t)
    else:
        A(f's_mov_b64 exec, {63 if x == "A" else 15}')
        if 'p' not in OPT['ko']: poll(A, PD, 55, '0', 's60', inline=True, first=first)
        A('s_mov_b64 exec, -1')
    halo_dma(A, x, x)
def halo_dma(A, x, u):
    stamp(A, 5)
    for nb in range(3 if x == 'A' else 2):
        if nb < 2: A(f's_cmp_lt_u32 s39, {2-nb}\ns_cbranch_scc1 L_sk{nb}{u}')
        A(f's_sub_u32 s25, s33, {(2-nb) << RBS}\ns_add_u32 m0, s27, {nb*4096}')
        for i in range(4 * ('h' not in OPT['ko'])): A(f'buffer_load_dwordx4 v8, s[52:55], s25 offen offset:{i*1024} sc1 lds')
        if nb < 2: A.label(f'L_sk{nb}{u}')
    stamp(A, 7)

def gen(A):
    name = NAME
    WSZ = WS_SIZE if not OPT['stamps'] else 0x2000000
    A.raw(f'.globl {name}\n.p2align 12\n.type {name},@function\n{name}:')
    stamp(A, 30)
    A('s_cmp_ge_u32 s2, 256\ns_cbranch_scc1 L_end')
    A('s_getreg_b32 s99, hwreg(HW_REG_XCC_ID, 0, 3)' if OPT['rot'] else 's_and_b32 s99, s2, 7')
    if OPT['mis']: A(f's_lshr_b32 s3, s2, {OPT["mis"]}\ns_add_u32 s99, s99, s3\ns_and_b32 s99, s99, 7')
    A.label('L_restart')
    A('s_load_dwordx16 s[4:19], s[0:1], 0\ns_load_dwordx4 s[20:23], s[0:1], 64')
    if OPT['pfc'] == 2:
        A('s_getpc_b64 s[24:25]')
        A.label('L_pc0')
        A(f's_and_b32 s3, s2, 0xf8\ns_lshl_b32 s3, s3, 4\nv_lshl_add_u32 v13, v0, 12, s3\nv_min_u32 v13, L_cold-L_pc0-4, v13\nv_cmp_gt_u32 vcc, 7, v0\ns_and_b64 exec, exec, vcc\ns_cbranch_scc0 L_pc1')
        A('global_load_dword v255, v13, s[24:25]')
        A.label('L_pc1')
        A('s_mov_b64 exec, -1')
    A('v_lshrrev_b32 v2, 6, v0\nv_and_b32 v1, 63, v0')
    A('s_lshl_b32 s36, s99, 2\ns_lshr_b32 s36, 0x76325410, s36\ns_and_b32 s36, s36, 7\ns_bfe_u32 s37, s2, 0x50003')
    A('v_readfirstlane_b32 s41, v2')
    A('s_and_b32 s38, s37, 1')
    A('s_and_b32 s39, s36, 3\ns_lshl_b32 s39, s39, 2\ns_bfe_u32 s42, s37, 0x20001\ns_add_u32 s39, s39, s42')
    A('s_lshl_b32 s35, s38, 2\ns_xor_b32 s35, s35, s36\ns_and_b32 s35, s35, 4\ns_lshr_b32 s42, s37, 3\ns_add_u32 s35, s35, s42')
    A('s_lshl_b32 s40, s35, 1\ns_add_u32 s40, s40, s38')
    A('v_lshlrev_b32 v8, 4, v1\nv_and_b32 v10, 31, v1\nv_lshrrev_b32 v11, 5, v1')
    A('s_cmp_lt_u32 s41, 4\ns_cbranch_scc1 L_cpre')
    A('s_mov_b32 s46, 0x200000\ns_mov_b32 s47, 0x20000\ns_mov_b32 s50, 0x180000\ns_mov_b32 s51, 0x20000')
    A('s_sub_u32 s43, s41, 4')
    A('v_lshrrev_b32 v3, 3, v1\nv_and_b32 v4, 7, v1\nv_lshrrev_b32 v5, 4, v1')
    if 'z' in OPT['ko']: A('v_mov_b32 v5, 0')
    A('v_xor_b32 v6, v4, v5\nv_lshlrev_b32 v6, 4, v6\nv_lshl_add_u32 v6, v3, 10, v6')
    A('s_lshl_b32 s24, s39, 17\ns_lshl_b32 s25, s43, 15\ns_add_u32 s24, s24, s25')
    A('v_add_u32 v16, s24, v6\nv_xor_b32 v17, 64, v16\nv_add_u32 v17, 8192, v17\nv_add_u32 v18, 16384, v16\nv_add_u32 v19, 16384, v17')
    A('v_and_b32 v5, 1, v5\nv_lshlrev_b32 v5, 2, v5\nv_xor_b32 v4, v4, v5\nv_mul_u32_u24 v3, 3072, v3\nv_lshl_add_u32 v3, v4, 4, v3')
    A('s_mul_i32 s24, s43, 49152\ns_lshl_b32 s25, s35, 7\ns_add_u32 s24, s24, s25')
    A('v_add_u32 v20, s24, v3\nv_xor_b32 v21, 32, v20\nv_add_u32 v21, 24576, v21')
    A(f's_lshl_b32 s30, s43, 12\ns_lshl_b32 s31, s43, 11')
    A(f's_add_u32 s26, s39, s35\ns_and_b32 s26, s26, {OPT["grp"]}\ns_lshl_b32 s26, s26, {OPT["gsh"]}')
    if OPT['lin']:
        c = [int(x) for x in OPT['lin'][1:]]
        T = sum((c[0]*(i >> 1 & 1) ^ c[1]*(i >> 2 & 1) ^ c[2]*(i >> 3 & 1) ^ c[3]*(i & 1)) << (2*i) for i in range(16))
        A(f's_lshl1_add_u32 s27, s36, s38\ns_lshl_b32 s27, s27, 1\ns_lshr_b32 s27, 0x{T:x}, s27\ns_and_b32 s27, s27, 3\ns_lshl_b32 s27, s27, 7\ns_xor_b32 s26, s26, s27')
        OPT['xa'] = -1; OPT['xm'] = 0
    if OPT['xa'] >= 0: A(f's_lshl_b32 s27, s38, {OPT["xa"]}\ns_xor_b32 s26, s26, s27')
    if OPT['xm']: A(f's_and_b32 s27, s36, {OPT["xm"]}\ns_lshl_b32 s27, s27, {OPT["xs"]}\ns_xor_b32 s26, s26, s27')
    if OPT['ot']:
        T = [sum(int(c) << (4*i) for i, c in enumerate(o)) for o in OPT['ot'].split('.')]
        assert all(sorted(o) == list('01234567') for o in OPT['ot'].split('.'))
        A(f's_add_u32 s24, s39, s35\ns_mov_b32 s34, 0x{T[0]:x}\ns_mov_b32 s25, 0x{T[2]:x}\ns_bitcmp0_b32 s24, 0\ns_cselect_b32 s34, s34, 0x{T[1]:x}\ns_cselect_b32 s25, s25, 0x{T[3]:x}\ns_bitcmp0_b32 s24, 1\ns_cselect_b32 s34, s34, s25')
    A('s_cmp_eq_u32 s38, 0')
    A('s_waitcnt lgkmcnt(0)')
    A('s_cselect_b32 s44, s12, s4\ns_cselect_b32 s45, s13, s5\ns_cselect_b32 s48, s14, s6\ns_cselect_b32 s49, s15, s7')
    stamp(A, 0); stamp(A, 60)
    ORD = [int(c) for c in str(OPT['order']).zfill(8)]
    vq = Q(A, 'vmcnt', 63)
    def wsoff(st):
        if OPT['ot']: A(f's_bfe_u32 s32, s34, 0x{0x30000 + 4*st:x}\ns_lshl_b32 s32, s32, 7\ns_xor_b32 s32, s26, s32\ns_mul_i32 s33, s32, 1536')
        else: A(f's_xor_b32 s32, s26, {st*128}\ns_mul_i32 s33, s32, 1536')
    LT = []
    nis = [0]; cur = [-1]
    def issue(upto):
        while nis[0] < min(upto, 80):
            n = nis[0]; nis[0] += 1
            s, i = divmod(n, 8)
            if OPT['po'] and n < OPT['pn']:
                PO = [int(c, 16) for c in OPT['po'][1:]]
                s, i = divmod(n // 16 * 16 + PO[n % 16], 8)
                if cur[0] != s and i: wsoff(ORD[s])
                cur[0] = s
            base = RING[s % 4]
            if s >= 8:
                if n == 64 and OPT['qr']:
                    assert ORD == list(range(8)) and not OPT['ot']
                    A('s_add_u32 s24, s39, s35\ns_and_b32 s24, s24, 2\ns_lshl_b32 s25, s24, 7\ns_xor_b32 s26, s26, s25\ns_lshl_b32 s25, s24, 13\ns_xor_b32 s31, s31, s25')
                if i % 2 == 0: wsoff(ORD[4*(s-8) + i//2])
                A(f's_xor_b32 m0, s31, {base + (i//2)*8192 + (i%2)*1024}')
                A(f'buffer_load_dwordx4 v{20+i%2}, s[48:51], s33 offen lds')
            elif i < 4:
                if i == 0: wsoff(ORD[s])
                A(f's_add_u32 m0, s30, {base + i*1024}')
                A(f'buffer_load_dwordx4 v{16+i}, s[44:47], s32 offen lds')
            else:
                seg = i // 2 - 1
                A(f's_add_u32 m0, s31, {base + 8192 + seg*7168 + (i%2)*1024}')
                A(f'buffer_load_dwordx4 v{20+i%2}, s[48:51], s33 offen offset:{seg*1024} lds')
            vq.push(('st', s))
            if n % 2 and n < 38: stamp(A, 61 + n//2)
            if n >= OPT['cst']:
                for _ in range(OPT['cn']):
                    if LT: A(LT.pop(0))
    issue(OPT['n0'])
    stamp(A, 1)
    srd(A, 52, 22, WSZ); srd(A, 56, 20, 0x100)
    if OPT['pol'] == 1: A('s_add_u32 s52, s52, 8192\ns_addc_u32 s53, s53, 0')
    A('s_branch L_load')
    A.label('L_cpre'); A.fence()
    A('s_lshr_b32 s42, s41, 1\ns_and_b32 s43, s41, 1')
    for r in range(0, 8, 2): A(f'v_mov_b64 v[{16+r}:{17+r}], 0')
    A(f's_lshl_b32 s24, s35, 1\ns_add_u32 s24, s24, s43\ns_lshl_b32 s34, s39, {RBS}')
    A('s_lshl_b32 s25, s42, 11\ns_lshl_b32 s32, s24, 14\ns_add_u32 s32, s32, s25\ns_add_u32 s32, s32, s34')
    A(f's_lshl_b32 s24, s24, 1\ns_add_u32 s24, s24, s42\ns_lshl_b32 s24, s24, 7\ns_add_u32 s34, s34, s24\ns_add_u32 s34, s34, {WS_F1}')
    A('s_waitcnt lgkmcnt(0)')
    srd(A, 52, 22, WSZ); srd(A, 56, 20, 0x100)
    if OPT['pol'] == 1: A('s_add_u32 s52, s52, 8192\ns_addc_u32 s53, s53, 0')
    A('s_cmp_lg_u32 s41, 0\ns_cbranch_scc1 L_d1')
    if OPT['pfc'] == 1:
        A('s_getpc_b64 s[24:25]')
        A.label('L_pc0')
        A(f's_add_u32 s24, s24, {name}-L_pc0\ns_addc_u32 s25, s25, -1')
        A(f's_lshl_b32 s30, s37, 7\nv_lshlrev_b32 v13, 12, v1\nv_add_u32 v13, s30, v13\nv_min_u32 v13, L_cold-{name}-4, v13\ns_mov_b64 exec, 0xff')
        A('global_load_dword v255, v13, s[24:25]')
        A('s_mov_b64 exec, -1')
    srd(A, 44, 8, 0x4000)
    A(f's_lshl_b32 s24, s35, 11\ns_mov_b32 m0, {WPH}')
    for i in range(2): A(f'buffer_load_dwordx4 v8, s[44:47], s24 offen offset:{i*1024} lds')
    A(f'v_mov_b32 v12, {TAG}\nv_lshl_add_u32 v12, v1, 2, v12\ns_mov_b32 exec_hi, 0\nds_write_b32 v12, v16\ns_mov_b64 exec, -1')
    A.label('L_d1'); A.fence()
    A('s_cmp_lg_u32 s41, 1\ns_cbranch_scc1 L_d2\ns_cmp_ge_u32 s2, 32\ns_cbranch_scc1 L_d2')
    A(f's_mul_i32 s24, s2, {ACCB}\ns_add_u32 s24, s24, {WS_ACC}')
    A('buffer_store_dwordx4 v[16:19], v8, s[52:55], s24 offen sc1\nbuffer_store_dwordx4 v[16:19], v8, s[52:55], s24 offen offset:1024 sc1')
    A(f's_add_u32 s24, s24, {AUX}\ns_lshr_b32 s25, s2, 1\ns_lshl_b32 s25, s25, {RBS}\ns_and_b32 s3, s2, 1\ns_lshl_b32 s3, s3, 13\ns_add_u32 s25, s25, s3\ns_add_u32 s25, s25, {WS_F1}\ns_add_u32 s3, s25, 4096')
    A('buffer_store_dwordx4 v[16:19], v8, s[52:55], s3 offen sc1\nbuffer_store_dwordx4 v[16:19], v8, s[52:55], s3 offen offset:1024 sc1')
    if OPT['fw']:
        for i in range(4): A(f'buffer_store_dwordx4 v[16:19], v8, s[52:55], s25 offen offset:{i*1024} sc1')
    A('s_mov_b64 exec, 0xff00')
    for r in range(4): A(f'v_mov_b32 v{20+r}, 1.0')
    A('s_mov_b64 exec, -1')
    A('buffer_store_dwordx4 v[20:23], v8, s[52:55], s24 offen sc1')
    A.label('L_d2'); A.fence()
    DYN = OPT['pol'] == 2
    if DYN:
        A(f's_cmp_lg_u32 s41, 2\ns_cbranch_scc1 L_d21\ns_sub_u32 s24, s2, {OPT["vb"]}\ns_cmp_ge_u32 s24, 32\ns_cbranch_scc1 L_d21')
        A(f's_and_b32 s24, s37, 2\ns_add_u32 s24, s24, s37\ns_add_u32 s24, s24, s24\ns_and_b32 s24, s24, 10\ns_lshl_b32 s24, s24, 11\ns_lshl_b32 s26, s36, 8\ns_add_u32 s26, s26, s24\ns_add_u32 s26, s26, {WS_PR}')
        A('s_buffer_load_dword s60, s[52:55], s26 glc\ns_buffer_load_dword s60, s[52:55], s26 offset:8192 glc')
        A.label('L_d21'); A.fence()
    A('s_cmp_lg_u32 s41, 3\ns_cbranch_scc1 L_d3\ns_cmp_lg_u32 s2, 0\ns_cbranch_scc1 L_d3')
    A(f's_mov_b32 s24, {WS_EP}\nbuffer_load_dword v{PD}, v16, s[52:55], s24 offen sc1')
    A.label('L_d3'); A.fence()
    wo_srd(A)
    if OPT['mt'] & 1: A('s_cmp_eq_u32 s38, 0\ns_cselect_b32 s48, s14, s6\ns_cselect_b32 s49, s15, s7\ns_mov_b32 s50, 0x180000\ns_mov_b32 s51, 0x20000')
    def touch(k):
        if not OPT['mt'] & k: return
        A(f's_cmp_lg_u32 s41, 0\ns_cbranch_scc1 L_mt{k}\ns_mov_b32 exec_hi, 0')
        if k == 1: A('s_mul_i32 s24, s39, 98304\ns_lshl_b32 s25, s35, 7\ns_add_u32 s24, s24, s25\nv_mul_u32_u24 v254, 3072, v1\nbuffer_load_dword v255, v254, s[48:51], s24 offen')
        else: A('s_and_b32 s24, s36, 3\ns_lshl_b32 s24, s24, 2\ns_and_b32 s25, s37, 3\ns_add_u32 s24, s24, s25\ns_lshl_b32 s24, s24, 15\ns_lshr_b32 s25, s37, 2\ns_lshl_b32 s25, s25, 7\ns_add_u32 s24, s24, s25\nv_lshlrev_b32 v254, 10, v1\nbuffer_load_dword v255, v254, s[44:47], s24 offen')
        A('s_mov_b64 exec, -1')
        A.label(f'L_mt{k}')
    if OPT['mq'] < 0: touch(1)
    if OPT['mo'] < 0: touch(2)
    stamp(A, 0)
    common(A)
    if OPT['tl']:
        A('s_cmp_lg_u32 s41, 0\ns_cbranch_scc1 L_tl')
        if OPT['tl'] & 1: A('v_lshlrev_b32 v12, 20, v1\ns_mov_b64 exec, 0xffffff\nbuffer_load_dword v255, v12, s[52:55], 0 offen offset:3968 sc1')
        A('s_mov_b64 exec, 1')
        if OPT['tl'] & 2: A(f'buffer_load_dword v255, v{WOL}, s[44:47], 0 offen')
        if OPT['tl'] & 4:
            srd(A, 48, 18, 0x400000)
            A(f'buffer_load_dword v255, v{V0}, s[48:51], {S_OUT} offen sc1')
        A('s_mov_b64 exec, -1')
        A.label('L_tl')
    A('v_lshrrev_b32 v4, 4, v1\nv_bfe_u32 v12, v1, 1, 3\nv_xor_b32 v12, v12, v4\nv_and_b32 v13, 15, v1\nv_lshl_add_u32 v12, v13, 3, v12')
    A('s_lshl_b32 s24, s42, 13\nv_lshl_add_u32 v2, v12, 4, s24\nv_xor_b32 v3, 64, v2')
    A('v_bfe_u32 v12, v1, 2, 2\nv_lshl_add_u32 v12, v4, 3, v12\nv_lshlrev_b32 v12, 7, v12')
    A('v_bfe_u32 v13, v1, 3, 1\nv_xor_b32 v13, s43, v13\nv_lshl_add_u32 v12, v13, 6, v12')
    A('v_bfe_u32 v13, v1, 4, 1\nv_lshl_add_u32 v12, v13, 5, v12\nv_and_b32 v14, 3, v1\nv_lshl_add_u32 v6, v14, 3, v12')
    A('v_bfrev_b32 v4, v14\nv_lshrrev_b32 v4, 27, v4\nv_add_u32 v4, v4, v12')
    tr_lane(A, 9, 5, 2)
    A(f'v_lshl_add_u32 v9, v14, 3, v9\ns_lshl_b32 s24, s43, 10\ns_add_u32 s24, s24, {WPH}\nv_add_u32 v9, s24, v9')
    A(f'v_mov_b32 v15, {TAG}')
    A('s_and_b32 s24, s38, s42\ns_lshl_b32 s25, s24, 5\nv_xor_b32 v4, s25, v4\nv_xor_b32 v6, s25, v6\ns_lshl_b32 s25, s24, 9\nv_xor_b32 v9, s25, v9\nv_xor_b32 v14, 512, v9')
    A('v_xor_b32 v5, 32, v4\nv_xor_b32 v7, 32, v6')
    for r in range(6): A(f'v_add_u32 v{160+r}, 0x10000, v{2+r}')
    A(f's_lshl_b32 s24, s39, {RBS}\ns_lshl_b32 s25, s40, 8\ns_add_u32 s11, s25, s24\ns_add_u32 s11, s11, {WS_F1}')
    A(f's_lshl_b32 s33, s40, 14\ns_add_u32 s33, s33, s24\ns_lshl_b32 s25, s43, 12\ns_add_u32 s33, s33, s25\ns_mul_i32 s25, s42, {TWIN}\ns_add_u32 s33, s33, s25\ns_mul_i32 s27, s41, 12288\ns_add_u32 s27, s27, {KL}')
    A(f's_min_u32 s24, s39, 2\ns_lshl_b32 s24, s24, {RBS}\ns_sub_u32 s9, s11, s24\ns_min_u32 s24, s24, {1 << RBS}\ns_sub_u32 s10, s11, s24')
    A('s_cmp_eq_u32 s38, 1\ns_cbranch_scc1 L_cpA')
    A('v_and_b32 v12, 15, v1\nv_lshlrev_b32 v12, 4, v12\nv_lshl_add_u32 v12, v11, 8, v12\nv_lshl_add_u32 v52, v13, 12, v12')
    A(f's_lshl_b32 s25, s42, 11\nv_mul_u32_u24 v13, 12288, v13\nv_add_u32 v12, v12, v13\ns_add_u32 s24, s25, {VL + 8192}\nv_add_u32 v53, s24, v12')
    A(f's_add_u32 s24, s25, {KL + 8192}\nv_add_u32 v54, s24, v8\ns_add_u32 s30, s32, 4096\ns_add_u32 s31, s32, {TWIN}')
    A('s_branch L_cpd')
    A.label('L_cpA'); A.fence()
    for r in range(0, 32, 2): A(f'v_mov_b64 v[{168+r}:{169+r}], v[{ONES}:{ONES+1}]')
    A(f's_mul_i32 s30, s41, {PHI_WAVE}\ns_add_u32 s30, s30, {PHI}')
    A('v_and_b32 v12, 1, v1\nv_lshlrev_b32 v12, 4, v12\nv_mov_b32 v13, 0x3f80\nv_lshlrev_b32 v13, v12, v13')
    A('v_lshlrev_b32 v12, 4, v11\nv_sub_u32 v12, v10, v12\nv_lshrrev_b32 v12, 1, v12')
    for r in range(8): A(f'v_cmp_eq_u32 vcc, {r}, v12\nv_cndmask_b32 v{SEL+r}, 0, v13, vcc')
    A('v_lshlrev_b32 v54, 2, v10\nv_lshl_add_u32 v54, v11, 9, v54')
    A(f'v_add_u32 v52, s30, v8\ns_xor_b32 s24, s41, 2\ns_mul_i32 s25, s24, {PHI_WAVE}\ns_add_u32 s25, s25, {PHI}\nv_add_u32 v53, s25, v8')
    A('v_and_b32 v12, 31, v1\nv_lshl_add_u32 v12, v12, 1, v11\nv_lshl_add_u32 v251, v12, 3, s30\nv_and_b32 v12, 15, v1\nv_lshl_add_u32 v12, v11, 4, v12\nv_lshl_add_u32 v55, v12, 4, s30')
    A(f's_lshl_b32 s24, s35, 2\ns_lshl_b32 s25, s43, 1\ns_add_u32 s24, s24, s25\ns_add_u32 s24, s24, s42\ns_xor_b32 s24, s24, 1\ns_mul_i32 s31, s24, {ACCB}\ns_add_u32 s31, s31, {WS_ACC}')
    A.label('L_cpd'); A.fence()
    def padwalk(k):
        if not OPT['pads']: return
        A('s_mov_b64 exec, 0')
        for w in range(3): A(f's_cmp_eq_u32 s41, {w}\ns_cbranch_scc1 L_chain{4*k+w}')
        A(f's_branch L_chain{4*k+3}')
        A.label(f'L_padret{k}')
        A('s_mov_b64 exec, -1')
    def duties():
        A('s_cmp_lt_u32 s2, 32\ns_cbranch_scc1 L_d4')
        A.label('L_d5')
        def f():
            A.label('L_d4'); A.fence(); A.raw(';PAD')
            A('s_mov_b64 exec, 1\ns_cmp_lg_u32 s41, 1\ns_cbranch_scc1 L_d6')
            A(f's_waitcnt vmcnt(0)\nbuffer_atomic_add v{V1}, v{V0}, s[56:59], 0 offen offset:4')
            A.label('L_d6')
            A('s_cmp_lg_u32 s41, 3\ns_cbranch_scc1 L_d7\ns_cmp_lg_u32 s2, 0\ns_cbranch_scc1 L_d7')
            A(f's_waitcnt vmcnt(0)\nv_add_u32 v{PD}, 8, v{PD}\nv_and_b32 v{PD}, -8, v{PD}\nv_max_u32 v{PD}, 8, v{PD}\nv_or_b32 v{PD}, s99, v{PD}\ns_mov_b32 s24, {WS_EP}')
            A(f'buffer_store_dword v{PD}, v{V0}, s[56:59], 0 offen sc1')
            A(f'buffer_store_dword v{PD}, v{V0}, s[52:55], s24 offen sc1')
            A.label('L_d7')
            A('s_mov_b64 exec, -1\ns_branch L_d5')
        OOL.insert(0, f)
    def clear():
        if not OPT['ua']: return
        A(f'v_mov_b64 v[56:57], -1\nv_mov_b64 v[58:59], -1\ns_add_u32 s24, {S_OA}, 0x4000\ns_add_u32 s25, {S_OA}, 0x200000\ns_add_u32 s3, {S_OA}, 0x204000')
        for so in (S_OA, 's24', 's25', 's3'): A(f'buffer_store_dwordx4 v[56:59], v8, s[52:55], {so} offen sc1')
    if DYN:
        A(f's_cmp_lg_u32 s41, 2\ns_cbranch_scc1 L_d8\ns_sub_u32 s24, s2, {OPT["vb"]}\ns_cmp_ge_u32 s24, 32\ns_cbranch_scc1 L_d8\ns_mov_b64 s[24:25], -1\ns_waitcnt lgkmcnt(0)')
        stamp(A, 27)
        A('s_memtime s[96:97]')
        for r in range(2 * OPT['nrep']):
            a, b = (96, 22) if r % 2 == 0 else (22, 96)
            A(f's_waitcnt lgkmcnt(0)\ns_buffer_load_dword s60, s[52:55], s26 offset:{8192 * (r % 2)} glc\ns_waitcnt lgkmcnt(0)\ns_memtime s[{b}:{b+1}]\ns_waitcnt lgkmcnt(0)')
            A(f's_sub_u32 s3, s{b}, s{a}\ns_min_u32 s{24 + r % 2}, s{24 + r % 2}, s3')
        A('s_cmp_gt_u32 s24, s25\ns_cselect_b32 s3, 2, 0\ns_xor_b32 s3, s3, s36\ns_and_b32 s3, s3, 2\ns_lshl_b32 s3, s3, 15\ns_add_u32 s3, s3, 1')
        A(f'v_mov_b32 v{PD}, s3\ns_mov_b64 exec, 1\nbuffer_atomic_add v{PD}, v{V0}, s[56:59], 0 offen offset:4\ns_mov_b64 exec, -1')
        stamp(A, 28)
        A.label('L_d8'); A.fence()
    padwalk(0)
    if OPT['pw2'] < 0: padwalk(1)
    if OPT['dpos'] < 0: duties()
    A('s_branch L_cons')
    A.label('L_load'); A.fence()
    if OPT['sprio']: A(f's_setprio {OPT["sprio"]}')
    for r in (52, 54, 242, 244, 246, 248): A(f'v_mov_b64 v[{r}:{r+1}], 0')
    A(f'v_bfe_u32 v12, v1, 1, 3\nv_xor_b32 v12, v12, v11\nv_lshlrev_b32 v12, 4, v12')
    A('v_lshl_add_u32 v13, v10, 7, s30')
    for ks in range(4): A(f'v_xor_b32 v14, {ks*32}, v12\nv_add_u32 v{2+ks}, v13, v14')
    for ks in range(4): A(f'v_add_u32 v{12+ks}, 0x10000, v{2+ks}')
    def later(E):
        common(E)
        tr_lane(E, 6, 7, 3)
        E('v_bfe_u32 v7, v1, 3, 1\nv_xor_b32 v7, s38, v7\nv_lshl_add_u32 v6, v7, 6, v6')
        E('v_bfe_u32 v7, v1, 4, 1\nv_xor_b32 v7, v7, v11\nv_lshl_add_u32 v6, v7, 5, v6\nv_and_b32 v7, 3, v1\nv_lshl_add_u32 v7, v7, 3, v6\nv_xor_b32 v6, 64, v7')
        E(f's_mul_i32 s9, s38, {2*TWIN}\ns_sub_u32 s9, {TWIN}, s9\ns_add_u32 s9, s9, {S_QG}')
    LT.extend(stream(later))
    LA = [int(c, 36) for c in str(OPT['la'])]
    XF = 64
    for s in range(8):
        assert LA[s] <= 16
        issue(8*s + 8 + LA[s])
        vq.wait(('st', s))
        A('s_waitcnt lgkmcnt(0)\ns_barrier')
        stamp(A, 32 + s)
        for ks in range(4):
            A(f'ds_read_b128 {vr(XF + 16*s + 4*ks, 4)}, v{(2 if RING[s % 4] < 65536 else 12) + ks} offset:{RING[s % 4] & 65535}')
        if s == OPT['tagl']: A('s_buffer_load_dwordx2 s[60:61], s[56:59], 0')
        if s == 6:
            assert not LT and OPT['tagl'] < 6
            TST = f's_and_b32 s24, s61, 0xffff\ns_cmp_lg_u32 s60, 0\ns_cselect_b32 s24, s24, 0\ns_cmp_lt_u32 s24, {64 if DYN else 32}'
            A(TST + '\ns_cbranch_scc1 L_tgw')
            A.label('L_tgd')
            A(f'v_mov_b32 v22, {TAG}\nv_mov_b32 v24, s60\nv_mov_b32 v25, s61\nds_write_b64 v22, v[24:25]')
            place(A, 'l')
            def tgw():
                A.label('L_tgw'); A.fence()
                A(f's_mov_b32 s3, {SPIN_MAX}')
                A.label('L_tg')
                if OPT['dg']: A(f's_mov_b64 exec, 1\nbuffer_atomic_add v{V1}, v{V0}, s[56:59], 0 offen offset:8\ns_mov_b64 exec, -1')
                A(f's_sleep 1\nbuffer_load_dwordx2 v[24:25], v{V0}, s[56:59], 0 offen sc1\ns_waitcnt vmcnt(0)\nv_readfirstlane_b32 s60, v24\nv_readfirstlane_b32 s61, v25')
                A(TST + '\ns_cselect_b32 s3, s3, 0\ns_sub_u32 s3, s3, 1\ns_cbranch_scc0 L_tg\ns_branch L_tgd')
            OOL.append(tgw)
    if OPT['e0w'] == 0:
        issue(OPT['e0n'])
        A(ROLE + 's_cbranch_scc1 L_wrong\ns_waitcnt lgkmcnt(0)\ns_barrier')
    issue(80)
    if OPT['sprio'] and OPT['spo']: A('s_setprio 0')
    wo_srd(A)
    def awtouch():
        A('s_lshr_b32 s24, s37, 1\ns_lshl_b32 s24, s24, 2\ns_add_u32 s24, s24, s43\ns_xor_b32 s25, s38, 1\ns_lshl_b32 s25, s25, 6\ns_add_u32 s24, s24, s25\ns_lshl_b32 s24, s24, 13\nv_lshl_add_u32 v28, v1, 7, s24')
        A('buffer_load_dword v255, v28, s[44:47], 0 offen'); vq.push('aw')
    if OPT['aw'] == 1: awtouch()
    A(f's_cmp_eq_u32 s38, 0\ns_cselect_b32 s27, 0x{f2u(0.25*LOG2E):x}, {"s62" if OPT["fq"] else "1.0"}')
    vq.wait(('st', 7 + max(1, OPT['e0w'])))
    if OPT['e0w']: A('s_waitcnt lgkmcnt(0)\ns_barrier')
    else:
        lds_add(A, C_WQ, 22)
        lds_spin(A, C_WQ, 4, 22, 23, sleep=bool(OPT['wqs']))
    stamp(A, 40)
    stamp(A, 42); stamp(A, 2)
    if OPT['sprio']: A('s_setprio 0')
    if OPT['lprio']:
        if not OPT['aprio']: A('s_cmp_eq_u32 s38, 1\ns_cbranch_scc1 L_noprio')
        A(f's_setprio {OPT["lprio"]}')
        A.label('L_noprio')
    lq = Q(A, 'lgkmcnt', 15)
    NR = 6; WF = 192; QD = OPT['qd']
    def qread(m):
        n = m % 32; f = WF + 4 * (m % NR)
        for rd in range(2):
            A(f'ds_read_b64_tr_b16 v[{f+2*rd}:{f+2*rd+1}], v{6 + m//32} offset:{n*2048 + rd*512}'); lq.push(('q', m))
    for m in range(QD): qread(m)
    ep = []
    for h in range(3):
        rr = range(3*h, min(3*h + 3, 8))
        ep += [f'v_mul_f32 v{32+2*r+e}, s27, v{32+2*r+e}' for r in rr for e in range(2)] + [f'v_cvt_pk_bf16_f32 v{16+GR[r]}, v{32+2*r}, v{33+2*r}' for r in rr]
        if h < OPT['ng'] and 'Q' not in OPT['ko']: ep += [f'buffer_store_dwordx4 {vr(16+4*h,4)}, v8, s[52:55], s9 offen offset:{h*1024} sc1']
    for m in range(64):
        lq.wait(('q', m))
        acc = 32 + 16 * (m // 32)
        if 'c' in OPT['ko'] and m % 32: A('s_nop 7')
        else: A(mfma32(acc, WF + 4*(m % NR), XF + 4*(m % 32), acc if m % 32 else None))
        if m == 16 - QD - 4 and OPT['e0w'] < 2:
            vq.wait(('st', 9))
            lds_add(A, C_WQ2, 22); lq.push('cnt')
        if m + QD == 16 and OPT['e0w'] < 2:
            lds_spin(A, C_WQ2, 4, 22, 23, sleep=False); lq.q = []
            stamp(A, 41); stamp(A, 22)
        if m + QD < 64: qread(m + QD)
        if m >= 32:
            for _ in range(OPT['epn']):
                if ep: A(ep.pop(0))
        if m == OPT['aw'] and m > 1: awtouch()
        if m == 31: stamp(A, 23)
        if m == 33: stamp(A, 24)
        if m == 20:
            for r in (19, 23, 26, 27): A(f'v_mov_b32 v{r}, s60')
        if m == 44:
            tr_lane(A, 15, 5, 2)
            A(f'v_and_b32 v14, 3, v1\nv_lshl_add_u32 v15, v14, 3, v15\ns_lshl_b32 s24, s38, 10\ns_add_u32 s24, s24, {WPH}\nv_add_u32 v15, s24, v15')
        if m == 46:
            for hs in range(2):
                for rd in range(2): A(f'ds_read_b64_tr_b16 v[{16+4*hs+2*rd}:{17+4*hs+2*rd}], v15 offset:{hs*512 + rd*256}'); lq.push('wphi')
        if m == OPT['qpoll'] or m == OPT['bq']:
            if OPT['qpoll'] != OPT['bq']: A(f's_cmp_eq_u32 s38, {0 if m == OPT["qpoll"] else 1}\ns_cbranch_scc1 L_noqp{m}')
            gran_issue(A, 32, 2)
            A.label(f'L_noqp{m}')
    stamp(A, 4)
    if OPT['lprio']: A('s_setprio 0')
    A(f's_lshl_b32 s24, s43, 10\nv_add_u32 v15, s24, v{QRD}')
    if not OPT['fq']: A('s_cmp_eq_u32 s38, 1\ns_cbranch_scc1 L_qa')
    for r in range(16): A(f'v_mul_f32 v{48+r}, s27, v{48+r}')
    if OPT['fq']: A('s_cmp_eq_u32 s38, 1\ns_cbranch_scc1 L_qa')
    for r in range(8): A(f'v_cvt_pk_bf16_f32 v{24+r}, v{48+2*r}, v{49+2*r}')
    A(f'ds_write_b128 v{QRD}, v[24:27]')
    if OPT['bq'] == 64: gran_issue(A, 32, 2)
    A('s_waitcnt lgkmcnt(0)\ns_barrier')
    if OPT['bq'] == 65: gran_issue(A, 32, 2)
    if OPT['bt']:
        A('s_bfe_u32 s24, s37, 0x10001\ns_lshl_b32 s24, s24, 2\ns_add_u32 s24, s24, s43\ns_lshl_b32 s24, s24, 16\ns_lshr_b32 s25, s37, 2\ns_lshl_b32 s25, s25, 7\ns_add_u32 s24, s24, s25\nv_lshlrev_b32 v14, 10, v1')
        A('buffer_load_dword v255, v14, s[44:47], s24 offen')
    if OPT['wb9']:
        stamp(A, 8)
        gran_wait(A, 32, 2, 104, False, 0)
        if OPT['bp']: A('s_setprio 1')
        A('s_branch L_qb')
    A.label('L_wo'); A.fence()
    if not OPT['wb9']: stamp(A, 8)
    if OPT['bp']: A('s_setprio 0')
    nwo = wo_dma(A, 8) + OPT['bt']
    if OPT['wb9']:
        stamp(A, 26)
        A('s_branch L_att')
    else:
        A('s_cmp_eq_u32 s38, 1\ns_cbranch_scc1 L_att')
        gran_wait(A, 32, 2, 104, False, nwo)
        stamp(A, 7)
        A('s_branch L_qb')
    A.label('L_qa'); A.fence()
    if not OPT['fq']: A('s_nop 8')
    for r in range(8): A(f'v_cvt_pk_bf16_f32 v{104+r}, v{48+2*r}, v{49+2*r}')
    A.label('L_qb'); A.fence(); A('s_nop 1')
    for hs in range(2): A(mfma32(64+16*hs, 16+4*hs, 104+4*hs, None))
    def phiq(E, hs):
        p = 64 + 16 * hs
        if OPT['fq']:
            for r in range(8): E(f'v_exp_f32_e64 v{p+8+r}, -v{p+8+r}\nv_exp_f32 v{p+r}, v{p+r}')
        else: dual_exp(E, p, p + 8, 96 + 2*hs)
        for m in range(8): E(f'v_cvt_pk_bf16_f32 v{(104 if hs == 0 else 48)+m}, v{p+2*m}, v{p+2*m+1}')
    if OPT['fq']:
        A('v_max3_f32 v96, |v64|, |v65|, |v66|\nv_max3_f32 v96, v96, |v67|, |v68|\nv_max3_f32 v96, v96, |v69|, |v70|')
        A('v_max3_f32 v96, v96, |v71|, |v80|\nv_max3_f32 v97, |v81|, |v82|, |v83|\nv_max3_f32 v96, v96, |v84|, |v85|\nv_max3_f32 v97, v97, |v86|, |v87|')
        A(f'v_max_f32 v96, v96, v97\nv_cmp_nge_f32 vcc, 0x{f2u(float(OPT["fq"])):x}, v96\ns_cbranch_vccnz L_qx')
        A.label('L_qx2')
        def qx():
            A.label('L_qx'); A.fence()
            for hs in range(2):
                p, t = 64 + 16*hs, 96
                A(f'v_max3_f32 v{t}, v{p}, v{p+1}, v{p+2}\nv_max3_f32 v{t+1}, -v{p}, -v{p+1}, -v{p+2}')
                A(f'v_max3_f32 v{t}, v{t}, v{p+3}, v{p+4}\nv_max3_f32 v{t+1}, v{t+1}, -v{p+3}, -v{p+4}')
                A(f'v_max3_f32 v{t}, v{t}, v{p+5}, v{p+6}\nv_max3_f32 v{t+1}, v{t+1}, -v{p+5}, -v{p+6}')
                A(f'v_max_f32_e64 v{t}, v{t}, v{p+7}\nv_max_f32_e64 v{t+1}, v{t+1}, -v{p+7}')
                A(f'v_permlane32_swap_b32 v{t}, v{t+1}\nv_max_f32 v{t}, v{t}, v{t+1}\nv_mov_b32 v{t+1}, v{t}\nv_permlane32_swap_b32 v{t}, v{t+1}')
                for r in range(8): A(f'v_sub_f32 v{p+r}, v{p+r}, v{t}\nv_add_f32 v{p+8+r}, v{p+8+r}, v{t+1}')
            A('s_branch L_qx2')
        COLD.append(qx)
    for a, b in zip(stream(phiq, 0), stream(phiq, 1)): A(a); A(b)
    A(f'ds_write_b128 v15, v[104:107] offset:{PQX-QX}\nds_write_b128 v15, v[108:111] offset:{PQX-QX+1024}')
    lds_add(A, C_PQ, 14)
    stamp(A, 6)
    A('s_cmp_eq_u32 s38, 0\ns_cbranch_scc1 ' + ('L_wo' if OPT['wb9'] else 'L_att'))
    gran_wait(A, 32, 2, 24, True)
    A(f'ds_write_b128 v{QRD}, v[24:27]')
    stamp(A, 7)
    A('s_waitcnt lgkmcnt(0)\ns_barrier')
    if OPT['wb9'] or OPT['wA'] < 8: stamp(A, 8)
    A('s_branch L_wo' if OPT['wA'] == 8 else 's_branch L_att')
    A.label('L_cons'); A.fence(); A.raw(';PAD')
    stamp(A, 21)
    KA, VA = [96, 112], [128, 144]
    FS = [16, 64]
    lq = Q(A, 'lgkmcnt', 12)
    def reads(n):
        s, ks = divmod(n, 2); f = FS[n % 2]
        ab = 2 if RING[s % 4] < 65536 else 160
        so = RING[s % 4] & 65535
        def rx(u): return [(f'ds_read_b128 {vr(f+4*u,4)}, v{ab+ks} offset:{so + u*2048}', (n, 'x', u))]
        def rw(c): return [(f'ds_read_b64_tr_b16 v[{f+16+4*c+2*rd}:{f+17+4*c+2*rd}], v{ab+2+c} offset:{so + 16384 + (c//2)*8192 + ks*4096 + rd*512}', (n, 'w', c)) for rd in range(2)]
        return rx(0) + rw(0) + rx(1) + rw(1) + rx(2) + rx(3) + rw(2) + rw(3)
    def mfma16(d, a, b, c): return f'v_mfma_f32_16x16x32_bf16 {vr(d,4)}, {vr(a,4)}, {vr(b,4)}, {vr(c,4) if c is not None else "0"}'
    def mk(n, u, hs):
        d = KA[u//2] + 8*hs + 4*(u % 2)
        return mfma16(d, FS[n % 2] + 16 + 4*hs, FS[n % 2] + 4*u, d if n else None)
    def mv1(n, u, hs):
        d = VA[u//2] + 8*(u % 2) + 4*hs
        return mfma16(d, FS[n % 2] + 4*u, FS[n % 2] + 24 + 4*hs, d if n else None)
    def mv(n, u): return mv1(n, u, 0) + '\n' + mv1(n, u, 1)
    KO = [(0, 0), (1, 0), (1, 1), (0, 1), (2, 1), (2, 0), (3, 0), (3, 1)]
    A('s_waitcnt lgkmcnt(0)\ns_barrier')
    stamp(A, 1)
    for t, tag in reads(0): A(t); lq.push(tag)
    for n in range(14):
        nxt = reads(n + 1)
        newstage = (n % 2 == 1)
        for mi in range(16):
            seg = mi // 8; u, hs = KO[mi % 8] if not seg else KO[7 - mi % 8]
            if OPT['mo16']: u, hs = divmod(mi % 8, 2)
            if newstage and mi == OPT['bp16']: lq.all()
            elif n and mi == 0: lq.wait((n, 'x', 3) if OPT['rodd'] == 1 else (n, 'w', 3))
            else: lq.wait((n, 'x', u), (n, 'w', 2*seg + hs))
            A(mv1(n, u, hs) if seg else mk(n, u, hs))
            if mi == 0 and 2*n == OPT['pw2']: padwalk(1)
            if mi == 0 and 2*n == OPT['dpos']: duties()
            if mi == 12 and n == OPT['mq']: touch(1)
            if mi == 12 and n == OPT['mo']: touch(2)
            if newstage and mi == OPT['bp16']: A('s_barrier')
            for _ in range(OPT['rodd' if newstage else 're']):
                if nxt and (not newstage or mi >= OPT['bp16']):
                    t, tag = nxt.pop(0); A(t); lq.push(tag)
        assert not nxt
        if n == 10: A('s_waitcnt vmcnt(0)')
        if n == 11:
            for hs in range(2):
                for rd in range(2): A(f'ds_read_b64_tr_b16 v[{56+4*hs+2*rd}:{57+4*hs+2*rd}], v{14 if hs else 9} offset:{rd*256}'); lq.push('wphi')
        if n == 13:
            A('s_not_b64 exec, s[28:29]\nv_mov_b64 v[56:57], 0\nv_mov_b64 v[58:59], 0\ns_mov_b64 exec, s[28:29]\nv_mov_b64 v[60:61], 0\nv_mov_b64 v[62:63], 0\ns_mov_b64 exec, -1')
            A('ds_read_b64 v[12:13], v15'); lq.push('tag')
    if OPT['cprio']: A('s_setprio 2')
    nxt = reads(15)
    E0P = 2 * OPT['e0pos']
    assert 10 < E0P < 16
    for g in range(16):
        n = 14 + g // 8; u, hs = KO[g % 8]
        if g == E0P: lq.all()
        elif g == 0: lq.wait((n, 'x', 3) if OPT['rodd'] == 1 else (n, 'w', 3))
        else: lq.wait((n, 'x', u), (n, 'w', hs))
        A(mk(n, u, hs))
        if g == E0P: A(ROLE + 's_cbranch_scc1 L_wrong\ns_barrier')
        for t, tag in nxt[OPT['rt']*g:OPT['rt']*(g+1)]: A(t); lq.push(tag)
        if g == 10: A('v_readfirstlane_b32 s60, v12\nv_readfirstlane_b32 s61, v13')
        if g == 15: place(A, 'c'); A('s_mov_b32 s61, s60')
    stamp(A, 2)
    A('s_cmp_eq_u32 s38, 1\ns_cbranch_scc1 L_epA')
    hist = list(A.hist)
    def weave(mf, fill, per):
        fill = list(fill)
        for m in mf:
            A(m)
            for _ in range(per):
                if fill: A(fill.pop(0))
        for f in fill: A(f)
    def cv(d, a): return [f'v_cvt_pk_bf16_f32 v{d+m}, v{a+2*m}, v{a+2*m+1}' for m in range(4)]
    def sw(d, *ks): return [f'v_permlane{k}_swap_b32 v{d+m}, v{d+2+m}' for k in ks for m in range(2)]
    def two(d, a, *ks): return cv(d, a) + cv(d+4, a+8) + [x for k in ks for e in range(2) for x in sw(d+4*e, k)]
    ckv = [x for tt in range(2) for x in two(160+8*tt, KA[tt], 16)]
    sk = [f'buffer_store_dwordx4 {vr(160+8*tt+4*e,4)}, v8, s[52:55], {"s30" if e else "s32"} offen offset:{tt*1024} sc1' for tt in range(2) for e in range(2)]
    cvv = [two(176+8*tt, VA[tt], 16, 32) for tt in range(2)]
    sv = [f'buffer_store_dwordx4 {vr(176+8*tt+4*e,4)}, v52, s[52:55], s31 offen offset:{tt*1024+e*512} sc1' for tt in range(2) for e in range(2)]
    VO = [mv1(n, u, hs) for tt in range(2) for n in (14, 15) for u in (2*tt, 2*tt+1) for hs in range(2)]
    A(VO[0]); A(VO[1])
    if OPT['bk']:
        ckv = ckv[:12] + sk[:2] + ckv[12:] + sk[2:]; sk = []
    weave(VO[2:], ckv + cvv[0], 2)
    if OPT['cprio']: A('s_setprio 0')
    if OPT['e0pos'] >= 8: A('s_barrier')
    if OPT['bw']:
        for x in cvv[1]: A(x)
        cvv[1] = []
        lds_spin(A, C_WQ, 4, 2, 3)
    for x in sk + sv[:2] + cvv[1] + sv[2:]:
        if 's' not in OPT['ko'] or not x.startswith('buffer'): A(x)
    stamp(A, 3)
    flag(A, 's34', 2)
    stamp(A, 4)
    halo_edge(A, 'B')
    A('s_cmp_eq_u32 s43, 1\ns_cbranch_scc1 L_epB1')
    for tt in range(2):
        for e in range(2):
            A(f'ds_write_b128 v54, {vr(160+8*tt+4*e,4)} offset:{e*12288 + tt*1024}')
            A(f'ds_write_b128 v53, {vr(176+8*tt+4*e,4)} offset:{tt*1024 + e*512}')
    A.label('L_epB1')
    A('s_cmp_eq_u32 s39, 0\ns_cbranch_scc1 L_epB2')
    halo_issue(A, 'B'); halo_fetch(A, 'B')
    A.label('L_epB2')
    A('s_waitcnt vmcnt(0) lgkmcnt(0)\ns_branch L_e1')
    A.label('L_epA'); A.hist = hist; A.raw(';PAD')
    KPK = {0: 160, 1: 208}
    VM = [168, 184]
    EM = {(0, 0): 16, (1, 0): 24, (0, 1): 32, (1, 1): 40}
    TM = {(0, 0): 2, (1, 0): 4, (0, 1): 12, (1, 1): 14}
    PT = {(0, 0): 64, (1, 0): 80, (0, 1): 80, (1, 1): 16}
    PP = {(0, 0): 64, (1, 0): 72, (0, 1): 80, (1, 1): 16}
    def phik(E, tt, hs, fast):
        p = KA[tt] + 8*hs; em = EM[(tt, hs)]; t = TM[(tt, hs)]; d = PT[(tt, hs)]
        if fast:
            for r in range(8): E(f'v_mul_f32 v{p+r}, s62, v{p+r}')
            for r in range(8): E(f'v_exp_f32_e64 v{em+r}, -v{p+r}\nv_exp_f32 v{p+r}, v{p+r}')
        else: dual_exp(E, p, em, t)
        E(f'v_add_f32 v{t}, v{p}, v{p+1}\nv_add_f32 v{t+1}, v{em}, v{em+1}')
        for r in range(2, 8): E(f'v_add_f32 v{t}, v{t}, v{p+r}\nv_add_f32 v{t+1}, v{t+1}, v{em+r}')
        E(f'v_permlane32_swap_b32 v{t}, v{t+1}\nv_add_f32 v{t}, v{t}, v{t+1}')
        if fast: E(f'v_max_f32 v6, v6, v{t}')
        E(f'v_rcp_f32 v{t}, v{t}\nv_mov_b32 v{t+1}, v{t}\nv_permlane32_swap_b32 v{t}, v{t+1}')
        for r in range(8): E(f'v_mul_f32 v{p+r}, v{p+r}, v{t}')
        for x in cv(p, p): E(x)
        for r in range(8):
            E(f'v_mul_f32 v{em+r}, v{em+r}, v{t+1}')
            if r == 1: E(mfma32(d, p, SEL, None))
        for x in cv(em, em): E(x)
    def phik2(hs): return [x for tt in range(2) for x in cv(PP[(tt, hs)], PT[(tt, hs)]) + cv(PP[(tt, hs)] + 4, PT[(tt, hs)] + 8)]
    def tm2(hs): return [mfma32(PT[(tt, hs)], EM[(tt, hs)], SEL + 4, PT[(tt, hs)]) for tt in range(2)]
    def pair(fn, hs, *a): return [x for ab in zip(stream(fn, 0, hs, *a), stream(fn, 1, hs, *a)) for x in ab]
    ck = [two(KPK[tt], KA[tt], 16) for tt in range(2)]
    pm = [[mfma32(KA[tt], 56, KPK[tt], None), mfma32(KA[tt], 60, KPK[tt]+4, KA[tt])] for tt in range(2)]
    KV = [128, 144]
    def kvm(hs): return [mfma32(KV[hs], VM[hs] + 8*tt + 4*blk, PP[(tt, hs)] + 4*blk, KV[hs] if hs or tt or blk else None) for tt in range(2) for blk in range(2)]
    send = [f'ds_write_b128 v52, {vr(KV[0],4)}', f'ds_write_b128 v52, {vr(KV[0]+4,4)} offset:1024', f'ds_write_b32 v52, v{KV[0]+8} offset:2048', f'ds_write_b32 v48, v{V1}']
    recv = f'ds_read_b32 v50, v49\nds_read_b128 {vr(KV[1],4)}, v53\nds_read_b128 {vr(KV[1]+4,4)}, v53 offset:1024\nds_read_b32 v{KV[1]+8}, v53 offset:2048'
    weave([mv1(14, u, hs) for u in range(3) for hs in range(2)], ck[0], 2)
    weave(pm[0], ck[1], 6)
    for m in pm[1]: A(m)
    A(mv(14, 3))
    A(f'v_mov_b32 v6, 0\ns_lshl_b32 s25, s41, 2\ns_add_u32 s25, s25, {TAG + C_PAIR}')
    fast = bool(OPT['fastk'])
    S = [pair(phik, hs, fast) for hs in range(2)]
    vb = [(VM[hs] + 8*tt + 4*blk, VA[tt] + 8*blk + 4*hs) for hs in range(2) for tt in range(2) for blk in range(2)]
    vc = [x for d, a in vb for x in cv(d, a)[:2]] + [x for k in (16, 32) for d, a in vb for x in sw(d, k)]
    KD, KZ = (KV[1] + 8, KV[1]) if OPT['vl'] == 2 else (KV[1], KV[1] + 8)
    recv = f'ds_read_b32 v50, v49\nds_read_b128 {vr(KD,4)}, v53\nds_read_b128 {vr(KD+4,4)}, v53 offset:1024\nds_read_b32 v{KZ}, v53 offset:2048'
    if OPT['vl'] == 2:
        vc = [x for tt in range(2) for x in two(VM[1] + 8*tt, VA[tt], 16, 32)] + ['s_mov_b64 exec, s[28:29]']
        vc += [f'v_mov_b64 v[{VM[0]+r}:{VM[0]+r+1}], v[{VM[1]+r}:{VM[1]+r+1}]' for r in range(0, 16, 2)] + [f'v_mov_b64 v[{VM[1]+r}:{VM[1]+r+1}], v[{ONES}:{ONES+1}]' for r in range(0, 16, 2)] + ['s_mov_b64 exec, -1']
    vr2 = []
    if OPT['vl'] == 3:
        vc = [x for i, (d, a) in enumerate(vb) for x in cv(a, a)[:2] + ([f'ds_write_b64 v251, v[{vb[i-1][1]}:{vb[i-1][1]+1}] offset:{4096 + 512*(i-1)}'] if i else [])] + [f'ds_write_b64 v251, v[{vb[7][1]}:{vb[7][1]+1}] offset:{4096 + 512*7}']
        vr2 = [['s_mov_b64 exec, s[28:29]'] + [f'ds_read_b128 {vr(vb[i][0],4)}, v55 offset:{4096 + 512*i}' for i in range(4*h, 4*h+4)] + ['s_mov_b64 exec, -1'] for h in range(2)]
    if OPT['vl'] == 1:
        vc = [x for d, a in vb for x in cv(a, a)[:2]] + [f'ds_write_b64 v166, v[{a}:{a+1}] offset:{4096 + 512*i}' for i, (d, a) in enumerate(vb)]
        vc = [x.replace('v166', 'v251') for x in vc]
        vc += ['s_mov_b64 exec, s[28:29]'] + [f'ds_read_b128 {vr(d,4)}, v55 offset:{4096 + 512*i}' for i, (d, a) in enumerate(vb)] + ['s_mov_b64 exec, -1']
    D = 2 * OPT['stag']
    rest = [mv(15, u) for u in range(4)]
    L = len(S[0])
    K0 = OPT['k0']
    tail0 = {L: tm2(0), L + K0 - 4: phik2(0), L + K0: ['s_waitcnt lgkmcnt(0)'] + kvm(0)[:1], L + K0 + 2: kvm(0)[1:2], L + K0 + 6: kvm(0)[2:3], L + K0 + 10: kvm(0)[3:],
             L + OPT['sw']: (['v_cmp_ngt_f32 vcc, s63, v6', 's_cbranch_vccnz L_kexa'] if fast else []) + send}
    assert K0 + 10 < OPT['sw'] < D and K0 - 4 < D - 24
    assert D >= 26
    for i in range(0, L + D, 2):
        if i < L: A(S[0][i]); A(S[0][i+1])
        if rest and i % 4 == 2:
            A(rest.pop(0))
            if not rest and OPT['cprio']: A('s_setprio 0')
        if OPT['e0pos'] >= 8 and i == OPT['e0a']: A('s_barrier')
        if i == D - 2:
            halo_edge(A, 'A')
            for x in vc: A(x)
            A('v_mov_b32 v48, s25\nv_xor_b32 v49, 8, v48')
            stamp(A, 6)
        if vr2 and i in (D + 20, D + 40):
            for x in vr2.pop(0): A(x)
        if i >= D: A(S[1][i-D]); A(S[1][i-D+1])
        for x in tail0.get(i, []): A(x)
    for m in tm2(1): A(m)
    if OPT['hf'] == 2: halo_issue(A, 'A')
    stamp(A, 3)
    two2 = fast and max(i for i, x in enumerate(S[1]) if x.startswith('v_max_f32 v6,')) + D > L + OPT['sw']
    if two2: A('v_cmp_ngt_f32 vcc, s63, v6\ns_cbranch_vccnz L_kexb')
    A.label('L_kdone')
    A(recv)
    for x in phik2(1)[:8]: A(x)
    A('s_waitcnt lgkmcnt(0)\nv_cmp_eq_u32 vcc, 0, v50\ns_cbranch_vccnz L_exs')
    A.label('L_exd')
    def exs():
        A.label('L_exs'); A.fence()
        A(f's_mov_b32 s3, {SPIN_MAX * 4}')
        A.label('L_exs2')
        A(recv)
        A('s_sub_u32 s3, s3, 1\ns_waitcnt lgkmcnt(0)\nv_cmp_eq_u32 vcc, 0, v50\ns_cselect_b64 vcc, 0, vcc\ns_cbranch_vccnz L_exs2\ns_branch L_exd')
    OOL.append(exs)
    weave(kvm(1), phik2(1)[8:], 4)
    halo_addr(A)
    if fast:
        def kexact():
            for hs in range(2):
                if hs == 0 or two2:
                    A.label('L_kex' + 'ab'[hs]); A.fence()
                    A('s_nop 15')
                    for tt in range(2):
                        for m in pm[tt]: A(m)
                for x in pair(phik, hs, False) + tm2(hs): A(x)
                if hs == 0:
                    for x in phik2(0) + kvm(0) + send: A(x)
            A('s_nop 1\ns_branch L_kdone')
        COLD.append(kexact)
    stamp(A, 20)
    def atomics():
        for r in range(OPT['nat']): A(f'buffer_atomic_add_f32 v{KD+r}, v54, s[52:55], s31 offen offset:{rowof(r,0)*128}')
        A(f's_mov_b32 exec_hi, 0\ns_add_u32 s31, s31, {AUX}')
        A(f'buffer_atomic_add_f32 v{KZ}, v54, s[52:55], s31 offen')
        A('s_mov_b64 exec, -1')
    if 'A' in OPT['sp']:
        if OPT['hpos'] == 0: halo_issue(A, 'A')
        atomics()
        stamp(A, 4)
        if OPT['hpos'] == 1: halo_issue(A, 'A')
        halo_fetch(A, 'A')
        A('s_cmp_lt_u32 s39, 2\ns_cbranch_scc0 L_c2\ns_waitcnt vmcnt(4)')
        A.label('L_c2')
        A('s_waitcnt vmcnt(12)')
        count_add(A, 's31', 256)
        stamp(A, 19)
        A('s_waitcnt vmcnt(1)')
    else:
        if OPT['hf']:
            A(f's_mov_b64 exec, 63\ns_waitcnt vmcnt(0)\nv_cmp_ne_u32 vcc, s60, v{PD}\ns_mov_b64 exec, -1\ns_cbranch_vccnz L_hlate')
            halo_dma(A, 'A', 'E')
            atomics()
            stamp(A, 4)
            A('s_waitcnt vmcnt(0)')
            count_add(A, 's31', 256)
            stamp(A, 19)
            A('s_branch L_e1')
            A.label('L_hlate'); A.fence()
        atomics()
        stamp(A, 4)
        halo_issue(A, 'A')
        A('s_waitcnt vmcnt(1)')
        count_add(A, 's31', 256)
        stamp(A, 19)
        halo_fetch(A, 'A', 1)
        A('s_waitcnt vmcnt(0)')
    A.label('L_e1'); A.fence()
    A(f's_lshl_b32 s24, s41, 10\nv_add_u32 v9, s24, v{QRD}')
    A('s_barrier')
    stamp(A, 8)
    A(f'ds_read_b128 v[28:31], v{QRD}')
    A.label('L_att'); A.fence(); A.raw(';PAD')
    if OPT['wprio']:
        A('s_cmp_lt_u32 s41, 4\ns_cbranch_scc1 L_wp\ns_setprio 1')
        A.label('L_wp')
    A('s_cmp_lt_u32 s39, 2\ns_cbranch_scc1 L_bslow')
    FA = bool(OPT['fasta'])
    bunit(A, False, FA, not OPT['nohook'], 'f')
    A.label('L_bdone'); A.fence()
    stamp(A, 11)
    if OPT['nohook']: A('s_branch L_fin2')
    O = OACC
    A(f's_add_u32 s24, {S_OA}, {TWIN}\ns_add_u32 s27, {S_C3}, 1024\ns_nop 9')
    if FA:
        A(f'v_pk_mul_f32 v[2:3], v[{O}:{O+1}], 0')
        for m in range(1, 4): A(f'v_pk_fma_f32 v[2:3], v[{O+2*m}:{O+2*m+1}], 0, v[2:3]')
        A(f'v_add_f32 v2, v2, v3\nv_add_f32 v2, v2, v{O+8}\nv_subrev_u32 v2, 0x{f2u(2.0**-60):x}, v2')
        A(f'v_cmp_lt_u32 vcc, 0x{f2u(2.0**60) - f2u(2.0**-60):x}, v2\ns_cbranch_vccnz L_bexact'.replace('vccnz', 'execz' if OPT['ko'] else 'vccnz'))
        A.label('L_bdone2')
    A(f'v_rcp_f32 v4, v{O+8}')
    for m in range(4): A(f'v_pk_mul_f32 v[{O+2*m}:{O+2*m+1}], v[{O+2*m}:{O+2*m+1}], v[4:5] op_sel_hi:[1,0]')
    for m in range(4): A(f'v_cvt_pk_bf16_f32 v{16+m}, v{O+2*m}, v{O+2*m+1}')
    A(f'buffer_store_dwordx4 v[16:19], v8, s[52:55], s24 offen sc1')
    UA = OPT['ua']
    if UA: count_add(A, 's27'); stamp(A, 12)
    A('s_cmp_ge_u32 s41, 4\ns_cbranch_scc1 L_nord')
    lds_spin(A, C_PQ, 4, 4, 5, sleep=False)
    A(f'ds_read_b128 v[48:51], v9 offset:{PQX-QX}\nds_read_b128 v[52:55], v9 offset:{PQX-QX+1024}')
    readout(A, 64, 180, 1 + UA + 16 // max(1, len(WD) + len(W0)) * sum(1 for x in W0 if x <= OPT['h2'])); readout2(A, 64, 180)
    if OPT['tp'] == 1: A('s_setprio 0')
    A.label('L_nord')
    tr_lane(A, 6, 7, 2)
    A('v_and_b32 v7, 1, v1\nv_lshl_add_u32 v6, v7, 5, v6\nv_bfe_u32 v7, v1, 1, 1\nv_lshl_add_u32 v6, v7, 3, v6\nv_and_b32 v7, 16, v1\nv_add_u32 v6, v6, v7')
    A('s_lshr_b32 s24, s41, 2\ns_lshl_b32 s24, s24, 11\nv_bfe_u32 v7, v1, 3, 1\nv_lshl_add_u32 v6, v7, 6, v6\nv_add_u32 v2, s24, v6\nv_xor_b32 v3, 64, v2')
    assert OPT['wa'] and not UA and not W0
    A('s_bfe_u32 s25, s37, 0x10002' if OPT['ro'] else 's_mov_b32 s25, 0')
    if OPT['ro'] == 1: A('s_lshr_b32 s24, s41, 2\ns_and_b32 s25, s25, s24')
    A(f's_lshl_b32 s24, s25, 12\nv_add_u32 v2, s24, v2\nv_add_u32 v3, s24, v3\nv_xor_b32 v6, 4096, v2\nv_xor_b32 v7, 4096, v3')
    A(f's_lshl_b32 s24, s25, 14\ns_sub_u32 s31, {S_FO}, s24\ns_add_u32 {S_FO}, {S_FO}, s24')
    OFR, PRE, AC = 16, 80, 208
    def wread(m):
        for rd in range(2): A(f'ds_read_b64_tr_b16 v[{PRE+4*m+2*rd}:{PRE+4*m+2*rd+1}], v{2 + m//16*4 + m%2} offset:{(m//2 % 8)*8192 + rd*1024}')
    def early():
        if OPT['ew'] == 1: A('v_mov_b32 v251, 0\ns_cmp_ge_u32 s41, 4\ns_cbranch_scc1 L_nosp')
        if OPT['ew']: poll_issue(A, 251, V0, S_FC)
        A.label('L_nosp')
    early()
    if OPT['cw']: A(f'v_mov_b32 v12, {TAG}'); assert OPT['npre'] == 0
    else: lds_spin(A, C_WO, NWO, 12, 13, sleep=False)
    for m in range(OPT['npre']): wread(m)
    def oload(k): A(f'buffer_load_dwordx4 {vr(OFR+4*k,4)}, v8, s[52:55], {[S_FO,"s26","s24","s25"][k//4]} offen offset:{(k%4)*1024} sc1')
    SF = 'F' in OPT['sp']
    FULL = 0x810 if OPT['ew'] else 16
    if OPT['ew']: A(f's_xor_b32 s24, s38, 1\ns_lshl_b32 s24, s24, 8\ns_add_u32 s24, s24, 1\nv_mov_b32 v14, s24')
    A(f's_add_u32 s26, {S_FO}, 4096\ns_lshr_b32 s24, s41, 2\ns_lshl_b32 s3, s24, 3\nv_lshlrev_b32 v15, s3, v{V1}')
    A('v_lshlrev_b32 v13, 10, v1' + ('' if OPT['u2'] else '\ns_waitcnt vmcnt(0)'))
    if not SF and not OPT['wf']: poll_issue(A, PD, V0, S_FC, count=FULL)
    A('s_mov_b64 exec, 3' + ('\ns_sub_u32 exec_lo, 3, s24' if OPT['ca'] >= -1 else ''))
    A(f'buffer_atomic_add v{14 if OPT["ew"] else V1}, v13, s[52:55], {S_C3} offen\ns_mov_b64 exec, 1\nds_add_u32 v12, v15 offset:{C_ATT}\ns_mov_b64 exec, -1')
    if OPT['ew']:
        A('v_readfirstlane_b32 s30, v251\ns_lshr_b32 s30, s30, 11')
        A('s_cbranch_scc0 L_noear')
        for k in range(8): oload(k)
        A.label('L_noear')
    stamp(A, 13)
    if OPT['gp'] == 1: A('s_setprio 0')
    if OPT['cw']: lds_spin(A, C_WO, NWO, 12, 13, sleep=False)
    for m in range(OPT['npre'], 32): wread(m)
    A('v_and_b32 v9, 15, v1\nv_lshlrev_b32 v9, 11, v9\nv_and_b32 v14, 48, v1\nv_add_u32 v9, v9, v14')
    if 'f' in OPT['ko']: A('v_and_b32 v9, 7, v1\nv_lshlrev_b32 v9, 12, v9\nv_and_b32 v14, 48, v1\nv_add_u32 v9, v9, v14\nv_and_b32 v14, 8, v1\nv_lshl_add_u32 v9, v14, 3, v9')
    if 'F' in OPT['ko']: A('v_lshrrev_b32 v9, 3, v1\nv_lshlrev_b32 v9, 12, v9\nv_and_b32 v14, 7, v1\nv_lshl_add_u32 v9, v14, 4, v9')
    A(f's_and_b32 s24, s41, 3\ns_lshl_b32 s25, s24, 13\ns_add_u32 s25, s25, {PHI}\nv_add_u32 v4, s25, v8\ns_lshl_b32 s24, s24, 2\ns_add_u32 s24, s24, {TAG + C_PART}\nv_mov_b32 v5, s24')
    if OPT['fl']:
        A('v_and_b32 v14, 7, v1\nv_lshlrev_b32 v9, 1, v11\nv_xor_b32 v9, v9, v14\nv_lshl_add_u32 v9, v10, 3, v9\nv_lshl_add_u32 v245, v9, 4, s25')
        A(f'v_add_u32 v249, s25, v{KVS}\nv_xor_b32 v246, 16, v245\nv_xor_b32 v247, 64, v245\nv_xor_b32 v248, 80, v245')
        A('v_lshrrev_b32 v9, 3, v1\nv_lshlrev_b32 v9, 11, v9\nv_lshl_add_u32 v9, v14, 4, v9')
        A(f's_add_u32 s28, {S_OUT}, 16384\ns_add_u32 s29, {S_OUT}, 49152')
    srd(A, 56, 18, 0x400000)
    A(f's_add_u32 s24, s31, 16384\ns_add_u32 s25, s31, 20480\ns_add_u32 s27, {S_OUT}, 32768')
    stamp(A, 25)
    def fpoll():
        if SF:
            sp_issue(A, [(48, S_FC, 0)]); sp_wait(A, [(48, S_FC, 0)], f's_cmp_lg_u32 s48, {FULL}')
        else:
            if OPT['wf']: poll_issue(A, PD, V0, S_FC, count=FULL)
            poll(A, PD, V0, S_FC, count=FULL, inline=True, first=1 - OPT['wf'])
    if not OPT['wf']: fpoll()
    stamp(A, 12)
    if not OPT['w4w']: A('s_cmp_ge_u32 s41, 4\ns_cbranch_scc1 L_noatt')
    if OPT['w0n']: A('s_cmp_lg_u32 s30, 0\ns_cbranch_scc1 L_noatt')
    lds_spin(A, C_ATT, 0x400, 12, 13)
    A.label('L_noatt')
    if OPT['wf']: fpoll()
    stamp(A, 14)
    if OPT['ew']: A('s_cmp_lg_u32 s30, 0\ns_cbranch_scc1 L_late8')
    for k in range(8): oload(k)
    A.label('L_late8')
    for k in range(8, 16): oload(k)
    A('s_waitcnt lgkmcnt(0)')
    if OPT['fl']:
        def fm(k, ct): return mfma32(AC+16*ct, PRE + 8*k + 4*ct, OFR+4*k, AC+16*ct if k else None)
        def common_mf(m0, m1):
            for m in range(m0, m1):
                k, ct = m // 2, m % 2
                if ct == 0: A(f's_waitcnt vmcnt({15-k})')
                A(fm(k, ct))
        PR = OPT['pr']
        assert 16 <= PR <= 21
        common_mf(0, PR + 1)
        A('s_cmp_ge_u32 s41, 4\ns_cbranch_scc1 L_fin')
        hist = list(A.hist)
        common_mf(PR + 1, 32)
        stamp(A, 16)
        for i in range(8): A(f'ds_write_b128 v4, {vr(AC+4*i,4)} offset:{i*1024}')
        A(f'ds_write_b32 v5, v{V1}\ns_waitcnt lgkmcnt(0)\ns_branch L_fin2')
        A.label('L_fin'); A.hist = hist
        prd = 'ds_read_b32 v12, v5\n' + '\n'.join(f'ds_read_b128 {vr(OFR+4*i,4)}, v4 offset:{i*1024}' for i in range(8))
        A(prd)
        common_mf(PR + 1, 22)
        def adds(ct): return [f'v_add_f32 v{AC+16*ct+r}, v{AC+16*ct+r}, v{OFR+16*ct+r}' for r in range(16)]
        def pack(ct): return [x for e in range(2) for x in cv(48 + 8*ct + 4*e, AC + 16*ct + 8*e) + [f'ds_write_b128 v{245 + 2*ct + e}, {vr(48 + 8*ct + 4*e, 4)}']]
        def vm(n): return f's_waitcnt vmcnt({n})\n'
        def lag():
            A.hist = A.hist[-1:]
        A(vm(4) + fm(11, 1)); lag()
        A('s_waitcnt lgkmcnt(0)\nv_cmp_eq_u32 vcc, 0, v12\ns_cbranch_vccnz L_prs')
        A.label('L_prd')
        def prs():
            A.label('L_prs'); A.fence()
            if OPT['lt']:
                A(fm(11, 0)); common_mf(24, 32)
            A(f's_mov_b32 s3, {SPIN_MAX * 4}')
            A.label('L_prs2')
            A('ds_read_b32 v12, v5\ns_sub_u32 s3, s3, 1\ns_waitcnt lgkmcnt(0)\nv_cmp_eq_u32 vcc, 0, v12\ns_cselect_b64 vcc, 0, vcc\ns_cbranch_vccnz L_prs2')
            if not OPT['lt']: A(prd + '\ns_waitcnt lgkmcnt(0)\ns_branch L_prd'); return
            A(prd)
            for i in range(8):
                A(f's_waitcnt lgkmcnt({7-i})')
                for r in (4*i, 4*i + 2): A(f'v_pk_add_f32 v[{AC+r}:{AC+r+1}], v[{AC+r}:{AC+r+1}], v[{OFR+r}:{OFR+r+1}]')
            A('s_branch L_pk')
        FIN.append(prs)
        stamp(A, 15)
        for x in adds(0)[:4]: A(x)
        weave([vm(3) + fm(12, 1), vm(2) + fm(13, 1)], adds(0)[4:], 6)
        A(fm(11, 0)); A(fm(12, 0)); lag()
        for x in adds(1)[:5]: A(x)
        weave([fm(13, 0), vm(1) + fm(14, 0)], adds(1)[5:], 6)
        A(vm(0) + fm(15, 0)); A(fm(14, 1)); A(fm(15, 1)); lag()
        A.label('L_pk')
        for x in pack(0): A(x)
        stamp(A, 16)
        for x in pack(1): A(x)
        for i in range(4): A(f'ds_read_b128 {vr(OFR+4*i,4)}, v249 offset:{i*1024}')
        for i in range(4): A(f's_waitcnt lgkmcnt({3-i})\nbuffer_store_dwordx4 {vr(OFR+4*i,4)}, v9, s[56:59], {[S_OUT, "s28", "s27", "s29"][i]} offen {OST}')
    else:
        for m in range(32):
            k, ct = m // 2, m % 2
            if ct == 0: A(f's_waitcnt vmcnt({15-k})')
            A(mfma32(AC+16*ct, PRE+4*m, OFR+4*k, AC+16*ct if k else None))
            if m == 30 and UA:
                A(f's_cmp_lg_u32 s30, 0\ns_cbranch_scc1 L_acked\ns_mov_b64 exec, 3\nv_lshlrev_b32 v12, 15, v1\nbuffer_atomic_add v{V1}, v12, s[52:55], {S_C3} offen offset:64\ns_mov_b64 exec, -1')
                A.label('L_acked'); A.hist = A.hist[:-4]
            if m == OPT['tu']:
                A(f'ds_read_b32 v13, v12 offset:{C_ATT}\ns_mov_b64 exec, 1\nds_add_rtn_u32 v14, v5, v{V1} offset:16\ns_mov_b64 exec, -1')
            if m == OPT['pr']:
                assert m >= 17
                if OPT['tu'] >= 0: A('s_waitcnt lgkmcnt(0)\nv_readfirstlane_b32 s30, v14')
                else: A('s_lshr_b32 s30, s41, 2')
                A(f's_cmp_eq_u32 s30, 0\ns_cbranch_scc1 L_nopr\ns_mov_b32 s3, {SPIN_MAX * 4}')
                A.label('L_prs')
                A('ds_read_b32 v12, v5\ns_sub_u32 s3, s3, 1\ns_waitcnt lgkmcnt(0)\nv_cmp_eq_u32 vcc, 0, v12\ns_cselect_b64 vcc, 0, vcc\ns_cbranch_vccnz L_prs')
                stamp(A, 15)
                for i in range(8): A(f'ds_read_b128 {vr(OFR+4*i,4)}, v4 offset:{i*1024}')
                A.label('L_nopr')
        stamp(A, 16)
        if UA:
            A(f'v_cmp_u_f32 vcc, v{AC}, v{AC}\ns_cbranch_vccnz L_late')
            A.label('L_late2')
            def late():
                A.label('L_late'); A.fence()
                A('s_cmp_lg_u32 s30, 0\ns_cbranch_scc1 L_late2\ns_mov_b32 s30, 1\ns_waitcnt lgkmcnt(0)')
                poll_issue(A, PD, V0, S_FC, count=16, off=64)
                poll(A, PD, V0, S_FC, count=16, off=64, inline=True)
                A('s_branch L_again')
            COLD.append(late)
        A('s_cmp_lg_u32 s30, 0\ns_cbranch_scc1 L_fin')
        if OPT['tu'] >= 0:
            A('v_cmp_gt_u32 vcc, 0x404, v13\ns_cbranch_vccnz L_aw')
            A.label('L_aw2')
            def aw():
                A.label('L_aw'); A.fence()
                lds_spin(A, C_ATT, 0x404, 12, 13)
                A('s_branch L_aw2')
            COLD.append(aw)
        else: assert not OPT['w0n']
        for i in range(8): A(f'ds_write_b128 v4, {vr(AC+4*i,4)} offset:{i*1024}')
        A(f'ds_write_b32 v5, v{V1}\ns_waitcnt lgkmcnt(0)\ns_branch L_fin2')
        A.label('L_fin')
        A('s_waitcnt lgkmcnt(0)' + ('' if UA else '\ns_nop 7'))
        for ct in range(2):
            for r in range(0, 16, 2): A(f'v_pk_add_f32 v[{AC+16*ct+r}:{AC+16*ct+r+1}], v[{AC+16*ct+r}:{AC+16*ct+r+1}], v[{OFR+16*ct+r}:{OFR+16*ct+r+1}]')
            b = 48 + 8 * ct
            for m in range(8): A(f'v_cvt_pk_bf16_f32 v{b+m}, v{AC+16*ct+2*m}, v{AC+16*ct+2*m+1}')
            for m in range(4): A(f'v_permlane16_swap_b32 v{b+m}, v{b+4+m}')
            for h in range(2 if 'o' not in OPT['ko'] else 1 - ct if 'O' in OPT['ko'] else 0): A(f'buffer_store_dwordx4 {vr(b+4*h,4)}, v9, s[56:59], {"s27" if h else S_OUT} offen offset:{ct*(2048 if "f" in OPT["ko"].lower() else 64)} {OST}')
    A.label('L_fin2')
    stamp_flush(A, 's[52:55]', 's41')
    A.label('L_end'); A.fence()
    A('s_endpgm')
    for f in FIN: f()
    A.label('L_bslow'); A.fence(); A.raw(';PAD')
    bunit(A, True, FA, not OPT['nohook'], 's')
    A('s_branch L_bdone')
    for f in OOL: f()
    A.label('L_cold')
    if FA:
        A.label('L_bexact'); A.fence()
        bunit(A, True, False, False, 'x')
        A('s_nop 11\ns_branch L_bdone2')
    for f in COLD: f()
    wrong(A)

def kvread(A, n):
    for m in range(1, 4): A(f'v_xor_b32 v{32+4*m}, {16*m}, v{KVOFF}')
    A(f's_waitcnt vmcnt({n})')
    for m in range(4): A(f'ds_read_b128 {vr(32+4*m,4)}, v{32+4*m if m else KVOFF}')
def readout(A, R1, R2, n):
    if not OPT['kd']: A(f's_waitcnt vmcnt({n})')
    elif n: kvread(A, n); A('s_waitcnt lgkmcnt(0)')
    for m in range(8): A(f'v_cvt_pk_bf16_f32 v{32+m}, v{32+2*m}, v{33+2*m}')
    if n and not OPT['kd']: A('s_waitcnt lgkmcnt(0)')
    A(mfma32(R1, 32, 48, None)); A(mfma32(R2, 36, 52, None))
def readout2(A, R1, R2):
    A(f'v_mov_b32 v6, 0x{f2u(1e-6):x}')
    A(f'v_rcp_f32 v4, v{R1+9}\nv_rcp_f32 v5, v{R2+9}')
    A(f'v_fmac_f32 v6, v{R1+8}, v4\nv_fmac_f32 v6, v{R2+8}, v5')
    A('v_rcp_f32 v6, v6')
    A('v_mul_f32 v4, v4, v6\nv_mul_f32 v5, v5, v6')
    for r in range(8): A(f'v_mul_f32 v{R1+r}, v{R1+r}, v4')
    for r in range(8): A(f'v_fmac_f32 v{R1+r}, v{R2+r}, v5')
    for m in range(4): A(f'v_cvt_pk_bf16_f32 v{20+m}, v{R1+2*m}, v{R1+2*m+1}')
    A(f'buffer_store_dwordx4 v[20:23], v8, s[52:55], {S_OA} offen sc1')
    if OPT['ua']: count_add(A, S_C3)
    if OPT['wprio']: A('s_setprio 0')
    stamp(A, 17)

def bunit(A, checks, fast, hooks, sfx):
    lq = Q(A, 'lgkmcnt', 15)
    KF = {j: 144 + 4 * j for j in range(9)}
    M, X, Y, Z, NM = 64, 80, 96, 112, 128
    O = OACC
    order = [8, 0, 7, 6, 5, 4, 3, 2, 1]
    def kvload():
        if OPT['kd']:
            fl = OPT["kvs"].replace("p", "")
            A(f's_mov_b32 m0, s98\ns_add_u32 s24, {S_ACC}, {AUX - 2048}')
            for i in range(2): A(f'buffer_load_dwordx4 v{KVS}, s[52:55], {S_ACC} offen offset:{1024*i} {fl} lds')
            A(f's_mov_b64 exec, 0xffff\nbuffer_load_dwordx4 v{KVS}, s[52:55], s24 offen offset:2048 {fl} lds\ns_mov_b64 exec, -1')
            return
        for m in range(4): A(f'buffer_load_dwordx4 {vr(32+4*m,4)}, v{KVOFF}, s[52:55], {S_ACC} offen offset:{16*m} {OPT["kvs"].replace("p", "")}')
    def hook(j):
        stamp(A, 58 - j)
        if j + 100 == OPT['clr'] and OPT['ua']:
            assert j > OPT['h2']
            A(f's_cmp_ge_u32 s41, 4\ns_cbranch_scc1 L_nclr{sfx}')
            A(f'v_mov_b64 v[56:57], -1\nv_mov_b64 v[58:59], -1\ns_add_u32 s24, {S_OA}, 0x4000\ns_add_u32 s25, {S_OA}, 0x200000\ns_add_u32 s3, {S_OA}, 0x204000')
            for so in (S_OA, 's24', 's25', 's3'): A(f'buffer_store_dwordx4 v[56:59], v8, s[52:55], {so} offen sc1')
            A.label(f'L_nclr{sfx}')
        same = (OPT['hp'], OPT['h2']) == (OPT['ap'], OPT['a2'])
        for ty, (hp, h2) in enumerate([(OPT['hp'], OPT['h2']), (OPT['ap'], OPT['a2'])][:1 if same else 2]):
            if j not in (hp, h2) and not (same and j in W0): continue
            A((f's_cmp_ge_u32 s41, 4' if same else f's_cmp_lg_u32 s20, {ty}') + f'\ns_cbranch_scc1 L_hg0{ty}{j+1}{sfx}')
            if j == hp:
                A(f's_mov_b64 exec, 3\nv_lshlrev_b32 v5, 11, v1\nv_add_u32 v5, {AUX}, v5')
                poll_issue(A, PD, 5, S_ACC, count=16, off=256)
                A('s_mov_b64 exec, -1')
            if j == h2:
                A('s_mov_b64 exec, 3')
                poll(A, PD, 5, S_ACC, count=16, off=256, first=16 // max(1, len(WD) + len(W0)) * sum(1 for x in W0 if h2 < x <= hp))
                lds_add(A, C_KV, 4)
                if OPT['tp']: A('s_setprio 2')
                stamp(A, 10)
                kvload()
                if OPT['kt']: A(f'buffer_load_dword v255, v{KVOFF}, s[52:55], {S_ACC} offen offset:{ACCB}')
            assert same or not W0
            wo_dma(A, j, 0)
            A.label(f'L_hg0{ty}{j+1}{sfx}')
        if j == OPT['wA']:
            assert j > OPT['g2']
            A(f's_cmp_lg_u32 s20, 3\ns_cbranch_scc1 L_hwa{sfx}')
            wo_dma(A, 8); stamp(A, 26)
            A.label(f'L_hwa{sfx}')
        if j in WD or j in (OPT['g2'], OPT['gr'], OPT['gr'] - 1, OPT['gpp'], OPT['ca']) or (OPT['kd'] and j == OPT['gl']):
            A(f's_cmp_lt_u32 s41, 4\ns_cbranch_scc1 L_hg1{j+1}{sfx}')
            if OPT['gp'] and j == OPT['gpp']: A('s_setprio 1')
            wo_dma(A, j)
            if j == OPT['gl'] and OPT['kd']:
                assert OPT['g2'] > j >= OPT['gr']
                kvread(A, 0)
                if j == OPT['gr']: A('s_waitcnt lgkmcnt(0)')
            if j == OPT['gr']: readout(A, R1, 180, 0)
            if j == OPT['gr'] - 1: readout2(A, R1, 180)
            if j == OPT['ca']:
                assert j < OPT['gr'] - 1 and not OPT['ew']
                A('s_waitcnt vmcnt(0)'); count_add(A, S_C3)
            if j == OPT['g2']:
                assert min(WD + [8]) > j
                if WD:
                    A('s_waitcnt vmcnt(0)')
                    lds_add(A, C_WO, 4)
                lds_spin(A, C_KV, 4 if OPT['ua'] and OPT['clr'] >= 100 else 1, 4, 5)
                stamp(A, 10)
                kvload()
            A.label(f'L_hg1{j+1}{sfx}')
    R1 = M
    if hooks: stamp(A, 50)
    for j in order: A(f'ds_read_b128 {vr(KF[j],4)}, v{KRD} offset:{j*1024}'); lq.push(('k', j))
    buf = {8: M, 0: X, 7: Y, 6: Z, 5: NM, 4: X, 3: Y, 2: Z, 1: NM}
    def qk(j, dst):
        lq.wait(('k', j))
        A(mfma32(dst, KF[j], 28, None))
    def hook0():
        if hooks: stamp(A, 9)
    if fast:
        qk(8, M)
        if checks:
            A('v_mov_b32 v2, 0xff800000')
            for r in range(0, 16, 2): A(f'v_mov_b64 v[{NM+r}:{NM+r+1}], 0')
        else: qk(0, NM)
    else:
        for j in (8, 0, 7, 6, 5): qk(j, buf[j])
        if checks:
            A(f's_cmp_ge_u32 {S_T}, 8\ns_cbranch_scc1 L_t0{sfx}\ns_nop 7')
            for r in range(16): A(f'v_mov_b32 v{X+r}, 0xff800000')
            A.label(f'L_t0{sfx}'); A('s_nop 7')
        for r in range(16): A(f'v_cndmask_b32_e64 v{M+r}, v{X+r}, v{M+r}, s[{64+2*r}:{65+2*r}]')
        qk(4, buf[4])
        A(f'v_max_f32 v2, v{M}, v{M+1}\nv_max_f32 v3, v{M+2}, v{M+3}')
        for m in range(1, 4): A(f'v_max3_f32 v2, v2, v{M+4*m}, v{M+4*m+1}\nv_max3_f32 v3, v3, v{M+4*m+2}, v{M+4*m+3}')
        for j in (7, 6, 5, 4, 3, 2, 1):
            b = buf[j]
            if checks: A(f's_cmp_lt_u32 {S_T}, {8-j}\ns_cbranch_scc1 L_bm{sfx}')
            for m in range(4): A(f'v_max3_f32 v2, v2, v{b+4*m}, v{b+4*m+1}\nv_max3_f32 v3, v3, v{b+4*m+2}, v{b+4*m+3}')
            if j - 4 >= 1: qk(j - 4, buf[j - 4])
        if checks:
            A.label(f'L_bm{sfx}'); A.fence(); A('s_waitcnt lgkmcnt(0)\ns_nop 15'); lq.q = []
        A('v_max_f32 v2, v2, v3\nv_mov_b32 v3, v2\nv_permlane32_swap_b32 v2, v3\nv_max_f32 v2, v2, v3')
        hook0()
        A(f'v_sub_f32 v{NM}, 0, v2\nv_sub_f32 v{NM+1}, 0, v2')
        for r in range(2, 16, 2): A(f'v_mov_b64 v[{NM+r}:{NM+r+1}], v[{NM}:{NM+1}]')
    vs = [0]
    def vreads(js):
        A('s_mov_b64 exec, s[28:29]')
        out = {}
        for j in js:
            for blk in range(2):
                st = VRING + 4 * (vs[0] % 4); vs[0] += 1
                A(f'ds_read_b128 {vr(st,4)}, v{VRD} offset:{j*1024 + blk*512}'); lq.push(('v', j, blk)); out[(j, blk)] = st
        A('s_mov_b64 exec, -1')
        return out
    first = [True]
    def pv(j, blk, vreg, p):
        def f():
            lq.wait(('v', j, blk))
            A(mfma32(O, vreg, p, None if first[0] else O))
            first[0] = False
        return f
    buf2 = {7: X, 6: Y, 5: Z, 4: X, 3: Y, 2: Z, 1: X}
    def qk2(j):
        def f():
            if checks:
                uid[0] += 1; n = uid[0]
                A(f's_cmp_lg_u32 {S_T}, {7-j}\ns_cbranch_scc1 L_ni{n}\ns_nop 7')
                for r in range(16): A(f'v_mov_b32 v{NM+r}, 0xff800000')
                A.label(f'L_ni{n}'); A.fence(); A('s_nop 1')
            lq.wait(('k', j))
            A(mfma32(buf2[j], KF[j], 28, None if fast and not checks else NM))
        return f
    def tile(b, pend, pre=()):
        ops = list(pre) + [f'v_exp_f32 v{b+r}, v{b+r}' for r in range(16)] + [f'v_cvt_pk_bf16_f32 v{b+m}, v{b+2*m}, v{b+2*m+1}' for m in range(8)]
        n0 = len(pre); step = max(1, 16 // max(1, len(pend)))
        pos = {n0 + 1 + i * step: f for i, f in enumerate(pend)}
        for i, o in enumerate(ops):
            if i in pos: pos[i]()
            A(o)
    vv = vreads([8, 0])
    if fast: pre = [f'v_cndmask_b32_e64 v{M+r}, v{2 if checks else NM+r}, v{M+r}, s[{64+2*r}:{65+2*r}]' for r in range(16)]
    else: pre = [f'v_sub_f32 v{M+r}, v{M+r}, v2' for r in range(16)]
    tile(M, [qk2(7), qk2(6)], pre=pre)
    for m in range(8): A(f'v_bfi_b32 v{M+8+m}, v{PMASK+m}, 0, v{M+m}')
    for m in range(8): A(f'v_and_b32 v{M+m}, v{PMASK+m}, v{M+m}')
    pend = [pv(8, 0, vv[(8, 0)], M), pv(8, 1, vv[(8, 1)], M + 4), pv(0, 0, vv[(0, 0)], M + 8), pv(0, 1, vv[(0, 1)], M + 12), qk2(5)]
    if fast: hook0()
    for j in (7, 6, 5, 4, 3, 2, 1):
        b = buf2[j]
        if OPT['w1']: lq.all()
        if hooks: hook(j)
        if j == 7 and OPT['v7']:
            vv = {}
            k7 = 3 - OPT['w1']
            f3 = pend[k7]
            pend[k7] = lambda: (f3(), vv.update(vreads([7])))
            tile(b, pend)
        elif j == 7:
            tile(b, pend); vv = vreads([j])
        else:
            vv = vreads([j]); tile(b, pend)
        pend = [pv(j, 0, vv[(j, 0)], b), pv(j, 1, vv[(j, 1)], b + 4)]
        if j - 3 >= 1: pend.append(qk2(j - 3))
    for f in pend: f()
    if hooks:
        hook(0); hook(-1)

def add_pads(txt):
    import subprocess, re, tempfile
    lines = txt.split('\n')
    d = tempfile.mkdtemp()
    tmp = txt.replace(';PAD', '    s_nop 0').replace('L_code_end:', ''.join(f'L_chain{i}:\n' for i in range(8)) + 'L_code_end:')
    open(d + '/a.s', 'w').write(tmp)
    subprocess.check_call(['clang', '-x', 'assembler', '-target', 'amdgcn-amd-amdhsa', '-mcpu=gfx950', '-c', d + '/a.s', '-o', d + '/a.o'])
    dis = subprocess.check_output(['llvm-objdump', '-d', d + '/a.o']).decode()
    addrs = [int(m.group(1), 16) for m in re.finditer(r'// ([0-9A-F]{12}):', dis)]
    out = []; k = 0; shift = 0x300; nxt = 4096; skip = True; walk = False
    for ln in lines:
        if ln.strip() == 's_mov_b64 exec, 0': walk = True
        if ln.startswith('L_padret0'): skip = False
        if ln.startswith('L_cold'): skip = True
        if ln == ';PAD' or (ln.startswith('    ') and not ln.strip().startswith('.')):
            a = addrs[k] + shift; k += 1
            if a >= nxt and not walk:
                nxt += 4096
                if ln != ';PAD' and not skip: out.append(';PAD'); shift += 4
        out.append(ln)
        if ln.strip() == 's_mov_b64 exec, -1': walk = False
    idx = [i for i, ln in enumerate(out) if ln == ';PAD']
    n = len(idx)
    for j, i in enumerate(idx):
        head = f'L_chain{j}:\n' if j < 8 else ''
        out[i] = f'{head}L_pad{j}:\n    s_cbranch_execz ' + ('L_padret0' if j < 4 else f'L_pad{j+4}' if j + 4 < n else 'L_padret1')
    return '\n'.join(out)

def main():
    A = Asm()
    A.raw(f'; @launch grid=(256,1,1) block=(512,1,1) lds={LDS_SIZE}')
    A.raw('.amdgcn_target "amdgcn-amd-amdhsa--gfx950"\n.text')
    gen(A)
    A.raw('L_code_end:\n.p2align 8\n.fill 64, 4, 0xbf800000')
    A.raw(kd(NAME, 256, 100))
    txt = A.text()
    if OPT['pads']: txt = add_pads(txt)
    sys.stdout.write(txt)
main()
```

```python
import sys, math, struct
sys.path.insert(0, 'work')
from asmlib import *

OPT = dict(stamps=0, gst=0, skip='', pfc=2, psl=2, ssl=2, order='01234567', grp=1, gsh=9, tagl=5, la='88664888', n0=10, cst=11, cn=8, e0n=72, ot='', dpos=0, pw2=-1, aw=0, bw=1, npre=6, w4w=0, wf=0, qr=1, pr=18, ua=0, clr=107, wa=1, gp=1, th=16, ap=5, a2=2, gpp=6, hq=-1, hk=-1, e0w=0, e0pos=6, e0a=24, fastk=1, fasta=1, epn=28, cprio=0,
           nat=8, fw=1, pads=1, qd=5, qpoll=56, bq=65, lprio=1, aprio=0, stag=28, ost='sc1', wprio=0, pre=1, wd='8', w0='x', bt=0, hf=0, pol=2, nrep=1, rot=1, mis=0, vb=32, kvs='p', v7=1, tp=2, cw=0, kt=0, kd=1, gl=4, w1=1, ew=0, ko='', bp16=2, re=2, rodd=1, sprio=1, rt=2, vl=2, oz=1, ca=-9, fl=1, lt=1, mt=0, lin='x1001', po='x4567012389abcdef', pn=32, mo16=1, bk=0, fq=0, rm=0, rl=0, ob=0, pb=0, kf=1, sx=0, sp0=0, mq=-1, mo=-1, spo=0, wqs=0, ro=0, tu=-1, wb9=1, wA=8, bp=1, ng=3, sw=36, k0=18, w0n=0, u2=0, tl=0, dg=0, nohook=0, g2=6, gr=3, hp=3, h2=1, hpos=0, fp=16, sp='x', hl=0, xa=8, xm=1, xs=7)
for a in sys.argv[1:]:
    k, v = a.split('='); assert k in OPT, k; OPT[k] = int(v) if v.lstrip('-').isdigit() else v
OST = '' if OPT['ost'] == 'plain' else OPT['ost'].replace('_', ' ')
NAME = 'concat_heads__linear_kernel_hedgehog__sliding_block__prompt_kernel'

def f2u(x): return struct.unpack('<I', struct.pack('<f', x))[0]
LOG2E = math.log2(math.e)
RBS, TWIN = 18, 0x202000
WS_K, WS_O, WS_QG, WS_F1 = 0x000000, 0x400000, 0x800000, 0x1400000
WS_ACC, WS_EP, WS_PR = 0x1100000, 0x1120000, 0x1128000
WS_SIZE = 0x1800000
ACCB, AUX = 2048, 65536
WS_STAMP = 0x1000000
SPIN_MAX = 1 << 16
SLOT = 32768
RING = [0, 32768, 65536, 98304]
KL, VL, PHI = 65536, 90112, 114688
PHI_PLANE, PHI_HEAD, PHI_WAVE = 1088, 4352, 8704
TAG = PHI + 4 * PHI_WAVE - 128
QX, PQX, WPH = 149504, 153600, 161792
WO1 = 0
LDS_SIZE = 163840
C_ATT, C_WQ, C_PQ, C_WO, C_KV, C_WQ2, C_PAIR, C_PART = 8, 12, 16, 20, 24, 28, 32, 48
OACC, VRING, PMASK, ONES = 200, 216, 232, 240
SEL = 200
KVOFF, V1, V0, KRD, VRD, WOL, KVS, QRD, PD = 242, 243, 244, 245, 246, 247, 248, 249, 250
S_T, S_WO, S_ACC, S_OA, S_C3, S_FC, S_FO, S_OUT, S_QG = 's4', 's5', 's6', 's7', 's8', 's12', 's13', 's14', 's15'

class Q:
    def __init__(self, A, name, mx): self.A = A; self.q = []; self.name = name; self.mx = mx
    def push(self, tag): self.q.append(tag)
    def wait(self, *tags):
        idx = -1
        for i, t in enumerate(self.q):
            if t in tags: idx = i
        if idx < 0: return
        n = min(len(self.q) - 1 - idx, self.mx)
        self.A(f's_waitcnt {self.name}({n})')
        self.q = self.q[len(self.q) - n:] if n else []
    def all(self):
        self.A(f's_waitcnt {self.name}(0)'); self.q = []

def stamp(A, idx):
    if not OPT['stamps'] or str(idx) in str(OPT['skip']).split('.'): return
    if OPT['gst'] == 9 and idx not in (30, 31): return
    if OPT['gst'] == 3:
        if 32 <= idx < 42: idx -= 12
        elif idx >= 60: idx -= 60
        elif idx not in (30, 31): return
    elif idx >= 60: return
    elif OPT['gst'] == 2:
        if idx < 10 or 32 <= idx < 50: return
        if idx >= 50: idx -= 50
    elif OPT['gst']:
        if idx < 30 or idx > 47: return
        if idx >= 32: idx -= 32
    elif idx >= 32: return
    A(('s_memrealtime' if OPT['stamps'] == 1 else 's_memtime') + ' s[96:97]')
    A('s_waitcnt lgkmcnt(0)')
    A(f'v_writelane_b32 v253, s96, {idx}')
def stamp_flush(A, srd, wavereg):
    if not OPT['stamps']: return
    stamp(A, 31)
    A(f's_lshl_b32 s98, s37, 3\ns_add_u32 s98, s98, s99\ns_lshl_b32 s98, s98, 3\ns_add_u32 s98, s98, {wavereg}\ns_lshl_b32 s98, s98, 7\ns_add_u32 s98, s98, {WS_STAMP}\ns_and_b32 s52, s52, 0xffffdfff')
    A('v_mbcnt_lo_u32_b32 v252, -1, 0\nv_lshlrev_b32 v252, 2, v252\ns_mov_b32 exec_hi, 0')
    A(f'buffer_store_dword v253, v252, {srd}, s98 offen')

def rowof(r, hi): return (r & 3) + 8 * (r >> 2) + 4 * hi

def dual_exp(A, p, em, t):
    A(f'v_max3_f32 v{t}, v{p}, v{p+1}, v{p+2}\nv_max3_f32 v{t+1}, -v{p}, -v{p+1}, -v{p+2}')
    A(f'v_max3_f32 v{t}, v{t}, v{p+3}, v{p+4}\nv_max3_f32 v{t+1}, v{t+1}, -v{p+3}, -v{p+4}')
    A(f'v_max3_f32 v{t}, v{t}, v{p+5}, v{p+6}\nv_max3_f32 v{t+1}, v{t+1}, -v{p+5}, -v{p+6}')
    A(f'v_max_f32_e64 v{t}, v{t}, v{p+7}\nv_max_f32_e64 v{t+1}, v{t+1}, -v{p+7}')
    A(f'v_permlane32_swap_b32 v{t}, v{t+1}')
    A(f'v_max_f32 v{t}, v{t}, v{t+1}')
    A(f'v_mul_f32 v{t}, s62, v{t}')
    A(f'v_mov_b32 v{t+1}, v{t}')
    A(f'v_permlane32_swap_b32 v{t}, v{t+1}')
    for r in range(8): A(f'v_fma_f32 v{em+r}, -v{p+r}, s62, -v{t+1}\nv_fma_f32 v{p+r}, v{p+r}, s62, -v{t}')
    for r in range(8): A(f'v_exp_f32 v{em+r}, v{em+r}\nv_exp_f32 v{p+r}, v{p+r}')

uid = [0]
OOL = []
COLD = []
FIN = []
def sp_issue(A, loads):
    for d, so, off in loads: A(f's_buffer_load_dword s{d}, s[52:55], {so} offset:{off} glc')
def sp_wait(A, loads, test, inline=True):
    uid[0] += 1; n = uid[0]
    def loop():
        A(f's_mov_b32 s3, {SPIN_MAX}')
        A.label(f'L_pl{n}')
        if OPT['ssl']: A(f's_sleep {OPT["ssl"]}')
        sp_issue(A, loads)
        A(f's_waitcnt lgkmcnt(0)\n{test}\ns_cselect_b32 s3, s3, 0\ns_sub_u32 s3, s3, 1\ns_cbranch_scc0 L_pl{n}')
    if inline:
        A(f's_waitcnt lgkmcnt(0)\n{test}\ns_cbranch_scc0 L_pd{n}')
        loop()
        A.label(f'L_pd{n}')
        return
    A(f's_waitcnt lgkmcnt(0)\n{test}\ns_cbranch_scc1 L_ps{n}')
    A.label(f'L_pd{n}')
    def slow():
        A.label(f'L_ps{n}'); A.fence()
        loop()
        A(f's_branch L_pd{n}')
    OOL.append(slow)
def poll_issue(A, vdst, voff, soff, count=None, off=0):
    o = f' offset:{off}' if off else ''
    A(f'buffer_load_dword v{vdst}, v{voff}, s[52:55], {soff} offen{o} sc1')
def poll(A, vdst, voff, soff, count=None, off=0, inline=False, first=0):
    uid[0] += 1; n = uid[0]
    cmp = f'v_cmp_ne_u32 vcc, {count}, v{vdst}'
    if inline:
        A(f's_waitcnt vmcnt({first})\n{cmp}\ns_cbranch_vccz L_pd{n}\ns_mov_b32 s3, {SPIN_MAX}')
        A.label(f'L_pl{n}')
        if OPT['psl']: A(f's_sleep {OPT["psl"]}')
        poll_issue(A, vdst, voff, soff, count, off)
        A(f's_sub_u32 s3, s3, 1\ns_waitcnt vmcnt(0)\n{cmp}\ns_cselect_b64 vcc, 0, vcc\ns_cbranch_vccnz L_pl{n}')
        A.label(f'L_pd{n}')
        return
    A(f's_waitcnt vmcnt({first})\n{cmp}\ns_cbranch_vccnz L_ps{n}')
    A.label(f'L_pd{n}')
    def slow():
        A.label(f'L_ps{n}'); A.fence()
        A('s_mov_b32 s3, 0')
        A.label(f'L_pl{n}')
        if OPT['psl']: A(f's_sleep {OPT["psl"]}')
        poll_issue(A, vdst, voff, soff, count, off)
        A(f's_add_u32 s3, s3, 1\ns_waitcnt vmcnt(0)\n{cmp}\ns_cbranch_vccz L_pd{n}')
        A(f's_cmp_lt_u32 s3, {SPIN_MAX}\ns_cbranch_scc1 L_pl{n}\ns_branch L_pd{n}')
    OOL.append(slow)
GR = [0, 1, 2, 4, 5, 6, 8, 9]
def gran_issue(A, v, nh):
    if 'q' in OPT['ko']:
        for h in range(3): A(f'v_mov_b32 v{v+4*h+3}, s60')
        return
    for h in range(OPT['ng']): A(f'buffer_load_dwordx4 {vr(v+4*h,4)}, v8, s[52:55], {S_QG} offen offset:{h*1024} sc1')
def gran_wait(A, v, nh, dst, inline, first=0):
    uid[0] += 1; n = uid[0]
    def check(cnt=0):
        A(f's_waitcnt vmcnt({cnt})\nv_cmp_ne_u32_e64 s[24:25], s60, v{v+3}')
        for r in range(1, OPT['ng']): A(f'v_cmp_ne_u32 vcc, s60, v{v+3+4*r}\ns_or_b64 s[24:25], s[24:25], vcc')
    def retry():
        if OPT['psl']: A(f's_sleep {OPT["psl"]}')
        gran_issue(A, v, nh)
    if inline:
        A('s_mov_b32 s3, 0')
        A.label(f'L_gl{n}')
        check()
        A(f's_cbranch_scc0 L_gd{n}')
        retry()
        A(f's_add_u32 s3, s3, 1\ns_cmp_lt_u32 s3, {SPIN_MAX}\ns_cbranch_scc1 L_gl{n}\ns_waitcnt vmcnt(0)')
    else:
        check(first)
        A(f's_cbranch_scc1 L_gs{n}')
        def slow():
            A.label(f'L_gs{n}'); A.fence()
            A('s_mov_b32 s3, 0')
            A.label(f'L_gl{n}')
            retry(); check()
            A(f's_cbranch_scc0 L_gd{n}\ns_add_u32 s3, s3, 1\ns_cmp_lt_u32 s3, {SPIN_MAX}\ns_cbranch_scc1 L_gl{n}\ns_branch L_gd{n}')
        OOL.append(slow)
    A.label(f'L_gd{n}')
    for r in range(8): A(f'v_mov_b32 v{dst+r}, v{v+GR[r % (3*OPT["ng"])]}')

def lds_add(A, off, va):
    A(f'v_mov_b32 v{va}, {TAG}\ns_mov_b64 exec, 1\nds_add_u32 v{va}, v{V1} offset:{off}\ns_mov_b64 exec, -1')
def lds_spin(A, off, cnt, va, vt, sleep=True):
    uid[0] += 1; n = uid[0]
    A(f'v_mov_b32 v{va}, {TAG}\ns_mov_b32 s3, {SPIN_MAX * 4}')
    A.label(f'L_sp{n}')
    if sleep: A('s_sleep 1')
    A(f's_sub_u32 s3, s3, 1\nds_read_b32 v{vt}, v{va} offset:{off}\ns_waitcnt lgkmcnt(0)\nv_cmp_gt_u32 vcc, {cnt}, v{vt}\ns_cselect_b64 vcc, 0, vcc\ns_cbranch_vccnz L_sp{n}')
def count_add(A, soff, off=0):
    A('s_mov_b64 exec, 1')
    A(f'buffer_atomic_add v{V1}, v{V0}, s[52:55], {soff} offen' + (f' offset:{off}' if off else ''))
    A('s_mov_b64 exec, -1')

def srd(A, d, lo, size):
    A(f's_mov_b32 s{d}, s{lo}\ns_mov_b32 s{d+1}, s{lo+1}\ns_mov_b32 s{d+2}, 0x{size:x}\ns_mov_b32 s{d+3}, 0x20000')
def flag(A, soff, tmp):
    A(f'v_mov_b32 v{tmp}, s60\nv_mov_b32 v{tmp+1}, s61\nv_mov_b32 v{tmp+2}, s60\nv_mov_b32 v{tmp+3}, s61\ns_waitcnt vmcnt({63 if "u" in OPT["ko"] else 0})\ns_mov_b64 exec, 0xff')
    A(f'buffer_store_dwordx4 v[{tmp}:{tmp+3}], v8, s[52:55], {soff} offen sc1')
    A('s_mov_b64 exec, -1')
def stream(fn, *a):
    L = []
    fn(lambda t: L.extend(x for x in t.split('\n') if x.strip()), *a)
    return L
def tr_lane(A, d, rowsh, hish):
    A(f'v_bfe_u32 v{d}, v1, 2, 2\nv_lshl_add_u32 v{d}, v11, {hish}, v{d}\nv_lshlrev_b32 v{d}, {rowsh}, v{d}')
def mfma32(d, a, b, c): return f'v_mfma_f32_32x32x16_bf16 {vr(d,16)}, {vr(a,4)}, {vr(b,4)}, {vr(c,16) if c is not None else "0"}'

def common(A):
    for r in range(16):
        for hi in range(2):
            m = 0
            for c in range(32):
                if rowof(r, hi) <= c: m |= 1 << c
            A(f's_mov_b32 s{64+2*r+hi}, 0x{m:x}')
    A(f's_mov_b32 s62, 0x{f2u(LOG2E):x}\ns_mov_b32 s63, 0x{f2u(2.0**100):x}\ns_mov_b32 s28, 0xffff\ns_mov_b32 s29, 0xffff')
    A(f'v_mov_b32 v{ONES}, 0x3f803f80')
    if OPT['oz']: A(f'v_and_b32 v{V1}, 11, v1\nv_cmp_eq_u32 vcc, 0, v{V1}\nv_cndmask_b32 v{ONES}, 0, v{ONES}, vcc')
    A(f'v_mov_b32 v{ONES+1}, v{ONES}\nv_mov_b32 v{V1}, 0xffff')
    for r in range(0, 16, 2): A(f'v_mov_b64 v[{VRING+r}:{VRING+r+1}], v[{ONES}:{ONES+1}]')
    for m in range(8): A(f'v_cndmask_b32_e64 v{PMASK+m}, 0, v{V1}, s[{64+4*m}:{65+4*m}]')
    for m in range(8): A(f'v_cndmask_b32_e64 v{PMASK+m}, v{PMASK+m}, -1, s[{66+4*m}:{67+4*m}]')
    A('s_and_b32 s21, s41, 3\ns_lshr_b32 s22, s41, 2\ns_lshl1_add_u32 s20, s22, s38')
    if OPT['kd']:
        A(f's_lshl1_add_u32 s98, s21, s22\ns_lshl_b32 s98, s98, 12\ns_add_u32 s98, s98, {PHI}')
        if OPT['pb']: A(f'v_lshrrev_b32 v{KVOFF}, 1, v10')
        A(f'v_and_b32 v{V1}, 17, v10\nv_cndmask_b32_e64 v{KVOFF}, v{V1}, v{KVOFF if OPT["pb"] else 10}, s[28:29]\nv_and_b32 v{V1}, 7, v{KVOFF}\nv_lshlrev_b32 v{KVS}, 2, v11\nv_xor_b32 v{V1}, v{V1}, v{KVS}')
        A(f'v_lshl_add_u32 v{KVOFF}, v{KVOFF}, 3, v{V1}\nv_lshl_add_u32 v{KVOFF}, v{KVOFF}, 4, s98')
        A(f'v_lshrrev_b32 v{KVS}, 3, v1\nv_xor_b32 v{KVS}, v{KVS}, v1\nv_lshlrev_b32 v{KVS}, 4, v{KVS}')
    else: A(f'v_and_b32 v{V1}, 1, v10\nv_add_u32 v{V1}, {AUX//128}, v{V1}\nv_cndmask_b32_e64 v{KVOFF}, v{V1}, v10, s[28:29]\nv_lshlrev_b32 v{KVOFF}, 7, v{KVOFF}\nv_lshl_add_u32 v{KVOFF}, v11, 6, v{KVOFF}')
    A(f's_lshl_b32 s24, s21, 10\ns_add_u32 s25, s24, {QX}\nv_add_u32 v{QRD}, s25, v8')
    A(f's_mul_i32 s25, s22, 12288\ns_add_u32 s24, s24, s25\ns_add_u32 s25, s24, {KL}\nv_add_u32 v{KRD}, s25, v8')
    A(f'v_and_b32 v{VRD}, 15, v1\nv_lshlrev_b32 v{VRD}, 4, v{VRD}\nv_lshl_add_u32 v{VRD}, v11, 8, v{VRD}\ns_add_u32 s25, s24, {VL}\nv_add_u32 v{VRD}, s25, v{VRD}')
    A(f'v_lshrrev_b32 v{WOL}, 3, v1\nv_and_b32 v{V0}, 7, v1\nv_bfe_u32 v{V1}, v1, 4, 1\nv_lshlrev_b32 v{V1}, 2, v{V1}\nv_xor_b32 v{V0}, v{V0}, v{V1}\nv_lshlrev_b32 v{V0}, 4, v{V0}\nv_lshl_add_u32 v{WOL}, v{WOL}, 10, v{V0}')
    A(f'v_mov_b32 v{V1}, 1\nv_mov_b32 v{V0}, 0\nv_mov_b64 v[52:53], 0\nv_mov_b64 v[54:55], 0')
    A(f's_lshl_b32 {S_T}, s39, 2\ns_add_u32 {S_T}, {S_T}, s21')
    A(f's_bfe_u32 s23, s36, 0x1000{5 - OPT["ob"]}\ns_lshr_b32 s24, s37, 3\ns_lshl2_add_u32 s23, s23, s24' if OPT['ob'] >= 4 else 's_lshr_b32 s23, s37, 2' if OPT['ob'] != 2 else 's_and_b32 s23, s36, 4\ns_lshr_b32 s24, s37, 3\ns_add_u32 s23, s23, s24')
    A(f's_lshl_b32 s23, s23, 7\nv_add_u32 v{WOL}, s23, v{WOL}\ns_and_b32 s24, {"s39" if OPT["ob"] == 2 else "s37"}, {7 if OPT["ob"] >= 4 else 3}\ns_lshl_b32 s24, s24, {3 if OPT["ob"] >= 4 else 4}\ns_add_u32 s24, s24, s21\ns_lshl_b32 {S_WO}, s24, 10')
    A(f's_lshl_b32 s24, s40, 1\ns_add_u32 s24, s24, s22\ns_mul_i32 {S_ACC}, s24, {ACCB}\ns_add_u32 {S_ACC}, {S_ACC}, {WS_ACC}')
    A(f's_lshl_b32 s24, s21, 1\ns_add_u32 s24, s24, s22\ns_lshl_b32 {S_FO}, s24, 15\ns_add_u32 {S_FO}, {S_FO}, {WS_O}\ns_lshl_b32 s24, s24, 7\ns_add_u32 {S_FC}, s24, {WS_F1 + 4096}')
    A(f's_lshl4_add_u32 s24, s38, s35\ns_lshl_b32 s24, s24, 10\ns_lshl_b32 s25, s39, {RBS}\ns_add_u32 s24, s24, s25\ns_add_u32 {S_OA}, s24, {S_FO}\ns_add_u32 {S_C3}, {S_FC}, s25')
    A(f's_lshl_b32 s24, s35, 15\ns_add_u32 s25, s25, s24\ns_and_b32 s24, s21, 2\ns_add_u32 s24, s24, s21\ns_add_u32 s24, s24, s24\ns_and_b32 s24, s24, 10\ns_lshl_b32 s24, s24, 11\ns_add_u32 s25, s25, s24')
    A(f's_and_b32 s24, s35, 1\ns_lshl_b32 s24, s24, 10\ns_add_u32 s25, s25, s24\ns_mul_i32 s24, s38, {TWIN}\ns_add_u32 s25, s25, s24\ns_add_u32 {S_QG}, s25, {WS_QG}')
    A(('s_and_b32 s24, s39, 12' if OPT['rm'] < 3 else 's_and_b32 s24, s36, 3\ns_lshl_b32 s24, s24, 2') + '\ns_xor_b32 s24, s24, 4')
    OB = OPT['ob']
    if OB == 0: A('s_and_b32 s25, s37, 3\ns_add_u32 s24, s24, s25\ns_lshr_b32 s22, s36, 2')
    elif OB >= 4: A(f's_and_b32 s25, s37, 4\ns_lshl_b32 s25, s25, {5 - OB}\ns_xor_b32 s24, s24, s25\ns_and_b32 s25, s37, 3\ns_add_u32 s24, s24, s25\ns_lshr_b32 s22, s36, 2')
    elif OB == 2: A('s_xor_b32 s24, s39, 4\ns_mov_b32 s22, s38')
    else: A(f's_lshr_b32 s25, s36, 2\ns_lshl1_add_u32 s24, s25, s24\ns_bfe_u32 s25, s37, 0x10001\ns_add_u32 s24, s24, s25\ns_xor_b32 s22, s38, {int(OB == 3)}')
    A(f's_lshl_b32 {S_OUT}, s24, {RBS}\ns_add_u32 {S_FC}, {S_FC}, {S_OUT}\ns_add_u32 {S_FO}, {S_FO}, {S_OUT}\ns_mul_i32 s25, s22, {TWIN}\ns_add_u32 {S_FO}, {S_FO}, s25')
    A(f's_lshl_b32 s25, s22, 10\ns_add_u32 {S_FC}, {S_FC}, s25\ns_add_u32 {S_OUT}, {S_OUT}, s25\ns_lshl_b32 s25, s21, 16\ns_add_u32 {S_OUT}, {S_OUT}, s25\ns_add_u32 {S_OUT}, {S_OUT}, s23')

def place(A, x):
    if OPT['pol'] != 2: return
    A(f's_lshr_b32 s24, s61, 14\ns_and_b32 s61, s61, 0xffff\ns_cmp_le_u32 s24, s61\ns_cbranch_scc1 L_pl{x}\ns_add_u32 s52, s52, 8192\ns_addc_u32 s53, s53, 0\ns_sub_u32 {S_ACC}, {S_ACC}, 8192')
    if x == 'c': A('s_lshl_b32 s24, s38, 13\ns_sub_u32 s31, s31, s24')
    A.label(f'L_pl{x}')

KARG = 's_load_dwordx16 s[4:19], s[0:1], 0\ns_load_dwordx4 s[20:23], s[0:1], 64'
ROLE = 's_add_u32 s24, s2, s60\ns_and_b32 s24, s24, 7\ns_cmp_lg_u32 s24, s99\n'
def wrong(A):
    A.label('L_wrong'); A.fence()
    A('s_mov_b32 s99, s24\ns_or_b32 s2, s2, 256\ns_setprio 0\ns_waitcnt vmcnt(0) lgkmcnt(0)\ns_barrier\ns_nop 15\n' + (KARG + '\n' if OPT['kf'] else '') + 's_branch L_restart')

def wo_srd(A):
    A(['s_cmp_lt_u32 s36, 4', 's_cmp_eq_u32 s38, 0', 's_cmp_eq_u32 s38, 0', 's_cmp_eq_u32 s38, 1', 's_cmp_lt_u32 s36, 4', 's_cmp_lt_u32 s36, 4'][OPT['ob']] + '\ns_cselect_b32 s44, s10, s16\ns_cselect_b32 s45, s11, s17\ns_mov_b32 s46, 0x80000\ns_mov_b32 s47, 0x20000')

WD = [int(c) for c in str(OPT['wd']) if c.isdigit()]
W0 = [int(c) for c in str(OPT['w0']) if c.isdigit()]
NWO = 4 * (bool(WD) + bool(W0))
def wo_dma(A, j, g=1):
    cnt = 0; n = 16 // max(1, len(WD) + len(W0))
    for k, x in enumerate(WD if g else W0):
        if x != j: continue
        for i in range(n):
            A(f's_xor_b32 m0, {S_WO}, {4096 * (n * (k + (len(W0) if g else 0)) + i)}\ns_lshl_b32 s24, m0, 3')
            if 'w' not in OPT['ko']: A(f'buffer_load_dwordx4 v{WOL}, s[44:47], s24 offen lds'); cnt += 1
    return cnt

def halo_edge(A, x):
    A(f's_cmp_lt_u32 s39, 2\ns_cbranch_scc1 L_nb{x}')
    A.label(f'L_nb2{x}')
    def edge():
        A.label(f'L_nb{x}'); A.fence(); A.raw(';PAD')
        A('v_mov_b32 v48, 0\nv_mov_b32 v49, 0\nv_mov_b32 v50, 0\nv_mov_b32 v51, 0\nv_add_u32 v7, s27, v8')
        for i in range(4): A(f'ds_write_b128 v7, v[48:51] offset:{i*1024}')
        A(f's_cmp_eq_u32 s39, 1\ns_cbranch_scc1 L_nb2{x}')
        for i in range(4, 8): A(f'ds_write_b128 v7, v[48:51] offset:{i*1024}')
        A(f's_branch L_nb2{x}')
    OOL.append(edge)
def halo_loads(x): return [([48, 50, 0][nb] + i, f's{9+nb}', 128*i) for nb in range(3 if x == 'A' else 2) for i in range(2)][-OPT['hl']:]
def halo_addr(A):
    A(f'v_and_b32 v55, 1, v1\nv_lshlrev_b32 v55, 7, v55\ns_mov_b64 exec, 3\nv_add_u32 v55, s9, v55\ns_mov_b64 exec, 12\nv_add_u32 v55, s10, v55\ns_mov_b64 exec, 48\nv_add_u32 v55, s11, v55\ns_mov_b64 exec, -1')
def halo_issue(A, x):
    if x in OPT['sp']: sp_issue(A, halo_loads(x)); return
    if x == 'B': halo_addr(A)
    A(f's_mov_b64 exec, {63 if x == "A" else 15}')
    poll_issue(A, PD, 55, '0', 's60')
    A('s_mov_b64 exec, -1')
def halo_fetch(A, x, first=0):
    t = 's_xor_b64 s[48:49], s[48:49], s[60:61]\ns_xor_b64 s[50:51], s[50:51], s[60:61]\ns_or_b64 s[48:49], s[48:49], s[50:51]'
    if x == 'A': t += '\ns_xor_b64 s[0:1], s[0:1], s[60:61]\ns_or_b64 s[48:49], s[48:49], s[0:1]'
    if OPT['hl']: t = f's_cmp_lg_u32 s{halo_loads(x)[-1][0]}, s60'
    if x in OPT['sp']: sp_wait(A, halo_loads(x), t)
    else:
        A(f's_mov_b64 exec, {63 if x == "A" else 15}')
        if 'p' not in OPT['ko']: poll(A, PD, 55, '0', 's60', inline=True, first=first)
        A('s_mov_b64 exec, -1')
    halo_dma(A, x, x)
def halo_dma(A, x, u):
    stamp(A, 5)
    for nb in range(3 if x == 'A' else 2):
        if nb < 2: A(f's_cmp_lt_u32 s39, {2-nb}\ns_cbranch_scc1 L_sk{nb}{u}')
        A(f's_sub_u32 s25, s33, {(2-nb) << RBS}\ns_add_u32 m0, s27, {nb*4096}')
        for i in range(4 * ('h' not in OPT['ko'])): A(f'buffer_load_dwordx4 v8, s[52:55], s25 offen offset:{i*1024} sc1 lds')
        if nb < 2: A.label(f'L_sk{nb}{u}')
    stamp(A, 7)

def gen(A):
    name = NAME
    WSZ = WS_SIZE if not OPT['stamps'] else 0x2000000
    A.raw(f'.globl {name}\n.p2align 12\n.type {name},@function\n{name}:')
    stamp(A, 30)
    if OPT['kf']: A(KARG)
    A('s_cmp_ge_u32 s2, 256\ns_cbranch_scc1 L_end')
    A('s_getreg_b32 s99, hwreg(HW_REG_XCC_ID, 0, 3)' if OPT['rot'] else 's_and_b32 s99, s2, 7')
    if OPT['mis']: A(f's_lshr_b32 s3, s2, {OPT["mis"]}\ns_add_u32 s99, s99, s3\ns_and_b32 s99, s99, 7')
    if OPT['sx']: A('v_xor_b32 v0, 0x100, v0')
    A.label('L_restart')
    if not OPT['kf']: A(KARG)
    if OPT['pfc'] == 2:
        A('s_getpc_b64 s[24:25]')
        A.label('L_pc0')
        A(f's_and_b32 s3, s2, 0xf8\ns_lshl_b32 s3, s3, 4\nv_lshl_add_u32 v13, v0, 12, s3\nv_min_u32 v13, L_cold-L_pc0-4, v13\nv_cmp_gt_u32 vcc, 7, v0\ns_and_b64 exec, exec, vcc\ns_cbranch_scc0 L_pc1')
        A('global_load_dword v255, v13, s[24:25]')
        A.label('L_pc1')
        A('s_mov_b64 exec, -1')
    A('v_lshrrev_b32 v2, 6, v0\nv_and_b32 v1, 63, v0')
    A('s_lshl_b32 s36, s99, 2\ns_lshr_b32 s36, 0x76325410, s36\ns_and_b32 s36, s36, 7\ns_bfe_u32 s37, s2, 0x50003')
    A('v_readfirstlane_b32 s41, v2')
    RM = OPT['rm']
    if RM == 0: A('s_and_b32 s38, s37, 1')
    else: A('s_lshr_b32 s38, s36, 2' + ('' if RM & 1 else '\ns_xor_b32 s38, s38, 1'))
    if RM < 3: A('s_and_b32 s39, s36, 3\ns_lshl_b32 s39, s39, 2\ns_bfe_u32 s42, s37, 0x20001\ns_add_u32 s39, s39, s42')
    else: A('s_and_b32 s39, s36, 2\ns_lshl_b32 s39, s39, 2\ns_and_b32 s42, s37, 7\ns_add_u32 s39, s39, s42')
    if RM == 0: A('s_lshl_b32 s35, s38, 2\ns_xor_b32 s35, s35, s36\ns_and_b32 s35, s35, 4\ns_lshr_b32 s42, s37, 3\ns_add_u32 s35, s35, s42')
    else: A(f's_and_b32 s35, {"s37" if RM < 3 else "s36"}, 1\ns_lshr_b32 s42, s37, 3\ns_lshl2_add_u32 s35, s35, s42')
    A('s_lshl_b32 s40, s35, 1\ns_add_u32 s40, s40, s38')
    A('v_lshlrev_b32 v8, 4, v1\nv_and_b32 v10, 31, v1\nv_lshrrev_b32 v11, 5, v1')
    A('s_cmp_lt_u32 s41, 4\ns_cbranch_scc1 L_cpre')
    if OPT['sp0']: A(f's_setprio {OPT["sp0"]}')
    A('s_mov_b32 s46, 0x200000\ns_mov_b32 s47, 0x20000\ns_mov_b32 s50, 0x180000\ns_mov_b32 s51, 0x20000')
    A('s_sub_u32 s43, s41, 4')
    A('v_lshrrev_b32 v3, 3, v1\nv_and_b32 v4, 7, v1\nv_lshrrev_b32 v5, 4, v1')
    if 'z' in OPT['ko']: A('v_mov_b32 v5, 0')
    A('v_xor_b32 v6, v4, v5\nv_lshlrev_b32 v6, 4, v6\nv_lshl_add_u32 v6, v3, 10, v6')
    A('s_lshl_b32 s24, s39, 17\ns_lshl_b32 s25, s43, 15\ns_add_u32 s24, s24, s25')
    A('v_add_u32 v16, s24, v6\nv_xor_b32 v17, 64, v16\nv_add_u32 v17, 8192, v17\nv_add_u32 v18, 16384, v16\nv_add_u32 v19, 16384, v17')
    A('v_and_b32 v5, 1, v5\nv_lshlrev_b32 v5, 2, v5\nv_xor_b32 v4, v4, v5\nv_mul_u32_u24 v3, 3072, v3\nv_lshl_add_u32 v3, v4, 4, v3')
    A('s_mul_i32 s24, s43, 49152\ns_lshl_b32 s25, s35, 7\ns_add_u32 s24, s24, s25')
    A('v_add_u32 v20, s24, v3\nv_xor_b32 v21, 32, v20\nv_add_u32 v21, 24576, v21')
    A(f's_lshl_b32 s30, s43, 12\ns_lshl_b32 s31, s43, 11')
    A(f's_add_u32 s26, s39, s35\ns_and_b32 s26, s26, {OPT["grp"]}\ns_lshl_b32 s26, s26, {OPT["gsh"]}')
    if OPT['lin']:
        c = [int(x) for x in OPT['lin'][1:]]
        T = sum((c[0]*(i >> 1 & 1) ^ c[1]*(i >> 2 & 1) ^ c[2]*(i >> 3 & 1) ^ c[3]*(i & 1)) << (2*i) for i in range(16))
        if RM: A(f's_bfe_u32 s27, s37, 0x1000{OPT["rl"]}')
        A(f's_lshl1_add_u32 s27, s36, {"s27" if RM else "s38"}\ns_lshl_b32 s27, s27, 1\ns_lshr_b32 s27, 0x{T:x}, s27\ns_and_b32 s27, s27, 3\ns_lshl_b32 s27, s27, 7\ns_xor_b32 s26, s26, s27')
        OPT['xa'] = -1; OPT['xm'] = 0
    if OPT['xa'] >= 0: A(f's_lshl_b32 s27, s38, {OPT["xa"]}\ns_xor_b32 s26, s26, s27')
    if OPT['xm']: A(f's_and_b32 s27, s36, {OPT["xm"]}\ns_lshl_b32 s27, s27, {OPT["xs"]}\ns_xor_b32 s26, s26, s27')
    if OPT['ot']:
        T = [sum(int(c) << (4*i) for i, c in enumerate(o)) for o in OPT['ot'].split('.')]
        assert all(sorted(o) == list('01234567') for o in OPT['ot'].split('.'))
        A(f's_add_u32 s24, s39, s35\ns_mov_b32 s34, 0x{T[0]:x}\ns_mov_b32 s25, 0x{T[2]:x}\ns_bitcmp0_b32 s24, 0\ns_cselect_b32 s34, s34, 0x{T[1]:x}\ns_cselect_b32 s25, s25, 0x{T[3]:x}\ns_bitcmp0_b32 s24, 1\ns_cselect_b32 s34, s34, s25')
    A('s_cmp_eq_u32 s38, 0')
    A('s_waitcnt lgkmcnt(0)')
    A('s_cselect_b32 s44, s12, s4\ns_cselect_b32 s45, s13, s5\ns_cselect_b32 s48, s14, s6\ns_cselect_b32 s49, s15, s7')
    stamp(A, 0); stamp(A, 60)
    ORD = [int(c) for c in str(OPT['order']).zfill(8)]
    vq = Q(A, 'vmcnt', 63)
    def wsoff(st):
        if OPT['ot']: A(f's_bfe_u32 s32, s34, 0x{0x30000 + 4*st:x}\ns_lshl_b32 s32, s32, 7\ns_xor_b32 s32, s26, s32\ns_mul_i32 s33, s32, 1536')
        else: A(f's_xor_b32 s32, s26, {st*128}\ns_mul_i32 s33, s32, 1536')
    LT = []
    nis = [0]; cur = [-1]
    def issue(upto):
        while nis[0] < min(upto, 80):
            n = nis[0]; nis[0] += 1
            s, i = divmod(n, 8)
            if OPT['po'] and n < OPT['pn']:
                PO = [int(c, 16) for c in OPT['po'][1:]]
                s, i = divmod(n // 16 * 16 + PO[n % 16], 8)
                if cur[0] != s and i: wsoff(ORD[s])
                cur[0] = s
            base = RING[s % 4]
            if s >= 8:
                if n == 64 and OPT['qr']:
                    assert ORD == list(range(8)) and not OPT['ot']
                    A('s_add_u32 s24, s39, s35\ns_and_b32 s24, s24, 2\ns_lshl_b32 s25, s24, 7\ns_xor_b32 s26, s26, s25\ns_lshl_b32 s25, s24, 13\ns_xor_b32 s31, s31, s25')
                if i % 2 == 0: wsoff(ORD[4*(s-8) + i//2])
                A(f's_xor_b32 m0, s31, {base + (i//2)*8192 + (i%2)*1024}')
                A(f'buffer_load_dwordx4 v{20+i%2}, s[48:51], s33 offen lds')
            elif i < 4:
                if i == 0: wsoff(ORD[s])
                A(f's_add_u32 m0, s30, {base + i*1024}')
                A(f'buffer_load_dwordx4 v{16+i}, s[44:47], s32 offen lds')
            else:
                seg = i // 2 - 1
                A(f's_add_u32 m0, s31, {base + 8192 + seg*7168 + (i%2)*1024}')
                A(f'buffer_load_dwordx4 v{20+i%2}, s[48:51], s33 offen offset:{seg*1024} lds')
            vq.push(('st', s))
            if n % 2 and n < 38: stamp(A, 61 + n//2)
            if n >= OPT['cst']:
                for _ in range(OPT['cn']):
                    if LT: A(LT.pop(0))
    issue(OPT['n0'])
    stamp(A, 1)
    srd(A, 52, 22, WSZ); srd(A, 56, 20, 0x100)
    if OPT['pol'] == 1: A('s_add_u32 s52, s52, 8192\ns_addc_u32 s53, s53, 0')
    A('s_branch L_load')
    A.label('L_cpre'); A.fence()
    if OPT['sx']: A('s_setprio 1')
    A('s_lshr_b32 s42, s41, 1\ns_and_b32 s43, s41, 1')
    for r in range(0, 8, 2): A(f'v_mov_b64 v[{16+r}:{17+r}], 0')
    A(f's_lshl_b32 s24, s35, 1\ns_add_u32 s24, s24, s43\ns_lshl_b32 s34, s39, {RBS}')
    A('s_lshl_b32 s25, s42, 11\ns_lshl_b32 s32, s24, 14\ns_add_u32 s32, s32, s25\ns_add_u32 s32, s32, s34')
    A(f's_lshl_b32 s24, s24, 1\ns_add_u32 s24, s24, s42\ns_lshl_b32 s24, s24, 7\ns_add_u32 s34, s34, s24\ns_add_u32 s34, s34, {WS_F1}')
    A('s_waitcnt lgkmcnt(0)')
    srd(A, 52, 22, WSZ); srd(A, 56, 20, 0x100)
    if OPT['pol'] == 1: A('s_add_u32 s52, s52, 8192\ns_addc_u32 s53, s53, 0')
    A('s_cmp_lg_u32 s41, 0\ns_cbranch_scc1 L_d1')
    if OPT['pfc'] == 1:
        A('s_getpc_b64 s[24:25]')
        A.label('L_pc0')
        A(f's_add_u32 s24, s24, {name}-L_pc0\ns_addc_u32 s25, s25, -1')
        A(f's_lshl_b32 s30, s37, 7\nv_lshlrev_b32 v13, 12, v1\nv_add_u32 v13, s30, v13\nv_min_u32 v13, L_cold-{name}-4, v13\ns_mov_b64 exec, 0xff')
        A('global_load_dword v255, v13, s[24:25]')
        A('s_mov_b64 exec, -1')
    srd(A, 44, 8, 0x4000)
    A(f's_lshl_b32 s24, s35, 11\ns_mov_b32 m0, {WPH}')
    for i in range(2): A(f'buffer_load_dwordx4 v8, s[44:47], s24 offen offset:{i*1024} lds')
    A(f'v_mov_b32 v12, {TAG}\nv_lshl_add_u32 v12, v1, 2, v12\ns_mov_b32 exec_hi, 0\nds_write_b32 v12, v16\ns_mov_b64 exec, -1')
    A.label('L_d1'); A.fence()
    A('s_cmp_lg_u32 s41, 1\ns_cbranch_scc1 L_d2\ns_cmp_ge_u32 s2, 32\ns_cbranch_scc1 L_d2')
    A(f's_mul_i32 s24, s2, {ACCB}\ns_add_u32 s24, s24, {WS_ACC}')
    A('buffer_store_dwordx4 v[16:19], v8, s[52:55], s24 offen sc1\nbuffer_store_dwordx4 v[16:19], v8, s[52:55], s24 offen offset:1024 sc1')
    A(f's_add_u32 s24, s24, {AUX}\ns_lshr_b32 s25, s2, 1\ns_lshl_b32 s25, s25, {RBS}\ns_and_b32 s3, s2, 1\ns_lshl_b32 s3, s3, 13\ns_add_u32 s25, s25, s3\ns_add_u32 s25, s25, {WS_F1}\ns_add_u32 s3, s25, 4096')
    A('buffer_store_dwordx4 v[16:19], v8, s[52:55], s3 offen sc1\nbuffer_store_dwordx4 v[16:19], v8, s[52:55], s3 offen offset:1024 sc1')
    if OPT['fw']:
        for i in range(4): A(f'buffer_store_dwordx4 v[16:19], v8, s[52:55], s25 offen offset:{i*1024} sc1')
    A('s_mov_b64 exec, 0xff00')
    for r in range(4): A(f'v_mov_b32 v{20+r}, 1.0')
    A('s_mov_b64 exec, -1')
    A('buffer_store_dwordx4 v[20:23], v8, s[52:55], s24 offen sc1')
    A.label('L_d2'); A.fence()
    DYN = OPT['pol'] == 2
    if DYN:
        A(f's_cmp_lg_u32 s41, 2\ns_cbranch_scc1 L_d21\ns_sub_u32 s24, s2, {OPT["vb"]}\ns_cmp_ge_u32 s24, 32\ns_cbranch_scc1 L_d21')
        A(f's_and_b32 s24, s37, 2\ns_add_u32 s24, s24, s37\ns_add_u32 s24, s24, s24\ns_and_b32 s24, s24, 10\ns_lshl_b32 s24, s24, 11\ns_lshl_b32 s26, s36, 8\ns_add_u32 s26, s26, s24\ns_add_u32 s26, s26, {WS_PR}')
        A('s_buffer_load_dword s60, s[52:55], s26 glc\ns_buffer_load_dword s60, s[52:55], s26 offset:8192 glc')
        A.label('L_d21'); A.fence()
    A('s_cmp_lg_u32 s41, 3\ns_cbranch_scc1 L_d3\ns_cmp_lg_u32 s2, 0\ns_cbranch_scc1 L_d3')
    A(f's_mov_b32 s24, {WS_EP}\nbuffer_load_dword v{PD}, v16, s[52:55], s24 offen sc1')
    A.label('L_d3'); A.fence()
    wo_srd(A)
    if OPT['mt'] & 1: A('s_cmp_eq_u32 s38, 0\ns_cselect_b32 s48, s14, s6\ns_cselect_b32 s49, s15, s7\ns_mov_b32 s50, 0x180000\ns_mov_b32 s51, 0x20000')
    def touch(k):
        if not OPT['mt'] & k: return
        A(f's_cmp_lg_u32 s41, 0\ns_cbranch_scc1 L_mt{k}\ns_mov_b32 exec_hi, 0')
        if k == 1: A('s_mul_i32 s24, s39, 98304\ns_lshl_b32 s25, s35, 7\ns_add_u32 s24, s24, s25\nv_mul_u32_u24 v254, 3072, v1\nbuffer_load_dword v255, v254, s[48:51], s24 offen')
        else: A('s_and_b32 s24, s36, 3\ns_lshl_b32 s24, s24, 2\ns_and_b32 s25, s37, 3\ns_add_u32 s24, s24, s25\ns_lshl_b32 s24, s24, 15\ns_lshr_b32 s25, s37, 2\ns_lshl_b32 s25, s25, 7\ns_add_u32 s24, s24, s25\nv_lshlrev_b32 v254, 10, v1\nbuffer_load_dword v255, v254, s[44:47], s24 offen')
        A('s_mov_b64 exec, -1')
        A.label(f'L_mt{k}')
    if OPT['mq'] < 0: touch(1)
    if OPT['mo'] < 0: touch(2)
    stamp(A, 0)
    common(A)
    if OPT['tl']:
        A('s_cmp_lg_u32 s41, 0\ns_cbranch_scc1 L_tl')
        if OPT['tl'] & 1: A('v_lshlrev_b32 v12, 20, v1\ns_mov_b64 exec, 0xffffff\nbuffer_load_dword v255, v12, s[52:55], 0 offen offset:3968 sc1')
        A('s_mov_b64 exec, 1')
        if OPT['tl'] & 2: A(f'buffer_load_dword v255, v{WOL}, s[44:47], 0 offen')
        if OPT['tl'] & 4:
            srd(A, 48, 18, 0x400000)
            A(f'buffer_load_dword v255, v{V0}, s[48:51], {S_OUT} offen sc1')
        A('s_mov_b64 exec, -1')
        A.label('L_tl')
    A('v_lshrrev_b32 v4, 4, v1\nv_bfe_u32 v12, v1, 1, 3\nv_xor_b32 v12, v12, v4\nv_and_b32 v13, 15, v1\nv_lshl_add_u32 v12, v13, 3, v12')
    A('s_lshl_b32 s24, s42, 13\nv_lshl_add_u32 v2, v12, 4, s24\nv_xor_b32 v3, 64, v2')
    A('v_bfe_u32 v12, v1, 2, 2\nv_lshl_add_u32 v12, v4, 3, v12\nv_lshlrev_b32 v12, 7, v12')
    A('v_bfe_u32 v13, v1, 3, 1\nv_xor_b32 v13, s43, v13\nv_lshl_add_u32 v12, v13, 6, v12')
    A('v_bfe_u32 v13, v1, 4, 1\nv_lshl_add_u32 v12, v13, 5, v12\nv_and_b32 v14, 3, v1\nv_lshl_add_u32 v6, v14, 3, v12')
    A('v_bfrev_b32 v4, v14\nv_lshrrev_b32 v4, 27, v4\nv_add_u32 v4, v4, v12')
    tr_lane(A, 9, 5, 2)
    A(f'v_lshl_add_u32 v9, v14, 3, v9\ns_lshl_b32 s24, s43, 10\ns_add_u32 s24, s24, {WPH}\nv_add_u32 v9, s24, v9')
    A(f'v_mov_b32 v15, {TAG}')
    A('s_and_b32 s24, s38, s42\ns_lshl_b32 s25, s24, 5\nv_xor_b32 v4, s25, v4\nv_xor_b32 v6, s25, v6\ns_lshl_b32 s25, s24, 9\nv_xor_b32 v9, s25, v9\nv_xor_b32 v14, 512, v9')
    A('v_xor_b32 v5, 32, v4\nv_xor_b32 v7, 32, v6')
    for r in range(6): A(f'v_add_u32 v{160+r}, 0x10000, v{2+r}')
    A(f's_lshl_b32 s24, s39, {RBS}\ns_lshl_b32 s25, s40, 8\ns_add_u32 s11, s25, s24\ns_add_u32 s11, s11, {WS_F1}')
    A(f's_lshl_b32 s33, s40, 14\ns_add_u32 s33, s33, s24\ns_lshl_b32 s25, s43, 12\ns_add_u32 s33, s33, s25\ns_mul_i32 s25, s42, {TWIN}\ns_add_u32 s33, s33, s25\ns_mul_i32 s27, s41, 12288\ns_add_u32 s27, s27, {KL}')
    A(f's_min_u32 s24, s39, 2\ns_lshl_b32 s24, s24, {RBS}\ns_sub_u32 s9, s11, s24\ns_min_u32 s24, s24, {1 << RBS}\ns_sub_u32 s10, s11, s24')
    A('s_cmp_eq_u32 s38, 1\ns_cbranch_scc1 L_cpA')
    A('v_and_b32 v12, 15, v1\nv_lshlrev_b32 v12, 4, v12\nv_lshl_add_u32 v12, v11, 8, v12\nv_lshl_add_u32 v52, v13, 12, v12')
    A(f's_lshl_b32 s25, s42, 11\nv_mul_u32_u24 v13, 12288, v13\nv_add_u32 v12, v12, v13\ns_add_u32 s24, s25, {VL + 8192}\nv_add_u32 v53, s24, v12')
    A(f's_add_u32 s24, s25, {KL + 8192}\nv_add_u32 v54, s24, v8\ns_add_u32 s30, s32, 4096\ns_add_u32 s31, s32, {TWIN}')
    A('s_branch L_cpd')
    A.label('L_cpA'); A.fence()
    for r in range(0, 32, 2): A(f'v_mov_b64 v[{168+r}:{169+r}], v[{ONES}:{ONES+1}]')
    A(f's_mul_i32 s30, s41, {PHI_WAVE}\ns_add_u32 s30, s30, {PHI}')
    A('v_and_b32 v12, 1, v1\nv_lshlrev_b32 v12, 4, v12\nv_mov_b32 v13, 0x3f80\nv_lshlrev_b32 v13, v12, v13')
    A('v_lshlrev_b32 v12, 4, v11\nv_sub_u32 v12, v10, v12\nv_lshrrev_b32 v12, 1, v12')
    for r in range(8): A(f'v_cmp_eq_u32 vcc, {r}, v12\nv_cndmask_b32 v{SEL+r}, 0, v13, vcc')
    A(f'v_lshlrev_b32 v54, 2, v10\nv_lshl_add_u32 v54, v11, {9 - OPT["pb"]}, v54')
    A(f'v_add_u32 v52, s30, v8\ns_xor_b32 s24, s41, 2\ns_mul_i32 s25, s24, {PHI_WAVE}\ns_add_u32 s25, s25, {PHI}\nv_add_u32 v53, s25, v8')
    A('v_and_b32 v12, 31, v1\nv_lshl_add_u32 v12, v12, 1, v11\nv_lshl_add_u32 v251, v12, 3, s30\nv_and_b32 v12, 15, v1\nv_lshl_add_u32 v12, v11, 4, v12\nv_lshl_add_u32 v55, v12, 4, s30')
    A(f's_lshl_b32 s24, s35, 2\ns_lshl_b32 s25, s43, 1\ns_add_u32 s24, s24, s25\ns_add_u32 s24, s24, s42\ns_xor_b32 s24, s24, 1\ns_mul_i32 s31, s24, {ACCB}\ns_add_u32 s31, s31, {WS_ACC}')
    A.label('L_cpd'); A.fence()
    def padwalk(k):
        if not OPT['pads']: return
        A('s_mov_b64 exec, 0')
        for w in range(3): A(f's_cmp_eq_u32 s41, {w}\ns_cbranch_scc1 L_chain{4*k+w}')
        A(f's_branch L_chain{4*k+3}')
        A.label(f'L_padret{k}')
        A('s_mov_b64 exec, -1')
    def duties():
        A('s_cmp_lt_u32 s2, 32\ns_cbranch_scc1 L_d4')
        A.label('L_d5')
        def f():
            A.label('L_d4'); A.fence(); A.raw(';PAD')
            A('s_mov_b64 exec, 1\ns_cmp_lg_u32 s41, 1\ns_cbranch_scc1 L_d6')
            A(f's_waitcnt vmcnt(0)\nbuffer_atomic_add v{V1}, v{V0}, s[56:59], 0 offen offset:4')
            A.label('L_d6')
            A('s_cmp_lg_u32 s41, 3\ns_cbranch_scc1 L_d7\ns_cmp_lg_u32 s2, 0\ns_cbranch_scc1 L_d7')
            A(f's_waitcnt vmcnt(0)\nv_add_u32 v{PD}, 8, v{PD}\nv_and_b32 v{PD}, -8, v{PD}\nv_max_u32 v{PD}, 8, v{PD}\nv_or_b32 v{PD}, s99, v{PD}\ns_mov_b32 s24, {WS_EP}')
            A(f'buffer_store_dword v{PD}, v{V0}, s[56:59], 0 offen sc1')
            A(f'buffer_store_dword v{PD}, v{V0}, s[52:55], s24 offen sc1')
            A.label('L_d7')
            A('s_mov_b64 exec, -1\ns_branch L_d5')
        OOL.insert(0, f)
    def clear():
        if not OPT['ua']: return
        A(f'v_mov_b64 v[56:57], -1\nv_mov_b64 v[58:59], -1\ns_add_u32 s24, {S_OA}, 0x4000\ns_add_u32 s25, {S_OA}, 0x200000\ns_add_u32 s3, {S_OA}, 0x204000')
        for so in (S_OA, 's24', 's25', 's3'): A(f'buffer_store_dwordx4 v[56:59], v8, s[52:55], {so} offen sc1')
    if DYN:
        A(f's_cmp_lg_u32 s41, 2\ns_cbranch_scc1 L_d8\ns_sub_u32 s24, s2, {OPT["vb"]}\ns_cmp_ge_u32 s24, 32\ns_cbranch_scc1 L_d8\ns_mov_b64 s[24:25], -1\ns_waitcnt lgkmcnt(0)')
        stamp(A, 27)
        A('s_memtime s[96:97]')
        for r in range(2 * OPT['nrep']):
            a, b = (96, 22) if r % 2 == 0 else (22, 96)
            A(f's_waitcnt lgkmcnt(0)\ns_buffer_load_dword s60, s[52:55], s26 offset:{8192 * (r % 2)} glc\ns_waitcnt lgkmcnt(0)\ns_memtime s[{b}:{b+1}]\ns_waitcnt lgkmcnt(0)')
            A(f's_sub_u32 s3, s{b}, s{a}\ns_min_u32 s{24 + r % 2}, s{24 + r % 2}, s3')
        A('s_cmp_gt_u32 s24, s25\ns_cselect_b32 s3, 2, 0\ns_xor_b32 s3, s3, s36\ns_and_b32 s3, s3, 2\ns_lshl_b32 s3, s3, 15\ns_add_u32 s3, s3, 1')
        A(f'v_mov_b32 v{PD}, s3\ns_mov_b64 exec, 1\nbuffer_atomic_add v{PD}, v{V0}, s[56:59], 0 offen offset:4\ns_mov_b64 exec, -1')
        stamp(A, 28)
        A.label('L_d8'); A.fence()
    padwalk(0)
    if OPT['pw2'] < 0: padwalk(1)
    if OPT['dpos'] < 0: duties()
    A('s_branch L_cons')
    A.label('L_load'); A.fence()
    if OPT['sprio']: A(f's_setprio {OPT["sprio"]}')
    for r in (52, 54, 242, 244, 246, 248): A(f'v_mov_b64 v[{r}:{r+1}], 0')
    A(f'v_bfe_u32 v12, v1, 1, 3\nv_xor_b32 v12, v12, v11\nv_lshlrev_b32 v12, 4, v12')
    A('v_lshl_add_u32 v13, v10, 7, s30')
    for ks in range(4): A(f'v_xor_b32 v14, {ks*32}, v12\nv_add_u32 v{2+ks}, v13, v14')
    for ks in range(4): A(f'v_add_u32 v{12+ks}, 0x10000, v{2+ks}')
    def later(E):
        common(E)
        tr_lane(E, 6, 7, 3)
        E('v_bfe_u32 v7, v1, 3, 1\nv_xor_b32 v7, s38, v7\nv_lshl_add_u32 v6, v7, 6, v6')
        E('v_bfe_u32 v7, v1, 4, 1\nv_xor_b32 v7, v7, v11\nv_lshl_add_u32 v6, v7, 5, v6\nv_and_b32 v7, 3, v1\nv_lshl_add_u32 v7, v7, 3, v6\nv_xor_b32 v6, 64, v7')
        E(f's_mul_i32 s9, s38, {2*TWIN}\ns_sub_u32 s9, {TWIN}, s9\ns_add_u32 s9, s9, {S_QG}')
    LT.extend(stream(later))
    LA = [int(c, 36) for c in str(OPT['la'])]
    XF = 64
    for s in range(8):
        assert LA[s] <= 16
        issue(8*s + 8 + LA[s])
        vq.wait(('st', s))
        A('s_waitcnt lgkmcnt(0)\ns_barrier')
        stamp(A, 32 + s)
        for ks in range(4):
            A(f'ds_read_b128 {vr(XF + 16*s + 4*ks, 4)}, v{(2 if RING[s % 4] < 65536 else 12) + ks} offset:{RING[s % 4] & 65535}')
        if s == OPT['tagl']: A('s_buffer_load_dwordx2 s[60:61], s[56:59], 0')
        if s == 6:
            assert not LT and OPT['tagl'] < 6
            TST = f's_and_b32 s24, s61, 0xffff\ns_cmp_lg_u32 s60, 0\ns_cselect_b32 s24, s24, 0\ns_cmp_lt_u32 s24, {64 if DYN else 32}'
            A(TST + '\ns_cbranch_scc1 L_tgw')
            A.label('L_tgd')
            A(f'v_mov_b32 v22, {TAG}\nv_mov_b32 v24, s60\nv_mov_b32 v25, s61\nds_write_b64 v22, v[24:25]')
            place(A, 'l')
            def tgw():
                A.label('L_tgw'); A.fence()
                A(f's_mov_b32 s3, {SPIN_MAX}')
                A.label('L_tg')
                if OPT['dg']: A(f's_mov_b64 exec, 1\nbuffer_atomic_add v{V1}, v{V0}, s[56:59], 0 offen offset:8\ns_mov_b64 exec, -1')
                A(f's_sleep 1\nbuffer_load_dwordx2 v[24:25], v{V0}, s[56:59], 0 offen sc1\ns_waitcnt vmcnt(0)\nv_readfirstlane_b32 s60, v24\nv_readfirstlane_b32 s61, v25')
                A(TST + '\ns_cselect_b32 s3, s3, 0\ns_sub_u32 s3, s3, 1\ns_cbranch_scc0 L_tg\ns_branch L_tgd')
            OOL.append(tgw)
    if OPT['e0w'] == 0:
        issue(OPT['e0n'])
        A(ROLE + 's_cbranch_scc1 L_wrong\ns_waitcnt lgkmcnt(0)\ns_barrier')
    issue(80)
    if OPT['sprio'] and OPT['spo']: A('s_setprio 0')
    wo_srd(A)
    def awtouch():
        A('s_lshr_b32 s24, s37, 1\ns_lshl_b32 s24, s24, 2\ns_add_u32 s24, s24, s43\ns_xor_b32 s25, s38, 1\ns_lshl_b32 s25, s25, 6\ns_add_u32 s24, s24, s25\ns_lshl_b32 s24, s24, 13\nv_lshl_add_u32 v28, v1, 7, s24')
        A('buffer_load_dword v255, v28, s[44:47], 0 offen'); vq.push('aw')
    if OPT['aw'] == 1: awtouch()
    A(f's_cmp_eq_u32 s38, 0\ns_cselect_b32 s27, 0x{f2u(0.25*LOG2E):x}, {"s62" if OPT["fq"] else "1.0"}')
    vq.wait(('st', 7 + max(1, OPT['e0w'])))
    if OPT['e0w']: A('s_waitcnt lgkmcnt(0)\ns_barrier')
    else:
        lds_add(A, C_WQ, 22)
        lds_spin(A, C_WQ, 4, 22, 23, sleep=bool(OPT['wqs']))
    stamp(A, 40)
    stamp(A, 42); stamp(A, 2)
    if OPT['sprio']: A('s_setprio 0')
    if OPT['lprio']:
        if not OPT['aprio']: A('s_cmp_eq_u32 s38, 1\ns_cbranch_scc1 L_noprio')
        A(f's_setprio {OPT["lprio"]}')
        A.label('L_noprio')
    lq = Q(A, 'lgkmcnt', 15)
    NR = 6; WF = 192; QD = OPT['qd']
    def qread(m):
        n = m % 32; f = WF + 4 * (m % NR)
        for rd in range(2):
            A(f'ds_read_b64_tr_b16 v[{f+2*rd}:{f+2*rd+1}], v{6 + m//32} offset:{n*2048 + rd*512}'); lq.push(('q', m))
    for m in range(QD): qread(m)
    ep = []
    for h in range(3):
        rr = range(3*h, min(3*h + 3, 8))
        ep += [f'v_mul_f32 v{32+2*r+e}, s27, v{32+2*r+e}' for r in rr for e in range(2)] + [f'v_cvt_pk_bf16_f32 v{16+GR[r]}, v{32+2*r}, v{33+2*r}' for r in rr]
        if h < OPT['ng'] and 'Q' not in OPT['ko']: ep += [f'buffer_store_dwordx4 {vr(16+4*h,4)}, v8, s[52:55], s9 offen offset:{h*1024} sc1']
    for m in range(64):
        lq.wait(('q', m))
        acc = 32 + 16 * (m // 32)
        if 'c' in OPT['ko'] and m % 32: A('s_nop 7')
        else: A(mfma32(acc, WF + 4*(m % NR), XF + 4*(m % 32), acc if m % 32 else None))
        if m == 16 - QD - 4 and OPT['e0w'] < 2:
            vq.wait(('st', 9))
            lds_add(A, C_WQ2, 22); lq.push('cnt')
        if m + QD == 16 and OPT['e0w'] < 2:
            lds_spin(A, C_WQ2, 4, 22, 23, sleep=False); lq.q = []
            stamp(A, 41); stamp(A, 22)
        if m + QD < 64: qread(m + QD)
        if m >= 32:
            for _ in range(OPT['epn']):
                if ep: A(ep.pop(0))
        if m == OPT['aw'] and m > 1: awtouch()
        if m == 31: stamp(A, 23)
        if m == 33: stamp(A, 24)
        if m == 20:
            for r in (19, 23, 26, 27): A(f'v_mov_b32 v{r}, s60')
        if m == 44:
            tr_lane(A, 15, 5, 2)
            A(f'v_and_b32 v14, 3, v1\nv_lshl_add_u32 v15, v14, 3, v15\ns_lshl_b32 s24, s38, 10\ns_add_u32 s24, s24, {WPH}\nv_add_u32 v15, s24, v15')
        if m == 46:
            for hs in range(2):
                for rd in range(2): A(f'ds_read_b64_tr_b16 v[{16+4*hs+2*rd}:{17+4*hs+2*rd}], v15 offset:{hs*512 + rd*256}'); lq.push('wphi')
        if m == OPT['qpoll'] or m == OPT['bq']:
            if OPT['qpoll'] != OPT['bq']: A(f's_cmp_eq_u32 s38, {0 if m == OPT["qpoll"] else 1}\ns_cbranch_scc1 L_noqp{m}')
            gran_issue(A, 32, 2)
            A.label(f'L_noqp{m}')
    stamp(A, 4)
    if OPT['lprio']: A('s_setprio 0')
    A(f's_lshl_b32 s24, s43, 10\nv_add_u32 v15, s24, v{QRD}')
    if not OPT['fq']: A('s_cmp_eq_u32 s38, 1\ns_cbranch_scc1 L_qa')
    for r in range(16): A(f'v_mul_f32 v{48+r}, s27, v{48+r}')
    if OPT['fq']: A('s_cmp_eq_u32 s38, 1\ns_cbranch_scc1 L_qa')
    for r in range(8): A(f'v_cvt_pk_bf16_f32 v{24+r}, v{48+2*r}, v{49+2*r}')
    A(f'ds_write_b128 v{QRD}, v[24:27]')
    if OPT['bq'] == 64: gran_issue(A, 32, 2)
    A('s_waitcnt lgkmcnt(0)\ns_barrier')
    if OPT['bq'] == 65: gran_issue(A, 32, 2)
    if OPT['bt']:
        A('s_bfe_u32 s24, s37, 0x10001\ns_lshl_b32 s24, s24, 2\ns_add_u32 s24, s24, s43\ns_lshl_b32 s24, s24, 16\ns_lshr_b32 s25, s37, 2\ns_lshl_b32 s25, s25, 7\ns_add_u32 s24, s24, s25\nv_lshlrev_b32 v14, 10, v1')
        A('buffer_load_dword v255, v14, s[44:47], s24 offen')
    if OPT['wb9']:
        stamp(A, 8)
        gran_wait(A, 32, 2, 104, False, 0)
        if OPT['bp']: A('s_setprio 1')
        A('s_branch L_qb')
    A.label('L_wo'); A.fence()
    if not OPT['wb9']: stamp(A, 8)
    if OPT['bp']: A('s_setprio 0')
    nwo = wo_dma(A, 8) + OPT['bt']
    if OPT['wb9']:
        stamp(A, 26)
        A('s_branch L_att')
    else:
        A('s_cmp_eq_u32 s38, 1\ns_cbranch_scc1 L_att')
        gran_wait(A, 32, 2, 104, False, nwo)
        stamp(A, 7)
        A('s_branch L_qb')
    A.label('L_qa'); A.fence()
    if not OPT['fq']: A('s_nop 8')
    for r in range(8): A(f'v_cvt_pk_bf16_f32 v{104+r}, v{48+2*r}, v{49+2*r}')
    A.label('L_qb'); A.fence(); A('s_nop 1')
    for hs in range(2): A(mfma32(64+16*hs, 16+4*hs, 104+4*hs, None))
    def phiq(E, hs):
        p = 64 + 16 * hs
        if OPT['fq']:
            for r in range(8): E(f'v_exp_f32_e64 v{p+8+r}, -v{p+8+r}\nv_exp_f32 v{p+r}, v{p+r}')
        else: dual_exp(E, p, p + 8, 96 + 2*hs)
        for m in range(8): E(f'v_cvt_pk_bf16_f32 v{(104 if hs == 0 else 48)+m}, v{p+2*m}, v{p+2*m+1}')
    if OPT['fq']:
        A('v_max3_f32 v96, |v64|, |v65|, |v66|\nv_max3_f32 v96, v96, |v67|, |v68|\nv_max3_f32 v96, v96, |v69|, |v70|')
        A('v_max3_f32 v96, v96, |v71|, |v80|\nv_max3_f32 v97, |v81|, |v82|, |v83|\nv_max3_f32 v96, v96, |v84|, |v85|\nv_max3_f32 v97, v97, |v86|, |v87|')
        A(f'v_max_f32 v96, v96, v97\nv_cmp_nge_f32 vcc, 0x{f2u(float(OPT["fq"])):x}, v96\ns_cbranch_vccnz L_qx')
        A.label('L_qx2')
        def qx():
            A.label('L_qx'); A.fence()
            for hs in range(2):
                p, t = 64 + 16*hs, 96
                A(f'v_max3_f32 v{t}, v{p}, v{p+1}, v{p+2}\nv_max3_f32 v{t+1}, -v{p}, -v{p+1}, -v{p+2}')
                A(f'v_max3_f32 v{t}, v{t}, v{p+3}, v{p+4}\nv_max3_f32 v{t+1}, v{t+1}, -v{p+3}, -v{p+4}')
                A(f'v_max3_f32 v{t}, v{t}, v{p+5}, v{p+6}\nv_max3_f32 v{t+1}, v{t+1}, -v{p+5}, -v{p+6}')
                A(f'v_max_f32_e64 v{t}, v{t}, v{p+7}\nv_max_f32_e64 v{t+1}, v{t+1}, -v{p+7}')
                A(f'v_permlane32_swap_b32 v{t}, v{t+1}\nv_max_f32 v{t}, v{t}, v{t+1}\nv_mov_b32 v{t+1}, v{t}\nv_permlane32_swap_b32 v{t}, v{t+1}')
                for r in range(8): A(f'v_sub_f32 v{p+r}, v{p+r}, v{t}\nv_add_f32 v{p+8+r}, v{p+8+r}, v{t+1}')
            A('s_branch L_qx2')
        COLD.append(qx)
    for a, b in zip(stream(phiq, 0), stream(phiq, 1)): A(a); A(b)
    A(f'ds_write_b128 v15, v[104:107] offset:{PQX-QX}\nds_write_b128 v15, v[108:111] offset:{PQX-QX+1024}')
    lds_add(A, C_PQ, 14)
    stamp(A, 6)
    A('s_cmp_eq_u32 s38, 0\ns_cbranch_scc1 ' + ('L_wo' if OPT['wb9'] else 'L_att'))
    gran_wait(A, 32, 2, 24, True)
    A(f'ds_write_b128 v{QRD}, v[24:27]')
    stamp(A, 7)
    A('s_waitcnt lgkmcnt(0)\ns_barrier')
    if OPT['wb9'] or OPT['wA'] < 8: stamp(A, 8)
    A('s_branch L_wo' if OPT['wA'] == 8 else 's_branch L_att')
    A.label('L_cons'); A.fence(); A.raw(';PAD')
    stamp(A, 21)
    KA, VA = [96, 112], [128, 144]
    FS = [16, 64]
    lq = Q(A, 'lgkmcnt', 12)
    def reads(n):
        s, ks = divmod(n, 2); f = FS[n % 2]
        ab = 2 if RING[s % 4] < 65536 else 160
        so = RING[s % 4] & 65535
        def rx(u): return [(f'ds_read_b128 {vr(f+4*u,4)}, v{ab+ks} offset:{so + u*2048}', (n, 'x', u))]
        def rw(c): return [(f'ds_read_b64_tr_b16 v[{f+16+4*c+2*rd}:{f+17+4*c+2*rd}], v{ab+2+c} offset:{so + 16384 + (c//2)*8192 + ks*4096 + rd*512}', (n, 'w', c)) for rd in range(2)]
        return rx(0) + rw(0) + rx(1) + rw(1) + rx(2) + rx(3) + rw(2) + rw(3)
    def mfma16(d, a, b, c): return f'v_mfma_f32_16x16x32_bf16 {vr(d,4)}, {vr(a,4)}, {vr(b,4)}, {vr(c,4) if c is not None else "0"}'
    def mk(n, u, hs):
        d = KA[u//2] + 8*hs + 4*(u % 2)
        return mfma16(d, FS[n % 2] + 16 + 4*hs, FS[n % 2] + 4*u, d if n else None)
    def mv1(n, u, hs):
        d = VA[u//2] + 8*(u % 2) + 4*hs
        return mfma16(d, FS[n % 2] + 4*u, FS[n % 2] + 24 + 4*hs, d if n else None)
    def mv(n, u): return mv1(n, u, 0) + '\n' + mv1(n, u, 1)
    KO = [(0, 0), (1, 0), (1, 1), (0, 1), (2, 1), (2, 0), (3, 0), (3, 1)]
    A('s_waitcnt lgkmcnt(0)\ns_barrier')
    stamp(A, 1)
    for t, tag in reads(0): A(t); lq.push(tag)
    for n in range(14):
        nxt = reads(n + 1)
        newstage = (n % 2 == 1)
        for mi in range(16):
            seg = mi // 8; u, hs = KO[mi % 8] if not seg else KO[7 - mi % 8]
            if OPT['mo16']: u, hs = divmod(mi % 8, 2)
            if newstage and mi == OPT['bp16']: lq.all()
            elif n and mi == 0: lq.wait((n, 'x', 3) if OPT['rodd'] == 1 else (n, 'w', 3))
            else: lq.wait((n, 'x', u), (n, 'w', 2*seg + hs))
            A(mv1(n, u, hs) if seg else mk(n, u, hs))
            if mi == 0 and 2*n == OPT['pw2']: padwalk(1)
            if mi == 0 and 2*n == OPT['dpos']: duties()
            if mi == 12 and n == OPT['mq']: touch(1)
            if mi == 12 and n == OPT['mo']: touch(2)
            if newstage and mi == OPT['bp16']: A('s_barrier')
            for _ in range(OPT['rodd' if newstage else 're']):
                if nxt and (not newstage or mi >= OPT['bp16']):
                    t, tag = nxt.pop(0); A(t); lq.push(tag)
        assert not nxt
        if n == 10: A('s_waitcnt vmcnt(0)')
        if n == 11:
            for hs in range(2):
                for rd in range(2): A(f'ds_read_b64_tr_b16 v[{56+4*hs+2*rd}:{57+4*hs+2*rd}], v{14 if hs else 9} offset:{rd*256}'); lq.push('wphi')
        if n == 13:
            A('s_not_b64 exec, s[28:29]\nv_mov_b64 v[56:57], 0\nv_mov_b64 v[58:59], 0\ns_mov_b64 exec, s[28:29]\nv_mov_b64 v[60:61], 0\nv_mov_b64 v[62:63], 0\ns_mov_b64 exec, -1')
            A('ds_read_b64 v[12:13], v15'); lq.push('tag')
    if OPT['cprio']: A('s_setprio 2')
    nxt = reads(15)
    E0P = 2 * OPT['e0pos']
    assert 10 < E0P < 16
    for g in range(16):
        n = 14 + g // 8; u, hs = KO[g % 8]
        if g == E0P: lq.all()
        elif g == 0: lq.wait((n, 'x', 3) if OPT['rodd'] == 1 else (n, 'w', 3))
        else: lq.wait((n, 'x', u), (n, 'w', hs))
        A(mk(n, u, hs))
        if g == E0P: A(ROLE + 's_cbranch_scc1 L_wrong\ns_barrier')
        for t, tag in nxt[OPT['rt']*g:OPT['rt']*(g+1)]: A(t); lq.push(tag)
        if g == 10: A('v_readfirstlane_b32 s60, v12\nv_readfirstlane_b32 s61, v13')
        if g == 15: place(A, 'c'); A('s_mov_b32 s61, s60')
    stamp(A, 2)
    A('s_cmp_eq_u32 s38, 1\ns_cbranch_scc1 L_epA')
    hist = list(A.hist)
    def weave(mf, fill, per):
        fill = list(fill)
        for m in mf:
            A(m)
            for _ in range(per):
                if fill: A(fill.pop(0))
        for f in fill: A(f)
    def cv(d, a): return [f'v_cvt_pk_bf16_f32 v{d+m}, v{a+2*m}, v{a+2*m+1}' for m in range(4)]
    def sw(d, *ks): return [f'v_permlane{k}_swap_b32 v{d+m}, v{d+2+m}' for k in ks for m in range(2)]
    def two(d, a, *ks): return cv(d, a) + cv(d+4, a+8) + [x for k in ks for e in range(2) for x in sw(d+4*e, k)]
    ckv = [x for tt in range(2) for x in two(160+8*tt, KA[tt], 16)]
    sk = [f'buffer_store_dwordx4 {vr(160+8*tt+4*e,4)}, v8, s[52:55], {"s30" if e else "s32"} offen offset:{tt*1024} sc1' for tt in range(2) for e in range(2)]
    cvv = [two(176+8*tt, VA[tt], 16, 32) for tt in range(2)]
    sv = [f'buffer_store_dwordx4 {vr(176+8*tt+4*e,4)}, v52, s[52:55], s31 offen offset:{tt*1024+e*512} sc1' for tt in range(2) for e in range(2)]
    VO = [mv1(n, u, hs) for tt in range(2) for n in (14, 15) for u in (2*tt, 2*tt+1) for hs in range(2)]
    A(VO[0]); A(VO[1])
    if OPT['bk']:
        ckv = ckv[:12] + sk[:2] + ckv[12:] + sk[2:]; sk = []
    weave(VO[2:], ckv + cvv[0], 2)
    if OPT['cprio']: A('s_setprio 0')
    if OPT['e0pos'] >= 8: A('s_barrier')
    if OPT['bw']:
        for x in cvv[1]: A(x)
        cvv[1] = []
        lds_spin(A, C_WQ, 4, 2, 3)
    for x in sk + sv[:2] + cvv[1] + sv[2:]:
        if 's' not in OPT['ko'] or not x.startswith('buffer'): A(x)
    stamp(A, 3)
    flag(A, 's34', 2)
    stamp(A, 4)
    halo_edge(A, 'B')
    A('s_cmp_eq_u32 s43, 1\ns_cbranch_scc1 L_epB1')
    for tt in range(2):
        for e in range(2):
            A(f'ds_write_b128 v54, {vr(160+8*tt+4*e,4)} offset:{e*12288 + tt*1024}')
            A(f'ds_write_b128 v53, {vr(176+8*tt+4*e,4)} offset:{tt*1024 + e*512}')
    A.label('L_epB1')
    A('s_cmp_eq_u32 s39, 0\ns_cbranch_scc1 L_epB2')
    halo_issue(A, 'B'); halo_fetch(A, 'B')
    A.label('L_epB2')
    A('s_waitcnt vmcnt(0) lgkmcnt(0)\ns_branch L_e1')
    A.label('L_epA'); A.hist = hist; A.raw(';PAD')
    KPK = {0: 160, 1: 208}
    VM = [168, 184]
    EM = {(0, 0): 16, (1, 0): 24, (0, 1): 32, (1, 1): 40}
    TM = {(0, 0): 2, (1, 0): 4, (0, 1): 12, (1, 1): 14}
    PT = {(0, 0): 64, (1, 0): 80, (0, 1): 80, (1, 1): 16}
    PP = {(0, 0): 64, (1, 0): 72, (0, 1): 80, (1, 1): 16}
    def phik(E, tt, hs, fast):
        p = KA[tt] + 8*hs; em = EM[(tt, hs)]; t = TM[(tt, hs)]; d = PT[(tt, hs)]
        if fast:
            for r in range(8): E(f'v_mul_f32 v{p+r}, s62, v{p+r}')
            for r in range(8): E(f'v_exp_f32_e64 v{em+r}, -v{p+r}\nv_exp_f32 v{p+r}, v{p+r}')
        else: dual_exp(E, p, em, t)
        E(f'v_add_f32 v{t}, v{p}, v{p+1}\nv_add_f32 v{t+1}, v{em}, v{em+1}')
        for r in range(2, 8): E(f'v_add_f32 v{t}, v{t}, v{p+r}\nv_add_f32 v{t+1}, v{t+1}, v{em+r}')
        E(f'v_permlane32_swap_b32 v{t}, v{t+1}\nv_add_f32 v{t}, v{t}, v{t+1}')
        if fast: E(f'v_max_f32 v6, v6, v{t}')
        E(f'v_rcp_f32 v{t}, v{t}\nv_mov_b32 v{t+1}, v{t}\nv_permlane32_swap_b32 v{t}, v{t+1}')
        for r in range(8): E(f'v_mul_f32 v{p+r}, v{p+r}, v{t}')
        for x in cv(p, p): E(x)
        for r in range(8):
            E(f'v_mul_f32 v{em+r}, v{em+r}, v{t+1}')
            if r == 1: E(mfma32(d, p, SEL, None))
        for x in cv(em, em): E(x)
    def phik2(hs): return [x for tt in range(2) for x in cv(PP[(tt, hs)], PT[(tt, hs)]) + cv(PP[(tt, hs)] + 4, PT[(tt, hs)] + 8)]
    def tm2(hs): return [mfma32(PT[(tt, hs)], EM[(tt, hs)], SEL + 4, PT[(tt, hs)]) for tt in range(2)]
    def pair(fn, hs, *a): return [x for ab in zip(stream(fn, 0, hs, *a), stream(fn, 1, hs, *a)) for x in ab]
    ck = [two(KPK[tt], KA[tt], 16) for tt in range(2)]
    pm = [[mfma32(KA[tt], 56, KPK[tt], None), mfma32(KA[tt], 60, KPK[tt]+4, KA[tt])] for tt in range(2)]
    KV = [128, 144]
    def kvm(hs): return [mfma32(KV[hs], VM[hs] + 8*tt + 4*blk, PP[(tt, hs)] + 4*blk, KV[hs] if hs or tt or blk else None) for tt in range(2) for blk in range(2)]
    send = [f'ds_write_b128 v52, {vr(KV[0],4)}', f'ds_write_b128 v52, {vr(KV[0]+4,4)} offset:1024', f'ds_write_b32 v52, v{KV[0]+8} offset:2048', f'ds_write_b32 v48, v{V1}']
    recv = f'ds_read_b32 v50, v49\nds_read_b128 {vr(KV[1],4)}, v53\nds_read_b128 {vr(KV[1]+4,4)}, v53 offset:1024\nds_read_b32 v{KV[1]+8}, v53 offset:2048'
    weave([mv1(14, u, hs) for u in range(3) for hs in range(2)], ck[0], 2)
    weave(pm[0], ck[1], 6)
    for m in pm[1]: A(m)
    A(mv(14, 3))
    A(f'v_mov_b32 v6, 0\ns_lshl_b32 s25, s41, 2\ns_add_u32 s25, s25, {TAG + C_PAIR}')
    fast = bool(OPT['fastk'])
    S = [pair(phik, hs, fast) for hs in range(2)]
    vb = [(VM[hs] + 8*tt + 4*blk, VA[tt] + 8*blk + 4*hs) for hs in range(2) for tt in range(2) for blk in range(2)]
    vc = [x for d, a in vb for x in cv(d, a)[:2]] + [x for k in (16, 32) for d, a in vb for x in sw(d, k)]
    KD, KZ = (KV[1] + 8, KV[1]) if OPT['vl'] == 2 else (KV[1], KV[1] + 8)
    recv = f'ds_read_b32 v50, v49\nds_read_b128 {vr(KD,4)}, v53\nds_read_b128 {vr(KD+4,4)}, v53 offset:1024\nds_read_b32 v{KZ}, v53 offset:2048'
    if OPT['vl'] == 2:
        vc = [x for tt in range(2) for x in two(VM[1] + 8*tt, VA[tt], 16, 32)] + ['s_mov_b64 exec, s[28:29]']
        vc += [f'v_mov_b64 v[{VM[0]+r}:{VM[0]+r+1}], v[{VM[1]+r}:{VM[1]+r+1}]' for r in range(0, 16, 2)] + [f'v_mov_b64 v[{VM[1]+r}:{VM[1]+r+1}], v[{ONES}:{ONES+1}]' for r in range(0, 16, 2)] + ['s_mov_b64 exec, -1']
    vr2 = []
    if OPT['vl'] == 3:
        vc = [x for i, (d, a) in enumerate(vb) for x in cv(a, a)[:2] + ([f'ds_write_b64 v251, v[{vb[i-1][1]}:{vb[i-1][1]+1}] offset:{4096 + 512*(i-1)}'] if i else [])] + [f'ds_write_b64 v251, v[{vb[7][1]}:{vb[7][1]+1}] offset:{4096 + 512*7}']
        vr2 = [['s_mov_b64 exec, s[28:29]'] + [f'ds_read_b128 {vr(vb[i][0],4)}, v55 offset:{4096 + 512*i}' for i in range(4*h, 4*h+4)] + ['s_mov_b64 exec, -1'] for h in range(2)]
    if OPT['vl'] == 1:
        vc = [x for d, a in vb for x in cv(a, a)[:2]] + [f'ds_write_b64 v166, v[{a}:{a+1}] offset:{4096 + 512*i}' for i, (d, a) in enumerate(vb)]
        vc = [x.replace('v166', 'v251') for x in vc]
        vc += ['s_mov_b64 exec, s[28:29]'] + [f'ds_read_b128 {vr(d,4)}, v55 offset:{4096 + 512*i}' for i, (d, a) in enumerate(vb)] + ['s_mov_b64 exec, -1']
    D = 2 * OPT['stag']
    rest = [mv(15, u) for u in range(4)]
    L = len(S[0])
    K0 = OPT['k0']
    tail0 = {L: tm2(0), L + K0 - 4: phik2(0), L + K0: ['s_waitcnt lgkmcnt(0)'] + kvm(0)[:1], L + K0 + 2: kvm(0)[1:2], L + K0 + 6: kvm(0)[2:3], L + K0 + 10: kvm(0)[3:],
             L + OPT['sw']: (['v_cmp_ngt_f32 vcc, s63, v6', 's_cbranch_vccnz L_kexa'] if fast else []) + send}
    assert K0 + 10 < OPT['sw'] < D and K0 - 4 < D - 24
    assert D >= 26
    for i in range(0, L + D, 2):
        if i < L: A(S[0][i]); A(S[0][i+1])
        if rest and i % 4 == 2:
            A(rest.pop(0))
            if not rest and OPT['cprio']: A('s_setprio 0')
        if OPT['e0pos'] >= 8 and i == OPT['e0a']: A('s_barrier')
        if i == D - 2:
            halo_edge(A, 'A')
            for x in vc: A(x)
            A('v_mov_b32 v48, s25\nv_xor_b32 v49, 8, v48')
            stamp(A, 6)
        if vr2 and i in (D + 20, D + 40):
            for x in vr2.pop(0): A(x)
        if i >= D: A(S[1][i-D]); A(S[1][i-D+1])
        for x in tail0.get(i, []): A(x)
    for m in tm2(1): A(m)
    stamp(A, 3)
    two2 = fast and max(i for i, x in enumerate(S[1]) if x.startswith('v_max_f32 v6,')) + D > L + OPT['sw']
    if two2: A('v_cmp_ngt_f32 vcc, s63, v6\ns_cbranch_vccnz L_kexb')
    A.label('L_kdone')
    A(recv)
    if OPT['hf'] in (2, 3): halo_addr(A); halo_issue(A, 'A')
    for x in phik2(1)[:8]: A(x)
    A('s_waitcnt lgkmcnt(0)\nv_cmp_eq_u32 vcc, 0, v50\ns_cbranch_vccnz L_exs')
    A.label('L_exd')
    def exs():
        A.label('L_exs'); A.fence()
        A(f's_mov_b32 s3, {SPIN_MAX * 4}')
        A.label('L_exs2')
        A(recv)
        A('s_sub_u32 s3, s3, 1\ns_waitcnt lgkmcnt(0)\nv_cmp_eq_u32 vcc, 0, v50\ns_cselect_b64 vcc, 0, vcc\ns_cbranch_vccnz L_exs2\ns_branch L_exd')
    OOL.append(exs)
    weave(kvm(1), phik2(1)[8:], 4)
    if OPT['hf'] not in (2, 3): halo_addr(A)
    else: A('s_nop 7')
    if fast:
        def kexact():
            for hs in range(2):
                if hs == 0 or two2:
                    A.label('L_kex' + 'ab'[hs]); A.fence()
                    A('s_nop 15')
                    for tt in range(2):
                        for m in pm[tt]: A(m)
                for x in pair(phik, hs, False) + tm2(hs): A(x)
                if hs == 0:
                    for x in phik2(0) + kvm(0) + send: A(x)
            A('s_nop 1\ns_branch L_kdone')
        COLD.append(kexact)
    stamp(A, 20)
    def atomics():
        if OPT['pb']:
            for m in range(4): A(f'v_cvt_pk_bf16_f32 v{KD+m}, v{KD+2*m}, v{KD+2*m+1}')
            A(f'v_mul_f32 v{KZ}, 0x{f2u(1 + 2.0**-8.5):x}, v{KZ}')
            for m in range(4): A(f'buffer_atomic_pk_add_bf16 v{KD+m}, v54, s[52:55], s31 offen offset:{(m & 1)*128 + (m >> 1)*512}')
        else:
            for r in range(OPT['nat']): A(f'buffer_atomic_add_f32 v{KD+r}, v54, s[52:55], s31 offen offset:{rowof(r,0)*128}')
        A(f's_mov_b32 exec_hi, 0\ns_add_u32 s31, s31, {AUX}')
        A(f'buffer_atomic_add_f32 v{KZ}, v54, s[52:55], s31 offen')
        A('s_mov_b64 exec, -1')
    if 'A' in OPT['sp']:
        if OPT['hpos'] == 0: halo_issue(A, 'A')
        atomics()
        stamp(A, 4)
        if OPT['hpos'] == 1: halo_issue(A, 'A')
        halo_fetch(A, 'A')
        A('s_cmp_lt_u32 s39, 2\ns_cbranch_scc0 L_c2\ns_waitcnt vmcnt(4)')
        A.label('L_c2')
        A('s_waitcnt vmcnt(12)')
        count_add(A, 's31', 256)
        stamp(A, 19)
        A('s_waitcnt vmcnt(1)')
    else:
        if OPT['hf'] >= 3:
            if OPT['hf'] == 4: halo_issue(A, 'A')
            atomics()
            stamp(A, 4)
            A(f's_mov_b64 exec, 63\ns_waitcnt vmcnt({OPT["nat"] + 1})\nv_cmp_ne_u32 vcc, s60, v{PD}\ns_mov_b64 exec, -1\ns_cbranch_vccnz L_hlate')
            halo_dma(A, 'A', 'E')
            A('s_cmp_lt_u32 s39, 2\ns_cbranch_scc0 L_c2\ns_waitcnt vmcnt(4)')
            A.label('L_c2')
            A('s_waitcnt vmcnt(12)')
            count_add(A, 's31', 256)
            stamp(A, 19)
            A('s_waitcnt vmcnt(1)\ns_branch L_e1')
            A.label('L_hlate'); A.fence()
        elif OPT['hf']:
            A(f's_mov_b64 exec, 63\ns_waitcnt vmcnt(0)\nv_cmp_ne_u32 vcc, s60, v{PD}\ns_mov_b64 exec, -1\ns_cbranch_vccnz L_hlate')
            halo_dma(A, 'A', 'E')
            atomics()
            stamp(A, 4)
            A('s_waitcnt vmcnt(0)')
            count_add(A, 's31', 256)
            stamp(A, 19)
            A('s_branch L_e1')
            A.label('L_hlate'); A.fence()
        if OPT['hf'] < 3: atomics(); stamp(A, 4)
        halo_issue(A, 'A')
        A('s_waitcnt vmcnt(1)')
        count_add(A, 's31', 256)
        stamp(A, 19)
        halo_fetch(A, 'A', 1)
        A('s_waitcnt vmcnt(0)')
    A.label('L_e1'); A.fence()
    A(f's_lshl_b32 s24, s41, 10\nv_add_u32 v9, s24, v{QRD}')
    A('s_barrier')
    stamp(A, 8)
    A(f'ds_read_b128 v[28:31], v{QRD}')
    A.label('L_att'); A.fence(); A.raw(';PAD')
    if OPT['wprio']:
        A('s_cmp_lt_u32 s41, 4\ns_cbranch_scc1 L_wp\ns_setprio 1')
        A.label('L_wp')
    A('s_cmp_lt_u32 s39, 2\ns_cbranch_scc1 L_bslow')
    FA = bool(OPT['fasta'])
    bunit(A, False, FA, not OPT['nohook'], 'f')
    A.label('L_bdone'); A.fence()
    stamp(A, 11)
    if OPT['nohook']: A('s_branch L_fin2')
    O = OACC
    A(f's_add_u32 s24, {S_OA}, {TWIN}\ns_add_u32 s27, {S_C3}, 1024\ns_nop 9')
    if FA:
        A(f'v_pk_mul_f32 v[2:3], v[{O}:{O+1}], 0')
        for m in range(1, 4): A(f'v_pk_fma_f32 v[2:3], v[{O+2*m}:{O+2*m+1}], 0, v[2:3]')
        A(f'v_add_f32 v2, v2, v3\nv_add_f32 v2, v2, v{O+8}\nv_subrev_u32 v2, 0x{f2u(2.0**-60):x}, v2')
        A(f'v_cmp_lt_u32 vcc, 0x{f2u(2.0**60) - f2u(2.0**-60):x}, v2\ns_cbranch_vccnz L_bexact'.replace('vccnz', 'execz' if OPT['ko'] else 'vccnz'))
        A.label('L_bdone2')
    A(f'v_rcp_f32 v4, v{O+8}')
    for m in range(4): A(f'v_pk_mul_f32 v[{O+2*m}:{O+2*m+1}], v[{O+2*m}:{O+2*m+1}], v[4:5] op_sel_hi:[1,0]')
    for m in range(4): A(f'v_cvt_pk_bf16_f32 v{16+m}, v{O+2*m}, v{O+2*m+1}')
    A(f'buffer_store_dwordx4 v[16:19], v8, s[52:55], s24 offen sc1')
    UA = OPT['ua']
    if UA: count_add(A, 's27'); stamp(A, 12)
    A('s_cmp_ge_u32 s41, 4\ns_cbranch_scc1 L_nord')
    lds_spin(A, C_PQ, 4, 4, 5, sleep=False)
    A(f'ds_read_b128 v[48:51], v9 offset:{PQX-QX}\nds_read_b128 v[52:55], v9 offset:{PQX-QX+1024}')
    readout(A, 64, 180, 1 + UA + 16 // max(1, len(WD) + len(W0)) * sum(1 for x in W0 if x <= OPT['h2'])); readout2(A, 64, 180)
    if OPT['tp'] == 1: A('s_setprio 0')
    A.label('L_nord')
    tr_lane(A, 6, 7, 2)
    A('v_and_b32 v7, 1, v1\nv_lshl_add_u32 v6, v7, 5, v6\nv_bfe_u32 v7, v1, 1, 1\nv_lshl_add_u32 v6, v7, 3, v6\nv_and_b32 v7, 16, v1\nv_add_u32 v6, v6, v7')
    A('s_lshr_b32 s24, s41, 2\ns_lshl_b32 s24, s24, 11\nv_bfe_u32 v7, v1, 3, 1\nv_lshl_add_u32 v6, v7, 6, v6\nv_add_u32 v2, s24, v6\nv_xor_b32 v3, 64, v2')
    assert OPT['wa'] and not UA and not W0
    A('s_bfe_u32 s25, s37, 0x10002' if OPT['ro'] else 's_mov_b32 s25, 0')
    if OPT['ro'] == 1: A('s_lshr_b32 s24, s41, 2\ns_and_b32 s25, s25, s24')
    A(f's_lshl_b32 s24, s25, 12\nv_add_u32 v2, s24, v2\nv_add_u32 v3, s24, v3\nv_xor_b32 v6, 4096, v2\nv_xor_b32 v7, 4096, v3')
    A(f's_lshl_b32 s24, s25, 14\ns_sub_u32 s31, {S_FO}, s24\ns_add_u32 {S_FO}, {S_FO}, s24')
    OFR, PRE, AC = 16, 80, 208
    def wread(m):
        for rd in range(2): A(f'ds_read_b64_tr_b16 v[{PRE+4*m+2*rd}:{PRE+4*m+2*rd+1}], v{2 + m//16*4 + m%2} offset:{(m//2 % 8)*8192 + rd*1024}')
    def early():
        if OPT['ew'] == 1: A('v_mov_b32 v251, 0\ns_cmp_ge_u32 s41, 4\ns_cbranch_scc1 L_nosp')
        if OPT['ew']: poll_issue(A, 251, V0, S_FC)
        A.label('L_nosp')
    early()
    if OPT['cw']: A(f'v_mov_b32 v12, {TAG}'); assert OPT['npre'] == 0
    else: lds_spin(A, C_WO, NWO, 12, 13, sleep=False)
    for m in range(OPT['npre']): wread(m)
    def oload(k): A(f'buffer_load_dwordx4 {vr(OFR+4*k,4)}, v8, s[52:55], {[S_FO,"s26","s24","s25"][k//4]} offen offset:{(k%4)*1024} sc1')
    SF = 'F' in OPT['sp']
    FULL = 0x810 if OPT['ew'] else 16
    if OPT['ew']: A(f's_xor_b32 s24, s38, 1\ns_lshl_b32 s24, s24, 8\ns_add_u32 s24, s24, 1\nv_mov_b32 v14, s24')
    A(f's_add_u32 s26, {S_FO}, 4096\ns_lshr_b32 s24, s41, 2\ns_lshl_b32 s3, s24, 3\nv_lshlrev_b32 v15, s3, v{V1}')
    A('v_lshlrev_b32 v13, 10, v1' + ('' if OPT['u2'] else '\ns_waitcnt vmcnt(0)'))
    if not SF and not OPT['wf']: poll_issue(A, PD, V0, S_FC, count=FULL)
    A('s_mov_b64 exec, 3' + ('\ns_sub_u32 exec_lo, 3, s24' if OPT['ca'] >= -1 else ''))
    A(f'buffer_atomic_add v{14 if OPT["ew"] else V1}, v13, s[52:55], {S_C3} offen\ns_mov_b64 exec, 1\nds_add_u32 v12, v15 offset:{C_ATT}\ns_mov_b64 exec, -1')
    if OPT['ew']:
        A('v_readfirstlane_b32 s30, v251\ns_lshr_b32 s30, s30, 11')
        A('s_cbranch_scc0 L_noear')
        for k in range(8): oload(k)
        A.label('L_noear')
    stamp(A, 13)
    if OPT['gp'] == 1: A('s_setprio 0')
    if OPT['sx'] == 1:
        A('s_cmp_ge_u32 s41, 4\ns_cbranch_scc1 L_sx\ns_setprio 1')
        A.label('L_sx')
    if OPT['cw']: lds_spin(A, C_WO, NWO, 12, 13, sleep=False)
    for m in range(OPT['npre'], 32): wread(m)
    A('v_and_b32 v9, 15, v1\nv_lshlrev_b32 v9, 11, v9\nv_and_b32 v14, 48, v1\nv_add_u32 v9, v9, v14')
    if 'f' in OPT['ko']: A('v_and_b32 v9, 7, v1\nv_lshlrev_b32 v9, 12, v9\nv_and_b32 v14, 48, v1\nv_add_u32 v9, v9, v14\nv_and_b32 v14, 8, v1\nv_lshl_add_u32 v9, v14, 3, v9')
    if 'F' in OPT['ko']: A('v_lshrrev_b32 v9, 3, v1\nv_lshlrev_b32 v9, 12, v9\nv_and_b32 v14, 7, v1\nv_lshl_add_u32 v9, v14, 4, v9')
    A(f's_and_b32 s24, s41, 3\ns_lshl_b32 s25, s24, 13\ns_add_u32 s25, s25, {PHI}\nv_add_u32 v4, s25, v8\ns_lshl_b32 s24, s24, 2\ns_add_u32 s24, s24, {TAG + C_PART}\nv_mov_b32 v5, s24')
    if OPT['fl']:
        A('v_and_b32 v14, 7, v1\nv_lshlrev_b32 v9, 1, v11\nv_xor_b32 v9, v9, v14\nv_lshl_add_u32 v9, v10, 3, v9\nv_lshl_add_u32 v245, v9, 4, s25')
        A(f'v_add_u32 v249, s25, v{KVS}\nv_xor_b32 v246, 16, v245\nv_xor_b32 v247, 64, v245\nv_xor_b32 v248, 80, v245')
        A('v_lshrrev_b32 v9, 3, v1\nv_lshlrev_b32 v9, 11, v9\nv_lshl_add_u32 v9, v14, 4, v9')
        A(f's_add_u32 s28, {S_OUT}, 16384\ns_add_u32 s29, {S_OUT}, 49152')
    srd(A, 56, 18, 0x400000)
    A(f's_add_u32 s24, s31, 16384\ns_add_u32 s25, s31, 20480\ns_add_u32 s27, {S_OUT}, 32768')
    stamp(A, 25)
    def fpoll():
        if SF:
            sp_issue(A, [(48, S_FC, 0)]); sp_wait(A, [(48, S_FC, 0)], f's_cmp_lg_u32 s48, {FULL}')
        else:
            if OPT['wf']: poll_issue(A, PD, V0, S_FC, count=FULL)
            poll(A, PD, V0, S_FC, count=FULL, inline=True, first=1 - OPT['wf'])
    if not OPT['wf']: fpoll()
    stamp(A, 12)
    if not OPT['w4w']: A('s_cmp_ge_u32 s41, 4\ns_cbranch_scc1 L_noatt')
    if OPT['w0n']: A('s_cmp_lg_u32 s30, 0\ns_cbranch_scc1 L_noatt')
    lds_spin(A, C_ATT, 0x400, 12, 13)
    A.label('L_noatt')
    if OPT['wf']: fpoll()
    stamp(A, 14)
    if OPT['ew']: A('s_cmp_lg_u32 s30, 0\ns_cbranch_scc1 L_late8')
    for k in range(8): oload(k)
    A.label('L_late8')
    for k in range(8, 16): oload(k)
    A('s_waitcnt lgkmcnt(0)')
    if OPT['fl']:
        def fm(k, ct): return mfma32(AC+16*ct, PRE + 8*k + 4*ct, OFR+4*k, AC+16*ct if k else None)
        def common_mf(m0, m1):
            for m in range(m0, m1):
                k, ct = m // 2, m % 2
                if ct == 0: A(f's_waitcnt vmcnt({15-k})')
                A(fm(k, ct))
        PR = OPT['pr']
        assert 16 <= PR <= 21
        common_mf(0, PR + 1)
        A('s_cmp_ge_u32 s41, 4\ns_cbranch_scc1 L_fin')
        hist = list(A.hist)
        common_mf(PR + 1, 32)
        stamp(A, 16)
        for i in range(8): A(f'ds_write_b128 v4, {vr(AC+4*i,4)} offset:{i*1024}')
        A(f'ds_write_b32 v5, v{V1}\ns_waitcnt lgkmcnt(0)\ns_branch L_fin2')
        A.label('L_fin'); A.hist = hist
        prd = 'ds_read_b32 v12, v5\n' + '\n'.join(f'ds_read_b128 {vr(OFR+4*i,4)}, v4 offset:{i*1024}' for i in range(8))
        A(prd)
        common_mf(PR + 1, 22)
        def adds(ct): return [f'v_add_f32 v{AC+16*ct+r}, v{AC+16*ct+r}, v{OFR+16*ct+r}' for r in range(16)]
        def pack(ct): return [x for e in range(2) for x in cv(48 + 8*ct + 4*e, AC + 16*ct + 8*e) + [f'ds_write_b128 v{245 + 2*ct + e}, {vr(48 + 8*ct + 4*e, 4)}']]
        def vm(n): return f's_waitcnt vmcnt({n})\n'
        def lag():
            A.hist = A.hist[-1:]
        A(vm(4) + fm(11, 1)); lag()
        A('s_waitcnt lgkmcnt(0)\nv_cmp_eq_u32 vcc, 0, v12\ns_cbranch_vccnz L_prs')
        A.label('L_prd')
        def prs():
            A.label('L_prs'); A.fence()
            if OPT['lt']:
                A(fm(11, 0)); common_mf(24, 32)
            A(f's_mov_b32 s3, {SPIN_MAX * 4}')
            A.label('L_prs2')
            A('ds_read_b32 v12, v5\ns_sub_u32 s3, s3, 1\ns_waitcnt lgkmcnt(0)\nv_cmp_eq_u32 vcc, 0, v12\ns_cselect_b64 vcc, 0, vcc\ns_cbranch_vccnz L_prs2')
            if not OPT['lt']: A(prd + '\ns_waitcnt lgkmcnt(0)\ns_branch L_prd'); return
            A(prd)
            for i in range(8):
                A(f's_waitcnt lgkmcnt({7-i})')
                for r in (4*i, 4*i + 2): A(f'v_pk_add_f32 v[{AC+r}:{AC+r+1}], v[{AC+r}:{AC+r+1}], v[{OFR+r}:{OFR+r+1}]')
            A('s_branch L_pk')
        FIN.append(prs)
        stamp(A, 15)
        for x in adds(0)[:4]: A(x)
        weave([vm(3) + fm(12, 1), vm(2) + fm(13, 1)], adds(0)[4:], 6)
        A(fm(11, 0)); A(fm(12, 0)); lag()
        for x in adds(1)[:5]: A(x)
        weave([fm(13, 0), vm(1) + fm(14, 0)], adds(1)[5:], 6)
        A(vm(0) + fm(15, 0)); A(fm(14, 1)); A(fm(15, 1)); lag()
        A.label('L_pk')
        for x in pack(0): A(x)
        stamp(A, 16)
        for x in pack(1): A(x)
        for i in range(4): A(f'ds_read_b128 {vr(OFR+4*i,4)}, v249 offset:{i*1024}')
        for i in range(4): A(f's_waitcnt lgkmcnt({3-i})\nbuffer_store_dwordx4 {vr(OFR+4*i,4)}, v9, s[56:59], {[S_OUT, "s28", "s27", "s29"][i]} offen {OST}')
    else:
        for m in range(32):
            k, ct = m // 2, m % 2
            if ct == 0: A(f's_waitcnt vmcnt({15-k})')
            A(mfma32(AC+16*ct, PRE+4*m, OFR+4*k, AC+16*ct if k else None))
            if m == 30 and UA:
                A(f's_cmp_lg_u32 s30, 0\ns_cbranch_scc1 L_acked\ns_mov_b64 exec, 3\nv_lshlrev_b32 v12, 15, v1\nbuffer_atomic_add v{V1}, v12, s[52:55], {S_C3} offen offset:64\ns_mov_b64 exec, -1')
                A.label('L_acked'); A.hist = A.hist[:-4]
            if m == OPT['tu']:
                A(f'ds_read_b32 v13, v12 offset:{C_ATT}\ns_mov_b64 exec, 1\nds_add_rtn_u32 v14, v5, v{V1} offset:16\ns_mov_b64 exec, -1')
            if m == OPT['pr']:
                assert m >= 17
                if OPT['tu'] >= 0: A('s_waitcnt lgkmcnt(0)\nv_readfirstlane_b32 s30, v14')
                else: A('s_lshr_b32 s30, s41, 2')
                A(f's_cmp_eq_u32 s30, 0\ns_cbranch_scc1 L_nopr\ns_mov_b32 s3, {SPIN_MAX * 4}')
                A.label('L_prs')
                A('ds_read_b32 v12, v5\ns_sub_u32 s3, s3, 1\ns_waitcnt lgkmcnt(0)\nv_cmp_eq_u32 vcc, 0, v12\ns_cselect_b64 vcc, 0, vcc\ns_cbranch_vccnz L_prs')
                stamp(A, 15)
                for i in range(8): A(f'ds_read_b128 {vr(OFR+4*i,4)}, v4 offset:{i*1024}')
                A.label('L_nopr')
        stamp(A, 16)
        if UA:
            A(f'v_cmp_u_f32 vcc, v{AC}, v{AC}\ns_cbranch_vccnz L_late')
            A.label('L_late2')
            def late():
                A.label('L_late'); A.fence()
                A('s_cmp_lg_u32 s30, 0\ns_cbranch_scc1 L_late2\ns_mov_b32 s30, 1\ns_waitcnt lgkmcnt(0)')
                poll_issue(A, PD, V0, S_FC, count=16, off=64)
                poll(A, PD, V0, S_FC, count=16, off=64, inline=True)
                A('s_branch L_again')
            COLD.append(late)
        A('s_cmp_lg_u32 s30, 0\ns_cbranch_scc1 L_fin')
        if OPT['tu'] >= 0:
            A('v_cmp_gt_u32 vcc, 0x404, v13\ns_cbranch_vccnz L_aw')
            A.label('L_aw2')
            def aw():
                A.label('L_aw'); A.fence()
                lds_spin(A, C_ATT, 0x404, 12, 13)
                A('s_branch L_aw2')
            COLD.append(aw)
        else: assert not OPT['w0n']
        for i in range(8): A(f'ds_write_b128 v4, {vr(AC+4*i,4)} offset:{i*1024}')
        A(f'ds_write_b32 v5, v{V1}\ns_waitcnt lgkmcnt(0)\ns_branch L_fin2')
        A.label('L_fin')
        A('s_waitcnt lgkmcnt(0)' + ('' if UA else '\ns_nop 7'))
        for ct in range(2):
            for r in range(0, 16, 2): A(f'v_pk_add_f32 v[{AC+16*ct+r}:{AC+16*ct+r+1}], v[{AC+16*ct+r}:{AC+16*ct+r+1}], v[{OFR+16*ct+r}:{OFR+16*ct+r+1}]')
            b = 48 + 8 * ct
            for m in range(8): A(f'v_cvt_pk_bf16_f32 v{b+m}, v{AC+16*ct+2*m}, v{AC+16*ct+2*m+1}')
            for m in range(4): A(f'v_permlane16_swap_b32 v{b+m}, v{b+4+m}')
            for h in range(2 if 'o' not in OPT['ko'] else 1 - ct if 'O' in OPT['ko'] else 0): A(f'buffer_store_dwordx4 {vr(b+4*h,4)}, v9, s[56:59], {"s27" if h else S_OUT} offen offset:{ct*(2048 if "f" in OPT["ko"].lower() else 64)} {OST}')
    A.label('L_fin2')
    stamp_flush(A, 's[52:55]', 's41')
    A.label('L_end'); A.fence()
    A('s_endpgm')
    for f in FIN: f()
    A.label('L_bslow'); A.fence(); A.raw(';PAD')
    bunit(A, True, FA, not OPT['nohook'], 's')
    A('s_branch L_bdone')
    for f in OOL: f()
    A.label('L_cold')
    if FA:
        A.label('L_bexact'); A.fence()
        bunit(A, True, False, False, 'x')
        A('s_nop 11\ns_branch L_bdone2')
    for f in COLD: f()
    wrong(A)

def kvread(A, n):
    for m in range(1, 4): A(f'v_xor_b32 v{32+4*m}, {16*m}, v{KVOFF}')
    A(f's_waitcnt vmcnt({n})')
    for m in range(4): A(f'ds_read_b128 {vr(32+4*m,4)}, v{32+4*m if m else KVOFF}')
    if OPT['pb']: A(f'v_mov_b32 v{KVS}, 0x07060302\ns_mov_b32 exec_lo, 0x5555\ns_mov_b32 exec_hi, 0x5555\nv_mov_b32 v{KVS}, 0x05040100\ns_mov_b64 exec, -1')
def readout(A, R1, R2, n):
    if not OPT['kd']: A(f's_waitcnt vmcnt({n})')
    elif n: kvread(A, n); A('s_waitcnt lgkmcnt(0)')
    for m in range(8): A(f'v_perm_b32 v{32+m}, v{33+2*m}, v{32+2*m}, v{KVS}' if OPT['pb'] else f'v_cvt_pk_bf16_f32 v{32+m}, v{32+2*m}, v{33+2*m}')
    if n and not OPT['kd']: A('s_waitcnt lgkmcnt(0)')
    A(mfma32(R1, 32, 48, None)); A(mfma32(R2, 36, 52, None))
def readout2(A, R1, R2):
    A(f'v_mov_b32 v6, 0x{f2u(1e-6):x}')
    A(f'v_rcp_f32 v4, v{R1+9}\nv_rcp_f32 v5, v{R2+9}')
    A(f'v_fmac_f32 v6, v{R1+8}, v4\nv_fmac_f32 v6, v{R2+8}, v5')
    A('v_rcp_f32 v6, v6')
    A('v_mul_f32 v4, v4, v6\nv_mul_f32 v5, v5, v6')
    for r in range(8): A(f'v_mul_f32 v{R1+r}, v{R1+r}, v4')
    for r in range(8): A(f'v_fmac_f32 v{R1+r}, v{R2+r}, v5')
    for m in range(4): A(f'v_cvt_pk_bf16_f32 v{20+m}, v{R1+2*m}, v{R1+2*m+1}')
    A(f'buffer_store_dwordx4 v[20:23], v8, s[52:55], {S_OA} offen sc1')
    if OPT['ua']: count_add(A, S_C3)
    if OPT['wprio']: A('s_setprio 0')
    stamp(A, 17)

def bunit(A, checks, fast, hooks, sfx):
    lq = Q(A, 'lgkmcnt', 15)
    KF = {j: 144 + 4 * j for j in range(9)}
    M, X, Y, Z, NM = 64, 80, 96, 112, 128
    O = OACC
    order = [8, 0, 7, 6, 5, 4, 3, 2, 1]
    def kvload():
        if OPT['kd']:
            fl = OPT["kvs"].replace("p", "")
            A(f's_mov_b32 m0, s98\ns_add_u32 s24, {S_ACC}, {AUX - 2048}')
            for i in range(2 - OPT['pb']): A(f'buffer_load_dwordx4 v{KVS}, s[52:55], {S_ACC} offen offset:{1024*i} {fl} lds')
            A(f's_mov_b64 exec, 0xffff\nbuffer_load_dwordx4 v{KVS}, s[52:55], s24 offen offset:2048 {fl} lds\ns_mov_b64 exec, -1')
            return
        for m in range(4): A(f'buffer_load_dwordx4 {vr(32+4*m,4)}, v{KVOFF}, s[52:55], {S_ACC} offen offset:{16*m} {OPT["kvs"].replace("p", "")}')
    def hook(j):
        stamp(A, 58 - j)
        if j + 100 == OPT['clr'] and OPT['ua']:
            assert j > OPT['h2']
            A(f's_cmp_ge_u32 s41, 4\ns_cbranch_scc1 L_nclr{sfx}')
            A(f'v_mov_b64 v[56:57], -1\nv_mov_b64 v[58:59], -1\ns_add_u32 s24, {S_OA}, 0x4000\ns_add_u32 s25, {S_OA}, 0x200000\ns_add_u32 s3, {S_OA}, 0x204000')
            for so in (S_OA, 's24', 's25', 's3'): A(f'buffer_store_dwordx4 v[56:59], v8, s[52:55], {so} offen sc1')
            A.label(f'L_nclr{sfx}')
        same = (OPT['hp'], OPT['h2']) == (OPT['ap'], OPT['a2'])
        for ty, (hp, h2) in enumerate([(OPT['hp'], OPT['h2']), (OPT['ap'], OPT['a2'])][:1 if same else 2]):
            if j not in (hp, h2) and not (same and j in W0): continue
            A((f's_cmp_ge_u32 s41, 4' if same else f's_cmp_lg_u32 s20, {ty}') + f'\ns_cbranch_scc1 L_hg0{ty}{j+1}{sfx}')
            if j == hp:
                A(f's_mov_b64 exec, 3\nv_lshlrev_b32 v5, 11, v1\nv_add_u32 v5, {AUX}, v5')
                poll_issue(A, PD, 5, S_ACC, count=16, off=256)
                A('s_mov_b64 exec, -1')
            if j == h2:
                A('s_mov_b64 exec, 3')
                poll(A, PD, 5, S_ACC, count=16, off=256, first=16 // max(1, len(WD) + len(W0)) * sum(1 for x in W0 if h2 < x <= hp))
                lds_add(A, C_KV, 4)
                if OPT['tp']: A('s_setprio 2')
                stamp(A, 10)
                kvload()
                if OPT['kt']: A(f'buffer_load_dword v255, v{KVOFF}, s[52:55], {S_ACC} offen offset:{ACCB}')
            assert same or not W0
            wo_dma(A, j, 0)
            A.label(f'L_hg0{ty}{j+1}{sfx}')
        if j == OPT['wA']:
            assert j > OPT['g2']
            A(f's_cmp_lg_u32 s20, 3\ns_cbranch_scc1 L_hwa{sfx}')
            wo_dma(A, 8); stamp(A, 26)
            A.label(f'L_hwa{sfx}')
        if j in WD or j in (OPT['g2'], OPT['gr'], OPT['gr'] - 1, OPT['gpp'], OPT['ca']) or (OPT['kd'] and j == OPT['gl']):
            A(f's_cmp_lt_u32 s41, 4\ns_cbranch_scc1 L_hg1{j+1}{sfx}')
            if OPT['gp'] and j == OPT['gpp']: A('s_setprio 1')
            wo_dma(A, j)
            if j == OPT['gl'] and OPT['kd']:
                assert OPT['g2'] > j >= OPT['gr']
                kvread(A, 0)
                if j == OPT['gr']: A('s_waitcnt lgkmcnt(0)')
            if j == OPT['gr']: readout(A, R1, 180, 0)
            if j == OPT['gr'] - 1: readout2(A, R1, 180)
            if j == OPT['ca']:
                assert j < OPT['gr'] - 1 and not OPT['ew']
                A('s_waitcnt vmcnt(0)'); count_add(A, S_C3)
            if j == OPT['g2']:
                assert min(WD + [8]) > j
                if WD:
                    A('s_waitcnt vmcnt(0)')
                    lds_add(A, C_WO, 4)
                lds_spin(A, C_KV, 4 if OPT['ua'] and OPT['clr'] >= 100 else 1, 4, 5)
                stamp(A, 10)
                kvload()
            A.label(f'L_hg1{j+1}{sfx}')
    R1 = M
    if hooks: stamp(A, 50)
    for j in order: A(f'ds_read_b128 {vr(KF[j],4)}, v{KRD} offset:{j*1024}'); lq.push(('k', j))
    buf = {8: M, 0: X, 7: Y, 6: Z, 5: NM, 4: X, 3: Y, 2: Z, 1: NM}
    def qk(j, dst):
        lq.wait(('k', j))
        A(mfma32(dst, KF[j], 28, None))
    def hook0():
        if hooks: stamp(A, 9)
    if fast:
        qk(8, M)
        if checks:
            A('v_mov_b32 v2, 0xff800000')
            for r in range(0, 16, 2): A(f'v_mov_b64 v[{NM+r}:{NM+r+1}], 0')
        else: qk(0, NM)
    else:
        for j in (8, 0, 7, 6, 5): qk(j, buf[j])
        if checks:
            A(f's_cmp_ge_u32 {S_T}, 8\ns_cbranch_scc1 L_t0{sfx}\ns_nop 7')
            for r in range(16): A(f'v_mov_b32 v{X+r}, 0xff800000')
            A.label(f'L_t0{sfx}'); A('s_nop 7')
        for r in range(16): A(f'v_cndmask_b32_e64 v{M+r}, v{X+r}, v{M+r}, s[{64+2*r}:{65+2*r}]')
        qk(4, buf[4])
        A(f'v_max_f32 v2, v{M}, v{M+1}\nv_max_f32 v3, v{M+2}, v{M+3}')
        for m in range(1, 4): A(f'v_max3_f32 v2, v2, v{M+4*m}, v{M+4*m+1}\nv_max3_f32 v3, v3, v{M+4*m+2}, v{M+4*m+3}')
        for j in (7, 6, 5, 4, 3, 2, 1):
            b = buf[j]
            if checks: A(f's_cmp_lt_u32 {S_T}, {8-j}\ns_cbranch_scc1 L_bm{sfx}')
            for m in range(4): A(f'v_max3_f32 v2, v2, v{b+4*m}, v{b+4*m+1}\nv_max3_f32 v3, v3, v{b+4*m+2}, v{b+4*m+3}')
            if j - 4 >= 1: qk(j - 4, buf[j - 4])
        if checks:
            A.label(f'L_bm{sfx}'); A.fence(); A('s_waitcnt lgkmcnt(0)\ns_nop 15'); lq.q = []
        A('v_max_f32 v2, v2, v3\nv_mov_b32 v3, v2\nv_permlane32_swap_b32 v2, v3\nv_max_f32 v2, v2, v3')
        hook0()
        A(f'v_sub_f32 v{NM}, 0, v2\nv_sub_f32 v{NM+1}, 0, v2')
        for r in range(2, 16, 2): A(f'v_mov_b64 v[{NM+r}:{NM+r+1}], v[{NM}:{NM+1}]')
    vs = [0]
    def vreads(js):
        A('s_mov_b64 exec, s[28:29]')
        out = {}
        for j in js:
            for blk in range(2):
                st = VRING + 4 * (vs[0] % 4); vs[0] += 1
                A(f'ds_read_b128 {vr(st,4)}, v{VRD} offset:{j*1024 + blk*512}'); lq.push(('v', j, blk)); out[(j, blk)] = st
        A('s_mov_b64 exec, -1')
        return out
    first = [True]
    def pv(j, blk, vreg, p):
        def f():
            lq.wait(('v', j, blk))
            A(mfma32(O, vreg, p, None if first[0] else O))
            first[0] = False
        return f
    buf2 = {7: X, 6: Y, 5: Z, 4: X, 3: Y, 2: Z, 1: X}
    def qk2(j):
        def f():
            if checks:
                uid[0] += 1; n = uid[0]
                A(f's_cmp_lg_u32 {S_T}, {7-j}\ns_cbranch_scc1 L_ni{n}\ns_nop 7')
                for r in range(16): A(f'v_mov_b32 v{NM+r}, 0xff800000')
                A.label(f'L_ni{n}'); A.fence(); A('s_nop 1')
            lq.wait(('k', j))
            A(mfma32(buf2[j], KF[j], 28, None if fast and not checks else NM))
        return f
    def tile(b, pend, pre=()):
        ops = list(pre) + [f'v_exp_f32 v{b+r}, v{b+r}' for r in range(16)] + [f'v_cvt_pk_bf16_f32 v{b+m}, v{b+2*m}, v{b+2*m+1}' for m in range(8)]
        n0 = len(pre); step = max(1, 16 // max(1, len(pend)))
        pos = {n0 + 1 + i * step: f for i, f in enumerate(pend)}
        for i, o in enumerate(ops):
            if i in pos: pos[i]()
            A(o)
    vv = vreads([8, 0])
    if fast: pre = [f'v_cndmask_b32_e64 v{M+r}, v{2 if checks else NM+r}, v{M+r}, s[{64+2*r}:{65+2*r}]' for r in range(16)]
    else: pre = [f'v_sub_f32 v{M+r}, v{M+r}, v2' for r in range(16)]
    tile(M, [qk2(7), qk2(6)], pre=pre)
    for m in range(8): A(f'v_bfi_b32 v{M+8+m}, v{PMASK+m}, 0, v{M+m}')
    for m in range(8): A(f'v_and_b32 v{M+m}, v{PMASK+m}, v{M+m}')
    pend = [pv(8, 0, vv[(8, 0)], M), pv(8, 1, vv[(8, 1)], M + 4), pv(0, 0, vv[(0, 0)], M + 8), pv(0, 1, vv[(0, 1)], M + 12), qk2(5)]
    if fast: hook0()
    for j in (7, 6, 5, 4, 3, 2, 1):
        b = buf2[j]
        if OPT['w1']: lq.all()
        if hooks: hook(j)
        if j == 7 and OPT['v7']:
            vv = {}
            k7 = 3 - OPT['w1']
            f3 = pend[k7]
            pend[k7] = lambda: (f3(), vv.update(vreads([7])))
            tile(b, pend)
        elif j == 7:
            tile(b, pend); vv = vreads([j])
        else:
            vv = vreads([j]); tile(b, pend)
        pend = [pv(j, 0, vv[(j, 0)], b), pv(j, 1, vv[(j, 1)], b + 4)]
        if j - 3 >= 1: pend.append(qk2(j - 3))
    for f in pend: f()
    if hooks:
        hook(0); hook(-1)

def add_pads(txt):
    import subprocess, re, tempfile
    lines = txt.split('\n')
    d = tempfile.mkdtemp()
    tmp = txt.replace(';PAD', '    s_nop 0').replace('L_code_end:', ''.join(f'L_chain{i}:\n' for i in range(8)) + 'L_code_end:')
    open(d + '/a.s', 'w').write(tmp)
    subprocess.check_call(['clang', '-x', 'assembler', '-target', 'amdgcn-amd-amdhsa', '-mcpu=gfx950', '-c', d + '/a.s', '-o', d + '/a.o'])
    dis = subprocess.check_output(['llvm-objdump', '-d', d + '/a.o']).decode()
    addrs = [int(m.group(1), 16) for m in re.finditer(r'// ([0-9A-F]{12}):', dis)]
    out = []; k = 0; shift = 0x300; nxt = 4096; skip = True; walk = False
    for ln in lines:
        if ln.strip() == 's_mov_b64 exec, 0': walk = True
        if ln.startswith('L_padret0'): skip = False
        if ln.startswith('L_cold'): skip = True
        if ln == ';PAD' or (ln.startswith('    ') and not ln.strip().startswith('.')):
            a = addrs[k] + shift; k += 1
            if a >= nxt and not walk:
                nxt += 4096
                if ln != ';PAD' and not skip: out.append(';PAD'); shift += 4
        out.append(ln)
        if ln.strip() == 's_mov_b64 exec, -1': walk = False
    idx = [i for i, ln in enumerate(out) if ln == ';PAD']
    n = len(idx)
    for j, i in enumerate(idx):
        head = f'L_chain{j}:\n' if j < 8 else ''
        out[i] = f'{head}L_pad{j}:\n    s_cbranch_execz ' + ('L_padret0' if j < 4 else f'L_pad{j+4}' if j + 4 < n else 'L_padret1')
    return '\n'.join(out)

def main():
    A = Asm()
    A.raw(f'; @launch grid=(256,1,1) block=(512,1,1) lds={LDS_SIZE}')
    A.raw('.amdgcn_target "amdgcn-amd-amdhsa--gfx950"\n.text')
    gen(A)
    A.raw('L_code_end:\n.p2align 8\n.fill 64, 4, 0xbf800000')
    A.raw(kd(NAME, 256, 100))
    txt = A.text()
    if OPT['pads']: txt = add_pads(txt)
    sys.stdout.write(txt)
main()
```

```python
import sys, math, struct
sys.path.insert(0, 'work')
from asmlib import *

OPT = dict(stamps=0, gst=0, skip='', pfc=2, psl=2, ssl=2, order='01234567', grp=1, gsh=9, tagl=5, la='88664888', n0=10, cst=11, cn=8, e0n=72, ot='', dpos=0, pw2=-1, aw=0, bw=1, npre=6, w4w=0, wf=0, qr=1, pr=18, ua=0, clr=107, wa=1, gp=1, th=16, ap=5, a2=2, gpp=6, hq=-1, hk=-1, e0w=0, e0pos=6, e0a=24, fastk=1, fasta=1, epn=28, cprio=0,
           nat=8, fw=1, pads=1, qd=5, qpoll=56, bq=65, lprio=1, aprio=0, stag=28, ost='sc1', wprio=0, pre=1, wd='8', w0='x', bt=0, hf=0, pol=2, nrep=1, rot=1, mis=0, vb=32, kvs='p', v7=1, tp=2, cw=0, kt=0, kd=1, gl=4, w1=1, ew=0, ko='', bp16=2, re=2, rodd=1, sprio=1, rt=2, vl=2, oz=1, ca=-9, fl=1, lt=1, mt=0, lin='x1001', po='x4567012389abcdef', pn=32, mo16=1, bk=0, fq=0, rm=0, rl=0, ob=0, pb=0, kf=1, sx=0, sp0=0, ho=0, dn=0, ri=0, nf=0, nx=0, nw=0, mq=-1, mo=-1, spo=0, wqs=0, ro=0, tu=-1, wb9=1, wA=8, bp=1, ng=3, sw=36, k0=18, w0n=0, u2=0, tl=0, dg=0, nohook=0, g2=6, gr=3, hp=3, h2=1, hpos=0, fp=16, sp='x', hl=0, xa=8, xm=1, xs=7)
for a in sys.argv[1:]:
    k, v = a.split('='); assert k in OPT, k; OPT[k] = int(v) if v.lstrip('-').isdigit() else v
OST = '' if OPT['ost'] == 'plain' else OPT['ost'].replace('_', ' ')
NAME = 'concat_heads__linear_kernel_hedgehog__sliding_block__prompt_kernel'

def f2u(x): return struct.unpack('<I', struct.pack('<f', x))[0]
LOG2E = math.log2(math.e)
RBS, TWIN = 18, 0x202000
WS_K, WS_O, WS_QG, WS_F1 = 0x000000, 0x400000, 0x800000, 0x1400000
WS_ACC, WS_EP, WS_PR = 0x1100000, 0x1120000, 0x1128000
WS_SIZE = 0x1800000
ACCB, AUX = 2048, 65536
WS_STAMP = 0x1000000
SPIN_MAX = 1 << 16
SLOT = 32768
RING = [0, 32768, 65536, 98304]
KL, VL, PHI = 65536, 90112, 114688
PHI_PLANE, PHI_HEAD, PHI_WAVE = 1088, 4352, 8704
TAG = PHI + 4 * PHI_WAVE - 128
QX, PQX, WPH = 149504, 153600, 161792
WO1 = 0
LDS_SIZE = 163840
C_ATT, C_WQ, C_PQ, C_WO, C_KV, C_WQ2, C_PAIR, C_PART = 8, 12, 16, 20, 24, 28, 32, 48
OACC, VRING, PMASK, ONES = 200, 216, 232, 240
SEL = 200
KVOFF, V1, V0, KRD, VRD, WOL, KVS, QRD, PD = 242, 243, 244, 245, 246, 247, 248, 249, 250
S_T, S_WO, S_ACC, S_OA, S_C3, S_FC, S_FO, S_OUT, S_QG = 's4', 's5', 's6', 's7', 's8', 's12', 's13', 's14', 's15'

class Q:
    def __init__(self, A, name, mx): self.A = A; self.q = []; self.name = name; self.mx = mx
    def push(self, tag): self.q.append(tag)
    def wait(self, *tags):
        idx = -1
        for i, t in enumerate(self.q):
            if t in tags: idx = i
        if idx < 0: return
        n = min(len(self.q) - 1 - idx, self.mx)
        self.A(f's_waitcnt {self.name}({n})')
        self.q = self.q[len(self.q) - n:] if n else []
    def all(self):
        self.A(f's_waitcnt {self.name}(0)'); self.q = []

def stamp(A, idx):
    if not OPT['stamps'] or str(idx) in str(OPT['skip']).split('.'): return
    if OPT['gst'] == 9 and idx not in (30, 31): return
    if OPT['gst'] == 3:
        if 32 <= idx < 42: idx -= 12
        elif idx >= 60: idx -= 60
        elif idx not in (30, 31): return
    elif idx >= 60: return
    elif OPT['gst'] == 2:
        if idx < 10 or 32 <= idx < 50: return
        if idx >= 50: idx -= 50
    elif OPT['gst']:
        if idx < 30 or idx > 47: return
        if idx >= 32: idx -= 32
    elif idx >= 32: return
    A(('s_memrealtime' if OPT['stamps'] == 1 else 's_memtime') + ' s[96:97]')
    A('s_waitcnt lgkmcnt(0)')
    A(f'v_writelane_b32 v253, s96, {idx}')
def stamp_flush(A, srd, wavereg):
    if not OPT['stamps']: return
    stamp(A, 31)
    A(f's_lshl_b32 s98, s37, 3\ns_add_u32 s98, s98, s99\ns_lshl_b32 s98, s98, 3\ns_add_u32 s98, s98, {wavereg}\ns_lshl_b32 s98, s98, 7\ns_add_u32 s98, s98, {WS_STAMP}\ns_and_b32 s52, s52, 0xffffdfff')
    A('v_mbcnt_lo_u32_b32 v252, -1, 0\nv_lshlrev_b32 v252, 2, v252\ns_mov_b32 exec_hi, 0')
    A(f'buffer_store_dword v253, v252, {srd}, s98 offen')

def rowof(r, hi): return (r & 3) + 8 * (r >> 2) + 4 * hi

def dual_exp(A, p, em, t):
    A(f'v_max3_f32 v{t}, v{p}, v{p+1}, v{p+2}\nv_max3_f32 v{t+1}, -v{p}, -v{p+1}, -v{p+2}')
    A(f'v_max3_f32 v{t}, v{t}, v{p+3}, v{p+4}\nv_max3_f32 v{t+1}, v{t+1}, -v{p+3}, -v{p+4}')
    A(f'v_max3_f32 v{t}, v{t}, v{p+5}, v{p+6}\nv_max3_f32 v{t+1}, v{t+1}, -v{p+5}, -v{p+6}')
    A(f'v_max_f32_e64 v{t}, v{t}, v{p+7}\nv_max_f32_e64 v{t+1}, v{t+1}, -v{p+7}')
    A(f'v_permlane32_swap_b32 v{t}, v{t+1}')
    A(f'v_max_f32 v{t}, v{t}, v{t+1}')
    A(f'v_mul_f32 v{t}, s62, v{t}')
    A(f'v_mov_b32 v{t+1}, v{t}')
    A(f'v_permlane32_swap_b32 v{t}, v{t+1}')
    for r in range(8): A(f'v_fma_f32 v{em+r}, -v{p+r}, s62, -v{t+1}\nv_fma_f32 v{p+r}, v{p+r}, s62, -v{t}')
    for r in range(8): A(f'v_exp_f32 v{em+r}, v{em+r}\nv_exp_f32 v{p+r}, v{p+r}')

uid = [0]
OOL = []
COLD = []
FIN = []
def sp_issue(A, loads):
    for d, so, off in loads: A(f's_buffer_load_dword s{d}, s[52:55], {so} offset:{off} glc')
def sp_wait(A, loads, test, inline=True):
    uid[0] += 1; n = uid[0]
    def loop():
        A(f's_mov_b32 s3, {SPIN_MAX}')
        A.label(f'L_pl{n}')
        if OPT['ssl']: A(f's_sleep {OPT["ssl"]}')
        sp_issue(A, loads)
        A(f's_waitcnt lgkmcnt(0)\n{test}\ns_cselect_b32 s3, s3, 0\ns_sub_u32 s3, s3, 1\ns_cbranch_scc0 L_pl{n}')
    if inline:
        A(f's_waitcnt lgkmcnt(0)\n{test}\ns_cbranch_scc0 L_pd{n}')
        loop()
        A.label(f'L_pd{n}')
        return
    A(f's_waitcnt lgkmcnt(0)\n{test}\ns_cbranch_scc1 L_ps{n}')
    A.label(f'L_pd{n}')
    def slow():
        A.label(f'L_ps{n}'); A.fence()
        loop()
        A(f's_branch L_pd{n}')
    OOL.append(slow)
def poll_issue(A, vdst, voff, soff, count=None, off=0):
    o = f' offset:{off}' if off else ''
    A(f'buffer_load_dword v{vdst}, v{voff}, s[52:55], {soff} offen{o} sc1')
def poll(A, vdst, voff, soff, count=None, off=0, inline=False, first=0):
    uid[0] += 1; n = uid[0]
    cmp = f'v_cmp_ne_u32 vcc, {count}, v{vdst}'
    if inline:
        A(f's_waitcnt vmcnt({first})\n{cmp}\ns_cbranch_vccz L_pd{n}\ns_mov_b32 s3, {SPIN_MAX}')
        A.label(f'L_pl{n}')
        if OPT['psl']: A(f's_sleep {OPT["psl"]}')
        poll_issue(A, vdst, voff, soff, count, off)
        A(f's_sub_u32 s3, s3, 1\ns_waitcnt vmcnt(0)\n{cmp}\ns_cselect_b64 vcc, 0, vcc\ns_cbranch_vccnz L_pl{n}')
        A.label(f'L_pd{n}')
        return
    A(f's_waitcnt vmcnt({first})\n{cmp}\ns_cbranch_vccnz L_ps{n}')
    A.label(f'L_pd{n}')
    def slow():
        A.label(f'L_ps{n}'); A.fence()
        A('s_mov_b32 s3, 0')
        A.label(f'L_pl{n}')
        if OPT['psl']: A(f's_sleep {OPT["psl"]}')
        poll_issue(A, vdst, voff, soff, count, off)
        A(f's_add_u32 s3, s3, 1\ns_waitcnt vmcnt(0)\n{cmp}\ns_cbranch_vccz L_pd{n}')
        A(f's_cmp_lt_u32 s3, {SPIN_MAX}\ns_cbranch_scc1 L_pl{n}\ns_branch L_pd{n}')
    OOL.append(slow)
GR = [0, 1, 2, 4, 5, 6, 8, 9]
def gran_issue(A, v, nh):
    if 'q' in OPT['ko']:
        for h in range(3): A(f'v_mov_b32 v{v+4*h+3}, s60')
        return
    for h in range(OPT['ng']): A(f'buffer_load_dwordx4 {vr(v+4*h,4)}, v8, s[52:55], {S_QG} offen offset:{h*1024} sc1')
def gran_wait(A, v, nh, dst, inline, first=0):
    uid[0] += 1; n = uid[0]
    def check(cnt=0):
        A(f's_waitcnt vmcnt({cnt})\nv_cmp_ne_u32_e64 s[24:25], s60, v{v+3}')
        for r in range(1, OPT['ng']): A(f'v_cmp_ne_u32 vcc, s60, v{v+3+4*r}\ns_or_b64 s[24:25], s[24:25], vcc')
    def retry():
        if OPT['psl']: A(f's_sleep {OPT["psl"]}')
        gran_issue(A, v, nh)
    if inline:
        A('s_mov_b32 s3, 0')
        A.label(f'L_gl{n}')
        check()
        A(f's_cbranch_scc0 L_gd{n}')
        retry()
        A(f's_add_u32 s3, s3, 1\ns_cmp_lt_u32 s3, {SPIN_MAX}\ns_cbranch_scc1 L_gl{n}\ns_waitcnt vmcnt(0)')
    else:
        check(first)
        A(f's_cbranch_scc1 L_gs{n}')
        def slow():
            A.label(f'L_gs{n}'); A.fence()
            A('s_mov_b32 s3, 0')
            A.label(f'L_gl{n}')
            retry(); check()
            A(f's_cbranch_scc0 L_gd{n}\ns_add_u32 s3, s3, 1\ns_cmp_lt_u32 s3, {SPIN_MAX}\ns_cbranch_scc1 L_gl{n}\ns_branch L_gd{n}')
        OOL.append(slow)
    A.label(f'L_gd{n}')
    for r in range(8): A(f'v_mov_b32 v{dst+r}, v{v+GR[r % (3*OPT["ng"])]}')

def lds_add(A, off, va):
    A(f'v_mov_b32 v{va}, {TAG}\ns_mov_b64 exec, 1\nds_add_u32 v{va}, v{V1} offset:{off}\ns_mov_b64 exec, -1')
def lds_spin(A, off, cnt, va, vt, sleep=True):
    uid[0] += 1; n = uid[0]
    A(f'v_mov_b32 v{va}, {TAG}\ns_mov_b32 s3, {SPIN_MAX * 4}')
    A.label(f'L_sp{n}')
    if sleep: A('s_sleep 1')
    A(f's_sub_u32 s3, s3, 1\nds_read_b32 v{vt}, v{va} offset:{off}\ns_waitcnt lgkmcnt(0)\nv_cmp_gt_u32 vcc, {cnt}, v{vt}\ns_cselect_b64 vcc, 0, vcc\ns_cbranch_vccnz L_sp{n}')
def count_add(A, soff, off=0):
    A('s_mov_b64 exec, 1')
    A(f'buffer_atomic_add v{V1}, v{V0}, s[52:55], {soff} offen' + (f' offset:{off}' if off else ''))
    A('s_mov_b64 exec, -1')

def srd(A, d, lo, size):
    A(f's_mov_b32 s{d}, s{lo}\ns_mov_b32 s{d+1}, s{lo+1}\ns_mov_b32 s{d+2}, 0x{size:x}\ns_mov_b32 s{d+3}, 0x20000')
def flag(A, soff, tmp):
    A(f'v_mov_b32 v{tmp}, s60\nv_mov_b32 v{tmp+1}, s61\nv_mov_b32 v{tmp+2}, s60\nv_mov_b32 v{tmp+3}, s61\ns_waitcnt vmcnt({63 if "u" in OPT["ko"] else 0})\ns_mov_b64 exec, 0xff')
    A(f'buffer_store_dwordx4 v[{tmp}:{tmp+3}], v8, s[52:55], {soff} offen sc1')
    A('s_mov_b64 exec, -1')
def stream(fn, *a):
    L = []
    fn(lambda t: L.extend(x for x in t.split('\n') if x.strip()), *a)
    return L
def tr_lane(A, d, rowsh, hish):
    A(f'v_bfe_u32 v{d}, v1, 2, 2\nv_lshl_add_u32 v{d}, v11, {hish}, v{d}\nv_lshlrev_b32 v{d}, {rowsh}, v{d}')
def mfma32(d, a, b, c): return f'v_mfma_f32_32x32x16_bf16 {vr(d,16)}, {vr(a,4)}, {vr(b,4)}, {vr(c,16) if c is not None else "0"}'

def common(A):
    for r in range(16):
        for hi in range(2):
            m = 0
            for c in range(32):
                if rowof(r, hi) <= c: m |= 1 << c
            A(f's_mov_b32 s{64+2*r+hi}, 0x{m:x}')
    A(f's_mov_b32 s62, 0x{f2u(LOG2E):x}\ns_mov_b32 s63, 0x{f2u(2.0**100):x}\ns_mov_b32 s28, 0xffff\ns_mov_b32 s29, 0xffff')
    A(f'v_mov_b32 v{ONES}, 0x3f803f80')
    if OPT['oz']: A(f'v_and_b32 v{V1}, 11, v1\nv_cmp_eq_u32 vcc, 0, v{V1}\nv_cndmask_b32 v{ONES}, 0, v{ONES}, vcc')
    A(f'v_mov_b32 v{ONES+1}, v{ONES}\nv_mov_b32 v{V1}, 0xffff')
    for r in range(0, 16, 2): A(f'v_mov_b64 v[{VRING+r}:{VRING+r+1}], v[{ONES}:{ONES+1}]')
    for m in range(8): A(f'v_cndmask_b32_e64 v{PMASK+m}, 0, v{V1}, s[{64+4*m}:{65+4*m}]')
    for m in range(8): A(f'v_cndmask_b32_e64 v{PMASK+m}, v{PMASK+m}, -1, s[{66+4*m}:{67+4*m}]')
    A('s_and_b32 s21, s41, 3\ns_lshr_b32 s22, s41, 2\ns_lshl1_add_u32 s20, s22, s38')
    if OPT['kd']:
        A(f's_lshl1_add_u32 s98, s21, s22\ns_lshl_b32 s98, s98, 12\ns_add_u32 s98, s98, {PHI}')
        if OPT['pb']: A(f'v_lshrrev_b32 v{KVOFF}, 1, v10')
        A(f'v_and_b32 v{V1}, 17, v10\nv_cndmask_b32_e64 v{KVOFF}, v{V1}, v{KVOFF if OPT["pb"] else 10}, s[28:29]\nv_and_b32 v{V1}, 7, v{KVOFF}\nv_lshlrev_b32 v{KVS}, 2, v11\nv_xor_b32 v{V1}, v{V1}, v{KVS}')
        A(f'v_lshl_add_u32 v{KVOFF}, v{KVOFF}, 3, v{V1}\nv_lshl_add_u32 v{KVOFF}, v{KVOFF}, 4, s98')
        A(f'v_lshrrev_b32 v{KVS}, 3, v1\nv_xor_b32 v{KVS}, v{KVS}, v1\nv_lshlrev_b32 v{KVS}, 4, v{KVS}')
    else: A(f'v_and_b32 v{V1}, 1, v10\nv_add_u32 v{V1}, {AUX//128}, v{V1}\nv_cndmask_b32_e64 v{KVOFF}, v{V1}, v10, s[28:29]\nv_lshlrev_b32 v{KVOFF}, 7, v{KVOFF}\nv_lshl_add_u32 v{KVOFF}, v11, 6, v{KVOFF}')
    A(f's_lshl_b32 s24, s21, 10\ns_add_u32 s25, s24, {QX}\nv_add_u32 v{QRD}, s25, v8')
    A(f's_mul_i32 s25, s22, 12288\ns_add_u32 s24, s24, s25\ns_add_u32 s25, s24, {KL}\nv_add_u32 v{KRD}, s25, v8')
    A(f'v_and_b32 v{VRD}, 15, v1\nv_lshlrev_b32 v{VRD}, 4, v{VRD}\nv_lshl_add_u32 v{VRD}, v11, 8, v{VRD}\ns_add_u32 s25, s24, {VL}\nv_add_u32 v{VRD}, s25, v{VRD}')
    A(f'v_lshrrev_b32 v{WOL}, 3, v1\nv_and_b32 v{V0}, 7, v1\nv_bfe_u32 v{V1}, v1, 4, 1\nv_lshlrev_b32 v{V1}, 2, v{V1}\nv_xor_b32 v{V0}, v{V0}, v{V1}\nv_lshlrev_b32 v{V0}, 4, v{V0}\nv_lshl_add_u32 v{WOL}, v{WOL}, 10, v{V0}')
    A(f'v_mov_b32 v{V1}, 1\nv_mov_b32 v{V0}, 0\nv_mov_b64 v[52:53], 0\nv_mov_b64 v[54:55], 0')
    A(f's_lshl_b32 {S_T}, s39, 2\ns_add_u32 {S_T}, {S_T}, s21')
    A(f's_bfe_u32 s23, s36, 0x1000{5 - OPT["ob"]}\ns_lshr_b32 s24, s37, 3\ns_lshl2_add_u32 s23, s23, s24' if OPT['ob'] >= 4 else 's_lshr_b32 s23, s37, 2' if OPT['ob'] != 2 else 's_and_b32 s23, s36, 4\ns_lshr_b32 s24, s37, 3\ns_add_u32 s23, s23, s24')
    A(f's_lshl_b32 s23, s23, 7\nv_add_u32 v{WOL}, s23, v{WOL}\ns_and_b32 s24, {"s39" if OPT["ob"] == 2 else "s37"}, {7 if OPT["ob"] >= 4 else 3}\ns_lshl_b32 s24, s24, {3 if OPT["ob"] >= 4 else 4}\ns_add_u32 s24, s24, s21\ns_lshl_b32 {S_WO}, s24, 10')
    A(f's_lshl_b32 s24, s40, 1\ns_add_u32 s24, s24, s22\ns_mul_i32 {S_ACC}, s24, {ACCB}\ns_add_u32 {S_ACC}, {S_ACC}, {WS_ACC}')
    A(f's_lshl_b32 s24, s21, 1\ns_add_u32 s24, s24, s22\ns_lshl_b32 {S_FO}, s24, 15\ns_add_u32 {S_FO}, {S_FO}, {WS_O}\ns_lshl_b32 s24, s24, 7\ns_add_u32 {S_FC}, s24, {WS_F1 + 4096}')
    A(f's_lshl4_add_u32 s24, s38, s35\ns_lshl_b32 s24, s24, 10\ns_lshl_b32 s25, s39, {RBS}\ns_add_u32 s24, s24, s25\ns_add_u32 {S_OA}, s24, {S_FO}\ns_add_u32 {S_C3}, {S_FC}, s25')
    A(f's_lshl_b32 s24, s35, 15\ns_add_u32 s25, s25, s24\ns_and_b32 s24, s21, 2\ns_add_u32 s24, s24, s21\ns_add_u32 s24, s24, s24\ns_and_b32 s24, s24, 10\ns_lshl_b32 s24, s24, 11\ns_add_u32 s25, s25, s24')
    A(f's_and_b32 s24, s35, 1\ns_lshl_b32 s24, s24, 10\ns_add_u32 s25, s25, s24\ns_mul_i32 s24, s38, {TWIN}\ns_add_u32 s25, s25, s24\ns_add_u32 {S_QG}, s25, {WS_QG}')
    A(('s_and_b32 s24, s39, 12' if OPT['rm'] < 3 else 's_and_b32 s24, s36, 3\ns_lshl_b32 s24, s24, 2') + '\ns_xor_b32 s24, s24, 4')
    OB = OPT['ob']
    if OPT['ri']: A('s_and_b32 s24, s39, 9\ns_xor_b32 s24, s24, 1\ns_and_b32 s25, s37, 3\ns_lshl1_add_u32 s24, s25, s24\ns_lshr_b32 s22, s36, 2')
    elif OB == 0: A('s_and_b32 s25, s37, 3\ns_add_u32 s24, s24, s25\ns_lshr_b32 s22, s36, 2')
    elif OB >= 4: A(f's_and_b32 s25, s37, 4\ns_lshl_b32 s25, s25, {5 - OB}\ns_xor_b32 s24, s24, s25\ns_and_b32 s25, s37, 3\ns_add_u32 s24, s24, s25\ns_lshr_b32 s22, s36, 2')
    elif OB == 2: A('s_xor_b32 s24, s39, 4\ns_mov_b32 s22, s38')
    else: A(f's_lshr_b32 s25, s36, 2\ns_lshl1_add_u32 s24, s25, s24\ns_bfe_u32 s25, s37, 0x10001\ns_add_u32 s24, s24, s25\ns_xor_b32 s22, s38, {int(OB == 3)}')
    A(f's_lshl_b32 {S_OUT}, s24, {RBS}\ns_add_u32 {S_FC}, {S_FC}, {S_OUT}\ns_add_u32 {S_FO}, {S_FO}, {S_OUT}\ns_mul_i32 s25, s22, {TWIN}\ns_add_u32 {S_FO}, {S_FO}, s25')
    A(f's_lshl_b32 s25, s22, 10\ns_add_u32 {S_FC}, {S_FC}, s25\ns_add_u32 {S_OUT}, {S_OUT}, s25\ns_lshl_b32 s25, s21, 16\ns_add_u32 {S_OUT}, {S_OUT}, s25\ns_add_u32 {S_OUT}, {S_OUT}, s23')

def place(A, x):
    if OPT['pol'] != 2: return
    A(f's_lshr_b32 s24, s61, 14\ns_and_b32 s61, s61, 0xffff\ns_cmp_le_u32 s24, s61\ns_cbranch_scc1 L_pl{x}\ns_add_u32 s52, s52, 8192\ns_addc_u32 s53, s53, 0\ns_sub_u32 {S_ACC}, {S_ACC}, 8192')
    if x == 'c': A('s_lshl_b32 s24, s38, 13\ns_sub_u32 s31, s31, s24')
    A.label(f'L_pl{x}')

KARG = 's_load_dwordx16 s[4:19], s[0:1], 0\ns_load_dwordx4 s[20:23], s[0:1], 64'
ROLE = 's_add_u32 s24, s2, s60\ns_and_b32 s24, s24, 7\ns_cmp_lg_u32 s24, s99\n'
def wrong(A):
    A.label('L_wrong'); A.fence()
    A('s_mov_b32 s99, s24\ns_or_b32 s2, s2, 256\ns_setprio 0\ns_waitcnt vmcnt(0) lgkmcnt(0)\ns_barrier\ns_nop 15\n' + (KARG + '\n' if OPT['kf'] else '') + 's_branch L_restart')

def wo_srd(A):
    A(['s_cmp_lt_u32 s36, 4', 's_cmp_eq_u32 s38, 0', 's_cmp_eq_u32 s38, 0', 's_cmp_eq_u32 s38, 1', 's_cmp_lt_u32 s36, 4', 's_cmp_lt_u32 s36, 4'][OPT['ob']] + '\ns_cselect_b32 s44, s10, s16\ns_cselect_b32 s45, s11, s17\ns_mov_b32 s46, 0x80000\ns_mov_b32 s47, 0x20000')

WD = [int(c) for c in str(OPT['wd']) if c.isdigit()]
W0 = [int(c) for c in str(OPT['w0']) if c.isdigit()]
NWO = 4 * (bool(WD) + bool(W0))
def wo_dma(A, j, g=1):
    cnt = 0; n = 16 // max(1, len(WD) + len(W0))
    for k, x in enumerate(WD if g else W0):
        if x != j: continue
        for i in range(n):
            A(f's_xor_b32 m0, {S_WO}, {4096 * (n * (k + (len(W0) if g else 0)) + i)}\ns_lshl_b32 s24, m0, 3')
            if 'w' not in OPT['ko']: A(f'buffer_load_dwordx4 v{WOL}, s[44:47], s24 offen lds'); cnt += 1
    return cnt

def halo_edge(A, x):
    A(f's_cmp_lt_u32 s39, 2\ns_cbranch_scc1 L_nb{x}')
    A.label(f'L_nb2{x}')
    def edge():
        A.label(f'L_nb{x}'); A.fence(); A.raw(';PAD')
        A('v_mov_b32 v48, 0\nv_mov_b32 v49, 0\nv_mov_b32 v50, 0\nv_mov_b32 v51, 0\nv_add_u32 v7, s27, v8')
        for i in range(4): A(f'ds_write_b128 v7, v[48:51] offset:{i*1024}')
        A(f's_cmp_eq_u32 s39, 1\ns_cbranch_scc1 L_nb2{x}')
        for i in range(4, 8): A(f'ds_write_b128 v7, v[48:51] offset:{i*1024}')
        A(f's_branch L_nb2{x}')
    OOL.append(edge)
def halo_loads(x): return [([48, 50, 0][nb] + i, f's{9+nb}', 128*i) for nb in range(3 if x == 'A' else 2) for i in range(2)][-OPT['hl']:]
def halo_addr(A):
    A(f'v_and_b32 v55, 1, v1\nv_lshlrev_b32 v55, 7, v55\ns_mov_b64 exec, 3\nv_add_u32 v55, s9, v55\ns_mov_b64 exec, 12\nv_add_u32 v55, s10, v55\ns_mov_b64 exec, 48\nv_add_u32 v55, s11, v55\ns_mov_b64 exec, -1')
def halo_issue(A, x):
    if x in OPT['sp']: sp_issue(A, halo_loads(x)); return
    if x == 'B': halo_addr(A)
    A(f's_mov_b64 exec, {63 if x == "A" else 15}')
    poll_issue(A, PD, 55, '0', 's60')
    A('s_mov_b64 exec, -1')
def halo_fetch(A, x, first=0):
    t = 's_xor_b64 s[48:49], s[48:49], s[60:61]\ns_xor_b64 s[50:51], s[50:51], s[60:61]\ns_or_b64 s[48:49], s[48:49], s[50:51]'
    if x == 'A': t += '\ns_xor_b64 s[0:1], s[0:1], s[60:61]\ns_or_b64 s[48:49], s[48:49], s[0:1]'
    if OPT['hl']: t = f's_cmp_lg_u32 s{halo_loads(x)[-1][0]}, s60'
    if x in OPT['sp']: sp_wait(A, halo_loads(x), t)
    else:
        A(f's_mov_b64 exec, {63 if x == "A" else 15}')
        if 'p' not in OPT['ko']: poll(A, PD, 55, '0', 's60', inline=True, first=first)
        A('s_mov_b64 exec, -1')
    halo_dma(A, x, x)
def halo_dma(A, x, u):
    stamp(A, 5)
    for nb in range(3 if x == 'A' else 2):
        if nb < 2: A(f's_cmp_lt_u32 s39, {2-nb}\ns_cbranch_scc1 L_sk{nb}{u}')
        A(f's_sub_u32 s25, s33, {(2-nb) << RBS}\ns_add_u32 m0, s27, {nb*4096}')
        for i in range(4 * ('h' not in OPT['ko'])): A(f'buffer_load_dwordx4 v8, s[52:55], s25 offen offset:{i*1024} sc1 lds')
        if nb < 2: A.label(f'L_sk{nb}{u}')
    stamp(A, 7)

def gen(A):
    name = NAME
    WSZ = WS_SIZE if not OPT['stamps'] else 0x2000000
    A.raw(f'.globl {name}\n.p2align 12\n.type {name},@function\n{name}:')
    stamp(A, 30)
    if OPT['kf']: A(KARG)
    A('s_cmp_ge_u32 s2, 256\ns_cbranch_scc1 L_end')
    A('s_getreg_b32 s99, hwreg(HW_REG_XCC_ID, 0, 3)' if OPT['rot'] else 's_and_b32 s99, s2, 7')
    if OPT['mis']: A(f's_lshr_b32 s3, s2, {OPT["mis"]}\ns_add_u32 s99, s99, s3\ns_and_b32 s99, s99, 7')
    if OPT['sx']: A('v_xor_b32 v0, 0x100, v0')
    A.label('L_restart')
    if not OPT['kf']: A(KARG)
    if OPT['pfc'] == 2:
        A('s_getpc_b64 s[24:25]')
        A.label('L_pc0')
        A(f's_and_b32 s3, s2, 0xf8\ns_lshl_b32 s3, s3, 4\nv_lshl_add_u32 v13, v0, 12, s3\nv_min_u32 v13, L_cold-L_pc0-4, v13\nv_cmp_gt_u32 vcc, 7, v0\ns_and_b64 exec, exec, vcc\ns_cbranch_scc0 L_pc1')
        A('global_load_dword v255, v13, s[24:25]')
        A.label('L_pc1')
        A('s_mov_b64 exec, -1')
    A('v_lshrrev_b32 v2, 6, v0\nv_and_b32 v1, 63, v0')
    A('s_lshl_b32 s36, s99, 2\ns_lshr_b32 s36, 0x76325410, s36\ns_and_b32 s36, s36, 7\ns_bfe_u32 s37, s2, 0x50003')
    A('v_readfirstlane_b32 s41, v2')
    RM = OPT['rm']
    if RM == 0: A('s_and_b32 s38, s37, 1')
    else: A('s_lshr_b32 s38, s36, 2' + ('' if RM & 1 else '\ns_xor_b32 s38, s38, 1'))
    if OPT['ri']: A('s_and_b32 s39, s36, 2\ns_and_b32 s42, s37, 6\ns_lshl2_add_u32 s39, s39, s42\ns_and_b32 s42, s36, 1\ns_add_u32 s39, s39, s42')
    elif RM < 3: A('s_and_b32 s39, s36, 3\ns_lshl_b32 s39, s39, 2\ns_bfe_u32 s42, s37, 0x20001\ns_add_u32 s39, s39, s42')
    else: A('s_and_b32 s39, s36, 2\ns_lshl_b32 s39, s39, 2\ns_and_b32 s42, s37, 7\ns_add_u32 s39, s39, s42')
    if RM == 0: A('s_lshl_b32 s35, s38, 2\ns_xor_b32 s35, s35, s36\ns_and_b32 s35, s35, 4\ns_lshr_b32 s42, s37, 3\ns_add_u32 s35, s35, s42')
    else: A(f's_and_b32 s35, {"s37" if RM < 3 else "s36"}, 1\ns_lshr_b32 s42, s37, 3\ns_lshl2_add_u32 s35, s35, s42')
    A('s_lshl_b32 s40, s35, 1\ns_add_u32 s40, s40, s38')
    A('v_lshlrev_b32 v8, 4, v1\nv_and_b32 v10, 31, v1\nv_lshrrev_b32 v11, 5, v1')
    A('s_cmp_lt_u32 s41, 4\ns_cbranch_scc1 L_cpre')
    if OPT['sp0']: A(f's_setprio {OPT["sp0"]}')
    A('s_mov_b32 s46, 0x200000\ns_mov_b32 s47, 0x20000\ns_mov_b32 s50, 0x180000\ns_mov_b32 s51, 0x20000')
    A('s_sub_u32 s43, s41, 4')
    for _ in range(OPT['dn']): A('s_mov_b32 s24, s43')
    A('v_lshrrev_b32 v3, 3, v1\nv_and_b32 v4, 7, v1\nv_lshrrev_b32 v5, 4, v1')
    if 'z' in OPT['ko']: A('v_mov_b32 v5, 0')
    A('v_xor_b32 v6, v4, v5\nv_lshlrev_b32 v6, 4, v6\nv_lshl_add_u32 v6, v3, 10, v6')
    A('s_lshl_b32 s24, s39, 17\ns_lshl_b32 s25, s43, 15\ns_add_u32 s24, s24, s25')
    A('v_add_u32 v16, s24, v6\nv_xor_b32 v17, 64, v16\nv_add_u32 v17, 8192, v17\nv_add_u32 v18, 16384, v16\nv_add_u32 v19, 16384, v17')
    A('v_and_b32 v5, 1, v5\nv_lshlrev_b32 v5, 2, v5\nv_xor_b32 v4, v4, v5\nv_mul_u32_u24 v3, 3072, v3\nv_lshl_add_u32 v3, v4, 4, v3')
    A('s_mul_i32 s24, s43, 49152\ns_lshl_b32 s25, s35, 7\ns_add_u32 s24, s24, s25')
    A('v_add_u32 v20, s24, v3\nv_xor_b32 v21, 32, v20\nv_add_u32 v21, 24576, v21')
    A(f's_lshl_b32 s30, s43, 12\ns_lshl_b32 s31, s43, 11')
    A('s_lshr_b32 s26, s39, 1\ns_add_u32 s26, s26, s35' if OPT['ri'] else 's_add_u32 s26, s39, s35')
    A(f's_and_b32 s26, s26, {OPT["grp"]}\ns_lshl_b32 s26, s26, {OPT["gsh"]}')
    if OPT['lin']:
        c = [int(x) for x in OPT['lin'][1:]]
        T = sum((c[0]*(i >> 1 & 1) ^ c[1]*(i >> 2 & 1) ^ c[2]*(i >> 3 & 1) ^ c[3]*(i & 1)) << (2*i) for i in range(16))
        if RM: A(f's_bfe_u32 s27, s37, 0x1000{OPT["rl"]}')
        A(f's_lshl1_add_u32 s27, s36, {"s27" if RM else "s38"}\ns_lshl_b32 s27, s27, 1\ns_lshr_b32 s27, 0x{T:x}, s27\ns_and_b32 s27, s27, 3\ns_lshl_b32 s27, s27, 7\ns_xor_b32 s26, s26, s27')
        OPT['xa'] = -1; OPT['xm'] = 0
    if OPT['xa'] >= 0: A(f's_lshl_b32 s27, s38, {OPT["xa"]}\ns_xor_b32 s26, s26, s27')
    if OPT['xm']: A(f's_and_b32 s27, s36, {OPT["xm"]}\ns_lshl_b32 s27, s27, {OPT["xs"]}\ns_xor_b32 s26, s26, s27')
    if OPT['ot']:
        T = [sum(int(c) << (4*i) for i, c in enumerate(o)) for o in OPT['ot'].split('.')]
        assert all(sorted(o) == list('01234567') for o in OPT['ot'].split('.'))
        A(f's_add_u32 s24, s39, s35\ns_mov_b32 s34, 0x{T[0]:x}\ns_mov_b32 s25, 0x{T[2]:x}\ns_bitcmp0_b32 s24, 0\ns_cselect_b32 s34, s34, 0x{T[1]:x}\ns_cselect_b32 s25, s25, 0x{T[3]:x}\ns_bitcmp0_b32 s24, 1\ns_cselect_b32 s34, s34, s25')
    if not OPT['ho']:
        A('s_cmp_eq_u32 s38, 0')
        A('s_waitcnt lgkmcnt(0)')
        A('s_cselect_b32 s44, s12, s4\ns_cselect_b32 s45, s13, s5\ns_cselect_b32 s48, s14, s6\ns_cselect_b32 s49, s15, s7')
    stamp(A, 0); stamp(A, 60)
    ORD = [int(c) for c in str(OPT['order']).zfill(8)]
    vq = Q(A, 'vmcnt', 63)
    def wsoff(st):
        if OPT['ot']: A(f's_bfe_u32 s32, s34, 0x{0x30000 + 4*st:x}\ns_lshl_b32 s32, s32, 7\ns_xor_b32 s32, s26, s32\ns_mul_i32 s33, s32, 1536')
        else: A(f's_xor_b32 s32, s26, {st*128}\ns_mul_i32 s33, s32, 1536')
    LT = []
    nis = [0]; cur = [-1]
    def issue(upto):
        while nis[0] < min(upto, 80):
            n = nis[0]; nis[0] += 1
            s, i = divmod(n, 8)
            if OPT['po'] and n < OPT['pn']:
                PO = [int(c, 16) for c in OPT['po'][1:]]
                s, i = divmod(n // 16 * 16 + PO[n % 16], 8)
                if cur[0] != s and i: wsoff(ORD[s])
                cur[0] = s
            base = RING[s % 4]
            if s >= 8:
                if n == 64 and OPT['qr']:
                    assert ORD == list(range(8)) and not OPT['ot']
                    A('s_lshr_b32 s24, s39, 1\ns_add_u32 s24, s24, s35' if OPT['ri'] else 's_add_u32 s24, s39, s35')
                    A('s_and_b32 s24, s24, 2\ns_lshl_b32 s25, s24, 7\ns_xor_b32 s26, s26, s25\ns_lshl_b32 s25, s24, 13\ns_xor_b32 s31, s31, s25')
                if i % 2 == 0: wsoff(ORD[4*(s-8) + i//2])
                A(f's_xor_b32 m0, s31, {base + (i//2)*8192 + (i%2)*1024}')
                A(f'buffer_load_dwordx4 v{20+i%2}, s[48:51], s33 offen{" nt" * (OPT["nw"] >> s & 1)} lds')
            elif i < 4:
                if i == 0: wsoff(ORD[s])
                A(f's_add_u32 m0, s30, {base + i*1024}')
                A(f'buffer_load_dwordx4 v{16+i}, s[44:47], s32 offen{" nt" * (OPT["nx"] >> s & 1)} lds')
            else:
                seg = i // 2 - 1
                A(f's_add_u32 m0, s31, {base + 8192 + seg*7168 + (i%2)*1024}')
                if n == 0 and OPT['ho']: A('s_cmp_eq_u32 s38, 0\ns_waitcnt lgkmcnt(0)\ns_cselect_b64 s[48:49], s[14:15], s[6:7]')
                A(f'buffer_load_dwordx4 v{20+i%2}, s[48:51], s33 offen offset:{seg*1024}{" nt" * (OPT["nw"] >> s & 1)} lds')
                if n == 0 and OPT['ho']: A('s_cselect_b64 s[44:45], s[12:13], s[4:5]')
            vq.push(('st', s))
            if n % 2 and n < 38: stamp(A, 61 + n//2)
            if n >= OPT['cst']:
                for _ in range(OPT['cn']):
                    if LT: A(LT.pop(0))
    issue(OPT['n0'])
    stamp(A, 1)
    srd(A, 52, 22, WSZ); srd(A, 56, 20, 0x100)
    if OPT['pol'] == 1: A('s_add_u32 s52, s52, 8192\ns_addc_u32 s53, s53, 0')
    A('s_branch L_load')
    A.label('L_cpre'); A.fence()
    if OPT['sx']: A('s_setprio 1')
    A('s_lshr_b32 s42, s41, 1\ns_and_b32 s43, s41, 1')
    for r in range(0, 8, 2): A(f'v_mov_b64 v[{16+r}:{17+r}], 0')
    A(f's_lshl_b32 s24, s35, 1\ns_add_u32 s24, s24, s43\ns_lshl_b32 s34, s39, {RBS}')
    A('s_lshl_b32 s25, s42, 11\ns_lshl_b32 s32, s24, 14\ns_add_u32 s32, s32, s25\ns_add_u32 s32, s32, s34')
    A(f's_lshl_b32 s24, s24, 1\ns_add_u32 s24, s24, s42\ns_lshl_b32 s24, s24, 7\ns_add_u32 s34, s34, s24\ns_add_u32 s34, s34, {WS_F1}')
    A('s_waitcnt lgkmcnt(0)')
    srd(A, 52, 22, WSZ); srd(A, 56, 20, 0x100)
    if OPT['pol'] == 1: A('s_add_u32 s52, s52, 8192\ns_addc_u32 s53, s53, 0')
    A('s_cmp_lg_u32 s41, 0\ns_cbranch_scc1 L_d1')
    if OPT['pfc'] == 1:
        A('s_getpc_b64 s[24:25]')
        A.label('L_pc0')
        A(f's_add_u32 s24, s24, {name}-L_pc0\ns_addc_u32 s25, s25, -1')
        A(f's_lshl_b32 s30, s37, 7\nv_lshlrev_b32 v13, 12, v1\nv_add_u32 v13, s30, v13\nv_min_u32 v13, L_cold-{name}-4, v13\ns_mov_b64 exec, 0xff')
        A('global_load_dword v255, v13, s[24:25]')
        A('s_mov_b64 exec, -1')
    srd(A, 44, 8, 0x4000)
    A(f's_lshl_b32 s24, s35, 11\ns_mov_b32 m0, {WPH}')
    for i in range(2): A(f'buffer_load_dwordx4 v8, s[44:47], s24 offen offset:{i*1024} lds')
    A(f'v_mov_b32 v12, {TAG}\nv_lshl_add_u32 v12, v1, 2, v12\ns_mov_b32 exec_hi, 0\nds_write_b32 v12, v16\ns_mov_b64 exec, -1')
    A.label('L_d1'); A.fence()
    A('s_cmp_lg_u32 s41, 1\ns_cbranch_scc1 L_d2\ns_cmp_ge_u32 s2, 32\ns_cbranch_scc1 L_d2')
    A(f's_mul_i32 s24, s2, {ACCB}\ns_add_u32 s24, s24, {WS_ACC}')
    A('buffer_store_dwordx4 v[16:19], v8, s[52:55], s24 offen sc1\nbuffer_store_dwordx4 v[16:19], v8, s[52:55], s24 offen offset:1024 sc1')
    A(f's_add_u32 s24, s24, {AUX}\ns_lshr_b32 s25, s2, 1\ns_lshl_b32 s25, s25, {RBS}\ns_and_b32 s3, s2, 1\ns_lshl_b32 s3, s3, 13\ns_add_u32 s25, s25, s3\ns_add_u32 s25, s25, {WS_F1}\ns_add_u32 s3, s25, 4096')
    A('buffer_store_dwordx4 v[16:19], v8, s[52:55], s3 offen sc1\nbuffer_store_dwordx4 v[16:19], v8, s[52:55], s3 offen offset:1024 sc1')
    if OPT['fw']:
        for i in range(4): A(f'buffer_store_dwordx4 v[16:19], v8, s[52:55], s25 offen offset:{i*1024} sc1')
    A('s_mov_b64 exec, 0xff00')
    for r in range(4): A(f'v_mov_b32 v{20+r}, 1.0')
    A('s_mov_b64 exec, -1')
    A('buffer_store_dwordx4 v[20:23], v8, s[52:55], s24 offen sc1')
    A.label('L_d2'); A.fence()
    DYN = OPT['pol'] == 2
    if DYN:
        A(f's_cmp_lg_u32 s41, 2\ns_cbranch_scc1 L_d21\ns_sub_u32 s24, s2, {OPT["vb"]}\ns_cmp_ge_u32 s24, 32\ns_cbranch_scc1 L_d21')
        A(f's_and_b32 s24, s37, 2\ns_add_u32 s24, s24, s37\ns_add_u32 s24, s24, s24\ns_and_b32 s24, s24, 10\ns_lshl_b32 s24, s24, 11\ns_lshl_b32 s26, s36, 8\ns_add_u32 s26, s26, s24\ns_add_u32 s26, s26, {WS_PR}')
        A('s_buffer_load_dword s60, s[52:55], s26 glc\ns_buffer_load_dword s60, s[52:55], s26 offset:8192 glc')
        A.label('L_d21'); A.fence()
    A('s_cmp_lg_u32 s41, 3\ns_cbranch_scc1 L_d3\ns_cmp_lg_u32 s2, 0\ns_cbranch_scc1 L_d3')
    A(f's_mov_b32 s24, {WS_EP}\nbuffer_load_dword v{PD}, v16, s[52:55], s24 offen sc1')
    A.label('L_d3'); A.fence()
    wo_srd(A)
    if OPT['mt'] & 1: A('s_cmp_eq_u32 s38, 0\ns_cselect_b32 s48, s14, s6\ns_cselect_b32 s49, s15, s7\ns_mov_b32 s50, 0x180000\ns_mov_b32 s51, 0x20000')
    def touch(k):
        if not OPT['mt'] & k: return
        A(f's_cmp_lg_u32 s41, 0\ns_cbranch_scc1 L_mt{k}\ns_mov_b32 exec_hi, 0')
        if k == 1: A('s_mul_i32 s24, s39, 98304\ns_lshl_b32 s25, s35, 7\ns_add_u32 s24, s24, s25\nv_mul_u32_u24 v254, 3072, v1\nbuffer_load_dword v255, v254, s[48:51], s24 offen')
        else: A('s_and_b32 s24, s36, 3\ns_lshl_b32 s24, s24, 2\ns_and_b32 s25, s37, 3\ns_add_u32 s24, s24, s25\ns_lshl_b32 s24, s24, 15\ns_lshr_b32 s25, s37, 2\ns_lshl_b32 s25, s25, 7\ns_add_u32 s24, s24, s25\nv_lshlrev_b32 v254, 10, v1\nbuffer_load_dword v255, v254, s[44:47], s24 offen')
        A('s_mov_b64 exec, -1')
        A.label(f'L_mt{k}')
    if OPT['mq'] < 0: touch(1)
    if OPT['mo'] < 0: touch(2)
    stamp(A, 0)
    common(A)
    if OPT['tl']:
        A('s_cmp_lg_u32 s41, 0\ns_cbranch_scc1 L_tl')
        if OPT['tl'] & 1: A('v_lshlrev_b32 v12, 20, v1\ns_mov_b64 exec, 0xffffff\nbuffer_load_dword v255, v12, s[52:55], 0 offen offset:3968 sc1')
        A('s_mov_b64 exec, 1')
        if OPT['tl'] & 2: A(f'buffer_load_dword v255, v{WOL}, s[44:47], 0 offen')
        if OPT['tl'] & 4:
            srd(A, 48, 18, 0x400000)
            A(f'buffer_load_dword v255, v{V0}, s[48:51], {S_OUT} offen sc1')
        A('s_mov_b64 exec, -1')
        A.label('L_tl')
    A('v_lshrrev_b32 v4, 4, v1\nv_bfe_u32 v12, v1, 1, 3\nv_xor_b32 v12, v12, v4\nv_and_b32 v13, 15, v1\nv_lshl_add_u32 v12, v13, 3, v12')
    A('s_lshl_b32 s24, s42, 13\nv_lshl_add_u32 v2, v12, 4, s24\nv_xor_b32 v3, 64, v2')
    A('v_bfe_u32 v12, v1, 2, 2\nv_lshl_add_u32 v12, v4, 3, v12\nv_lshlrev_b32 v12, 7, v12')
    A('v_bfe_u32 v13, v1, 3, 1\nv_xor_b32 v13, s43, v13\nv_lshl_add_u32 v12, v13, 6, v12')
    A('v_bfe_u32 v13, v1, 4, 1\nv_lshl_add_u32 v12, v13, 5, v12\nv_and_b32 v14, 3, v1\nv_lshl_add_u32 v6, v14, 3, v12')
    A('v_bfrev_b32 v4, v14\nv_lshrrev_b32 v4, 27, v4\nv_add_u32 v4, v4, v12')
    tr_lane(A, 9, 5, 2)
    A(f'v_lshl_add_u32 v9, v14, 3, v9\ns_lshl_b32 s24, s43, 10\ns_add_u32 s24, s24, {WPH}\nv_add_u32 v9, s24, v9')
    A(f'v_mov_b32 v15, {TAG}')
    A('s_and_b32 s24, s38, s42\ns_lshl_b32 s25, s24, 5\nv_xor_b32 v4, s25, v4\nv_xor_b32 v6, s25, v6\ns_lshl_b32 s25, s24, 9\nv_xor_b32 v9, s25, v9\nv_xor_b32 v14, 512, v9')
    A('v_xor_b32 v5, 32, v4\nv_xor_b32 v7, 32, v6')
    for r in range(6): A(f'v_add_u32 v{160+r}, 0x10000, v{2+r}')
    A(f's_lshl_b32 s24, s39, {RBS}\ns_lshl_b32 s25, s40, 8\ns_add_u32 s11, s25, s24\ns_add_u32 s11, s11, {WS_F1}')
    A(f's_lshl_b32 s33, s40, 14\ns_add_u32 s33, s33, s24\ns_lshl_b32 s25, s43, 12\ns_add_u32 s33, s33, s25\ns_mul_i32 s25, s42, {TWIN}\ns_add_u32 s33, s33, s25\ns_mul_i32 s27, s41, 12288\ns_add_u32 s27, s27, {KL}')
    A(f's_min_u32 s24, s39, 2\ns_lshl_b32 s24, s24, {RBS}\ns_sub_u32 s9, s11, s24\ns_min_u32 s24, s24, {1 << RBS}\ns_sub_u32 s10, s11, s24')
    A('s_cmp_eq_u32 s38, 1\ns_cbranch_scc1 L_cpA')
    A('v_and_b32 v12, 15, v1\nv_lshlrev_b32 v12, 4, v12\nv_lshl_add_u32 v12, v11, 8, v12\nv_lshl_add_u32 v52, v13, 12, v12')
    A(f's_lshl_b32 s25, s42, 11\nv_mul_u32_u24 v13, 12288, v13\nv_add_u32 v12, v12, v13\ns_add_u32 s24, s25, {VL + 8192}\nv_add_u32 v53, s24, v12')
    A(f's_add_u32 s24, s25, {KL + 8192}\nv_add_u32 v54, s24, v8\ns_add_u32 s30, s32, 4096\ns_add_u32 s31, s32, {TWIN}')
    A('s_branch L_cpd')
    A.label('L_cpA'); A.fence()
    for r in range(0, 32, 2): A(f'v_mov_b64 v[{168+r}:{169+r}], v[{ONES}:{ONES+1}]')
    A(f's_mul_i32 s30, s41, {PHI_WAVE}\ns_add_u32 s30, s30, {PHI}')
    A('v_and_b32 v12, 1, v1\nv_lshlrev_b32 v12, 4, v12\nv_mov_b32 v13, 0x3f80\nv_lshlrev_b32 v13, v12, v13')
    A('v_lshlrev_b32 v12, 4, v11\nv_sub_u32 v12, v10, v12\nv_lshrrev_b32 v12, 1, v12')
    for r in range(8): A(f'v_cmp_eq_u32 vcc, {r}, v12\nv_cndmask_b32 v{SEL+r}, 0, v13, vcc')
    A(f'v_lshlrev_b32 v54, 2, v10\nv_lshl_add_u32 v54, v11, {9 - OPT["pb"]}, v54')
    A(f'v_add_u32 v52, s30, v8\ns_xor_b32 s24, s41, 2\ns_mul_i32 s25, s24, {PHI_WAVE}\ns_add_u32 s25, s25, {PHI}\nv_add_u32 v53, s25, v8')
    A('v_and_b32 v12, 31, v1\nv_lshl_add_u32 v12, v12, 1, v11\nv_lshl_add_u32 v251, v12, 3, s30\nv_and_b32 v12, 15, v1\nv_lshl_add_u32 v12, v11, 4, v12\nv_lshl_add_u32 v55, v12, 4, s30')
    A(f's_lshl_b32 s24, s35, 2\ns_lshl_b32 s25, s43, 1\ns_add_u32 s24, s24, s25\ns_add_u32 s24, s24, s42\ns_xor_b32 s24, s24, 1\ns_mul_i32 s31, s24, {ACCB}\ns_add_u32 s31, s31, {WS_ACC}')
    A.label('L_cpd'); A.fence()
    def padwalk(k):
        if not OPT['pads']: return
        A('s_mov_b64 exec, 0')
        for w in range(3): A(f's_cmp_eq_u32 s41, {w}\ns_cbranch_scc1 L_chain{4*k+w}')
        A(f's_branch L_chain{4*k+3}')
        A.label(f'L_padret{k}')
        A('s_mov_b64 exec, -1')
    def duties():
        A('s_cmp_lt_u32 s2, 32\ns_cbranch_scc1 L_d4')
        A.label('L_d5')
        def f():
            A.label('L_d4'); A.fence(); A.raw(';PAD')
            A('s_mov_b64 exec, 1\ns_cmp_lg_u32 s41, 1\ns_cbranch_scc1 L_d6')
            A(f's_waitcnt vmcnt(0)\nbuffer_atomic_add v{V1}, v{V0}, s[56:59], 0 offen offset:4')
            A.label('L_d6')
            A('s_cmp_lg_u32 s41, 3\ns_cbranch_scc1 L_d7\ns_cmp_lg_u32 s2, 0\ns_cbranch_scc1 L_d7')
            A(f's_waitcnt vmcnt(0)\nv_add_u32 v{PD}, 8, v{PD}\nv_and_b32 v{PD}, -8, v{PD}\nv_max_u32 v{PD}, 8, v{PD}\nv_or_b32 v{PD}, s99, v{PD}\ns_mov_b32 s24, {WS_EP}')
            A(f'buffer_store_dword v{PD}, v{V0}, s[56:59], 0 offen sc1')
            A(f'buffer_store_dword v{PD}, v{V0}, s[52:55], s24 offen sc1')
            A.label('L_d7')
            A('s_mov_b64 exec, -1\ns_branch L_d5')
        OOL.insert(0, f)
    def clear():
        if not OPT['ua']: return
        A(f'v_mov_b64 v[56:57], -1\nv_mov_b64 v[58:59], -1\ns_add_u32 s24, {S_OA}, 0x4000\ns_add_u32 s25, {S_OA}, 0x200000\ns_add_u32 s3, {S_OA}, 0x204000')
        for so in (S_OA, 's24', 's25', 's3'): A(f'buffer_store_dwordx4 v[56:59], v8, s[52:55], {so} offen sc1')
    if DYN:
        A(f's_cmp_lg_u32 s41, 2\ns_cbranch_scc1 L_d8\ns_sub_u32 s24, s2, {OPT["vb"]}\ns_cmp_ge_u32 s24, 32\ns_cbranch_scc1 L_d8\ns_mov_b64 s[24:25], -1\ns_waitcnt lgkmcnt(0)')
        stamp(A, 27)
        A('s_memtime s[96:97]')
        for r in range(2 * OPT['nrep']):
            a, b = (96, 22) if r % 2 == 0 else (22, 96)
            A(f's_waitcnt lgkmcnt(0)\ns_buffer_load_dword s60, s[52:55], s26 offset:{8192 * (r % 2)} glc\ns_waitcnt lgkmcnt(0)\ns_memtime s[{b}:{b+1}]\ns_waitcnt lgkmcnt(0)')
            A(f's_sub_u32 s3, s{b}, s{a}\ns_min_u32 s{24 + r % 2}, s{24 + r % 2}, s3')
        A('s_cmp_gt_u32 s24, s25\ns_cselect_b32 s3, 2, 0\ns_xor_b32 s3, s3, s36\ns_and_b32 s3, s3, 2\ns_lshl_b32 s3, s3, 15\ns_add_u32 s3, s3, 1')
        A(f'v_mov_b32 v{PD}, s3\ns_mov_b64 exec, 1\nbuffer_atomic_add v{PD}, v{V0}, s[56:59], 0 offen offset:4\ns_mov_b64 exec, -1')
        stamp(A, 28)
        A.label('L_d8'); A.fence()
    padwalk(0)
    if OPT['pw2'] < 0: padwalk(1)
    if OPT['dpos'] < 0: duties()
    A('s_branch L_cons')
    A.label('L_load'); A.fence()
    if OPT['sprio']: A(f's_setprio {OPT["sprio"]}')
    for r in (52, 54, 242, 244, 246, 248): A(f'v_mov_b64 v[{r}:{r+1}], 0')
    A(f'v_bfe_u32 v12, v1, 1, 3\nv_xor_b32 v12, v12, v11\nv_lshlrev_b32 v12, 4, v12')
    A('v_lshl_add_u32 v13, v10, 7, s30')
    for ks in range(4): A(f'v_xor_b32 v14, {ks*32}, v12\nv_add_u32 v{2+ks}, v13, v14')
    for ks in range(4): A(f'v_add_u32 v{12+ks}, 0x10000, v{2+ks}')
    def later(E):
        common(E)
        tr_lane(E, 6, 7, 3)
        E('v_bfe_u32 v7, v1, 3, 1\nv_xor_b32 v7, s38, v7\nv_lshl_add_u32 v6, v7, 6, v6')
        E('v_bfe_u32 v7, v1, 4, 1\nv_xor_b32 v7, v7, v11\nv_lshl_add_u32 v6, v7, 5, v6\nv_and_b32 v7, 3, v1\nv_lshl_add_u32 v7, v7, 3, v6\nv_xor_b32 v6, 64, v7')
        E(f's_mul_i32 s9, s38, {2*TWIN}\ns_sub_u32 s9, {TWIN}, s9\ns_add_u32 s9, s9, {S_QG}')
    LT.extend(stream(later))
    LA = [int(c, 36) for c in str(OPT['la'])]
    XF = 64
    for s in range(8):
        assert LA[s] <= 16
        issue(8*s + 8 + LA[s])
        vq.wait(('st', s))
        A('s_waitcnt lgkmcnt(0)\ns_barrier')
        stamp(A, 32 + s)
        for ks in range(4):
            A(f'ds_read_b128 {vr(XF + 16*s + 4*ks, 4)}, v{(2 if RING[s % 4] < 65536 else 12) + ks} offset:{RING[s % 4] & 65535}')
        if s == OPT['tagl']: A('s_buffer_load_dwordx2 s[60:61], s[56:59], 0')
        if s == 6:
            assert not LT and OPT['tagl'] < 6
            TST = f's_and_b32 s24, s61, 0xffff\ns_cmp_lg_u32 s60, 0\ns_cselect_b32 s24, s24, 0\ns_cmp_lt_u32 s24, {64 if DYN else 32}'
            A(TST + '\ns_cbranch_scc1 L_tgw')
            A.label('L_tgd')
            A(f'v_mov_b32 v22, {TAG}\nv_mov_b32 v24, s60\nv_mov_b32 v25, s61\nds_write_b64 v22, v[24:25]')
            place(A, 'l')
            def tgw():
                A.label('L_tgw'); A.fence()
                A(f's_mov_b32 s3, {SPIN_MAX}')
                A.label('L_tg')
                if OPT['dg']: A(f's_mov_b64 exec, 1\nbuffer_atomic_add v{V1}, v{V0}, s[56:59], 0 offen offset:8\ns_mov_b64 exec, -1')
                A(f's_sleep 1\nbuffer_load_dwordx2 v[24:25], v{V0}, s[56:59], 0 offen sc1\ns_waitcnt vmcnt(0)\nv_readfirstlane_b32 s60, v24\nv_readfirstlane_b32 s61, v25')
                A(TST + '\ns_cselect_b32 s3, s3, 0\ns_sub_u32 s3, s3, 1\ns_cbranch_scc0 L_tg\ns_branch L_tgd')
            OOL.append(tgw)
    if OPT['e0w'] == 0:
        issue(OPT['e0n'])
        A(ROLE + 's_cbranch_scc1 L_wrong\ns_waitcnt lgkmcnt(0)\ns_barrier')
    issue(80)
    if OPT['sprio'] and OPT['spo']: A('s_setprio 0')
    wo_srd(A)
    def awtouch():
        A('s_lshr_b32 s24, s37, 1\ns_lshl_b32 s24, s24, 2\ns_add_u32 s24, s24, s43\ns_xor_b32 s25, s38, 1\ns_lshl_b32 s25, s25, 6\ns_add_u32 s24, s24, s25\ns_lshl_b32 s24, s24, 13\nv_lshl_add_u32 v28, v1, 7, s24')
        A('buffer_load_dword v255, v28, s[44:47], 0 offen'); vq.push('aw')
    if OPT['aw'] == 1: awtouch()
    A(f's_cmp_eq_u32 s38, 0\ns_cselect_b32 s27, 0x{f2u(0.25*LOG2E):x}, {"s62" if OPT["fq"] else "1.0"}')
    vq.wait(('st', 7 + max(1, OPT['e0w'])))
    if OPT['e0w']: A('s_waitcnt lgkmcnt(0)\ns_barrier')
    else:
        lds_add(A, C_WQ, 22)
        lds_spin(A, C_WQ, 4, 22, 23, sleep=bool(OPT['wqs']))
    stamp(A, 40)
    stamp(A, 42); stamp(A, 2)
    if OPT['sprio']: A('s_setprio 0')
    if OPT['lprio']:
        if not OPT['aprio']: A('s_cmp_eq_u32 s38, 1\ns_cbranch_scc1 L_noprio')
        A(f's_setprio {OPT["lprio"]}')
        A.label('L_noprio')
    lq = Q(A, 'lgkmcnt', 15)
    NR = 6; WF = 192; QD = OPT['qd']
    def qread(m):
        n = m % 32; f = WF + 4 * (m % NR)
        for rd in range(2):
            A(f'ds_read_b64_tr_b16 v[{f+2*rd}:{f+2*rd+1}], v{6 + m//32} offset:{n*2048 + rd*512}'); lq.push(('q', m))
    for m in range(QD): qread(m)
    ep = []
    for h in range(3):
        rr = range(3*h, min(3*h + 3, 8))
        ep += [f'v_mul_f32 v{32+2*r+e}, s27, v{32+2*r+e}' for r in rr for e in range(2)] + [f'v_cvt_pk_bf16_f32 v{16+GR[r]}, v{32+2*r}, v{33+2*r}' for r in rr]
        if h < OPT['ng'] and 'Q' not in OPT['ko']: ep += [f'buffer_store_dwordx4 {vr(16+4*h,4)}, v8, s[52:55], s9 offen offset:{h*1024} sc1']
    for m in range(64):
        lq.wait(('q', m))
        acc = 32 + 16 * (m // 32)
        if 'c' in OPT['ko'] and m % 32: A('s_nop 7')
        else: A(mfma32(acc, WF + 4*(m % NR), XF + 4*(m % 32), acc if m % 32 else None))
        if m == 16 - QD - 4 and OPT['e0w'] < 2:
            vq.wait(('st', 9))
            lds_add(A, C_WQ2, 22); lq.push('cnt')
        if m + QD == 16 and OPT['e0w'] < 2:
            lds_spin(A, C_WQ2, 4, 22, 23, sleep=False); lq.q = []
            stamp(A, 41); stamp(A, 22)
        if m + QD < 64: qread(m + QD)
        if m >= 32:
            for _ in range(OPT['epn']):
                if ep: A(ep.pop(0))
        if m == OPT['aw'] and m > 1: awtouch()
        if m == 31: stamp(A, 23)
        if m == 33: stamp(A, 24)
        if m == 20:
            for r in (19, 23, 26, 27): A(f'v_mov_b32 v{r}, s60')
        if m == 44:
            tr_lane(A, 15, 5, 2)
            A(f'v_and_b32 v14, 3, v1\nv_lshl_add_u32 v15, v14, 3, v15\ns_lshl_b32 s24, s38, 10\ns_add_u32 s24, s24, {WPH}\nv_add_u32 v15, s24, v15')
        if m == 46:
            for hs in range(2):
                for rd in range(2): A(f'ds_read_b64_tr_b16 v[{16+4*hs+2*rd}:{17+4*hs+2*rd}], v15 offset:{hs*512 + rd*256}'); lq.push('wphi')
        if m == OPT['qpoll'] or m == OPT['bq']:
            if OPT['qpoll'] != OPT['bq']: A(f's_cmp_eq_u32 s38, {0 if m == OPT["qpoll"] else 1}\ns_cbranch_scc1 L_noqp{m}')
            gran_issue(A, 32, 2)
            A.label(f'L_noqp{m}')
    stamp(A, 4)
    if OPT['lprio']: A('s_setprio 0')
    A(f's_lshl_b32 s24, s43, 10\nv_add_u32 v15, s24, v{QRD}')
    if not OPT['fq']: A('s_cmp_eq_u32 s38, 1\ns_cbranch_scc1 L_qa')
    for r in range(16): A(f'v_mul_f32 v{48+r}, s27, v{48+r}')
    if OPT['fq']: A('s_cmp_eq_u32 s38, 1\ns_cbranch_scc1 L_qa')
    for r in range(8): A(f'v_cvt_pk_bf16_f32 v{24+r}, v{48+2*r}, v{49+2*r}')
    A(f'ds_write_b128 v{QRD}, v[24:27]')
    if OPT['bq'] == 64: gran_issue(A, 32, 2)
    A('s_waitcnt lgkmcnt(0)\ns_barrier')
    if OPT['bq'] == 65: gran_issue(A, 32, 2)
    if OPT['bt']:
        A('s_bfe_u32 s24, s37, 0x10001\ns_lshl_b32 s24, s24, 2\ns_add_u32 s24, s24, s43\ns_lshl_b32 s24, s24, 16\ns_lshr_b32 s25, s37, 2\ns_lshl_b32 s25, s25, 7\ns_add_u32 s24, s24, s25\nv_lshlrev_b32 v14, 10, v1')
        A('buffer_load_dword v255, v14, s[44:47], s24 offen')
    if OPT['wb9']:
        stamp(A, 8)
        gran_wait(A, 32, 2, 104, False, 0)
        if OPT['bp']: A('s_setprio 1')
        A('s_branch L_qb')
    A.label('L_wo'); A.fence()
    if not OPT['wb9']: stamp(A, 8)
    if OPT['bp']: A('s_setprio 0')
    nwo = wo_dma(A, 8) + OPT['bt']
    if OPT['wb9']:
        stamp(A, 26)
        A('s_branch L_att')
    else:
        A('s_cmp_eq_u32 s38, 1\ns_cbranch_scc1 L_att')
        gran_wait(A, 32, 2, 104, False, nwo)
        stamp(A, 7)
        A('s_branch L_qb')
    A.label('L_qa'); A.fence()
    if not OPT['fq']: A('s_nop 8')
    for r in range(8): A(f'v_cvt_pk_bf16_f32 v{104+r}, v{48+2*r}, v{49+2*r}')
    A.label('L_qb'); A.fence(); A('s_nop 1')
    for hs in range(2): A(mfma32(64+16*hs, 16+4*hs, 104+4*hs, None))
    def phiq(E, hs):
        p = 64 + 16 * hs
        if OPT['fq']:
            for r in range(8): E(f'v_exp_f32_e64 v{p+8+r}, -v{p+8+r}\nv_exp_f32 v{p+r}, v{p+r}')
        else: dual_exp(E, p, p + 8, 96 + 2*hs)
        for m in range(8): E(f'v_cvt_pk_bf16_f32 v{(104 if hs == 0 else 48)+m}, v{p+2*m}, v{p+2*m+1}')
    if OPT['fq']:
        A('v_max3_f32 v96, |v64|, |v65|, |v66|\nv_max3_f32 v96, v96, |v67|, |v68|\nv_max3_f32 v96, v96, |v69|, |v70|')
        A('v_max3_f32 v96, v96, |v71|, |v80|\nv_max3_f32 v97, |v81|, |v82|, |v83|\nv_max3_f32 v96, v96, |v84|, |v85|\nv_max3_f32 v97, v97, |v86|, |v87|')
        A(f'v_max_f32 v96, v96, v97\nv_cmp_nge_f32 vcc, 0x{f2u(float(OPT["fq"])):x}, v96\ns_cbranch_vccnz L_qx')
        A.label('L_qx2')
        def qx():
            A.label('L_qx'); A.fence()
            for hs in range(2):
                p, t = 64 + 16*hs, 96
                A(f'v_max3_f32 v{t}, v{p}, v{p+1}, v{p+2}\nv_max3_f32 v{t+1}, -v{p}, -v{p+1}, -v{p+2}')
                A(f'v_max3_f32 v{t}, v{t}, v{p+3}, v{p+4}\nv_max3_f32 v{t+1}, v{t+1}, -v{p+3}, -v{p+4}')
                A(f'v_max3_f32 v{t}, v{t}, v{p+5}, v{p+6}\nv_max3_f32 v{t+1}, v{t+1}, -v{p+5}, -v{p+6}')
                A(f'v_max_f32_e64 v{t}, v{t}, v{p+7}\nv_max_f32_e64 v{t+1}, v{t+1}, -v{p+7}')
                A(f'v_permlane32_swap_b32 v{t}, v{t+1}\nv_max_f32 v{t}, v{t}, v{t+1}\nv_mov_b32 v{t+1}, v{t}\nv_permlane32_swap_b32 v{t}, v{t+1}')
                for r in range(8): A(f'v_sub_f32 v{p+r}, v{p+r}, v{t}\nv_add_f32 v{p+8+r}, v{p+8+r}, v{t+1}')
            A('s_branch L_qx2')
        COLD.append(qx)
    for a, b in zip(stream(phiq, 0), stream(phiq, 1)): A(a); A(b)
    A(f'ds_write_b128 v15, v[104:107] offset:{PQX-QX}\nds_write_b128 v15, v[108:111] offset:{PQX-QX+1024}')
    lds_add(A, C_PQ, 14)
    stamp(A, 6)
    A('s_cmp_eq_u32 s38, 0\ns_cbranch_scc1 ' + ('L_wo' if OPT['wb9'] else 'L_att'))
    gran_wait(A, 32, 2, 24, True)
    A(f'ds_write_b128 v{QRD}, v[24:27]')
    stamp(A, 7)
    A('s_waitcnt lgkmcnt(0)\ns_barrier')
    if OPT['wb9'] or OPT['wA'] < 8: stamp(A, 8)
    A('s_branch L_wo' if OPT['wA'] == 8 else 's_branch L_att')
    A.label('L_cons'); A.fence(); A.raw(';PAD')
    stamp(A, 21)
    KA, VA = [96, 112], [128, 144]
    FS = [16, 64]
    lq = Q(A, 'lgkmcnt', 12)
    def reads(n):
        s, ks = divmod(n, 2); f = FS[n % 2]
        ab = 2 if RING[s % 4] < 65536 else 160
        so = RING[s % 4] & 65535
        def rx(u): return [(f'ds_read_b128 {vr(f+4*u,4)}, v{ab+ks} offset:{so + u*2048}', (n, 'x', u))]
        def rw(c): return [(f'ds_read_b64_tr_b16 v[{f+16+4*c+2*rd}:{f+17+4*c+2*rd}], v{ab+2+c} offset:{so + 16384 + (c//2)*8192 + ks*4096 + rd*512}', (n, 'w', c)) for rd in range(2)]
        return rx(0) + rw(0) + rx(1) + rw(1) + rx(2) + rx(3) + rw(2) + rw(3)
    def mfma16(d, a, b, c): return f'v_mfma_f32_16x16x32_bf16 {vr(d,4)}, {vr(a,4)}, {vr(b,4)}, {vr(c,4) if c is not None else "0"}'
    def mk(n, u, hs):
        d = KA[u//2] + 8*hs + 4*(u % 2)
        return mfma16(d, FS[n % 2] + 16 + 4*hs, FS[n % 2] + 4*u, d if n else None)
    def mv1(n, u, hs):
        d = VA[u//2] + 8*(u % 2) + 4*hs
        return mfma16(d, FS[n % 2] + 4*u, FS[n % 2] + 24 + 4*hs, d if n else None)
    def mv(n, u): return mv1(n, u, 0) + '\n' + mv1(n, u, 1)
    KO = [(0, 0), (1, 0), (1, 1), (0, 1), (2, 1), (2, 0), (3, 0), (3, 1)]
    A('s_waitcnt lgkmcnt(0)\ns_barrier')
    stamp(A, 1)
    for t, tag in reads(0): A(t); lq.push(tag)
    for n in range(14):
        nxt = reads(n + 1)
        newstage = (n % 2 == 1)
        for mi in range(16):
            seg = mi // 8; u, hs = KO[mi % 8] if not seg else KO[7 - mi % 8]
            if OPT['mo16']: u, hs = divmod(mi % 8, 2)
            if newstage and mi == OPT['bp16']: lq.all()
            elif n and mi == 0: lq.wait((n, 'x', 3) if OPT['rodd'] == 1 else (n, 'w', 3))
            else: lq.wait((n, 'x', u), (n, 'w', 2*seg + hs))
            A(mv1(n, u, hs) if seg else mk(n, u, hs))
            if mi == 0 and 2*n == OPT['pw2']: padwalk(1)
            if mi == 0 and 2*n == OPT['dpos']: duties()
            if mi == 12 and n == OPT['mq']: touch(1)
            if mi == 12 and n == OPT['mo']: touch(2)
            if newstage and mi == OPT['bp16']: A('s_barrier')
            for _ in range(OPT['rodd' if newstage else 're']):
                if nxt and (not newstage or mi >= OPT['bp16']):
                    t, tag = nxt.pop(0); A(t); lq.push(tag)
        assert not nxt
        if n == 10: A('s_waitcnt vmcnt(0)')
        if n == 11:
            for hs in range(2):
                for rd in range(2): A(f'ds_read_b64_tr_b16 v[{56+4*hs+2*rd}:{57+4*hs+2*rd}], v{14 if hs else 9} offset:{rd*256}'); lq.push('wphi')
        if n == 13:
            A('s_not_b64 exec, s[28:29]\nv_mov_b64 v[56:57], 0\nv_mov_b64 v[58:59], 0\ns_mov_b64 exec, s[28:29]\nv_mov_b64 v[60:61], 0\nv_mov_b64 v[62:63], 0\ns_mov_b64 exec, -1')
            A('ds_read_b64 v[12:13], v15'); lq.push('tag')
    if OPT['cprio']: A('s_setprio 2')
    nxt = reads(15)
    E0P = 2 * OPT['e0pos']
    assert 10 < E0P < 16
    for g in range(16):
        n = 14 + g // 8; u, hs = KO[g % 8]
        if g == E0P: lq.all()
        elif g == 0: lq.wait((n, 'x', 3) if OPT['rodd'] == 1 else (n, 'w', 3))
        else: lq.wait((n, 'x', u), (n, 'w', hs))
        A(mk(n, u, hs))
        if g == E0P: A(ROLE + 's_cbranch_scc1 L_wrong\ns_barrier')
        for t, tag in nxt[OPT['rt']*g:OPT['rt']*(g+1)]: A(t); lq.push(tag)
        if g == 10: A('v_readfirstlane_b32 s60, v12\nv_readfirstlane_b32 s61, v13')
        if g == 15: place(A, 'c'); A('s_mov_b32 s61, s60')
    stamp(A, 2)
    A('s_cmp_eq_u32 s38, 1\ns_cbranch_scc1 L_epA')
    hist = list(A.hist)
    def weave(mf, fill, per):
        fill = list(fill)
        for m in mf:
            A(m)
            for _ in range(per):
                if fill: A(fill.pop(0))
        for f in fill: A(f)
    def cv(d, a): return [f'v_cvt_pk_bf16_f32 v{d+m}, v{a+2*m}, v{a+2*m+1}' for m in range(4)]
    def sw(d, *ks): return [f'v_permlane{k}_swap_b32 v{d+m}, v{d+2+m}' for k in ks for m in range(2)]
    def two(d, a, *ks): return cv(d, a) + cv(d+4, a+8) + [x for k in ks for e in range(2) for x in sw(d+4*e, k)]
    ckv = [x for tt in range(2) for x in two(160+8*tt, KA[tt], 16)]
    sk = [f'buffer_store_dwordx4 {vr(160+8*tt+4*e,4)}, v8, s[52:55], {"s30" if e else "s32"} offen offset:{tt*1024} sc1' for tt in range(2) for e in range(2)]
    cvv = [two(176+8*tt, VA[tt], 16, 32) for tt in range(2)]
    sv = [f'buffer_store_dwordx4 {vr(176+8*tt+4*e,4)}, v52, s[52:55], s31 offen offset:{tt*1024+e*512} sc1' for tt in range(2) for e in range(2)]
    VO = [mv1(n, u, hs) for tt in range(2) for n in (14, 15) for u in (2*tt, 2*tt+1) for hs in range(2)]
    A(VO[0]); A(VO[1])
    if OPT['bk']:
        ckv = ckv[:12] + sk[:2] + ckv[12:] + sk[2:]; sk = []
    weave(VO[2:], ckv + cvv[0], 2)
    if OPT['cprio']: A('s_setprio 0')
    if OPT['e0pos'] >= 8: A('s_barrier')
    if OPT['bw']:
        for x in cvv[1]: A(x)
        cvv[1] = []
        lds_spin(A, C_WQ, 4, 2, 3)
    for x in sk + sv[:2] + cvv[1] + sv[2:]:
        if 's' not in OPT['ko'] or not x.startswith('buffer'): A(x)
    stamp(A, 3)
    flag(A, 's34', 2)
    stamp(A, 4)
    halo_edge(A, 'B')
    A('s_cmp_eq_u32 s43, 1\ns_cbranch_scc1 L_epB1')
    for tt in range(2):
        for e in range(2):
            A(f'ds_write_b128 v54, {vr(160+8*tt+4*e,4)} offset:{e*12288 + tt*1024}')
            A(f'ds_write_b128 v53, {vr(176+8*tt+4*e,4)} offset:{tt*1024 + e*512}')
    A.label('L_epB1')
    A('s_cmp_eq_u32 s39, 0\ns_cbranch_scc1 L_epB2')
    halo_issue(A, 'B'); halo_fetch(A, 'B')
    A.label('L_epB2')
    A('s_waitcnt vmcnt(0) lgkmcnt(0)\ns_branch L_e1')
    A.label('L_epA'); A.hist = hist; A.raw(';PAD')
    KPK = {0: 160, 1: 208}
    VM = [168, 184]
    EM = {(0, 0): 16, (1, 0): 24, (0, 1): 32, (1, 1): 40}
    TM = {(0, 0): 2, (1, 0): 4, (0, 1): 12, (1, 1): 14}
    PT = {(0, 0): 64, (1, 0): 80, (0, 1): 80, (1, 1): 16}
    PP = {(0, 0): 64, (1, 0): 72, (0, 1): 80, (1, 1): 16}
    def phik(E, tt, hs, fast):
        p = KA[tt] + 8*hs; em = EM[(tt, hs)]; t = TM[(tt, hs)]; d = PT[(tt, hs)]
        if fast:
            for r in range(8): E(f'v_mul_f32 v{p+r}, s62, v{p+r}')
            for r in range(8): E(f'v_exp_f32_e64 v{em+r}, -v{p+r}\nv_exp_f32 v{p+r}, v{p+r}')
        else: dual_exp(E, p, em, t)
        E(f'v_add_f32 v{t}, v{p}, v{p+1}\nv_add_f32 v{t+1}, v{em}, v{em+1}')
        for r in range(2, 8): E(f'v_add_f32 v{t}, v{t}, v{p+r}\nv_add_f32 v{t+1}, v{t+1}, v{em+r}')
        E(f'v_permlane32_swap_b32 v{t}, v{t+1}\nv_add_f32 v{t}, v{t}, v{t+1}')
        if fast: E(f'v_max_f32 v6, v6, v{t}')
        E(f'v_rcp_f32 v{t}, v{t}\nv_mov_b32 v{t+1}, v{t}\nv_permlane32_swap_b32 v{t}, v{t+1}')
        for r in range(8): E(f'v_mul_f32 v{p+r}, v{p+r}, v{t}')
        for x in cv(p, p): E(x)
        for r in range(8):
            E(f'v_mul_f32 v{em+r}, v{em+r}, v{t+1}')
            if r == 1: E(mfma32(d, p, SEL, None))
        for x in cv(em, em): E(x)
    def phik2(hs): return [x for tt in range(2) for x in cv(PP[(tt, hs)], PT[(tt, hs)]) + cv(PP[(tt, hs)] + 4, PT[(tt, hs)] + 8)]
    def tm2(hs): return [mfma32(PT[(tt, hs)], EM[(tt, hs)], SEL + 4, PT[(tt, hs)]) for tt in range(2)]
    def pair(fn, hs, *a): return [x for ab in zip(stream(fn, 0, hs, *a), stream(fn, 1, hs, *a)) for x in ab]
    ck = [two(KPK[tt], KA[tt], 16) for tt in range(2)]
    pm = [[mfma32(KA[tt], 56, KPK[tt], None), mfma32(KA[tt], 60, KPK[tt]+4, KA[tt])] for tt in range(2)]
    KV = [128, 144]
    def kvm(hs): return [mfma32(KV[hs], VM[hs] + 8*tt + 4*blk, PP[(tt, hs)] + 4*blk, KV[hs] if hs or tt or blk else None) for tt in range(2) for blk in range(2)]
    send = [f'ds_write_b128 v52, {vr(KV[0],4)}', f'ds_write_b128 v52, {vr(KV[0]+4,4)} offset:1024', f'ds_write_b32 v52, v{KV[0]+8} offset:2048', f'ds_write_b32 v48, v{V1}']
    recv = f'ds_read_b32 v50, v49\nds_read_b128 {vr(KV[1],4)}, v53\nds_read_b128 {vr(KV[1]+4,4)}, v53 offset:1024\nds_read_b32 v{KV[1]+8}, v53 offset:2048'
    weave([mv1(14, u, hs) for u in range(3) for hs in range(2)], ck[0], 2)
    weave(pm[0], ck[1], 6)
    for m in pm[1]: A(m)
    A(mv(14, 3))
    A(f'v_mov_b32 v6, 0\ns_lshl_b32 s25, s41, 2\ns_add_u32 s25, s25, {TAG + C_PAIR}')
    fast = bool(OPT['fastk'])
    S = [pair(phik, hs, fast) for hs in range(2)]
    vb = [(VM[hs] + 8*tt + 4*blk, VA[tt] + 8*blk + 4*hs) for hs in range(2) for tt in range(2) for blk in range(2)]
    vc = [x for d, a in vb for x in cv(d, a)[:2]] + [x for k in (16, 32) for d, a in vb for x in sw(d, k)]
    KD, KZ = (KV[1] + 8, KV[1]) if OPT['vl'] == 2 else (KV[1], KV[1] + 8)
    recv = f'ds_read_b32 v50, v49\nds_read_b128 {vr(KD,4)}, v53\nds_read_b128 {vr(KD+4,4)}, v53 offset:1024\nds_read_b32 v{KZ}, v53 offset:2048'
    if OPT['vl'] == 2:
        vc = [x for tt in range(2) for x in two(VM[1] + 8*tt, VA[tt], 16, 32)] + ['s_mov_b64 exec, s[28:29]']
        vc += [f'v_mov_b64 v[{VM[0]+r}:{VM[0]+r+1}], v[{VM[1]+r}:{VM[1]+r+1}]' for r in range(0, 16, 2)] + [f'v_mov_b64 v[{VM[1]+r}:{VM[1]+r+1}], v[{ONES}:{ONES+1}]' for r in range(0, 16, 2)] + ['s_mov_b64 exec, -1']
    vr2 = []
    if OPT['vl'] == 3:
        vc = [x for i, (d, a) in enumerate(vb) for x in cv(a, a)[:2] + ([f'ds_write_b64 v251, v[{vb[i-1][1]}:{vb[i-1][1]+1}] offset:{4096 + 512*(i-1)}'] if i else [])] + [f'ds_write_b64 v251, v[{vb[7][1]}:{vb[7][1]+1}] offset:{4096 + 512*7}']
        vr2 = [['s_mov_b64 exec, s[28:29]'] + [f'ds_read_b128 {vr(vb[i][0],4)}, v55 offset:{4096 + 512*i}' for i in range(4*h, 4*h+4)] + ['s_mov_b64 exec, -1'] for h in range(2)]
    if OPT['vl'] == 1:
        vc = [x for d, a in vb for x in cv(a, a)[:2]] + [f'ds_write_b64 v166, v[{a}:{a+1}] offset:{4096 + 512*i}' for i, (d, a) in enumerate(vb)]
        vc = [x.replace('v166', 'v251') for x in vc]
        vc += ['s_mov_b64 exec, s[28:29]'] + [f'ds_read_b128 {vr(d,4)}, v55 offset:{4096 + 512*i}' for i, (d, a) in enumerate(vb)] + ['s_mov_b64 exec, -1']
    D = 2 * OPT['stag']
    rest = [mv(15, u) for u in range(4)]
    L = len(S[0])
    K0 = OPT['k0']
    tail0 = {L: tm2(0), L + K0 - 4: phik2(0), L + K0: ['s_waitcnt lgkmcnt(0)'] + kvm(0)[:1], L + K0 + 2: kvm(0)[1:2], L + K0 + 6: kvm(0)[2:3], L + K0 + 10: kvm(0)[3:],
             L + OPT['sw']: (['v_cmp_ngt_f32 vcc, s63, v6', 's_cbranch_vccnz L_kexa'] if fast else []) + send}
    assert K0 + 10 < OPT['sw'] < D and K0 - 4 < D - 24
    assert D >= 26
    for i in range(0, L + D, 2):
        if i < L: A(S[0][i]); A(S[0][i+1])
        if rest and i % 4 == 2:
            A(rest.pop(0))
            if not rest and OPT['cprio']: A('s_setprio 0')
        if OPT['e0pos'] >= 8 and i == OPT['e0a']: A('s_barrier')
        if i == D - 2:
            halo_edge(A, 'A')
            for x in vc: A(x)
            A('v_mov_b32 v48, s25\nv_xor_b32 v49, 8, v48')
            stamp(A, 6)
        if vr2 and i in (D + 20, D + 40):
            for x in vr2.pop(0): A(x)
        if i >= D: A(S[1][i-D]); A(S[1][i-D+1])
        for x in tail0.get(i, []): A(x)
    for m in tm2(1): A(m)
    stamp(A, 3)
    two2 = fast and max(i for i, x in enumerate(S[1]) if x.startswith('v_max_f32 v6,')) + D > L + OPT['sw']
    if two2: A('v_cmp_ngt_f32 vcc, s63, v6\ns_cbranch_vccnz L_kexb')
    A.label('L_kdone')
    A(recv)
    if OPT['hf'] in (2, 3): halo_addr(A); halo_issue(A, 'A')
    for x in phik2(1)[:8]: A(x)
    A('s_waitcnt lgkmcnt(0)\nv_cmp_eq_u32 vcc, 0, v50\ns_cbranch_vccnz L_exs')
    A.label('L_exd')
    def exs():
        A.label('L_exs'); A.fence()
        A(f's_mov_b32 s3, {SPIN_MAX * 4}')
        A.label('L_exs2')
        A(recv)
        A('s_sub_u32 s3, s3, 1\ns_waitcnt lgkmcnt(0)\nv_cmp_eq_u32 vcc, 0, v50\ns_cselect_b64 vcc, 0, vcc\ns_cbranch_vccnz L_exs2\ns_branch L_exd')
    OOL.append(exs)
    weave(kvm(1), phik2(1)[8:], 4)
    if OPT['hf'] not in (2, 3): halo_addr(A)
    else: A('s_nop 7')
    if fast:
        def kexact():
            for hs in range(2):
                if hs == 0 or two2:
                    A.label('L_kex' + 'ab'[hs]); A.fence()
                    A('s_nop 15')
                    for tt in range(2):
                        for m in pm[tt]: A(m)
                for x in pair(phik, hs, False) + tm2(hs): A(x)
                if hs == 0:
                    for x in phik2(0) + kvm(0) + send: A(x)
            A('s_nop 1\ns_branch L_kdone')
        COLD.append(kexact)
    stamp(A, 20)
    def atomics():
        if OPT['pb']:
            for m in range(4): A(f'v_cvt_pk_bf16_f32 v{KD+m}, v{KD+2*m}, v{KD+2*m+1}')
            A(f'v_mul_f32 v{KZ}, 0x{f2u(1 + 2.0**-8.5):x}, v{KZ}')
            for m in range(4): A(f'buffer_atomic_pk_add_bf16 v{KD+m}, v54, s[52:55], s31 offen offset:{(m & 1)*128 + (m >> 1)*512}')
        else:
            for r in range(OPT['nat']): A(f'buffer_atomic_add_f32 v{KD+r}, v54, s[52:55], s31 offen offset:{rowof(r,0)*128}')
        A(f's_mov_b32 exec_hi, 0\ns_add_u32 s31, s31, {AUX}')
        A(f'buffer_atomic_add_f32 v{KZ}, v54, s[52:55], s31 offen')
        A('s_mov_b64 exec, -1')
    if 'A' in OPT['sp']:
        if OPT['hpos'] == 0: halo_issue(A, 'A')
        atomics()
        stamp(A, 4)
        if OPT['hpos'] == 1: halo_issue(A, 'A')
        halo_fetch(A, 'A')
        A('s_cmp_lt_u32 s39, 2\ns_cbranch_scc0 L_c2\ns_waitcnt vmcnt(4)')
        A.label('L_c2')
        A('s_waitcnt vmcnt(12)')
        count_add(A, 's31', 256)
        stamp(A, 19)
        A('s_waitcnt vmcnt(1)')
    else:
        if OPT['hf'] >= 3:
            if OPT['hf'] == 4: halo_issue(A, 'A')
            atomics()
            stamp(A, 4)
            A(f's_mov_b64 exec, 63\ns_waitcnt vmcnt({OPT["nat"] + 1})\nv_cmp_ne_u32 vcc, s60, v{PD}\ns_mov_b64 exec, -1\ns_cbranch_vccnz L_hlate')
            halo_dma(A, 'A', 'E')
            A('s_cmp_lt_u32 s39, 2\ns_cbranch_scc0 L_c2\ns_waitcnt vmcnt(4)')
            A.label('L_c2')
            A('s_waitcnt vmcnt(12)')
            count_add(A, 's31', 256)
            stamp(A, 19)
            A('s_waitcnt vmcnt(1)\ns_branch L_e1')
            A.label('L_hlate'); A.fence()
        elif OPT['hf']:
            A(f's_mov_b64 exec, 63\ns_waitcnt vmcnt(0)\nv_cmp_ne_u32 vcc, s60, v{PD}\ns_mov_b64 exec, -1\ns_cbranch_vccnz L_hlate')
            halo_dma(A, 'A', 'E')
            atomics()
            stamp(A, 4)
            A('s_waitcnt vmcnt(0)')
            count_add(A, 's31', 256)
            stamp(A, 19)
            A('s_branch L_e1')
            A.label('L_hlate'); A.fence()
        if OPT['hf'] < 3: atomics(); stamp(A, 4)
        halo_issue(A, 'A')
        A('s_waitcnt vmcnt(1)')
        count_add(A, 's31', 256)
        stamp(A, 19)
        halo_fetch(A, 'A', 1)
        A('s_waitcnt vmcnt(0)')
    A.label('L_e1'); A.fence()
    A(f's_lshl_b32 s24, s41, 10\nv_add_u32 v9, s24, v{QRD}')
    A('s_barrier')
    stamp(A, 8)
    A(f'ds_read_b128 v[28:31], v{QRD}')
    A.label('L_att'); A.fence(); A.raw(';PAD')
    if OPT['wprio']:
        A('s_cmp_lt_u32 s41, 4\ns_cbranch_scc1 L_wp\ns_setprio 1')
        A.label('L_wp')
    A('s_cmp_lt_u32 s39, 2\ns_cbranch_scc1 L_bslow')
    FA = bool(OPT['fasta'])
    bunit(A, False, FA, not OPT['nohook'], 'f')
    A.label('L_bdone'); A.fence()
    stamp(A, 11)
    if OPT['nohook']: A('s_branch L_fin2')
    O = OACC
    A(f's_add_u32 s24, {S_OA}, {TWIN}\ns_add_u32 s27, {S_C3}, 1024\ns_nop 9')
    if FA:
        A(f'v_pk_mul_f32 v[2:3], v[{O}:{O+1}], 0')
        for m in range(1, 4): A(f'v_pk_fma_f32 v[2:3], v[{O+2*m}:{O+2*m+1}], 0, v[2:3]')
        A(f'v_add_f32 v2, v2, v3\nv_add_f32 v2, v2, v{O+8}\nv_subrev_u32 v2, 0x{f2u(2.0**-60):x}, v2')
        A(f'v_cmp_lt_u32 vcc, 0x{f2u(2.0**60) - f2u(2.0**-60):x}, v2\ns_cbranch_vccnz L_bexact'.replace('vccnz', 'execz' if OPT['ko'] else 'vccnz'))
        A.label('L_bdone2')
    A(f'v_rcp_f32 v4, v{O+8}')
    for m in range(4): A(f'v_pk_mul_f32 v[{O+2*m}:{O+2*m+1}], v[{O+2*m}:{O+2*m+1}], v[4:5] op_sel_hi:[1,0]')
    for m in range(4): A(f'v_cvt_pk_bf16_f32 v{16+m}, v{O+2*m}, v{O+2*m+1}')
    A(f'buffer_store_dwordx4 v[16:19], v8, s[52:55], s24 offen sc1')
    UA = OPT['ua']
    if UA: count_add(A, 's27'); stamp(A, 12)
    A('s_cmp_ge_u32 s41, 4\ns_cbranch_scc1 L_nord')
    lds_spin(A, C_PQ, 4, 4, 5, sleep=False)
    A(f'ds_read_b128 v[48:51], v9 offset:{PQX-QX}\nds_read_b128 v[52:55], v9 offset:{PQX-QX+1024}')
    readout(A, 64, 180, 1 + UA + 16 // max(1, len(WD) + len(W0)) * sum(1 for x in W0 if x <= OPT['h2'])); readout2(A, 64, 180)
    if OPT['tp'] == 1: A('s_setprio 0')
    A.label('L_nord')
    tr_lane(A, 6, 7, 2)
    A('v_and_b32 v7, 1, v1\nv_lshl_add_u32 v6, v7, 5, v6\nv_bfe_u32 v7, v1, 1, 1\nv_lshl_add_u32 v6, v7, 3, v6\nv_and_b32 v7, 16, v1\nv_add_u32 v6, v6, v7')
    A('s_lshr_b32 s24, s41, 2\ns_lshl_b32 s24, s24, 11\nv_bfe_u32 v7, v1, 3, 1\nv_lshl_add_u32 v6, v7, 6, v6\nv_add_u32 v2, s24, v6\nv_xor_b32 v3, 64, v2')
    assert OPT['wa'] and not UA and not W0
    A('s_bfe_u32 s25, s37, 0x10002' if OPT['ro'] else 's_mov_b32 s25, 0')
    if OPT['ro'] == 1: A('s_lshr_b32 s24, s41, 2\ns_and_b32 s25, s25, s24')
    A(f's_lshl_b32 s24, s25, 12\nv_add_u32 v2, s24, v2\nv_add_u32 v3, s24, v3\nv_xor_b32 v6, 4096, v2\nv_xor_b32 v7, 4096, v3')
    A(f's_lshl_b32 s24, s25, 14\ns_sub_u32 s31, {S_FO}, s24\ns_add_u32 {S_FO}, {S_FO}, s24')
    OFR, PRE, AC = 16, 80, 208
    def wread(m):
        for rd in range(2): A(f'ds_read_b64_tr_b16 v[{PRE+4*m+2*rd}:{PRE+4*m+2*rd+1}], v{2 + m//16*4 + m%2} offset:{(m//2 % 8)*8192 + rd*1024}')
    def early():
        if OPT['ew'] == 1: A('v_mov_b32 v251, 0\ns_cmp_ge_u32 s41, 4\ns_cbranch_scc1 L_nosp')
        if OPT['ew']: poll_issue(A, 251, V0, S_FC)
        A.label('L_nosp')
    early()
    if OPT['cw']: A(f'v_mov_b32 v12, {TAG}'); assert OPT['npre'] == 0
    else: lds_spin(A, C_WO, NWO, 12, 13, sleep=False)
    for m in range(OPT['npre']): wread(m)
    def oload(k): A(f'buffer_load_dwordx4 {vr(OFR+4*k,4)}, v8, s[52:55], {[S_FO,"s26","s24","s25"][k//4]} offen offset:{(k%4)*1024} sc1')
    SF = 'F' in OPT['sp']
    FULL = 0x810 if OPT['ew'] else 16
    if OPT['ew']: A(f's_xor_b32 s24, s38, 1\ns_lshl_b32 s24, s24, 8\ns_add_u32 s24, s24, 1\nv_mov_b32 v14, s24')
    A(f's_add_u32 s26, {S_FO}, 4096\ns_lshr_b32 s24, s41, 2\ns_lshl_b32 s3, s24, 3\nv_lshlrev_b32 v15, s3, v{V1}')
    A('v_lshlrev_b32 v13, 10, v1' + ('' if OPT['u2'] else '\ns_waitcnt vmcnt(0)'))
    if not SF and not OPT['wf']: poll_issue(A, PD, V0, S_FC, count=FULL)
    A('s_mov_b64 exec, 3' + ('\ns_sub_u32 exec_lo, 3, s24' if OPT['ca'] >= -1 else ''))
    A(f'buffer_atomic_add v{14 if OPT["ew"] else V1}, v13, s[52:55], {S_C3} offen\ns_mov_b64 exec, 1\nds_add_u32 v12, v15 offset:{C_ATT}\ns_mov_b64 exec, -1')
    if OPT['ew']:
        A('v_readfirstlane_b32 s30, v251\ns_lshr_b32 s30, s30, 11')
        A('s_cbranch_scc0 L_noear')
        for k in range(8): oload(k)
        A.label('L_noear')
    stamp(A, 13)
    if OPT['gp'] == 1: A('s_setprio 0')
    if OPT['sx'] == 1:
        A('s_cmp_ge_u32 s41, 4\ns_cbranch_scc1 L_sx\ns_setprio 1')
        A.label('L_sx')
    if OPT['cw']: lds_spin(A, C_WO, NWO, 12, 13, sleep=False)
    for m in range(OPT['npre'], 32): wread(m)
    A('v_and_b32 v9, 15, v1\nv_lshlrev_b32 v9, 11, v9\nv_and_b32 v14, 48, v1\nv_add_u32 v9, v9, v14')
    if 'f' in OPT['ko']: A('v_and_b32 v9, 7, v1\nv_lshlrev_b32 v9, 12, v9\nv_and_b32 v14, 48, v1\nv_add_u32 v9, v9, v14\nv_and_b32 v14, 8, v1\nv_lshl_add_u32 v9, v14, 3, v9')
    if 'F' in OPT['ko']: A('v_lshrrev_b32 v9, 3, v1\nv_lshlrev_b32 v9, 12, v9\nv_and_b32 v14, 7, v1\nv_lshl_add_u32 v9, v14, 4, v9')
    A(f's_and_b32 s24, s41, 3\ns_lshl_b32 s25, s24, 13\ns_add_u32 s25, s25, {PHI}\nv_add_u32 v4, s25, v8\ns_lshl_b32 s24, s24, 2\ns_add_u32 s24, s24, {TAG + C_PART}\nv_mov_b32 v5, s24')
    if OPT['fl']:
        A('v_and_b32 v14, 7, v1\nv_lshlrev_b32 v9, 1, v11\nv_xor_b32 v9, v9, v14\nv_lshl_add_u32 v9, v10, 3, v9\nv_lshl_add_u32 v245, v9, 4, s25')
        A(f'v_add_u32 v249, s25, v{KVS}\nv_xor_b32 v246, 16, v245\nv_xor_b32 v247, 64, v245\nv_xor_b32 v248, 80, v245')
        A('v_lshrrev_b32 v9, 3, v1\nv_lshlrev_b32 v9, 11, v9\nv_lshl_add_u32 v9, v14, 4, v9')
        A(f's_add_u32 s28, {S_OUT}, 16384\ns_add_u32 s29, {S_OUT}, 49152')
    srd(A, 56, 18, 0x400000)
    A(f's_add_u32 s24, s31, 16384\ns_add_u32 s25, s31, 20480\ns_add_u32 s27, {S_OUT}, 32768')
    stamp(A, 25)
    def fpoll():
        if SF:
            sp_issue(A, [(48, S_FC, 0)]); sp_wait(A, [(48, S_FC, 0)], f's_cmp_lg_u32 s48, {FULL}')
        else:
            if OPT['wf']: poll_issue(A, PD, V0, S_FC, count=FULL)
            poll(A, PD, V0, S_FC, count=FULL, inline=True, first=1 - OPT['wf'])
    if not OPT['wf']: fpoll()
    stamp(A, 12)
    if not OPT['w4w']: A('s_cmp_ge_u32 s41, 4\ns_cbranch_scc1 L_noatt')
    if OPT['w0n']: A('s_cmp_lg_u32 s30, 0\ns_cbranch_scc1 L_noatt')
    lds_spin(A, C_ATT, 0x400, 12, 13)
    A.label('L_noatt')
    if OPT['wf']: fpoll()
    stamp(A, 14)
    if OPT['ew']: A('s_cmp_lg_u32 s30, 0\ns_cbranch_scc1 L_late8')
    for k in range(8): oload(k)
    A.label('L_late8')
    for k in range(8, 16): oload(k)
    A('s_waitcnt lgkmcnt(0)')
    if OPT['fl']:
        def fm(k, ct): return mfma32(AC+16*ct, PRE + 8*k + 4*ct, OFR+4*k, AC+16*ct if k else None)
        def common_mf(m0, m1):
            for m in range(m0, m1):
                k, ct = m // 2, m % 2
                if ct == 0: A(f's_waitcnt vmcnt({15-k})')
                A(fm(k, ct))
        PR = OPT['pr']
        assert 16 <= PR <= 21
        common_mf(0, PR + 1)
        A('s_cmp_ge_u32 s41, 4\ns_cbranch_scc1 L_fin')
        hist = list(A.hist)
        common_mf(PR + 1, 32)
        stamp(A, 16)
        for i in range(8): A(f'ds_write_b128 v4, {vr(AC+4*i,4)} offset:{i*1024}')
        A(f'ds_write_b32 v5, v{V1}\ns_waitcnt lgkmcnt(0)\ns_branch L_fin2')
        A.label('L_fin'); A.hist = hist
        prd = 'ds_read_b32 v12, v5\n' + '\n'.join(f'ds_read_b128 {vr(OFR+4*i,4)}, v4 offset:{i*1024}' for i in range(8))
        A(prd)
        common_mf(PR + 1, 22)
        def adds(ct): return [f'v_add_f32 v{AC+16*ct+r}, v{AC+16*ct+r}, v{OFR+16*ct+r}' for r in range(16)]
        def pack(ct): return [x for e in range(2) for x in cv(48 + 8*ct + 4*e, AC + 16*ct + 8*e) + [f'ds_write_b128 v{245 + 2*ct + e}, {vr(48 + 8*ct + 4*e, 4)}']]
        def vm(n): return f's_waitcnt vmcnt({n})\n'
        def lag():
            A.hist = A.hist[-1:]
        A(vm(4) + fm(11, 1)); lag()
        A('s_waitcnt lgkmcnt(0)\nv_cmp_eq_u32 vcc, 0, v12\ns_cbranch_vccnz L_prs')
        A.label('L_prd')
        def prs():
            A.label('L_prs'); A.fence()
            if OPT['lt']:
                A(fm(11, 0)); common_mf(24, 32)
            A(f's_mov_b32 s3, {SPIN_MAX * 4}')
            A.label('L_prs2')
            A('ds_read_b32 v12, v5\ns_sub_u32 s3, s3, 1\ns_waitcnt lgkmcnt(0)\nv_cmp_eq_u32 vcc, 0, v12\ns_cselect_b64 vcc, 0, vcc\ns_cbranch_vccnz L_prs2')
            if not OPT['lt']: A(prd + '\ns_waitcnt lgkmcnt(0)\ns_branch L_prd'); return
            A(prd)
            for i in range(8):
                A(f's_waitcnt lgkmcnt({7-i})')
                for r in (4*i, 4*i + 2): A(f'v_pk_add_f32 v[{AC+r}:{AC+r+1}], v[{AC+r}:{AC+r+1}], v[{OFR+r}:{OFR+r+1}]')
            A('s_branch L_pk')
        FIN.append(prs)
        stamp(A, 15)
        for x in adds(0)[:4]: A(x)
        weave([vm(3) + fm(12, 1), vm(2) + fm(13, 1)], adds(0)[4:], 6)
        A(fm(11, 0)); A(fm(12, 0)); lag()
        for x in adds(1)[:5]: A(x)
        weave([fm(13, 0), vm(1) + fm(14, 0)], adds(1)[5:], 6)
        A(vm(0) + fm(15, 0)); A(fm(14, 1)); A(fm(15, 1)); lag()
        A.label('L_pk')
        for x in pack(0): A(x)
        stamp(A, 16)
        for x in pack(1): A(x)
        for i in range(4): A(f'ds_read_b128 {vr(OFR+4*i,4)}, v249 offset:{i*1024}')
        for i in range(4): A(f's_waitcnt lgkmcnt({3-i})\nbuffer_store_dwordx4 {vr(OFR+4*i,4)}, v9, s[56:59], {[S_OUT, "s28", "s27", "s29"][i]} offen {OST}')
    else:
        for m in range(32):
            k, ct = m // 2, m % 2
            if ct == 0: A(f's_waitcnt vmcnt({15-k})')
            A(mfma32(AC+16*ct, PRE+4*m, OFR+4*k, AC+16*ct if k else None))
            if m == 30 and UA:
                A(f's_cmp_lg_u32 s30, 0\ns_cbranch_scc1 L_acked\ns_mov_b64 exec, 3\nv_lshlrev_b32 v12, 15, v1\nbuffer_atomic_add v{V1}, v12, s[52:55], {S_C3} offen offset:64\ns_mov_b64 exec, -1')
                A.label('L_acked'); A.hist = A.hist[:-4]
            if m == OPT['tu']:
                A(f'ds_read_b32 v13, v12 offset:{C_ATT}\ns_mov_b64 exec, 1\nds_add_rtn_u32 v14, v5, v{V1} offset:16\ns_mov_b64 exec, -1')
            if m == OPT['pr']:
                assert m >= 17
                if OPT['tu'] >= 0: A('s_waitcnt lgkmcnt(0)\nv_readfirstlane_b32 s30, v14')
                else: A('s_lshr_b32 s30, s41, 2')
                A(f's_cmp_eq_u32 s30, 0\ns_cbranch_scc1 L_nopr\ns_mov_b32 s3, {SPIN_MAX * 4}')
                A.label('L_prs')
                A('ds_read_b32 v12, v5\ns_sub_u32 s3, s3, 1\ns_waitcnt lgkmcnt(0)\nv_cmp_eq_u32 vcc, 0, v12\ns_cselect_b64 vcc, 0, vcc\ns_cbranch_vccnz L_prs')
                stamp(A, 15)
                for i in range(8): A(f'ds_read_b128 {vr(OFR+4*i,4)}, v4 offset:{i*1024}')
                A.label('L_nopr')
        stamp(A, 16)
        if UA:
            A(f'v_cmp_u_f32 vcc, v{AC}, v{AC}\ns_cbranch_vccnz L_late')
            A.label('L_late2')
            def late():
                A.label('L_late'); A.fence()
                A('s_cmp_lg_u32 s30, 0\ns_cbranch_scc1 L_late2\ns_mov_b32 s30, 1\ns_waitcnt lgkmcnt(0)')
                poll_issue(A, PD, V0, S_FC, count=16, off=64)
                poll(A, PD, V0, S_FC, count=16, off=64, inline=True)
                A('s_branch L_again')
            COLD.append(late)
        A('s_cmp_lg_u32 s30, 0\ns_cbranch_scc1 L_fin')
        if OPT['tu'] >= 0:
            A('v_cmp_gt_u32 vcc, 0x404, v13\ns_cbranch_vccnz L_aw')
            A.label('L_aw2')
            def aw():
                A.label('L_aw'); A.fence()
                lds_spin(A, C_ATT, 0x404, 12, 13)
                A('s_branch L_aw2')
            COLD.append(aw)
        else: assert not OPT['w0n']
        for i in range(8): A(f'ds_write_b128 v4, {vr(AC+4*i,4)} offset:{i*1024}')
        A(f'ds_write_b32 v5, v{V1}\ns_waitcnt lgkmcnt(0)\ns_branch L_fin2')
        A.label('L_fin')
        A('s_waitcnt lgkmcnt(0)' + ('' if UA else '\ns_nop 7'))
        for ct in range(2):
            for r in range(0, 16, 2): A(f'v_pk_add_f32 v[{AC+16*ct+r}:{AC+16*ct+r+1}], v[{AC+16*ct+r}:{AC+16*ct+r+1}], v[{OFR+16*ct+r}:{OFR+16*ct+r+1}]')
            b = 48 + 8 * ct
            for m in range(8): A(f'v_cvt_pk_bf16_f32 v{b+m}, v{AC+16*ct+2*m}, v{AC+16*ct+2*m+1}')
            for m in range(4): A(f'v_permlane16_swap_b32 v{b+m}, v{b+4+m}')
            for h in range(2 if 'o' not in OPT['ko'] else 1 - ct if 'O' in OPT['ko'] else 0): A(f'buffer_store_dwordx4 {vr(b+4*h,4)}, v9, s[56:59], {"s27" if h else S_OUT} offen offset:{ct*(2048 if "f" in OPT["ko"].lower() else 64)} {OST}')
    A.label('L_fin2')
    stamp_flush(A, 's[52:55]', 's41')
    A.label('L_end'); A.fence()
    A('s_endpgm')
    for f in FIN: f()
    A.label('L_bslow'); A.fence(); A.raw(';PAD')
    bunit(A, True, FA, not OPT['nohook'], 's')
    A('s_branch L_bdone')
    for f in OOL: f()
    A.label('L_cold')
    if FA:
        A.label('L_bexact'); A.fence()
        bunit(A, True, False, False, 'x')
        A('s_nop 11\ns_branch L_bdone2')
    for f in COLD: f()
    wrong(A)

def kvread(A, n):
    for m in range(1, 4): A(f'v_xor_b32 v{32+4*m}, {16*m}, v{KVOFF}')
    A(f's_waitcnt vmcnt({n})')
    for m in range(4): A(f'ds_read_b128 {vr(32+4*m,4)}, v{32+4*m if m else KVOFF}')
    if OPT['pb']: A(f'v_mov_b32 v{KVS}, 0x07060302\ns_mov_b32 exec_lo, 0x5555\ns_mov_b32 exec_hi, 0x5555\nv_mov_b32 v{KVS}, 0x05040100\ns_mov_b64 exec, -1')
def readout(A, R1, R2, n):
    if not OPT['kd']: A(f's_waitcnt vmcnt({n})')
    elif n: kvread(A, n); A('s_waitcnt lgkmcnt(0)')
    for m in range(8): A(f'v_perm_b32 v{32+m}, v{33+2*m}, v{32+2*m}, v{KVS}' if OPT['pb'] else f'v_cvt_pk_bf16_f32 v{32+m}, v{32+2*m}, v{33+2*m}')
    if n and not OPT['kd']: A('s_waitcnt lgkmcnt(0)')
    A(mfma32(R1, 32, 48, None)); A(mfma32(R2, 36, 52, None))
def readout2(A, R1, R2):
    A(f'v_mov_b32 v6, 0x{f2u(1e-6):x}')
    A(f'v_rcp_f32 v4, v{R1+9}\nv_rcp_f32 v5, v{R2+9}')
    A(f'v_fmac_f32 v6, v{R1+8}, v4\nv_fmac_f32 v6, v{R2+8}, v5')
    A('v_rcp_f32 v6, v6')
    A('v_mul_f32 v4, v4, v6\nv_mul_f32 v5, v5, v6')
    for r in range(8): A(f'v_mul_f32 v{R1+r}, v{R1+r}, v4')
    for r in range(8): A(f'v_fmac_f32 v{R1+r}, v{R2+r}, v5')
    for m in range(4): A(f'v_cvt_pk_bf16_f32 v{20+m}, v{R1+2*m}, v{R1+2*m+1}')
    A(f'buffer_store_dwordx4 v[20:23], v8, s[52:55], {S_OA} offen sc1')
    if OPT['ua']: count_add(A, S_C3)
    if OPT['wprio']: A('s_setprio 0')
    stamp(A, 17)

def bunit(A, checks, fast, hooks, sfx):
    lq = Q(A, 'lgkmcnt', 15)
    KF = {j: 144 + 4 * j for j in range(9)}
    M, X, Y, Z, NM = 64, 80, 96, 112, 128
    O = OACC
    order = [8, 0, 7, 6, 5, 4, 3, 2, 1]
    def kvload():
        if OPT['kd']:
            fl = OPT["kvs"].replace("p", "")
            A(f's_mov_b32 m0, s98\ns_add_u32 s24, {S_ACC}, {AUX - 2048}')
            for i in range(2 - OPT['pb']): A(f'buffer_load_dwordx4 v{KVS}, s[52:55], {S_ACC} offen offset:{1024*i} {fl} lds')
            A(f's_mov_b64 exec, 0xffff\nbuffer_load_dwordx4 v{KVS}, s[52:55], s24 offen offset:2048 {fl} lds\ns_mov_b64 exec, -1')
            return
        for m in range(4): A(f'buffer_load_dwordx4 {vr(32+4*m,4)}, v{KVOFF}, s[52:55], {S_ACC} offen offset:{16*m} {OPT["kvs"].replace("p", "")}')
    def hook(j):
        stamp(A, 58 - j)
        if j + 100 == OPT['clr'] and OPT['ua']:
            assert j > OPT['h2']
            A(f's_cmp_ge_u32 s41, 4\ns_cbranch_scc1 L_nclr{sfx}')
            A(f'v_mov_b64 v[56:57], -1\nv_mov_b64 v[58:59], -1\ns_add_u32 s24, {S_OA}, 0x4000\ns_add_u32 s25, {S_OA}, 0x200000\ns_add_u32 s3, {S_OA}, 0x204000')
            for so in (S_OA, 's24', 's25', 's3'): A(f'buffer_store_dwordx4 v[56:59], v8, s[52:55], {so} offen sc1')
            A.label(f'L_nclr{sfx}')
        same = (OPT['hp'], OPT['h2']) == (OPT['ap'], OPT['a2'])
        for ty, (hp, h2) in enumerate([(OPT['hp'], OPT['h2']), (OPT['ap'], OPT['a2'])][:1 if same else 2]):
            if j not in (hp, h2) and not (same and j in W0): continue
            A((f's_cmp_ge_u32 s41, 4' if same else f's_cmp_lg_u32 s20, {ty}') + f'\ns_cbranch_scc1 L_hg0{ty}{j+1}{sfx}')
            if j == hp:
                A(f's_mov_b64 exec, 3\nv_lshlrev_b32 v5, 11, v1\nv_add_u32 v5, {AUX}, v5')
                poll_issue(A, PD, 5, S_ACC, count=16, off=256)
                A('s_mov_b64 exec, -1')
            if j == h2:
                A('s_mov_b64 exec, 3')
                poll(A, PD, 5, S_ACC, count=16, off=256, first=16 // max(1, len(WD) + len(W0)) * sum(1 for x in W0 if h2 < x <= hp))
                lds_add(A, C_KV, 4)
                if OPT['tp']: A('s_setprio 2')
                stamp(A, 10)
                kvload()
                if OPT['kt']: A(f'buffer_load_dword v255, v{KVOFF}, s[52:55], {S_ACC} offen offset:{ACCB}')
            assert same or not W0
            wo_dma(A, j, 0)
            A.label(f'L_hg0{ty}{j+1}{sfx}')
        if j == OPT['wA']:
            assert j > OPT['g2']
            A(f's_cmp_lg_u32 s20, 3\ns_cbranch_scc1 L_hwa{sfx}')
            wo_dma(A, 8); stamp(A, 26)
            A.label(f'L_hwa{sfx}')
        if j in WD or j in (OPT['g2'], OPT['gr'], OPT['gr'] - 1, OPT['gpp'], OPT['ca']) or (OPT['kd'] and j == OPT['gl']):
            A(f's_cmp_lt_u32 s41, 4\ns_cbranch_scc1 L_hg1{j+1}{sfx}')
            if OPT['gp'] and j == OPT['gpp']: A('s_setprio 1')
            wo_dma(A, j)
            if j == OPT['gl'] and OPT['kd']:
                assert OPT['g2'] > j >= OPT['gr']
                kvread(A, 0)
                if j == OPT['gr']: A('s_waitcnt lgkmcnt(0)')
            if j == OPT['gr']: readout(A, R1, 180, 0)
            if j == OPT['gr'] - 1: readout2(A, R1, 180)
            if j == OPT['ca']:
                assert j < OPT['gr'] - 1 and not OPT['ew']
                A('s_waitcnt vmcnt(0)'); count_add(A, S_C3)
            if j == OPT['g2']:
                assert min(WD + [8]) > j
                if WD:
                    A('s_waitcnt vmcnt(0)')
                    lds_add(A, C_WO, 4)
                lds_spin(A, C_KV, 4 if OPT['ua'] and OPT['clr'] >= 100 else 1, 4, 5)
                stamp(A, 10)
                kvload()
            A.label(f'L_hg1{j+1}{sfx}')
    R1 = M
    if hooks: stamp(A, 50)
    for j in order: A(f'ds_read_b128 {vr(KF[j],4)}, v{KRD} offset:{j*1024}'); lq.push(('k', j))
    buf = {8: M, 0: X, 7: Y, 6: Z, 5: NM, 4: X, 3: Y, 2: Z, 1: NM}
    def qk(j, dst):
        lq.wait(('k', j))
        A(mfma32(dst, KF[j], 28, None))
    def hook0():
        if hooks: stamp(A, 9)
    if fast:
        qk(8, M)
        if checks:
            A('v_mov_b32 v2, 0xff800000')
            for r in range(0, 16, 2): A(f'v_mov_b64 v[{NM+r}:{NM+r+1}], 0')
        else: qk(0, NM)
    else:
        for j in (8, 0, 7, 6, 5): qk(j, buf[j])
        if checks:
            A(f's_cmp_ge_u32 {S_T}, 8\ns_cbranch_scc1 L_t0{sfx}\ns_nop 7')
            for r in range(16): A(f'v_mov_b32 v{X+r}, 0xff800000')
            A.label(f'L_t0{sfx}'); A('s_nop 7')
        for r in range(16): A(f'v_cndmask_b32_e64 v{M+r}, v{X+r}, v{M+r}, s[{64+2*r}:{65+2*r}]')
        qk(4, buf[4])
        A(f'v_max_f32 v2, v{M}, v{M+1}\nv_max_f32 v3, v{M+2}, v{M+3}')
        for m in range(1, 4): A(f'v_max3_f32 v2, v2, v{M+4*m}, v{M+4*m+1}\nv_max3_f32 v3, v3, v{M+4*m+2}, v{M+4*m+3}')
        for j in (7, 6, 5, 4, 3, 2, 1):
            b = buf[j]
            if checks: A(f's_cmp_lt_u32 {S_T}, {8-j}\ns_cbranch_scc1 L_bm{sfx}')
            for m in range(4): A(f'v_max3_f32 v2, v2, v{b+4*m}, v{b+4*m+1}\nv_max3_f32 v3, v3, v{b+4*m+2}, v{b+4*m+3}')
            if j - 4 >= 1: qk(j - 4, buf[j - 4])
        if checks:
            A.label(f'L_bm{sfx}'); A.fence(); A('s_waitcnt lgkmcnt(0)\ns_nop 15'); lq.q = []
        A('v_max_f32 v2, v2, v3\nv_mov_b32 v3, v2\nv_permlane32_swap_b32 v2, v3\nv_max_f32 v2, v2, v3')
        hook0()
        A(f'v_sub_f32 v{NM}, 0, v2\nv_sub_f32 v{NM+1}, 0, v2')
        for r in range(2, 16, 2): A(f'v_mov_b64 v[{NM+r}:{NM+r+1}], v[{NM}:{NM+1}]')
    vs = [0]
    def vreads(js):
        A('s_mov_b64 exec, s[28:29]')
        out = {}
        for j in js:
            for blk in range(2):
                st = VRING + 4 * (vs[0] % 4); vs[0] += 1
                A(f'ds_read_b128 {vr(st,4)}, v{VRD} offset:{j*1024 + blk*512}'); lq.push(('v', j, blk)); out[(j, blk)] = st
        A('s_mov_b64 exec, -1')
        return out
    first = [True]
    def pv(j, blk, vreg, p):
        def f():
            lq.wait(('v', j, blk))
            A(mfma32(O, vreg, p, None if first[0] else O))
            first[0] = False
        return f
    buf2 = {7: X, 6: Y, 5: Z, 4: X, 3: Y, 2: Z, 1: X}
    def qk2(j):
        def f():
            if checks:
                uid[0] += 1; n = uid[0]
                A(f's_cmp_lg_u32 {S_T}, {7-j}\ns_cbranch_scc1 L_ni{n}\ns_nop 7')
                for r in range(16): A(f'v_mov_b32 v{NM+r}, 0xff800000')
                A.label(f'L_ni{n}'); A.fence(); A('s_nop 1')
            lq.wait(('k', j))
            A(mfma32(buf2[j], KF[j], 28, None if fast and not checks else NM))
        return f
    def tile(b, pend, pre=()):
        ops = list(pre) + [f'v_exp_f32 v{b+r}, v{b+r}' for r in range(16)] + [f'v_cvt_pk_bf16_f32 v{b+m}, v{b+2*m}, v{b+2*m+1}' for m in range(8)]
        n0 = len(pre); step = max(1, 16 // max(1, len(pend)))
        pos = {n0 + 1 + i * step: f for i, f in enumerate(pend)}
        for i, o in enumerate(ops):
            if i in pos: pos[i]()
            A(o)
    vv = vreads([8, 0])
    if fast: pre = [f'v_cndmask_b32_e64 v{M+r}, v{2 if checks else NM+r}, v{M+r}, s[{64+2*r}:{65+2*r}]' for r in range(16)]
    else: pre = [f'v_sub_f32 v{M+r}, v{M+r}, v2' for r in range(16)]
    tile(M, [qk2(7), qk2(6)], pre=pre)
    for m in range(8): A(f'v_bfi_b32 v{M+8+m}, v{PMASK+m}, 0, v{M+m}')
    for m in range(8): A(f'v_and_b32 v{M+m}, v{PMASK+m}, v{M+m}')
    pend = [pv(8, 0, vv[(8, 0)], M), pv(8, 1, vv[(8, 1)], M + 4), pv(0, 0, vv[(0, 0)], M + 8), pv(0, 1, vv[(0, 1)], M + 12), qk2(5)]
    if fast: hook0()
    for j in (7, 6, 5, 4, 3, 2, 1):
        b = buf2[j]
        if OPT['w1']: lq.all()
        if hooks: hook(j)
        if j == 7 and OPT['v7']:
            vv = {}
            k7 = 3 - OPT['w1']
            f3 = pend[k7]
            pend[k7] = lambda: (f3(), vv.update(vreads([7])))
            tile(b, pend)
        elif j == 7:
            tile(b, pend); vv = vreads([j])
        else:
            vv = vreads([j]); tile(b, pend)
        pend = [pv(j, 0, vv[(j, 0)], b), pv(j, 1, vv[(j, 1)], b + 4)]
        if j - 3 >= 1: pend.append(qk2(j - 3))
    for f in pend: f()
    if hooks:
        hook(0); hook(-1)

def add_pads(txt):
    import subprocess, re, tempfile
    lines = txt.split('\n')
    d = tempfile.mkdtemp()
    tmp = txt.replace(';PAD', '    s_nop 0').replace('L_code_end:', ''.join(f'L_chain{i}:\n' for i in range(8)) + 'L_code_end:')
    open(d + '/a.s', 'w').write(tmp)
    subprocess.check_call(['clang', '-x', 'assembler', '-target', 'amdgcn-amd-amdhsa', '-mcpu=gfx950', '-c', d + '/a.s', '-o', d + '/a.o'])
    dis = subprocess.check_output(['llvm-objdump', '-d', d + '/a.o']).decode()
    addrs = [int(m.group(1), 16) for m in re.finditer(r'// ([0-9A-F]{12}):', dis)]
    out = []; k = 0; shift = 0x300; nxt = 4096; skip = True; walk = False
    for ln in lines:
        if ln.strip() == 's_mov_b64 exec, 0': walk = True
        if ln.startswith('L_padret0'): skip = False
        if ln.startswith('L_cold'): skip = True
        if ln == ';PAD' or (ln.startswith('    ') and not ln.strip().startswith('.')):
            a = addrs[k] + shift; k += 1
            if a >= nxt and not walk:
                nxt += 4096
                if ln != ';PAD' and not skip: out.append(';PAD'); shift += 4
        out.append(ln)
        if ln.strip() == 's_mov_b64 exec, -1': walk = False
    idx = [i for i, ln in enumerate(out) if ln == ';PAD']
    n = len(idx)
    for j, i in enumerate(idx):
        head = f'L_chain{j}:\n' if j < 8 else ''
        out[i] = f'{head}L_pad{j}:\n    s_cbranch_execz ' + ('L_padret0' if j < 4 else f'L_pad{j+4}' if j + 4 < n else 'L_padret1')
    return '\n'.join(out)

def main():
    A = Asm()
    A.raw(f'; @launch grid=(256,1,1) block=(512,1,1) lds={LDS_SIZE}')
    A.raw('.amdgcn_target "amdgcn-amd-amdhsa--gfx950"\n.text')
    gen(A)
    A.raw('L_code_end:\n.p2align 8\n.fill 64, 4, 0xbf800000')
    A.raw(kd(NAME, 256, 100))
    txt = A.text()
    if OPT['pads']: txt = add_pads(txt)
    if OPT['nf']:
        L = txt.split('\n')
        for i, x in enumerate(L):
            y = x.strip()
            if OPT['nf'] & 1 and y.startswith('buffer_store_dwordx4') and 's[52:55]' in y: L[i] = x.replace('sc1', 'sc1 nt')
            if OPT['nf'] & 2 and y.startswith('buffer_load_dwordx4') and 's[52:55]' in y: L[i] = x.replace('sc1', 'nt sc1')
            if OPT['nf'] & 4 and y.startswith('buffer_load_dwordx4') and 's[44:47], s32' in y: L[i] = x.replace(' lds', ' nt lds')
            if OPT['nf'] & 8 and y.startswith('buffer_load_dwordx4') and 's[48:51], s33' in y: L[i] = x.replace(' lds', ' nt lds')
            if OPT['nf'] & 16 and y.startswith('buffer_load_dwordx4') and 's[44:47], s24' in y: L[i] = x.replace(' lds', ' nt lds')
        txt = '\n'.join(L)
    sys.stdout.write(txt)
main()
```
